```python
import torch

def _softmax(x, axis=-1):
    return torch.softmax(x, dim=axis)
def _gelu(x):
    return torch.nn.functional.gelu(x, approximate="tanh")
def _silu(x):
    return torch.nn.functional.silu(x)
def _sigmoid(x):
    return torch.sigmoid(x)
def _layernorm(x, axis=-1, eps=1e-5):
    m = x.mean(dim=axis, keepdim=True)
    v = x.var(dim=axis, keepdim=True, unbiased=False)
    return (x - m) / torch.sqrt(v + eps)
def _scatter_add(tgt, idx, src, axis=0):
    return tgt.clone().index_add_(axis, idx, src)
def _segment_sum(src, seg, n):
    out = torch.zeros((n,) + src.shape[1:], dtype=src.dtype)
    return out.index_add_(0, seg, src)
def _pad(x, pw):
    flat = tuple(v for pair in reversed(pw) for v in pair)
    return torch.nn.functional.pad(x, flat)

kernel_name = 'sequential_preLN__sliding_block_cached__geglu_ffn__decode'

def setup_inputs():

    _w = (lambda a: (lambda t: t.to(torch.bfloat16) if t.is_floating_point() else t)(torch.as_tensor(a)))
    def _A_setup():
        B, Sq, D = 2, 1, 512
        Hq, Hkv, Sk, Dh = 32, 32, 4096, 128
        assert Hq % Hkv == 0, (Hq, Hkv)
        return {
            "x": _w((lambda *s: torch.randn(*s, dtype=torch.bfloat16) * 0.05)(B, Sq, D)),
            "k_cache": _w((lambda *s: torch.randn(*s, dtype=torch.bfloat16) * 3.2)(B, Hkv, Sk, Dh)),
            "v_cache": _w((lambda *s: torch.randn(*s, dtype=torch.bfloat16) * 0.4)(B, Hkv, Sk, Dh)),
            "wq": _w((lambda *s: torch.randn(*s, dtype=torch.bfloat16) * 3.2)(D, Hq * Dh) * (D ** -0.5)),
            "wo": _w((lambda *s: torch.randn(*s, dtype=torch.bfloat16) * 0.4)(Hq * Dh, D) * ((Hq * Dh) ** -0.5)),
        }
    _A_in = _A_setup()

    def _B_setup():
        B, S, D, F = 2, 1, 512, 1376
        return {
            "x": _w((lambda *s: torch.randn(*s, dtype=torch.bfloat16) * 0.05)(B, S, D)),
            "w_gate": _w((lambda *s: torch.randn(*s, dtype=torch.bfloat16) * 0.05)(D, F)),
            "w_up": _w((lambda *s: torch.randn(*s, dtype=torch.bfloat16) * 0.05)(D, F)),
            "w_down": _w((lambda *s: torch.randn(*s, dtype=torch.bfloat16) * 0.05)(F, D)),
        }
    _B_in = _B_setup()

    return {
        "A_x": _A_in["x"],
        "A_k_cache": _A_in["k_cache"],
        "A_v_cache": _A_in["v_cache"],
        "A_wq": _A_in["wq"],
        "A_wo": _A_in["wo"],
        "B_x": _B_in["x"],
        "B_w_gate": _B_in["w_gate"],
        "B_w_up": _B_in["w_up"],
        "B_w_down": _B_in["w_down"],
    }

def reference(A_x, A_k_cache, A_v_cache, A_wq, A_wo, B_x, B_w_gate, B_w_up, B_w_down):
    def _A_ref(x, k_cache, v_cache, wq, wo):
        B, Sq, D = x.shape
        Hq, Dh = 32, 128
        Hkv, Sk = k_cache.shape[1], k_cache.shape[2]
        W = min(4096, max(256, Sk // 4))
        rep = Hq // Hkv
        q = (lambda x, *d: x.permute(*d))((x @ wq).reshape(B, Sq, Hq, Dh), 0, 2, 1, 3)
        k = (lambda x, n, axis: torch.repeat_interleave(x, n, dim=axis))(k_cache[:, :, Sk - W:, :], rep, axis=1)
        v = (lambda x, n, axis: torch.repeat_interleave(x, n, dim=axis))(v_cache[:, :, Sk - W:, :], rep, axis=1)
        scores = torch.einsum("bhqd,bhkd->bhqk", q, k) * (Dh ** -0.5)
        p = _softmax(scores, axis=-1)
        o = torch.einsum("bhqk,bhkd->bhqd", p, v)
        return (lambda x, *d: x.permute(*d))(o, 0, 2, 1, 3).reshape(B, Sq, Hq * Dh) @ wo

    def _B_ref(x, w_gate, w_up, w_down):
        return (_gelu(x @ w_gate) * (x @ w_up)) @ w_down

    x = A_x
    h = x + _A_ref(_layernorm(x, axis=-1), A_k_cache, A_v_cache, A_wq, A_wo)
    h2 = h + _B_ref(_layernorm(h, axis=-1), B_w_gate, B_w_up, B_w_down)
    return h2
```

```python
import re

TRANS = ("v_exp_f32", "v_log_f32", "v_rcp_f32", "v_rsq_f32", "v_sqrt_f32", "v_sin_f32", "v_cos_f32")
_REG = re.compile(r"^(-|abs\()?([vsa])(\d+)\)?$")
_RANGE = re.compile(r"^(-)?([vsa])\[(\d+):(\d+)\]$")


def regs_of(op):
    op = op.strip()
    m = _REG.match(op)
    if m:
        return {(m.group(2), int(m.group(3)))}
    m = _RANGE.match(op)
    if m:
        return {(m.group(2), i) for i in range(int(m.group(3)), int(m.group(4)) + 1)}
    if op == "vcc":
        return {("s", "vcc_lo"), ("s", "vcc_hi")}
    if op in ("vcc_lo", "vcc_hi"):
        return {("s", op)}
    if op == "exec":
        return {("s", "exec_lo"), ("s", "exec_hi")}
    if op in ("exec_lo", "exec_hi", "m0"):
        return {("s", op)}
    return set()


def split_ops(s):
    out, depth, cur = [], 0, ""
    for ch in s:
        if ch in "[(":
            depth += 1
        if ch in "])":
            depth -= 1
        if ch == "," and depth == 0:
            out.append(cur.strip())
            cur = ""
        else:
            cur += ch
    if cur.strip():
        out.append(cur.strip())
    return out


class Ins:
    def __init__(self, text):
        self.text = text
        t = text.split(";")[0].strip()
        self.label = None
        self.directive = t.startswith(".") or not t
        if t.endswith(":") and not self.directive:
            self.label = t[:-1]
        self.op = "" if (self.label or self.directive) else t.split()[0]
        rest = t[len(self.op):].strip() if self.op else ""
        ops = split_ops(rest)
        if ops:
            last = ops[-1].split()
            ops[-1] = last[0] if last else ""
            self.mods = " ".join(last[1:])
        else:
            self.mods = ""
        self.ops = ops
        op = self.op
        self.is_valu = op.startswith("v_") and not op.startswith("v_mfma")
        self.is_mfma = op.startswith("v_mfma")
        self.is_vmem = op.startswith(("global_", "buffer_", "flat_"))
        self.is_ds = op.startswith("ds_")
        self.is_salu = op.startswith("s_")
        self.is_dpp = "_dpp" in op
        self.is_perml = op.startswith("v_permlane")
        self.is_rdlane = op.startswith(("v_readlane", "v_readfirstlane"))
        self.is_trans = any(op.startswith(x) for x in TRANS)
        self.is_dot = op.startswith("v_dot")
        self.is_branch = op.startswith(("s_branch", "s_cbranch"))
        self.target = ops[0] if self.is_branch else None
        self.ends = op in ("s_endpgm", "s_branch")
        self.nop = int(ops[0]) + 1 if op == "s_nop" else 0
        R = [regs_of(o) for o in ops]
        w, r = set(), set()
        self.srcc = set()
        self.srcab = set()
        self.store_data = set()
        if not op:
            pass
        elif self.is_mfma:
            w = R[0]
            self.srcab = R[1] | R[2]
            self.srcc = R[3]
            r = self.srcab | self.srcc
        elif self.is_perml:
            w = R[0] | R[1]
            r = R[0] | R[1]
        elif self.is_valu and not R:
            pass
        elif self.is_valu:
            w = set(R[0])
            k = 1
            if re.match(r"v_(add|sub|subrev|addc|subb|subbrev)_co_", op) or op.startswith("v_div_scale"):
                w |= R[1]
                k = 2
            for x in R[k:]:
                r |= x
            if op.startswith(("v_fmac", "v_dot2c", "v_writelane")) or "_dpp" in op and "bank_mask:0xf" not in self.mods:
                r |= R[0]
            if "_dpp" in op and ("row_mask:0xf" not in self.mods):
                r |= R[0]
            if op.startswith("v_cndmask") and len(ops) == 3:
                r |= regs_of("vcc")
            if self.is_dot:
                self.srcab = R[1] | R[2]
                self.srcc = R[0] if op.startswith("v_dot2c") else (R[3] if len(R) > 3 else set())
        elif self.is_vmem:
            if "_store_" in op or ("_atomic_" in op and "sc0" not in self.mods):
                for x in R:
                    r |= x
                if op.endswith(("x3", "x4")):
                    self.store_data = R[1] if op.startswith("global_") else R[0]
            elif "_lds_" in op or " lds" in (" " + self.mods):
                for x in R:
                    r |= x
                r |= {("s", "m0")}
            else:
                w = R[0]
                for x in R[1:]:
                    r |= x
        elif self.is_ds:
            if op.startswith(("ds_read", "ds_bpermute", "ds_permute", "ds_swizzle")) or "_rtn_" in op:
                w = R[0]
                for x in R[1:]:
                    r |= x
            else:
                for x in R:
                    r |= x
        elif self.is_salu:
            if op.startswith(("s_cmp", "s_cbranch", "s_branch", "s_waitcnt", "s_barrier", "s_nop", "s_endpgm", "s_setprio", "s_sleep", "s_bitcmp")):
                for x in R:
                    r |= x
                if op.startswith("s_cbranch_vcc"):
                    r |= regs_of("vcc")
            else:
                w = set(R[0]) if R else set()
                for x in R[1:]:
                    r |= x
                if "saveexec" in op:
                    w |= regs_of("exec")
        self.w, self.r = w, r

    def slots(self):
        if self.label or self.directive:
            return 0
        return self.nop if self.nop else 1


def isv(x):
    return x[0] in ("v", "a")


def need(p, c):
    n = 0
    pv = {x for x in p.w if isv(x)}
    ps = {x for x in p.w if x[0] == "s"}
    if p.is_valu:
        if pv & c.r:
            if c.is_dpp or c.is_perml or c.is_mfma:
                n = max(n, 2)
            if c.is_rdlane:
                n = max(n, 1)
            if p.is_trans and not c.is_trans:
                n = max(n, 1)
        if p.is_dot and (pv & (c.r | c.w)):
            if c.op == p.op and not (pv & c.srcab):
                pass
            else:
                n = max(n, 3)
        if ps & c.r:
            if c.is_valu or c.is_mfma:
                n = max(n, 4 if (c.is_rdlane or c.op.startswith("v_writelane")) else 2)
            if c.is_vmem:
                n = max(n, 5)
            if c.is_salu and not c.op.startswith("s_cbranch"):
                n = max(n, 1)
    if p.is_mfma:
        big = "32x32" in p.op
        full = 12 if big else 8
        part = 10 if big else 6
        war = 7 if big else 3
        if c.is_mfma:
            if pv & c.srcab:
                n = max(n, full)
            if pv & c.srcc and not (pv == c.srcc and c.op == p.op):
                n = max(n, part)
            if pv & c.w and not (pv == c.w and c.op == p.op):
                n = max(n, part)
        elif pv & (c.r | c.w):
            n = max(n, full)
        if c.is_valu and (p.srcc & c.w):
            n = max(n, war)
    if p.store_data and (p.store_data & c.w) and (c.is_valu or c.is_mfma):
        n = max(n, 2)
    if p.store_data and (p.store_data & c.w):
        n = max(n, 1)
    if p.is_salu and ("s", "m0") in p.w and c.is_vmem and ("s", "m0") in c.r:
        n = max(n, 1)
    return n


class Asm:
    def __init__(self):
        self.ins = []

    def __call__(self, text):
        for line in text.split("\n"):
            line = line.strip()
            if line:
                self.ins.append(Ins(line))

    def _preds(self):
        lab = {x.label: i for i, x in enumerate(self.ins) if x.label}
        preds = [[] for _ in self.ins]
        for i, x in enumerate(self.ins):
            if i + 1 < len(self.ins) and not x.ends:
                preds[i + 1].append(i)
            if x.is_branch:
                preds[lab[x.target]].append(i)
        return preds

    def fix_hazards(self, verbose=False):
        MAXD = 12
        total = 0
        while True:
            preds = self._preds()
            changed = False
            for i, c in enumerate(self.ins):
                if not c.op or c.op == "s_nop":
                    continue
                worst = 0
                why = None
                stack = [(p, 0) for p in preds[i]]
                seen = set()
                while stack:
                    j, d = stack.pop()
                    if (j, d) in seen or d >= MAXD:
                        continue
                    seen.add((j, d))
                    p = self.ins[j]
                    if p.op:
                        k = need(p, c) - d
                        if k > worst:
                            worst, why = k, p.text
                    d2 = d + p.slots()
                    for q in preds[j]:
                        stack.append((q, d2))
                if worst > 0:
                    if verbose:
                        print(f"nop {worst} before '{c.text}' after '{why}'")
                    self.ins.insert(i, Ins(f"s_nop {worst - 1}"))
                    total += worst
                    changed = True
                    break
            if not changed:
                return total

    def text(self):
        out = []
        for x in self.ins:
            out.append(x.text if (x.label or x.directive) else "    " + x.text)
        return "\n".join(out)
```

```python
import sys
from asmlib import Asm

KN = "sequential_preLN__sliding_block_cached__geglu_ffn__decode_kernel"
HEADER = open("sequential_preLN__sliding_block_cached__geglu_ffn__decode.s.ref").read().split("; Override launch")[0]

WS_QP, WS_OP, WS_ML, WS_YP, WS_H, WS_FP, WS_ST = 0x1000, 0x50000, 0x70000, 0x80000, 0x100000, 0x110000, 0x200000
FP_STRIDE = 3072
TAGC = 0x9E3779B9
L_Q, L_MAX, L_SUM, L_CNT, L_OP, L_RED, L_W = 0, 256, 288, 320, 512, 4608, 12288
ROWP = 1040
GUP = 1088
L_G = L_W
L_U = L_G + 32 * GUP + 128
L_D = L_U + 32 * GUP + 128
LDS_BYTES = L_D + 32 * ROWP
SPIN = 1 << 16

sX, sK, sV, sWQ, sWO, sWG, sWU, sWD, sOUT, sWS = "s[4:5]", "s[6:7]", "s[8:9]", "s[10:11]", "s[12:13]", "s[16:17]", "s[18:19]", "s[20:21]", "s[22:23]", "s[26:27]"
sXCD, sH, sJ, sW, sT = "s28", "s29", "s30", "s31", "s32"
sT1, sT2, sT3 = "s33", "s34", "s35"
sSELA, sSELB, sHI = "s36", "s37", "s38"
sSPIN = "s39"
sA, sB, sC, sD = "s40", "s41", "s42", "s43"
sM0, sM1 = "s[44:45]", "s[46:47]"
sF = "s48"
sK1, sK2, sK3 = "s49", "s50", "s51"
sP = "s[52:53]"
sQ = "s[54:55]"
ST0 = 64


def vr(a, n=1):
    return f"v{a}" if n == 1 else f"v[{a}:{a + n - 1}]"


class Gen:
    def __init__(self, diag=False, nt="nt", wnt="nt", prefetch=True):
        self.a = Asm()
        self.diag = diag
        self.nt = nt
        self.wnt = wnt
        self.prefetch = prefetch
        self.uid = 0

    def stamp(self, i):
        if self.diag:
            self.a(f"s_memrealtime s[{ST0 + 2 * i}:{ST0 + 2 * i + 1}]")

    def end(self):
        self.a("s_branch L_exit" if self.diag else "s_endpgm")

    def bf16r(self, d, x):
        self.a(f"v_cvt_pk_bf16_f32 {vr(d)}, {vr(x)}, {vr(x)}\nv_and_b32 {vr(d)}, {sHI}, {vr(d)}")

    def unpack(self, d, s, n):
        for i in range(n):
            self.a(f"v_lshlrev_b32 {vr(d + 2 * i)}, 16, {vr(s + i)}\nv_and_b32 {vr(d + 2 * i + 1)}, {sHI}, {vr(s + i)}")

    def red8x(self, op, regs, tmp):
        a = self.a
        for mod in ("quad_perm:[1,0,3,2]", "quad_perm:[2,3,0,1]", "row_half_mirror"):
            for r in regs:
                a(f"{op}_dpp {vr(r)}, {vr(r)}, {vr(r)} {mod} row_mask:0xf bank_mask:0xf")
        self.redrows(op, regs, tmp)

    def redrows(self, op, regs, tmp):
        a = self.a
        for sw in ("v_permlane16_swap_b32", "v_permlane32_swap_b32"):
            for i, r in enumerate(regs):
                a(f"v_mov_b32 {vr(tmp + i)}, {vr(r)}")
            for i, r in enumerate(regs):
                a(f"{sw} {vr(r)}, {vr(tmp + i)}")
            for i, r in enumerate(regs):
                a(f"{op} {vr(r)}, {vr(r)}, {vr(tmp + i)}")

    def selectors(self, sel, lane, t0, nm):
        a = self.a
        a(f"v_and_b32 {vr(t0)}, 1, {vr(lane)}")
        a(f"v_cmp_eq_u32 vcc, 1, {vr(t0)}")
        a(f"v_mov_b32 {vr(t0 + 1)}, 0x0c0c0100\nv_mov_b32 {vr(t0 + 2)}, 0x01000c0c")
        a(f"v_cndmask_b32 {vr(t0 + 1)}, {vr(t0 + 1)}, {vr(t0 + 2)}, vcc")
        a(f"v_mov_b32 {vr(t0 + 2)}, 0x0c0c0302\nv_mov_b32 {vr(t0 + 3)}, 0x03020c0c")
        a(f"v_cndmask_b32 {vr(t0 + 2)}, {vr(t0 + 2)}, {vr(t0 + 3)}, vcc")
        a(f"v_bfe_u32 {vr(t0)}, {vr(lane)}, 1, 2")
        a(f"v_mov_b32 {vr(t0 + 3)}, 0x0c0c0c0c")
        for m in range(nm):
            a(f"v_cmp_eq_u32 vcc, {m}, {vr(t0)}")
            a(f"v_cndmask_b32 {vr(sel + 2 * m)}, {vr(t0 + 3)}, {vr(t0 + 1)}, vcc")
            a(f"v_cndmask_b32 {vr(sel + 2 * m + 1)}, {vr(t0 + 3)}, {vr(t0 + 2)}, vcc")

    def tag_consts(self):
        a = self.a
        a(f"s_add_u32 {sT}, {sT}, {TAGC}")
        a(f"s_lshr_b32 {sT1}, {sT}, 8\ns_lshr_b32 {sT2}, {sT}, 16\ns_lshr_b32 {sT3}, {sT}, 24")
        a(f"s_mov_b32 {sSELA}, 0x0c0c0400\ns_mov_b32 {sSELB}, 0x04000c0c")

    def tag4(self, d, mask):
        for i, s in enumerate((sT, sT1, sT2, sT3)):
            self.a(f"v_bfi_b32 {vr(d + i)}, {vr(mask)}, {vr(d + i)}, {s}")

    def chk4(self, t, g):
        a = self.a
        a(f"v_perm_b32 {vr(t)}, {vr(g + 1)}, {vr(g)}, {sSELA}")
        a(f"v_perm_b32 {vr(t + 1)}, {vr(g + 3)}, {vr(g + 2)}, {sSELB}")
        a(f"v_bitop3_b32 {vr(t)}, {vr(t)}, {vr(t + 1)}, {sT} bitop3:0x56")

    def poll(self, loads, check):
        a = self.a
        self.uid += 1
        L = f"L_poll{self.uid}"
        a(f"s_mov_b32 {sSPIN}, 0\n{L}:")
        loads()
        a(f"s_add_u32 {sSPIN}, {sSPIN}, 1\ns_cmp_gt_u32 {sSPIN}, {SPIN}\ns_cbranch_scc1 L_bail")
        a("s_waitcnt vmcnt(0)")
        check()
        a(f"s_cbranch_vccnz {L}")

    def tr_reduce4(self, v):
        a = self.a
        a(f"v_permlane32_swap_b32 {vr(v)}, {vr(v + 1)}")
        a(f"v_permlane32_swap_b32 {vr(v + 2)}, {vr(v + 3)}")
        a(f"v_add_f32 {vr(v)}, {vr(v)}, {vr(v + 1)}")
        a(f"v_add_f32 {vr(v + 2)}, {vr(v + 2)}, {vr(v + 3)}")
        a(f"v_permlane16_swap_b32 {vr(v)}, {vr(v + 2)}")
        a(f"v_add_f32 {vr(v)}, {vr(v)}, {vr(v + 2)}")
        a(f"v_add_f32_dpp {vr(v)}, {vr(v)}, {vr(v)} row_ror:4 row_mask:0xf bank_mask:0xf")
        a(f"v_add_f32_dpp {vr(v)}, {vr(v)}, {vr(v)} row_ror:8 row_mask:0xf bank_mask:0xf")

    def ln_stats(self, F, t):
        a = self.a
        S, U = t + 3, t + 4
        a(f"v_pk_add_f32 {vr(U, 2)}, {vr(F, 2)}, {vr(F + 2, 2)}")
        a(f"v_pk_add_f32 {vr(U + 2, 2)}, {vr(F + 4, 2)}, {vr(F + 6, 2)}")
        for i in range(2):
            a(f"v_pk_add_f32 {vr(U, 2)}, {vr(U, 2)}, {vr(F + 8 + 4 * i, 2)}")
            a(f"v_pk_add_f32 {vr(U + 2, 2)}, {vr(U + 2, 2)}, {vr(F + 10 + 4 * i, 2)}")
        a(f"v_pk_add_f32 {vr(U, 2)}, {vr(U, 2)}, {vr(U + 2, 2)}")
        a(f"v_add_f32 {vr(S)}, {vr(U)}, {vr(U + 1)}")
        self.red8x("v_add_f32", [S], U)
        a(f"v_mul_f32 {vr(S)}, 0x3b000000, {vr(S)}")
        D = F + 16
        for i in range(16):
            a(f"v_sub_f32 {vr(D + i)}, {vr(F + i)}, {vr(S)}")
        a(f"v_pk_mul_f32 {vr(U, 2)}, {vr(D, 2)}, {vr(D, 2)}")
        a(f"v_pk_mul_f32 {vr(U + 2, 2)}, {vr(D + 2, 2)}, {vr(D + 2, 2)}")
        for i in range(1, 4):
            a(f"v_pk_fma_f32 {vr(U, 2)}, {vr(D + 4 * i, 2)}, {vr(D + 4 * i, 2)}, {vr(U, 2)}")
            a(f"v_pk_fma_f32 {vr(U + 2, 2)}, {vr(D + 4 * i + 2, 2)}, {vr(D + 4 * i + 2, 2)}, {vr(U + 2, 2)}")
        a(f"v_pk_add_f32 {vr(U, 2)}, {vr(U, 2)}, {vr(U + 2, 2)}")
        self.bf16r(t, S)
        a(f"v_add_f32 {vr(S)}, {vr(U)}, {vr(U + 1)}")
        self.red8x("v_add_f32", [S], U)
        a(f"v_mul_f32 {vr(S)}, 0x3b000000, {vr(S)}")
        self.bf16r(S, S)
        a(f"v_add_f32 {vr(S)}, 0x3727c5ac, {vr(S)}")
        self.bf16r(S, S)
        a(f"v_sqrt_f32 {vr(S)}, {vr(S)}")
        self.bf16r(t + 1, S)
        a(f"v_rcp_f32 {vr(t + 2)}, {vr(t + 1)}")

    def ln_apply(self, F, n, t, P, tmp):
        a = self.a
        for i in range(n):
            a(f"v_sub_f32 {vr(F + i)}, {vr(F + i)}, {vr(t)}")
        for i in range(n // 2):
            a(f"v_cvt_pk_bf16_f32 {vr(P + i)}, {vr(F + 2 * i)}, {vr(F + 2 * i + 1)}")
        self.unpack(F, P, n // 2)
        for i in range(n):
            a(f"v_mul_f32 {vr(tmp + i)}, {vr(F + i)}, {vr(t + 2)}")
        for i in range(n):
            a(f"v_fma_f32 {vr(F + i)}, -{vr(tmp + i)}, {vr(t + 1)}, {vr(F + i)}")
        for i in range(n):
            a(f"v_fma_f32 {vr(F + i)}, {vr(F + i)}, {vr(t + 2)}, {vr(tmp + i)}")
        for i in range(n // 2):
            a(f"v_cvt_pk_bf16_f32 {vr(P + i)}, {vr(F + 2 * i)}, {vr(F + 2 * i + 1)}")

    def gemv16(self, D, X, SEL, B, A, steps):
        a = self.a
        for t in range(steps):
            for m in range(2):
                a(f"v_perm_b32 {vr(A + 2 * t + m)}, {vr(X + t // 2)}, {vr(X + t // 2)}, {vr(SEL + 2 * m + (t & 1))}")
            if t >= 1:
                u = t - 1
                a(f"v_mfma_f32_16x16x16_bf16 {vr(D, 4)}, {vr(A + 2 * u, 2)}, {vr(B + 2 * u, 2)}, {vr(D, 4) if u else 0}")
        u = steps - 1
        a(f"v_mfma_f32_16x16x16_bf16 {vr(D, 4)}, {vr(A + 2 * u, 2)}, {vr(B + 2 * u, 2)}, {vr(D, 4)}")

    def role(self, lw, lr, lf, ln):
        a = self.a
        a(f"s_cmp_lt_u32 {sJ}, 4\ns_cbranch_scc1 {lw}")
        a(f"s_lshl_b32 {sF}, {sH}, 1\ns_add_u32 {sF}, {sF}, {sJ}\ns_sub_u32 {sF}, {sF}, 4")
        a(f"s_cmp_lt_u32 {sJ}, 6\ns_cbranch_scc1 {lr}")
        a(f"s_sub_u32 {sF}, {sF}, 2\ns_and_b32 {sA}, {sF}, 7")
        a(f"s_min_u32 {sB}, {sXCD}, 3\ns_mul_i32 {sF}, {sXCD}, 5\ns_add_u32 {sF}, {sF}, {sB}\ns_add_u32 {sF}, {sF}, {sA}")
        a(f"s_cmp_lt_u32 {sXCD}, 3\ns_cselect_b32 {sB}, 6, 5\ns_cmp_lt_u32 {sA}, {sB}\ns_cbranch_scc1 {lf}")
        a(f"s_branch {ln}")

    def build(self):
        a = self.a
        nt, wnt = self.nt, self.wnt
        a(f"{KN}:")
        if self.diag:
            a(f"s_memrealtime s[{ST0}:{ST0 + 1}]")
        a("s_load_dwordx16 s[4:19], s[0:1], 0\ns_load_dwordx8 s[20:27], s[0:1], 64")
        a("s_cmp_ge_u32 s2, 256\ns_cbranch_scc1 L_bail")
        if self.diag:
            for i in range(1, 16):
                a(f"s_mov_b32 s{ST0 + 2 * i}, 0")
        a(f"v_readfirstlane_b32 {sW}, v0\nv_and_b32 v1, 63, v0")
        a(f"s_and_b32 {sXCD}, s2, 7\ns_lshr_b32 {sJ}, s2, 3\ns_lshr_b32 {sH}, s2, 6\ns_lshl_b32 {sA}, {sXCD}, 2\ns_add_u32 {sH}, {sH}, {sA}")
        a(f"s_and_b32 {sJ}, {sJ}, 7\ns_lshr_b32 {sW}, {sW}, 6\ns_mov_b32 {sHI}, 0xffff0000")
        a(f"s_cmp_lg_u32 {sW}, 0\ns_cbranch_scc1 L_stream")
        self.comm()
        self.stream()
        self.role_wo()
        self.role_red()
        self.role_ffn()
        a("L_none:")
        self.end()
        if self.diag:
            a("L_exit:")
            a("s_mov_b64 exec, -1\ns_waitcnt vmcnt(0) lgkmcnt(0)")
            a(f"s_memrealtime s[{ST0 + 30}:{ST0 + 31}]\ns_waitcnt lgkmcnt(0)")
            a(f"s_mul_i32 {sA}, s2, 9\ns_add_u32 {sA}, {sA}, {sW}\ns_lshl_b32 {sA}, {sA}, 6\ns_add_u32 {sA}, {sA}, {WS_ST}")
            for i in range(16):
                a(f"v_mov_b32 v{4 + i}, s{ST0 + 2 * i}")
            a(f"v_mov_b32 v2, {sA}\ns_mov_b64 exec, 1")
            for i in range(4):
                a(f"global_store_dwordx4 v2, v[{4 + 4 * i}:{7 + 4 * i}], {sWS} offset:{16 * i}")
        a("L_bail:\ns_endpgm")
        a("L_codeend:")
        nops = a.fix_hazards()
        body = a.text()
        nvg = 128
        txt = HEADER
        txt += f"; @launch grid=(256,1,1) block=(576,1,1) lds={LDS_BYTES}\n"
        txt += f'.amdgcn_target "amdgcn-amd-amdhsa--gfx950"\n.text\n.globl {KN}\n.p2align 8\n.type {KN},@function\n'
        txt += body + "\n"
        if self.prefetch:
            txt += ".fill 256, 4, 0xbf810000\n"
        txt += f""".section .rodata,"a"
.p2align 6
.amdhsa_kernel {KN}
  .amdhsa_next_free_vgpr {nvg}
  .amdhsa_next_free_sgpr 102
  .amdhsa_accum_offset {nvg}
  .amdhsa_group_segment_fixed_size 0
  .amdhsa_kernarg_size 96
  .amdhsa_user_sgpr_count 2
  .amdhsa_user_sgpr_kernarg_segment_ptr 1
  .amdhsa_system_sgpr_workgroup_id_x 1
.end_amdhsa_kernel
"""
        self.nops = nops
        return txt

    def comm(self):
        a = self.a
        nt, wnt = self.nt, self.wnt
        LANE, G, BB, T0 = 1, 2, 3, 4
        XS, XO, W, F, SEL, ST, X, A, D, MK = 8, 16, 24, 88, 120, 4, 16, 88, 96, 100
        a("s_setprio 3")
        a(f"v_lshrrev_b32 v{G}, 4, v1\nv_bfe_u32 v{BB}, v1, 3, 1")
        a(f"v_and_b32 v4, 7, v1\nv_lshl_add_u32 v4, v{G}, 3, v4\nv_lshlrev_b32 v4, 5, v4\nv_lshl_add_u32 v4, v{BB}, 10, v4")
        a(f"s_lshl_b32 {sA}, {sJ}, 7\nv_lshl_add_u32 v5, v{G}, 5, {sA}\nv_lshl_add_u32 v5, v{BB}, 10, v5")
        a(f"s_lshl_b32 {sA}, {sJ}, 19\ns_lshl_b32 {sB}, {sH}, 8\ns_add_u32 {sA}, {sA}, {sB}\ns_movk_i32 {sB}, 0x2000")
        a(f"v_and_b32 v6, 15, v1\nv_lshl_add_u32 v6, v6, 4, {sA}\nv_lshl_add_u32 v6, v{G}, 17, v6")
        a("s_waitcnt lgkmcnt(0)")
        self.stamp(1)
        a(f"s_load_dword {sT}, {sWS}, 0")
        a(f"global_load_dwordx4 {vr(XS, 4)}, v4, {sX}\nglobal_load_dwordx4 {vr(XS + 4, 4)}, v4, {sX} offset:16")
        a(f"global_load_dwordx4 {vr(XO, 4)}, v5, {sX}\nglobal_load_dwordx4 {vr(XO + 4, 4)}, v5, {sX} offset:16")
        for t in range(16):
            a(f"global_load_dwordx4 {vr(W + 4 * t, 4)}, v6, {sWQ} {wnt}")
            if t < 15:
                a(f"v_add_u32 v6, {sB}, v6")
        a("s_barrier")
        npf = 0
        if self.prefetch:
            npf = 1
            a(f"s_getpc_b64 {sP}\nL_pc:\ns_sub_u32 s52, s52, L_pc-{KN}\ns_subb_u32 s53, s53, 0")
            a(f"s_lshr_b32 {sA}, s2, 3\ns_min_u32 {sA}, {sA}, (L_codeend-{KN})/1024\ns_lshl_b32 {sA}, {sA}, 10")
            a(f"v_lshl_add_u32 v7, v1, 4, {sA}\nglobal_load_dwordx4 {vr(124, 4)}, v7, {sP}")
        a(f"v_mov_b32 v6, {L_CNT}\nv_mov_b32 v7, 0\nds_write_b32 v6, v7")
        self.selectors(112, LANE, 104, 4)
        SEL = 112
        a(f"s_waitcnt vmcnt({18 + npf})")
        self.unpack(F, XS, 8)
        self.stamp(2)
        self.ln_stats_comm(F, ST)
        a(f"s_waitcnt vmcnt({16 + npf})")
        self.unpack(F, XO, 8)
        self.ln_apply_comm(F, ST, X)
        a("s_waitcnt lgkmcnt(0)")
        self.tag_consts()
        a(f"v_mov_b32 v{MK}, 0xffffff00")
        for t in range(16):
            Ab = A + 4 * (t & 1)
            for m in range(4):
                a(f"v_perm_b32 {vr(Ab + m)}, {vr(X + t // 2)}, {vr(X + t // 2)}, {vr(SEL + 2 * m + (t & 1))}")
            a(f"s_waitcnt vmcnt({15 - t + npf})")
            a(f"v_mfma_f32_16x16x32_bf16 {vr(D, 4)}, {vr(Ab, 4)}, {vr(W + 4 * t, 4)}, {vr(D, 4) if t else 0}")
        a(f"s_lshl_b32 {sA}, {sH}, 13\ns_lshl_b32 {sB}, {sJ}, 9\ns_add_u32 {sA}, {sA}, {sB}\ns_add_u32 {sA}, {sA}, {WS_QP}")
        a(f"v_and_b32 v4, 15, v1\nv_lshl_add_u32 v4, v4, 5, {sA}\nv_bfe_u32 v5, v1, 4, 1\nv_lshl_add_u32 v4, v5, 4, v4")
        a("v_lshrrev_b32 v5, 5, v1\nv_lshl_add_u32 v4, v5, 12, v4")
        self.tag4(D, MK)
        a(f"global_store_dwordx4 v4, {vr(D, 4)}, {sWS} sc1")
        self.stamp(3)
        a(f"s_lshl_b32 {sA}, {sH}, 13\ns_lshr_b32 {sB}, {sJ}, 2\ns_lshl_b32 {sB}, {sB}, 12\ns_add_u32 {sA}, {sA}, {sB}\ns_add_u32 {sA}, {sA}, {WS_QP}")
        a(f"v_lshl_add_u32 v4, v1, 4, {sA}")
        a("s_barrier")
        self.stamp(4)
        Gq, TT = 8, 24

        def loads():
            for n in range(4):
                a(f"global_load_dwordx4 {vr(Gq + 4 * n, 4)}, v4, {sWS} offset:{1024 * n} sc1")

        def check():
            for n in range(4):
                self.chk4(TT + 2 * n, Gq + 4 * n)
            a(f"v_or3_b32 v{TT}, v{TT}, v{TT + 2}, v{TT + 4}\nv_or_b32 v{TT}, v{TT}, v{TT + 6}\nv_cmp_ne_u32 vcc, 0, v{TT}")
        self.poll(loads, check)
        self.stamp(5)
        for i in range(16):
            a(f"v_and_b32 {vr(Gq + i)}, {vr(MK)}, {vr(Gq + i)}")
        for i in range(4):
            a(f"v_add_f32 {vr(Gq + i)}, {vr(Gq + i)}, {vr(Gq + 4 + i)}\nv_add_f32 {vr(Gq + 8 + i)}, {vr(Gq + 8 + i)}, {vr(Gq + 12 + i)}")
        for i in range(4):
            a(f"v_add_f32 {vr(Gq + i)}, {vr(Gq + i)}, {vr(Gq + 8 + i)}")
        a(f"v_permlane32_swap_b32 {vr(Gq)}, {vr(Gq + 2)}\nv_permlane32_swap_b32 {vr(Gq + 1)}, {vr(Gq + 3)}")
        a(f"v_add_f32 {vr(Gq)}, {vr(Gq)}, {vr(Gq + 2)}\nv_add_f32 {vr(Gq + 1)}, {vr(Gq + 1)}, {vr(Gq + 3)}")
        a(f"v_cvt_pk_bf16_f32 {vr(Gq)}, {vr(Gq)}, {vr(Gq + 1)}")
        a(f"v_and_b32 v4, 31, v1\nv_lshlrev_b32 v4, 3, v4\nv_lshrrev_b32 v5, 5, v1\nv_lshl_add_u32 v4, v5, 2, v4")
        a(f"ds_write_b32 v4, {vr(Gq)} offset:{L_Q}\ns_waitcnt lgkmcnt(0)")
        a("s_barrier")
        self.stamp(6)
        a("s_barrier")
        self.stamp(7)
        self.role("L_cwo", "L_none", "L_cffn", "L_none")
        a("L_cwo:")
        a(f"s_lshl_b32 {sA}, {sH}, 17\ns_lshl_b32 {sB}, {sJ}, 15\ns_add_u32 {sA}, {sA}, {sB}\nv_lshl_add_u32 v4, v1, 4, {sA}")
        a(f"s_mov_b32 m0, {L_W}\ns_mov_b32 {sC}, 0\ns_movk_i32 {sB}, 0x400")
        a("L_cwo_l:")
        a(f"global_load_lds_dwordx4 v4, {sWO} {wnt}")
        a(f"s_add_u32 m0, m0, {ROWP}\nv_add_u32 v4, {sB}, v4\ns_add_u32 {sC}, {sC}, 1\ns_cmp_lt_u32 {sC}, 32\ns_cbranch_scc1 L_cwo_l")
        self.stamp(8)
        a("s_waitcnt vmcnt(0)")
        self.stamp(9)
        a("s_barrier")
        self.end()
        a("L_cffn:")
        a(f"s_movk_i32 {sB}, 2752\nv_lshrrev_b32 v4, 2, v1\nv_mul_u32_u24 v4, {sB}, v4\nv_and_b32 v5, 3, v1\nv_lshl_add_u32 v4, v5, 4, v4")
        a(f"s_lshl_b32 {sA}, {sF}, 6\nv_add_u32 v4, {sA}, v4")
        a(f"s_mov_b32 {sD}, {L_G}\ns_mov_b32 {sC}, 0\ns_mov_b32 {sB}, {16 * 2752}")
        a("L_cffn_l:")
        a(f"s_mov_b32 m0, {sD}\ns_add_u32 {sC}, {sC}, 1")
        a(f"global_load_lds_dwordx4 v4, {sWG} {wnt}")
        a(f"s_add_u32 m0, {sD}, {L_U - L_G}\ns_add_u32 {sD}, {sD}, {GUP}")
        a(f"global_load_lds_dwordx4 v4, {sWU} {wnt}")
        a(f"v_add_u32 v4, {sB}, v4\ns_cmp_lt_u32 {sC}, 32\ns_cbranch_scc1 L_cffn_l")
        a(f"s_lshl_b32 {sA}, {sF}, 15\nv_lshl_add_u32 v4, v1, 4, {sA}")
        a(f"s_mov_b32 m0, {L_D}\ns_mov_b32 {sC}, 0\ns_movk_i32 {sB}, 0x400")
        a("L_cffn_d:")
        a(f"global_load_lds_dwordx4 v4, {sWD} {wnt}")
        a(f"s_add_u32 m0, m0, {ROWP}\nv_add_u32 v4, {sB}, v4\ns_add_u32 {sC}, {sC}, 1\ns_cmp_lt_u32 {sC}, 16\ns_cbranch_scc1 L_cffn_d")
        a("s_waitcnt vmcnt(16)")
        self.stamp(8)
        a("s_barrier")
        a("L_cffn_d2:")
        a(f"global_load_lds_dwordx4 v4, {sWD} {wnt}")
        a(f"s_add_u32 m0, m0, {ROWP}\nv_add_u32 v4, {sB}, v4\ns_add_u32 {sC}, {sC}, 1\ns_cmp_lt_u32 {sC}, 32\ns_cbranch_scc1 L_cffn_d2")
        a("s_waitcnt vmcnt(0)")
        self.stamp(9)
        a("s_barrier")
        self.end()

    def ln_stats_comm(self, F, ST):
        a = self.a
        S, U, D = ST + 3, 8, 8
        a(f"v_pk_add_f32 v[104:105], {vr(F, 2)}, {vr(F + 2, 2)}\nv_pk_add_f32 v[106:107], {vr(F + 4, 2)}, {vr(F + 6, 2)}")
        for i in range(2):
            a(f"v_pk_add_f32 v[104:105], v[104:105], {vr(F + 8 + 4 * i, 2)}\nv_pk_add_f32 v[106:107], v[106:107], {vr(F + 10 + 4 * i, 2)}")
        a(f"v_pk_add_f32 v[104:105], v[104:105], v[106:107]\nv_add_f32 {vr(S)}, v104, v105")
        self.red8x("v_add_f32", [S], 104)
        a(f"v_mul_f32 {vr(S)}, 0x3b000000, {vr(S)}")
        for i in range(16):
            a(f"v_sub_f32 {vr(F + i)}, {vr(F + i)}, {vr(S)}")
        a(f"v_pk_mul_f32 v[104:105], {vr(F, 2)}, {vr(F, 2)}\nv_pk_mul_f32 v[106:107], {vr(F + 2, 2)}, {vr(F + 2, 2)}")
        for i in range(1, 4):
            a(f"v_pk_fma_f32 v[104:105], {vr(F + 4 * i, 2)}, {vr(F + 4 * i, 2)}, v[104:105]")
            a(f"v_pk_fma_f32 v[106:107], {vr(F + 4 * i + 2, 2)}, {vr(F + 4 * i + 2, 2)}, v[106:107]")
        a("v_pk_add_f32 v[104:105], v[104:105], v[106:107]")
        self.bf16r(ST, S)
        a(f"v_add_f32 {vr(S)}, v104, v105")
        self.red8x("v_add_f32", [S], 104)
        a(f"v_mul_f32 {vr(S)}, 0x3b000000, {vr(S)}")
        self.bf16r(S, S)
        a(f"v_add_f32 {vr(S)}, 0x3727c5ac, {vr(S)}")
        self.bf16r(S, S)
        a(f"v_sqrt_f32 {vr(S)}, {vr(S)}")
        self.bf16r(ST + 1, S)
        a(f"v_rcp_f32 {vr(ST + 2)}, {vr(ST + 1)}")

    def ln_apply_comm(self, F, ST, X):
        self.ln_apply(F, 8, ST, X, 8)
        self.ln_apply(F + 8, 8, ST, X + 4, 8)

    def stream(self):
        a = self.a
        nt = self.nt
        K, V, Q, P, T, SEL, D = 4, 36, 68, 72, 80, 88, 96
        MK, ADR, MREG = 100, 101, 102
        a("L_stream:")
        a(f"s_lshr_b32 {sA}, {sJ}, 2\ns_lshl_b32 {sA}, {sA}, 25\ns_lshl_b32 {sB}, {sH}, 20\ns_add_u32 {sA}, {sA}, {sB}")
        a(f"s_and_b32 {sB}, {sJ}, 3\ns_lshl_b32 {sB}, {sB}, 16\ns_add_u32 {sA}, {sA}, {sB}\ns_lshl_b32 {sB}, {sW}, 13\ns_add_u32 {sA}, {sA}, {sB}")
        a(f"s_add_u32 {sA}, {sA}, {0xC0000 + 4096 - 8192}\nv_lshl_add_u32 v2, v1, 4, {sA}")
        a("s_waitcnt lgkmcnt(0)\ns_barrier")
        self.stamp(1)
        for t in range(8):
            a(f"global_load_dwordx4 {vr(K + 4 * t, 4)}, v2, {sK} offset:{1024 * t - 4096} {nt}")
        self.stamp(2)
        a("s_barrier")
        for t in range(8):
            a(f"global_load_dwordx4 {vr(V + 4 * t, 4)}, v2, {sV} offset:{1024 * t - 4096} {nt}")
        self.stamp(3)
        a(f"s_load_dword {sT}, {sWS}, 0")
        a(f"s_sub_u32 {sW}, {sW}, 1" if not self.diag else f"s_sub_u32 s56, {sW}, 1")
        self.sw = sW if not self.diag else "s56"
        sw = self.sw
        self.selectors(SEL, 1, T, 4)
        a(f"v_and_b32 v3, 15, v1\nv_lshlrev_b32 v3, 4, v3")
        a(f"s_mov_b32 {sK1}, 0x3db504f3\ns_mov_b32 {sK2}, 0x3fb8aa3b")
        a("s_barrier")
        self.stamp(4)
        a(f"ds_read_b128 {vr(Q, 4)}, v3 offset:{L_Q}")
        for t in range(8):
            a(f"v_mov_b32 {vr(P + t)}, 0")
        a("s_waitcnt vmcnt(8) lgkmcnt(0)")
        self.tag_consts()
        for i in range(4):
            for t in range(8):
                a(f"v_dot2c_f32_bf16 {vr(P + t)}, {vr(K + 4 * t + i)}, {vr(Q + i)}")
        for rot in (8, 4, 2, 1):
            for t in range(8):
                a(f"v_add_f32_dpp {vr(P + t)}, {vr(P + t)}, {vr(P + t)} row_ror:{rot} row_mask:0xf bank_mask:0xf")
        for u in range(4):
            a(f"v_cvt_pk_bf16_f32 {vr(T + u)}, {vr(P + 2 * u)}, {vr(P + 2 * u + 1)}")
        self.unpack(P, T, 4)
        for t in range(8):
            a(f"v_mul_f32 {vr(P + t)}, {sK1}, {vr(P + t)}")
        for u in range(4):
            a(f"v_cvt_pk_bf16_f32 {vr(T + u)}, {vr(P + 2 * u)}, {vr(P + 2 * u + 1)}")
        self.unpack(P, T, 4)
        a(f"v_max3_f32 {vr(T)}, {vr(P)}, {vr(P + 1)}, {vr(P + 2)}\nv_max3_f32 {vr(T + 1)}, {vr(P + 3)}, {vr(P + 4)}, {vr(P + 5)}")
        a(f"v_max3_f32 {vr(T)}, {vr(T)}, {vr(P + 6)}, {vr(P + 7)}\nv_max_f32 {vr(T)}, {vr(T)}, {vr(T + 1)}")
        self.redrows("v_max_f32", [T], T + 1)
        a(f"s_lshl_b32 {sA}, {sw}, 2\nv_mov_b32 {vr(T + 1)}, {sA}\nds_write_b32 {vr(T + 1)}, {vr(T)} offset:{L_MAX}")
        a(f"v_mov_b32 {vr(T + 2)}, 0\ns_waitcnt lgkmcnt(0)\ns_barrier")
        self.stamp(5)
        a(f"ds_read_b128 {vr(Q, 4)}, {vr(T + 2)} offset:{L_MAX}\nds_read_b128 {vr(T + 4, 4)}, {vr(T + 2)} offset:{L_MAX + 16}")
        a(f"v_and_b32 v3, 15, v1\nv_bfe_u32 {vr(ADR)}, v1, 4, 1\nv_lshl_add_u32 v3, v3, 1, {vr(ADR)}")
        a(f"v_lshrrev_b32 {vr(ADR)}, 3, v3\nv_lshlrev_b32 {vr(ADR)}, 10, {vr(ADR)}\nv_and_b32 v3, 7, v3\nv_lshl_add_u32 {vr(ADR)}, v3, 4, {vr(ADR)}")
        a(f"s_lshl_b32 {sA}, {sH}, 12\ns_lshl_b32 {sB}, {sJ}, 7\ns_add_u32 {sA}, {sA}, {sB}\ns_add_u32 {sA}, {sA}, {WS_OP}\nv_add_u32 {vr(ADR)}, {sA}, {vr(ADR)}")
        a(f"s_lshl_b32 {sA}, {sH}, 7\ns_lshl_b32 {sB}, {sJ}, 4\ns_add_u32 {sA}, {sA}, {sB}\ns_add_u32 {sA}, {sA}, {WS_ML}\nv_mov_b32 v3, {sA}")
        a(f"v_cmp_lt_u32 {sM0}, 31, v1\nv_cndmask_b32 {vr(ADR)}, {vr(ADR)}, v3, {sM0}")
        a(f"v_mov_b32 {vr(MK)}, 0xffffff00")
        a("s_waitcnt lgkmcnt(0)")
        a(f"v_max3_f32 {vr(MREG)}, {vr(Q)}, {vr(Q + 1)}, {vr(Q + 2)}\nv_max3_f32 {vr(T)}, {vr(Q + 3)}, {vr(T + 4)}, {vr(T + 5)}")
        a(f"v_max3_f32 {vr(MREG)}, {vr(MREG)}, {vr(T + 6)}, {vr(T + 7)}\nv_max_f32 {vr(MREG)}, {vr(MREG)}, {vr(T)}")
        a(f"v_mul_f32 {vr(T)}, {sK2}, {vr(MREG)}")
        for t in range(8):
            a(f"v_fma_f32 {vr(P + t)}, {vr(P + t)}, {sK2}, -{vr(T)}")
        for t in range(8):
            a(f"v_exp_f32 {vr(P + t)}, {vr(P + t)}")
        a(f"v_bfe_u32 v3, v1, 3, 1\nv_cmp_eq_u32 vcc, 0, v3")
        for u in range(4):
            a(f"v_cvt_pk_bf16_f32 {vr(Q + u)}, {vr(P + 2 * u)}, {vr(P + 2 * u + 1)}")
        for u in range(4):
            a(f"v_cndmask_b32 {vr(Q + u)}, 0, {vr(Q + u)}, vcc")
        a(f"v_pk_add_f32 {vr(P, 2)}, {vr(P, 2)}, {vr(P + 2, 2)}\nv_pk_add_f32 {vr(P + 4, 2)}, {vr(P + 4, 2)}, {vr(P + 6, 2)}")
        a(f"v_pk_add_f32 {vr(P, 2)}, {vr(P, 2)}, {vr(P + 4, 2)}\nv_add_f32 {vr(P)}, {vr(P)}, {vr(P + 1)}")
        self.redrows("v_add_f32", [P], P + 1)
        a(f"ds_write_b32 {vr(T + 1)}, {vr(P)} offset:{L_SUM}")
        for t in range(8):
            for m in range(4):
                a(f"v_perm_b32 {vr(K + 4 * t + m)}, {vr(Q + t // 2)}, {vr(Q + t // 2)}, {vr(SEL + 2 * m + (t & 1))}")
        a(f"s_lshl_b32 {sA}, {sw}, 9\nv_lshl_add_u32 v3, v1, 4, {sA}\nv_mov_b32 {vr(T)}, {L_CNT}\nv_mov_b32 {vr(T + 1)}, 1")
        a(f"v_and_b32 {vr(T + 3)}, 31, v1\nv_lshlrev_b32 {vr(T + 3)}, 4, {vr(T + 3)}\nv_lshrrev_b32 {vr(T + 4)}, 5, v1\nv_lshl_add_u32 {vr(T + 3)}, {vr(T + 4)}, 11, {vr(T + 3)}")
        self.stamp(6)
        for t in range(8):
            a(f"s_waitcnt vmcnt({7 - t})")
            a(f"v_mfma_f32_16x16x32_bf16 {vr(D, 4)}, {vr(K + 4 * t, 4)}, {vr(V + 4 * t, 4)}, {vr(D, 4) if t else 0}")
        self.stamp(7)
        a("s_mov_b32 exec_hi, 0")
        a(f"ds_write_b128 v3, {vr(D, 4)} offset:{L_OP}")
        a("s_mov_b32 exec_lo, 1")
        a(f"ds_add_rtn_u32 {vr(T + 5)}, {vr(T)}, {vr(T + 1)}")
        a("s_waitcnt lgkmcnt(0)")
        a(f"v_readfirstlane_b32 {sA}, {vr(T + 5)}\ns_mov_b64 exec, -1")
        a(f"s_cmp_lg_u32 {sA}, 7\ns_cbranch_scc1 L_role")
        for n in range(4):
            a(f"ds_read_b128 {vr(K + 4 * n, 4)}, {vr(T + 3)} offset:{L_OP + 512 * n}")
        a(f"ds_read_b128 {vr(K + 16, 4)}, {vr(T + 2)} offset:{L_SUM}\nds_read_b128 {vr(K + 20, 4)}, {vr(T + 2)} offset:{L_SUM + 16}")
        a("s_waitcnt lgkmcnt(0)")
        for i in (0, 2):
            a(f"v_pk_add_f32 {vr(K + i, 2)}, {vr(K + i, 2)}, {vr(K + 4 + i, 2)}\nv_pk_add_f32 {vr(K + 8 + i, 2)}, {vr(K + 8 + i, 2)}, {vr(K + 12 + i, 2)}")
        a(f"v_pk_add_f32 {vr(K + 16, 2)}, {vr(K + 16, 2)}, {vr(K + 18, 2)}\nv_pk_add_f32 {vr(K + 20, 2)}, {vr(K + 20, 2)}, {vr(K + 22, 2)}")
        for i in (0, 2):
            a(f"v_pk_add_f32 {vr(K + i, 2)}, {vr(K + i, 2)}, {vr(K + 8 + i, 2)}")
        a(f"v_pk_add_f32 {vr(K + 16, 2)}, {vr(K + 16, 2)}, {vr(K + 20, 2)}")
        for i in range(4):
            a(f"v_permlane32_swap_b32 {vr(K + i)}, {vr(K + 4 + i)}")
        a(f"v_add_f32 {vr(K + 16)}, {vr(K + 16)}, {vr(K + 17)}")
        for i in (0, 2):
            a(f"v_pk_add_f32 {vr(K + i, 2)}, {vr(K + i, 2)}, {vr(K + 4 + i, 2)}")
        a(f"v_cndmask_b32 {vr(K)}, {vr(K)}, {vr(MREG)}, {sM0}\nv_cndmask_b32 {vr(K + 1)}, {vr(K + 1)}, {vr(K + 16)}, {sM0}")
        self.tag4(K, MK)
        a("s_mov_b32 exec_hi, 1")
        a(f"global_store_dwordx4 {vr(ADR)}, {vr(K, 4)}, {sWS} sc1")
        a("s_mov_b32 exec_hi, -1")
        self.stamp(8)
        a("L_role:")
        self.role("L_wo", "L_red", "L_ffn", "L_none")

    def store_partial(self, D, MK, ADR):
        a = self.a
        self.tag4(D, MK)
        a("s_mov_b32 exec_lo, 0xffff\ns_mov_b32 exec_hi, 0xffff")
        a(f"global_store_dwordx4 {vr(ADR)}, {vr(D, 4)}, {sWS} sc1")

    def partial_addr(self, ADR, base, ustride_sh, ustride_mul, prod):
        a = self.a
        a(f"v_bfe_u32 v3, v1, 2, 2\ns_lshl_b32 {sA}, {self.sw}, 2\nv_add_u32 v3, {sA}, v3\nv_lshrrev_b32 {vr(ADR)}, 5, v1\nv_lshl_add_u32 v3, v3, 1, {vr(ADR)}")
        a(f"s_lshl_b32 {sA}, {prod}, 6\ns_add_u32 {sA}, {sA}, {base}\nv_and_b32 {vr(ADR)}, 3, v1\nv_lshl_add_u32 {vr(ADR)}, {vr(ADR)}, 4, {sA}")
        if ustride_mul:
            a(f"v_mul_u32_u24 v3, {ustride_mul}, v3\nv_add_u32 {vr(ADR)}, v3, {vr(ADR)}")
        else:
            a(f"v_lshl_add_u32 {vr(ADR)}, v3, {ustride_sh}, {vr(ADR)}")

    def wrow_reads(self, B, base, tmp):
        a = self.a
        a(f"v_lshrrev_b32 {vr(tmp)}, 4, v1\nv_mul_u32_u24 {vr(tmp)}, {8 * ROWP}, {vr(tmp)}\nv_and_b32 v3, 15, v1\nv_lshl_add_u32 {vr(tmp)}, v3, 3, {vr(tmp)}")
        a(f"s_lshl_b32 {sA}, {self.sw}, 7\ns_add_u32 {sA}, {sA}, {base}\nv_add_u32 {vr(tmp)}, {sA}, {vr(tmp)}")
        return [f"ds_read_b64 {vr(B + 2 * t, 2)}, {vr(tmp)} offset:{ROWP * t}" for t in range(8)]

    def role_wo(self):
        a = self.a
        SEL, MK, D = 88, 100, 96
        B, A, O, ML, X, T, AO, AM, ADR = 4, 20, 36, 40, 44, 48, 56, 57, 58
        a("L_wo:")
        rd = self.wrow_reads(B, L_W, 59)
        a(f"s_lshl_b32 {sC}, {sH}, 2\ns_add_u32 {sC}, {sC}, {sJ}")
        self.partial_addr(ADR, WS_YP, 13, 0, sC)
        a(f"v_bfe_u32 {vr(AM)}, v1, 3, 1\nv_and_b32 v3, 3, v1\nv_lshl_add_u32 {vr(AM)}, {vr(AM)}, 2, v3")
        a(f"v_lshrrev_b32 {vr(AO)}, 4, v1\nv_bfe_u32 v3, v1, 2, 1\nv_lshl_add_u32 {vr(AO)}, {vr(AO)}, 1, v3\nv_lshlrev_b32 {vr(AO)}, 4, {vr(AO)}\nv_lshl_add_u32 {vr(AO)}, {vr(AM)}, 7, {vr(AO)}")
        a(f"s_lshl_b32 {sA}, {sH}, 12\ns_lshl_b32 {sB}, {sJ}, 10\ns_add_u32 {sA}, {sA}, {sB}\ns_add_u32 {sA}, {sA}, {WS_OP}\nv_add_u32 {vr(AO)}, {sA}, {vr(AO)}")
        a(f"s_lshl_b32 {sA}, {sH}, 7\ns_add_u32 {sA}, {sA}, {WS_ML}\nv_lshl_add_u32 {vr(AM)}, {vr(AM)}, 4, {sA}")
        a("s_barrier")
        self.stamp(9)
        for x in rd:
            a(x)

        def loads():
            a(f"global_load_dwordx4 {vr(ML, 4)}, {vr(AM)}, {sWS} sc1\nglobal_load_dwordx4 {vr(O, 4)}, {vr(AO)}, {sWS} sc1")

        def check():
            self.chk4(T, ML)
            self.chk4(T + 2, O)
            a(f"v_or_b32 {vr(T)}, {vr(T)}, {vr(T + 2)}\nv_cmp_ne_u32 vcc, 0, {vr(T)}")
        self.poll(loads, check)
        self.stamp(10)
        a(f"v_and_b32 {vr(ML)}, {vr(MK)}, {vr(ML)}\nv_and_b32 {vr(ML + 1)}, {vr(MK)}, {vr(ML + 1)}")
        a(f"v_and_b32 {vr(O)}, {vr(MK)}, {vr(O)}")
        a(f"v_max_f32_dpp {vr(T)}, {vr(ML)}, {vr(ML)} quad_perm:[1,0,3,2] row_mask:0xf bank_mask:0xf")
        a(f"v_and_b32 {vr(O + 1)}, {vr(MK)}, {vr(O + 1)}\nv_and_b32 {vr(O + 2)}, {vr(MK)}, {vr(O + 2)}")
        a(f"v_max_f32_dpp {vr(T)}, {vr(T)}, {vr(T)} quad_perm:[2,3,0,1] row_mask:0xf bank_mask:0xf")
        a(f"v_and_b32 {vr(O + 3)}, {vr(MK)}, {vr(O + 3)}")
        a(f"v_sub_f32 {vr(T)}, {vr(ML)}, {vr(T)}\nv_mul_f32 {vr(T)}, {sK2}, {vr(T)}\nv_exp_f32 {vr(T)}, {vr(T)}")
        a(f"v_mul_f32 {vr(ML)}, {vr(ML + 1)}, {vr(T)}")
        for i in range(4):
            a(f"v_mul_f32 {vr(O + i)}, {vr(O + i)}, {vr(T)}")
        for mod in ("quad_perm:[1,0,3,2]", "quad_perm:[2,3,0,1]"):
            for r in (ML, O, O + 1, O + 2, O + 3):
                a(f"v_add_f32_dpp {vr(r)}, {vr(r)}, {vr(r)} {mod} row_mask:0xf bank_mask:0xf")
        a(f"v_rcp_f32 {vr(ML)}, {vr(ML)}")
        for i in range(4):
            a(f"v_mul_f32 {vr(O + i)}, {vr(O + i)}, {vr(ML)}")
        a(f"v_cvt_pk_bf16_f32 {vr(X)}, {vr(O)}, {vr(O + 1)}\nv_cvt_pk_bf16_f32 {vr(X + 1)}, {vr(O + 2)}, {vr(O + 3)}")
        a(f"v_mov_b32_dpp {vr(X + 2)}, {vr(X)} row_half_mirror row_mask:0xf bank_mask:0xf")
        a(f"v_mov_b32_dpp {vr(X + 3)}, {vr(X + 1)} row_half_mirror row_mask:0xf bank_mask:0xf")
        a("s_waitcnt lgkmcnt(0)")
        self.gemv16(D, X, SEL, B, A, 8)
        self.store_partial(D, MK, ADR)
        self.stamp(11)
        self.end()

    def role_red(self):
        a = self.a
        MK = 100
        G, T, AD, XR, COL, HV, AO = 4, 20, 28, 29, 30, 31, 32
        a("L_red:")
        a(f"s_lshl_b32 {sA}, {sF}, 13\ns_lshl_b32 {sB}, {self.sw}, 10\ns_add_u32 {sA}, {sA}, {sB}\ns_add_u32 {sA}, {sA}, {WS_YP}\nv_lshl_add_u32 {vr(AD)}, v1, 4, {sA}")
        a(f"v_bfe_u32 {vr(COL)}, v1, 4, 1\nv_lshrrev_b32 v3, 5, v1\nv_lshl_add_u32 {vr(COL)}, {vr(COL)}, 1, v3\nv_and_b32 v3, 3, v1\nv_lshl_add_u32 {vr(COL)}, v3, 2, {vr(COL)}")
        a(f"s_lshr_b32 {sA}, {sF}, 1\ns_lshl_b32 {sA}, {sA}, 4\ns_and_b32 {sB}, {sF}, 1\ns_lshl_b32 {sB}, {sB}, 9\ns_add_u32 {sA}, {sA}, {sB}")
        a(f"v_add_u32 {vr(COL)}, {sA}, {vr(COL)}\nv_lshlrev_b32 {vr(AO)}, 1, {vr(COL)}")
        a(f"global_load_ushort {vr(XR)}, {vr(AO)}, {sX}")
        a(f"v_lshrrev_b32 v2, 4, v1\nv_lshl_add_u32 v2, v2, 2, v3\nv_lshlrev_b32 v2, 5, v2\ns_lshl_b32 {sA}, {self.sw}, 2\nv_add_u32 v3, {sA}, v2")

        def loads():
            a(f"global_load_dwordx4 {vr(G, 4)}, {vr(AD)}, {sWS} sc1")

        def check():
            self.chk4(T, G)
            a(f"v_cmp_ne_u32 vcc, 0, {vr(T)}")
        self.poll(loads, check)
        self.stamp(10)
        for i in range(4):
            a(f"v_and_b32 {vr(G + i)}, {vr(MK)}, {vr(G + i)}")
        self.tr_reduce4(G)
        a("s_mov_b32 exec_lo, 0x000f000f\ns_mov_b32 exec_hi, 0x000f000f")
        a(f"ds_write_b32 v3, {vr(G)} offset:{L_RED}\ns_waitcnt lgkmcnt(0)\ns_barrier")
        a(f"s_cmp_lg_u32 {self.sw}, 0\ns_cbranch_scc1 L_none")
        a(f"ds_read_b128 {vr(G, 4)}, v2 offset:{L_RED}\nds_read_b128 {vr(G + 4, 4)}, v2 offset:{L_RED + 16}")
        a(f"v_lshlrev_b32 {vr(XR)}, 16, {vr(XR)}")
        a(f"v_and_b32 {vr(T)}, 1, {vr(COL)}\nv_cmp_eq_u32 vcc, 1, {vr(T)}\nv_mov_b32 {vr(T)}, {sT}\nv_mov_b32 {vr(T + 1)}, {sT2}")
        a(f"v_cndmask_b32 {vr(T)}, {vr(T)}, {vr(T + 1)}, vcc\nv_and_b32 {vr(T)}, 0xffff, {vr(T)}")
        a(f"v_lshlrev_b32 {vr(COL)}, 2, {vr(COL)}\nv_add_u32 {vr(COL)}, {WS_H}, {vr(COL)}")
        a("s_waitcnt lgkmcnt(0)")
        a(f"v_pk_add_f32 {vr(G, 2)}, {vr(G, 2)}, {vr(G + 2, 2)}\nv_pk_add_f32 {vr(G + 4, 2)}, {vr(G + 4, 2)}, {vr(G + 6, 2)}")
        a(f"v_pk_add_f32 {vr(G, 2)}, {vr(G, 2)}, {vr(G + 4, 2)}\nv_add_f32 {vr(G)}, {vr(G)}, {vr(G + 1)}")
        self.bf16r(G, G)
        a(f"v_add_f32 {vr(G)}, {vr(G)}, {vr(XR)}")
        self.bf16r(HV, G)
        a(f"v_or_b32 {vr(G)}, {vr(HV)}, {vr(T)}")
        a(f"global_store_dword {vr(COL)}, {vr(G)}, {sWS} sc1")
        self.stamp(11)
        a("s_mov_b64 exec, -1")
        a(f"s_mul_i32 {sA}, {sF}, {FP_STRIDE}\ns_add_u32 {sA}, {sA}, {WS_FP}\nv_lshl_add_u32 {vr(AD)}, v1, 4, {sA}")
        a(f"v_cmp_gt_u32 {sM1}, 44, v1\nv_add_u32 v2, 2048, {vr(AD)}\nv_cndmask_b32 v2, {vr(AD)}, v2, {sM1}")
        a(f"v_cndmask_b32 v33, 0, {vr(MK)}, {sM1}")

        def loads2():
            a(f"global_load_dwordx4 {vr(G, 4)}, {vr(AD)}, {sWS} sc1\nglobal_load_dwordx4 {vr(G + 4, 4)}, {vr(AD)}, {sWS} offset:1024 sc1")
            a(f"global_load_dwordx4 {vr(G + 8, 4)}, v2, {sWS} sc1")

        def check2():
            for n in range(3):
                self.chk4(T + 2 * n, G + 4 * n)
            a(f"v_or3_b32 {vr(T)}, {vr(T)}, {vr(T + 2)}, {vr(T + 4)}\nv_cmp_ne_u32 vcc, 0, {vr(T)}")
        self.poll(loads2, check2)
        self.stamp(12)
        for i in range(8):
            a(f"v_and_b32 {vr(G + i)}, {vr(MK)}, {vr(G + i)}")
        for i in range(4):
            a(f"v_and_b32 {vr(G + 8 + i)}, v33, {vr(G + 8 + i)}")
        for i in (0, 2):
            a(f"v_pk_add_f32 {vr(G + i, 2)}, {vr(G + i, 2)}, {vr(G + 4 + i, 2)}")
        for i in (0, 2):
            a(f"v_pk_add_f32 {vr(G + i, 2)}, {vr(G + i, 2)}, {vr(G + 8 + i, 2)}")
        self.tr_reduce4(G)
        self.bf16r(G, G)
        a("s_mov_b32 exec_lo, 0x000f000f\ns_mov_b32 exec_hi, 0x000f000f")
        a(f"v_add_f32 {vr(G)}, {vr(G)}, {vr(HV)}\nv_cvt_pk_bf16_f32 {vr(G)}, {vr(G)}, {vr(G)}")
        a(f"global_store_short {vr(AO)}, {vr(G)}, {sOUT}")
        self.stamp(13)
        a(f"s_cmp_lg_u32 {sF}, 0\ns_cbranch_scc1 L_none")
        a(f"v_mov_b32 v2, 0\nv_mov_b32 v3, {sT}\ns_mov_b64 exec, 1\nglobal_store_dword v2, v3, {sWS} sc1")
        self.end()

    def role_ffn(self):
        a = self.a
        SEL, MK, D = 88, 100, 96
        B, F, A, ST, X, AH, ADR, T = 4, 36, 36, 68, 76, 84, 101, 104
        sw = self.sw
        a("L_ffn:")
        a(f"v_lshrrev_b32 v2, 4, v1\ns_lshl_b32 {sA}, {sw}, 2\nv_add_u32 v2, {sA}, v2\nv_mul_u32_u24 v2, {GUP}, v2")
        a(f"v_bfe_u32 v3, v1, 3, 1\nv_mul_u32_u24 v3, {L_U - L_G}, v3\nv_add_u32 v2, v2, v3\nv_and_b32 v3, 7, v1\nv_lshl_add_u32 v2, v3, 3, v2")
        a(f"v_lshrrev_b32 {vr(T)}, 4, v1\nv_and_b32 v3, 3, v1\nv_lshl_add_u32 {vr(T)}, {vr(T)}, 2, v3\nv_lshlrev_b32 {vr(T)}, 4, {vr(T)}")
        a(f"v_bfe_u32 v3, v1, 3, 1\nv_lshl_add_u32 {vr(T)}, v3, 11, {vr(T)}\nv_add_u32 {vr(T)}, {WS_H}, {vr(T)}\nv_bfe_u32 v3, v1, 2, 1")
        for n in range(4):
            a(f"v_add_u32 {vr(AH + n)}, {2 * n}, v3\nv_xor_b32 {vr(AH + n)}, {sw}, {vr(AH + n)}\nv_lshl_add_u32 {vr(AH + n)}, {vr(AH + n)}, 8, {vr(T)}")
        self.partial_addr(ADR, WS_FP, 0, FP_STRIDE, sF)
        rd = self.wrow_reads(4, L_D, 102)
        a(f"v_lshrrev_b32 v3, 5, v1\nv_and_b32 v103, 7, v1\nv_lshlrev_b32 v103, 4, v103\nv_lshl_add_u32 v103, v3, 6, v103\nv_and_b32 v103, 127, v103")
        a(f"v_lshl_add_u32 v103, v3, 7, v103\nv_bfe_u32 v3, v1, 3, 1\nv_lshl_add_u32 v103, v3, 8, v103\ns_lshl_b32 {sA}, {sw}, 9\nv_add_u32 v103, {sA}, v103")
        a(f"v_lshrrev_b32 v108, 4, v1\nv_and_b32 v109, 7, v1\nv_lshl_add_u32 v108, v108, 3, v109\nv_lshl_add_u32 v108, v3, 4, v108\nv_and_b32 v108, 31, v108")
        a(f"v_lshl_add_u32 v108, v3, 5, v108\nv_lshlrev_b32 v108, 2, v108\nv_add_u32 v108, {L_RED}, v108")
        a(f"s_mov_b32 {sK1}, 0x3d372713\ns_mov_b32 {sK3}, 0xc0135761\ns_mov_b32 {sC}, 0x05040100")
        a("s_barrier")
        self.stamp(9)
        for t in range(16):
            a(f"ds_read_b64 {vr(B + 2 * t, 2)}, v2 offset:{L_G + 64 * t}")

        def loads():
            for n in range(4):
                a(f"global_load_dwordx4 {vr(F + 4 * n, 4)}, {vr(AH + n)}, {sWS} sc1")

        def check():
            for i in range(8):
                a(f"v_perm_b32 {vr(F + 16 + i)}, {vr(F + 2 * i + 1)}, {vr(F + 2 * i)}, {sC}")
            for i in range(8):
                a(f"v_xor_b32 {vr(F + 16 + i)}, {sT}, {vr(F + 16 + i)}")
            a(f"v_or3_b32 {vr(F + 16)}, {vr(F + 16)}, {vr(F + 17)}, {vr(F + 18)}\nv_or3_b32 {vr(F + 19)}, {vr(F + 19)}, {vr(F + 20)}, {vr(F + 21)}")
            a(f"v_or3_b32 {vr(F + 16)}, {vr(F + 16)}, {vr(F + 22)}, {vr(F + 23)}\nv_or_b32 {vr(F + 16)}, {vr(F + 16)}, {vr(F + 19)}")
            a(f"v_cmp_ne_u32 vcc, 0, {vr(F + 16)}")
        self.poll(loads, check)
        self.stamp(10)
        for i in range(16):
            a(f"v_and_b32 {vr(F + i)}, {sHI}, {vr(F + i)}")
        self.ln_stats(F, ST)
        self.ln_apply(F, 4, ST, T, F + 4)
        for k in range(4):
            for u in range(2):
                a(f"v_mov_b32_dpp {vr(X + 2 * k + u)}, {vr(T + u)} quad_perm:[{k},{k},{k},{k}] row_mask:0xf bank_mask:0xf")
        a("s_waitcnt lgkmcnt(0)")
        self.gemv16(D, X, SEL, B, A, 16)
        a("s_mov_b32 exec_lo, 0xffff\ns_mov_b32 exec_hi, 0xffff")
        a(f"ds_write_b128 v103, {vr(D, 4)} offset:{L_RED}\ns_mov_b64 exec, -1\ns_waitcnt lgkmcnt(0)\ns_barrier")
        self.stamp(11)
        for w in range(8):
            a(f"ds_read2st64_b32 {vr(F + 2 * w, 2)}, v108 offset0:{2 * w} offset1:{2 * w + 1}")
        for x in rd:
            a(x)
        a("s_waitcnt lgkmcnt(8)" if not self.diag else "s_waitcnt lgkmcnt(0)")
        for i in range(4):
            a(f"v_pk_add_f32 {vr(F + 4 * i, 2)}, {vr(F + 4 * i, 2)}, {vr(F + 4 * i + 2, 2)}")
        a(f"v_pk_add_f32 {vr(F, 2)}, {vr(F, 2)}, {vr(F + 4, 2)}\nv_pk_add_f32 {vr(F + 8, 2)}, {vr(F + 8, 2)}, {vr(F + 12, 2)}")
        a(f"v_pk_add_f32 {vr(F, 2)}, {vr(F, 2)}, {vr(F + 8, 2)}")
        a(f"v_cvt_pk_bf16_f32 {vr(F + 2)}, {vr(F)}, {vr(F + 1)}")
        self.unpack(F, F + 2, 1)
        a(f"v_mul_f32 {vr(F + 2)}, {vr(F)}, {vr(F)}\nv_mul_f32 {vr(F + 3)}, {sK3}, {vr(F)}\nv_fma_f32 {vr(F + 2)}, {vr(F + 2)}, {sK1}, 1.0")
        a(f"v_mul_f32 {vr(F + 2)}, {vr(F + 2)}, {vr(F + 3)}\nv_exp_f32 {vr(F + 2)}, {vr(F + 2)}\nv_add_f32 {vr(F + 2)}, 1.0, {vr(F + 2)}")
        a(f"v_rcp_f32 {vr(F + 2)}, {vr(F + 2)}\nv_mul_f32 {vr(F)}, {vr(F)}, {vr(F + 2)}")
        self.bf16r(F, F)
        a(f"v_mul_f32 {vr(F)}, {vr(F)}, {vr(F + 1)}")
        a(f"v_mov_b32_dpp {vr(F + 2)}, {vr(F)} quad_perm:[0,0,2,2] row_mask:0xf bank_mask:0xf")
        a(f"v_mov_b32_dpp {vr(F + 3)}, {vr(F)} quad_perm:[1,1,3,3] row_mask:0xf bank_mask:0xf")
        a(f"v_cvt_pk_bf16_f32 {vr(F)}, {vr(F + 2)}, {vr(F + 3)}")
        a(f"v_mov_b32_dpp {vr(F + 1)}, {vr(F)} row_half_mirror row_mask:0xf bank_mask:0xf")
        a(f"v_mov_b32_dpp {vr(X)}, {vr(F)} quad_perm:[0,0,0,0] row_mask:0xf bank_mask:0xf")
        a(f"v_mov_b32_dpp {vr(X + 1)}, {vr(F)} quad_perm:[2,2,2,2] row_mask:0xf bank_mask:0xf")
        a(f"v_mov_b32_dpp {vr(X + 2)}, {vr(F + 1)} quad_perm:[2,2,2,2] row_mask:0xf bank_mask:0xf")
        a(f"v_mov_b32_dpp {vr(X + 3)}, {vr(F + 1)} quad_perm:[0,0,0,0] row_mask:0xf bank_mask:0xf")
        a("s_waitcnt lgkmcnt(0)")
        self.gemv16(D, X, SEL, 4, A, 8)
        self.store_partial(D, MK, ADR)
        self.stamp(12)
        self.end()


if __name__ == "__main__":
    out = sys.argv[1]
    kw = {}
    for x in sys.argv[2:]:
        k, v = x.split("=")
        kw[k] = {"True": True, "False": False}.get(v, v)
    g = Gen(**kw)
    open(out, "w").write(g.build())
    print("written", out, "nops", g.nops)
```

```python
import sys
from asmlib import Asm

KN = "sequential_preLN__sliding_block_cached__geglu_ffn__decode_kernel"
HEADER = open("sequential_preLN__sliding_block_cached__geglu_ffn__decode.s.ref").read().split("; Override launch")[0]

WS_QP, WS_OP, WS_ML, WS_YP, WS_H, WS_FP, WS_ST = 0x1000, 0x50000, 0x70000, 0x80000, 0x100000, 0x110000, 0x200000
FP_STRIDE = 3072
TAGC = 0x9E3779B9
L_Q, L_MAX, L_SUM, L_CNT, L_OP, L_RED, L_W = 0, 256, 288, 320, 512, 4608, 12288
ROWP = 1040
GUP = 1088
L_G = L_W
L_U = L_G + 32 * GUP + 128
L_D = L_U + 32 * GUP + 128
LDS_BYTES = L_D + 32 * ROWP
SPIN = 1 << 16

sX, sK, sV, sWQ, sWO, sWG, sWU, sWD, sOUT, sWS = "s[4:5]", "s[6:7]", "s[8:9]", "s[10:11]", "s[12:13]", "s[16:17]", "s[18:19]", "s[20:21]", "s[22:23]", "s[26:27]"
sXCD, sH, sJ, sW, sT = "s28", "s29", "s30", "s31", "s32"
sT1, sT2, sT3 = "s33", "s34", "s35"
sSELA, sSELB, sHI = "s36", "s37", "s38"
sSPIN = "s39"
sA, sB, sC, sD = "s40", "s41", "s42", "s43"
sM0, sM1 = "s[44:45]", "s[46:47]"
sF = "s48"
sK1, sK2, sK3 = "s49", "s50", "s51"
sP = "s[52:53]"
sQ = "s[54:55]"
ST0 = 64


def vr(a, n=1):
    return f"v{a}" if n == 1 else f"v[{a}:{a + n - 1}]"


class Gen:
    def __init__(self, diag=False, nt="nt", wnt="nt", prefetch=True, pad=0, lds=None, nvg=128):
        self.a = Asm()
        self.diag = diag
        self.nt = nt
        self.wnt = wnt
        self.prefetch = prefetch
        self.uid = 0
        self.pad = int(pad)
        self.lds = int(lds) if lds else LDS_BYTES
        self.nvg = int(nvg)

    def stamp(self, i):
        if self.diag:
            self.a(f"s_memrealtime s[{ST0 + 2 * i}:{ST0 + 2 * i + 1}]")

    def end(self):
        self.a("s_branch L_exit" if self.diag else "s_endpgm")

    def bf16r(self, d, x):
        self.a(f"v_cvt_pk_bf16_f32 {vr(d)}, {vr(x)}, {vr(x)}\nv_and_b32 {vr(d)}, {sHI}, {vr(d)}")

    def unpack(self, d, s, n):
        for i in range(n):
            self.a(f"v_lshlrev_b32 {vr(d + 2 * i)}, 16, {vr(s + i)}\nv_and_b32 {vr(d + 2 * i + 1)}, {sHI}, {vr(s + i)}")

    def red8x(self, op, regs, tmp):
        a = self.a
        for mod in ("quad_perm:[1,0,3,2]", "quad_perm:[2,3,0,1]", "row_half_mirror"):
            for r in regs:
                a(f"{op}_dpp {vr(r)}, {vr(r)}, {vr(r)} {mod} row_mask:0xf bank_mask:0xf")
        self.redrows(op, regs, tmp)

    def redrows(self, op, regs, tmp):
        a = self.a
        for sw in ("v_permlane16_swap_b32", "v_permlane32_swap_b32"):
            for i, r in enumerate(regs):
                a(f"v_mov_b32 {vr(tmp + i)}, {vr(r)}")
            for i, r in enumerate(regs):
                a(f"{sw} {vr(r)}, {vr(tmp + i)}")
            for i, r in enumerate(regs):
                a(f"{op} {vr(r)}, {vr(r)}, {vr(tmp + i)}")

    def selectors(self, sel, lane, t0, nm):
        a = self.a
        a(f"v_and_b32 {vr(t0)}, 1, {vr(lane)}")
        a(f"v_cmp_eq_u32 vcc, 1, {vr(t0)}")
        a(f"v_mov_b32 {vr(t0 + 1)}, 0x0c0c0100\nv_mov_b32 {vr(t0 + 2)}, 0x01000c0c")
        a(f"v_cndmask_b32 {vr(t0 + 1)}, {vr(t0 + 1)}, {vr(t0 + 2)}, vcc")
        a(f"v_mov_b32 {vr(t0 + 2)}, 0x0c0c0302\nv_mov_b32 {vr(t0 + 3)}, 0x03020c0c")
        a(f"v_cndmask_b32 {vr(t0 + 2)}, {vr(t0 + 2)}, {vr(t0 + 3)}, vcc")
        a(f"v_bfe_u32 {vr(t0)}, {vr(lane)}, 1, 2")
        a(f"v_mov_b32 {vr(t0 + 3)}, 0x0c0c0c0c")
        for m in range(nm):
            a(f"v_cmp_eq_u32 vcc, {m}, {vr(t0)}")
            a(f"v_cndmask_b32 {vr(sel + 2 * m)}, {vr(t0 + 3)}, {vr(t0 + 1)}, vcc")
            a(f"v_cndmask_b32 {vr(sel + 2 * m + 1)}, {vr(t0 + 3)}, {vr(t0 + 2)}, vcc")

    def tag_consts(self):
        a = self.a
        a(f"s_add_u32 {sT}, {sT}, {TAGC}")
        a(f"s_lshr_b32 {sT1}, {sT}, 8\ns_lshr_b32 {sT2}, {sT}, 16\ns_lshr_b32 {sT3}, {sT}, 24")
        a(f"s_mov_b32 {sSELA}, 0x0c0c0400\ns_mov_b32 {sSELB}, 0x04000c0c")

    def tag4(self, d, mask):
        for i, s in enumerate((sT, sT1, sT2, sT3)):
            self.a(f"v_bfi_b32 {vr(d + i)}, {vr(mask)}, {vr(d + i)}, {s}")

    def chk4(self, t, g):
        a = self.a
        a(f"v_perm_b32 {vr(t)}, {vr(g + 1)}, {vr(g)}, {sSELA}")
        a(f"v_perm_b32 {vr(t + 1)}, {vr(g + 3)}, {vr(g + 2)}, {sSELB}")
        a(f"v_bitop3_b32 {vr(t)}, {vr(t)}, {vr(t + 1)}, {sT} bitop3:0x56")

    def poll(self, loads, check):
        a = self.a
        self.uid += 1
        L = f"L_poll{self.uid}"
        a(f"s_mov_b32 {sSPIN}, 0\n{L}:")
        loads()
        a(f"s_add_u32 {sSPIN}, {sSPIN}, 1\ns_cmp_gt_u32 {sSPIN}, {SPIN}\ns_cbranch_scc1 L_bail")
        a("s_waitcnt vmcnt(0)")
        check()
        a(f"s_cbranch_vccnz {L}")

    def tr_reduce4(self, v):
        a = self.a
        a(f"v_permlane32_swap_b32 {vr(v)}, {vr(v + 1)}")
        a(f"v_permlane32_swap_b32 {vr(v + 2)}, {vr(v + 3)}")
        a(f"v_add_f32 {vr(v)}, {vr(v)}, {vr(v + 1)}")
        a(f"v_add_f32 {vr(v + 2)}, {vr(v + 2)}, {vr(v + 3)}")
        a(f"v_permlane16_swap_b32 {vr(v)}, {vr(v + 2)}")
        a(f"v_add_f32 {vr(v)}, {vr(v)}, {vr(v + 2)}")
        a(f"v_add_f32_dpp {vr(v)}, {vr(v)}, {vr(v)} row_ror:4 row_mask:0xf bank_mask:0xf")
        a(f"v_add_f32_dpp {vr(v)}, {vr(v)}, {vr(v)} row_ror:8 row_mask:0xf bank_mask:0xf")

    def ln_stats(self, F, t):
        a = self.a
        S, U = t + 3, t + 4
        a(f"v_pk_add_f32 {vr(U, 2)}, {vr(F, 2)}, {vr(F + 2, 2)}")
        a(f"v_pk_add_f32 {vr(U + 2, 2)}, {vr(F + 4, 2)}, {vr(F + 6, 2)}")
        for i in range(2):
            a(f"v_pk_add_f32 {vr(U, 2)}, {vr(U, 2)}, {vr(F + 8 + 4 * i, 2)}")
            a(f"v_pk_add_f32 {vr(U + 2, 2)}, {vr(U + 2, 2)}, {vr(F + 10 + 4 * i, 2)}")
        a(f"v_pk_add_f32 {vr(U, 2)}, {vr(U, 2)}, {vr(U + 2, 2)}")
        a(f"v_add_f32 {vr(S)}, {vr(U)}, {vr(U + 1)}")
        self.red8x("v_add_f32", [S], U)
        a(f"v_mul_f32 {vr(S)}, 0x3b000000, {vr(S)}")
        D = F + 16
        for i in range(16):
            a(f"v_sub_f32 {vr(D + i)}, {vr(F + i)}, {vr(S)}")
        a(f"v_pk_mul_f32 {vr(U, 2)}, {vr(D, 2)}, {vr(D, 2)}")
        a(f"v_pk_mul_f32 {vr(U + 2, 2)}, {vr(D + 2, 2)}, {vr(D + 2, 2)}")
        for i in range(1, 4):
            a(f"v_pk_fma_f32 {vr(U, 2)}, {vr(D + 4 * i, 2)}, {vr(D + 4 * i, 2)}, {vr(U, 2)}")
            a(f"v_pk_fma_f32 {vr(U + 2, 2)}, {vr(D + 4 * i + 2, 2)}, {vr(D + 4 * i + 2, 2)}, {vr(U + 2, 2)}")
        a(f"v_pk_add_f32 {vr(U, 2)}, {vr(U, 2)}, {vr(U + 2, 2)}")
        self.bf16r(t, S)
        a(f"v_add_f32 {vr(S)}, {vr(U)}, {vr(U + 1)}")
        self.red8x("v_add_f32", [S], U)
        a(f"v_mul_f32 {vr(S)}, 0x3b000000, {vr(S)}")
        self.bf16r(S, S)
        a(f"v_add_f32 {vr(S)}, 0x3727c5ac, {vr(S)}")
        self.bf16r(S, S)
        a(f"v_sqrt_f32 {vr(S)}, {vr(S)}")
        self.bf16r(t + 1, S)
        a(f"v_rcp_f32 {vr(t + 2)}, {vr(t + 1)}")

    def ln_apply(self, F, n, t, P, tmp):
        a = self.a
        for i in range(n):
            a(f"v_sub_f32 {vr(F + i)}, {vr(F + i)}, {vr(t)}")
        for i in range(n // 2):
            a(f"v_cvt_pk_bf16_f32 {vr(P + i)}, {vr(F + 2 * i)}, {vr(F + 2 * i + 1)}")
        self.unpack(F, P, n // 2)
        for i in range(n):
            a(f"v_mul_f32 {vr(tmp + i)}, {vr(F + i)}, {vr(t + 2)}")
        for i in range(n):
            a(f"v_fma_f32 {vr(F + i)}, -{vr(tmp + i)}, {vr(t + 1)}, {vr(F + i)}")
        for i in range(n):
            a(f"v_fma_f32 {vr(F + i)}, {vr(F + i)}, {vr(t + 2)}, {vr(tmp + i)}")
        for i in range(n // 2):
            a(f"v_cvt_pk_bf16_f32 {vr(P + i)}, {vr(F + 2 * i)}, {vr(F + 2 * i + 1)}")

    def gemv16(self, D, X, SEL, B, A, steps):
        a = self.a
        for t in range(steps):
            for m in range(2):
                a(f"v_perm_b32 {vr(A + 2 * t + m)}, {vr(X + t // 2)}, {vr(X + t // 2)}, {vr(SEL + 2 * m + (t & 1))}")
            if t >= 1:
                u = t - 1
                a(f"v_mfma_f32_16x16x16_bf16 {vr(D, 4)}, {vr(A + 2 * u, 2)}, {vr(B + 2 * u, 2)}, {vr(D, 4) if u else 0}")
        u = steps - 1
        a(f"v_mfma_f32_16x16x16_bf16 {vr(D, 4)}, {vr(A + 2 * u, 2)}, {vr(B + 2 * u, 2)}, {vr(D, 4)}")

    def role(self, lw, lr, lf, ln):
        a = self.a
        a(f"s_cmp_lt_u32 {sJ}, 4\ns_cbranch_scc1 {lw}")
        a(f"s_lshl_b32 {sF}, {sH}, 1\ns_add_u32 {sF}, {sF}, {sJ}\ns_sub_u32 {sF}, {sF}, 4")
        a(f"s_cmp_lt_u32 {sJ}, 6\ns_cbranch_scc1 {lr}")
        a(f"s_sub_u32 {sF}, {sF}, 2\ns_and_b32 {sA}, {sF}, 7")
        a(f"s_min_u32 {sB}, {sXCD}, 3\ns_mul_i32 {sF}, {sXCD}, 5\ns_add_u32 {sF}, {sF}, {sB}\ns_add_u32 {sF}, {sF}, {sA}")
        a(f"s_cmp_lt_u32 {sXCD}, 3\ns_cselect_b32 {sB}, 6, 5\ns_cmp_lt_u32 {sA}, {sB}\ns_cbranch_scc1 {lf}")
        a(f"s_branch {ln}")

    def build(self):
        a = self.a
        nt, wnt = self.nt, self.wnt
        a(f"{KN}:")
        if self.diag or self.pad:
            a(f"s_memrealtime s[{ST0}:{ST0 + 1}]")
        a("s_load_dwordx16 s[4:19], s[0:1], 0\ns_load_dwordx8 s[20:27], s[0:1], 64")
        a("s_cmp_ge_u32 s2, 256\ns_cbranch_scc1 L_bail")
        if self.diag:
            for i in range(1, 16):
                a(f"s_mov_b32 s{ST0 + 2 * i}, 0")
        a(f"v_readfirstlane_b32 {sW}, v0\nv_and_b32 v1, 63, v0")
        a(f"s_and_b32 {sXCD}, s2, 7\ns_lshr_b32 {sJ}, s2, 3\ns_lshr_b32 {sH}, s2, 6\ns_lshl_b32 {sA}, {sXCD}, 2\ns_add_u32 {sH}, {sH}, {sA}")
        a(f"s_and_b32 {sJ}, {sJ}, 7\ns_lshr_b32 {sW}, {sW}, 6\ns_mov_b32 {sHI}, 0xffff0000")
        a(f"s_cmp_lg_u32 {sW}, 0\ns_cbranch_scc1 L_stream")
        self.comm()
        self.stream()
        self.role_wo()
        self.role_red()
        self.role_ffn()
        a("L_none:")
        self.end()
        if self.diag:
            a("L_exit:")
            a("s_mov_b64 exec, -1\ns_waitcnt vmcnt(0) lgkmcnt(0)")
            a(f"s_memrealtime s[{ST0 + 30}:{ST0 + 31}]\ns_waitcnt lgkmcnt(0)")
            a(f"s_mul_i32 {sA}, s2, 9\ns_add_u32 {sA}, {sA}, {sW}\ns_lshl_b32 {sA}, {sA}, 6\ns_add_u32 {sA}, {sA}, {WS_ST}")
            for i in range(16):
                a(f"v_mov_b32 v{4 + i}, s{ST0 + 2 * i}")
            a(f"v_mov_b32 v2, {sA}\ns_mov_b64 exec, 1")
            for i in range(4):
                a(f"global_store_dwordx4 v2, v[{4 + 4 * i}:{7 + 4 * i}], {sWS} offset:{16 * i}")
        a("L_bail:\ns_endpgm")
        a("L_codeend:")
        nops = a.fix_hazards()
        body = a.text()
        nvg = self.nvg
        txt = HEADER
        txt += f"; @launch grid=(256,1,1) block=(576,1,1) lds={self.lds}\n"
        txt += f'.amdgcn_target "amdgcn-amd-amdhsa--gfx950"\n.text\n.globl {KN}\n.p2align 8\n.type {KN},@function\n'
        txt += body + "\n"
        if self.prefetch:
            txt += ".fill 256, 4, 0xbf810000\n"
        txt += f""".section .rodata,"a"
.p2align 6
.amdhsa_kernel {KN}
  .amdhsa_next_free_vgpr {nvg}
  .amdhsa_next_free_sgpr 102
  .amdhsa_accum_offset {nvg}
  .amdhsa_group_segment_fixed_size 0
  .amdhsa_kernarg_size 96
  .amdhsa_user_sgpr_count 2
  .amdhsa_user_sgpr_kernarg_segment_ptr 1
  .amdhsa_system_sgpr_workgroup_id_x 1
.end_amdhsa_kernel
"""
        self.nops = nops
        return txt

    def comm(self):
        a = self.a
        nt, wnt = self.nt, self.wnt
        LANE, G, BB, T0 = 1, 2, 3, 4
        XS, XO, W, F, SEL, ST, X, A, D, MK = 8, 16, 24, 88, 120, 4, 16, 88, 96, 100
        a("s_setprio 3")
        a(f"v_lshrrev_b32 v{G}, 4, v1\nv_bfe_u32 v{BB}, v1, 3, 1")
        a(f"v_and_b32 v4, 7, v1\nv_lshl_add_u32 v4, v{G}, 3, v4\nv_lshlrev_b32 v4, 5, v4\nv_lshl_add_u32 v4, v{BB}, 10, v4")
        a(f"s_lshl_b32 {sA}, {sJ}, 7\nv_lshl_add_u32 v5, v{G}, 5, {sA}\nv_lshl_add_u32 v5, v{BB}, 10, v5")
        a(f"s_lshl_b32 {sA}, {sJ}, 19\ns_lshl_b32 {sB}, {sH}, 8\ns_add_u32 {sA}, {sA}, {sB}\ns_movk_i32 {sB}, 0x2000")
        a(f"v_and_b32 v6, 15, v1\nv_lshl_add_u32 v6, v6, 4, {sA}\nv_lshl_add_u32 v6, v{G}, 17, v6")
        a("s_waitcnt lgkmcnt(0)")
        self.stamp(1)
        a(f"s_load_dword {sT}, {sWS}, 0")
        a(f"global_load_dwordx4 {vr(XS, 4)}, v4, {sX}\nglobal_load_dwordx4 {vr(XS + 4, 4)}, v4, {sX} offset:16")
        a(f"global_load_dwordx4 {vr(XO, 4)}, v5, {sX}\nglobal_load_dwordx4 {vr(XO + 4, 4)}, v5, {sX} offset:16")
        for t in range(16):
            a(f"global_load_dwordx4 {vr(W + 4 * t, 4)}, v6, {sWQ} {wnt}")
            if t < 15:
                a(f"v_add_u32 v6, {sB}, v6")
        a("s_barrier")
        npf = 0
        if self.prefetch:
            npf = 1
            a(f"s_getpc_b64 {sP}\nL_pc:\ns_sub_u32 s52, s52, L_pc-{KN}\ns_subb_u32 s53, s53, 0")
            a(f"s_lshr_b32 {sA}, s2, 3\ns_min_u32 {sA}, {sA}, (L_codeend-{KN})/1024\ns_lshl_b32 {sA}, {sA}, 10")
            a(f"v_lshl_add_u32 v7, v1, 4, {sA}\nglobal_load_dwordx4 {vr(124, 4)}, v7, {sP}")
        a(f"v_mov_b32 v6, {L_CNT}\nv_mov_b32 v7, 0\nds_write_b32 v6, v7")
        self.selectors(112, LANE, 104, 4)
        SEL = 112
        a(f"s_waitcnt vmcnt({18 + npf})")
        self.unpack(F, XS, 8)
        self.stamp(2)
        self.ln_stats_comm(F, ST)
        a(f"s_waitcnt vmcnt({16 + npf})")
        self.unpack(F, XO, 8)
        self.ln_apply_comm(F, ST, X)
        a("s_waitcnt lgkmcnt(0)")
        self.tag_consts()
        a(f"v_mov_b32 v{MK}, 0xffffff00")
        for t in range(16):
            Ab = A + 4 * (t & 1)
            for m in range(4):
                a(f"v_perm_b32 {vr(Ab + m)}, {vr(X + t // 2)}, {vr(X + t // 2)}, {vr(SEL + 2 * m + (t & 1))}")
            a(f"s_waitcnt vmcnt({15 - t + npf})")
            a(f"v_mfma_f32_16x16x32_bf16 {vr(D, 4)}, {vr(Ab, 4)}, {vr(W + 4 * t, 4)}, {vr(D, 4) if t else 0}")
        a(f"s_lshl_b32 {sA}, {sH}, 13\ns_lshl_b32 {sB}, {sJ}, 9\ns_add_u32 {sA}, {sA}, {sB}\ns_add_u32 {sA}, {sA}, {WS_QP}")
        a(f"v_and_b32 v4, 15, v1\nv_lshl_add_u32 v4, v4, 5, {sA}\nv_bfe_u32 v5, v1, 4, 1\nv_lshl_add_u32 v4, v5, 4, v4")
        a("v_lshrrev_b32 v5, 5, v1\nv_lshl_add_u32 v4, v5, 12, v4")
        self.tag4(D, MK)
        a(f"global_store_dwordx4 v4, {vr(D, 4)}, {sWS} sc1")
        self.stamp(3)
        a(f"s_lshl_b32 {sA}, {sH}, 13\ns_lshr_b32 {sB}, {sJ}, 2\ns_lshl_b32 {sB}, {sB}, 12\ns_add_u32 {sA}, {sA}, {sB}\ns_add_u32 {sA}, {sA}, {WS_QP}")
        a(f"v_lshl_add_u32 v4, v1, 4, {sA}")
        a("s_barrier")
        self.stamp(4)
        Gq, TT = 8, 24

        def loads():
            for n in range(4):
                a(f"global_load_dwordx4 {vr(Gq + 4 * n, 4)}, v4, {sWS} offset:{1024 * n} sc1")

        def check():
            for n in range(4):
                self.chk4(TT + 2 * n, Gq + 4 * n)
            a(f"v_or3_b32 v{TT}, v{TT}, v{TT + 2}, v{TT + 4}\nv_or_b32 v{TT}, v{TT}, v{TT + 6}\nv_cmp_ne_u32 vcc, 0, v{TT}")
        self.poll(loads, check)
        self.stamp(5)
        for i in range(16):
            a(f"v_and_b32 {vr(Gq + i)}, {vr(MK)}, {vr(Gq + i)}")
        for i in range(4):
            a(f"v_add_f32 {vr(Gq + i)}, {vr(Gq + i)}, {vr(Gq + 4 + i)}\nv_add_f32 {vr(Gq + 8 + i)}, {vr(Gq + 8 + i)}, {vr(Gq + 12 + i)}")
        for i in range(4):
            a(f"v_add_f32 {vr(Gq + i)}, {vr(Gq + i)}, {vr(Gq + 8 + i)}")
        a(f"v_permlane32_swap_b32 {vr(Gq)}, {vr(Gq + 2)}\nv_permlane32_swap_b32 {vr(Gq + 1)}, {vr(Gq + 3)}")
        a(f"v_add_f32 {vr(Gq)}, {vr(Gq)}, {vr(Gq + 2)}\nv_add_f32 {vr(Gq + 1)}, {vr(Gq + 1)}, {vr(Gq + 3)}")
        a(f"v_cvt_pk_bf16_f32 {vr(Gq)}, {vr(Gq)}, {vr(Gq + 1)}")
        a(f"v_and_b32 v4, 31, v1\nv_lshlrev_b32 v4, 3, v4\nv_lshrrev_b32 v5, 5, v1\nv_lshl_add_u32 v4, v5, 2, v4")
        a(f"ds_write_b32 v4, {vr(Gq)} offset:{L_Q}\ns_waitcnt lgkmcnt(0)")
        a("s_barrier")
        self.stamp(6)
        a("s_barrier")
        self.stamp(7)
        self.role("L_cwo", "L_none", "L_cffn", "L_none")
        a("L_cwo:")
        a(f"s_lshl_b32 {sA}, {sH}, 17\ns_lshl_b32 {sB}, {sJ}, 15\ns_add_u32 {sA}, {sA}, {sB}\nv_lshl_add_u32 v4, v1, 4, {sA}")
        a(f"s_mov_b32 m0, {L_W}\ns_mov_b32 {sC}, 0\ns_movk_i32 {sB}, 0x400")
        a("L_cwo_l:")
        a(f"global_load_lds_dwordx4 v4, {sWO} {wnt}")
        a(f"s_add_u32 m0, m0, {ROWP}\nv_add_u32 v4, {sB}, v4\ns_add_u32 {sC}, {sC}, 1\ns_cmp_lt_u32 {sC}, 32\ns_cbranch_scc1 L_cwo_l")
        self.stamp(8)
        a("s_waitcnt vmcnt(0)")
        self.stamp(9)
        a("s_barrier")
        self.end()
        a("L_cffn:")
        a(f"s_movk_i32 {sB}, 2752\nv_lshrrev_b32 v4, 2, v1\nv_mul_u32_u24 v4, {sB}, v4\nv_and_b32 v5, 3, v1\nv_lshl_add_u32 v4, v5, 4, v4")
        a(f"s_lshl_b32 {sA}, {sF}, 6\nv_add_u32 v4, {sA}, v4")
        a(f"s_mov_b32 {sD}, {L_G}\ns_mov_b32 {sC}, 0\ns_mov_b32 {sB}, {16 * 2752}")
        a("L_cffn_l:")
        a(f"s_mov_b32 m0, {sD}\ns_add_u32 {sC}, {sC}, 1")
        a(f"global_load_lds_dwordx4 v4, {sWG} {wnt}")
        a(f"s_add_u32 m0, {sD}, {L_U - L_G}\ns_add_u32 {sD}, {sD}, {GUP}")
        a(f"global_load_lds_dwordx4 v4, {sWU} {wnt}")
        a(f"v_add_u32 v4, {sB}, v4\ns_cmp_lt_u32 {sC}, 32\ns_cbranch_scc1 L_cffn_l")
        a(f"s_lshl_b32 {sA}, {sF}, 15\nv_lshl_add_u32 v4, v1, 4, {sA}")
        a(f"s_mov_b32 m0, {L_D}\ns_mov_b32 {sC}, 0\ns_movk_i32 {sB}, 0x400")
        a("L_cffn_d:")
        a(f"global_load_lds_dwordx4 v4, {sWD} {wnt}")
        a(f"s_add_u32 m0, m0, {ROWP}\nv_add_u32 v4, {sB}, v4\ns_add_u32 {sC}, {sC}, 1\ns_cmp_lt_u32 {sC}, 16\ns_cbranch_scc1 L_cffn_d")
        a("s_waitcnt vmcnt(16)")
        self.stamp(8)
        a("s_barrier")
        a("L_cffn_d2:")
        a(f"global_load_lds_dwordx4 v4, {sWD} {wnt}")
        a(f"s_add_u32 m0, m0, {ROWP}\nv_add_u32 v4, {sB}, v4\ns_add_u32 {sC}, {sC}, 1\ns_cmp_lt_u32 {sC}, 32\ns_cbranch_scc1 L_cffn_d2")
        a("s_waitcnt vmcnt(0)")
        self.stamp(9)
        a("s_barrier")
        self.end()

    def ln_stats_comm(self, F, ST):
        a = self.a
        S, U, D = ST + 3, 8, 8
        a(f"v_pk_add_f32 v[104:105], {vr(F, 2)}, {vr(F + 2, 2)}\nv_pk_add_f32 v[106:107], {vr(F + 4, 2)}, {vr(F + 6, 2)}")
        for i in range(2):
            a(f"v_pk_add_f32 v[104:105], v[104:105], {vr(F + 8 + 4 * i, 2)}\nv_pk_add_f32 v[106:107], v[106:107], {vr(F + 10 + 4 * i, 2)}")
        a(f"v_pk_add_f32 v[104:105], v[104:105], v[106:107]\nv_add_f32 {vr(S)}, v104, v105")
        self.red8x("v_add_f32", [S], 104)
        a(f"v_mul_f32 {vr(S)}, 0x3b000000, {vr(S)}")
        for i in range(16):
            a(f"v_sub_f32 {vr(F + i)}, {vr(F + i)}, {vr(S)}")
        a(f"v_pk_mul_f32 v[104:105], {vr(F, 2)}, {vr(F, 2)}\nv_pk_mul_f32 v[106:107], {vr(F + 2, 2)}, {vr(F + 2, 2)}")
        for i in range(1, 4):
            a(f"v_pk_fma_f32 v[104:105], {vr(F + 4 * i, 2)}, {vr(F + 4 * i, 2)}, v[104:105]")
            a(f"v_pk_fma_f32 v[106:107], {vr(F + 4 * i + 2, 2)}, {vr(F + 4 * i + 2, 2)}, v[106:107]")
        a("v_pk_add_f32 v[104:105], v[104:105], v[106:107]")
        self.bf16r(ST, S)
        a(f"v_add_f32 {vr(S)}, v104, v105")
        self.red8x("v_add_f32", [S], 104)
        a(f"v_mul_f32 {vr(S)}, 0x3b000000, {vr(S)}")
        self.bf16r(S, S)
        a(f"v_add_f32 {vr(S)}, 0x3727c5ac, {vr(S)}")
        self.bf16r(S, S)
        a(f"v_sqrt_f32 {vr(S)}, {vr(S)}")
        self.bf16r(ST + 1, S)
        a(f"v_rcp_f32 {vr(ST + 2)}, {vr(ST + 1)}")

    def ln_apply_comm(self, F, ST, X):
        self.ln_apply(F, 8, ST, X, 8)
        self.ln_apply(F + 8, 8, ST, X + 4, 8)

    def stream(self):
        a = self.a
        nt = self.nt
        K, V, Q, P, T, SEL, D = 4, 36, 68, 72, 80, 88, 96
        MK, ADR, MREG = 100, 101, 102
        a("L_stream:")
        a(f"s_lshr_b32 {sA}, {sJ}, 2\ns_lshl_b32 {sA}, {sA}, 25\ns_lshl_b32 {sB}, {sH}, 20\ns_add_u32 {sA}, {sA}, {sB}")
        a(f"s_and_b32 {sB}, {sJ}, 3\ns_lshl_b32 {sB}, {sB}, 16\ns_add_u32 {sA}, {sA}, {sB}\ns_lshl_b32 {sB}, {sW}, 13\ns_add_u32 {sA}, {sA}, {sB}")
        a(f"s_add_u32 {sA}, {sA}, {0xC0000 + 4096 - 8192}\nv_lshl_add_u32 v2, v1, 4, {sA}")
        a("s_waitcnt lgkmcnt(0)\ns_barrier")
        self.stamp(1)
        for t in range(8):
            a(f"global_load_dwordx4 {vr(K + 4 * t, 4)}, v2, {sK} offset:{1024 * t - 4096} {nt}")
        self.stamp(2)
        a("s_barrier")
        for t in range(8):
            a(f"global_load_dwordx4 {vr(V + 4 * t, 4)}, v2, {sV} offset:{1024 * t - 4096} {nt}")
        self.stamp(3)
        a(f"s_load_dword {sT}, {sWS}, 0")
        a(f"s_sub_u32 {sW}, {sW}, 1" if not self.diag else f"s_sub_u32 s56, {sW}, 1")
        self.sw = sW if not self.diag else "s56"
        sw = self.sw
        self.selectors(SEL, 1, T, 4)
        a(f"v_and_b32 v3, 15, v1\nv_lshlrev_b32 v3, 4, v3")
        a(f"s_mov_b32 {sK1}, 0x3db504f3\ns_mov_b32 {sK2}, 0x3fb8aa3b")
        a("s_barrier")
        self.stamp(4)
        a(f"ds_read_b128 {vr(Q, 4)}, v3 offset:{L_Q}")
        for t in range(8):
            a(f"v_mov_b32 {vr(P + t)}, 0")
        a("s_waitcnt vmcnt(8) lgkmcnt(0)")
        self.tag_consts()
        for i in range(4):
            for t in range(8):
                a(f"v_dot2c_f32_bf16 {vr(P + t)}, {vr(K + 4 * t + i)}, {vr(Q + i)}")
        for rot in (8, 4, 2, 1):
            for t in range(8):
                a(f"v_add_f32_dpp {vr(P + t)}, {vr(P + t)}, {vr(P + t)} row_ror:{rot} row_mask:0xf bank_mask:0xf")
        for u in range(4):
            a(f"v_cvt_pk_bf16_f32 {vr(T + u)}, {vr(P + 2 * u)}, {vr(P + 2 * u + 1)}")
        self.unpack(P, T, 4)
        for t in range(8):
            a(f"v_mul_f32 {vr(P + t)}, {sK1}, {vr(P + t)}")
        for u in range(4):
            a(f"v_cvt_pk_bf16_f32 {vr(T + u)}, {vr(P + 2 * u)}, {vr(P + 2 * u + 1)}")
        self.unpack(P, T, 4)
        a(f"v_max3_f32 {vr(T)}, {vr(P)}, {vr(P + 1)}, {vr(P + 2)}\nv_max3_f32 {vr(T + 1)}, {vr(P + 3)}, {vr(P + 4)}, {vr(P + 5)}")
        a(f"v_max3_f32 {vr(T)}, {vr(T)}, {vr(P + 6)}, {vr(P + 7)}\nv_max_f32 {vr(T)}, {vr(T)}, {vr(T + 1)}")
        self.redrows("v_max_f32", [T], T + 1)
        a(f"s_lshl_b32 {sA}, {sw}, 2\nv_mov_b32 {vr(T + 1)}, {sA}\nds_write_b32 {vr(T + 1)}, {vr(T)} offset:{L_MAX}")
        a(f"v_mov_b32 {vr(T + 2)}, 0\ns_waitcnt lgkmcnt(0)\ns_barrier")
        self.stamp(5)
        a(f"ds_read_b128 {vr(Q, 4)}, {vr(T + 2)} offset:{L_MAX}\nds_read_b128 {vr(T + 4, 4)}, {vr(T + 2)} offset:{L_MAX + 16}")
        a(f"v_and_b32 v3, 15, v1\nv_bfe_u32 {vr(ADR)}, v1, 4, 1\nv_lshl_add_u32 v3, v3, 1, {vr(ADR)}")
        a(f"v_lshrrev_b32 {vr(ADR)}, 3, v3\nv_lshlrev_b32 {vr(ADR)}, 10, {vr(ADR)}\nv_and_b32 v3, 7, v3\nv_lshl_add_u32 {vr(ADR)}, v3, 4, {vr(ADR)}")
        a(f"s_lshl_b32 {sA}, {sH}, 12\ns_lshl_b32 {sB}, {sJ}, 7\ns_add_u32 {sA}, {sA}, {sB}\ns_add_u32 {sA}, {sA}, {WS_OP}\nv_add_u32 {vr(ADR)}, {sA}, {vr(ADR)}")
        a(f"s_lshl_b32 {sA}, {sH}, 7\ns_lshl_b32 {sB}, {sJ}, 4\ns_add_u32 {sA}, {sA}, {sB}\ns_add_u32 {sA}, {sA}, {WS_ML}\nv_mov_b32 v3, {sA}")
        a(f"v_cmp_lt_u32 {sM0}, 31, v1\nv_cndmask_b32 {vr(ADR)}, {vr(ADR)}, v3, {sM0}")
        a(f"v_mov_b32 {vr(MK)}, 0xffffff00")
        a("s_waitcnt lgkmcnt(0)")
        a(f"v_max3_f32 {vr(MREG)}, {vr(Q)}, {vr(Q + 1)}, {vr(Q + 2)}\nv_max3_f32 {vr(T)}, {vr(Q + 3)}, {vr(T + 4)}, {vr(T + 5)}")
        a(f"v_max3_f32 {vr(MREG)}, {vr(MREG)}, {vr(T + 6)}, {vr(T + 7)}\nv_max_f32 {vr(MREG)}, {vr(MREG)}, {vr(T)}")
        a(f"v_mul_f32 {vr(T)}, {sK2}, {vr(MREG)}")
        for t in range(8):
            a(f"v_fma_f32 {vr(P + t)}, {vr(P + t)}, {sK2}, -{vr(T)}")
        for t in range(8):
            a(f"v_exp_f32 {vr(P + t)}, {vr(P + t)}")
        a(f"v_bfe_u32 v3, v1, 3, 1\nv_cmp_eq_u32 vcc, 0, v3")
        for u in range(4):
            a(f"v_cvt_pk_bf16_f32 {vr(Q + u)}, {vr(P + 2 * u)}, {vr(P + 2 * u + 1)}")
        for u in range(4):
            a(f"v_cndmask_b32 {vr(Q + u)}, 0, {vr(Q + u)}, vcc")
        a(f"v_pk_add_f32 {vr(P, 2)}, {vr(P, 2)}, {vr(P + 2, 2)}\nv_pk_add_f32 {vr(P + 4, 2)}, {vr(P + 4, 2)}, {vr(P + 6, 2)}")
        a(f"v_pk_add_f32 {vr(P, 2)}, {vr(P, 2)}, {vr(P + 4, 2)}\nv_add_f32 {vr(P)}, {vr(P)}, {vr(P + 1)}")
        self.redrows("v_add_f32", [P], P + 1)
        a(f"ds_write_b32 {vr(T + 1)}, {vr(P)} offset:{L_SUM}")
        for t in range(8):
            for m in range(4):
                a(f"v_perm_b32 {vr(K + 4 * t + m)}, {vr(Q + t // 2)}, {vr(Q + t // 2)}, {vr(SEL + 2 * m + (t & 1))}")
        a(f"s_lshl_b32 {sA}, {sw}, 9\nv_lshl_add_u32 v3, v1, 4, {sA}\nv_mov_b32 {vr(T)}, {L_CNT}\nv_mov_b32 {vr(T + 1)}, 1")
        a(f"v_and_b32 {vr(T + 3)}, 31, v1\nv_lshlrev_b32 {vr(T + 3)}, 4, {vr(T + 3)}\nv_lshrrev_b32 {vr(T + 4)}, 5, v1\nv_lshl_add_u32 {vr(T + 3)}, {vr(T + 4)}, 11, {vr(T + 3)}")
        self.stamp(6)
        for t in range(8):
            a(f"s_waitcnt vmcnt({7 - t})")
            a(f"v_mfma_f32_16x16x32_bf16 {vr(D, 4)}, {vr(K + 4 * t, 4)}, {vr(V + 4 * t, 4)}, {vr(D, 4) if t else 0}")
        self.stamp(7)
        a("s_mov_b32 exec_hi, 0")
        a(f"ds_write_b128 v3, {vr(D, 4)} offset:{L_OP}")
        a("s_mov_b32 exec_lo, 1")
        a(f"ds_add_rtn_u32 {vr(T + 5)}, {vr(T)}, {vr(T + 1)}")
        a("s_waitcnt lgkmcnt(0)")
        a(f"v_readfirstlane_b32 {sA}, {vr(T + 5)}\ns_mov_b64 exec, -1")
        a(f"s_cmp_lg_u32 {sA}, 7\ns_cbranch_scc1 L_role")
        for n in range(4):
            a(f"ds_read_b128 {vr(K + 4 * n, 4)}, {vr(T + 3)} offset:{L_OP + 512 * n}")
        a(f"ds_read_b128 {vr(K + 16, 4)}, {vr(T + 2)} offset:{L_SUM}\nds_read_b128 {vr(K + 20, 4)}, {vr(T + 2)} offset:{L_SUM + 16}")
        a("s_waitcnt lgkmcnt(0)")
        for i in (0, 2):
            a(f"v_pk_add_f32 {vr(K + i, 2)}, {vr(K + i, 2)}, {vr(K + 4 + i, 2)}\nv_pk_add_f32 {vr(K + 8 + i, 2)}, {vr(K + 8 + i, 2)}, {vr(K + 12 + i, 2)}")
        a(f"v_pk_add_f32 {vr(K + 16, 2)}, {vr(K + 16, 2)}, {vr(K + 18, 2)}\nv_pk_add_f32 {vr(K + 20, 2)}, {vr(K + 20, 2)}, {vr(K + 22, 2)}")
        for i in (0, 2):
            a(f"v_pk_add_f32 {vr(K + i, 2)}, {vr(K + i, 2)}, {vr(K + 8 + i, 2)}")
        a(f"v_pk_add_f32 {vr(K + 16, 2)}, {vr(K + 16, 2)}, {vr(K + 20, 2)}")
        for i in range(4):
            a(f"v_permlane32_swap_b32 {vr(K + i)}, {vr(K + 4 + i)}")
        a(f"v_add_f32 {vr(K + 16)}, {vr(K + 16)}, {vr(K + 17)}")
        for i in (0, 2):
            a(f"v_pk_add_f32 {vr(K + i, 2)}, {vr(K + i, 2)}, {vr(K + 4 + i, 2)}")
        a(f"v_cndmask_b32 {vr(K)}, {vr(K)}, {vr(MREG)}, {sM0}\nv_cndmask_b32 {vr(K + 1)}, {vr(K + 1)}, {vr(K + 16)}, {sM0}")
        self.tag4(K, MK)
        a("s_mov_b32 exec_hi, 1")
        a(f"global_store_dwordx4 {vr(ADR)}, {vr(K, 4)}, {sWS} sc1")
        a("s_mov_b32 exec_hi, -1")
        self.stamp(8)
        a("L_role:")
        self.role("L_wo", "L_red", "L_ffn", "L_none")

    def store_partial(self, D, MK, ADR):
        a = self.a
        self.tag4(D, MK)
        a("s_mov_b32 exec_lo, 0xffff\ns_mov_b32 exec_hi, 0xffff")
        a(f"global_store_dwordx4 {vr(ADR)}, {vr(D, 4)}, {sWS} sc1")

    def partial_addr(self, ADR, base, ustride_sh, ustride_mul, prod):
        a = self.a
        a(f"v_bfe_u32 v3, v1, 2, 2\ns_lshl_b32 {sA}, {self.sw}, 2\nv_add_u32 v3, {sA}, v3\nv_lshrrev_b32 {vr(ADR)}, 5, v1\nv_lshl_add_u32 v3, v3, 1, {vr(ADR)}")
        a(f"s_lshl_b32 {sA}, {prod}, 6\ns_add_u32 {sA}, {sA}, {base}\nv_and_b32 {vr(ADR)}, 3, v1\nv_lshl_add_u32 {vr(ADR)}, {vr(ADR)}, 4, {sA}")
        if ustride_mul:
            a(f"v_mul_u32_u24 v3, {ustride_mul}, v3\nv_add_u32 {vr(ADR)}, v3, {vr(ADR)}")
        else:
            a(f"v_lshl_add_u32 {vr(ADR)}, v3, {ustride_sh}, {vr(ADR)}")

    def wrow_reads(self, B, base, tmp):
        a = self.a
        a(f"v_lshrrev_b32 {vr(tmp)}, 4, v1\nv_mul_u32_u24 {vr(tmp)}, {8 * ROWP}, {vr(tmp)}\nv_and_b32 v3, 15, v1\nv_lshl_add_u32 {vr(tmp)}, v3, 3, {vr(tmp)}")
        a(f"s_lshl_b32 {sA}, {self.sw}, 7\ns_add_u32 {sA}, {sA}, {base}\nv_add_u32 {vr(tmp)}, {sA}, {vr(tmp)}")
        return [f"ds_read_b64 {vr(B + 2 * t, 2)}, {vr(tmp)} offset:{ROWP * t}" for t in range(8)]

    def role_wo(self):
        a = self.a
        SEL, MK, D = 88, 100, 96
        B, A, O, ML, X, T, AO, AM, ADR = 4, 20, 36, 40, 44, 48, 56, 57, 58
        a("L_wo:")
        rd = self.wrow_reads(B, L_W, 59)
        a(f"s_lshl_b32 {sC}, {sH}, 2\ns_add_u32 {sC}, {sC}, {sJ}")
        self.partial_addr(ADR, WS_YP, 13, 0, sC)
        a(f"v_bfe_u32 {vr(AM)}, v1, 3, 1\nv_and_b32 v3, 3, v1\nv_lshl_add_u32 {vr(AM)}, {vr(AM)}, 2, v3")
        a(f"v_lshrrev_b32 {vr(AO)}, 4, v1\nv_bfe_u32 v3, v1, 2, 1\nv_lshl_add_u32 {vr(AO)}, {vr(AO)}, 1, v3\nv_lshlrev_b32 {vr(AO)}, 4, {vr(AO)}\nv_lshl_add_u32 {vr(AO)}, {vr(AM)}, 7, {vr(AO)}")
        a(f"s_lshl_b32 {sA}, {sH}, 12\ns_lshl_b32 {sB}, {sJ}, 10\ns_add_u32 {sA}, {sA}, {sB}\ns_add_u32 {sA}, {sA}, {WS_OP}\nv_add_u32 {vr(AO)}, {sA}, {vr(AO)}")
        a(f"s_lshl_b32 {sA}, {sH}, 7\ns_add_u32 {sA}, {sA}, {WS_ML}\nv_lshl_add_u32 {vr(AM)}, {vr(AM)}, 4, {sA}")
        a("s_barrier")
        self.stamp(9)
        for x in rd:
            a(x)

        def loads():
            a(f"global_load_dwordx4 {vr(ML, 4)}, {vr(AM)}, {sWS} sc1\nglobal_load_dwordx4 {vr(O, 4)}, {vr(AO)}, {sWS} sc1")

        def check():
            self.chk4(T, ML)
            self.chk4(T + 2, O)
            a(f"v_or_b32 {vr(T)}, {vr(T)}, {vr(T + 2)}\nv_cmp_ne_u32 vcc, 0, {vr(T)}")
        self.poll(loads, check)
        self.stamp(10)
        a(f"v_and_b32 {vr(ML)}, {vr(MK)}, {vr(ML)}\nv_and_b32 {vr(ML + 1)}, {vr(MK)}, {vr(ML + 1)}")
        a(f"v_and_b32 {vr(O)}, {vr(MK)}, {vr(O)}")
        a(f"v_max_f32_dpp {vr(T)}, {vr(ML)}, {vr(ML)} quad_perm:[1,0,3,2] row_mask:0xf bank_mask:0xf")
        a(f"v_and_b32 {vr(O + 1)}, {vr(MK)}, {vr(O + 1)}\nv_and_b32 {vr(O + 2)}, {vr(MK)}, {vr(O + 2)}")
        a(f"v_max_f32_dpp {vr(T)}, {vr(T)}, {vr(T)} quad_perm:[2,3,0,1] row_mask:0xf bank_mask:0xf")
        a(f"v_and_b32 {vr(O + 3)}, {vr(MK)}, {vr(O + 3)}")
        a(f"v_sub_f32 {vr(T)}, {vr(ML)}, {vr(T)}\nv_mul_f32 {vr(T)}, {sK2}, {vr(T)}\nv_exp_f32 {vr(T)}, {vr(T)}")
        a(f"v_mul_f32 {vr(ML)}, {vr(ML + 1)}, {vr(T)}")
        for i in range(4):
            a(f"v_mul_f32 {vr(O + i)}, {vr(O + i)}, {vr(T)}")
        for mod in ("quad_perm:[1,0,3,2]", "quad_perm:[2,3,0,1]"):
            for r in (ML, O, O + 1, O + 2, O + 3):
                a(f"v_add_f32_dpp {vr(r)}, {vr(r)}, {vr(r)} {mod} row_mask:0xf bank_mask:0xf")
        a(f"v_rcp_f32 {vr(ML)}, {vr(ML)}")
        for i in range(4):
            a(f"v_mul_f32 {vr(O + i)}, {vr(O + i)}, {vr(ML)}")
        a(f"v_cvt_pk_bf16_f32 {vr(X)}, {vr(O)}, {vr(O + 1)}\nv_cvt_pk_bf16_f32 {vr(X + 1)}, {vr(O + 2)}, {vr(O + 3)}")
        a(f"v_mov_b32_dpp {vr(X + 2)}, {vr(X)} row_half_mirror row_mask:0xf bank_mask:0xf")
        a(f"v_mov_b32_dpp {vr(X + 3)}, {vr(X + 1)} row_half_mirror row_mask:0xf bank_mask:0xf")
        a("s_waitcnt lgkmcnt(0)")
        self.gemv16(D, X, SEL, B, A, 8)
        self.store_partial(D, MK, ADR)
        self.stamp(11)
        self.end()

    def role_red(self):
        a = self.a
        MK = 100
        G, T, AD, XR, COL, HV, AO = 4, 20, 28, 29, 30, 31, 32
        a("L_red:")
        a(f"s_lshl_b32 {sA}, {sF}, 13\ns_lshl_b32 {sB}, {self.sw}, 10\ns_add_u32 {sA}, {sA}, {sB}\ns_add_u32 {sA}, {sA}, {WS_YP}\nv_lshl_add_u32 {vr(AD)}, v1, 4, {sA}")
        a(f"v_bfe_u32 {vr(COL)}, v1, 4, 1\nv_lshrrev_b32 v3, 5, v1\nv_lshl_add_u32 {vr(COL)}, {vr(COL)}, 1, v3\nv_and_b32 v3, 3, v1\nv_lshl_add_u32 {vr(COL)}, v3, 2, {vr(COL)}")
        a(f"s_lshr_b32 {sA}, {sF}, 1\ns_lshl_b32 {sA}, {sA}, 4\ns_and_b32 {sB}, {sF}, 1\ns_lshl_b32 {sB}, {sB}, 9\ns_add_u32 {sA}, {sA}, {sB}")
        a(f"v_add_u32 {vr(COL)}, {sA}, {vr(COL)}\nv_lshlrev_b32 {vr(AO)}, 1, {vr(COL)}")
        a(f"global_load_ushort {vr(XR)}, {vr(AO)}, {sX}")
        a(f"v_lshrrev_b32 v2, 4, v1\nv_lshl_add_u32 v2, v2, 2, v3\nv_lshlrev_b32 v2, 5, v2\ns_lshl_b32 {sA}, {self.sw}, 2\nv_add_u32 v3, {sA}, v2")

        def loads():
            a(f"global_load_dwordx4 {vr(G, 4)}, {vr(AD)}, {sWS} sc1")

        def check():
            self.chk4(T, G)
            a(f"v_cmp_ne_u32 vcc, 0, {vr(T)}")
        self.poll(loads, check)
        self.stamp(10)
        for i in range(4):
            a(f"v_and_b32 {vr(G + i)}, {vr(MK)}, {vr(G + i)}")
        self.tr_reduce4(G)
        a("s_mov_b32 exec_lo, 0x000f000f\ns_mov_b32 exec_hi, 0x000f000f")
        a(f"ds_write_b32 v3, {vr(G)} offset:{L_RED}\ns_waitcnt lgkmcnt(0)\ns_barrier")
        a(f"s_cmp_lg_u32 {self.sw}, 0\ns_cbranch_scc1 L_none")
        a(f"ds_read_b128 {vr(G, 4)}, v2 offset:{L_RED}\nds_read_b128 {vr(G + 4, 4)}, v2 offset:{L_RED + 16}")
        a(f"v_lshlrev_b32 {vr(XR)}, 16, {vr(XR)}")
        a(f"v_and_b32 {vr(T)}, 1, {vr(COL)}\nv_cmp_eq_u32 vcc, 1, {vr(T)}\nv_mov_b32 {vr(T)}, {sT}\nv_mov_b32 {vr(T + 1)}, {sT2}")
        a(f"v_cndmask_b32 {vr(T)}, {vr(T)}, {vr(T + 1)}, vcc\nv_and_b32 {vr(T)}, 0xffff, {vr(T)}")
        a(f"v_lshlrev_b32 {vr(COL)}, 2, {vr(COL)}\nv_add_u32 {vr(COL)}, {WS_H}, {vr(COL)}")
        a("s_waitcnt lgkmcnt(0)")
        a(f"v_pk_add_f32 {vr(G, 2)}, {vr(G, 2)}, {vr(G + 2, 2)}\nv_pk_add_f32 {vr(G + 4, 2)}, {vr(G + 4, 2)}, {vr(G + 6, 2)}")
        a(f"v_pk_add_f32 {vr(G, 2)}, {vr(G, 2)}, {vr(G + 4, 2)}\nv_add_f32 {vr(G)}, {vr(G)}, {vr(G + 1)}")
        self.bf16r(G, G)
        a(f"v_add_f32 {vr(G)}, {vr(G)}, {vr(XR)}")
        self.bf16r(HV, G)
        a(f"v_or_b32 {vr(G)}, {vr(HV)}, {vr(T)}")
        a(f"global_store_dword {vr(COL)}, {vr(G)}, {sWS} sc1")
        self.stamp(11)
        a("s_mov_b64 exec, -1")
        a(f"s_mul_i32 {sA}, {sF}, {FP_STRIDE}\ns_add_u32 {sA}, {sA}, {WS_FP}\nv_lshl_add_u32 {vr(AD)}, v1, 4, {sA}")
        a(f"v_cmp_gt_u32 {sM1}, 44, v1\nv_add_u32 v2, 2048, {vr(AD)}\nv_cndmask_b32 v2, {vr(AD)}, v2, {sM1}")
        a(f"v_cndmask_b32 v33, 0, {vr(MK)}, {sM1}")

        def loads2():
            a(f"global_load_dwordx4 {vr(G, 4)}, {vr(AD)}, {sWS} sc1\nglobal_load_dwordx4 {vr(G + 4, 4)}, {vr(AD)}, {sWS} offset:1024 sc1")
            a(f"global_load_dwordx4 {vr(G + 8, 4)}, v2, {sWS} sc1")

        def check2():
            for n in range(3):
                self.chk4(T + 2 * n, G + 4 * n)
            a(f"v_or3_b32 {vr(T)}, {vr(T)}, {vr(T + 2)}, {vr(T + 4)}\nv_cmp_ne_u32 vcc, 0, {vr(T)}")
        self.poll(loads2, check2)
        self.stamp(12)
        for i in range(8):
            a(f"v_and_b32 {vr(G + i)}, {vr(MK)}, {vr(G + i)}")
        for i in range(4):
            a(f"v_and_b32 {vr(G + 8 + i)}, v33, {vr(G + 8 + i)}")
        for i in (0, 2):
            a(f"v_pk_add_f32 {vr(G + i, 2)}, {vr(G + i, 2)}, {vr(G + 4 + i, 2)}")
        for i in (0, 2):
            a(f"v_pk_add_f32 {vr(G + i, 2)}, {vr(G + i, 2)}, {vr(G + 8 + i, 2)}")
        self.tr_reduce4(G)
        self.bf16r(G, G)
        a("s_mov_b32 exec_lo, 0x000f000f\ns_mov_b32 exec_hi, 0x000f000f")
        a(f"v_add_f32 {vr(G)}, {vr(G)}, {vr(HV)}\nv_cvt_pk_bf16_f32 {vr(G)}, {vr(G)}, {vr(G)}")
        a(f"global_store_short {vr(AO)}, {vr(G)}, {sOUT}")
        self.stamp(13)
        a(f"s_cmp_lg_u32 {sF}, 0\ns_cbranch_scc1 L_none")
        a(f"v_mov_b32 v2, 0\nv_mov_b32 v3, {sT}\ns_mov_b64 exec, 1\nglobal_store_dword v2, v3, {sWS} sc1")
        if self.pad:
            a(f"L_pad:\ns_memrealtime s[66:67]\ns_waitcnt lgkmcnt(0)\ns_sub_u32 s66, s66, s64\ns_cmp_lt_u32 s66, {self.pad}\ns_cbranch_scc1 L_pad")
        self.end()

    def role_ffn(self):
        a = self.a
        SEL, MK, D = 88, 100, 96
        B, F, A, ST, X, AH, ADR, T = 4, 36, 36, 68, 76, 84, 101, 104
        sw = self.sw
        a("L_ffn:")
        a(f"v_lshrrev_b32 v2, 4, v1\ns_lshl_b32 {sA}, {sw}, 2\nv_add_u32 v2, {sA}, v2\nv_mul_u32_u24 v2, {GUP}, v2")
        a(f"v_bfe_u32 v3, v1, 3, 1\nv_mul_u32_u24 v3, {L_U - L_G}, v3\nv_add_u32 v2, v2, v3\nv_and_b32 v3, 7, v1\nv_lshl_add_u32 v2, v3, 3, v2")
        a(f"v_lshrrev_b32 {vr(T)}, 4, v1\nv_and_b32 v3, 3, v1\nv_lshl_add_u32 {vr(T)}, {vr(T)}, 2, v3\nv_lshlrev_b32 {vr(T)}, 4, {vr(T)}")
        a(f"v_bfe_u32 v3, v1, 3, 1\nv_lshl_add_u32 {vr(T)}, v3, 11, {vr(T)}\nv_add_u32 {vr(T)}, {WS_H}, {vr(T)}\nv_bfe_u32 v3, v1, 2, 1")
        for n in range(4):
            a(f"v_add_u32 {vr(AH + n)}, {2 * n}, v3\nv_xor_b32 {vr(AH + n)}, {sw}, {vr(AH + n)}\nv_lshl_add_u32 {vr(AH + n)}, {vr(AH + n)}, 8, {vr(T)}")
        self.partial_addr(ADR, WS_FP, 0, FP_STRIDE, sF)
        rd = self.wrow_reads(4, L_D, 102)
        a(f"v_lshrrev_b32 v3, 5, v1\nv_and_b32 v103, 7, v1\nv_lshlrev_b32 v103, 4, v103\nv_lshl_add_u32 v103, v3, 6, v103\nv_and_b32 v103, 127, v103")
        a(f"v_lshl_add_u32 v103, v3, 7, v103\nv_bfe_u32 v3, v1, 3, 1\nv_lshl_add_u32 v103, v3, 8, v103\ns_lshl_b32 {sA}, {sw}, 9\nv_add_u32 v103, {sA}, v103")
        a(f"v_lshrrev_b32 v108, 4, v1\nv_and_b32 v109, 7, v1\nv_lshl_add_u32 v108, v108, 3, v109\nv_lshl_add_u32 v108, v3, 4, v108\nv_and_b32 v108, 31, v108")
        a(f"v_lshl_add_u32 v108, v3, 5, v108\nv_lshlrev_b32 v108, 2, v108\nv_add_u32 v108, {L_RED}, v108")
        a(f"s_mov_b32 {sK1}, 0x3d372713\ns_mov_b32 {sK3}, 0xc0135761\ns_mov_b32 {sC}, 0x05040100")
        a("s_barrier")
        self.stamp(9)
        for t in range(16):
            a(f"ds_read_b64 {vr(B + 2 * t, 2)}, v2 offset:{L_G + 64 * t}")

        def loads():
            for n in range(4):
                a(f"global_load_dwordx4 {vr(F + 4 * n, 4)}, {vr(AH + n)}, {sWS} sc1")

        def check():
            for i in range(8):
                a(f"v_perm_b32 {vr(F + 16 + i)}, {vr(F + 2 * i + 1)}, {vr(F + 2 * i)}, {sC}")
            for i in range(8):
                a(f"v_xor_b32 {vr(F + 16 + i)}, {sT}, {vr(F + 16 + i)}")
            a(f"v_or3_b32 {vr(F + 16)}, {vr(F + 16)}, {vr(F + 17)}, {vr(F + 18)}\nv_or3_b32 {vr(F + 19)}, {vr(F + 19)}, {vr(F + 20)}, {vr(F + 21)}")
            a(f"v_or3_b32 {vr(F + 16)}, {vr(F + 16)}, {vr(F + 22)}, {vr(F + 23)}\nv_or_b32 {vr(F + 16)}, {vr(F + 16)}, {vr(F + 19)}")
            a(f"v_cmp_ne_u32 vcc, 0, {vr(F + 16)}")
        self.poll(loads, check)
        self.stamp(10)
        for i in range(16):
            a(f"v_and_b32 {vr(F + i)}, {sHI}, {vr(F + i)}")
        self.ln_stats(F, ST)
        self.ln_apply(F, 4, ST, T, F + 4)
        for k in range(4):
            for u in range(2):
                a(f"v_mov_b32_dpp {vr(X + 2 * k + u)}, {vr(T + u)} quad_perm:[{k},{k},{k},{k}] row_mask:0xf bank_mask:0xf")
        a("s_waitcnt lgkmcnt(0)")
        self.gemv16(D, X, SEL, B, A, 16)
        a("s_mov_b32 exec_lo, 0xffff\ns_mov_b32 exec_hi, 0xffff")
        a(f"ds_write_b128 v103, {vr(D, 4)} offset:{L_RED}\ns_mov_b64 exec, -1\ns_waitcnt lgkmcnt(0)\ns_barrier")
        self.stamp(11)
        for w in range(8):
            a(f"ds_read2st64_b32 {vr(F + 2 * w, 2)}, v108 offset0:{2 * w} offset1:{2 * w + 1}")
        for x in rd:
            a(x)
        a("s_waitcnt lgkmcnt(8)" if not self.diag else "s_waitcnt lgkmcnt(0)")
        for i in range(4):
            a(f"v_pk_add_f32 {vr(F + 4 * i, 2)}, {vr(F + 4 * i, 2)}, {vr(F + 4 * i + 2, 2)}")
        a(f"v_pk_add_f32 {vr(F, 2)}, {vr(F, 2)}, {vr(F + 4, 2)}\nv_pk_add_f32 {vr(F + 8, 2)}, {vr(F + 8, 2)}, {vr(F + 12, 2)}")
        a(f"v_pk_add_f32 {vr(F, 2)}, {vr(F, 2)}, {vr(F + 8, 2)}")
        a(f"v_cvt_pk_bf16_f32 {vr(F + 2)}, {vr(F)}, {vr(F + 1)}")
        self.unpack(F, F + 2, 1)
        a(f"v_mul_f32 {vr(F + 2)}, {vr(F)}, {vr(F)}\nv_mul_f32 {vr(F + 3)}, {sK3}, {vr(F)}\nv_fma_f32 {vr(F + 2)}, {vr(F + 2)}, {sK1}, 1.0")
        a(f"v_mul_f32 {vr(F + 2)}, {vr(F + 2)}, {vr(F + 3)}\nv_exp_f32 {vr(F + 2)}, {vr(F + 2)}\nv_add_f32 {vr(F + 2)}, 1.0, {vr(F + 2)}")
        a(f"v_rcp_f32 {vr(F + 2)}, {vr(F + 2)}\nv_mul_f32 {vr(F)}, {vr(F)}, {vr(F + 2)}")
        self.bf16r(F, F)
        a(f"v_mul_f32 {vr(F)}, {vr(F)}, {vr(F + 1)}")
        a(f"v_mov_b32_dpp {vr(F + 2)}, {vr(F)} quad_perm:[0,0,2,2] row_mask:0xf bank_mask:0xf")
        a(f"v_mov_b32_dpp {vr(F + 3)}, {vr(F)} quad_perm:[1,1,3,3] row_mask:0xf bank_mask:0xf")
        a(f"v_cvt_pk_bf16_f32 {vr(F)}, {vr(F + 2)}, {vr(F + 3)}")
        a(f"v_mov_b32_dpp {vr(F + 1)}, {vr(F)} row_half_mirror row_mask:0xf bank_mask:0xf")
        a(f"v_mov_b32_dpp {vr(X)}, {vr(F)} quad_perm:[0,0,0,0] row_mask:0xf bank_mask:0xf")
        a(f"v_mov_b32_dpp {vr(X + 1)}, {vr(F)} quad_perm:[2,2,2,2] row_mask:0xf bank_mask:0xf")
        a(f"v_mov_b32_dpp {vr(X + 2)}, {vr(F + 1)} quad_perm:[2,2,2,2] row_mask:0xf bank_mask:0xf")
        a(f"v_mov_b32_dpp {vr(X + 3)}, {vr(F + 1)} quad_perm:[0,0,0,0] row_mask:0xf bank_mask:0xf")
        a("s_waitcnt lgkmcnt(0)")
        self.gemv16(D, X, SEL, 4, A, 8)
        self.store_partial(D, MK, ADR)
        self.stamp(12)
        self.end()


if __name__ == "__main__":
    out = sys.argv[1]
    kw = {}
    for x in sys.argv[2:]:
        k, v = x.split("=")
        kw[k] = {"True": True, "False": False}.get(v, v)
    g = Gen(**kw)
    open(out, "w").write(g.build())
    print("written", out, "nops", g.nops)
```

```python
import sys
from asmlib import Asm

KN = "sequential_preLN__sliding_block_cached__geglu_ffn__decode_kernel"
HEADER = open("sequential_preLN__sliding_block_cached__geglu_ffn__decode.s.ref").read().split("; Override launch")[0]

WS_QP, WS_OP, WS_ML, WS_YP, WS_H, WS_FP, WS_ST = 0x1000, 0x50000, 0x70000, 0x80000, 0x100000, 0x110000, 0x200000
FP_STRIDE = 3072
TAGC = 0x9E3779B9
L_Q, L_MAX, L_SUM, L_CNT, L_OP, L_RED, L_W = 0, 256, 288, 320, 512, 4608, 12288
ROWP = 1040
GUP = 1088
L_G = L_W
L_U = L_G + 32 * GUP + 128
L_D = L_U + 32 * GUP + 128
LDS_BYTES = L_D + 32 * ROWP
SPIN = 1 << 16

sX, sK, sV, sWQ, sWO, sWG, sWU, sWD, sOUT, sWS = "s[4:5]", "s[6:7]", "s[8:9]", "s[10:11]", "s[12:13]", "s[16:17]", "s[18:19]", "s[20:21]", "s[22:23]", "s[26:27]"
sXCD, sH, sJ, sW, sT = "s28", "s29", "s30", "s31", "s32"
sT1, sT2, sT3 = "s33", "s34", "s35"
sSELA, sSELB, sHI = "s36", "s37", "s38"
sSPIN = "s39"
sA, sB, sC, sD = "s40", "s41", "s42", "s43"
sM0, sM1 = "s[44:45]", "s[46:47]"
sF = "s48"
sK1, sK2, sK3 = "s49", "s50", "s51"
sP = "s[52:53]"
sQ = "s[54:55]"
ST0 = 64


def vr(a, n=1):
    return f"v{a}" if n == 1 else f"v[{a}:{a + n - 1}]"


class Gen:
    def __init__(self, diag=False, nt="nt", wnt="nt", prefetch=True, pad=0, lds=None, nvg=128, probe=None):
        self.a = Asm()
        self.diag = diag
        self.nt = nt
        self.wnt = wnt
        self.prefetch = prefetch
        self.uid = 0
        self.pad = int(pad)
        self.probe = None if probe is None else int(probe)
        self.lds = int(lds) if lds else LDS_BYTES
        self.nvg = int(nvg)

    def stamp(self, i):
        if self.probe == i:
            self.a("s_memrealtime s[68:69]")
        if self.diag:
            self.a(f"s_memrealtime s[{ST0 + 2 * i}:{ST0 + 2 * i + 1}]")

    def end(self):
        self.a("s_branch L_exit" if self.diag else "s_endpgm")

    def bf16r(self, d, x):
        self.a(f"v_cvt_pk_bf16_f32 {vr(d)}, {vr(x)}, {vr(x)}\nv_and_b32 {vr(d)}, {sHI}, {vr(d)}")

    def unpack(self, d, s, n):
        for i in range(n):
            self.a(f"v_lshlrev_b32 {vr(d + 2 * i)}, 16, {vr(s + i)}\nv_and_b32 {vr(d + 2 * i + 1)}, {sHI}, {vr(s + i)}")

    def red8x(self, op, regs, tmp):
        a = self.a
        for mod in ("quad_perm:[1,0,3,2]", "quad_perm:[2,3,0,1]", "row_half_mirror"):
            for r in regs:
                a(f"{op}_dpp {vr(r)}, {vr(r)}, {vr(r)} {mod} row_mask:0xf bank_mask:0xf")
        self.redrows(op, regs, tmp)

    def redrows(self, op, regs, tmp):
        a = self.a
        for sw in ("v_permlane16_swap_b32", "v_permlane32_swap_b32"):
            for i, r in enumerate(regs):
                a(f"v_mov_b32 {vr(tmp + i)}, {vr(r)}")
            for i, r in enumerate(regs):
                a(f"{sw} {vr(r)}, {vr(tmp + i)}")
            for i, r in enumerate(regs):
                a(f"{op} {vr(r)}, {vr(r)}, {vr(tmp + i)}")

    def selectors(self, sel, lane, t0, nm):
        a = self.a
        a(f"v_and_b32 {vr(t0)}, 1, {vr(lane)}")
        a(f"v_cmp_eq_u32 vcc, 1, {vr(t0)}")
        a(f"v_mov_b32 {vr(t0 + 1)}, 0x0c0c0100\nv_mov_b32 {vr(t0 + 2)}, 0x01000c0c")
        a(f"v_cndmask_b32 {vr(t0 + 1)}, {vr(t0 + 1)}, {vr(t0 + 2)}, vcc")
        a(f"v_mov_b32 {vr(t0 + 2)}, 0x0c0c0302\nv_mov_b32 {vr(t0 + 3)}, 0x03020c0c")
        a(f"v_cndmask_b32 {vr(t0 + 2)}, {vr(t0 + 2)}, {vr(t0 + 3)}, vcc")
        a(f"v_bfe_u32 {vr(t0)}, {vr(lane)}, 1, 2")
        a(f"v_mov_b32 {vr(t0 + 3)}, 0x0c0c0c0c")
        for m in range(nm):
            a(f"v_cmp_eq_u32 vcc, {m}, {vr(t0)}")
            a(f"v_cndmask_b32 {vr(sel + 2 * m)}, {vr(t0 + 3)}, {vr(t0 + 1)}, vcc")
            a(f"v_cndmask_b32 {vr(sel + 2 * m + 1)}, {vr(t0 + 3)}, {vr(t0 + 2)}, vcc")

    def tag_consts(self):
        a = self.a
        a(f"s_add_u32 {sT}, {sT}, {TAGC}")
        a(f"s_lshr_b32 {sT1}, {sT}, 8\ns_lshr_b32 {sT2}, {sT}, 16\ns_lshr_b32 {sT3}, {sT}, 24")
        a(f"s_mov_b32 {sSELA}, 0x0c0c0400\ns_mov_b32 {sSELB}, 0x04000c0c")

    def tag4(self, d, mask):
        for i, s in enumerate((sT, sT1, sT2, sT3)):
            self.a(f"v_bfi_b32 {vr(d + i)}, {vr(mask)}, {vr(d + i)}, {s}")

    def chk4(self, t, g):
        a = self.a
        a(f"v_perm_b32 {vr(t)}, {vr(g + 1)}, {vr(g)}, {sSELA}")
        a(f"v_perm_b32 {vr(t + 1)}, {vr(g + 3)}, {vr(g + 2)}, {sSELB}")
        a(f"v_bitop3_b32 {vr(t)}, {vr(t)}, {vr(t + 1)}, {sT} bitop3:0x56")

    def poll(self, loads, check):
        a = self.a
        self.uid += 1
        L = f"L_poll{self.uid}"
        a(f"s_mov_b32 {sSPIN}, 0\n{L}:")
        loads()
        a(f"s_add_u32 {sSPIN}, {sSPIN}, 1\ns_cmp_gt_u32 {sSPIN}, {SPIN}\ns_cbranch_scc1 L_bail")
        a("s_waitcnt vmcnt(0)")
        check()
        a(f"s_cbranch_vccnz {L}")

    def tr_reduce4(self, v):
        a = self.a
        a(f"v_permlane32_swap_b32 {vr(v)}, {vr(v + 1)}")
        a(f"v_permlane32_swap_b32 {vr(v + 2)}, {vr(v + 3)}")
        a(f"v_add_f32 {vr(v)}, {vr(v)}, {vr(v + 1)}")
        a(f"v_add_f32 {vr(v + 2)}, {vr(v + 2)}, {vr(v + 3)}")
        a(f"v_permlane16_swap_b32 {vr(v)}, {vr(v + 2)}")
        a(f"v_add_f32 {vr(v)}, {vr(v)}, {vr(v + 2)}")
        a(f"v_add_f32_dpp {vr(v)}, {vr(v)}, {vr(v)} row_ror:4 row_mask:0xf bank_mask:0xf")
        a(f"v_add_f32_dpp {vr(v)}, {vr(v)}, {vr(v)} row_ror:8 row_mask:0xf bank_mask:0xf")

    def ln_stats(self, F, t):
        a = self.a
        S, U = t + 3, t + 4
        a(f"v_pk_add_f32 {vr(U, 2)}, {vr(F, 2)}, {vr(F + 2, 2)}")
        a(f"v_pk_add_f32 {vr(U + 2, 2)}, {vr(F + 4, 2)}, {vr(F + 6, 2)}")
        for i in range(2):
            a(f"v_pk_add_f32 {vr(U, 2)}, {vr(U, 2)}, {vr(F + 8 + 4 * i, 2)}")
            a(f"v_pk_add_f32 {vr(U + 2, 2)}, {vr(U + 2, 2)}, {vr(F + 10 + 4 * i, 2)}")
        a(f"v_pk_add_f32 {vr(U, 2)}, {vr(U, 2)}, {vr(U + 2, 2)}")
        a(f"v_add_f32 {vr(S)}, {vr(U)}, {vr(U + 1)}")
        self.red8x("v_add_f32", [S], U)
        a(f"v_mul_f32 {vr(S)}, 0x3b000000, {vr(S)}")
        D = F + 16
        for i in range(16):
            a(f"v_sub_f32 {vr(D + i)}, {vr(F + i)}, {vr(S)}")
        a(f"v_pk_mul_f32 {vr(U, 2)}, {vr(D, 2)}, {vr(D, 2)}")
        a(f"v_pk_mul_f32 {vr(U + 2, 2)}, {vr(D + 2, 2)}, {vr(D + 2, 2)}")
        for i in range(1, 4):
            a(f"v_pk_fma_f32 {vr(U, 2)}, {vr(D + 4 * i, 2)}, {vr(D + 4 * i, 2)}, {vr(U, 2)}")
            a(f"v_pk_fma_f32 {vr(U + 2, 2)}, {vr(D + 4 * i + 2, 2)}, {vr(D + 4 * i + 2, 2)}, {vr(U + 2, 2)}")
        a(f"v_pk_add_f32 {vr(U, 2)}, {vr(U, 2)}, {vr(U + 2, 2)}")
        self.bf16r(t, S)
        a(f"v_add_f32 {vr(S)}, {vr(U)}, {vr(U + 1)}")
        self.red8x("v_add_f32", [S], U)
        a(f"v_mul_f32 {vr(S)}, 0x3b000000, {vr(S)}")
        self.bf16r(S, S)
        a(f"v_add_f32 {vr(S)}, 0x3727c5ac, {vr(S)}")
        self.bf16r(S, S)
        a(f"v_sqrt_f32 {vr(S)}, {vr(S)}")
        self.bf16r(t + 1, S)
        a(f"v_rcp_f32 {vr(t + 2)}, {vr(t + 1)}")

    def ln_apply(self, F, n, t, P, tmp):
        a = self.a
        for i in range(n):
            a(f"v_sub_f32 {vr(F + i)}, {vr(F + i)}, {vr(t)}")
        for i in range(n // 2):
            a(f"v_cvt_pk_bf16_f32 {vr(P + i)}, {vr(F + 2 * i)}, {vr(F + 2 * i + 1)}")
        self.unpack(F, P, n // 2)
        for i in range(n):
            a(f"v_mul_f32 {vr(tmp + i)}, {vr(F + i)}, {vr(t + 2)}")
        for i in range(n):
            a(f"v_fma_f32 {vr(F + i)}, -{vr(tmp + i)}, {vr(t + 1)}, {vr(F + i)}")
        for i in range(n):
            a(f"v_fma_f32 {vr(F + i)}, {vr(F + i)}, {vr(t + 2)}, {vr(tmp + i)}")
        for i in range(n // 2):
            a(f"v_cvt_pk_bf16_f32 {vr(P + i)}, {vr(F + 2 * i)}, {vr(F + 2 * i + 1)}")

    def gemv16(self, D, X, SEL, B, A, steps):
        a = self.a
        for t in range(steps):
            for m in range(2):
                a(f"v_perm_b32 {vr(A + 2 * t + m)}, {vr(X + t // 2)}, {vr(X + t // 2)}, {vr(SEL + 2 * m + (t & 1))}")
            if t >= 1:
                u = t - 1
                a(f"v_mfma_f32_16x16x16_bf16 {vr(D, 4)}, {vr(A + 2 * u, 2)}, {vr(B + 2 * u, 2)}, {vr(D, 4) if u else 0}")
        u = steps - 1
        a(f"v_mfma_f32_16x16x16_bf16 {vr(D, 4)}, {vr(A + 2 * u, 2)}, {vr(B + 2 * u, 2)}, {vr(D, 4)}")

    def role(self, lw, lr, lf, ln):
        a = self.a
        a(f"s_cmp_lt_u32 {sJ}, 4\ns_cbranch_scc1 {lw}")
        a(f"s_lshl_b32 {sF}, {sH}, 1\ns_add_u32 {sF}, {sF}, {sJ}\ns_sub_u32 {sF}, {sF}, 4")
        a(f"s_cmp_lt_u32 {sJ}, 6\ns_cbranch_scc1 {lr}")
        a(f"s_sub_u32 {sF}, {sF}, 2\ns_and_b32 {sA}, {sF}, 7")
        a(f"s_min_u32 {sB}, {sXCD}, 3\ns_mul_i32 {sF}, {sXCD}, 5\ns_add_u32 {sF}, {sF}, {sB}\ns_add_u32 {sF}, {sF}, {sA}")
        a(f"s_cmp_lt_u32 {sXCD}, 3\ns_cselect_b32 {sB}, 6, 5\ns_cmp_lt_u32 {sA}, {sB}\ns_cbranch_scc1 {lf}")
        a(f"s_branch {ln}")

    def build(self):
        a = self.a
        nt, wnt = self.nt, self.wnt
        a(f"{KN}:")
        if self.diag or self.pad:
            a(f"s_memrealtime s[{ST0}:{ST0 + 1}]")
        a("s_load_dwordx16 s[4:19], s[0:1], 0\ns_load_dwordx8 s[20:27], s[0:1], 64")
        a("s_cmp_ge_u32 s2, 256\ns_cbranch_scc1 L_bail")
        if self.diag:
            for i in range(1, 16):
                a(f"s_mov_b32 s{ST0 + 2 * i}, 0")
        a(f"v_readfirstlane_b32 {sW}, v0\nv_and_b32 v1, 63, v0")
        a(f"s_and_b32 {sXCD}, s2, 7\ns_lshr_b32 {sJ}, s2, 3\ns_lshr_b32 {sH}, s2, 6\ns_lshl_b32 {sA}, {sXCD}, 2\ns_add_u32 {sH}, {sH}, {sA}")
        a(f"s_and_b32 {sJ}, {sJ}, 7\ns_lshr_b32 {sW}, {sW}, 6\ns_mov_b32 {sHI}, 0xffff0000")
        a(f"s_cmp_lg_u32 {sW}, 0\ns_cbranch_scc1 L_stream")
        self.comm()
        self.stream()
        self.role_wo()
        self.role_red()
        self.role_ffn()
        a("L_none:")
        self.end()
        if self.diag:
            a("L_exit:")
            a("s_mov_b64 exec, -1\ns_waitcnt vmcnt(0) lgkmcnt(0)")
            a(f"s_memrealtime s[{ST0 + 30}:{ST0 + 31}]\ns_waitcnt lgkmcnt(0)")
            a(f"s_mul_i32 {sA}, s2, 9\ns_add_u32 {sA}, {sA}, {sW}\ns_lshl_b32 {sA}, {sA}, 6\ns_add_u32 {sA}, {sA}, {WS_ST}")
            for i in range(16):
                a(f"v_mov_b32 v{4 + i}, s{ST0 + 2 * i}")
            a(f"v_mov_b32 v2, {sA}\ns_mov_b64 exec, 1")
            for i in range(4):
                a(f"global_store_dwordx4 v2, v[{4 + 4 * i}:{7 + 4 * i}], {sWS} offset:{16 * i}")
        a("L_bail:\ns_endpgm")
        a("L_codeend:")
        nops = a.fix_hazards()
        body = a.text()
        nvg = self.nvg
        txt = HEADER
        txt += f"; @launch grid=(256,1,1) block=(576,1,1) lds={self.lds}\n"
        txt += f'.amdgcn_target "amdgcn-amd-amdhsa--gfx950"\n.text\n.globl {KN}\n.p2align 8\n.type {KN},@function\n'
        txt += body + "\n"
        if self.prefetch:
            txt += ".fill 256, 4, 0xbf810000\n"
        txt += f""".section .rodata,"a"
.p2align 6
.amdhsa_kernel {KN}
  .amdhsa_next_free_vgpr {nvg}
  .amdhsa_next_free_sgpr 102
  .amdhsa_accum_offset {nvg}
  .amdhsa_group_segment_fixed_size 0
  .amdhsa_kernarg_size 96
  .amdhsa_user_sgpr_count 2
  .amdhsa_user_sgpr_kernarg_segment_ptr 1
  .amdhsa_system_sgpr_workgroup_id_x 1
.end_amdhsa_kernel
"""
        self.nops = nops
        return txt

    def comm(self):
        a = self.a
        nt, wnt = self.nt, self.wnt
        LANE, G, BB, T0 = 1, 2, 3, 4
        XS, XO, W, F, SEL, ST, X, A, D, MK = 8, 16, 24, 88, 120, 4, 16, 88, 96, 100
        a("s_setprio 3")
        a(f"v_lshrrev_b32 v{G}, 4, v1\nv_bfe_u32 v{BB}, v1, 3, 1")
        a(f"v_and_b32 v4, 7, v1\nv_lshl_add_u32 v4, v{G}, 3, v4\nv_lshlrev_b32 v4, 5, v4\nv_lshl_add_u32 v4, v{BB}, 10, v4")
        a(f"s_lshl_b32 {sA}, {sJ}, 7\nv_lshl_add_u32 v5, v{G}, 5, {sA}\nv_lshl_add_u32 v5, v{BB}, 10, v5")
        a(f"s_lshl_b32 {sA}, {sJ}, 19\ns_lshl_b32 {sB}, {sH}, 8\ns_add_u32 {sA}, {sA}, {sB}\ns_movk_i32 {sB}, 0x2000")
        a(f"v_and_b32 v6, 15, v1\nv_lshl_add_u32 v6, v6, 4, {sA}\nv_lshl_add_u32 v6, v{G}, 17, v6")
        a("s_waitcnt lgkmcnt(0)")
        self.stamp(1)
        a(f"s_load_dword {sT}, {sWS}, 0")
        a(f"global_load_dwordx4 {vr(XS, 4)}, v4, {sX}\nglobal_load_dwordx4 {vr(XS + 4, 4)}, v4, {sX} offset:16")
        a(f"global_load_dwordx4 {vr(XO, 4)}, v5, {sX}\nglobal_load_dwordx4 {vr(XO + 4, 4)}, v5, {sX} offset:16")
        for t in range(16):
            a(f"global_load_dwordx4 {vr(W + 4 * t, 4)}, v6, {sWQ} {wnt}")
            if t < 15:
                a(f"v_add_u32 v6, {sB}, v6")
        a("s_barrier")
        npf = 0
        if self.prefetch:
            npf = 1
            a(f"s_getpc_b64 {sP}\nL_pc:\ns_sub_u32 s52, s52, L_pc-{KN}\ns_subb_u32 s53, s53, 0")
            a(f"s_lshr_b32 {sA}, s2, 3\ns_min_u32 {sA}, {sA}, (L_codeend-{KN})/1024\ns_lshl_b32 {sA}, {sA}, 10")
            a(f"v_lshl_add_u32 v7, v1, 4, {sA}\nglobal_load_dwordx4 {vr(124, 4)}, v7, {sP}")
        a(f"v_mov_b32 v6, {L_CNT}\nv_mov_b32 v7, 0\nds_write_b32 v6, v7")
        self.selectors(112, LANE, 104, 4)
        SEL = 112
        a(f"s_waitcnt vmcnt({18 + npf})")
        self.unpack(F, XS, 8)
        self.stamp(2)
        self.ln_stats_comm(F, ST)
        a(f"s_waitcnt vmcnt({16 + npf})")
        self.unpack(F, XO, 8)
        self.ln_apply_comm(F, ST, X)
        a("s_waitcnt lgkmcnt(0)")
        self.tag_consts()
        a(f"v_mov_b32 v{MK}, 0xffffff00")
        for t in range(16):
            Ab = A + 4 * (t & 1)
            for m in range(4):
                a(f"v_perm_b32 {vr(Ab + m)}, {vr(X + t // 2)}, {vr(X + t // 2)}, {vr(SEL + 2 * m + (t & 1))}")
            a(f"s_waitcnt vmcnt({15 - t + npf})")
            a(f"v_mfma_f32_16x16x32_bf16 {vr(D, 4)}, {vr(Ab, 4)}, {vr(W + 4 * t, 4)}, {vr(D, 4) if t else 0}")
        a(f"s_lshl_b32 {sA}, {sH}, 13\ns_lshl_b32 {sB}, {sJ}, 9\ns_add_u32 {sA}, {sA}, {sB}\ns_add_u32 {sA}, {sA}, {WS_QP}")
        a(f"v_and_b32 v4, 15, v1\nv_lshl_add_u32 v4, v4, 5, {sA}\nv_bfe_u32 v5, v1, 4, 1\nv_lshl_add_u32 v4, v5, 4, v4")
        a("v_lshrrev_b32 v5, 5, v1\nv_lshl_add_u32 v4, v5, 12, v4")
        self.tag4(D, MK)
        a(f"global_store_dwordx4 v4, {vr(D, 4)}, {sWS} sc1")
        self.stamp(3)
        a(f"s_lshl_b32 {sA}, {sH}, 13\ns_lshr_b32 {sB}, {sJ}, 2\ns_lshl_b32 {sB}, {sB}, 12\ns_add_u32 {sA}, {sA}, {sB}\ns_add_u32 {sA}, {sA}, {WS_QP}")
        a(f"v_lshl_add_u32 v4, v1, 4, {sA}")
        a("s_barrier")
        self.stamp(4)
        Gq, TT = 8, 24

        def loads():
            for n in range(4):
                a(f"global_load_dwordx4 {vr(Gq + 4 * n, 4)}, v4, {sWS} offset:{1024 * n} sc1")

        def check():
            for n in range(4):
                self.chk4(TT + 2 * n, Gq + 4 * n)
            a(f"v_or3_b32 v{TT}, v{TT}, v{TT + 2}, v{TT + 4}\nv_or_b32 v{TT}, v{TT}, v{TT + 6}\nv_cmp_ne_u32 vcc, 0, v{TT}")
        self.poll(loads, check)
        self.stamp(5)
        for i in range(16):
            a(f"v_and_b32 {vr(Gq + i)}, {vr(MK)}, {vr(Gq + i)}")
        for i in range(4):
            a(f"v_add_f32 {vr(Gq + i)}, {vr(Gq + i)}, {vr(Gq + 4 + i)}\nv_add_f32 {vr(Gq + 8 + i)}, {vr(Gq + 8 + i)}, {vr(Gq + 12 + i)}")
        for i in range(4):
            a(f"v_add_f32 {vr(Gq + i)}, {vr(Gq + i)}, {vr(Gq + 8 + i)}")
        a(f"v_permlane32_swap_b32 {vr(Gq)}, {vr(Gq + 2)}\nv_permlane32_swap_b32 {vr(Gq + 1)}, {vr(Gq + 3)}")
        a(f"v_add_f32 {vr(Gq)}, {vr(Gq)}, {vr(Gq + 2)}\nv_add_f32 {vr(Gq + 1)}, {vr(Gq + 1)}, {vr(Gq + 3)}")
        a(f"v_cvt_pk_bf16_f32 {vr(Gq)}, {vr(Gq)}, {vr(Gq + 1)}")
        a(f"v_and_b32 v4, 31, v1\nv_lshlrev_b32 v4, 3, v4\nv_lshrrev_b32 v5, 5, v1\nv_lshl_add_u32 v4, v5, 2, v4")
        a(f"ds_write_b32 v4, {vr(Gq)} offset:{L_Q}\ns_waitcnt lgkmcnt(0)")
        a("s_barrier")
        self.stamp(6)
        a("s_barrier")
        self.stamp(7)
        self.role("L_cwo", "L_none", "L_cffn", "L_none")
        a("L_cwo:")
        a(f"s_lshl_b32 {sA}, {sH}, 17\ns_lshl_b32 {sB}, {sJ}, 15\ns_add_u32 {sA}, {sA}, {sB}\nv_lshl_add_u32 v4, v1, 4, {sA}")
        a(f"s_mov_b32 m0, {L_W}\ns_mov_b32 {sC}, 0\ns_movk_i32 {sB}, 0x400")
        a("L_cwo_l:")
        a(f"global_load_lds_dwordx4 v4, {sWO} {wnt}")
        a(f"s_add_u32 m0, m0, {ROWP}\nv_add_u32 v4, {sB}, v4\ns_add_u32 {sC}, {sC}, 1\ns_cmp_lt_u32 {sC}, 32\ns_cbranch_scc1 L_cwo_l")
        self.stamp(8)
        a("s_waitcnt vmcnt(0)")
        self.stamp(9)
        a("s_barrier")
        self.end()
        a("L_cffn:")
        a(f"s_movk_i32 {sB}, 2752\nv_lshrrev_b32 v4, 2, v1\nv_mul_u32_u24 v4, {sB}, v4\nv_and_b32 v5, 3, v1\nv_lshl_add_u32 v4, v5, 4, v4")
        a(f"s_lshl_b32 {sA}, {sF}, 6\nv_add_u32 v4, {sA}, v4")
        a(f"s_mov_b32 {sD}, {L_G}\ns_mov_b32 {sC}, 0\ns_mov_b32 {sB}, {16 * 2752}")
        a("L_cffn_l:")
        a(f"s_mov_b32 m0, {sD}\ns_add_u32 {sC}, {sC}, 1")
        a(f"global_load_lds_dwordx4 v4, {sWG} {wnt}")
        a(f"s_add_u32 m0, {sD}, {L_U - L_G}\ns_add_u32 {sD}, {sD}, {GUP}")
        a(f"global_load_lds_dwordx4 v4, {sWU} {wnt}")
        a(f"v_add_u32 v4, {sB}, v4\ns_cmp_lt_u32 {sC}, 32\ns_cbranch_scc1 L_cffn_l")
        a(f"s_lshl_b32 {sA}, {sF}, 15\nv_lshl_add_u32 v4, v1, 4, {sA}")
        a(f"s_mov_b32 m0, {L_D}\ns_mov_b32 {sC}, 0\ns_movk_i32 {sB}, 0x400")
        a("L_cffn_d:")
        a(f"global_load_lds_dwordx4 v4, {sWD} {wnt}")
        a(f"s_add_u32 m0, m0, {ROWP}\nv_add_u32 v4, {sB}, v4\ns_add_u32 {sC}, {sC}, 1\ns_cmp_lt_u32 {sC}, 16\ns_cbranch_scc1 L_cffn_d")
        a("s_waitcnt vmcnt(16)")
        self.stamp(8)
        a("s_barrier")
        a("L_cffn_d2:")
        a(f"global_load_lds_dwordx4 v4, {sWD} {wnt}")
        a(f"s_add_u32 m0, m0, {ROWP}\nv_add_u32 v4, {sB}, v4\ns_add_u32 {sC}, {sC}, 1\ns_cmp_lt_u32 {sC}, 32\ns_cbranch_scc1 L_cffn_d2")
        a("s_waitcnt vmcnt(0)")
        self.stamp(9)
        a("s_barrier")
        self.end()

    def ln_stats_comm(self, F, ST):
        a = self.a
        S, U, D = ST + 3, 8, 8
        a(f"v_pk_add_f32 v[104:105], {vr(F, 2)}, {vr(F + 2, 2)}\nv_pk_add_f32 v[106:107], {vr(F + 4, 2)}, {vr(F + 6, 2)}")
        for i in range(2):
            a(f"v_pk_add_f32 v[104:105], v[104:105], {vr(F + 8 + 4 * i, 2)}\nv_pk_add_f32 v[106:107], v[106:107], {vr(F + 10 + 4 * i, 2)}")
        a(f"v_pk_add_f32 v[104:105], v[104:105], v[106:107]\nv_add_f32 {vr(S)}, v104, v105")
        self.red8x("v_add_f32", [S], 104)
        a(f"v_mul_f32 {vr(S)}, 0x3b000000, {vr(S)}")
        for i in range(16):
            a(f"v_sub_f32 {vr(F + i)}, {vr(F + i)}, {vr(S)}")
        a(f"v_pk_mul_f32 v[104:105], {vr(F, 2)}, {vr(F, 2)}\nv_pk_mul_f32 v[106:107], {vr(F + 2, 2)}, {vr(F + 2, 2)}")
        for i in range(1, 4):
            a(f"v_pk_fma_f32 v[104:105], {vr(F + 4 * i, 2)}, {vr(F + 4 * i, 2)}, v[104:105]")
            a(f"v_pk_fma_f32 v[106:107], {vr(F + 4 * i + 2, 2)}, {vr(F + 4 * i + 2, 2)}, v[106:107]")
        a("v_pk_add_f32 v[104:105], v[104:105], v[106:107]")
        self.bf16r(ST, S)
        a(f"v_add_f32 {vr(S)}, v104, v105")
        self.red8x("v_add_f32", [S], 104)
        a(f"v_mul_f32 {vr(S)}, 0x3b000000, {vr(S)}")
        self.bf16r(S, S)
        a(f"v_add_f32 {vr(S)}, 0x3727c5ac, {vr(S)}")
        self.bf16r(S, S)
        a(f"v_sqrt_f32 {vr(S)}, {vr(S)}")
        self.bf16r(ST + 1, S)
        a(f"v_rcp_f32 {vr(ST + 2)}, {vr(ST + 1)}")

    def ln_apply_comm(self, F, ST, X):
        self.ln_apply(F, 8, ST, X, 8)
        self.ln_apply(F + 8, 8, ST, X + 4, 8)

    def stream(self):
        a = self.a
        nt = self.nt
        K, V, Q, P, T, SEL, D = 4, 36, 68, 72, 80, 88, 96
        MK, ADR, MREG = 100, 101, 102
        a("L_stream:")
        a(f"s_lshr_b32 {sA}, {sJ}, 2\ns_lshl_b32 {sA}, {sA}, 25\ns_lshl_b32 {sB}, {sH}, 20\ns_add_u32 {sA}, {sA}, {sB}")
        a(f"s_and_b32 {sB}, {sJ}, 3\ns_lshl_b32 {sB}, {sB}, 16\ns_add_u32 {sA}, {sA}, {sB}\ns_lshl_b32 {sB}, {sW}, 13\ns_add_u32 {sA}, {sA}, {sB}")
        a(f"s_add_u32 {sA}, {sA}, {0xC0000 + 4096 - 8192}\nv_lshl_add_u32 v2, v1, 4, {sA}")
        a("s_waitcnt lgkmcnt(0)\ns_barrier")
        self.stamp(1)
        for t in range(8):
            a(f"global_load_dwordx4 {vr(K + 4 * t, 4)}, v2, {sK} offset:{1024 * t - 4096} {nt}")
        self.stamp(2)
        a("s_barrier")
        for t in range(8):
            a(f"global_load_dwordx4 {vr(V + 4 * t, 4)}, v2, {sV} offset:{1024 * t - 4096} {nt}")
        self.stamp(3)
        a(f"s_load_dword {sT}, {sWS}, 0")
        a(f"s_sub_u32 {sW}, {sW}, 1" if not self.diag else f"s_sub_u32 s56, {sW}, 1")
        self.sw = sW if not self.diag else "s56"
        sw = self.sw
        self.selectors(SEL, 1, T, 4)
        a(f"v_and_b32 v3, 15, v1\nv_lshlrev_b32 v3, 4, v3")
        a(f"s_mov_b32 {sK1}, 0x3db504f3\ns_mov_b32 {sK2}, 0x3fb8aa3b")
        a("s_barrier")
        self.stamp(4)
        a(f"ds_read_b128 {vr(Q, 4)}, v3 offset:{L_Q}")
        for t in range(8):
            a(f"v_mov_b32 {vr(P + t)}, 0")
        a("s_waitcnt vmcnt(8) lgkmcnt(0)")
        self.tag_consts()
        for i in range(4):
            for t in range(8):
                a(f"v_dot2c_f32_bf16 {vr(P + t)}, {vr(K + 4 * t + i)}, {vr(Q + i)}")
        for rot in (8, 4, 2, 1):
            for t in range(8):
                a(f"v_add_f32_dpp {vr(P + t)}, {vr(P + t)}, {vr(P + t)} row_ror:{rot} row_mask:0xf bank_mask:0xf")
        for u in range(4):
            a(f"v_cvt_pk_bf16_f32 {vr(T + u)}, {vr(P + 2 * u)}, {vr(P + 2 * u + 1)}")
        self.unpack(P, T, 4)
        for t in range(8):
            a(f"v_mul_f32 {vr(P + t)}, {sK1}, {vr(P + t)}")
        for u in range(4):
            a(f"v_cvt_pk_bf16_f32 {vr(T + u)}, {vr(P + 2 * u)}, {vr(P + 2 * u + 1)}")
        self.unpack(P, T, 4)
        a(f"v_max3_f32 {vr(T)}, {vr(P)}, {vr(P + 1)}, {vr(P + 2)}\nv_max3_f32 {vr(T + 1)}, {vr(P + 3)}, {vr(P + 4)}, {vr(P + 5)}")
        a(f"v_max3_f32 {vr(T)}, {vr(T)}, {vr(P + 6)}, {vr(P + 7)}\nv_max_f32 {vr(T)}, {vr(T)}, {vr(T + 1)}")
        self.redrows("v_max_f32", [T], T + 1)
        a(f"s_lshl_b32 {sA}, {sw}, 2\nv_mov_b32 {vr(T + 1)}, {sA}\nds_write_b32 {vr(T + 1)}, {vr(T)} offset:{L_MAX}")
        a(f"v_mov_b32 {vr(T + 2)}, 0\ns_waitcnt lgkmcnt(0)\ns_barrier")
        self.stamp(5)
        a(f"ds_read_b128 {vr(Q, 4)}, {vr(T + 2)} offset:{L_MAX}\nds_read_b128 {vr(T + 4, 4)}, {vr(T + 2)} offset:{L_MAX + 16}")
        a(f"v_and_b32 v3, 15, v1\nv_bfe_u32 {vr(ADR)}, v1, 4, 1\nv_lshl_add_u32 v3, v3, 1, {vr(ADR)}")
        a(f"v_lshrrev_b32 {vr(ADR)}, 3, v3\nv_lshlrev_b32 {vr(ADR)}, 10, {vr(ADR)}\nv_and_b32 v3, 7, v3\nv_lshl_add_u32 {vr(ADR)}, v3, 4, {vr(ADR)}")
        a(f"s_lshl_b32 {sA}, {sH}, 12\ns_lshl_b32 {sB}, {sJ}, 7\ns_add_u32 {sA}, {sA}, {sB}\ns_add_u32 {sA}, {sA}, {WS_OP}\nv_add_u32 {vr(ADR)}, {sA}, {vr(ADR)}")
        a(f"s_lshl_b32 {sA}, {sH}, 7\ns_lshl_b32 {sB}, {sJ}, 4\ns_add_u32 {sA}, {sA}, {sB}\ns_add_u32 {sA}, {sA}, {WS_ML}\nv_mov_b32 v3, {sA}")
        a(f"v_cmp_lt_u32 {sM0}, 31, v1\nv_cndmask_b32 {vr(ADR)}, {vr(ADR)}, v3, {sM0}")
        a(f"v_mov_b32 {vr(MK)}, 0xffffff00")
        a("s_waitcnt lgkmcnt(0)")
        a(f"v_max3_f32 {vr(MREG)}, {vr(Q)}, {vr(Q + 1)}, {vr(Q + 2)}\nv_max3_f32 {vr(T)}, {vr(Q + 3)}, {vr(T + 4)}, {vr(T + 5)}")
        a(f"v_max3_f32 {vr(MREG)}, {vr(MREG)}, {vr(T + 6)}, {vr(T + 7)}\nv_max_f32 {vr(MREG)}, {vr(MREG)}, {vr(T)}")
        a(f"v_mul_f32 {vr(T)}, {sK2}, {vr(MREG)}")
        for t in range(8):
            a(f"v_fma_f32 {vr(P + t)}, {vr(P + t)}, {sK2}, -{vr(T)}")
        for t in range(8):
            a(f"v_exp_f32 {vr(P + t)}, {vr(P + t)}")
        a(f"v_bfe_u32 v3, v1, 3, 1\nv_cmp_eq_u32 vcc, 0, v3")
        for u in range(4):
            a(f"v_cvt_pk_bf16_f32 {vr(Q + u)}, {vr(P + 2 * u)}, {vr(P + 2 * u + 1)}")
        for u in range(4):
            a(f"v_cndmask_b32 {vr(Q + u)}, 0, {vr(Q + u)}, vcc")
        a(f"v_pk_add_f32 {vr(P, 2)}, {vr(P, 2)}, {vr(P + 2, 2)}\nv_pk_add_f32 {vr(P + 4, 2)}, {vr(P + 4, 2)}, {vr(P + 6, 2)}")
        a(f"v_pk_add_f32 {vr(P, 2)}, {vr(P, 2)}, {vr(P + 4, 2)}\nv_add_f32 {vr(P)}, {vr(P)}, {vr(P + 1)}")
        self.redrows("v_add_f32", [P], P + 1)
        a(f"ds_write_b32 {vr(T + 1)}, {vr(P)} offset:{L_SUM}")
        for t in range(8):
            for m in range(4):
                a(f"v_perm_b32 {vr(K + 4 * t + m)}, {vr(Q + t // 2)}, {vr(Q + t // 2)}, {vr(SEL + 2 * m + (t & 1))}")
        a(f"s_lshl_b32 {sA}, {sw}, 9\nv_lshl_add_u32 v3, v1, 4, {sA}\nv_mov_b32 {vr(T)}, {L_CNT}\nv_mov_b32 {vr(T + 1)}, 1")
        a(f"v_and_b32 {vr(T + 3)}, 31, v1\nv_lshlrev_b32 {vr(T + 3)}, 4, {vr(T + 3)}\nv_lshrrev_b32 {vr(T + 4)}, 5, v1\nv_lshl_add_u32 {vr(T + 3)}, {vr(T + 4)}, 11, {vr(T + 3)}")
        self.stamp(6)
        for t in range(8):
            a(f"s_waitcnt vmcnt({7 - t})")
            a(f"v_mfma_f32_16x16x32_bf16 {vr(D, 4)}, {vr(K + 4 * t, 4)}, {vr(V + 4 * t, 4)}, {vr(D, 4) if t else 0}")
        self.stamp(7)
        a("s_mov_b32 exec_hi, 0")
        a(f"ds_write_b128 v3, {vr(D, 4)} offset:{L_OP}")
        a("s_mov_b32 exec_lo, 1")
        a(f"ds_add_rtn_u32 {vr(T + 5)}, {vr(T)}, {vr(T + 1)}")
        a("s_waitcnt lgkmcnt(0)")
        a(f"v_readfirstlane_b32 {sA}, {vr(T + 5)}\ns_mov_b64 exec, -1")
        a(f"s_cmp_lg_u32 {sA}, 7\ns_cbranch_scc1 L_role")
        for n in range(4):
            a(f"ds_read_b128 {vr(K + 4 * n, 4)}, {vr(T + 3)} offset:{L_OP + 512 * n}")
        a(f"ds_read_b128 {vr(K + 16, 4)}, {vr(T + 2)} offset:{L_SUM}\nds_read_b128 {vr(K + 20, 4)}, {vr(T + 2)} offset:{L_SUM + 16}")
        a("s_waitcnt lgkmcnt(0)")
        for i in (0, 2):
            a(f"v_pk_add_f32 {vr(K + i, 2)}, {vr(K + i, 2)}, {vr(K + 4 + i, 2)}\nv_pk_add_f32 {vr(K + 8 + i, 2)}, {vr(K + 8 + i, 2)}, {vr(K + 12 + i, 2)}")
        a(f"v_pk_add_f32 {vr(K + 16, 2)}, {vr(K + 16, 2)}, {vr(K + 18, 2)}\nv_pk_add_f32 {vr(K + 20, 2)}, {vr(K + 20, 2)}, {vr(K + 22, 2)}")
        for i in (0, 2):
            a(f"v_pk_add_f32 {vr(K + i, 2)}, {vr(K + i, 2)}, {vr(K + 8 + i, 2)}")
        a(f"v_pk_add_f32 {vr(K + 16, 2)}, {vr(K + 16, 2)}, {vr(K + 20, 2)}")
        for i in range(4):
            a(f"v_permlane32_swap_b32 {vr(K + i)}, {vr(K + 4 + i)}")
        a(f"v_add_f32 {vr(K + 16)}, {vr(K + 16)}, {vr(K + 17)}")
        for i in (0, 2):
            a(f"v_pk_add_f32 {vr(K + i, 2)}, {vr(K + i, 2)}, {vr(K + 4 + i, 2)}")
        a(f"v_cndmask_b32 {vr(K)}, {vr(K)}, {vr(MREG)}, {sM0}\nv_cndmask_b32 {vr(K + 1)}, {vr(K + 1)}, {vr(K + 16)}, {sM0}")
        self.tag4(K, MK)
        a("s_mov_b32 exec_hi, 1")
        a(f"global_store_dwordx4 {vr(ADR)}, {vr(K, 4)}, {sWS} sc1")
        a("s_mov_b32 exec_hi, -1")
        self.stamp(8)
        a("L_role:")
        self.role("L_wo", "L_red", "L_ffn", "L_none")

    def store_partial(self, D, MK, ADR):
        a = self.a
        self.tag4(D, MK)
        a("s_mov_b32 exec_lo, 0xffff\ns_mov_b32 exec_hi, 0xffff")
        a(f"global_store_dwordx4 {vr(ADR)}, {vr(D, 4)}, {sWS} sc1")

    def partial_addr(self, ADR, base, ustride_sh, ustride_mul, prod):
        a = self.a
        a(f"v_bfe_u32 v3, v1, 2, 2\ns_lshl_b32 {sA}, {self.sw}, 2\nv_add_u32 v3, {sA}, v3\nv_lshrrev_b32 {vr(ADR)}, 5, v1\nv_lshl_add_u32 v3, v3, 1, {vr(ADR)}")
        a(f"s_lshl_b32 {sA}, {prod}, 6\ns_add_u32 {sA}, {sA}, {base}\nv_and_b32 {vr(ADR)}, 3, v1\nv_lshl_add_u32 {vr(ADR)}, {vr(ADR)}, 4, {sA}")
        if ustride_mul:
            a(f"v_mul_u32_u24 v3, {ustride_mul}, v3\nv_add_u32 {vr(ADR)}, v3, {vr(ADR)}")
        else:
            a(f"v_lshl_add_u32 {vr(ADR)}, v3, {ustride_sh}, {vr(ADR)}")

    def wrow_reads(self, B, base, tmp):
        a = self.a
        a(f"v_lshrrev_b32 {vr(tmp)}, 4, v1\nv_mul_u32_u24 {vr(tmp)}, {8 * ROWP}, {vr(tmp)}\nv_and_b32 v3, 15, v1\nv_lshl_add_u32 {vr(tmp)}, v3, 3, {vr(tmp)}")
        a(f"s_lshl_b32 {sA}, {self.sw}, 7\ns_add_u32 {sA}, {sA}, {base}\nv_add_u32 {vr(tmp)}, {sA}, {vr(tmp)}")
        return [f"ds_read_b64 {vr(B + 2 * t, 2)}, {vr(tmp)} offset:{ROWP * t}" for t in range(8)]

    def role_wo(self):
        a = self.a
        SEL, MK, D = 88, 100, 96
        B, A, O, ML, X, T, AO, AM, ADR = 4, 20, 36, 40, 44, 48, 56, 57, 58
        a("L_wo:")
        rd = self.wrow_reads(B, L_W, 59)
        a(f"s_lshl_b32 {sC}, {sH}, 2\ns_add_u32 {sC}, {sC}, {sJ}")
        self.partial_addr(ADR, WS_YP, 13, 0, sC)
        a(f"v_bfe_u32 {vr(AM)}, v1, 3, 1\nv_and_b32 v3, 3, v1\nv_lshl_add_u32 {vr(AM)}, {vr(AM)}, 2, v3")
        a(f"v_lshrrev_b32 {vr(AO)}, 4, v1\nv_bfe_u32 v3, v1, 2, 1\nv_lshl_add_u32 {vr(AO)}, {vr(AO)}, 1, v3\nv_lshlrev_b32 {vr(AO)}, 4, {vr(AO)}\nv_lshl_add_u32 {vr(AO)}, {vr(AM)}, 7, {vr(AO)}")
        a(f"s_lshl_b32 {sA}, {sH}, 12\ns_lshl_b32 {sB}, {sJ}, 10\ns_add_u32 {sA}, {sA}, {sB}\ns_add_u32 {sA}, {sA}, {WS_OP}\nv_add_u32 {vr(AO)}, {sA}, {vr(AO)}")
        a(f"s_lshl_b32 {sA}, {sH}, 7\ns_add_u32 {sA}, {sA}, {WS_ML}\nv_lshl_add_u32 {vr(AM)}, {vr(AM)}, 4, {sA}")
        a("s_barrier")
        self.stamp(9)
        for x in rd:
            a(x)

        def loads():
            a(f"global_load_dwordx4 {vr(ML, 4)}, {vr(AM)}, {sWS} sc1\nglobal_load_dwordx4 {vr(O, 4)}, {vr(AO)}, {sWS} sc1")

        def check():
            self.chk4(T, ML)
            self.chk4(T + 2, O)
            a(f"v_or_b32 {vr(T)}, {vr(T)}, {vr(T + 2)}\nv_cmp_ne_u32 vcc, 0, {vr(T)}")
        self.poll(loads, check)
        self.stamp(10)
        a(f"v_and_b32 {vr(ML)}, {vr(MK)}, {vr(ML)}\nv_and_b32 {vr(ML + 1)}, {vr(MK)}, {vr(ML + 1)}")
        a(f"v_and_b32 {vr(O)}, {vr(MK)}, {vr(O)}")
        a(f"v_max_f32_dpp {vr(T)}, {vr(ML)}, {vr(ML)} quad_perm:[1,0,3,2] row_mask:0xf bank_mask:0xf")
        a(f"v_and_b32 {vr(O + 1)}, {vr(MK)}, {vr(O + 1)}\nv_and_b32 {vr(O + 2)}, {vr(MK)}, {vr(O + 2)}")
        a(f"v_max_f32_dpp {vr(T)}, {vr(T)}, {vr(T)} quad_perm:[2,3,0,1] row_mask:0xf bank_mask:0xf")
        a(f"v_and_b32 {vr(O + 3)}, {vr(MK)}, {vr(O + 3)}")
        a(f"v_sub_f32 {vr(T)}, {vr(ML)}, {vr(T)}\nv_mul_f32 {vr(T)}, {sK2}, {vr(T)}\nv_exp_f32 {vr(T)}, {vr(T)}")
        a(f"v_mul_f32 {vr(ML)}, {vr(ML + 1)}, {vr(T)}")
        for i in range(4):
            a(f"v_mul_f32 {vr(O + i)}, {vr(O + i)}, {vr(T)}")
        for mod in ("quad_perm:[1,0,3,2]", "quad_perm:[2,3,0,1]"):
            for r in (ML, O, O + 1, O + 2, O + 3):
                a(f"v_add_f32_dpp {vr(r)}, {vr(r)}, {vr(r)} {mod} row_mask:0xf bank_mask:0xf")
        a(f"v_rcp_f32 {vr(ML)}, {vr(ML)}")
        for i in range(4):
            a(f"v_mul_f32 {vr(O + i)}, {vr(O + i)}, {vr(ML)}")
        a(f"v_cvt_pk_bf16_f32 {vr(X)}, {vr(O)}, {vr(O + 1)}\nv_cvt_pk_bf16_f32 {vr(X + 1)}, {vr(O + 2)}, {vr(O + 3)}")
        a(f"v_mov_b32_dpp {vr(X + 2)}, {vr(X)} row_half_mirror row_mask:0xf bank_mask:0xf")
        a(f"v_mov_b32_dpp {vr(X + 3)}, {vr(X + 1)} row_half_mirror row_mask:0xf bank_mask:0xf")
        a("s_waitcnt lgkmcnt(0)")
        self.gemv16(D, X, SEL, B, A, 8)
        self.store_partial(D, MK, ADR)
        self.stamp(11)
        self.end()

    def role_red(self):
        a = self.a
        MK = 100
        G, T, AD, XR, COL, HV, AO = 4, 20, 28, 29, 30, 31, 32
        a("L_red:")
        a(f"s_lshl_b32 {sA}, {sF}, 13\ns_lshl_b32 {sB}, {self.sw}, 10\ns_add_u32 {sA}, {sA}, {sB}\ns_add_u32 {sA}, {sA}, {WS_YP}\nv_lshl_add_u32 {vr(AD)}, v1, 4, {sA}")
        a(f"v_bfe_u32 {vr(COL)}, v1, 4, 1\nv_lshrrev_b32 v3, 5, v1\nv_lshl_add_u32 {vr(COL)}, {vr(COL)}, 1, v3\nv_and_b32 v3, 3, v1\nv_lshl_add_u32 {vr(COL)}, v3, 2, {vr(COL)}")
        a(f"s_lshr_b32 {sA}, {sF}, 1\ns_lshl_b32 {sA}, {sA}, 4\ns_and_b32 {sB}, {sF}, 1\ns_lshl_b32 {sB}, {sB}, 9\ns_add_u32 {sA}, {sA}, {sB}")
        a(f"v_add_u32 {vr(COL)}, {sA}, {vr(COL)}\nv_lshlrev_b32 {vr(AO)}, 1, {vr(COL)}")
        a(f"global_load_ushort {vr(XR)}, {vr(AO)}, {sX}")
        a(f"v_lshrrev_b32 v2, 4, v1\nv_lshl_add_u32 v2, v2, 2, v3\nv_lshlrev_b32 v2, 5, v2\ns_lshl_b32 {sA}, {self.sw}, 2\nv_add_u32 v3, {sA}, v2")

        def loads():
            a(f"global_load_dwordx4 {vr(G, 4)}, {vr(AD)}, {sWS} sc1")

        def check():
            self.chk4(T, G)
            a(f"v_cmp_ne_u32 vcc, 0, {vr(T)}")
        self.poll(loads, check)
        self.stamp(10)
        for i in range(4):
            a(f"v_and_b32 {vr(G + i)}, {vr(MK)}, {vr(G + i)}")
        self.tr_reduce4(G)
        a("s_mov_b32 exec_lo, 0x000f000f\ns_mov_b32 exec_hi, 0x000f000f")
        a(f"ds_write_b32 v3, {vr(G)} offset:{L_RED}\ns_waitcnt lgkmcnt(0)\ns_barrier")
        a(f"s_cmp_lg_u32 {self.sw}, 0\ns_cbranch_scc1 L_none")
        a(f"ds_read_b128 {vr(G, 4)}, v2 offset:{L_RED}\nds_read_b128 {vr(G + 4, 4)}, v2 offset:{L_RED + 16}")
        a(f"v_lshlrev_b32 {vr(XR)}, 16, {vr(XR)}")
        a(f"v_and_b32 {vr(T)}, 1, {vr(COL)}\nv_cmp_eq_u32 vcc, 1, {vr(T)}\nv_mov_b32 {vr(T)}, {sT}\nv_mov_b32 {vr(T + 1)}, {sT2}")
        a(f"v_cndmask_b32 {vr(T)}, {vr(T)}, {vr(T + 1)}, vcc\nv_and_b32 {vr(T)}, 0xffff, {vr(T)}")
        a(f"v_lshlrev_b32 {vr(COL)}, 2, {vr(COL)}\nv_add_u32 {vr(COL)}, {WS_H}, {vr(COL)}")
        a("s_waitcnt lgkmcnt(0)")
        a(f"v_pk_add_f32 {vr(G, 2)}, {vr(G, 2)}, {vr(G + 2, 2)}\nv_pk_add_f32 {vr(G + 4, 2)}, {vr(G + 4, 2)}, {vr(G + 6, 2)}")
        a(f"v_pk_add_f32 {vr(G, 2)}, {vr(G, 2)}, {vr(G + 4, 2)}\nv_add_f32 {vr(G)}, {vr(G)}, {vr(G + 1)}")
        self.bf16r(G, G)
        a(f"v_add_f32 {vr(G)}, {vr(G)}, {vr(XR)}")
        self.bf16r(HV, G)
        a(f"v_or_b32 {vr(G)}, {vr(HV)}, {vr(T)}")
        a(f"global_store_dword {vr(COL)}, {vr(G)}, {sWS} sc1")
        self.stamp(11)
        a("s_mov_b64 exec, -1")
        a(f"s_mul_i32 {sA}, {sF}, {FP_STRIDE}\ns_add_u32 {sA}, {sA}, {WS_FP}\nv_lshl_add_u32 {vr(AD)}, v1, 4, {sA}")
        a(f"v_cmp_gt_u32 {sM1}, 44, v1\nv_add_u32 v2, 2048, {vr(AD)}\nv_cndmask_b32 v2, {vr(AD)}, v2, {sM1}")
        a(f"v_cndmask_b32 v33, 0, {vr(MK)}, {sM1}")

        def loads2():
            a(f"global_load_dwordx4 {vr(G, 4)}, {vr(AD)}, {sWS} sc1\nglobal_load_dwordx4 {vr(G + 4, 4)}, {vr(AD)}, {sWS} offset:1024 sc1")
            a(f"global_load_dwordx4 {vr(G + 8, 4)}, v2, {sWS} sc1")

        def check2():
            for n in range(3):
                self.chk4(T + 2 * n, G + 4 * n)
            a(f"v_or3_b32 {vr(T)}, {vr(T)}, {vr(T + 2)}, {vr(T + 4)}\nv_cmp_ne_u32 vcc, 0, {vr(T)}")
        self.poll(loads2, check2)
        self.stamp(12)
        for i in range(8):
            a(f"v_and_b32 {vr(G + i)}, {vr(MK)}, {vr(G + i)}")
        for i in range(4):
            a(f"v_and_b32 {vr(G + 8 + i)}, v33, {vr(G + 8 + i)}")
        for i in (0, 2):
            a(f"v_pk_add_f32 {vr(G + i, 2)}, {vr(G + i, 2)}, {vr(G + 4 + i, 2)}")
        for i in (0, 2):
            a(f"v_pk_add_f32 {vr(G + i, 2)}, {vr(G + i, 2)}, {vr(G + 8 + i, 2)}")
        self.tr_reduce4(G)
        self.bf16r(G, G)
        a("s_mov_b32 exec_lo, 0x000f000f\ns_mov_b32 exec_hi, 0x000f000f")
        a(f"v_add_f32 {vr(G)}, {vr(G)}, {vr(HV)}\nv_cvt_pk_bf16_f32 {vr(G)}, {vr(G)}, {vr(G)}")
        a(f"global_store_short {vr(AO)}, {vr(G)}, {sOUT}")
        self.stamp(13)
        a(f"s_cmp_lg_u32 {sF}, 0\ns_cbranch_scc1 L_none")
        a(f"v_mov_b32 v2, 0\nv_mov_b32 v3, {sT}\ns_mov_b64 exec, 1\nglobal_store_dword v2, v3, {sWS} sc1")
        if self.pad:
            a(f"s_mov_b32 s70, {self.pad}")
            if self.probe is not None:
                a("s_waitcnt lgkmcnt(0)\ns_sub_u32 s68, s68, s64\ns_lshl_b32 s68, s68, 2\ns_min_u32 s68, s68, 20000\ns_add_u32 s70, s70, s68")
            a(f"L_pad:\ns_memrealtime s[66:67]\ns_waitcnt lgkmcnt(0)\ns_sub_u32 s66, s66, s64\ns_cmp_lt_u32 s66, s70\ns_cbranch_scc1 L_pad")
        self.end()

    def role_ffn(self):
        a = self.a
        SEL, MK, D = 88, 100, 96
        B, F, A, ST, X, AH, ADR, T = 4, 36, 36, 68, 76, 84, 101, 104
        sw = self.sw
        a("L_ffn:")
        a(f"v_lshrrev_b32 v2, 4, v1\ns_lshl_b32 {sA}, {sw}, 2\nv_add_u32 v2, {sA}, v2\nv_mul_u32_u24 v2, {GUP}, v2")
        a(f"v_bfe_u32 v3, v1, 3, 1\nv_mul_u32_u24 v3, {L_U - L_G}, v3\nv_add_u32 v2, v2, v3\nv_and_b32 v3, 7, v1\nv_lshl_add_u32 v2, v3, 3, v2")
        a(f"v_lshrrev_b32 {vr(T)}, 4, v1\nv_and_b32 v3, 3, v1\nv_lshl_add_u32 {vr(T)}, {vr(T)}, 2, v3\nv_lshlrev_b32 {vr(T)}, 4, {vr(T)}")
        a(f"v_bfe_u32 v3, v1, 3, 1\nv_lshl_add_u32 {vr(T)}, v3, 11, {vr(T)}\nv_add_u32 {vr(T)}, {WS_H}, {vr(T)}\nv_bfe_u32 v3, v1, 2, 1")
        for n in range(4):
            a(f"v_add_u32 {vr(AH + n)}, {2 * n}, v3\nv_xor_b32 {vr(AH + n)}, {sw}, {vr(AH + n)}\nv_lshl_add_u32 {vr(AH + n)}, {vr(AH + n)}, 8, {vr(T)}")
        self.partial_addr(ADR, WS_FP, 0, FP_STRIDE, sF)
        rd = self.wrow_reads(4, L_D, 102)
        a(f"v_lshrrev_b32 v3, 5, v1\nv_and_b32 v103, 7, v1\nv_lshlrev_b32 v103, 4, v103\nv_lshl_add_u32 v103, v3, 6, v103\nv_and_b32 v103, 127, v103")
        a(f"v_lshl_add_u32 v103, v3, 7, v103\nv_bfe_u32 v3, v1, 3, 1\nv_lshl_add_u32 v103, v3, 8, v103\ns_lshl_b32 {sA}, {sw}, 9\nv_add_u32 v103, {sA}, v103")
        a(f"v_lshrrev_b32 v108, 4, v1\nv_and_b32 v109, 7, v1\nv_lshl_add_u32 v108, v108, 3, v109\nv_lshl_add_u32 v108, v3, 4, v108\nv_and_b32 v108, 31, v108")
        a(f"v_lshl_add_u32 v108, v3, 5, v108\nv_lshlrev_b32 v108, 2, v108\nv_add_u32 v108, {L_RED}, v108")
        a(f"s_mov_b32 {sK1}, 0x3d372713\ns_mov_b32 {sK3}, 0xc0135761\ns_mov_b32 {sC}, 0x05040100")
        a("s_barrier")
        self.stamp(9)
        for t in range(16):
            a(f"ds_read_b64 {vr(B + 2 * t, 2)}, v2 offset:{L_G + 64 * t}")

        def loads():
            for n in range(4):
                a(f"global_load_dwordx4 {vr(F + 4 * n, 4)}, {vr(AH + n)}, {sWS} sc1")

        def check():
            for i in range(8):
                a(f"v_perm_b32 {vr(F + 16 + i)}, {vr(F + 2 * i + 1)}, {vr(F + 2 * i)}, {sC}")
            for i in range(8):
                a(f"v_xor_b32 {vr(F + 16 + i)}, {sT}, {vr(F + 16 + i)}")
            a(f"v_or3_b32 {vr(F + 16)}, {vr(F + 16)}, {vr(F + 17)}, {vr(F + 18)}\nv_or3_b32 {vr(F + 19)}, {vr(F + 19)}, {vr(F + 20)}, {vr(F + 21)}")
            a(f"v_or3_b32 {vr(F + 16)}, {vr(F + 16)}, {vr(F + 22)}, {vr(F + 23)}\nv_or_b32 {vr(F + 16)}, {vr(F + 16)}, {vr(F + 19)}")
            a(f"v_cmp_ne_u32 vcc, 0, {vr(F + 16)}")
        self.poll(loads, check)
        self.stamp(10)
        for i in range(16):
            a(f"v_and_b32 {vr(F + i)}, {sHI}, {vr(F + i)}")
        self.ln_stats(F, ST)
        self.ln_apply(F, 4, ST, T, F + 4)
        for k in range(4):
            for u in range(2):
                a(f"v_mov_b32_dpp {vr(X + 2 * k + u)}, {vr(T + u)} quad_perm:[{k},{k},{k},{k}] row_mask:0xf bank_mask:0xf")
        a("s_waitcnt lgkmcnt(0)")
        self.gemv16(D, X, SEL, B, A, 16)
        a("s_mov_b32 exec_lo, 0xffff\ns_mov_b32 exec_hi, 0xffff")
        a(f"ds_write_b128 v103, {vr(D, 4)} offset:{L_RED}\ns_mov_b64 exec, -1\ns_waitcnt lgkmcnt(0)\ns_barrier")
        self.stamp(11)
        for w in range(8):
            a(f"ds_read2st64_b32 {vr(F + 2 * w, 2)}, v108 offset0:{2 * w} offset1:{2 * w + 1}")
        for x in rd:
            a(x)
        a("s_waitcnt lgkmcnt(8)" if not self.diag else "s_waitcnt lgkmcnt(0)")
        for i in range(4):
            a(f"v_pk_add_f32 {vr(F + 4 * i, 2)}, {vr(F + 4 * i, 2)}, {vr(F + 4 * i + 2, 2)}")
        a(f"v_pk_add_f32 {vr(F, 2)}, {vr(F, 2)}, {vr(F + 4, 2)}\nv_pk_add_f32 {vr(F + 8, 2)}, {vr(F + 8, 2)}, {vr(F + 12, 2)}")
        a(f"v_pk_add_f32 {vr(F, 2)}, {vr(F, 2)}, {vr(F + 8, 2)}")
        a(f"v_cvt_pk_bf16_f32 {vr(F + 2)}, {vr(F)}, {vr(F + 1)}")
        self.unpack(F, F + 2, 1)
        a(f"v_mul_f32 {vr(F + 2)}, {vr(F)}, {vr(F)}\nv_mul_f32 {vr(F + 3)}, {sK3}, {vr(F)}\nv_fma_f32 {vr(F + 2)}, {vr(F + 2)}, {sK1}, 1.0")
        a(f"v_mul_f32 {vr(F + 2)}, {vr(F + 2)}, {vr(F + 3)}\nv_exp_f32 {vr(F + 2)}, {vr(F + 2)}\nv_add_f32 {vr(F + 2)}, 1.0, {vr(F + 2)}")
        a(f"v_rcp_f32 {vr(F + 2)}, {vr(F + 2)}\nv_mul_f32 {vr(F)}, {vr(F)}, {vr(F + 2)}")
        self.bf16r(F, F)
        a(f"v_mul_f32 {vr(F)}, {vr(F)}, {vr(F + 1)}")
        a(f"v_mov_b32_dpp {vr(F + 2)}, {vr(F)} quad_perm:[0,0,2,2] row_mask:0xf bank_mask:0xf")
        a(f"v_mov_b32_dpp {vr(F + 3)}, {vr(F)} quad_perm:[1,1,3,3] row_mask:0xf bank_mask:0xf")
        a(f"v_cvt_pk_bf16_f32 {vr(F)}, {vr(F + 2)}, {vr(F + 3)}")
        a(f"v_mov_b32_dpp {vr(F + 1)}, {vr(F)} row_half_mirror row_mask:0xf bank_mask:0xf")
        a(f"v_mov_b32_dpp {vr(X)}, {vr(F)} quad_perm:[0,0,0,0] row_mask:0xf bank_mask:0xf")
        a(f"v_mov_b32_dpp {vr(X + 1)}, {vr(F)} quad_perm:[2,2,2,2] row_mask:0xf bank_mask:0xf")
        a(f"v_mov_b32_dpp {vr(X + 2)}, {vr(F + 1)} quad_perm:[2,2,2,2] row_mask:0xf bank_mask:0xf")
        a(f"v_mov_b32_dpp {vr(X + 3)}, {vr(F + 1)} quad_perm:[0,0,0,0] row_mask:0xf bank_mask:0xf")
        a("s_waitcnt lgkmcnt(0)")
        self.gemv16(D, X, SEL, 4, A, 8)
        self.store_partial(D, MK, ADR)
        self.stamp(12)
        self.end()


if __name__ == "__main__":
    out = sys.argv[1]
    kw = {}
    for x in sys.argv[2:]:
        k, v = x.split("=")
        kw[k] = {"True": True, "False": False}.get(v, v)
    g = Gen(**kw)
    open(out, "w").write(g.build())
    print("written", out, "nops", g.nops)
```

```python
import sys
from asmlib import Asm

KN = "sequential_preLN__sliding_block_cached__geglu_ffn__decode_kernel"
HEADER = open("sequential_preLN__sliding_block_cached__geglu_ffn__decode.s.ref").read().split("; Override launch")[0]

WS_HT, WS_XT, WS_QP, WS_OP, WS_ML, WS_YP, WS_FP, WS_ST = 0x800, 0x400, 0x1000, 0x50000, 0x70000, 0x80000, 0x110000, 0x200000
FP_STRIDE = 6144
TAGC = 0x9E3779B9
L_Q, L_MAX, L_SUM, L_CNT, L_VCNT, L_MCNT, L_QF, L_PUB, L_DMA, L_HINT, L_YISS = 0, 256, 288, 320, 324, 328, 332, 336, 340, 344, 348
L_OP, L_RED, L_STAT, L_ACT, L_H, L_HN, L_W = 512, 4608, 8704, 8960, 9216, 11264, 13568
ROWP = 1040
GUP = 1088
L_G = L_W
L_U = L_G + 32 * GUP + 128
L_D = L_U + 32 * GUP + 128
LDS_BYTES = L_D + 32 * ROWP
SPIN = 1 << 16

sX, sK, sV, sWQ, sWO, sWG, sWU, sWD, sOUT, sWS = "s[4:5]", "s[6:7]", "s[8:9]", "s[10:11]", "s[12:13]", "s[16:17]", "s[18:19]", "s[20:21]", "s[22:23]", "s[26:27]"
sXCD, sH, sJ, sW, sT = "s28", "s29", "s30", "s31", "s32"
sT1, sT2, sT3 = "s33", "s34", "s35"
sSELA, sSELB, sHI = "s36", "s37", "s38"
sSPIN = "s39"
sA, sB, sC, sD = "s40", "s41", "s42", "s43"
sM0, sM1 = "s[44:45]", "s[46:47]"
sF = "s48"
sK1, sK2, sK3 = "s49", "s50", "s51"
sP = "s[52:53]"
sLOC = "s54"
ST0 = 64
FULL = "row_mask:0xf bank_mask:0xf"


def vr(a, n=1):
    return f"v{a}" if n == 1 else f"v[{a}:{a + n - 1}]"


class Gen:
    def __init__(self, diag=False, nt="nt", wnt="nt", prefetch=True, pad=0, lds=None, nvg=160, probe=None, stamps=None,
                 nk0=3, helper=True, hrow0=128, local=True, ackwait=True, nk1=8, optouch=True, window=True, exp="", wwin=15, hint=True, lag=3, fwin=7, downearly=True, b0=True, tight=True):
        self.a = Asm()
        self.diag, self.nt, self.wnt, self.prefetch = diag, nt, wnt, prefetch
        self.uid = 0
        self.pad, self.probe, self.stamps, self.sec = int(pad), probe, stamps, ""
        self.nk0, self.helper, self.hrow0, self.local, self.ackwait = int(nk0), helper, int(hrow0), local, ackwait
        self.nk1 = int(nk1)
        self.optouch, self.window, self.exp, self.wwin = optouch, window, exp, int(wwin)
        self.hint, self.lag, self.fwin = hint, int(lag), int(fwin)
        self.downearly, self.b0, self.tight = downearly, b0, tight
        self.lds = int(lds) if lds else LDS_BYTES
        self.nvg = int(nvg)

    def stamp(self, i):
        key = self.sec + str(i)
        if self.probe == key:
            self.a("s_memrealtime s[68:69]")
        if self.diag and (self.stamps is None or key in self.stamps):
            self.a(f"s_memrealtime s[{ST0 + 2 * i}:{ST0 + 2 * i + 1}]")

    def count(self, i):
        if self.diag and self.stamps is not None and ("n" + self.sec + str(i)) in self.stamps:
            self.a(f"s_add_u32 s{ST0 + 2 * i}, {sSPIN}, 1")

    def end(self):
        self.a("s_branch L_exit" if self.diag else "s_endpgm")

    def bf16r(self, d, x):
        self.a(f"v_cvt_pk_bf16_f32 {vr(d)}, 0, {vr(x)}")

    def unpack(self, d, s, n):
        for i in range(n):
            self.a(f"v_lshlrev_b32 {vr(d + 2 * i)}, 16, {vr(s + i)}\nv_and_b32 {vr(d + 2 * i + 1)}, {sHI}, {vr(s + i)}")

    def dppred(self, op, regs, mods):
        for mod in mods:
            for r in regs:
                self.a(f"{op}_dpp {vr(r)}, {vr(r)}, {vr(r)} {mod} {FULL}")

    def redrows(self, op, regs, tmp):
        a = self.a
        for sw in ("v_permlane16_swap_b32", "v_permlane32_swap_b32"):
            for i, r in enumerate(regs):
                a(f"v_mov_b32 {vr(tmp + i)}, {vr(r)}")
            for i, r in enumerate(regs):
                a(f"{sw} {vr(r)}, {vr(tmp + i)}")
            for i, r in enumerate(regs):
                a(f"{op} {vr(r)}, {vr(r)}, {vr(tmp + i)}")

    def red8x(self, op, regs, tmp):
        self.dppred(op, regs, ("quad_perm:[1,0,3,2]", "quad_perm:[2,3,0,1]", "row_half_mirror"))
        self.redrows(op, regs, tmp)

    def selectors(self, sel, t0, nm, bits=2):
        a = self.a
        a(f"v_and_b32 {vr(t0)}, 1, v1")
        a(f"v_cmp_eq_u32 vcc, 1, {vr(t0)}")
        a(f"v_mov_b32 {vr(t0 + 1)}, 0x0c0c0100\nv_mov_b32 {vr(t0 + 2)}, 0x01000c0c")
        a(f"v_cndmask_b32 {vr(t0 + 1)}, {vr(t0 + 1)}, {vr(t0 + 2)}, vcc")
        a(f"v_mov_b32 {vr(t0 + 2)}, 0x0c0c0302\nv_mov_b32 {vr(t0 + 3)}, 0x03020c0c")
        a(f"v_cndmask_b32 {vr(t0 + 2)}, {vr(t0 + 2)}, {vr(t0 + 3)}, vcc")
        a(f"v_bfe_u32 {vr(t0)}, v1, 1, {bits}")
        a(f"v_mov_b32 {vr(t0 + 3)}, 0x0c0c0c0c")
        for m in range(nm):
            a(f"v_cmp_eq_u32 vcc, {m}, {vr(t0)}")
            a(f"v_cndmask_b32 {vr(sel + 2 * m)}, {vr(t0 + 3)}, {vr(t0 + 1)}, vcc")
            a(f"v_cndmask_b32 {vr(sel + 2 * m + 1)}, {vr(t0 + 3)}, {vr(t0 + 2)}, vcc")

    def tag_consts(self):
        a = self.a
        a(f"s_add_u32 {sT}, {sT}, {TAGC}")
        a(f"s_lshr_b32 {sT1}, {sT}, 8\ns_lshr_b32 {sT2}, {sT}, 16\ns_lshr_b32 {sT3}, {sT}, 24")
        a(f"s_mov_b32 {sSELA}, 0x0c0c0400\ns_mov_b32 {sSELB}, 0x04000c0c")

    def tag4(self, d, mask):
        for i, s in enumerate((sT, sT1, sT2, sT3)):
            self.a(f"v_bfi_b32 {vr(d + i)}, {vr(mask)}, {vr(d + i)}, {s}")

    def chk(self, t, gs):
        a = self.a
        for n, g in enumerate(gs):
            a(f"v_perm_b32 {vr(t + 2 * n)}, {vr(g + 1)}, {vr(g)}, {sSELA}")
            a(f"v_perm_b32 {vr(t + 2 * n + 1)}, {vr(g + 3)}, {vr(g + 2)}, {sSELB}")
        for n, g in enumerate(gs):
            a(f"v_bitop3_b32 {vr(t + 2 * n)}, {vr(t + 2 * n)}, {vr(t + 2 * n + 1)}, {sT} bitop3:0x56")
        rest = [t + 2 * n for n in range(1, len(gs))]
        while rest:
            if len(rest) >= 2:
                a(f"v_or3_b32 {vr(t)}, {vr(t)}, {vr(rest[0])}, {vr(rest[1])}")
                rest = rest[2:]
            else:
                a(f"v_or_b32 {vr(t)}, {vr(t)}, {vr(rest[0])}")
                rest = []
        a(f"v_cmp_ne_u32 vcc, 0, {vr(t)}")

    def poll(self, loads, check, between=None):
        a = self.a
        self.uid += 1
        L = self.cur_poll = f"L_poll{self.uid}"
        a(f"s_mov_b32 {sSPIN}, 0")
        if between:
            loads()
            between()
            a(f"s_branch {L}w")
        a(f"{L}:")
        loads()
        a(f"s_add_u32 {sSPIN}, {sSPIN}, 1\ns_cmp_gt_u32 {sSPIN}, {SPIN}\ns_cbranch_scc1 L_bail")
        a(f"{L}w:\ns_waitcnt vmcnt(0)\n{L}c:")
        check()
        a(f"s_cbranch_vccnz {L}")

    def lds_wait(self, word, val, va, vt, tight=False):
        a = self.a
        self.uid += 1
        L = f"L_lw{self.uid}"
        a(f"v_mov_b32 {vr(va)}, {word}\ns_mov_b32 {sSPIN}, 0\n{L}:")
        a(f"ds_read_b32 {vr(vt)}, {vr(va)}\ns_add_u32 {sSPIN}, {sSPIN}, 1\ns_cmp_gt_u32 {sSPIN}, {SPIN * 16}\ns_cbranch_scc1 L_bail")
        a(f"s_waitcnt lgkmcnt(0)\nv_readfirstlane_b32 {sA}, {vr(vt)}\ns_cmp_ge_u32 {sA}, {val}\n" + (f"s_cbranch_scc0 {L}" if tight and self.tight else f"s_cbranch_scc1 {L}d\ns_sleep 1\ns_branch {L}\n{L}d:"))

    def lds_inc(self, word, va, vt):
        self.a(f"v_mov_b32 {vr(va)}, {word}\nv_mov_b32 {vr(vt)}, 1\ns_mov_b64 exec, 1\nds_add_u32 {vr(va)}, {vr(vt)}\ns_mov_b64 exec, -1")

    def tr_reduce4(self, v, rots):
        a = self.a
        a(f"v_permlane32_swap_b32 {vr(v)}, {vr(v + 1)}")
        a(f"v_permlane32_swap_b32 {vr(v + 2)}, {vr(v + 3)}")
        a(f"v_add_f32 {vr(v)}, {vr(v)}, {vr(v + 1)}")
        a(f"v_add_f32 {vr(v + 2)}, {vr(v + 2)}, {vr(v + 3)}")
        a(f"v_permlane16_swap_b32 {vr(v)}, {vr(v + 2)}")
        a(f"v_add_f32 {vr(v)}, {vr(v)}, {vr(v + 2)}")
        self.dppred("v_add_f32", [v], [f"row_ror:{r}" for r in rots])

    def ln_finish(self, t, mean, var):
        a = self.a
        self.bf16r(var, var)
        self.bf16r(t, mean)
        a(f"v_add_f32 {vr(var)}, 0x3727c5ac, {vr(var)}")
        self.bf16r(var, var)
        a(f"v_sqrt_f32 {vr(var)}, {vr(var)}")
        self.bf16r(t + 2, var)
        a(f"v_rcp_f32 {vr(t + 4)}, {vr(t + 2)}")

    def ln_apply2(self, F, t, P, tmp):
        a = self.a
        a(f"v_pk_add_f32 {vr(F, 2)}, {vr(F, 2)}, {vr(t, 2)} op_sel_hi:[1,0] neg_lo:[0,1] neg_hi:[0,1]")
        self.bf16r(F, F)
        self.bf16r(F + 1, F + 1)
        a(f"v_pk_mul_f32 {vr(tmp, 2)}, {vr(F, 2)}, {vr(t + 4, 2)} op_sel_hi:[1,0]")
        a(f"v_pk_fma_f32 {vr(F, 2)}, {vr(tmp, 2)}, {vr(t + 2, 2)}, {vr(F, 2)} op_sel_hi:[1,0,1] neg_lo:[1,0,0] neg_hi:[1,0,0]")
        a(f"v_pk_fma_f32 {vr(F, 2)}, {vr(F, 2)}, {vr(t + 4, 2)}, {vr(tmp, 2)} op_sel_hi:[1,0,1]")
        a(f"v_cvt_pk_bf16_f32 {vr(P)}, {vr(F)}, {vr(F + 1)}")

    def gemv16(self, D, X, SEL, B, A, steps):
        a = self.a
        for t in range(steps):
            for m in range(2):
                a(f"v_perm_b32 {vr(A + 2 * t + m)}, {vr(X + t // 2)}, {vr(X + t // 2)}, {vr(SEL + 2 * m + (t & 1))}")
            if t >= 1:
                u = t - 1
                a(f"v_mfma_f32_16x16x16_bf16 {vr(D, 4)}, {vr(A + 2 * u, 2)}, {vr(B + 2 * u, 2)}, {vr(D, 4) if u else 0}")
        u = steps - 1
        a(f"v_mfma_f32_16x16x16_bf16 {vr(D, 4)}, {vr(A + 2 * u, 2)}, {vr(B + 2 * u, 2)}, {vr(D, 4)}")

    def role(self, lw, lh, lf, ln):
        a = self.a
        a(f"s_and_b32 {sA}, {sH}, 3\ns_lshl_b32 {sF}, {sA}, 2\ns_add_u32 {sF}, {sF}, {sJ}")
        a(f"s_cmp_lt_u32 {sJ}, 4\ns_cbranch_scc1 {lw}")
        a(f"s_lshl_b32 {sA}, {sA}, 1\ns_and_b32 {sB}, {sJ}, 1\ns_add_u32 {sA}, {sA}, {sB}\ns_mov_b32 {sF}, {sA}")
        a(f"s_cmp_lt_u32 {sJ}, 6\ns_cbranch_scc1 {lh}")
        a(f"s_min_u32 {sB}, {sXCD}, 3\ns_mul_i32 {sF}, {sXCD}, 5\ns_add_u32 {sF}, {sF}, {sB}\ns_add_u32 {sF}, {sF}, {sA}")
        a(f"s_cmp_lt_u32 {sXCD}, 3\ns_cselect_b32 {sB}, 6, 5\ns_cmp_lt_u32 {sA}, {sB}\ns_cbranch_scc1 {lf}")
        a(f"s_branch {ln}")

    def build(self):
        a = self.a
        a(f"{KN}:")
        if self.diag or self.pad:
            a(f"s_memrealtime s[{ST0}:{ST0 + 1}]")
        a("s_load_dwordx16 s[4:19], s[0:1], 0\ns_load_dwordx8 s[20:27], s[0:1], 64")
        a("s_cmp_ge_u32 s2, 256\ns_cbranch_scc1 L_bail")
        if self.diag:
            for i in range(1, 16):
                a(f"s_mov_b32 s{ST0 + 2 * i}, 0")
        a(f"v_readfirstlane_b32 {sW}, v0\nv_and_b32 v1, 63, v0")
        a(f"s_and_b32 {sXCD}, s2, 7\ns_lshr_b32 {sJ}, s2, 3\ns_lshr_b32 {sH}, s2, 6\ns_lshl_b32 {sA}, {sXCD}, 2\ns_add_u32 {sH}, {sH}, {sA}")
        a(f"s_and_b32 {sJ}, {sJ}, 7\ns_lshr_b32 {sW}, {sW}, 6\ns_mov_b32 {sHI}, 0xffff0000")
        a(f"s_cmp_lg_u32 {sW}, 0\ns_cbranch_scc1 L_stream")
        for self.sec, part in (("c", self.comm), ("s", self.stream), ("w", self.role_wo), ("f", self.role_ffn)):
            part()
        a("L_none:")
        self.end()
        if self.diag:
            a("L_exit:")
            a("s_mov_b64 exec, -1\ns_waitcnt vmcnt(0) lgkmcnt(0)")
            a(f"s_memrealtime s[{ST0 + 30}:{ST0 + 31}]\ns_waitcnt lgkmcnt(0)")
            a(f"s_mul_i32 {sA}, s2, 9\ns_add_u32 {sA}, {sA}, {sW}\ns_lshl_b32 {sA}, {sA}, 6\ns_add_u32 {sA}, {sA}, {WS_ST}")
            for i in range(16):
                a(f"v_mov_b32 v{4 + i}, s{ST0 + 2 * i}")
            a(f"v_mov_b32 v2, {sA}\ns_mov_b64 exec, 1")
            for i in range(4):
                a(f"global_store_dwordx4 v2, v[{4 + 4 * i}:{7 + 4 * i}], {sWS} offset:{16 * i}")
        a("L_bail:\ns_endpgm")
        a("L_codeend:")
        self.nops = a.fix_hazards()
        txt = HEADER
        txt += f"; @launch grid=(256,1,1) block=(576,1,1) lds={self.lds}\n"
        txt += f'.amdgcn_target "amdgcn-amd-amdhsa--gfx950"\n.text\n.globl {KN}\n.p2align 8\n.type {KN},@function\n'
        txt += a.text() + "\n"
        if self.prefetch:
            txt += ".fill 256, 4, 0xbf810000\n"
        txt += f""".section .rodata,"a"
.p2align 6
.amdhsa_kernel {KN}
  .amdhsa_next_free_vgpr {self.nvg}
  .amdhsa_next_free_sgpr 102
  .amdhsa_accum_offset {self.nvg}
  .amdhsa_group_segment_fixed_size 0
  .amdhsa_kernarg_size 96
  .amdhsa_user_sgpr_count 2
  .amdhsa_user_sgpr_kernarg_segment_ptr 1
  .amdhsa_system_sgpr_workgroup_id_x 1
.end_amdhsa_kernel
"""
        return txt

    def comm(self):
        a = self.a
        wnt = self.wnt
        G, BB = 2, 3
        XS, XO, W, F, SEL, ST, X, A, D, MK = 8, 16, 24, 88, 112, 120, 16, 88, 96, 100
        a("s_setprio 3")
        a(f"v_lshrrev_b32 v{G}, 4, v1\nv_bfe_u32 v{BB}, v1, 3, 1")
        a(f"v_and_b32 v5, 7, v1\nv_lshl_add_u32 v4, v{G}, 3, v5\nv_lshlrev_b32 v4, 5, v4\nv_lshl_add_u32 v4, v{BB}, 10, v4")
        a(f"s_lshl_b32 {sA}, {sJ}, 7\nv_lshl_add_u32 v5, v5, 2, {sA}\nv_lshl_add_u32 v5, v{G}, 5, v5\nv_lshl_add_u32 v5, v{BB}, 10, v5")
        a(f"s_lshl_b32 {sA}, {sJ}, 19\ns_lshl_b32 {sB}, {sH}, 8\ns_add_u32 {sA}, {sA}, {sB}\ns_movk_i32 {sB}, 0x2000")
        a(f"v_and_b32 v6, 15, v1\nv_lshl_add_u32 v6, v6, 4, {sA}\nv_lshl_add_u32 v6, v{G}, 17, v6")
        a("s_waitcnt lgkmcnt(0)")
        self.stamp(1)
        a(f"global_load_dwordx4 {vr(XS, 4)}, v4, {sX}\nglobal_load_dwordx4 {vr(XS + 4, 4)}, v4, {sX} offset:16")
        a(f"global_load_dword {vr(XO)}, v5, {sX}")
        for t in range(16):
            a(f"global_load_dwordx4 {vr(W + 4 * t, 4)}, v6, {sWQ} {wnt}")
            if t < 15:
                a(f"v_add_u32 v6, {sB}, v6")
        if self.b0:
            a("s_barrier")
        a(f"s_load_dword {sT}, {sWS}, 0")
        a(f"v_mov_b32 v6, {L_CNT}\nv_mov_b32 v104, 0\nv_mov_b32 v105, 0\nv_mov_b32 v106, 0\nv_mov_b32 v107, 0")
        a("ds_write_b128 v6, v[104:107]\nds_write_b128 v6, v[104:107] offset:16")
        self.selectors(SEL, 108, 4)
        a("s_waitcnt vmcnt(17)")
        self.unpack(F, XS, 8)
        self.stamp(2)
        S = 7
        a(f"v_pk_add_f32 v[104:105], {vr(F, 2)}, {vr(F + 2, 2)}\nv_pk_add_f32 v[106:107], {vr(F + 4, 2)}, {vr(F + 6, 2)}")
        for i in range(2):
            a(f"v_pk_add_f32 v[104:105], v[104:105], {vr(F + 8 + 4 * i, 2)}\nv_pk_add_f32 v[106:107], v[106:107], {vr(F + 10 + 4 * i, 2)}")
        a(f"v_pk_add_f32 v[104:105], v[104:105], v[106:107]\nv_add_f32 {vr(S)}, v104, v105")
        self.red8x("v_add_f32", [S], 104)
        a(f"v_mul_f32 {vr(S)}, 0x3b000000, {vr(S)}")
        for i in range(16):
            a(f"v_sub_f32 {vr(F + i)}, {vr(F + i)}, {vr(S)}")
        a(f"v_pk_mul_f32 v[104:105], {vr(F, 2)}, {vr(F, 2)}\nv_pk_mul_f32 v[106:107], {vr(F + 2, 2)}, {vr(F + 2, 2)}")
        for i in range(1, 4):
            a(f"v_pk_fma_f32 v[104:105], {vr(F + 4 * i, 2)}, {vr(F + 4 * i, 2)}, v[104:105]")
            a(f"v_pk_fma_f32 v[106:107], {vr(F + 4 * i + 2, 2)}, {vr(F + 4 * i + 2, 2)}, v[106:107]")
        a("v_pk_add_f32 v[104:105], v[104:105], v[106:107]\nv_add_f32 v108, v104, v105")
        self.red8x("v_add_f32", [108], 104)
        a("v_mul_f32 v108, 0x3b000000, v108")
        self.ln_finish(ST, S, 108)
        a("s_waitcnt vmcnt(16)")
        self.unpack(F, XO, 1)
        self.ln_apply2(F, ST, 8, 10)
        a("s_waitcnt lgkmcnt(0)")
        self.tag_consts()
        for u in range(8):
            a(f"v_mov_b32_dpp {vr(X + u)}, v8 row_newbcast:{u} row_mask:0xf bank_mask:0x3")
        for u in range(8):
            a(f"v_mov_b32_dpp {vr(X + u)}, v8 row_newbcast:{8 + u} row_mask:0xf bank_mask:0xc")
        a(f"v_mov_b32 v{MK}, 0xffffff00")

        def abuild(t):
            for m in range(4):
                a(f"v_perm_b32 {vr(A + 4 * (t & 1) + m)}, {vr(X + t // 2)}, {vr(X + t // 2)}, {vr(SEL + 2 * m + (t & 1))}")
        abuild(0)
        for t in range(16):
            if t < 15:
                abuild(t + 1)
            a(f"s_waitcnt vmcnt({15 - t})")
            a(f"v_mfma_f32_16x16x32_bf16 {vr(D, 4)}, {vr(A + 4 * (t & 1), 4)}, {vr(W + 4 * t, 4)}, {vr(D, 4) if t else 0}")
        a(f"s_lshl_b32 {sA}, {sH}, 13\ns_lshl_b32 {sB}, {sJ}, 9\ns_add_u32 {sA}, {sA}, {sB}\ns_add_u32 {sA}, {sA}, {WS_QP}")
        a(f"v_and_b32 v4, 15, v1\nv_lshl_add_u32 v4, v4, 5, {sA}\nv_bfe_u32 v5, v1, 4, 1\nv_lshl_add_u32 v4, v5, 4, v4")
        a("v_lshrrev_b32 v5, 5, v1\nv_lshl_add_u32 v4, v5, 12, v4")
        a(f"s_getreg_b32 {sC}, hwreg(HW_REG_XCC_ID, 0, 4)\ns_and_b32 {sD}, {sT}, 0xffffff00\ns_or_b32 {sC}, {sC}, {sD}")
        a(f"s_lshl_b32 {sA}, {sXCD}, 7\ns_add_u32 {sA}, {sA}, {WS_XT}\ns_lshr_b32 {sB}, s2, 3\ns_lshl_b32 {sB}, {sB}, 2\ns_add_u32 {sB}, {sB}, {sA}")
        a(f"v_mov_b32 v6, {sB}\nv_mov_b32 v7, {sC}")
        for i in range(4):
            a(f"v_add_u32 {vr(D + i)}, 0x80, {vr(D + i)}")
        self.tag4(D, MK)
        a(f"global_store_dwordx4 v4, {vr(D, 4)}, {sWS} sc1")
        a(f"s_mov_b64 exec, 1\nglobal_store_dword v6, v7, {sWS} sc1\ns_mov_b64 exec, -1")
        self.stamp(3)
        a(f"v_and_b32 v5, 31, v1\nv_lshl_add_u32 v5, v5, 2, {sA}")
        a(f"s_lshl_b32 {sA}, {sH}, 13\ns_lshr_b32 {sB}, {sJ}, 2\ns_lshl_b32 {sB}, {sB}, 12\ns_add_u32 {sA}, {sA}, {sB}\ns_add_u32 {sA}, {sA}, {WS_QP}")
        a(f"v_lshl_add_u32 v4, v1, 4, {sA}")
        a("s_barrier\ns_barrier")
        self.stamp(4)
        Gq, TT = 8, 24

        def loads():
            for n in range(4):
                a(f"global_load_dwordx4 {vr(Gq + 4 * n, 4)}, v4, {sWS} offset:{1024 * n} sc1")
            a(f"global_load_dword v32, v5, {sWS} sc1")

        def between():
            if self.optouch:
                a(f"s_lshl_b32 {sA}, {sH}, 12\ns_lshl_b32 {sB}, {sJ}, 9\ns_add_u32 {sA}, {sA}, {sB}\ns_add_u32 {sA}, {sA}, {WS_OP}")
                a(f"v_and_b32 v33, 7, v1\nv_lshl_add_u32 v33, v33, 6, {sA}\nglobal_load_dword v34, v33, {sWS} sc1")
            a("s_barrier")
        self.poll(loads, lambda: self.chk(TT, [Gq + 4 * n for n in range(4)]), between=between)
        self.stamp(5)
        a(f"v_cmp_ne_u32 vcc, {sC}, v32")
        for i in range(16):
            a(f"v_and_b32 {vr(Gq + i)}, {vr(MK)}, {vr(Gq + i)}")
        a(f"s_cmp_eq_u64 vcc, 0\ns_cselect_b32 {sA}, {3 if self.local else 1}, 1")
        for i in range(4):
            a(f"v_add_f32 {vr(Gq + i)}, {vr(Gq + i)}, {vr(Gq + 4 + i)}\nv_add_f32 {vr(Gq + 8 + i)}, {vr(Gq + 8 + i)}, {vr(Gq + 12 + i)}")
        for i in range(4):
            a(f"v_add_f32 {vr(Gq + i)}, {vr(Gq + i)}, {vr(Gq + 8 + i)}")
        a(f"v_permlane32_swap_b32 {vr(Gq)}, {vr(Gq + 2)}\nv_permlane32_swap_b32 {vr(Gq + 1)}, {vr(Gq + 3)}")
        a(f"v_add_f32 {vr(Gq)}, {vr(Gq)}, {vr(Gq + 2)}\nv_add_f32 {vr(Gq + 1)}, {vr(Gq + 1)}, {vr(Gq + 3)}")
        a(f"v_cvt_pk_bf16_f32 {vr(Gq)}, {vr(Gq)}, {vr(Gq + 1)}")
        a("v_and_b32 v4, 31, v1\nv_lshlrev_b32 v4, 3, v4\nv_lshrrev_b32 v5, 5, v1\nv_lshl_add_u32 v4, v5, 2, v4")
        a(f"v_mov_b32 v6, {L_QF}\nv_mov_b32 v7, {sA}")
        a(f"ds_write_b32 v4, {vr(Gq)} offset:{L_Q}\nds_write_b32 v6, v7")
        a("s_setprio 0")
        self.stamp(6)
        self.role("L_cwo", "L_chelp", "L_cffn", "L_cmon")

        def dma_loop(name, base, n0, n1, mstep, two=None, win=None):
            a(f"s_mov_b32 {sC}, {n0}\n{name}:")
            if win is not None:
                a(f"s_waitcnt vmcnt({win})")
            a(f"s_mov_b32 m0, {sD}\ns_add_u32 {sC}, {sC}, 1")
            a(f"global_load_lds_dwordx4 v4, {base} {wnt}")
            if two:
                a(f"s_add_u32 m0, {sD}, {L_U - L_G}\ns_add_u32 {sD}, {sD}, {mstep}")
                a(f"global_load_lds_dwordx4 v4, {two} {wnt}")
            else:
                a(f"s_add_u32 {sD}, {sD}, {mstep}")
            a(f"v_add_u32 v4, {sB}, v4\ns_cmp_lt_u32 {sC}, {n1}\ns_cbranch_scc1 {name}")

        a("L_cwo:")
        a(f"s_lshl_b32 {sA}, {sXCD}, 19\ns_lshl_b32 {sB}, {sF}, 6\ns_add_u32 {sB}, {sA}, {sB}")
        a(f"v_lshrrev_b32 v4, 2, v1\nv_lshlrev_b32 v4, 10, v4\nv_and_b32 v5, 3, v1\nv_lshl_add_u32 v4, v5, 4, v4\nv_add_u32 v8, {sB}, v4")
        for n in range(1, 32):
            a(f"v_add_u32 v{8 + n}, {n * 0x4000}, v8")
        a(f"s_lshl_b32 {sB}, {sF}, 14\ns_add_u32 {sA}, {sA}, {sB}\ns_add_u32 {sA}, {sA}, 4096\nv_lshl_add_u32 v4, v1, 6, {sA}\nv_add_u32 v5, 0x2000, v4")
        self.lds_wait(L_VCNT, 8, 6, 7)
        self.stamp(7)
        if "nowo" not in self.exp:
            for i in range(4):
                a(f"global_load_dword v{40 + i}, v{4 + i // 2}, {sWO} offset:{-4096 if i % 2 == 0 else 0}")
            for k, n in enumerate(list(range(16, 32)) + list(range(16))):
                a(f"s_mov_b32 m0, {L_W + n * GUP}")
                a(f"s_waitcnt vmcnt({self.wwin})" if k >= 8 else "s_nop 0")
                a(f"global_load_lds_dwordx4 v{8 + n}, {sWO} {wnt}")
        self.stamp(8)
        a(f"v_mov_b32 v6, {L_DMA}\nv_mov_b32 v7, 1\ns_waitcnt vmcnt(0)\nds_write_b32 v6, v7")
        self.stamp(9)
        self.end()

        a("L_chelp:")
        if self.helper:
            self.helper_code()
        self.end()

        a("L_cffn:")
        a("v_lshrrev_b32 v4, 2, v1\nv_mul_u32_u24 v4, 2752, v4\nv_and_b32 v5, 3, v1\nv_lshl_add_u32 v4, v5, 4, v4")
        a(f"s_lshl_b32 {sA}, {sF}, 6\nv_add_u32 v8, {sA}, v4")
        for n in range(1, 32):
            a(f"v_add_u32 v{8 + n}, {n * 16 * 2752}, v8")
        self.lds_wait(L_VCNT, 8, 6, 7)
        self.stamp(7)
        if "noffn" not in self.exp:
            for k in range(64):
                a(f"s_mov_b32 m0, {(L_U if k & 1 else L_G) + (k >> 1) * GUP}")
                a(f"s_waitcnt vmcnt({self.fwin})" if k > self.fwin else "s_nop 0")
                a(f"global_load_lds_dwordx4 v{8 + (k >> 1)}, {sWU if k & 1 else sWG} {wnt}")
        a(f"s_lshl_b32 {sA}, {sF}, 15\ns_add_u32 {sA}, {sA}, 4096\nv_lshl_add_u32 v8, v1, 4, {sA}")
        for n in range(1, 4):
            a(f"v_add_u32 v{8 + n}, {n * 8192}, v8")

        def down(win):
            for n in range(32):
                off = (n & 7) * 1024 - 4096
                a(f"s_mov_b32 m0, {L_D + n * ROWP - off}\n" + (f"s_waitcnt vmcnt({win})" if win else "s_nop 0"))
                a(f"global_load_lds_dwordx4 v{8 + (n >> 3)}, {sWD} offset:{off} {wnt}")
        if self.downearly and "noffn" not in self.exp:
            down(24)
        a(f"s_lshl_b32 {sA}, {sXCD}, 7\ns_add_u32 {sA}, {sA}, {WS_HT}\nv_and_b32 v4, 7, v1\nv_lshl_add_u32 v4, v4, 2, {sA}")
        a(f"v_mov_b32 v6, {L_DMA}\nv_mov_b32 v7, 1\ns_waitcnt vmcnt(0)\nds_write_b32 v6, v7")
        self.stamp(8)
        if self.hint:
            self.poll(lambda: a(f"global_load_dword v5, v4, {sWS} sc1"), lambda: a(f"v_cmp_ne_u32 vcc, {sT}, v5"))
        a(f"ds_write_b32 v6, v7 offset:{L_HINT - L_DMA}")
        self.stamp(10)
        if not self.downearly:
            self.lds_wait(L_YISS, 8, 12, 13)
            if "noffn" not in self.exp:
                down(0)
            a("s_barrier\ns_waitcnt vmcnt(0)")
            self.stamp(9)
            a("s_barrier")
        self.end()

        a("L_cmon:")
        if self.hint:
            a(f"s_cmp_eq_u32 {sA}, 6\ns_cbranch_scc1 L_ctouch\ns_cmp_lg_u32 {sA}, 7\ns_cbranch_scc1 L_none")
            a(f"s_lshl_b32 {sA}, {sXCD}, 9\ns_add_u32 {sA}, {sA}, {WS_ML}\nv_and_b32 v4, 31, v1\nv_lshl_add_u32 v4, v4, 4, {sA}")
            a(f"s_lshl_b32 {sA}, {sXCD}, 2\ns_add_u32 {sA}, {sA}, {WS_HT}\nv_lshl_add_u32 v5, v1, 7, {sA}\nv_mov_b32 v6, {sT}")
            self.lds_wait(L_PUB, 1, 12, 13)
            self.poll(lambda: a(f"global_load_dwordx4 v[8:11], v4, {sWS} sc1"), lambda: self.chk(12, [8]))
            for i in range(self.lag):
                a(f"global_load_dwordx4 v[8:11], v4, {sWS} sc1\ns_waitcnt vmcnt(0)")
            a(f"s_mov_b64 exec, 0xff\nglobal_store_dword v5, v6, {sWS} sc1")
            self.stamp(8)
            self.end()
            a("L_ctouch:")
            a(f"s_lshl_b32 {sA}, {sXCD}, 7\ns_add_u32 {sA}, {sA}, {WS_HT}\nv_and_b32 v4, 7, v1\nv_lshl_add_u32 v4, v4, 2, {sA}")
            a(f"v_and_b32 v5, 31, v1\nv_lshlrev_b32 v5, 6, v5\nv_lshrrev_b32 v6, 5, v1\nv_lshl_add_u32 v5, v6, 14, v5\nv_add_u32 v5, {WS_YP}, v5")
            self.lds_wait(L_PUB, 1, 12, 13)
            a(f"s_mov_b32 {sC}, 0\ns_mov_b32 {sSPIN}, 0\nL_ct0:")
            a(f"global_load_dword v8, v4, {sWS} sc1\ns_add_u32 {sSPIN}, {sSPIN}, 1\ns_cmp_gt_u32 {sSPIN}, {SPIN}\ns_cbranch_scc1 L_bail")
            a(f"s_waitcnt vmcnt(0)\nv_cmp_eq_u32 vcc, {sT}, v8\ns_and_b32 {sA}, vcc_lo, 0xff\ns_andn2_b32 {sB}, {sA}, {sC}\ns_mov_b32 {sC}, {sA}")
            a(f"L_ct1:\ns_cmp_eq_u32 {sB}, 0\ns_cbranch_scc1 L_ct2")
            a(f"s_ff1_i32_b32 {sD}, {sB}\ns_bitset0_b32 {sB}, {sD}\ns_lshl_b32 {sD}, {sD}, 11\nv_add_u32 v6, {sD}, v5\nglobal_load_dword v9, v6, {sWS} sc1\ns_branch L_ct1")
            a(f"L_ct2:\ns_cmp_lg_u32 {sC}, 0xff\ns_cbranch_scc1 L_ct0")
        self.end()

    def helper_code(self):
        a = self.a
        r0 = self.hrow0
        rows = (512 - r0) // 8
        a(f"s_lshl_b32 {sB}, {sXCD}, 19\ns_lshl_b32 {sC}, {sF}, 15\ns_add_u32 {sB}, {sB}, {sC}\ns_add_u32 {sB}, {sB}, 0x40000")
        a(f"v_lshl_add_u32 v4, v1, 6, {sB}\ns_movk_i32 {sD}, 4096")
        a(f"s_min_u32 {sB}, {sXCD}, 3\ns_mul_i32 {sC}, {sXCD}, 5\ns_add_u32 {sC}, {sC}, {sB}")
        a(f"s_mul_i32 {sB}, {sF}, {rows}\ns_add_u32 {sB}, {sB}, {r0}\ns_mul_i32 {sB}, {sB}, 2752\ns_lshl_b32 {sA}, {sC}, 6\ns_add_u32 {sB}, {sB}, {sA}")
        a("v_lshrrev_b32 v8, 3, v1\nv_mul_u32_u24 v8, 2752, v8\nv_and_b32 v5, 7, v1\nv_min_u32 v5, 5, v5\nv_lshl_add_u32 v8, v5, 6, v8")
        a(f"v_add_u32 v8, {sB}, v8")
        for i in range(1, rows // 8):
            a(f"v_add_u32 v{8 + i}, {i * 8 * 2752}, v8\nv_min_u32 v{8 + i}, {512 * 2752 - 4}, v{8 + i}")
        a(f"s_lshl_b32 {sC}, {sC}, 15\ns_mul_i32 {sA}, {sF}, {6 * 32768 // 8}\ns_add_u32 {sC}, {sC}, {sA}\nv_lshl_add_u32 v20, v1, 6, {sC}")
        for i in range(5, -1, -1):
            a(f"v_add_u32 v{20 + i}, {i * 4096}, v20\nv_min_u32 v{20 + i}, {1376 * 1024 - 4}, v{20 + i}")
        self.lds_wait(L_VCNT, 8, 6, 7)
        for i in range(8):
            a(f"global_load_dword v{48 + i}, v4, {sWO}\nv_add_u32 v4, {sD}, v4")
        if "noffn" in self.exp:
            return
        for i in range(rows // 8):
            a(f"s_waitcnt vmcnt(7)\nglobal_load_dword v{56 + 2 * i}, v{8 + i}, {sWG}\ns_waitcnt vmcnt(7)\nglobal_load_dword v{57 + 2 * i}, v{8 + i}, {sWU}")
        for i in range(6):
            a(f"s_waitcnt vmcnt(7)\nglobal_load_dword v{40 + i}, v{20 + i}, {sWD}")

    def stream(self):
        a = self.a
        nt = self.nt
        K, V, Q, P, T, SEL, D = 4, 36, 68, 72, 80, 88, 96
        MK, ADR, MREG, FAC = 100, 101, 102, 104
        a("L_stream:")
        if self.prefetch:
            a(f"s_cmp_lg_u32 {sW}, 1\ns_cbranch_scc1 L_nopf")
            a(f"s_getpc_b64 {sP}\nL_pc:\ns_sub_u32 s52, s52, L_pc-{KN}\ns_subb_u32 s53, s53, 0")
            a(f"s_lshr_b32 {sA}, s2, 3\ns_min_u32 {sA}, {sA}, (L_codeend-{KN})/1024\ns_lshl_b32 {sA}, {sA}, 10")
            a(f"v_lshl_add_u32 v3, v1, 4, {sA}\nglobal_load_dwordx4 {vr(124, 4)}, v3, {sP}")
            a("L_nopf:")
        a(f"s_lshr_b32 {sA}, {sJ}, 2\ns_lshl_b32 {sA}, {sA}, 25\ns_lshl_b32 {sB}, {sH}, 20\ns_add_u32 {sA}, {sA}, {sB}")
        a(f"s_and_b32 {sB}, {sJ}, 3\ns_lshl_b32 {sB}, {sB}, 16\ns_add_u32 {sA}, {sA}, {sB}\ns_lshl_b32 {sB}, {sW}, 13\ns_add_u32 {sA}, {sA}, {sB}")
        a(f"s_add_u32 {sA}, {sA}, {0xC0000 + 4096 - 8192}\nv_lshl_add_u32 v2, v1, 4, {sA}")
        a("s_waitcnt lgkmcnt(0)")
        if self.b0:
            a("s_barrier")
        self.stamp(1)
        for t in range(8):
            if t == self.nk0:
                a("s_barrier")
            if t == self.nk1:
                a("s_barrier\ns_barrier")
            a(f"global_load_dwordx4 {vr(K + 4 * t, 4)}, v2, {sK} offset:{1024 * t - 4096} {nt}")
        self.stamp(2)
        if self.nk1 == 8:
            a("s_barrier\ns_barrier")
        for t in range(8):
            a(f"global_load_dwordx4 {vr(V + 4 * t, 4)}, v2, {sV} offset:{1024 * t - 4096} {nt}")
        self.lds_inc(L_VCNT, T, T + 1)
        self.stamp(3)
        a(f"s_load_dword {sT}, {sWS}, 0")
        self.sw = sW if not self.diag else "s56"
        sw = self.sw
        a(f"s_sub_u32 {sw}, {sW}, 1")
        self.selectors(SEL, T, 4, bits=3)
        a("v_and_b32 v3, 15, v1\nv_lshlrev_b32 v3, 4, v3")
        a(f"s_mov_b32 {sK1}, 0x3db504f3\ns_mov_b32 {sK2}, 0x3fb8aa3b")
        a(f"v_bfe_u32 {vr(ADR)}, v1, 4, 1\nv_lshlrev_b32 {vr(ADR)}, 6, {vr(ADR)}\nv_lshl_add_u32 {vr(ADR)}, v3, 3, {vr(ADR)}")
        a(f"s_lshl_b32 {sA}, {sH}, 12\ns_lshr_b32 {sB}, {sJ}, 2\ns_lshl_b32 {sB}, {sB}, 11\ns_add_u32 {sA}, {sA}, {sB}")
        a(f"s_and_b32 {sB}, {sJ}, 3\ns_lshl_b32 {sB}, {sB}, 4\ns_add_u32 {sA}, {sA}, {sB}\ns_add_u32 {sA}, {sA}, {WS_OP}\nv_add_u32 {vr(ADR)}, {sA}, {vr(ADR)}")
        a(f"s_lshl_b32 {sA}, {sH}, 7\ns_lshl_b32 {sB}, {sJ}, 4\ns_add_u32 {sA}, {sA}, {sB}\ns_add_u32 {sA}, {sA}, {WS_ML}\nv_mov_b32 {vr(T)}, {sA}")
        a(f"v_cmp_lt_u32 {sM0}, 31, v1\nv_mov_b32 {vr(MK)}, 0xffffff00\nv_cndmask_b32 {vr(ADR)}, {vr(ADR)}, {vr(T)}, {sM0}")
        for t in range(8):
            a(f"v_mov_b32 {vr(P + t)}, 0")
        self.lds_wait(L_QF, 1, T, T + 1)
        self.stamp(4)
        a(f"ds_read_b128 {vr(Q, 4)}, v3 offset:{L_Q}")
        a(f"s_mov_b32 {sLOC}, {sA}")
        self.tag_consts()
        a("s_waitcnt vmcnt(8) lgkmcnt(0)")
        for i in range(4):
            for t in range(8):
                a(f"v_dot2c_f32_bf16 {vr(P + t)}, {vr(K + 4 * t + i)}, {vr(Q + i)}")
        for u in range(4):
            a(f"v_add_f32_dpp {vr(P + u)}, {vr(P + u)}, {vr(P + u)} row_ror:8 row_mask:0xf bank_mask:0x3")
        for u in range(4):
            a(f"v_add_f32_dpp {vr(P + u)}, {vr(P + u + 4)}, {vr(P + u + 4)} row_ror:8 row_mask:0xf bank_mask:0xc")
        for u in range(2):
            a(f"v_add_f32_dpp {vr(P + u)}, {vr(P + u)}, {vr(P + u)} row_shl:4 row_mask:0xf bank_mask:0x5")
        for u in range(2):
            a(f"v_add_f32_dpp {vr(P + u)}, {vr(P + u + 2)}, {vr(P + u + 2)} row_shr:4 row_mask:0xf bank_mask:0xa")
        self.dppred("v_add_f32", [P, P + 1], ("quad_perm:[1,0,3,2]", "quad_perm:[2,3,0,1]"))
        self.bf16r(P, P)
        self.bf16r(P + 1, P + 1)
        a(f"v_mul_f32 {vr(P)}, {sK1}, {vr(P)}\nv_mul_f32 {vr(P + 1)}, {sK1}, {vr(P + 1)}")
        self.bf16r(P, P)
        self.bf16r(P + 1, P + 1)
        a(f"v_max_f32 {vr(MREG)}, {vr(P)}, {vr(P + 1)}")
        self.dppred("v_max_f32", [MREG], ("row_ror:4", "row_ror:8"))
        self.redrows("v_max_f32", [MREG], T + 1)
        a(f"s_lshl_b32 {sA}, {sw}, 2\nv_mov_b32 {vr(T + 7)}, {sA}\nds_write_b32 {vr(T + 7)}, {vr(MREG)} offset:{L_MAX}")
        self.lds_inc(L_MCNT, T, T + 1)
        self.stamp(5)
        a(f"v_mul_f32 {vr(T)}, {sK2}, {vr(MREG)}")
        a(f"v_fma_f32 {vr(P)}, {vr(P)}, {sK2}, -{vr(T)}\nv_fma_f32 {vr(P + 1)}, {vr(P + 1)}, {sK2}, -{vr(T)}")
        a(f"v_exp_f32 {vr(P)}, {vr(P)}\nv_exp_f32 {vr(P + 1)}, {vr(P + 1)}")
        a(f"v_cvt_pk_bf16_f32 {vr(T)}, {vr(P)}, {vr(P + 1)}\nv_add_f32 {vr(P)}, {vr(P)}, {vr(P + 1)}")
        for u in range(4):
            a(f"v_mov_b32_dpp {vr(Q + u)}, {vr(T)} row_newbcast:{4 * u} {FULL}")
        self.dppred("v_add_f32", [P], ("row_ror:4", "row_ror:8"))
        self.redrows("v_add_f32", [P], P + 1)
        for t in range(8):
            for m in range(4):
                a(f"v_perm_b32 {vr(K + 4 * t + m)}, {vr(Q + t // 2)}, {vr(Q + t // 2)}, {vr(SEL + 2 * m + (t & 1))}")
        self.lds_wait(L_MCNT, 8, T, T + 1)
        a(f"v_mov_b32 {vr(T + 2)}, 0")
        a(f"ds_read_b128 {vr(Q, 4)}, {vr(T + 2)} offset:{L_MAX}\nds_read_b128 {vr(P + 4, 4)}, {vr(T + 2)} offset:{L_MAX + 16}")
        a(f"s_lshl_b32 {sA}, {sw}, 9\nv_lshl_add_u32 v3, v1, 4, {sA}\nv_mov_b32 {vr(T)}, {L_CNT}\nv_mov_b32 {vr(T + 1)}, 1")
        a(f"v_and_b32 {vr(T + 3)}, 31, v1\nv_lshlrev_b32 {vr(T + 3)}, 4, {vr(T + 3)}\nv_lshrrev_b32 {vr(T + 4)}, 5, v1\nv_lshl_add_u32 {vr(T + 3)}, {vr(T + 4)}, 11, {vr(T + 3)}")
        a("s_waitcnt lgkmcnt(0)")
        a(f"v_max3_f32 {vr(Q)}, {vr(Q)}, {vr(Q + 1)}, {vr(Q + 2)}\nv_max3_f32 {vr(Q + 3)}, {vr(Q + 3)}, {vr(P + 4)}, {vr(P + 5)}")
        a(f"v_max3_f32 {vr(Q)}, {vr(Q)}, {vr(P + 6)}, {vr(P + 7)}\nv_max_f32 {vr(Q)}, {vr(Q)}, {vr(Q + 3)}")
        a(f"v_sub_f32 {vr(FAC)}, {vr(MREG)}, {vr(Q)}\nv_mul_f32 {vr(FAC)}, {sK2}, {vr(FAC)}\nv_exp_f32 {vr(FAC)}, {vr(FAC)}\nv_mov_b32 {vr(MREG)}, {vr(Q)}")
        a(f"v_mul_f32 {vr(P)}, {vr(P)}, {vr(FAC)}\nv_mov_b32 {vr(FAC + 1)}, {vr(FAC)}")
        a(f"ds_write_b32 {vr(T + 7)}, {vr(P)} offset:{L_SUM}")
        self.stamp(6)
        for t in range(8):
            a(f"s_waitcnt vmcnt({7 - t})")
            a(f"v_mfma_f32_16x16x32_bf16 {vr(D, 4)}, {vr(K + 4 * t, 4)}, {vr(V + 4 * t, 4)}, {vr(D, 4) if t else 0}")
        self.stamp(7)
        a("s_mov_b32 exec_hi, 0")
        a(f"v_pk_mul_f32 {vr(D, 2)}, {vr(D, 2)}, {vr(FAC, 2)}\nv_pk_mul_f32 {vr(D + 2, 2)}, {vr(D + 2, 2)}, {vr(FAC, 2)}")
        a(f"ds_write_b128 v3, {vr(D, 4)} offset:{L_OP}")
        a("s_mov_b32 exec_lo, 1")
        a(f"ds_add_rtn_u32 {vr(T + 5)}, {vr(T)}, {vr(T + 1)}")
        a("s_waitcnt lgkmcnt(0)")
        a(f"v_readfirstlane_b32 {sA}, {vr(T + 5)}\ns_mov_b64 exec, -1")
        a(f"s_cmp_lg_u32 {sA}, 7\ns_cbranch_scc1 L_role")
        for n in range(4):
            a(f"ds_read_b128 {vr(K + 4 * n, 4)}, {vr(T + 3)} offset:{L_OP + 512 * n}")
        a(f"ds_read_b128 {vr(K + 16, 4)}, {vr(T + 2)} offset:{L_SUM}\nds_read_b128 {vr(K + 20, 4)}, {vr(T + 2)} offset:{L_SUM + 16}")
        a(f"s_cmp_eq_u32 {sLOC}, 3")
        a("s_waitcnt lgkmcnt(0)")
        for i in (0, 2):
            a(f"v_pk_add_f32 {vr(K + i, 2)}, {vr(K + i, 2)}, {vr(K + 4 + i, 2)}\nv_pk_add_f32 {vr(K + 8 + i, 2)}, {vr(K + 8 + i, 2)}, {vr(K + 12 + i, 2)}")
        a(f"v_pk_add_f32 {vr(K + 16, 2)}, {vr(K + 16, 2)}, {vr(K + 18, 2)}\nv_pk_add_f32 {vr(K + 20, 2)}, {vr(K + 20, 2)}, {vr(K + 22, 2)}")
        for i in (0, 2):
            a(f"v_pk_add_f32 {vr(K + i, 2)}, {vr(K + i, 2)}, {vr(K + 8 + i, 2)}")
        a(f"v_pk_add_f32 {vr(K + 16, 2)}, {vr(K + 16, 2)}, {vr(K + 20, 2)}")
        for i in range(4):
            a(f"v_permlane32_swap_b32 {vr(K + i)}, {vr(K + 4 + i)}")
        a(f"v_add_f32 {vr(K + 16)}, {vr(K + 16)}, {vr(K + 17)}")
        for i in (0, 2):
            a(f"v_pk_add_f32 {vr(K + i, 2)}, {vr(K + i, 2)}, {vr(K + 4 + i, 2)}")
        a(f"v_cndmask_b32 {vr(K)}, {vr(K)}, {vr(MREG)}, {sM0}\nv_cndmask_b32 {vr(K + 1)}, {vr(K + 1)}, {vr(K + 16)}, {sM0}")
        self.tag4(K, MK)
        a("s_mov_b32 exec_hi, 1\ns_cbranch_scc1 L_publoc")
        a(f"global_store_dwordx4 {vr(ADR)}, {vr(K, 4)}, {sWS} sc1\ns_branch L_pubdone")
        a(f"L_publoc:\nglobal_store_dwordx4 {vr(ADR)}, {vr(K, 4)}, {sWS}")
        a("L_pubdone:\ns_mov_b32 exec_hi, -1")
        a(f"ds_write_b32 {vr(T)}, {vr(T + 1)} offset:{L_PUB - L_CNT}")
        self.stamp(8)
        a("L_role:")
        self.role("L_wo", "L_none", "L_ffn", "L_none")

    def role_wo(self):
        a = self.a
        sw = self.sw
        MK = 100
        B, D, O, ML, X, T, AO, AM, AW, AR, AY = 4, 20, 36, 44, 48, 52, 60, 61, 62, 63, 64
        a("L_wo:")
        a(f"v_lshrrev_b32 v2, 4, v1\nv_bfe_u32 {vr(T)}, v1, 3, 1\nv_and_b32 {vr(T + 1)}, 3, v1\nv_bfe_u32 {vr(T + 2)}, v1, 4, 1\nv_lshrrev_b32 {vr(T + 3)}, 5, v1")
        a(f"s_lshl_b32 {sA}, {sw}, 2\nv_add_u32 v3, {sA}, {vr(T + 3)}\nv_mul_u32_u24 v3, {GUP}, v3\nv_lshl_add_u32 v3, {vr(T + 2)}, 9, v3")
        a(f"v_bfe_u32 {vr(T + 4)}, v1, 2, 2\nv_lshl_add_u32 v3, {vr(T + 4)}, 6, v3\nv_lshl_add_u32 v3, {vr(T + 1)}, 3, v3")
        a(f"s_lshl_b32 {sA}, {sXCD}, 2\ns_lshr_b32 {sB}, {sw}, 1\ns_add_u32 {sA}, {sA}, {sB}")
        a(f"s_lshl_b32 {sB}, {sA}, 7\ns_add_u32 {sB}, {sB}, {WS_ML}\nv_lshl_add_u32 {vr(AM)}, {vr(T)}, 2, {vr(T + 1)}\nv_lshl_add_u32 {vr(AM)}, {vr(AM)}, 4, {sB}")
        a(f"s_lshl_b32 {sA}, {sA}, 12\ns_and_b32 {sB}, {sw}, 1\ns_lshl_b32 {sB}, {sB}, 10\ns_add_u32 {sA}, {sA}, {sB}\ns_add_u32 {sA}, {sA}, {WS_OP}")
        a(f"v_bfe_u32 {vr(AO)}, v1, 2, 1\nv_lshl_add_u32 {vr(AO)}, {vr(AO)}, 2, v2\nv_lshlrev_b32 {vr(AO)}, 7, {vr(AO)}")
        a(f"v_lshl_add_u32 {vr(AO)}, {vr(T)}, 11, {vr(AO)}\nv_lshl_add_u32 {vr(AO)}, {vr(T + 1)}, 4, {vr(AO)}\nv_add_u32 {vr(AO)}, {sA}, {vr(AO)}")
        a(f"v_and_b32 {vr(AR)}, 15, v1\nv_lshlrev_b32 {vr(AW)}, 2, {vr(AR)}\nv_lshl_add_u32 {vr(AW)}, {vr(T + 3)}, 7, {vr(AW)}\nv_lshl_add_u32 {vr(AW)}, {vr(T + 2)}, 8, {vr(AW)}")
        a(f"s_lshl_b32 {sA}, {sw}, 9\ns_add_u32 {sA}, {sA}, {L_RED}\nv_add_u32 {vr(AW)}, {sA}, {vr(AW)}")
        a(f"v_lshlrev_b32 {vr(AR)}, 4, {vr(AR)}\nv_lshl_add_u32 {vr(AR)}, v2, 10, {vr(AR)}")
        a(f"s_lshl_b32 {sA}, {sXCD}, 11\ns_lshl_b32 {sB}, {sF}, 7\ns_add_u32 {sA}, {sA}, {sB}\ns_add_u32 {sA}, {sA}, {WS_YP}")
        a(f"v_and_b32 {vr(AY)}, 7, v1\nv_lshl_add_u32 {vr(AY)}, {vr(AY)}, 4, {sA}\nv_lshl_add_u32 {vr(AY)}, {vr(T)}, 14, {vr(AY)}")
        a(f"v_cmp_eq_u32 {sM1}, 1, {vr(T + 2)}")
        self.poll(lambda: a(f"global_load_dwordx4 {vr(ML, 4)}, {vr(AM)}, {sWS} sc1"), lambda: self.chk(T, [ML]))
        self.stamp(10)

        def weights():
            a(f"v_and_b32 {vr(ML)}, {vr(MK)}, {vr(ML)}\nv_and_b32 {vr(ML + 1)}, {vr(MK)}, {vr(ML + 1)}")
            a(f"v_max_f32_dpp {vr(ML + 2)}, {vr(ML)}, {vr(ML)} quad_perm:[1,0,3,2] {FULL}")
            a(f"v_max_f32_dpp {vr(ML + 2)}, {vr(ML + 2)}, {vr(ML + 2)} quad_perm:[2,3,0,1] {FULL}")
            a(f"v_sub_f32 {vr(ML)}, {vr(ML)}, {vr(ML + 2)}\nv_mul_f32 {vr(ML)}, {sK2}, {vr(ML)}\nv_exp_f32 {vr(ML)}, {vr(ML)}")
            a(f"v_mul_f32 {vr(ML + 1)}, {vr(ML + 1)}, {vr(ML)}")
            self.dppred("v_add_f32", [ML + 1], ("quad_perm:[1,0,3,2]", "quad_perm:[2,3,0,1]"))
            a(f"v_rcp_f32 {vr(ML + 1)}, {vr(ML + 1)}\nv_mul_f32 {vr(ML)}, {vr(ML)}, {vr(ML + 1)}")
            self.lds_wait(L_DMA, 1, T + 6, T + 7, tight=True)
            a(f"s_mov_b32 {sSPIN}, 0")
            self.stamp(9)
            for t in range(2):
                for ct in range(2):
                    for hh in range(2):
                        a(f"ds_read_b64_tr_b16 {vr(B + 8 * t + 4 * ct + 2 * hh, 2)}, v3 offset:{L_W + t * 2 * GUP + hh * 256 + ct * 32}")

        def oloads():
            a(f"global_load_dwordx4 {vr(O, 4)}, {vr(AO)}, {sWS} sc1\nglobal_load_dwordx4 {vr(O + 4, 4)}, {vr(AO)}, {sWS} offset:64 sc1")
        self.poll(oloads, lambda: self.chk(T, [O, O + 4]), between=weights)
        self.stamp(11)
        self.count(1)
        for i in range(8):
            a(f"v_and_b32 {vr(O + i)}, {vr(MK)}, {vr(O + i)}")
        for i in range(8):
            a(f"v_mul_f32 {vr(O + i)}, {vr(O + i)}, {vr(ML)}")
        self.dppred("v_add_f32", range(O, O + 8), ("quad_perm:[1,0,3,2]", "quad_perm:[2,3,0,1]"))
        for u in range(4):
            a(f"v_cvt_pk_bf16_f32 {vr(X + u)}, {vr(O + 2 * u)}, {vr(O + 2 * u + 1)}")
        a("s_waitcnt lgkmcnt(0)")
        for ct in range(2):
            for t in range(2):
                a(f"v_mfma_f32_16x16x32_bf16 {vr(D + 8 * ct + 4 * t, 4)}, {vr(X, 4)}, {vr(B + 8 * t + 4 * ct, 4)}, 0")
        for ct in range(2):
            a(f"v_cndmask_b32 {vr(O + ct)}, {vr(D + 8 * ct)}, {vr(D + 8 * ct + 4)}, {sM1}")
        a(f"ds_write2_b32 {vr(AW)}, {vr(O)}, {vr(O + 1)} offset0:0 offset1:16\ns_waitcnt lgkmcnt(0)\ns_barrier")
        a(f"s_cmp_lg_u32 {sw}, 0\ns_cbranch_scc1 L_none")
        for n in range(4):
            a(f"ds_read_b128 {vr(B + 4 * n, 4)}, {vr(AR)} offset:{L_RED + 256 * n}")
        a("s_waitcnt lgkmcnt(0)")
        for i in (0, 2):
            a(f"v_pk_add_f32 {vr(B + i, 2)}, {vr(B + i, 2)}, {vr(B + 4 + i, 2)}\nv_pk_add_f32 {vr(B + 8 + i, 2)}, {vr(B + 8 + i, 2)}, {vr(B + 12 + i, 2)}")
        for i in (0, 2):
            a(f"v_pk_add_f32 {vr(B + i, 2)}, {vr(B + i, 2)}, {vr(B + 8 + i, 2)}")
        for swp in ("v_permlane32_swap_b32", "v_permlane16_swap_b32"):
            for i in range(4):
                a(f"{swp} {vr(B + i)}, {vr(B + 4 + i)}")
            for i in (0, 2):
                a(f"v_pk_add_f32 {vr(B + i, 2)}, {vr(B + i, 2)}, {vr(B + 4 + i, 2)}")
        self.tag4(B, MK)
        a("s_mov_b64 exec, 0xffff")
        a(f"global_store_dwordx4 {vr(AY)}, {vr(B, 4)}, {sWS} sc1")
        self.stamp(12)
        self.end()

    def role_ffn(self):
        a = self.a
        sw = self.sw
        BG, BD, F, D, ST, XF = 4, 68, 84, 116, 120, 126
        MK, AY, XR, ADR, AH, AHN, AS, ASW, AA, AAW, AAR, AF, FM, AO, HV = 128, 130, 132, 134, 135, 136, 137, 138, 139, 140, 141, 142, 144, 145, 146
        HNS = 1088
        a("L_ffn:")
        g, b3, q4, r2, hi, b4 = F, F + 1, F + 2, F + 3, F + 4, F + 5
        a(f"v_mov_b32 {vr(MK)}, 0xffffff00")
        a(f"v_lshrrev_b32 {vr(g)}, 4, v1\nv_bfe_u32 {vr(b3)}, v1, 3, 1\nv_and_b32 {vr(q4)}, 3, v1\nv_bfe_u32 {vr(r2)}, v1, 2, 2\nv_lshrrev_b32 {vr(hi)}, 5, v1\nv_bfe_u32 {vr(b4)}, v1, 4, 1")
        a(f"s_lshl_b32 {sA}, {sw}, 4\nv_and_b32 v3, 15, v1\nv_add_u32 v3, {sA}, v3")
        a(f"v_lshlrev_b32 {vr(AHN)}, 3, v3\nv_lshl_add_u32 {vr(AHN)}, {vr(b4)}, 2, {vr(AHN)}\nv_lshl_add_u32 {vr(AH)}, {vr(hi)}, 10, {vr(AHN)}")
        a(f"global_load_dword {vr(XR)}, {vr(AH)}, {sX}")
        a(f"v_mul_u32_u24 v2, {HNS}, {vr(hi)}\nv_add_u32 {vr(AHN)}, v2, {vr(AHN)}")
        a(f"v_lshlrev_b32 {vr(AY)}, 4, v3\nv_lshl_add_u32 {vr(AY)}, {vr(hi)}, 14, {vr(AY)}\nv_lshl_add_u32 {vr(AY)}, {vr(b4)}, 11, {vr(AY)}\nv_bfe_u32 v3, v1, 2, 1")
        a(f"v_add_u32 {vr(AY + 1)}, {WS_YP + 12288}, {vr(AY)}\nv_add_u32 {vr(AY)}, {WS_YP + 4096}, {vr(AY)}")
        a(f"s_lshl_b32 {sA}, {sw}, 3\nv_lshlrev_b32 {vr(AS)}, 6, {vr(hi)}\nv_add_u32 {vr(ASW)}, {sA}, {vr(AS)}")
        a(f"v_and_b32 {vr(AA)}, 1, v1\nv_mul_u32_u24 {vr(AA)}, {HNS}, {vr(AA)}\nv_lshl_add_u32 {vr(AA)}, {vr(g)}, 4, {vr(AA)}")
        a(f"v_lshlrev_b32 {vr(AAR)}, 6, v3\nv_lshl_add_u32 {vr(AAR)}, {vr(g)}, 4, {vr(AAR)}")
        a(f"v_and_b32 {vr(AAW)}, 7, v1\nv_lshlrev_b32 {vr(AAW)}, 1, {vr(AAW)}\nv_lshl_add_u32 {vr(AAW)}, {vr(b4)}, 6, {vr(AAW)}\ns_lshl_b32 {sA}, {sw}, 4\nv_add_u32 {vr(AAW)}, {sA}, {vr(AAW)}")
        a(f"s_lshl_b32 {sB}, {sw}, 1\nv_add_u32 {vr(ADR)}, {sB}, {vr(hi)}\nv_lshl_add_u32 {vr(ADR)}, {vr(ADR)}, 1, v3\nv_mul_u32_u24 {vr(ADR)}, {FP_STRIDE}, {vr(ADR)}")
        a(f"s_lshl_b32 {sB}, {sF}, 7\ns_add_u32 {sB}, {sB}, {WS_FP}\nv_lshl_add_u32 {vr(ADR)}, {vr(q4)}, 4, {vr(ADR)}\nv_lshl_add_u32 {vr(ADR)}, {vr(b4)}, 6, {vr(ADR)}\nv_add_u32 {vr(ADR)}, {sB}, {vr(ADR)}")
        a(f"v_bfe_u32 v2, v1, 1, 1\nv_mul_u32_u24 v2, {L_U - L_G}, v2\nv_mul_u32_u24 v3, {GUP}, {vr(hi)}\nv_add_u32 v2, v2, v3")
        a(f"v_lshl_add_u32 v2, {vr(b4)}, 9, v2\nv_lshl_add_u32 v2, {vr(r2)}, 6, v2\nv_and_b32 v3, 1, v1\nv_lshl_add_u32 v2, v3, 3, v2")
        a(f"s_and_b32 {sA}, {sw}, 3\ns_lshl_b32 {sA}, {sA}, 4\nv_add_u32 v2, {sA}, v2")
        a(f"v_lshl_add_u32 v3, {vr(g)}, 3, {vr(r2)}\nv_mul_u32_u24 v3, {ROWP}, v3\nv_lshl_add_u32 v3, {vr(q4)}, 5, v3\ns_lshl_b32 {sB}, {sw}, 7\ns_add_u32 {sB}, {sB}, {L_D}\nv_add_u32 v3, {sB}, v3")
        a(f"s_mul_i32 {sB}, {sF}, {FP_STRIDE}\ns_lshl_b32 {sC}, {sw}, 6\ns_add_u32 {sB}, {sB}, {sC}\ns_add_u32 {sB}, {sB}, {WS_FP}")
        a(f"v_lshrrev_b32 {vr(AF)}, 2, v1\nv_lshlrev_b32 {vr(AF)}, 7, {vr(AF)}\nv_lshl_add_u32 {vr(AF)}, {vr(q4)}, 4, {vr(AF)}\nv_add_u32 {vr(AF)}, {sB}, {vr(AF)}")
        a(f"v_cmp_gt_u32 vcc, 44, v1\nv_add_u32 {vr(AF + 1)}, 4096, {vr(AF)}\nv_cndmask_b32 {vr(AF + 1)}, {vr(AF)}, {vr(AF + 1)}, vcc\nv_cndmask_b32 {vr(FM)}, 0, {vr(MK)}, vcc")
        a(f"s_and_b32 {sB}, {sF}, 1\ns_lshl_b32 {sB}, {sB}, 9\ns_lshr_b32 {sC}, {sF}, 1\ns_lshl_b32 {sC}, {sC}, 5\ns_add_u32 {sB}, {sB}, {sC}\ns_lshl_b32 {sC}, {sw}, 4\ns_add_u32 {sB}, {sB}, {sC}")
        a(f"v_lshl_add_u32 {vr(AO)}, {vr(b4)}, 1, {vr(hi)}\nv_lshl_add_u32 {vr(AO)}, {vr(q4)}, 2, {vr(AO)}\nv_add_u32 {vr(AO)}, {sB}, {vr(AO)}\nv_lshlrev_b32 {vr(AO)}, 1, {vr(AO)}")
        a(f"v_cmp_eq_u32 {sM1}, 1, {vr(b4)}")
        a(f"s_mov_b32 {sK1}, 0x3d372713\ns_mov_b32 {sK3}, 0xc0135761")
        self.lds_wait(L_HINT, 1, F + 16, F + 17, tight=True)
        self.stamp(9)

        def loads():
            for n in range(4):
                a(f"global_load_dwordx4 {vr(F + 4 * n, 4)}, {vr(AY + n // 2)}, {sWS} offset:{-4096 if n % 2 == 0 else 0} sc1")

        def bdreads():
            for n in range(4):
                for hh in range(2):
                    a(f"ds_read_b64_tr_b16 {vr(BD + 4 * n + 2 * hh, 2)}, v3 offset:{hh * 4 * ROWP + n * 8}")

        def shadow():
            if self.downearly:
                bdreads()
            else:
                self.lds_inc(L_YISS, F + 16, F + 17)
            a(f"s_cmp_gt_u32 {sw}, 3\ns_cbranch_scc1 L_fnog")
            for t in range(16):
                for hh in range(2):
                    a(f"ds_read_b64_tr_b16 {vr(BG + 4 * t + 2 * hh, 2)}, v2 offset:{L_G + t * 2 * GUP + hh * 256}")
            a("L_fnog:\ns_waitcnt vmcnt(4)")
            self.unpack(XF, XR, 1)
        self.poll(loads, lambda: self.chk(F + 16, [F + 4 * n for n in range(4)]), between=shadow)
        self.stamp(10)
        self.count(1)
        for i in range(16):
            a(f"v_and_b32 {vr(F + i)}, {vr(MK)}, {vr(F + i)}")
        for i in (0, 2):
            a(f"v_pk_add_f32 {vr(F + i, 2)}, {vr(F + i, 2)}, {vr(F + 4 + i, 2)}\nv_pk_add_f32 {vr(F + 8 + i, 2)}, {vr(F + 8 + i, 2)}, {vr(F + 12 + i, 2)}")
        for i in (0, 2):
            a(f"v_pk_add_f32 {vr(F + i, 2)}, {vr(F + i, 2)}, {vr(F + 8 + i, 2)}")
        a(f"v_permlane16_swap_b32 {vr(F)}, {vr(F + 2)}\nv_permlane16_swap_b32 {vr(F + 1)}, {vr(F + 3)}")
        a(f"v_pk_add_f32 {vr(F, 2)}, {vr(F, 2)}, {vr(F + 2, 2)}")
        self.bf16r(F, F)
        self.bf16r(F + 1, F + 1)
        a(f"v_pk_add_f32 {vr(F + 2, 2)}, {vr(F, 2)}, {vr(XF, 2)}")
        self.bf16r(F, F + 2)
        self.bf16r(F + 1, F + 3)
        S = F + 6
        a(f"v_add_f32 {vr(S)}, {vr(F)}, {vr(F + 1)}\nv_mul_f32 {vr(S + 1)}, {vr(F)}, {vr(F)}\nv_fmac_f32 {vr(S + 1)}, {vr(F + 1)}, {vr(F + 1)}")
        a(f"v_cvt_pk_bf16_f32 {vr(F + 4)}, {vr(F + 2)}, {vr(F + 3)}")
        self.dppred("v_add_f32", [S, S + 1], [f"row_ror:{r}" for r in (1, 2, 4, 8)])
        a(f"ds_write_b32 {vr(AH)}, {vr(F + 4)} offset:{L_H}")
        for r in (S, S + 1):
            a(f"v_add_f32_dpp {vr(r)}, {vr(r)}, {vr(r)} row_bcast:15 row_mask:0xa bank_mask:0xf")
        a(f"s_mov_b32 exec_lo, 0x10000\ns_mov_b32 exec_hi, 0x10000\nds_write_b64 {vr(ASW)}, {vr(S, 2)} offset:{L_STAT}")
        a("s_mov_b64 exec, -1\ns_waitcnt lgkmcnt(0)\ns_barrier")
        self.stamp(11)
        for n in range(4):
            a(f"ds_read_b128 {vr(F + 8 + 4 * n, 4)}, {vr(AS)} offset:{L_STAT + 16 * n}")
        a(f"ds_read_u16 {vr(HV)}, {vr(AO)} offset:{L_H}")
        a("s_waitcnt lgkmcnt(0)")
        for n in range(4):
            a(f"v_pk_add_f32 {vr(F + 8 + 4 * n, 2)}, {vr(F + 8 + 4 * n, 2)}, {vr(F + 10 + 4 * n, 2)}")
        a(f"v_pk_add_f32 {vr(F + 8, 2)}, {vr(F + 8, 2)}, {vr(F + 12, 2)}\nv_pk_add_f32 {vr(F + 16, 2)}, {vr(F + 16, 2)}, {vr(F + 20, 2)}")
        a(f"v_pk_add_f32 {vr(F + 8, 2)}, {vr(F + 8, 2)}, {vr(F + 16, 2)}")
        a(f"v_mul_f32 {vr(F + 8)}, 0x3b000000, {vr(F + 8)}\nv_mul_f32 {vr(F + 9)}, 0x3b000000, {vr(F + 9)}")
        a(f"v_fma_f32 {vr(F + 9)}, -{vr(F + 8)}, {vr(F + 8)}, {vr(F + 9)}\nv_max_f32 {vr(F + 9)}, 0, {vr(F + 9)}")
        self.ln_finish(ST, F + 8, F + 9)
        self.ln_apply2(F, ST, XF, F + 4)
        a(f"ds_write_b32 {vr(AHN)}, {vr(XF)} offset:{L_HN}\ns_waitcnt lgkmcnt(0)\ns_barrier")
        if self.downearly:
            a(f"s_cmp_gt_u32 {sw}, 3\ns_cbranch_scc1 L_fact")
        else:
            a(f"s_cmp_lt_u32 {sw}, 4\ns_cbranch_scc1 L_fgu")
            bdreads()
            a("s_branch L_fact\nL_fgu:")
        for t in range(8):
            a(f"ds_read_b128 {vr(F + 4 * t, 4)}, {vr(AA)} offset:{L_HN + 64 * t}")
        for t in range(16):
            a(f"s_waitcnt lgkmcnt({min(7, 15 - t)})")
            a(f"v_mfma_f32_16x16x32_bf16 {vr(D, 4)}, {vr(F + 4 * (t % 8), 4)}, {vr(BG + 4 * t, 4)}, {vr(D, 4) if t else 0}")
            if t < 8:
                a(f"ds_read_b128 {vr(F + 4 * t, 4)}, {vr(AA)} offset:{L_HN + 64 * (t + 8)}")
        G = BG
        if not self.downearly:
            bdreads()
        a(f"v_cndmask_b32 {vr(G)}, {vr(D)}, {vr(D + 1)}, {sM1}")
        self.bf16r(G, G)
        a(f"v_mul_f32 {vr(G + 2)}, {vr(G)}, {vr(G)}\nv_mul_f32 {vr(G + 3)}, {sK3}, {vr(G)}")
        a(f"v_mov_b32_dpp {vr(G + 1)}, {vr(G)} row_ror:8 {FULL}")
        a(f"v_fma_f32 {vr(G + 2)}, {vr(G + 2)}, {sK1}, 1.0")
        a(f"v_mul_f32 {vr(G + 2)}, {vr(G + 2)}, {vr(G + 3)}\nv_exp_f32 {vr(G + 2)}, {vr(G + 2)}\nv_add_f32 {vr(G + 2)}, 1.0, {vr(G + 2)}")
        a(f"v_rcp_f32 {vr(G + 2)}, {vr(G + 2)}\nv_mul_f32 {vr(G)}, {vr(G)}, {vr(G + 2)}")
        self.bf16r(G, G)
        a(f"v_mul_f32 {vr(G)}, {vr(G)}, {vr(G + 1)}\nv_cvt_pk_bf16_f32 {vr(G)}, {vr(G)}, {vr(G)}")
        a(f"s_mov_b64 exec, 0x00ff00ff\nds_write_b16 {vr(AAW)}, {vr(G)} offset:{L_ACT}\ns_mov_b64 exec, -1")
        a("L_fact:")
        for i in range(16):
            a(f"v_mov_b32 {vr(F + i)}, 0")
        a("s_waitcnt lgkmcnt(0)\ns_barrier")
        self.stamp(12)
        for n in range(4):
            a(f"s_mov_b32 exec_lo, {0x11111111 << n:#x}\ns_mov_b32 exec_hi, {0x11111111 << n:#x}")
            a(f"ds_read_b128 {vr(F + 4 * n, 4)}, {vr(AAR)} offset:{L_ACT}")
        a(f"s_mov_b64 exec, -1\nv_lshlrev_b32 {vr(HV)}, 16, {vr(HV)}")
        a("s_waitcnt lgkmcnt(0)")
        for n in range(4):
            a(f"v_mfma_f32_16x16x32_bf16 {vr(D, 4)}, {vr(BD + 4 * n, 4)}, {vr(F + 4 * n, 4)}, {vr(D, 4) if n else 0}")
        a("s_mov_b32 exec_lo, 0x00ff00ff\ns_mov_b32 exec_hi, 0x00ff00ff")
        self.tag4(D, MK)
        a(f"global_store_dwordx4 {vr(ADR)}, {vr(D, 4)}, {sWS} sc1")
        self.stamp(13)
        a(f"s_mov_b64 exec, -1\ns_cmp_ge_u32 {sF}, 32\ns_cbranch_scc1 L_none\ns_cmp_ge_u32 {sw}, 2\ns_cbranch_scc1 L_none")
        if self.ackwait:
            a("s_waitcnt vmcnt(0)")

        def floads():
            a(f"global_load_dwordx4 {vr(F, 4)}, {vr(AF)}, {sWS} sc1\nglobal_load_dwordx4 {vr(F + 4, 4)}, {vr(AF)}, {sWS} offset:2048 sc1")
            a(f"global_load_dwordx4 {vr(F + 8, 4)}, {vr(AF + 1)}, {sWS} sc1")
        self.poll(floads, lambda: self.chk(F + 12, [F, F + 4, F + 8]))
        self.count(2)
        for i in range(8):
            a(f"v_and_b32 {vr(F + i)}, {vr(MK)}, {vr(F + i)}")
        for i in range(4):
            a(f"v_and_b32 {vr(F + 8 + i)}, {vr(FM)}, {vr(F + 8 + i)}")
        for k in (4, 8):
            for i in (0, 2):
                a(f"v_pk_add_f32 {vr(F + i, 2)}, {vr(F + i, 2)}, {vr(F + k + i, 2)}")
        self.tr_reduce4(F, (4, 8))
        self.bf16r(F, F)
        a("s_mov_b32 exec_lo, 0x000f000f\ns_mov_b32 exec_hi, 0x000f000f")
        a(f"v_add_f32 {vr(F)}, {vr(F)}, {vr(HV)}\nv_cvt_pk_bf16_f32 {vr(F)}, {vr(F)}, {vr(F)}")
        a(f"global_store_short {vr(AO)}, {vr(F)}, {sOUT}")
        self.stamp(14)
        a(f"s_or_b32 {sA}, {sF}, {sw}\ns_cmp_lg_u32 {sA}, 0\ns_cbranch_scc1 L_none")
        a(f"v_mov_b32 v2, 0\nv_mov_b32 v3, {sT}\ns_mov_b64 exec, 1\nglobal_store_dword v2, v3, {sWS} sc1")
        if self.pad:
            a(f"s_mov_b32 s70, {self.pad}")
            if self.probe is not None:
                a("s_waitcnt lgkmcnt(0)\ns_sub_u32 s68, s68, s64\ns_lshl_b32 s68, s68, 2\ns_min_u32 s68, s68, 20000\ns_add_u32 s70, s70, s68")
            a("L_pad:\ns_memrealtime s[66:67]\ns_waitcnt lgkmcnt(0)\ns_sub_u32 s66, s66, s64\ns_cmp_lt_u32 s66, s70\ns_cbranch_scc1 L_pad")
        self.end()


if __name__ == "__main__":
    out = sys.argv[1]
    kw = {}
    for x in sys.argv[2:]:
        k, v = x.split("=")
        kw[k] = {"True": True, "False": False}.get(v, v)
    g = Gen(**kw)
    open(out, "w").write(g.build())
    print("written", out, "nops", g.nops)
```

```python
import sys
from asmlib import Asm

KN = "sequential_preLN__sliding_block_cached__geglu_ffn__decode_kernel"
HEADER = open("sequential_preLN__sliding_block_cached__geglu_ffn__decode.s.ref").read().split("; Override launch")[0]

WS_HT, WS_XT, WS_QP, WS_OP, WS_ML, WS_YP, WS_FP, WS_ST = 0x800, 0x400, 0x1000, 0x50000, 0x70000, 0x80000, 0x110000, 0x200000
FP_STRIDE = 6144
TAGC = 0x9E3779B9
L_Q, L_MAX, L_SUM, L_CNT, L_VCNT, L_MCNT, L_QF, L_PUB, L_DMA, L_HINT, L_YISS = 0, 256, 288, 320, 324, 328, 332, 336, 340, 344, 348
L_OP, L_RED, L_STAT, L_ACT, L_H, L_HN, L_W = 512, 4608, 8704, 8960, 9216, 11264, 13568
ROWP = 1040
GUP = 1088
L_G = L_W
L_U = L_G + 32 * GUP + 128
L_D = L_U + 32 * GUP + 128
LDS_BYTES = L_D + 32 * ROWP
SPIN = 1 << 16

sX, sK, sV, sWQ, sWO, sWG, sWU, sWD, sOUT, sWS = "s[4:5]", "s[6:7]", "s[8:9]", "s[10:11]", "s[12:13]", "s[16:17]", "s[18:19]", "s[20:21]", "s[22:23]", "s[26:27]"
sXCD, sH, sJ, sW, sT = "s28", "s29", "s30", "s31", "s32"
sT1, sT2, sT3 = "s33", "s34", "s35"
sSELA, sSELB, sHI = "s36", "s37", "s38"
sSPIN = "s39"
sA, sB, sC, sD = "s40", "s41", "s42", "s43"
sM0, sM1 = "s[44:45]", "s[46:47]"
sF = "s48"
sK1, sK2, sK3 = "s49", "s50", "s51"
sP = "s[52:53]"
sLOC = "s54"
ST0 = 64
FULL = "row_mask:0xf bank_mask:0xf"


def vr(a, n=1):
    return f"v{a}" if n == 1 else f"v[{a}:{a + n - 1}]"


class Gen:
    def __init__(self, diag=False, nt="nt", wnt="nt", prefetch=True, pad=0, lds=None, nvg=160, probe=None, stamps=None,
                 nk0=3, helper=True, hrow0=128, local=True, ackwait=True, nk1=8, optouch=True, window=True, exp="", wwin=15, hint=True, lag=3, fwin=7, downearly=True, b0=True, tight=True):
        self.a = Asm()
        self.diag, self.nt, self.wnt, self.prefetch = diag, nt, wnt, prefetch
        self.uid = 0
        self.pad, self.probe, self.stamps, self.sec = int(pad), probe, stamps, ""
        self.nk0, self.helper, self.hrow0, self.local, self.ackwait = int(nk0), helper, int(hrow0), local, ackwait
        self.nk1 = int(nk1)
        self.optouch, self.window, self.exp, self.wwin = optouch, window, exp, int(wwin)
        self.hint, self.lag, self.fwin = hint, int(lag), int(fwin)
        self.downearly, self.b0, self.tight = downearly, b0, tight
        self.lds = int(lds) if lds else LDS_BYTES
        self.nvg = int(nvg)

    def stamp(self, i):
        key = self.sec + str(i)
        if self.probe == key:
            self.a("s_memrealtime s[68:69]")
        if self.diag and (self.stamps is None or key in self.stamps):
            self.a(f"s_memrealtime s[{ST0 + 2 * i}:{ST0 + 2 * i + 1}]")

    def count(self, i):
        if self.diag and self.stamps is not None and ("n" + self.sec + str(i)) in self.stamps:
            self.a(f"s_add_u32 s{ST0 + 2 * i}, {sSPIN}, 1")

    def end(self):
        self.a("s_branch L_exit" if self.diag else "s_endpgm")

    def bf16r(self, d, x):
        self.a(f"v_cvt_pk_bf16_f32 {vr(d)}, 0, {vr(x)}")

    def unpack(self, d, s, n):
        for i in range(n):
            self.a(f"v_lshlrev_b32 {vr(d + 2 * i)}, 16, {vr(s + i)}\nv_and_b32 {vr(d + 2 * i + 1)}, {sHI}, {vr(s + i)}")

    def dppred(self, op, regs, mods):
        for mod in mods:
            for r in regs:
                self.a(f"{op}_dpp {vr(r)}, {vr(r)}, {vr(r)} {mod} {FULL}")

    def redrows(self, op, regs, tmp):
        a = self.a
        for sw in ("v_permlane16_swap_b32", "v_permlane32_swap_b32"):
            for i, r in enumerate(regs):
                a(f"v_mov_b32 {vr(tmp + i)}, {vr(r)}")
            for i, r in enumerate(regs):
                a(f"{sw} {vr(r)}, {vr(tmp + i)}")
            for i, r in enumerate(regs):
                a(f"{op} {vr(r)}, {vr(r)}, {vr(tmp + i)}")

    def red8x(self, op, regs, tmp):
        self.dppred(op, regs, ("quad_perm:[1,0,3,2]", "quad_perm:[2,3,0,1]", "row_half_mirror"))
        self.redrows(op, regs, tmp)

    def selectors(self, sel, t0, nm, bits=2):
        a = self.a
        a(f"v_and_b32 {vr(t0)}, 1, v1")
        a(f"v_cmp_eq_u32 vcc, 1, {vr(t0)}")
        a(f"v_mov_b32 {vr(t0 + 1)}, 0x0c0c0100\nv_mov_b32 {vr(t0 + 2)}, 0x01000c0c")
        a(f"v_cndmask_b32 {vr(t0 + 1)}, {vr(t0 + 1)}, {vr(t0 + 2)}, vcc")
        a(f"v_mov_b32 {vr(t0 + 2)}, 0x0c0c0302\nv_mov_b32 {vr(t0 + 3)}, 0x03020c0c")
        a(f"v_cndmask_b32 {vr(t0 + 2)}, {vr(t0 + 2)}, {vr(t0 + 3)}, vcc")
        a(f"v_bfe_u32 {vr(t0)}, v1, 1, {bits}")
        a(f"v_mov_b32 {vr(t0 + 3)}, 0x0c0c0c0c")
        for m in range(nm):
            a(f"v_cmp_eq_u32 vcc, {m}, {vr(t0)}")
            a(f"v_cndmask_b32 {vr(sel + 2 * m)}, {vr(t0 + 3)}, {vr(t0 + 1)}, vcc")
            a(f"v_cndmask_b32 {vr(sel + 2 * m + 1)}, {vr(t0 + 3)}, {vr(t0 + 2)}, vcc")

    def tag_consts(self):
        a = self.a
        a(f"s_add_u32 {sT}, {sT}, {TAGC}")
        a(f"s_lshr_b32 {sT1}, {sT}, 8\ns_lshr_b32 {sT2}, {sT}, 16\ns_lshr_b32 {sT3}, {sT}, 24")
        a(f"s_mov_b32 {sSELA}, 0x0c0c0400\ns_mov_b32 {sSELB}, 0x04000c0c")

    def tag4(self, d, mask):
        for i, s in enumerate((sT, sT1, sT2, sT3)):
            self.a(f"v_bfi_b32 {vr(d + i)}, {vr(mask)}, {vr(d + i)}, {s}")

    def chk(self, t, gs):
        a = self.a
        for n, g in enumerate(gs):
            a(f"v_perm_b32 {vr(t + 2 * n)}, {vr(g + 1)}, {vr(g)}, {sSELA}")
            a(f"v_perm_b32 {vr(t + 2 * n + 1)}, {vr(g + 3)}, {vr(g + 2)}, {sSELB}")
        for n, g in enumerate(gs):
            a(f"v_bitop3_b32 {vr(t + 2 * n)}, {vr(t + 2 * n)}, {vr(t + 2 * n + 1)}, {sT} bitop3:0x56")
        rest = [t + 2 * n for n in range(1, len(gs))]
        while rest:
            if len(rest) >= 2:
                a(f"v_or3_b32 {vr(t)}, {vr(t)}, {vr(rest[0])}, {vr(rest[1])}")
                rest = rest[2:]
            else:
                a(f"v_or_b32 {vr(t)}, {vr(t)}, {vr(rest[0])}")
                rest = []
        a(f"v_cmp_ne_u32 vcc, 0, {vr(t)}")

    def poll(self, loads, check, between=None):
        a = self.a
        self.uid += 1
        L = self.cur_poll = f"L_poll{self.uid}"
        a(f"s_mov_b32 {sSPIN}, 0")
        if between:
            loads()
            between()
            a(f"s_branch {L}w")
        a(f"{L}:")
        loads()
        a(f"s_add_u32 {sSPIN}, {sSPIN}, 1\ns_cmp_gt_u32 {sSPIN}, {SPIN}\ns_cbranch_scc1 L_bail")
        a(f"{L}w:\ns_waitcnt vmcnt(0)\n{L}c:")
        check()
        a(f"s_cbranch_vccnz {L}")

    def lds_wait(self, word, val, va, vt, tight=False):
        a = self.a
        self.uid += 1
        L = f"L_lw{self.uid}"
        a(f"v_mov_b32 {vr(va)}, {word}\ns_mov_b32 {sSPIN}, 0\n{L}:")
        a(f"ds_read_b32 {vr(vt)}, {vr(va)}\ns_add_u32 {sSPIN}, {sSPIN}, 1\ns_cmp_gt_u32 {sSPIN}, {SPIN * 16}\ns_cbranch_scc1 L_bail")
        a(f"s_waitcnt lgkmcnt(0)\nv_readfirstlane_b32 {sA}, {vr(vt)}\ns_cmp_ge_u32 {sA}, {val}\n" + (f"s_cbranch_scc0 {L}" if tight and self.tight else f"s_cbranch_scc1 {L}d\ns_sleep 1\ns_branch {L}\n{L}d:"))

    def lds_inc(self, word, va, vt):
        self.a(f"v_mov_b32 {vr(va)}, {word}\nv_mov_b32 {vr(vt)}, 1\ns_mov_b64 exec, 1\nds_add_u32 {vr(va)}, {vr(vt)}\ns_mov_b64 exec, -1")

    def tr_reduce4(self, v, rots):
        a = self.a
        a(f"v_permlane32_swap_b32 {vr(v)}, {vr(v + 1)}")
        a(f"v_permlane32_swap_b32 {vr(v + 2)}, {vr(v + 3)}")
        a(f"v_add_f32 {vr(v)}, {vr(v)}, {vr(v + 1)}")
        a(f"v_add_f32 {vr(v + 2)}, {vr(v + 2)}, {vr(v + 3)}")
        a(f"v_permlane16_swap_b32 {vr(v)}, {vr(v + 2)}")
        a(f"v_add_f32 {vr(v)}, {vr(v)}, {vr(v + 2)}")
        self.dppred("v_add_f32", [v], [f"row_ror:{r}" for r in rots])

    def ln_finish(self, t, mean, var):
        a = self.a
        self.bf16r(var, var)
        self.bf16r(t, mean)
        a(f"v_add_f32 {vr(var)}, 0x3727c5ac, {vr(var)}")
        self.bf16r(var, var)
        a(f"v_sqrt_f32 {vr(var)}, {vr(var)}")
        self.bf16r(t + 2, var)
        a(f"v_rcp_f32 {vr(t + 4)}, {vr(t + 2)}")

    def ln_apply2(self, F, t, P, tmp):
        a = self.a
        a(f"v_pk_add_f32 {vr(F, 2)}, {vr(F, 2)}, {vr(t, 2)} op_sel_hi:[1,0] neg_lo:[0,1] neg_hi:[0,1]")
        self.bf16r(F, F)
        self.bf16r(F + 1, F + 1)
        a(f"v_pk_mul_f32 {vr(tmp, 2)}, {vr(F, 2)}, {vr(t + 4, 2)} op_sel_hi:[1,0]")
        a(f"v_pk_fma_f32 {vr(F, 2)}, {vr(tmp, 2)}, {vr(t + 2, 2)}, {vr(F, 2)} op_sel_hi:[1,0,1] neg_lo:[1,0,0] neg_hi:[1,0,0]")
        a(f"v_pk_fma_f32 {vr(F, 2)}, {vr(F, 2)}, {vr(t + 4, 2)}, {vr(tmp, 2)} op_sel_hi:[1,0,1]")
        a(f"v_cvt_pk_bf16_f32 {vr(P)}, {vr(F)}, {vr(F + 1)}")

    def gemv16(self, D, X, SEL, B, A, steps):
        a = self.a
        for t in range(steps):
            for m in range(2):
                a(f"v_perm_b32 {vr(A + 2 * t + m)}, {vr(X + t // 2)}, {vr(X + t // 2)}, {vr(SEL + 2 * m + (t & 1))}")
            if t >= 1:
                u = t - 1
                a(f"v_mfma_f32_16x16x16_bf16 {vr(D, 4)}, {vr(A + 2 * u, 2)}, {vr(B + 2 * u, 2)}, {vr(D, 4) if u else 0}")
        u = steps - 1
        a(f"v_mfma_f32_16x16x16_bf16 {vr(D, 4)}, {vr(A + 2 * u, 2)}, {vr(B + 2 * u, 2)}, {vr(D, 4)}")

    def role(self, lw, lh, lf, ln):
        a = self.a
        a(f"s_and_b32 {sA}, {sH}, 3\ns_lshl_b32 {sF}, {sA}, 2\ns_add_u32 {sF}, {sF}, {sJ}")
        a(f"s_cmp_lt_u32 {sJ}, 4\ns_cbranch_scc1 {lw}")
        a(f"s_lshl_b32 {sA}, {sA}, 1\ns_and_b32 {sB}, {sJ}, 1\ns_add_u32 {sA}, {sA}, {sB}\ns_mov_b32 {sF}, {sA}")
        a(f"s_cmp_lt_u32 {sJ}, 6\ns_cbranch_scc1 {lh}")
        a(f"s_min_u32 {sB}, {sXCD}, 3\ns_mul_i32 {sF}, {sXCD}, 5\ns_add_u32 {sF}, {sF}, {sB}\ns_add_u32 {sF}, {sF}, {sA}")
        a(f"s_cmp_lt_u32 {sXCD}, 3\ns_cselect_b32 {sB}, 6, 5\ns_cmp_lt_u32 {sA}, {sB}\ns_cbranch_scc1 {lf}")
        a(f"s_branch {ln}")

    def build(self):
        a = self.a
        a(f"{KN}:")
        if self.diag or self.pad:
            a(f"s_memrealtime s[{ST0}:{ST0 + 1}]")
        a("s_load_dwordx16 s[4:19], s[0:1], 0\ns_load_dwordx8 s[20:27], s[0:1], 64")
        a("s_cmp_ge_u32 s2, 256\ns_cbranch_scc1 L_bail")
        if self.diag:
            for i in range(1, 16):
                a(f"s_mov_b32 s{ST0 + 2 * i}, 0")
        a(f"v_readfirstlane_b32 {sW}, v0\nv_and_b32 v1, 63, v0")
        a(f"s_and_b32 {sXCD}, s2, 7\ns_lshr_b32 {sJ}, s2, 3\ns_lshr_b32 {sH}, s2, 6\ns_lshl_b32 {sA}, {sXCD}, 2\ns_add_u32 {sH}, {sH}, {sA}")
        a(f"s_and_b32 {sJ}, {sJ}, 7\ns_lshr_b32 {sW}, {sW}, 6\ns_mov_b32 {sHI}, 0xffff0000")
        a(f"s_cmp_lg_u32 {sW}, 0\ns_cbranch_scc1 L_stream")
        for self.sec, part in (("c", self.comm), ("s", self.stream), ("w", self.role_wo), ("f", self.role_ffn)):
            part()
        a("L_none:")
        self.end()
        if self.diag:
            a("L_exit:")
            a("s_mov_b64 exec, -1\ns_waitcnt vmcnt(0) lgkmcnt(0)")
            a(f"s_memrealtime s[{ST0 + 30}:{ST0 + 31}]\ns_waitcnt lgkmcnt(0)")
            a(f"s_mul_i32 {sA}, s2, 9\ns_add_u32 {sA}, {sA}, {sW}\ns_lshl_b32 {sA}, {sA}, 6\ns_add_u32 {sA}, {sA}, {WS_ST}")
            for i in range(16):
                a(f"v_mov_b32 v{4 + i}, s{ST0 + 2 * i}")
            a(f"v_mov_b32 v2, {sA}\ns_mov_b64 exec, 1")
            for i in range(4):
                a(f"global_store_dwordx4 v2, v[{4 + 4 * i}:{7 + 4 * i}], {sWS} offset:{16 * i}")
        a("L_bail:\ns_endpgm")
        a("L_codeend:")
        self.nops = a.fix_hazards()
        txt = HEADER
        txt += f"; @launch grid=(256,1,1) block=(576,1,1) lds={self.lds}\n"
        txt += f'.amdgcn_target "amdgcn-amd-amdhsa--gfx950"\n.text\n.globl {KN}\n.p2align 8\n.type {KN},@function\n'
        txt += a.text() + "\n"
        if self.prefetch:
            txt += ".fill 256, 4, 0xbf810000\n"
        txt += f""".section .rodata,"a"
.p2align 6
.amdhsa_kernel {KN}
  .amdhsa_next_free_vgpr {self.nvg}
  .amdhsa_next_free_sgpr 102
  .amdhsa_accum_offset {self.nvg}
  .amdhsa_group_segment_fixed_size 0
  .amdhsa_kernarg_size 96
  .amdhsa_user_sgpr_count 2
  .amdhsa_user_sgpr_kernarg_segment_ptr 1
  .amdhsa_system_sgpr_workgroup_id_x 1
.end_amdhsa_kernel
"""
        return txt

    def comm(self):
        a = self.a
        wnt = self.wnt
        G, BB = 2, 3
        XS, XO, W, F, SEL, ST, X, A, D, MK = 8, 16, 24, 88, 112, 120, 16, 88, 96, 100
        a("s_setprio 3")
        a(f"v_lshrrev_b32 v{G}, 4, v1\nv_bfe_u32 v{BB}, v1, 3, 1")
        a(f"v_and_b32 v5, 7, v1\nv_lshl_add_u32 v4, v{G}, 3, v5\nv_lshlrev_b32 v4, 5, v4\nv_lshl_add_u32 v4, v{BB}, 10, v4")
        a(f"s_lshl_b32 {sA}, {sJ}, 7\nv_lshl_add_u32 v5, v5, 2, {sA}\nv_lshl_add_u32 v5, v{G}, 5, v5\nv_lshl_add_u32 v5, v{BB}, 10, v5")
        a(f"s_lshl_b32 {sA}, {sJ}, 19\ns_lshl_b32 {sB}, {sH}, 8\ns_add_u32 {sA}, {sA}, {sB}\ns_movk_i32 {sB}, 0x2000")
        a(f"v_and_b32 v6, 15, v1\nv_lshl_add_u32 v6, v6, 4, {sA}\nv_lshl_add_u32 v6, v{G}, 17, v6")
        a("s_waitcnt lgkmcnt(0)")
        self.stamp(1)
        a(f"global_load_dwordx4 {vr(XS, 4)}, v4, {sX}\nglobal_load_dwordx4 {vr(XS + 4, 4)}, v4, {sX} offset:16")
        a(f"global_load_dword {vr(XO)}, v5, {sX}")
        for t in range(16):
            a(f"global_load_dwordx4 {vr(W + 4 * t, 4)}, v6, {sWQ} {wnt}")
            if t < 15:
                a(f"v_add_u32 v6, {sB}, v6")
        if self.b0:
            a("s_barrier")
        a(f"s_load_dword {sT}, {sWS}, 0")
        a(f"v_mov_b32 v6, {L_CNT}\nv_mov_b32 v104, 0\nv_mov_b32 v105, 0\nv_mov_b32 v106, 0\nv_mov_b32 v107, 0")
        a("ds_write_b128 v6, v[104:107]\nds_write_b128 v6, v[104:107] offset:16")
        self.selectors(SEL, 108, 4)
        a("s_waitcnt vmcnt(17)")
        self.unpack(F, XS, 8)
        self.stamp(2)
        S = 7
        a(f"v_pk_add_f32 v[104:105], {vr(F, 2)}, {vr(F + 2, 2)}\nv_pk_add_f32 v[106:107], {vr(F + 4, 2)}, {vr(F + 6, 2)}")
        for i in range(2):
            a(f"v_pk_add_f32 v[104:105], v[104:105], {vr(F + 8 + 4 * i, 2)}\nv_pk_add_f32 v[106:107], v[106:107], {vr(F + 10 + 4 * i, 2)}")
        a(f"v_pk_add_f32 v[104:105], v[104:105], v[106:107]\nv_add_f32 {vr(S)}, v104, v105")
        self.red8x("v_add_f32", [S], 104)
        a(f"v_mul_f32 {vr(S)}, 0x3b000000, {vr(S)}")
        for i in range(16):
            a(f"v_sub_f32 {vr(F + i)}, {vr(F + i)}, {vr(S)}")
        a(f"v_pk_mul_f32 v[104:105], {vr(F, 2)}, {vr(F, 2)}\nv_pk_mul_f32 v[106:107], {vr(F + 2, 2)}, {vr(F + 2, 2)}")
        for i in range(1, 4):
            a(f"v_pk_fma_f32 v[104:105], {vr(F + 4 * i, 2)}, {vr(F + 4 * i, 2)}, v[104:105]")
            a(f"v_pk_fma_f32 v[106:107], {vr(F + 4 * i + 2, 2)}, {vr(F + 4 * i + 2, 2)}, v[106:107]")
        a("v_pk_add_f32 v[104:105], v[104:105], v[106:107]\nv_add_f32 v108, v104, v105")
        self.red8x("v_add_f32", [108], 104)
        a("v_mul_f32 v108, 0x3b000000, v108")
        self.ln_finish(ST, S, 108)
        a("s_waitcnt vmcnt(16)")
        self.unpack(F, XO, 1)
        self.ln_apply2(F, ST, 8, 10)
        a("s_waitcnt lgkmcnt(0)")
        self.tag_consts()
        for u in range(8):
            a(f"v_mov_b32_dpp {vr(X + u)}, v8 row_newbcast:{u} row_mask:0xf bank_mask:0x3")
        for u in range(8):
            a(f"v_mov_b32_dpp {vr(X + u)}, v8 row_newbcast:{8 + u} row_mask:0xf bank_mask:0xc")
        a(f"v_mov_b32 v{MK}, 0xffffff00")

        def abuild(t):
            for m in range(4):
                a(f"v_perm_b32 {vr(A + 4 * (t & 1) + m)}, {vr(X + t // 2)}, {vr(X + t // 2)}, {vr(SEL + 2 * m + (t & 1))}")
        abuild(0)
        for t in range(16):
            if t < 15:
                abuild(t + 1)
            a(f"s_waitcnt vmcnt({15 - t})")
            a(f"v_mfma_f32_16x16x32_bf16 {vr(D, 4)}, {vr(A + 4 * (t & 1), 4)}, {vr(W + 4 * t, 4)}, {vr(D, 4) if t else 0}")
        a(f"s_lshl_b32 {sA}, {sH}, 13\ns_lshl_b32 {sB}, {sJ}, 9\ns_add_u32 {sA}, {sA}, {sB}\ns_add_u32 {sA}, {sA}, {WS_QP}")
        a(f"v_and_b32 v4, 15, v1\nv_lshl_add_u32 v4, v4, 5, {sA}\nv_bfe_u32 v5, v1, 4, 1\nv_lshl_add_u32 v4, v5, 4, v4")
        a("v_lshrrev_b32 v5, 5, v1\nv_lshl_add_u32 v4, v5, 12, v4")
        a(f"s_getreg_b32 {sC}, hwreg(HW_REG_XCC_ID, 0, 4)\ns_and_b32 {sD}, {sT}, 0xffffff00\ns_or_b32 {sC}, {sC}, {sD}")
        a(f"s_lshl_b32 {sA}, {sXCD}, 7\ns_add_u32 {sA}, {sA}, {WS_XT}\ns_lshr_b32 {sB}, s2, 3\ns_lshl_b32 {sB}, {sB}, 2\ns_add_u32 {sB}, {sB}, {sA}")
        a(f"v_mov_b32 v6, {sB}\nv_mov_b32 v7, {sC}")
        for i in range(4):
            a(f"v_add_u32 {vr(D + i)}, 0x80, {vr(D + i)}")
        self.tag4(D, MK)
        a(f"global_store_dwordx4 v4, {vr(D, 4)}, {sWS} sc1")
        a(f"s_mov_b64 exec, 1\nglobal_store_dword v6, v7, {sWS} sc1\ns_mov_b64 exec, -1")
        self.stamp(3)
        if self.probe in ("smax", "smin", "smed"):
            a(f"s_lshl_b32 {sB}, s2, 2\ns_add_u32 {sB}, {sB}, {WS_ST}\nv_mov_b32 v6, {sB}\nv_mov_b32 v7, s64\nglobal_store_dword v6, v7, {sWS} sc1")
        a(f"v_and_b32 v5, 31, v1\nv_lshl_add_u32 v5, v5, 2, {sA}")
        a(f"s_lshl_b32 {sA}, {sH}, 13\ns_lshr_b32 {sB}, {sJ}, 2\ns_lshl_b32 {sB}, {sB}, 12\ns_add_u32 {sA}, {sA}, {sB}\ns_add_u32 {sA}, {sA}, {WS_QP}")
        a(f"v_lshl_add_u32 v4, v1, 4, {sA}")
        a("s_barrier\ns_barrier")
        self.stamp(4)
        Gq, TT = 8, 24

        def loads():
            for n in range(4):
                a(f"global_load_dwordx4 {vr(Gq + 4 * n, 4)}, v4, {sWS} offset:{1024 * n} sc1")
            a(f"global_load_dword v32, v5, {sWS} sc1")

        def between():
            if self.optouch:
                a(f"s_lshl_b32 {sA}, {sH}, 12\ns_lshl_b32 {sB}, {sJ}, 9\ns_add_u32 {sA}, {sA}, {sB}\ns_add_u32 {sA}, {sA}, {WS_OP}")
                a(f"v_and_b32 v33, 7, v1\nv_lshl_add_u32 v33, v33, 6, {sA}\nglobal_load_dword v34, v33, {sWS} sc1")
            a("s_barrier")
        self.poll(loads, lambda: self.chk(TT, [Gq + 4 * n for n in range(4)]), between=between)
        self.stamp(5)
        a(f"v_cmp_ne_u32 vcc, {sC}, v32")
        for i in range(16):
            a(f"v_and_b32 {vr(Gq + i)}, {vr(MK)}, {vr(Gq + i)}")
        a(f"s_cmp_eq_u64 vcc, 0\ns_cselect_b32 {sA}, {3 if self.local else 1}, 1")
        for i in range(4):
            a(f"v_add_f32 {vr(Gq + i)}, {vr(Gq + i)}, {vr(Gq + 4 + i)}\nv_add_f32 {vr(Gq + 8 + i)}, {vr(Gq + 8 + i)}, {vr(Gq + 12 + i)}")
        for i in range(4):
            a(f"v_add_f32 {vr(Gq + i)}, {vr(Gq + i)}, {vr(Gq + 8 + i)}")
        a(f"v_permlane32_swap_b32 {vr(Gq)}, {vr(Gq + 2)}\nv_permlane32_swap_b32 {vr(Gq + 1)}, {vr(Gq + 3)}")
        a(f"v_add_f32 {vr(Gq)}, {vr(Gq)}, {vr(Gq + 2)}\nv_add_f32 {vr(Gq + 1)}, {vr(Gq + 1)}, {vr(Gq + 3)}")
        a(f"v_cvt_pk_bf16_f32 {vr(Gq)}, {vr(Gq)}, {vr(Gq + 1)}")
        a("v_and_b32 v4, 31, v1\nv_lshlrev_b32 v4, 3, v4\nv_lshrrev_b32 v5, 5, v1\nv_lshl_add_u32 v4, v5, 2, v4")
        a(f"v_mov_b32 v6, {L_QF}\nv_mov_b32 v7, {sA}")
        a(f"ds_write_b32 v4, {vr(Gq)} offset:{L_Q}\nds_write_b32 v6, v7")
        a("s_setprio 0")
        self.stamp(6)
        self.role("L_cwo", "L_chelp", "L_cffn", "L_cmon")

        def dma_loop(name, base, n0, n1, mstep, two=None, win=None):
            a(f"s_mov_b32 {sC}, {n0}\n{name}:")
            if win is not None:
                a(f"s_waitcnt vmcnt({win})")
            a(f"s_mov_b32 m0, {sD}\ns_add_u32 {sC}, {sC}, 1")
            a(f"global_load_lds_dwordx4 v4, {base} {wnt}")
            if two:
                a(f"s_add_u32 m0, {sD}, {L_U - L_G}\ns_add_u32 {sD}, {sD}, {mstep}")
                a(f"global_load_lds_dwordx4 v4, {two} {wnt}")
            else:
                a(f"s_add_u32 {sD}, {sD}, {mstep}")
            a(f"v_add_u32 v4, {sB}, v4\ns_cmp_lt_u32 {sC}, {n1}\ns_cbranch_scc1 {name}")

        a("L_cwo:")
        a(f"s_lshl_b32 {sA}, {sXCD}, 19\ns_lshl_b32 {sB}, {sF}, 6\ns_add_u32 {sB}, {sA}, {sB}")
        a(f"v_lshrrev_b32 v4, 2, v1\nv_lshlrev_b32 v4, 10, v4\nv_and_b32 v5, 3, v1\nv_lshl_add_u32 v4, v5, 4, v4\nv_add_u32 v8, {sB}, v4")
        for n in range(1, 32):
            a(f"v_add_u32 v{8 + n}, {n * 0x4000}, v8")
        a(f"s_lshl_b32 {sB}, {sF}, 14\ns_add_u32 {sA}, {sA}, {sB}\ns_add_u32 {sA}, {sA}, 4096\nv_lshl_add_u32 v4, v1, 6, {sA}\nv_add_u32 v5, 0x2000, v4")
        self.lds_wait(L_VCNT, 8, 6, 7)
        self.stamp(7)
        if "nowo" not in self.exp:
            for i in range(4):
                a(f"global_load_dword v{40 + i}, v{4 + i // 2}, {sWO} offset:{-4096 if i % 2 == 0 else 0}")
            for k, n in enumerate(list(range(16, 32)) + list(range(16))):
                a(f"s_mov_b32 m0, {L_W + n * GUP}")
                a(f"s_waitcnt vmcnt({self.wwin})" if k >= 8 else "s_nop 0")
                a(f"global_load_lds_dwordx4 v{8 + n}, {sWO} {wnt}")
        self.stamp(8)
        a(f"v_mov_b32 v6, {L_DMA}\nv_mov_b32 v7, 1\ns_waitcnt vmcnt(0)\nds_write_b32 v6, v7")
        self.stamp(9)
        self.end()

        a("L_chelp:")
        if self.helper:
            self.helper_code()
        self.end()

        a("L_cffn:")
        a("v_lshrrev_b32 v4, 2, v1\nv_mul_u32_u24 v4, 2752, v4\nv_and_b32 v5, 3, v1\nv_lshl_add_u32 v4, v5, 4, v4")
        a(f"s_lshl_b32 {sA}, {sF}, 6\nv_add_u32 v8, {sA}, v4")
        for n in range(1, 32):
            a(f"v_add_u32 v{8 + n}, {n * 16 * 2752}, v8")
        self.lds_wait(L_VCNT, 8, 6, 7)
        self.stamp(7)
        if "noffn" not in self.exp:
            for k in range(64):
                a(f"s_mov_b32 m0, {(L_U if k & 1 else L_G) + (k >> 1) * GUP}")
                a(f"s_waitcnt vmcnt({self.fwin})" if k > self.fwin else "s_nop 0")
                a(f"global_load_lds_dwordx4 v{8 + (k >> 1)}, {sWU if k & 1 else sWG} {wnt}")
        a(f"s_lshl_b32 {sA}, {sF}, 15\ns_add_u32 {sA}, {sA}, 4096\nv_lshl_add_u32 v8, v1, 4, {sA}")
        for n in range(1, 4):
            a(f"v_add_u32 v{8 + n}, {n * 8192}, v8")

        def down(win):
            for n in range(32):
                off = (n & 7) * 1024 - 4096
                a(f"s_mov_b32 m0, {L_D + n * ROWP - off}\n" + (f"s_waitcnt vmcnt({win})" if win else "s_nop 0"))
                a(f"global_load_lds_dwordx4 v{8 + (n >> 3)}, {sWD} offset:{off} {wnt}")
        if self.downearly and "noffn" not in self.exp:
            down(24)
        a(f"s_lshl_b32 {sA}, {sXCD}, 7\ns_add_u32 {sA}, {sA}, {WS_HT}\nv_and_b32 v4, 7, v1\nv_lshl_add_u32 v4, v4, 2, {sA}")
        a(f"v_mov_b32 v6, {L_DMA}\nv_mov_b32 v7, 1\ns_waitcnt vmcnt(0)\nds_write_b32 v6, v7")
        self.stamp(8)
        if self.hint:
            self.poll(lambda: a(f"global_load_dword v5, v4, {sWS} sc1"), lambda: a(f"v_cmp_ne_u32 vcc, {sT}, v5"))
        a(f"ds_write_b32 v6, v7 offset:{L_HINT - L_DMA}")
        self.stamp(10)
        if not self.downearly:
            self.lds_wait(L_YISS, 8, 12, 13)
            if "noffn" not in self.exp:
                down(0)
            a("s_barrier\ns_waitcnt vmcnt(0)")
            self.stamp(9)
            a("s_barrier")
        self.end()

        a("L_cmon:")
        if self.hint:
            a(f"s_cmp_eq_u32 {sA}, 6\ns_cbranch_scc1 L_ctouch\ns_cmp_lg_u32 {sA}, 7\ns_cbranch_scc1 L_none")
            a(f"s_lshl_b32 {sA}, {sXCD}, 9\ns_add_u32 {sA}, {sA}, {WS_ML}\nv_and_b32 v4, 31, v1\nv_lshl_add_u32 v4, v4, 4, {sA}")
            a(f"s_lshl_b32 {sA}, {sXCD}, 2\ns_add_u32 {sA}, {sA}, {WS_HT}\nv_lshl_add_u32 v5, v1, 7, {sA}\nv_mov_b32 v6, {sT}")
            self.lds_wait(L_PUB, 1, 12, 13)
            self.poll(lambda: a(f"global_load_dwordx4 v[8:11], v4, {sWS} sc1"), lambda: self.chk(12, [8]))
            for i in range(self.lag):
                a(f"global_load_dwordx4 v[8:11], v4, {sWS} sc1\ns_waitcnt vmcnt(0)")
            a(f"s_mov_b64 exec, 0xff\nglobal_store_dword v5, v6, {sWS} sc1")
            self.stamp(8)
            self.end()
            a("L_ctouch:")
            a(f"s_lshl_b32 {sA}, {sXCD}, 7\ns_add_u32 {sA}, {sA}, {WS_HT}\nv_and_b32 v4, 7, v1\nv_lshl_add_u32 v4, v4, 2, {sA}")
            a(f"v_and_b32 v5, 31, v1\nv_lshlrev_b32 v5, 6, v5\nv_lshrrev_b32 v6, 5, v1\nv_lshl_add_u32 v5, v6, 14, v5\nv_add_u32 v5, {WS_YP}, v5")
            self.lds_wait(L_PUB, 1, 12, 13)
            a(f"s_mov_b32 {sC}, 0\ns_mov_b32 {sSPIN}, 0\nL_ct0:")
            a(f"global_load_dword v8, v4, {sWS} sc1\ns_add_u32 {sSPIN}, {sSPIN}, 1\ns_cmp_gt_u32 {sSPIN}, {SPIN}\ns_cbranch_scc1 L_bail")
            a(f"s_waitcnt vmcnt(0)\nv_cmp_eq_u32 vcc, {sT}, v8\ns_and_b32 {sA}, vcc_lo, 0xff\ns_andn2_b32 {sB}, {sA}, {sC}\ns_mov_b32 {sC}, {sA}")
            a(f"L_ct1:\ns_cmp_eq_u32 {sB}, 0\ns_cbranch_scc1 L_ct2")
            a(f"s_ff1_i32_b32 {sD}, {sB}\ns_bitset0_b32 {sB}, {sD}\ns_lshl_b32 {sD}, {sD}, 11\nv_add_u32 v6, {sD}, v5\nglobal_load_dword v9, v6, {sWS} sc1\ns_branch L_ct1")
            a(f"L_ct2:\ns_cmp_lg_u32 {sC}, 0xff\ns_cbranch_scc1 L_ct0")
        self.end()

    def helper_code(self):
        a = self.a
        r0 = self.hrow0
        rows = (512 - r0) // 8
        a(f"s_lshl_b32 {sB}, {sXCD}, 19\ns_lshl_b32 {sC}, {sF}, 15\ns_add_u32 {sB}, {sB}, {sC}\ns_add_u32 {sB}, {sB}, 0x40000")
        a(f"v_lshl_add_u32 v4, v1, 6, {sB}\ns_movk_i32 {sD}, 4096")
        a(f"s_min_u32 {sB}, {sXCD}, 3\ns_mul_i32 {sC}, {sXCD}, 5\ns_add_u32 {sC}, {sC}, {sB}")
        a(f"s_mul_i32 {sB}, {sF}, {rows}\ns_add_u32 {sB}, {sB}, {r0}\ns_mul_i32 {sB}, {sB}, 2752\ns_lshl_b32 {sA}, {sC}, 6\ns_add_u32 {sB}, {sB}, {sA}")
        a("v_lshrrev_b32 v8, 3, v1\nv_mul_u32_u24 v8, 2752, v8\nv_and_b32 v5, 7, v1\nv_min_u32 v5, 5, v5\nv_lshl_add_u32 v8, v5, 6, v8")
        a(f"v_add_u32 v8, {sB}, v8")
        for i in range(1, rows // 8):
            a(f"v_add_u32 v{8 + i}, {i * 8 * 2752}, v8\nv_min_u32 v{8 + i}, {512 * 2752 - 4}, v{8 + i}")
        a(f"s_lshl_b32 {sC}, {sC}, 15\ns_mul_i32 {sA}, {sF}, {6 * 32768 // 8}\ns_add_u32 {sC}, {sC}, {sA}\nv_lshl_add_u32 v20, v1, 6, {sC}")
        for i in range(5, -1, -1):
            a(f"v_add_u32 v{20 + i}, {i * 4096}, v20\nv_min_u32 v{20 + i}, {1376 * 1024 - 4}, v{20 + i}")
        self.lds_wait(L_VCNT, 8, 6, 7)
        for i in range(8):
            a(f"global_load_dword v{48 + i}, v4, {sWO}\nv_add_u32 v4, {sD}, v4")
        if "noffn" in self.exp:
            return
        for i in range(rows // 8):
            a(f"s_waitcnt vmcnt(7)\nglobal_load_dword v{56 + 2 * i}, v{8 + i}, {sWG}\ns_waitcnt vmcnt(7)\nglobal_load_dword v{57 + 2 * i}, v{8 + i}, {sWU}")
        for i in range(6):
            a(f"s_waitcnt vmcnt(7)\nglobal_load_dword v{40 + i}, v{20 + i}, {sWD}")

    def stream(self):
        a = self.a
        nt = self.nt
        K, V, Q, P, T, SEL, D = 4, 36, 68, 72, 80, 88, 96
        MK, ADR, MREG, FAC = 100, 101, 102, 104
        a("L_stream:")
        if self.prefetch:
            a(f"s_cmp_lg_u32 {sW}, 1\ns_cbranch_scc1 L_nopf")
            a(f"s_getpc_b64 {sP}\nL_pc:\ns_sub_u32 s52, s52, L_pc-{KN}\ns_subb_u32 s53, s53, 0")
            a(f"s_lshr_b32 {sA}, s2, 3\ns_min_u32 {sA}, {sA}, (L_codeend-{KN})/1024\ns_lshl_b32 {sA}, {sA}, 10")
            a(f"v_lshl_add_u32 v3, v1, 4, {sA}\nglobal_load_dwordx4 {vr(124, 4)}, v3, {sP}")
            a("L_nopf:")
        a(f"s_lshr_b32 {sA}, {sJ}, 2\ns_lshl_b32 {sA}, {sA}, 25\ns_lshl_b32 {sB}, {sH}, 20\ns_add_u32 {sA}, {sA}, {sB}")
        a(f"s_and_b32 {sB}, {sJ}, 3\ns_lshl_b32 {sB}, {sB}, 16\ns_add_u32 {sA}, {sA}, {sB}\ns_lshl_b32 {sB}, {sW}, 13\ns_add_u32 {sA}, {sA}, {sB}")
        a(f"s_add_u32 {sA}, {sA}, {0xC0000 + 4096 - 8192}\nv_lshl_add_u32 v2, v1, 4, {sA}")
        a("s_waitcnt lgkmcnt(0)")
        if self.b0:
            a("s_barrier")
        self.stamp(1)
        for t in range(8):
            if t == self.nk0:
                a("s_barrier")
            if t == self.nk1:
                a("s_barrier\ns_barrier")
            a(f"global_load_dwordx4 {vr(K + 4 * t, 4)}, v2, {sK} offset:{1024 * t - 4096} {nt}")
        self.stamp(2)
        if self.nk1 == 8:
            a("s_barrier\ns_barrier")
        for t in range(8):
            a(f"global_load_dwordx4 {vr(V + 4 * t, 4)}, v2, {sV} offset:{1024 * t - 4096} {nt}")
        self.lds_inc(L_VCNT, T, T + 1)
        self.stamp(3)
        a(f"s_load_dword {sT}, {sWS}, 0")
        self.sw = sW if not self.diag else "s56"
        sw = self.sw
        a(f"s_sub_u32 {sw}, {sW}, 1")
        self.selectors(SEL, T, 4, bits=3)
        a("v_and_b32 v3, 15, v1\nv_lshlrev_b32 v3, 4, v3")
        a(f"s_mov_b32 {sK1}, 0x3db504f3\ns_mov_b32 {sK2}, 0x3fb8aa3b")
        a(f"v_bfe_u32 {vr(ADR)}, v1, 4, 1\nv_lshlrev_b32 {vr(ADR)}, 6, {vr(ADR)}\nv_lshl_add_u32 {vr(ADR)}, v3, 3, {vr(ADR)}")
        a(f"s_lshl_b32 {sA}, {sH}, 12\ns_lshr_b32 {sB}, {sJ}, 2\ns_lshl_b32 {sB}, {sB}, 11\ns_add_u32 {sA}, {sA}, {sB}")
        a(f"s_and_b32 {sB}, {sJ}, 3\ns_lshl_b32 {sB}, {sB}, 4\ns_add_u32 {sA}, {sA}, {sB}\ns_add_u32 {sA}, {sA}, {WS_OP}\nv_add_u32 {vr(ADR)}, {sA}, {vr(ADR)}")
        a(f"s_lshl_b32 {sA}, {sH}, 7\ns_lshl_b32 {sB}, {sJ}, 4\ns_add_u32 {sA}, {sA}, {sB}\ns_add_u32 {sA}, {sA}, {WS_ML}\nv_mov_b32 {vr(T)}, {sA}")
        a(f"v_cmp_lt_u32 {sM0}, 31, v1\nv_mov_b32 {vr(MK)}, 0xffffff00\nv_cndmask_b32 {vr(ADR)}, {vr(ADR)}, {vr(T)}, {sM0}")
        for t in range(8):
            a(f"v_mov_b32 {vr(P + t)}, 0")
        self.lds_wait(L_QF, 1, T, T + 1)
        self.stamp(4)
        a(f"ds_read_b128 {vr(Q, 4)}, v3 offset:{L_Q}")
        a(f"s_mov_b32 {sLOC}, {sA}")
        self.tag_consts()
        a("s_waitcnt vmcnt(8) lgkmcnt(0)")
        for i in range(4):
            for t in range(8):
                a(f"v_dot2c_f32_bf16 {vr(P + t)}, {vr(K + 4 * t + i)}, {vr(Q + i)}")
        for u in range(4):
            a(f"v_add_f32_dpp {vr(P + u)}, {vr(P + u)}, {vr(P + u)} row_ror:8 row_mask:0xf bank_mask:0x3")
        for u in range(4):
            a(f"v_add_f32_dpp {vr(P + u)}, {vr(P + u + 4)}, {vr(P + u + 4)} row_ror:8 row_mask:0xf bank_mask:0xc")
        for u in range(2):
            a(f"v_add_f32_dpp {vr(P + u)}, {vr(P + u)}, {vr(P + u)} row_shl:4 row_mask:0xf bank_mask:0x5")
        for u in range(2):
            a(f"v_add_f32_dpp {vr(P + u)}, {vr(P + u + 2)}, {vr(P + u + 2)} row_shr:4 row_mask:0xf bank_mask:0xa")
        self.dppred("v_add_f32", [P, P + 1], ("quad_perm:[1,0,3,2]", "quad_perm:[2,3,0,1]"))
        self.bf16r(P, P)
        self.bf16r(P + 1, P + 1)
        a(f"v_mul_f32 {vr(P)}, {sK1}, {vr(P)}\nv_mul_f32 {vr(P + 1)}, {sK1}, {vr(P + 1)}")
        self.bf16r(P, P)
        self.bf16r(P + 1, P + 1)
        a(f"v_max_f32 {vr(MREG)}, {vr(P)}, {vr(P + 1)}")
        self.dppred("v_max_f32", [MREG], ("row_ror:4", "row_ror:8"))
        self.redrows("v_max_f32", [MREG], T + 1)
        a(f"s_lshl_b32 {sA}, {sw}, 2\nv_mov_b32 {vr(T + 7)}, {sA}\nds_write_b32 {vr(T + 7)}, {vr(MREG)} offset:{L_MAX}")
        self.lds_inc(L_MCNT, T, T + 1)
        self.stamp(5)
        a(f"v_mul_f32 {vr(T)}, {sK2}, {vr(MREG)}")
        a(f"v_fma_f32 {vr(P)}, {vr(P)}, {sK2}, -{vr(T)}\nv_fma_f32 {vr(P + 1)}, {vr(P + 1)}, {sK2}, -{vr(T)}")
        a(f"v_exp_f32 {vr(P)}, {vr(P)}\nv_exp_f32 {vr(P + 1)}, {vr(P + 1)}")
        a(f"v_cvt_pk_bf16_f32 {vr(T)}, {vr(P)}, {vr(P + 1)}\nv_add_f32 {vr(P)}, {vr(P)}, {vr(P + 1)}")
        for u in range(4):
            a(f"v_mov_b32_dpp {vr(Q + u)}, {vr(T)} row_newbcast:{4 * u} {FULL}")
        self.dppred("v_add_f32", [P], ("row_ror:4", "row_ror:8"))
        self.redrows("v_add_f32", [P], P + 1)
        for t in range(8):
            for m in range(4):
                a(f"v_perm_b32 {vr(K + 4 * t + m)}, {vr(Q + t // 2)}, {vr(Q + t // 2)}, {vr(SEL + 2 * m + (t & 1))}")
        self.lds_wait(L_MCNT, 8, T, T + 1)
        a(f"v_mov_b32 {vr(T + 2)}, 0")
        a(f"ds_read_b128 {vr(Q, 4)}, {vr(T + 2)} offset:{L_MAX}\nds_read_b128 {vr(P + 4, 4)}, {vr(T + 2)} offset:{L_MAX + 16}")
        a(f"s_lshl_b32 {sA}, {sw}, 9\nv_lshl_add_u32 v3, v1, 4, {sA}\nv_mov_b32 {vr(T)}, {L_CNT}\nv_mov_b32 {vr(T + 1)}, 1")
        a(f"v_and_b32 {vr(T + 3)}, 31, v1\nv_lshlrev_b32 {vr(T + 3)}, 4, {vr(T + 3)}\nv_lshrrev_b32 {vr(T + 4)}, 5, v1\nv_lshl_add_u32 {vr(T + 3)}, {vr(T + 4)}, 11, {vr(T + 3)}")
        a("s_waitcnt lgkmcnt(0)")
        a(f"v_max3_f32 {vr(Q)}, {vr(Q)}, {vr(Q + 1)}, {vr(Q + 2)}\nv_max3_f32 {vr(Q + 3)}, {vr(Q + 3)}, {vr(P + 4)}, {vr(P + 5)}")
        a(f"v_max3_f32 {vr(Q)}, {vr(Q)}, {vr(P + 6)}, {vr(P + 7)}\nv_max_f32 {vr(Q)}, {vr(Q)}, {vr(Q + 3)}")
        a(f"v_sub_f32 {vr(FAC)}, {vr(MREG)}, {vr(Q)}\nv_mul_f32 {vr(FAC)}, {sK2}, {vr(FAC)}\nv_exp_f32 {vr(FAC)}, {vr(FAC)}\nv_mov_b32 {vr(MREG)}, {vr(Q)}")
        a(f"v_mul_f32 {vr(P)}, {vr(P)}, {vr(FAC)}\nv_mov_b32 {vr(FAC + 1)}, {vr(FAC)}")
        a(f"ds_write_b32 {vr(T + 7)}, {vr(P)} offset:{L_SUM}")
        self.stamp(6)
        for t in range(8):
            a(f"s_waitcnt vmcnt({7 - t})")
            a(f"v_mfma_f32_16x16x32_bf16 {vr(D, 4)}, {vr(K + 4 * t, 4)}, {vr(V + 4 * t, 4)}, {vr(D, 4) if t else 0}")
        self.stamp(7)
        a("s_mov_b32 exec_hi, 0")
        a(f"v_pk_mul_f32 {vr(D, 2)}, {vr(D, 2)}, {vr(FAC, 2)}\nv_pk_mul_f32 {vr(D + 2, 2)}, {vr(D + 2, 2)}, {vr(FAC, 2)}")
        a(f"ds_write_b128 v3, {vr(D, 4)} offset:{L_OP}")
        a("s_mov_b32 exec_lo, 1")
        a(f"ds_add_rtn_u32 {vr(T + 5)}, {vr(T)}, {vr(T + 1)}")
        a("s_waitcnt lgkmcnt(0)")
        a(f"v_readfirstlane_b32 {sA}, {vr(T + 5)}\ns_mov_b64 exec, -1")
        a(f"s_cmp_lg_u32 {sA}, 7\ns_cbranch_scc1 L_role")
        for n in range(4):
            a(f"ds_read_b128 {vr(K + 4 * n, 4)}, {vr(T + 3)} offset:{L_OP + 512 * n}")
        a(f"ds_read_b128 {vr(K + 16, 4)}, {vr(T + 2)} offset:{L_SUM}\nds_read_b128 {vr(K + 20, 4)}, {vr(T + 2)} offset:{L_SUM + 16}")
        a(f"s_cmp_eq_u32 {sLOC}, 3")
        a("s_waitcnt lgkmcnt(0)")
        for i in (0, 2):
            a(f"v_pk_add_f32 {vr(K + i, 2)}, {vr(K + i, 2)}, {vr(K + 4 + i, 2)}\nv_pk_add_f32 {vr(K + 8 + i, 2)}, {vr(K + 8 + i, 2)}, {vr(K + 12 + i, 2)}")
        a(f"v_pk_add_f32 {vr(K + 16, 2)}, {vr(K + 16, 2)}, {vr(K + 18, 2)}\nv_pk_add_f32 {vr(K + 20, 2)}, {vr(K + 20, 2)}, {vr(K + 22, 2)}")
        for i in (0, 2):
            a(f"v_pk_add_f32 {vr(K + i, 2)}, {vr(K + i, 2)}, {vr(K + 8 + i, 2)}")
        a(f"v_pk_add_f32 {vr(K + 16, 2)}, {vr(K + 16, 2)}, {vr(K + 20, 2)}")
        for i in range(4):
            a(f"v_permlane32_swap_b32 {vr(K + i)}, {vr(K + 4 + i)}")
        a(f"v_add_f32 {vr(K + 16)}, {vr(K + 16)}, {vr(K + 17)}")
        for i in (0, 2):
            a(f"v_pk_add_f32 {vr(K + i, 2)}, {vr(K + i, 2)}, {vr(K + 4 + i, 2)}")
        a(f"v_cndmask_b32 {vr(K)}, {vr(K)}, {vr(MREG)}, {sM0}\nv_cndmask_b32 {vr(K + 1)}, {vr(K + 1)}, {vr(K + 16)}, {sM0}")
        self.tag4(K, MK)
        a("s_mov_b32 exec_hi, 1\ns_cbranch_scc1 L_publoc")
        a(f"global_store_dwordx4 {vr(ADR)}, {vr(K, 4)}, {sWS} sc1\ns_branch L_pubdone")
        a(f"L_publoc:\nglobal_store_dwordx4 {vr(ADR)}, {vr(K, 4)}, {sWS}")
        a("L_pubdone:\ns_mov_b32 exec_hi, -1")
        a(f"ds_write_b32 {vr(T)}, {vr(T + 1)} offset:{L_PUB - L_CNT}")
        self.stamp(8)
        a("L_role:")
        self.role("L_wo", "L_none", "L_ffn", "L_none")

    def role_wo(self):
        a = self.a
        sw = self.sw
        MK = 100
        B, D, O, ML, X, T, AO, AM, AW, AR, AY = 4, 20, 36, 44, 48, 52, 60, 61, 62, 63, 64
        a("L_wo:")
        a(f"v_lshrrev_b32 v2, 4, v1\nv_bfe_u32 {vr(T)}, v1, 3, 1\nv_and_b32 {vr(T + 1)}, 3, v1\nv_bfe_u32 {vr(T + 2)}, v1, 4, 1\nv_lshrrev_b32 {vr(T + 3)}, 5, v1")
        a(f"s_lshl_b32 {sA}, {sw}, 2\nv_add_u32 v3, {sA}, {vr(T + 3)}\nv_mul_u32_u24 v3, {GUP}, v3\nv_lshl_add_u32 v3, {vr(T + 2)}, 9, v3")
        a(f"v_bfe_u32 {vr(T + 4)}, v1, 2, 2\nv_lshl_add_u32 v3, {vr(T + 4)}, 6, v3\nv_lshl_add_u32 v3, {vr(T + 1)}, 3, v3")
        a(f"s_lshl_b32 {sA}, {sXCD}, 2\ns_lshr_b32 {sB}, {sw}, 1\ns_add_u32 {sA}, {sA}, {sB}")
        a(f"s_lshl_b32 {sB}, {sA}, 7\ns_add_u32 {sB}, {sB}, {WS_ML}\nv_lshl_add_u32 {vr(AM)}, {vr(T)}, 2, {vr(T + 1)}\nv_lshl_add_u32 {vr(AM)}, {vr(AM)}, 4, {sB}")
        a(f"s_lshl_b32 {sA}, {sA}, 12\ns_and_b32 {sB}, {sw}, 1\ns_lshl_b32 {sB}, {sB}, 10\ns_add_u32 {sA}, {sA}, {sB}\ns_add_u32 {sA}, {sA}, {WS_OP}")
        a(f"v_bfe_u32 {vr(AO)}, v1, 2, 1\nv_lshl_add_u32 {vr(AO)}, {vr(AO)}, 2, v2\nv_lshlrev_b32 {vr(AO)}, 7, {vr(AO)}")
        a(f"v_lshl_add_u32 {vr(AO)}, {vr(T)}, 11, {vr(AO)}\nv_lshl_add_u32 {vr(AO)}, {vr(T + 1)}, 4, {vr(AO)}\nv_add_u32 {vr(AO)}, {sA}, {vr(AO)}")
        a(f"v_and_b32 {vr(AR)}, 15, v1\nv_lshlrev_b32 {vr(AW)}, 2, {vr(AR)}\nv_lshl_add_u32 {vr(AW)}, {vr(T + 3)}, 7, {vr(AW)}\nv_lshl_add_u32 {vr(AW)}, {vr(T + 2)}, 8, {vr(AW)}")
        a(f"s_lshl_b32 {sA}, {sw}, 9\ns_add_u32 {sA}, {sA}, {L_RED}\nv_add_u32 {vr(AW)}, {sA}, {vr(AW)}")
        a(f"v_lshlrev_b32 {vr(AR)}, 4, {vr(AR)}\nv_lshl_add_u32 {vr(AR)}, v2, 10, {vr(AR)}")
        a(f"s_lshl_b32 {sA}, {sXCD}, 11\ns_lshl_b32 {sB}, {sF}, 7\ns_add_u32 {sA}, {sA}, {sB}\ns_add_u32 {sA}, {sA}, {WS_YP}")
        a(f"v_and_b32 {vr(AY)}, 7, v1\nv_lshl_add_u32 {vr(AY)}, {vr(AY)}, 4, {sA}\nv_lshl_add_u32 {vr(AY)}, {vr(T)}, 14, {vr(AY)}")
        a(f"v_cmp_eq_u32 {sM1}, 1, {vr(T + 2)}")
        self.poll(lambda: a(f"global_load_dwordx4 {vr(ML, 4)}, {vr(AM)}, {sWS} sc1"), lambda: self.chk(T, [ML]))
        self.stamp(10)

        def weights():
            a(f"v_and_b32 {vr(ML)}, {vr(MK)}, {vr(ML)}\nv_and_b32 {vr(ML + 1)}, {vr(MK)}, {vr(ML + 1)}")
            a(f"v_max_f32_dpp {vr(ML + 2)}, {vr(ML)}, {vr(ML)} quad_perm:[1,0,3,2] {FULL}")
            a(f"v_max_f32_dpp {vr(ML + 2)}, {vr(ML + 2)}, {vr(ML + 2)} quad_perm:[2,3,0,1] {FULL}")
            a(f"v_sub_f32 {vr(ML)}, {vr(ML)}, {vr(ML + 2)}\nv_mul_f32 {vr(ML)}, {sK2}, {vr(ML)}\nv_exp_f32 {vr(ML)}, {vr(ML)}")
            a(f"v_mul_f32 {vr(ML + 1)}, {vr(ML + 1)}, {vr(ML)}")
            self.dppred("v_add_f32", [ML + 1], ("quad_perm:[1,0,3,2]", "quad_perm:[2,3,0,1]"))
            a(f"v_rcp_f32 {vr(ML + 1)}, {vr(ML + 1)}\nv_mul_f32 {vr(ML)}, {vr(ML)}, {vr(ML + 1)}")
            self.lds_wait(L_DMA, 1, T + 6, T + 7, tight=True)
            a(f"s_mov_b32 {sSPIN}, 0")
            self.stamp(9)
            for t in range(2):
                for ct in range(2):
                    for hh in range(2):
                        a(f"ds_read_b64_tr_b16 {vr(B + 8 * t + 4 * ct + 2 * hh, 2)}, v3 offset:{L_W + t * 2 * GUP + hh * 256 + ct * 32}")

        def oloads():
            a(f"global_load_dwordx4 {vr(O, 4)}, {vr(AO)}, {sWS} sc1\nglobal_load_dwordx4 {vr(O + 4, 4)}, {vr(AO)}, {sWS} offset:64 sc1")
        self.poll(oloads, lambda: self.chk(T, [O, O + 4]), between=weights)
        self.stamp(11)
        self.count(1)
        for i in range(8):
            a(f"v_and_b32 {vr(O + i)}, {vr(MK)}, {vr(O + i)}")
        for i in range(8):
            a(f"v_mul_f32 {vr(O + i)}, {vr(O + i)}, {vr(ML)}")
        self.dppred("v_add_f32", range(O, O + 8), ("quad_perm:[1,0,3,2]", "quad_perm:[2,3,0,1]"))
        for u in range(4):
            a(f"v_cvt_pk_bf16_f32 {vr(X + u)}, {vr(O + 2 * u)}, {vr(O + 2 * u + 1)}")
        a("s_waitcnt lgkmcnt(0)")
        for ct in range(2):
            for t in range(2):
                a(f"v_mfma_f32_16x16x32_bf16 {vr(D + 8 * ct + 4 * t, 4)}, {vr(X, 4)}, {vr(B + 8 * t + 4 * ct, 4)}, 0")
        for ct in range(2):
            a(f"v_cndmask_b32 {vr(O + ct)}, {vr(D + 8 * ct)}, {vr(D + 8 * ct + 4)}, {sM1}")
        a(f"ds_write2_b32 {vr(AW)}, {vr(O)}, {vr(O + 1)} offset0:0 offset1:16\ns_waitcnt lgkmcnt(0)\ns_barrier")
        a(f"s_cmp_lg_u32 {sw}, 0\ns_cbranch_scc1 L_none")
        for n in range(4):
            a(f"ds_read_b128 {vr(B + 4 * n, 4)}, {vr(AR)} offset:{L_RED + 256 * n}")
        a("s_waitcnt lgkmcnt(0)")
        for i in (0, 2):
            a(f"v_pk_add_f32 {vr(B + i, 2)}, {vr(B + i, 2)}, {vr(B + 4 + i, 2)}\nv_pk_add_f32 {vr(B + 8 + i, 2)}, {vr(B + 8 + i, 2)}, {vr(B + 12 + i, 2)}")
        for i in (0, 2):
            a(f"v_pk_add_f32 {vr(B + i, 2)}, {vr(B + i, 2)}, {vr(B + 8 + i, 2)}")
        for swp in ("v_permlane32_swap_b32", "v_permlane16_swap_b32"):
            for i in range(4):
                a(f"{swp} {vr(B + i)}, {vr(B + 4 + i)}")
            for i in (0, 2):
                a(f"v_pk_add_f32 {vr(B + i, 2)}, {vr(B + i, 2)}, {vr(B + 4 + i, 2)}")
        self.tag4(B, MK)
        a("s_mov_b64 exec, 0xffff")
        a(f"global_store_dwordx4 {vr(AY)}, {vr(B, 4)}, {sWS} sc1")
        self.stamp(12)
        self.end()

    def role_ffn(self):
        a = self.a
        sw = self.sw
        BG, BD, F, D, ST, XF = 4, 68, 84, 116, 120, 126
        MK, AY, XR, ADR, AH, AHN, AS, ASW, AA, AAW, AAR, AF, FM, AO, HV = 128, 130, 132, 134, 135, 136, 137, 138, 139, 140, 141, 142, 144, 145, 146
        HNS = 1088
        a("L_ffn:")
        g, b3, q4, r2, hi, b4 = F, F + 1, F + 2, F + 3, F + 4, F + 5
        a(f"v_mov_b32 {vr(MK)}, 0xffffff00")
        a(f"v_lshrrev_b32 {vr(g)}, 4, v1\nv_bfe_u32 {vr(b3)}, v1, 3, 1\nv_and_b32 {vr(q4)}, 3, v1\nv_bfe_u32 {vr(r2)}, v1, 2, 2\nv_lshrrev_b32 {vr(hi)}, 5, v1\nv_bfe_u32 {vr(b4)}, v1, 4, 1")
        a(f"s_lshl_b32 {sA}, {sw}, 4\nv_and_b32 v3, 15, v1\nv_add_u32 v3, {sA}, v3")
        a(f"v_lshlrev_b32 {vr(AHN)}, 3, v3\nv_lshl_add_u32 {vr(AHN)}, {vr(b4)}, 2, {vr(AHN)}\nv_lshl_add_u32 {vr(AH)}, {vr(hi)}, 10, {vr(AHN)}")
        a(f"global_load_dword {vr(XR)}, {vr(AH)}, {sX}")
        a(f"v_mul_u32_u24 v2, {HNS}, {vr(hi)}\nv_add_u32 {vr(AHN)}, v2, {vr(AHN)}")
        a(f"v_lshlrev_b32 {vr(AY)}, 4, v3\nv_lshl_add_u32 {vr(AY)}, {vr(hi)}, 14, {vr(AY)}\nv_lshl_add_u32 {vr(AY)}, {vr(b4)}, 11, {vr(AY)}\nv_bfe_u32 v3, v1, 2, 1")
        a(f"v_add_u32 {vr(AY + 1)}, {WS_YP + 12288}, {vr(AY)}\nv_add_u32 {vr(AY)}, {WS_YP + 4096}, {vr(AY)}")
        a(f"s_lshl_b32 {sA}, {sw}, 3\nv_lshlrev_b32 {vr(AS)}, 6, {vr(hi)}\nv_add_u32 {vr(ASW)}, {sA}, {vr(AS)}")
        a(f"v_and_b32 {vr(AA)}, 1, v1\nv_mul_u32_u24 {vr(AA)}, {HNS}, {vr(AA)}\nv_lshl_add_u32 {vr(AA)}, {vr(g)}, 4, {vr(AA)}")
        a(f"v_lshlrev_b32 {vr(AAR)}, 6, v3\nv_lshl_add_u32 {vr(AAR)}, {vr(g)}, 4, {vr(AAR)}")
        a(f"v_and_b32 {vr(AAW)}, 7, v1\nv_lshlrev_b32 {vr(AAW)}, 1, {vr(AAW)}\nv_lshl_add_u32 {vr(AAW)}, {vr(b4)}, 6, {vr(AAW)}\ns_lshl_b32 {sA}, {sw}, 4\nv_add_u32 {vr(AAW)}, {sA}, {vr(AAW)}")
        a(f"s_lshl_b32 {sB}, {sw}, 1\nv_add_u32 {vr(ADR)}, {sB}, {vr(hi)}\nv_lshl_add_u32 {vr(ADR)}, {vr(ADR)}, 1, v3\nv_mul_u32_u24 {vr(ADR)}, {FP_STRIDE}, {vr(ADR)}")
        a(f"s_lshl_b32 {sB}, {sF}, 7\ns_add_u32 {sB}, {sB}, {WS_FP}\nv_lshl_add_u32 {vr(ADR)}, {vr(q4)}, 4, {vr(ADR)}\nv_lshl_add_u32 {vr(ADR)}, {vr(b4)}, 6, {vr(ADR)}\nv_add_u32 {vr(ADR)}, {sB}, {vr(ADR)}")
        a(f"v_bfe_u32 v2, v1, 1, 1\nv_mul_u32_u24 v2, {L_U - L_G}, v2\nv_mul_u32_u24 v3, {GUP}, {vr(hi)}\nv_add_u32 v2, v2, v3")
        a(f"v_lshl_add_u32 v2, {vr(b4)}, 9, v2\nv_lshl_add_u32 v2, {vr(r2)}, 6, v2\nv_and_b32 v3, 1, v1\nv_lshl_add_u32 v2, v3, 3, v2")
        a(f"s_and_b32 {sA}, {sw}, 3\ns_lshl_b32 {sA}, {sA}, 4\nv_add_u32 v2, {sA}, v2")
        a(f"v_lshl_add_u32 v3, {vr(g)}, 3, {vr(r2)}\nv_mul_u32_u24 v3, {ROWP}, v3\nv_lshl_add_u32 v3, {vr(q4)}, 5, v3\ns_lshl_b32 {sB}, {sw}, 7\ns_add_u32 {sB}, {sB}, {L_D}\nv_add_u32 v3, {sB}, v3")
        a(f"s_mul_i32 {sB}, {sF}, {FP_STRIDE}\ns_lshl_b32 {sC}, {sw}, 6\ns_add_u32 {sB}, {sB}, {sC}\ns_add_u32 {sB}, {sB}, {WS_FP}")
        a(f"v_lshrrev_b32 {vr(AF)}, 2, v1\nv_lshlrev_b32 {vr(AF)}, 7, {vr(AF)}\nv_lshl_add_u32 {vr(AF)}, {vr(q4)}, 4, {vr(AF)}\nv_add_u32 {vr(AF)}, {sB}, {vr(AF)}")
        a(f"v_cmp_gt_u32 vcc, 44, v1\nv_add_u32 {vr(AF + 1)}, 4096, {vr(AF)}\nv_cndmask_b32 {vr(AF + 1)}, {vr(AF)}, {vr(AF + 1)}, vcc\nv_cndmask_b32 {vr(FM)}, 0, {vr(MK)}, vcc")
        a(f"s_and_b32 {sB}, {sF}, 1\ns_lshl_b32 {sB}, {sB}, 9\ns_lshr_b32 {sC}, {sF}, 1\ns_lshl_b32 {sC}, {sC}, 5\ns_add_u32 {sB}, {sB}, {sC}\ns_lshl_b32 {sC}, {sw}, 4\ns_add_u32 {sB}, {sB}, {sC}")
        a(f"v_lshl_add_u32 {vr(AO)}, {vr(b4)}, 1, {vr(hi)}\nv_lshl_add_u32 {vr(AO)}, {vr(q4)}, 2, {vr(AO)}\nv_add_u32 {vr(AO)}, {sB}, {vr(AO)}\nv_lshlrev_b32 {vr(AO)}, 1, {vr(AO)}")
        a(f"v_cmp_eq_u32 {sM1}, 1, {vr(b4)}")
        a(f"s_mov_b32 {sK1}, 0x3d372713\ns_mov_b32 {sK3}, 0xc0135761")
        self.lds_wait(L_HINT, 1, F + 16, F + 17, tight=True)
        self.stamp(9)

        def loads():
            for n in range(4):
                a(f"global_load_dwordx4 {vr(F + 4 * n, 4)}, {vr(AY + n // 2)}, {sWS} offset:{-4096 if n % 2 == 0 else 0} sc1")

        def bdreads():
            for n in range(4):
                for hh in range(2):
                    a(f"ds_read_b64_tr_b16 {vr(BD + 4 * n + 2 * hh, 2)}, v3 offset:{hh * 4 * ROWP + n * 8}")

        def shadow():
            if self.downearly:
                bdreads()
            else:
                self.lds_inc(L_YISS, F + 16, F + 17)
            a(f"s_cmp_gt_u32 {sw}, 3\ns_cbranch_scc1 L_fnog")
            for t in range(16):
                for hh in range(2):
                    a(f"ds_read_b64_tr_b16 {vr(BG + 4 * t + 2 * hh, 2)}, v2 offset:{L_G + t * 2 * GUP + hh * 256}")
            a("L_fnog:\ns_waitcnt vmcnt(4)")
            self.unpack(XF, XR, 1)
        self.poll(loads, lambda: self.chk(F + 16, [F + 4 * n for n in range(4)]), between=shadow)
        self.stamp(10)
        self.count(1)
        for i in range(16):
            a(f"v_and_b32 {vr(F + i)}, {vr(MK)}, {vr(F + i)}")
        for i in (0, 2):
            a(f"v_pk_add_f32 {vr(F + i, 2)}, {vr(F + i, 2)}, {vr(F + 4 + i, 2)}\nv_pk_add_f32 {vr(F + 8 + i, 2)}, {vr(F + 8 + i, 2)}, {vr(F + 12 + i, 2)}")
        for i in (0, 2):
            a(f"v_pk_add_f32 {vr(F + i, 2)}, {vr(F + i, 2)}, {vr(F + 8 + i, 2)}")
        a(f"v_permlane16_swap_b32 {vr(F)}, {vr(F + 2)}\nv_permlane16_swap_b32 {vr(F + 1)}, {vr(F + 3)}")
        a(f"v_pk_add_f32 {vr(F, 2)}, {vr(F, 2)}, {vr(F + 2, 2)}")
        self.bf16r(F, F)
        self.bf16r(F + 1, F + 1)
        a(f"v_pk_add_f32 {vr(F + 2, 2)}, {vr(F, 2)}, {vr(XF, 2)}")
        self.bf16r(F, F + 2)
        self.bf16r(F + 1, F + 3)
        S = F + 6
        a(f"v_add_f32 {vr(S)}, {vr(F)}, {vr(F + 1)}\nv_mul_f32 {vr(S + 1)}, {vr(F)}, {vr(F)}\nv_fmac_f32 {vr(S + 1)}, {vr(F + 1)}, {vr(F + 1)}")
        a(f"v_cvt_pk_bf16_f32 {vr(F + 4)}, {vr(F + 2)}, {vr(F + 3)}")
        self.dppred("v_add_f32", [S, S + 1], [f"row_ror:{r}" for r in (1, 2, 4, 8)])
        a(f"ds_write_b32 {vr(AH)}, {vr(F + 4)} offset:{L_H}")
        for r in (S, S + 1):
            a(f"v_add_f32_dpp {vr(r)}, {vr(r)}, {vr(r)} row_bcast:15 row_mask:0xa bank_mask:0xf")
        a(f"s_mov_b32 exec_lo, 0x10000\ns_mov_b32 exec_hi, 0x10000\nds_write_b64 {vr(ASW)}, {vr(S, 2)} offset:{L_STAT}")
        a("s_mov_b64 exec, -1\ns_waitcnt lgkmcnt(0)\ns_barrier")
        self.stamp(11)
        for n in range(4):
            a(f"ds_read_b128 {vr(F + 8 + 4 * n, 4)}, {vr(AS)} offset:{L_STAT + 16 * n}")
        a(f"ds_read_u16 {vr(HV)}, {vr(AO)} offset:{L_H}")
        a("s_waitcnt lgkmcnt(0)")
        for n in range(4):
            a(f"v_pk_add_f32 {vr(F + 8 + 4 * n, 2)}, {vr(F + 8 + 4 * n, 2)}, {vr(F + 10 + 4 * n, 2)}")
        a(f"v_pk_add_f32 {vr(F + 8, 2)}, {vr(F + 8, 2)}, {vr(F + 12, 2)}\nv_pk_add_f32 {vr(F + 16, 2)}, {vr(F + 16, 2)}, {vr(F + 20, 2)}")
        a(f"v_pk_add_f32 {vr(F + 8, 2)}, {vr(F + 8, 2)}, {vr(F + 16, 2)}")
        a(f"v_mul_f32 {vr(F + 8)}, 0x3b000000, {vr(F + 8)}\nv_mul_f32 {vr(F + 9)}, 0x3b000000, {vr(F + 9)}")
        a(f"v_fma_f32 {vr(F + 9)}, -{vr(F + 8)}, {vr(F + 8)}, {vr(F + 9)}\nv_max_f32 {vr(F + 9)}, 0, {vr(F + 9)}")
        self.ln_finish(ST, F + 8, F + 9)
        self.ln_apply2(F, ST, XF, F + 4)
        a(f"ds_write_b32 {vr(AHN)}, {vr(XF)} offset:{L_HN}\ns_waitcnt lgkmcnt(0)\ns_barrier")
        if self.downearly:
            a(f"s_cmp_gt_u32 {sw}, 3\ns_cbranch_scc1 L_fact")
        else:
            a(f"s_cmp_lt_u32 {sw}, 4\ns_cbranch_scc1 L_fgu")
            bdreads()
            a("s_branch L_fact\nL_fgu:")
        for t in range(8):
            a(f"ds_read_b128 {vr(F + 4 * t, 4)}, {vr(AA)} offset:{L_HN + 64 * t}")
        for t in range(16):
            a(f"s_waitcnt lgkmcnt({min(7, 15 - t)})")
            a(f"v_mfma_f32_16x16x32_bf16 {vr(D, 4)}, {vr(F + 4 * (t % 8), 4)}, {vr(BG + 4 * t, 4)}, {vr(D, 4) if t else 0}")
            if t < 8:
                a(f"ds_read_b128 {vr(F + 4 * t, 4)}, {vr(AA)} offset:{L_HN + 64 * (t + 8)}")
        G = BG
        if not self.downearly:
            bdreads()
        a(f"v_cndmask_b32 {vr(G)}, {vr(D)}, {vr(D + 1)}, {sM1}")
        self.bf16r(G, G)
        a(f"v_mul_f32 {vr(G + 2)}, {vr(G)}, {vr(G)}\nv_mul_f32 {vr(G + 3)}, {sK3}, {vr(G)}")
        a(f"v_mov_b32_dpp {vr(G + 1)}, {vr(G)} row_ror:8 {FULL}")
        a(f"v_fma_f32 {vr(G + 2)}, {vr(G + 2)}, {sK1}, 1.0")
        a(f"v_mul_f32 {vr(G + 2)}, {vr(G + 2)}, {vr(G + 3)}\nv_exp_f32 {vr(G + 2)}, {vr(G + 2)}\nv_add_f32 {vr(G + 2)}, 1.0, {vr(G + 2)}")
        a(f"v_rcp_f32 {vr(G + 2)}, {vr(G + 2)}\nv_mul_f32 {vr(G)}, {vr(G)}, {vr(G + 2)}")
        self.bf16r(G, G)
        a(f"v_mul_f32 {vr(G)}, {vr(G)}, {vr(G + 1)}\nv_cvt_pk_bf16_f32 {vr(G)}, {vr(G)}, {vr(G)}")
        a(f"s_mov_b64 exec, 0x00ff00ff\nds_write_b16 {vr(AAW)}, {vr(G)} offset:{L_ACT}\ns_mov_b64 exec, -1")
        a("L_fact:")
        for i in range(16):
            a(f"v_mov_b32 {vr(F + i)}, 0")
        a("s_waitcnt lgkmcnt(0)\ns_barrier")
        self.stamp(12)
        for n in range(4):
            a(f"s_mov_b32 exec_lo, {0x11111111 << n:#x}\ns_mov_b32 exec_hi, {0x11111111 << n:#x}")
            a(f"ds_read_b128 {vr(F + 4 * n, 4)}, {vr(AAR)} offset:{L_ACT}")
        a(f"s_mov_b64 exec, -1\nv_lshlrev_b32 {vr(HV)}, 16, {vr(HV)}")
        a("s_waitcnt lgkmcnt(0)")
        for n in range(4):
            a(f"v_mfma_f32_16x16x32_bf16 {vr(D, 4)}, {vr(BD + 4 * n, 4)}, {vr(F + 4 * n, 4)}, {vr(D, 4) if n else 0}")
        a("s_mov_b32 exec_lo, 0x00ff00ff\ns_mov_b32 exec_hi, 0x00ff00ff")
        self.tag4(D, MK)
        a(f"global_store_dwordx4 {vr(ADR)}, {vr(D, 4)}, {sWS} sc1")
        self.stamp(13)
        a(f"s_mov_b64 exec, -1\ns_cmp_ge_u32 {sF}, 32\ns_cbranch_scc1 L_none\ns_cmp_ge_u32 {sw}, 2\ns_cbranch_scc1 L_none")
        if self.ackwait:
            a("s_waitcnt vmcnt(0)")

        def floads():
            a(f"global_load_dwordx4 {vr(F, 4)}, {vr(AF)}, {sWS} sc1\nglobal_load_dwordx4 {vr(F + 4, 4)}, {vr(AF)}, {sWS} offset:2048 sc1")
            a(f"global_load_dwordx4 {vr(F + 8, 4)}, {vr(AF + 1)}, {sWS} sc1")
        self.poll(floads, lambda: self.chk(F + 12, [F, F + 4, F + 8]))
        self.count(2)
        for i in range(8):
            a(f"v_and_b32 {vr(F + i)}, {vr(MK)}, {vr(F + i)}")
        for i in range(4):
            a(f"v_and_b32 {vr(F + 8 + i)}, {vr(FM)}, {vr(F + 8 + i)}")
        for k in (4, 8):
            for i in (0, 2):
                a(f"v_pk_add_f32 {vr(F + i, 2)}, {vr(F + i, 2)}, {vr(F + k + i, 2)}")
        self.tr_reduce4(F, (4, 8))
        self.bf16r(F, F)
        a("s_mov_b32 exec_lo, 0x000f000f\ns_mov_b32 exec_hi, 0x000f000f")
        a(f"v_add_f32 {vr(F)}, {vr(F)}, {vr(HV)}\nv_cvt_pk_bf16_f32 {vr(F)}, {vr(F)}, {vr(F)}")
        a(f"global_store_short {vr(AO)}, {vr(F)}, {sOUT}")
        self.stamp(14)
        a(f"s_or_b32 {sA}, {sF}, {sw}\ns_cmp_lg_u32 {sA}, 0\ns_cbranch_scc1 L_none")
        a(f"v_mov_b32 v2, 0\nv_mov_b32 v3, {sT}\ns_mov_b64 exec, 1\nglobal_store_dword v2, v3, {sWS} sc1")
        if self.pad:
            a(f"s_mov_b32 s70, {self.pad}")
            if self.probe in ("smax", "smin", "smed"):
                op = "v_max_i32" if self.probe == "smax" else ("v_min_i32" if self.probe == "smin" else "v_add_u32")
                a(f"s_mov_b64 exec, -1\nv_lshlrev_b32 v2, 4, v1\nv_add_u32 v2, {WS_ST}, v2\nglobal_load_dwordx4 v[4:7], v2, {sWS} sc1\ns_waitcnt vmcnt(0)")
                for i in range(4):
                    a(f"v_subrev_u32 v{4 + i}, s64, v{4 + i}")
                a(f"{op} v4, v4, v5\n{op} v6, v6, v7\n{op} v4, v4, v6")
                self.dppred(op, [4], [f"row_ror:{r}" for r in (1, 2, 4, 8)])
                self.redrows(op, [4], 5)
                if self.probe == "smed":
                    a("v_ashrrev_i32 v4, 8, v4")
                a("v_readfirstlane_b32 s68, v4\ns_add_u32 s68, s68, 300\ns_add_u32 s68, s68, s64")
            if self.probe is not None:
                a("s_waitcnt lgkmcnt(0)\ns_sub_u32 s68, s68, s64\ns_lshl_b32 s68, s68, 2\ns_min_u32 s68, s68, 20000\ns_add_u32 s70, s70, s68")
            a("L_pad:\ns_memrealtime s[66:67]\ns_waitcnt lgkmcnt(0)\ns_sub_u32 s66, s66, s64\ns_cmp_lt_u32 s66, s70\ns_cbranch_scc1 L_pad")
        self.end()


if __name__ == "__main__":
    out = sys.argv[1]
    kw = {}
    for x in sys.argv[2:]:
        k, v = x.split("=")
        kw[k] = {"True": True, "False": False}.get(v, v)
    g = Gen(**kw)
    open(out, "w").write(g.build())
    print("written", out, "nops", g.nops)
```

```python
import sys
from asmlib import Asm

KN = "sequential_preLN__sliding_block_cached__geglu_ffn__decode_kernel"
HEADER = open("sequential_preLN__sliding_block_cached__geglu_ffn__decode.s.ref").read().split("; Override launch")[0]

WS_FT, WS_HT, WS_XT, WS_QP, WS_OP, WS_ML, WS_YP, WS_FP, WS_ST = 0x4A000, 0x48000, 0x400, 0x1000, 0x50000, 0x70000, 0x80000, 0x110000, 0x200000
FP_STRIDE = 6144
TAGC = 0x9E3779B9
L_Q, L_MAX, L_SUM, L_CNT, L_VCNT, L_MCNT, L_QF, L_PUB, L_DMA, L_HINT, L_YISS = 0, 256, 304, 352, 356, 360, 364, 368, 372, 376, 380
L_OP, L_RED, L_STAT, L_ACT, L_H, L_HN, L_W = 512, 6656, 10752, 11008, 11264, 13312, 15616
ROWP = 1040
GUP = 1056
L_G = L_W
L_U = L_G + 32 * GUP + 16
L_D = L_U + 32 * GUP + 240
LDS_BYTES = L_D + 32 * ROWP
L_ONE = L_H + 128
SPIN = 1 << 16

sX, sK, sV, sWQ, sWO, sWG, sWU, sWD, sOUT, sWS = "s[4:5]", "s[6:7]", "s[8:9]", "s[10:11]", "s[12:13]", "s[16:17]", "s[18:19]", "s[20:21]", "s[22:23]", "s[26:27]"
sXCD, sH, sJ, sW, sT = "s28", "s29", "s30", "s31", "s32"
sT1, sT2, sT3 = "s33", "s34", "s35"
sSELA, sSELB, sHI = "s36", "s37", "s38"
sSPIN = "s39"
sA, sB, sC, sD = "s40", "s41", "s42", "s43"
sM0, sM1 = "s[44:45]", "s[46:47]"
sF = "s48"
sK1, sK2, sK3 = "s49", "s50", "s51"
sP = "s[52:53]"
sLOC, sNACT, sRD = "s54", "s55", "s96"
sTT = "s[98:99]"
ST0 = 80
FULL = "row_mask:0xf bank_mask:0xf"


def vr(a, n=1):
    return f"v{a}" if n == 1 else f"v[{a}:{a + n - 1}]"


class Gen:
    def __init__(self, diag=False, nt="nt", wnt="nt", prefetch=True, pad=0, lds=None, nvg=160, probe=None, stamps=None,
                 nk0=4, helper=True, hrow0=128, local=True, ackwait=True, nk1=8, optouch=True, window=True, exp="", wwin=15, hint=True, lag=5, fwin=32, downearly=True, b0=True, tight=False, nww=8, wotouch=True, nv1=0, hwin=3, idledma=True, hpub=False, fpub=False, nth=0, nlate=12, hgu=0, hall=True, tlb=True, cpt="ack", hmode="s", hsleep=0, fchk=8, fwin0=11, fk0=24, incr=True, bump="early", outf="", nkpre=1, clag=0, nrep=32, wopair=False, frot=True, wk0=16, hr=128, wont="nt", fnt="", barx=True, hdown=False, clean=False, fpre=8, wpre=8, tog=9, csleep=0, fold=True, micro=True, early=False):
        self.a = Asm()
        self.diag, self.nt, self.wnt, self.prefetch = diag, nt, wnt, prefetch
        self.uid = 0
        self.pad, self.probe, self.stamps, self.sec = int(pad), probe, stamps, ""
        self.nk0, self.helper, self.hrow0, self.local, self.ackwait = int(nk0), helper, int(hrow0), local, ackwait
        self.nk1 = int(nk1)
        self.optouch, self.window, self.exp, self.wwin = optouch, window, exp, int(wwin)
        self.hint, self.lag, self.fwin = hint, int(lag), int(fwin)
        self.downearly, self.b0, self.tight = downearly, b0, tight
        self.nww, self.wotouch = int(nww), wotouch
        self.nwn = 16 - self.nww
        self.incr, self.bump, self.outf, self.nkpre, self.clag = incr, bump, outf, int(nkpre), int(clag)
        self.slots = {}
        self.micro, self.early = micro, early
        self.fold = fold
        self.tog, self.csleep = int(tog), int(csleep)
        self.clean, self.fpre, self.wpre = clean, int(fpre), int(wpre)
        self.barx, self.hdown = barx, hdown
        self.wont, self.fnt = wont, fnt
        self.hr = int(hr)
        self.wopair, self.frot, self.wk0 = wopair, frot, int(wk0)
        self.nrep = int(nrep)
        self.hmode, self.hsleep, self.fchk, self.fwin0, self.fk0 = hmode, int(hsleep), int(fchk), int(fwin0), int(fk0)
        self.hall, self.tlb, self.cpt = hall, tlb, cpt
        self.hpub, self.fpub, self.nth, self.nlate, self.hgu = hpub, fpub, int(nth), int(nlate), int(hgu)
        self.nv1, self.hwin, self.idledma = int(nv1), int(hwin), idledma and self.nww < 8
        self.nwaves = max(self.nwn, 9) + 1
        self.nh = (4 if self.nwn == 8 and micro else 5) if self.nwn <= 10 else 6
        self.lds = int(lds) if lds else LDS_BYTES
        self.nvg = int(nvg)

    def stamp(self, i):
        key = self.sec + str(i)
        if self.probe == key:
            self.a("s_memrealtime s[84:85]")
        if self.diag and key in self.stamps:
            r = self.slot(i)
            self.a(f"s_memrealtime s[{r}:{r + 1}]")

    def slot(self, i):
        if i not in self.slots:
            self.slots[i] = ST0 + 4 + 2 * len(self.slots)
            assert self.slots[i] <= 94, "at most six stamp slots"
        return self.slots[i]

    def count(self, i):
        if self.diag and self.stamps is not None and ("n" + self.sec + str(i)) in self.stamps:
            self.a(f"s_add_u32 s{self.slot(i)}, {sSPIN}, 1")

    def end(self):
        self.a("s_branch L_exit" if self.diag else "s_endpgm")

    def bf16r(self, d, x):
        self.a(f"v_cvt_pk_bf16_f32 {vr(d)}, 0, {vr(x)}")

    def unpack(self, d, s, n):
        for i in range(n):
            self.a(f"v_lshlrev_b32 {vr(d + 2 * i)}, 16, {vr(s + i)}\nv_and_b32 {vr(d + 2 * i + 1)}, {sHI}, {vr(s + i)}")

    def dppred(self, op, regs, mods):
        for mod in mods:
            for r in regs:
                self.a(f"{op}_dpp {vr(r)}, {vr(r)}, {vr(r)} {mod} {FULL}")

    def redrows(self, op, regs, tmp):
        a = self.a
        for sw in ("v_permlane16_swap_b32", "v_permlane32_swap_b32"):
            for i, r in enumerate(regs):
                a(f"v_mov_b32 {vr(tmp + i)}, {vr(r)}")
            for i, r in enumerate(regs):
                a(f"{sw} {vr(r)}, {vr(tmp + i)}")
            for i, r in enumerate(regs):
                a(f"{op} {vr(r)}, {vr(r)}, {vr(tmp + i)}")

    def red8x(self, op, regs, tmp):
        self.dppred(op, regs, ("quad_perm:[1,0,3,2]", "quad_perm:[2,3,0,1]", "row_half_mirror"))
        self.redrows(op, regs, tmp)

    def selectors(self, sel, t0, nm, bits=2):
        a = self.a
        a(f"v_and_b32 {vr(t0)}, 1, v1")
        a(f"v_cmp_eq_u32 vcc, 1, {vr(t0)}")
        a(f"v_mov_b32 {vr(t0 + 1)}, 0x0c0c0100\nv_mov_b32 {vr(t0 + 2)}, 0x01000c0c")
        a(f"v_cndmask_b32 {vr(t0 + 1)}, {vr(t0 + 1)}, {vr(t0 + 2)}, vcc")
        a(f"v_mov_b32 {vr(t0 + 2)}, 0x0c0c0302\nv_mov_b32 {vr(t0 + 3)}, 0x03020c0c")
        a(f"v_cndmask_b32 {vr(t0 + 2)}, {vr(t0 + 2)}, {vr(t0 + 3)}, vcc")
        a(f"v_bfe_u32 {vr(t0)}, v1, 1, {bits}")
        a(f"v_mov_b32 {vr(t0 + 3)}, 0x0c0c0c0c")
        for m in range(nm):
            a(f"v_cmp_eq_u32 vcc, {m}, {vr(t0)}")
            a(f"v_cndmask_b32 {vr(sel + 2 * m)}, {vr(t0 + 3)}, {vr(t0 + 1)}, vcc")
            a(f"v_cndmask_b32 {vr(sel + 2 * m + 1)}, {vr(t0 + 3)}, {vr(t0 + 2)}, vcc")

    def tag_consts(self):
        a = self.a
        a(f"s_add_u32 {sT}, {sT}, {TAGC}")
        a(f"s_lshr_b32 {sT1}, {sT}, 8\ns_lshr_b32 {sT2}, {sT}, 16\ns_lshr_b32 {sT3}, {sT}, 24")
        a(f"s_mov_b32 {sSELA}, 0x0c0c0400\ns_mov_b32 {sSELB}, 0x04000c0c")

    def tag4(self, d, mask):
        for i, s in enumerate((sT, sT1, sT2, sT3)):
            self.a(f"v_bfi_b32 {vr(d + i)}, {vr(mask)}, {vr(d + i)}, {s}")

    def chk(self, t, gs):
        a = self.a
        for n, g in enumerate(gs):
            a(f"v_perm_b32 {vr(t + 2 * n)}, {vr(g + 1)}, {vr(g)}, {sSELA}")
            a(f"v_perm_b32 {vr(t + 2 * n + 1)}, {vr(g + 3)}, {vr(g + 2)}, {sSELB}")
        for n, g in enumerate(gs):
            a(f"v_bitop3_b32 {vr(t + 2 * n)}, {vr(t + 2 * n)}, {vr(t + 2 * n + 1)}, {sT} bitop3:0x56")
        rest = [t + 2 * n for n in range(1, len(gs))]
        while rest:
            if len(rest) >= 2:
                a(f"v_or3_b32 {vr(t)}, {vr(t)}, {vr(rest[0])}, {vr(rest[1])}")
                rest = rest[2:]
            else:
                a(f"v_or_b32 {vr(t)}, {vr(t)}, {vr(rest[0])}")
                rest = []
        a(f"v_cmp_ne_u32 vcc, 0, {vr(t)}")

    def poll(self, loads, check, between=None, first=True):
        a = self.a
        self.uid += 1
        L = self.cur_poll = f"L_poll{self.uid}"
        a(f"s_mov_b32 {sSPIN}, 0")
        if between:
            if first:
                loads()
            between()
            a(f"s_branch {L}w")
        a(f"{L}:")
        loads()
        a(f"s_add_u32 {sSPIN}, {sSPIN}, 1\ns_cmp_gt_u32 {sSPIN}, {SPIN}\ns_cbranch_scc1 L_bail")
        a(f"{L}w:\ns_waitcnt vmcnt(0)\n{L}c:")
        check()
        a(f"s_cbranch_vccnz {L}")

    def spoll(self, loads, check):
        a = self.a
        self.uid += 1
        L = f"L_sp{self.uid}"
        a(f"s_mov_b32 {sSPIN}, 0\n{L}:")
        loads()
        a(f"s_add_u32 {sSPIN}, {sSPIN}, 1\ns_cmp_gt_u32 {sSPIN}, {SPIN}\ns_cbranch_scc1 L_bail\ns_waitcnt lgkmcnt(0)")
        check()
        a(f"s_cbranch_scc1 {L}")

    def lds_wait(self, word, val, va, vt, tight=False):
        a = self.a
        self.uid += 1
        L = f"L_lw{self.uid}"
        a(f"v_mov_b32 {vr(va)}, {word}\ns_mov_b32 {sSPIN}, 0\n{L}:")
        a(f"ds_read_b32 {vr(vt)}, {vr(va)}\ns_add_u32 {sSPIN}, {sSPIN}, 1\ns_cmp_gt_u32 {sSPIN}, {SPIN * 16}\ns_cbranch_scc1 L_bail")
        a(f"s_waitcnt lgkmcnt(0)\nv_readfirstlane_b32 {sA}, {vr(vt)}\ns_cmp_ge_u32 {sA}, {val}\n" + (f"s_cbranch_scc0 {L}" if tight and self.tight else f"s_cbranch_scc1 {L}d\ns_sleep 1\ns_branch {L}\n{L}d:"))

    def lds_inc(self, word, va, vt):
        self.a(f"v_mov_b32 {vr(va)}, {word}\nv_mov_b32 {vr(vt)}, 1\ns_mov_b64 exec, 1\nds_add_u32 {vr(va)}, {vr(vt)}\ns_mov_b64 exec, -1")

    def tr_reduce4(self, v, rots):
        a = self.a
        a(f"v_permlane32_swap_b32 {vr(v)}, {vr(v + 1)}")
        a(f"v_permlane32_swap_b32 {vr(v + 2)}, {vr(v + 3)}")
        a(f"v_add_f32 {vr(v)}, {vr(v)}, {vr(v + 1)}")
        a(f"v_add_f32 {vr(v + 2)}, {vr(v + 2)}, {vr(v + 3)}")
        a(f"v_permlane16_swap_b32 {vr(v)}, {vr(v + 2)}")
        a(f"v_add_f32 {vr(v)}, {vr(v)}, {vr(v + 2)}")
        self.dppred("v_add_f32", [v], [f"row_ror:{r}" for r in rots])

    def ln_finish(self, t, mean, var):
        a = self.a
        self.bf16r(var, var)
        self.bf16r(t, mean)
        a(f"v_add_f32 {vr(var)}, 0x3727c5ac, {vr(var)}")
        self.bf16r(var, var)
        a(f"v_sqrt_f32 {vr(var)}, {vr(var)}")
        self.bf16r(t + 2, var)
        a(f"v_rcp_f32 {vr(t + 4)}, {vr(t + 2)}")

    def ln_apply2(self, F, t, P, tmp):
        a = self.a
        a(f"v_pk_add_f32 {vr(F, 2)}, {vr(F, 2)}, {vr(t, 2)} op_sel_hi:[1,0] neg_lo:[0,1] neg_hi:[0,1]")
        self.bf16r(F, F)
        self.bf16r(F + 1, F + 1)
        a(f"v_pk_mul_f32 {vr(tmp, 2)}, {vr(F, 2)}, {vr(t + 4, 2)} op_sel_hi:[1,0]")
        a(f"v_pk_fma_f32 {vr(F, 2)}, {vr(tmp, 2)}, {vr(t + 2, 2)}, {vr(F, 2)} op_sel_hi:[1,0,1] neg_lo:[1,0,0] neg_hi:[1,0,0]")
        a(f"v_pk_fma_f32 {vr(F, 2)}, {vr(F, 2)}, {vr(t + 4, 2)}, {vr(tmp, 2)} op_sel_hi:[1,0,1]")
        a(f"v_cvt_pk_bf16_f32 {vr(P)}, {vr(F)}, {vr(F + 1)}")

    def gemv16(self, D, X, SEL, B, A, steps):
        a = self.a
        for t in range(steps):
            for m in range(2):
                a(f"v_perm_b32 {vr(A + 2 * t + m)}, {vr(X + t // 2)}, {vr(X + t // 2)}, {vr(SEL + 2 * m + (t & 1))}")
            if t >= 1:
                u = t - 1
                a(f"v_mfma_f32_16x16x16_bf16 {vr(D, 4)}, {vr(A + 2 * u, 2)}, {vr(B + 2 * u, 2)}, {vr(D, 4) if u else 0}")
        u = steps - 1
        a(f"v_mfma_f32_16x16x16_bf16 {vr(D, 4)}, {vr(A + 2 * u, 2)}, {vr(B + 2 * u, 2)}, {vr(D, 4)}")

    def role(self, lw, lh, lf, ln):
        a = self.a
        a(f"s_and_b32 {sA}, {sH}, 3\ns_lshl_b32 {sF}, {sA}, 2\ns_lshr_b32 {sA}, {sJ}, 2\ns_lshl_b32 {sA}, {sA}, 1\ns_add_u32 {sF}, {sF}, {sA}")
        a(f"s_and_b32 {sA}, {sJ}, 1\ns_add_u32 {sF}, {sF}, {sA}")
        a(f"s_bitcmp0_b32 {sJ}, 1\ns_cbranch_scc1 {lw}")
        a(f"s_cmp_lt_u32 {sF}, 8\ns_cbranch_scc1 {lh}")
        a(f"s_sub_u32 {sA}, {sF}, 8")
        a(f"s_min_u32 {sB}, {sXCD}, 3\ns_mul_i32 {sF}, {sXCD}, 5\ns_add_u32 {sF}, {sF}, {sB}\ns_add_u32 {sF}, {sF}, {sA}")
        a(f"s_cmp_lt_u32 {sXCD}, 3\ns_cselect_b32 {sB}, 6, 5\ns_cmp_lt_u32 {sA}, {sB}\ns_cbranch_scc1 {lf}")
        a(f"s_branch {ln}")

    def build(self):
        a = self.a
        a(f"{KN}:")
        if self.diag or self.pad:
            a(f"s_memrealtime s[{ST0}:{ST0 + 1}]")
        a("s_load_dwordx16 s[4:19], s[0:1], 0\ns_load_dwordx8 s[20:27], s[0:1], 64")
        a("s_cmp_ge_u32 s2, 256\ns_cbranch_scc1 L_bail")
        if self.diag:
            for i in range(2, 8):
                a(f"s_mov_b32 s{ST0 + 2 * i}, 0")
        a(f"v_readfirstlane_b32 {sW}, v0\nv_and_b32 v1, 63, v0")
        a(f"s_and_b32 {sXCD}, s2, 7\ns_lshr_b32 {sJ}, s2, 3\ns_lshr_b32 {sH}, s2, 6\ns_lshl_b32 {sA}, {sXCD}, 2\ns_add_u32 {sH}, {sH}, {sA}")
        a(f"s_and_b32 {sJ}, {sJ}, 7\ns_lshr_b32 {sW}, {sW}, 6\ns_mov_b32 {sHI}, 0xffff0000")
        a(f"s_bitcmp0_b32 {sJ}, 1\ns_cselect_b32 {sNACT}, {self.nww}, {self.nwn}")
        a(f"s_cmp_lg_u32 {sW}, 0\ns_cbranch_scc1 L_stream")
        for self.sec, part in (("c", self.comm), ("s", self.stream), ("w", self.role_wo), ("f", self.role_ffn)):
            part()
        a("L_none:")
        self.end()
        if self.diag:
            a("L_exit:")
            a("s_mov_b64 exec, -1\ns_waitcnt vmcnt(0) lgkmcnt(0)")
            a(f"s_memrealtime s[{ST0 + 2}:{ST0 + 3}]\ns_waitcnt lgkmcnt(0)")
            a(f"s_mul_i32 {sA}, s2, 12\ns_add_u32 {sA}, {sA}, {sW}\ns_lshl_b32 {sA}, {sA}, 6\ns_add_u32 {sA}, {sA}, {WS_ST}")
            for i in range(16):
                src = {0: f"s{ST0}", 15: f"s{ST0 + 2}"}.get(i, f"s{self.slots[i]}" if i in self.slots else "0")
                a(f"v_mov_b32 v{4 + i}, {src}")
            a(f"v_mov_b32 v2, {sA}\ns_mov_b64 exec, 1")
            for i in range(4):
                a(f"global_store_dwordx4 v2, v[{4 + 4 * i}:{7 + 4 * i}], {sWS} offset:{16 * i}")
        a("L_bail:\ns_endpgm")
        a("L_codeend:")
        self.nops = a.fix_hazards()
        txt = HEADER
        txt += f"; @launch grid=(256,1,1) block=({64 * self.nwaves},1,1) lds={self.lds}\n"
        txt += f'.amdgcn_target "amdgcn-amd-amdhsa--gfx950"\n.text\n.globl {KN}\n.p2align 8\n.type {KN},@function\n'
        txt += a.text() + "\n"
        if self.prefetch:
            txt += ".fill 256, 4, 0xbf810000\n"
        txt += f""".section .rodata,"a"
.p2align 6
.amdhsa_kernel {KN}
  .amdhsa_next_free_vgpr {self.nvg}
  .amdhsa_next_free_sgpr 102
  .amdhsa_accum_offset {self.nvg}
  .amdhsa_group_segment_fixed_size 0
  .amdhsa_kernarg_size 96
  .amdhsa_user_sgpr_count 2
  .amdhsa_user_sgpr_kernarg_segment_ptr 1
  .amdhsa_system_sgpr_workgroup_id_x 1
.end_amdhsa_kernel
"""
        return txt

    def comm(self):
        a = self.a
        wnt = self.wnt
        G, BB = 2, 3
        XS, XO, W, F, SEL, ST, X, A, D, MK = 8, 16, 24, 88, 112, 120, 16, 88, 96, 100
        a("s_setprio 3")
        a(f"v_lshrrev_b32 v{G}, 4, v1\nv_bfe_u32 v{BB}, v1, 3, 1")
        a(f"v_and_b32 v5, 7, v1\nv_lshl_add_u32 v4, v{G}, 3, v5\nv_lshlrev_b32 v4, 5, v4\nv_lshl_add_u32 v4, v{BB}, 10, v4")
        a(f"s_lshl_b32 {sA}, {sJ}, 7\nv_lshl_add_u32 v5, v5, 2, {sA}\nv_lshl_add_u32 v5, v{G}, 5, v5\nv_lshl_add_u32 v5, v{BB}, 10, v5")
        a(f"s_lshl_b32 {sA}, {sJ}, 19\ns_lshl_b32 {sB}, {sH}, 8\ns_add_u32 {sA}, {sA}, {sB}\ns_movk_i32 {sB}, 0x2000")
        a(f"v_and_b32 v6, 15, v1\nv_lshl_add_u32 v6, v6, 4, {sA}\nv_lshl_add_u32 v6, v{G}, 17, v6")
        a("s_waitcnt lgkmcnt(0)")
        self.stamp(1)
        a(f"global_load_dwordx4 {vr(XS, 4)}, v4, {sX}\nglobal_load_dwordx4 {vr(XS + 4, 4)}, v4, {sX} offset:16")
        a(f"global_load_dword {vr(XO)}, v5, {sX}")
        for t in range(16):
            a(f"global_load_dwordx4 {vr(W + 4 * t, 4)}, v6, {sWQ} {wnt}")
            if t < 15:
                a(f"v_add_u32 v6, {sB}, v6")
        if self.b0:
            a("s_barrier")
        a(f"s_load_dword {sT}, {sWS}, 0")
        a(f"v_mov_b32 v6, {L_CNT}\nv_mov_b32 v104, 0\nv_mov_b32 v105, 0\nv_mov_b32 v106, 0\nv_mov_b32 v107, 0")
        a("ds_write_b128 v6, v[104:107]\nds_write_b128 v6, v[104:107] offset:16")
        a("v_lshlrev_b32 v6, 4, v1")
        if self.fold:
            a("v_mov_b32 v108, 0x3f803f80\nv_mov_b32 v109, 0x3f803f80\nv_mov_b32 v110, 0x3f803f80\nv_mov_b32 v111, 0x3f803f80")
            a(f"ds_write_b128 v6, v[108:111] offset:{L_ONE}")
        for o in range(self.nww // 2, self.nh):
            a(f"ds_write_b128 v6, v[104:107] offset:{L_OP + 1024 * o}")
        a(f"v_min_u32 v6, 23, v1\nv_cmp_gt_u32 vcc, 12, v6\nv_lshlrev_b32 v6, 2, v6\nv_mov_b32 v105, 0xff800000\nv_cndmask_b32 v105, v104, v105, vcc\nds_write_b32 v6, v105 offset:{L_MAX}")
        self.selectors(SEL, 108, 4)
        a("s_waitcnt vmcnt(17)")
        self.unpack(F, XS, 8)
        self.stamp(2)
        S = 7
        a(f"v_pk_add_f32 v[104:105], {vr(F, 2)}, {vr(F + 2, 2)}\nv_pk_add_f32 v[106:107], {vr(F + 4, 2)}, {vr(F + 6, 2)}")
        for i in range(2):
            a(f"v_pk_add_f32 v[104:105], v[104:105], {vr(F + 8 + 4 * i, 2)}\nv_pk_add_f32 v[106:107], v[106:107], {vr(F + 10 + 4 * i, 2)}")
        a(f"v_pk_add_f32 v[104:105], v[104:105], v[106:107]\nv_add_f32 {vr(S)}, v104, v105")
        self.red8x("v_add_f32", [S], 104)
        a(f"v_mul_f32 {vr(S)}, 0x3b000000, {vr(S)}")
        for i in range(16):
            a(f"v_sub_f32 {vr(F + i)}, {vr(F + i)}, {vr(S)}")
        a(f"v_pk_mul_f32 v[104:105], {vr(F, 2)}, {vr(F, 2)}\nv_pk_mul_f32 v[106:107], {vr(F + 2, 2)}, {vr(F + 2, 2)}")
        for i in range(1, 4):
            a(f"v_pk_fma_f32 v[104:105], {vr(F + 4 * i, 2)}, {vr(F + 4 * i, 2)}, v[104:105]")
            a(f"v_pk_fma_f32 v[106:107], {vr(F + 4 * i + 2, 2)}, {vr(F + 4 * i + 2, 2)}, v[106:107]")
        a("v_pk_add_f32 v[104:105], v[104:105], v[106:107]\nv_add_f32 v108, v104, v105")
        self.red8x("v_add_f32", [108], 104)
        a("v_mul_f32 v108, 0x3b000000, v108")
        self.ln_finish(ST, S, 108)
        a("s_waitcnt vmcnt(16)")
        self.unpack(F, XO, 1)
        self.ln_apply2(F, ST, 8, 10)
        a("s_waitcnt lgkmcnt(0)")
        self.tag_consts()
        for u in range(8):
            a(f"v_mov_b32_dpp {vr(X + u)}, v8 row_newbcast:{u} row_mask:0xf bank_mask:0x3")
        for u in range(8):
            a(f"v_mov_b32_dpp {vr(X + u)}, v8 row_newbcast:{8 + u} row_mask:0xf bank_mask:0xc")
        a(f"v_mov_b32 v{MK}, 0xffffff00")

        def abuild(t):
            for m in range(4):
                a(f"v_perm_b32 {vr(A + 4 * (t & 1) + m)}, {vr(X + t // 2)}, {vr(X + t // 2)}, {vr(SEL + 2 * m + (t & 1))}")
        abuild(0)
        for t in range(16):
            if t < 15:
                abuild(t + 1)
            a(f"s_waitcnt vmcnt({15 - t})")
            a(f"v_mfma_f32_16x16x32_bf16 {vr(D, 4)}, {vr(A + 4 * (t & 1), 4)}, {vr(W + 4 * t, 4)}, {vr(D, 4) if t else 0}")
        a(f"s_lshl_b32 {sA}, {sH}, 13\ns_lshl_b32 {sB}, {sJ}, 9\ns_add_u32 {sA}, {sA}, {sB}\ns_add_u32 {sA}, {sA}, {WS_QP}")
        a(f"v_and_b32 v4, 15, v1\nv_lshl_add_u32 v4, v4, 5, {sA}\nv_bfe_u32 v5, v1, 4, 1\nv_lshl_add_u32 v4, v5, 4, v4")
        a("v_lshrrev_b32 v5, 5, v1\nv_lshl_add_u32 v4, v5, 12, v4")
        a(f"s_getreg_b32 {sC}, hwreg(HW_REG_XCC_ID, 0, 4)\ns_and_b32 {sD}, {sT}, 0xffffff00\ns_or_b32 {sC}, {sC}, {sD}")
        a(f"s_lshl_b32 {sA}, {sXCD}, 7\ns_add_u32 {sA}, {sA}, {WS_XT}\ns_lshr_b32 {sB}, s2, 3\ns_lshl_b32 {sB}, {sB}, 2\ns_add_u32 {sB}, {sB}, {sA}")
        a(f"v_mov_b32 v6, {sB}\nv_mov_b32 v7, {sC}")
        for i in range(4):
            a(f"v_add_u32 {vr(D + i)}, 0x80, {vr(D + i)}")
        self.tag4(D, MK)
        a(f"global_store_dwordx4 v4, {vr(D, 4)}, {sWS} sc1")
        a(f"s_mov_b64 exec, 1\nglobal_store_dword v6, v7, {sWS} sc1\ns_mov_b64 exec, -1")
        self.stamp(3)
        if self.probe in ("smax", "smin", "smed"):
            a(f"s_lshl_b32 {sB}, s2, 2\ns_add_u32 {sB}, {sB}, {WS_ST}\nv_mov_b32 v6, {sB}\nv_mov_b32 v7, s80\nglobal_store_dword v6, v7, {sWS} sc1")
        a(f"v_and_b32 v5, 31, v1\nv_lshl_add_u32 v5, v5, 2, {sA}")
        a(f"s_lshl_b32 {sA}, {sH}, 13\ns_lshr_b32 {sB}, {sJ}, 2\ns_lshl_b32 {sB}, {sB}, 12\ns_add_u32 {sA}, {sA}, {sB}\ns_add_u32 {sA}, {sA}, {WS_QP}")
        a(f"v_lshl_add_u32 v4, v1, 4, {sA}")
        a("s_barrier\ns_barrier")
        self.stamp(4)
        Gq, TT = 8, 24

        def loads():
            for n in range(4):
                a(f"global_load_dwordx4 {vr(Gq + 4 * n, 4)}, v4, {sWS} offset:{1024 * n} sc1")
            a(f"global_load_dword v32, v5, {sWS} sc1")

        def between():
            if self.tlb:
                a(f"v_and_b32 v35, 1, v1\nv_mul_u32_u24 v36, {512 * 2752 - 4}, v35\ns_lshl_b32 {sA}, {sXCD}, 19\nv_mul_u32_u24 v37, {(1 << 19) - 4}, v35\nv_add_u32 v37, {sA}, v37")
                a(f"v_lshlrev_b32 v35, 2, v35\ns_mov_b64 exec, 3")
                a(f"global_load_dword v38, v36, {sWG}\nglobal_load_dword v39, v36, {sWU}\nglobal_load_dword v40, v36, {sWD}")
                a(f"global_load_dword v41, v37, {sWO}\nglobal_load_dword v42, v35, {sOUT}\ns_mov_b64 exec, -1")
            if self.optouch:
                a(f"s_lshl_b32 {sA}, {sH}, 12\ns_lshl_b32 {sB}, {sJ}, 9\ns_add_u32 {sA}, {sA}, {sB}\ns_add_u32 {sA}, {sA}, {WS_OP}")
                a(f"v_and_b32 v33, 7, v1\nv_lshl_add_u32 v33, v33, 6, {sA}\nglobal_load_dword v34, v33, {sWS} sc1")
            a("s_barrier")
        self.poll(loads, lambda: self.chk(TT, [Gq + 4 * n for n in range(4)]), between=between)
        self.stamp(5)
        self.count(11)
        a(f"v_cmp_ne_u32 vcc, {sC}, v32")
        for i in range(16):
            a(f"v_and_b32 {vr(Gq + i)}, {vr(MK)}, {vr(Gq + i)}")
        a(f"s_cmp_eq_u64 vcc, 0\ns_cselect_b32 {sA}, {3 if self.local else 1}, 1")
        for i in range(4):
            a(f"v_add_f32 {vr(Gq + i)}, {vr(Gq + i)}, {vr(Gq + 4 + i)}\nv_add_f32 {vr(Gq + 8 + i)}, {vr(Gq + 8 + i)}, {vr(Gq + 12 + i)}")
        for i in range(4):
            a(f"v_add_f32 {vr(Gq + i)}, {vr(Gq + i)}, {vr(Gq + 8 + i)}")
        a(f"v_permlane32_swap_b32 {vr(Gq)}, {vr(Gq + 2)}\nv_permlane32_swap_b32 {vr(Gq + 1)}, {vr(Gq + 3)}")
        a(f"v_add_f32 {vr(Gq)}, {vr(Gq)}, {vr(Gq + 2)}\nv_add_f32 {vr(Gq + 1)}, {vr(Gq + 1)}, {vr(Gq + 3)}")
        a(f"v_cvt_pk_bf16_f32 {vr(Gq)}, {vr(Gq)}, {vr(Gq + 1)}")
        a("v_and_b32 v4, 31, v1\nv_lshlrev_b32 v4, 3, v4\nv_lshrrev_b32 v5, 5, v1\nv_lshl_add_u32 v4, v5, 2, v4")
        a(f"v_mov_b32 v6, {L_QF}\nv_mov_b32 v7, {sA}")
        a(f"ds_write_b32 v4, {vr(Gq)} offset:{L_Q}\nds_write_b32 v6, v7")
        a("s_setprio 0")
        self.stamp(6)
        self.role("L_none" if self.idledma else "L_cwo", "L_chelp", "L_cffn", "L_cmon")

        def dma_loop(name, base, n0, n1, mstep, two=None, win=None):
            a(f"s_mov_b32 {sC}, {n0}\n{name}:")
            if win is not None:
                a(f"s_waitcnt vmcnt({win})")
            a(f"s_mov_b32 m0, {sD}\ns_add_u32 {sC}, {sC}, 1")
            a(f"global_load_lds_dwordx4 v4, {base} {wnt}")
            if two:
                a(f"s_add_u32 m0, {sD}, {L_U - L_G}\ns_add_u32 {sD}, {sD}, {mstep}")
                a(f"global_load_lds_dwordx4 v4, {two} {wnt}")
            else:
                a(f"s_add_u32 {sD}, {sD}, {mstep}")
            a(f"v_add_u32 v4, {sB}, v4\ns_cmp_lt_u32 {sC}, {n1}\ns_cbranch_scc1 {name}")

        a("L_cwo:")
        a(f"s_lshl_b32 {sA}, {sXCD}, 19\ns_lshl_b32 {sB}, {sF}, 6\ns_add_u32 {sB}, {sA}, {sB}")
        a(f"v_lshrrev_b32 v4, 2, v1\nv_lshlrev_b32 v4, 10, v4\nv_and_b32 v5, 3, v1\nv_lshl_add_u32 v4, v5, 4, v4\nv_add_u32 v8, {sB}, v4")
        if self.wopair:
            a(f"s_and_b32 {sD}, {sF}, 1\ns_lshl_b32 {sB}, {sD}, 18\nv_add_u32 v8, {sB}, v8\ns_lshl_b32 {sB}, {sD}, 19\ns_sub_u32 {sB}, 0x40000, {sB}\nv_add_u32 v24, {sB}, v8")
            a(f"s_mul_i32 {sD}, {sD}, {16 * GUP}\ns_sub_u32 {sC}, {L_W + 16 * GUP}, {sD}\ns_add_u32 {sD}, {sD}, {L_W}")
            for n in range(1, 16):
                a(f"v_add_u32 v{8 + n}, {n * 0x4000}, v8\nv_add_u32 v{24 + n}, {n * 0x4000}, v24")
        else:
            for n in range(1, 32):
                a(f"v_add_u32 v{8 + n}, {n * 0x4000}, v8")
        a(f"s_lshl_b32 {sB}, {sF}, 14\ns_add_u32 {sA}, {sA}, {sB}\ns_add_u32 {sA}, {sA}, 4096\nv_lshl_add_u32 v4, v1, 6, {sA}\nv_add_u32 v5, 0x2000, v4")
        self.lds_wait(L_VCNT, sNACT, 6, 7)
        self.stamp(12)
        if "nowo" in self.exp:
            pass
        elif self.wopair:
            for k in range(32):
                a(f"s_add_u32 m0, {sD if k < 16 else sC}, {(k & 15) * GUP}")
                a(f"s_waitcnt vmcnt({self.wwin})" if k >= self.wk0 else "s_nop 0")
                a(f"global_load_lds_dwordx4 v{8 + k}, {sWO} {self.wont}")
        elif self.clean:
            a(f"s_lshl_b32 {sA}, {sXCD}, 19\ns_lshl_b32 {sB}, {sF}, 14\ns_add_u32 {sA}, {sA}, {sB}\nv_lshl_add_u32 v4, v1, 7, {sA}\nv_add_u32 v5, 0x2000, v4")
            a(f"global_load_dword v40, v4, {sWO}\nglobal_load_dword v41, v5, {sWO}")
            for k, n in enumerate(list(range(16, 32)) + list(range(16))):
                if k == self.wpre:
                    self.lds_wait(L_PUB, 1, 6, 7, tight=True)
                a(f"s_mov_b32 m0, {L_W + n * GUP}\ns_nop 0\nglobal_load_lds_dwordx4 v{8 + n}, {sWO} {self.wont}")
        else:
            for i in range(4 if self.wotouch else 0):
                a(f"global_load_dword v{40 + i}, v{4 + i // 2}, {sWO} offset:{-4096 if i % 2 == 0 else 0}")
            for k, n in enumerate(list(range(16, 32)) + list(range(16))):
                a(f"s_mov_b32 m0, {L_W + n * GUP}")
                a(f"s_waitcnt vmcnt({self.wwin})" if k >= 8 and self.wotouch else "s_nop 0")
                a(f"global_load_lds_dwordx4 v{8 + n}, {sWO} {self.wont}")
        self.stamp(13)
        a(f"v_mov_b32 v6, {L_DMA}\nv_mov_b32 v7, 1\ns_waitcnt vmcnt(0)\nds_write_b32 v6, v7")
        self.stamp(14)
        if self.nth and "noffn" not in self.exp:
            ni = (512 - self.hrow0) // 128
            self.gu_touch_addr(self.hrow0, 8 * ni, ni)
            a(f"s_lshl_b32 {sA}, {sXCD}, 9\ns_add_u32 {sA}, {sA}, {WS_ML}\nv_and_b32 v4, 31, v1\nv_lshl_add_u32 v4, v4, 4, {sA}")

            def enough():
                self.chk(44, [40])
                a(f"s_bcnt0_i32_b32 {sA}, vcc_lo\ns_cmp_lt_u32 {sA}, {self.nth}\ns_cselect_b64 vcc, -1, 0")
            self.poll(lambda: a(f"global_load_dwordx4 v[40:43], v4, {sWS} sc1"), enough)
            a(f"s_cmp_gt_u32 {sA}, {self.nlate}\ns_cbranch_scc1 L_none")
            for i in range(ni):
                a(f"global_load_dword v{56 + 2 * i}, v{8 + i}, {sWG}\nglobal_load_dword v{57 + 2 * i}, v{8 + i}, {sWU}")
        self.end()

        a("L_chelp:")
        if self.helper:
            self.helper_code()
        self.end()

        a("L_cffn:")
        a("v_lshrrev_b32 v4, 2, v1\nv_mul_u32_u24 v4, 2752, v4\nv_and_b32 v5, 3, v1\nv_lshl_add_u32 v4, v5, 4, v4")
        a(f"s_lshl_b32 {sA}, {sF}, 6\nv_add_u32 v8, {sA}, v4")
        a(f"s_and_b32 {sD}, {sF}, {1 if self.frot else 0}\ns_mul_i32 {sB}, {sD}, {256 * 2752}\nv_add_u32 v8, {sB}, v8\ns_lshl_b32 {sB}, {sB}, 1\ns_sub_u32 {sB}, {256 * 2752}, {sB}\nv_add_u32 v24, {sB}, v8")
        a(f"s_mul_i32 {sD}, {sD}, {16 * GUP}\ns_sub_u32 {sC}, {L_G + 16 * GUP}, {sD}\ns_add_u32 {sD}, {sD}, {L_G}")
        for n in range(1, 16):
            a(f"v_add_u32 v{8 + n}, {n * 16 * 2752}, v8\nv_add_u32 v{24 + n}, {n * 16 * 2752}, v24")
        a(f"s_lshl_b32 {sA}, {sF}, 15\ns_add_u32 {sA}, {sA}, 4096\nv_lshl_add_u32 v40, v1, 4, {sA}")
        for n in range(1, 4):
            a(f"v_add_u32 v{40 + n}, {n * 8192}, v40")
        a(f"v_mov_b32 v4, {L_HINT}\ns_mov_b32 {sRD}, 0")
        self.lds_wait(*((L_PUB, 1) if self.fpub else (L_VCNT, sNACT)), 6, 7)
        self.stamp(7)
        for k in range(0 if "noffn" in self.exp else 96):
            if k % self.fchk == 0 and k:
                a(f"s_waitcnt lgkmcnt(0)\nv_readfirstlane_b32 {sA}, v5\ns_add_u32 {sA}, {sA}, 1\ns_lshr_b32 {sA}, {sA}, 4\ns_andn2_b32 {sA}, {sA}, {sRD}\ns_cbranch_scc0 L_cf{k}\ns_mov_b32 {sRD}, 1")
                if self.barx:
                    a("s_barrier")
                self.lds_wait(L_YISS, 8, 6, 7)
                a(f"L_cf{k}:")
            if k % self.fchk == 0:
                a("ds_read_b32 v5, v4")
            win = self.fwin0 if k < self.fk0 and not self.clean else self.fwin
            if self.clean and k == self.fpre:
                self.lds_wait(L_PUB, 1, 6, 7)
            if k < 64:
                a(f"s_add_u32 m0, {sD if k < 32 else sC}, {(L_U - L_G if k & 1 else 0) + ((k >> 1) & 15) * GUP}")
                a(f"s_waitcnt vmcnt({win})" if k > win else "s_nop 0")
                a(f"global_load_lds_dwordx4 v{8 + (k >> 1)}, {sWU if k & 1 else sWG} {self.fnt}")
            else:
                n = k - 64
                off = (n & 7) * 1024 - 4096
                a(f"s_mov_b32 m0, {L_D + n * ROWP - off}\ns_waitcnt vmcnt({win})")
                a(f"global_load_lds_dwordx4 v{40 + (n >> 3)}, {sWD} offset:{off} {wnt}")
        self.stamp(8)
        a(f"s_cmp_lg_u32 {sRD}, 0\ns_cbranch_scc1 L_cf3")
        a(f"v_mov_b32 v6, {L_DMA}\nv_mov_b32 v7, 1\ns_waitcnt vmcnt(0)\nds_write_b32 v6, v7")
        self.stamp(11)
        if self.barx:
            a("s_waitcnt lgkmcnt(0)\ns_barrier")
        a("L_cf3:")
        a(("" if self.fold else "s_barrier\n") + "s_waitcnt vmcnt(32)\ns_barrier\ns_waitcnt vmcnt(0)")
        self.stamp(9)
        a("s_barrier")
        self.end()

        a("L_cmon:")
        if self.clean:
            a(f"s_cmp_lt_u32 {sA}, 6\ns_cbranch_scc1 L_none\ns_mov_b32 {sF}, {sA}")
            a(f"s_lshl_b32 {sB}, {sXCD}, 19\ns_lshl_b32 {sC}, {sF}, 15\ns_add_u32 {sB}, {sB}, {sC}\ns_add_u32 {sB}, {sB}, {0x70000 - 6 * 32768}")
            a(f"v_lshl_add_u32 v4, v1, 7, {sB}\ns_movk_i32 {sD}, 0x2000")
            self.lds_wait(L_VCNT, sNACT, 6, 7)
            for i in range(4):
                a(f"global_load_dword v{48 + i}, v4, {sWO}\nv_add_u32 v4, {sD}, v4")
            a(f"s_mov_b32 {sA}, {sF}")
        if self.hint:
            a(f"s_cmp_eq_u32 {sA}, 6\ns_cbranch_scc1 L_ctouch\ns_cmp_lg_u32 {sA}, 7\ns_cbranch_scc1 L_none")
            a(f"s_lshl_b32 {sA}, {sXCD}, 9\ns_add_u32 {sA}, {sA}, {WS_ML}\nv_and_b32 v4, 31, v1\nv_lshl_add_u32 v4, v4, 4, {sA}")
            a(f"s_lshl_b32 {sA}, {sXCD}, 2\ns_add_u32 {sA}, {sA}, {WS_HT}\nv_lshl_add_u32 v5, v1, 7, {sA}\nv_mov_b32 v6, {sT}")
            self.lds_wait(L_PUB, 1, 12, 13)
            self.poll(lambda: a(f"global_load_dwordx4 v[8:11], v4, {sWS} sc1"), lambda: self.chk(12, [8]))
            for i in range(self.lag):
                a(f"global_load_dwordx4 v[8:11], v4, {sWS} sc1\ns_waitcnt vmcnt(0)")
            a(f"s_bfm_b64 exec, 56, 0\nglobal_store_dword v5, v6, {sWS} sc1")
            self.stamp(10)
            self.end()
            a("L_ctouch:")
            if self.incr:
                self.end()
            a(f"s_lshl_b32 {sA}, {sXCD}, 7\ns_add_u32 {sA}, {sA}, {WS_HT + 48 * 128}\nv_and_b32 v4, 7, v1\nv_lshl_add_u32 v4, v4, 2, {sA}")
            a(f"v_and_b32 v5, 31, v1\nv_lshlrev_b32 v5, 6, v5\nv_lshrrev_b32 v6, 5, v1\nv_lshl_add_u32 v5, v6, 14, v5\nv_add_u32 v5, {WS_YP}, v5")
            self.lds_wait(L_PUB, 1, 12, 13)
            a(f"s_mov_b32 {sC}, 0\ns_mov_b32 {sSPIN}, 0\nL_ct0:")
            a(f"global_load_dword v8, v4, {sWS} sc1\ns_add_u32 {sSPIN}, {sSPIN}, 1\ns_cmp_gt_u32 {sSPIN}, {SPIN}\ns_cbranch_scc1 L_bail")
            a(f"s_waitcnt vmcnt(0)\nv_cmp_eq_u32 vcc, {sT}, v8\ns_and_b32 {sA}, vcc_lo, 0xff\ns_andn2_b32 {sB}, {sA}, {sC}\ns_mov_b32 {sC}, {sA}")
            a(f"L_ct1:\ns_cmp_eq_u32 {sB}, 0\ns_cbranch_scc1 L_ct2")
            a(f"s_ff1_i32_b32 {sD}, {sB}\ns_bitset0_b32 {sB}, {sD}\ns_lshl_b32 {sD}, {sD}, 11\nv_add_u32 v6, {sD}, v5\nglobal_load_dword v9, v6, {sWS} sc1\ns_branch L_ct1")
            a(f"L_ct2:\ns_cmp_lg_u32 {sC}, 0xff\ns_cbranch_scc1 L_ct0")
        self.end()

    def gu_touch_addr(self, r0, rows, ni):
        a = self.a
        a(f"s_min_u32 {sB}, {sXCD}, 3\ns_mul_i32 {sC}, {sXCD}, 5\ns_add_u32 {sC}, {sC}, {sB}")
        a(f"s_mul_i32 {sB}, {sF}, {rows}\ns_add_u32 {sB}, {sB}, {r0}\ns_mul_i32 {sB}, {sB}, 2752\ns_lshl_b32 {sA}, {sC}, 6\ns_add_u32 {sB}, {sB}, {sA}")
        a("v_lshrrev_b32 v8, 3, v1\nv_mul_u32_u24 v8, 2752, v8\nv_and_b32 v5, 7, v1\nv_min_u32 v5, 5, v5\nv_lshl_add_u32 v8, v5, 6, v8")
        a(f"v_add_u32 v8, {sB}, v8")
        for i in range(1, ni):
            a(f"v_add_u32 v{8 + i}, {i * 8 * 2752}, v8\nv_min_u32 v{8 + i}, {512 * 2752 - 4}, v{8 + i}")

    def helper_code(self):
        a = self.a
        ni = self.hr // 64
        a(f"s_min_u32 {sB}, {sXCD}, 3\ns_mul_i32 {sC}, {sXCD}, 5\ns_add_u32 {sC}, {sC}, {sB}")
        a(f"s_and_b32 {sA}, {sF}, 3\ns_mul_i32 {sB}, {sA}, {16 * ni}\ns_lshr_b32 {sA}, {sF}, 2\ns_lshl_b32 {sA}, {sA}, 8\ns_add_u32 {sB}, {sB}, {sA}")
        a(f"s_add_u32 {sB}, {sB}, {256 - self.hr}\ns_mul_i32 {sB}, {sB}, 2752\ns_lshl_b32 {sA}, {sC}, 6\ns_add_u32 {sB}, {sB}, {sA}")
        a("v_lshrrev_b32 v8, 2, v1\nv_mul_u32_u24 v8, 2752, v8\nv_and_b32 v5, 3, v1\nv_lshlrev_b32 v5, 7, v5\nv_min_u32 v5, 380, v5\nv_add_u32 v8, v5, v8")
        a(f"v_add_u32 v8, {sB}, v8")
        for i in range(ni - 1, -1, -1):
            a(f"v_add_u32 v{8 + i}, {i * 16 * 2752}, v8\nv_min_u32 v{8 + i}, {512 * 2752 - 4}, v{8 + i}")
        a(f"s_lshl_b32 {sC}, {sC}, 15\ns_mul_i32 {sA}, {sF}, {6 * 32768 // 8}\ns_add_u32 {sC}, {sC}, {sA}\nv_lshl_add_u32 v20, v1, 7, {sC}")
        for i in range(2, -1, -1):
            a(f"v_add_u32 v{20 + i}, {i * 8192}, v20\nv_min_u32 v{20 + i}, {1376 * 1024 - 4}, v{20 + i}")
        a(f"s_lshl_b32 {sB}, {sXCD}, 19\ns_mul_i32 {sC}, {sF}, {24576 if self.clean else 32768}\ns_add_u32 {sB}, {sB}, {sC}\ns_add_u32 {sB}, {sB}, 0x40000")
        a(f"v_lshl_add_u32 v4, v1, 7, {sB}\ns_movk_i32 {sD}, 0x2000")
        self.lds_wait(*((L_PUB, 1) if self.hpub else (L_VCNT, sNACT)), 6, 7)
        for i in range((3 if self.clean else 4) if self.wotouch else 0):
            a(f"global_load_dword v{48 + i}, v4, {sWO}\nv_add_u32 v4, {sD}, v4")
        if self.clean:
            self.lds_wait(L_PUB, 1, 6, 7)
        if "noffn" in self.exp:
            return
        w = f"s_waitcnt vmcnt({self.hwin})\n"
        for i in range(3 if self.hdown else 0):
            a(f"{w}global_load_dword v{40 + i}, v{20 + i}, {sWD}")
        for i in range(ni):
            a(f"{w}global_load_dword v{56 + 2 * i}, v{8 + i}, {sWG}\n{w}global_load_dword v{57 + 2 * i}, v{8 + i}, {sWU}")
        for i in range(0 if self.hdown else 3):
            a(f"{w}global_load_dword v{40 + i}, v{20 + i}, {sWD}")

    def stream(self):
        a = self.a
        nt = self.nt
        K, V, Q, P, T, SEL, D = 4, 36, 68, 72, 80, 88, 96
        MK, ADR, MREG, FAC = 100, 101, 102, 104
        a("L_stream:")
        if self.prefetch:
            a(f"s_cmp_lg_u32 {sW}, 1\ns_cbranch_scc1 L_nopf")
            a(f"s_getpc_b64 {sP}\nL_pc:\ns_sub_u32 s52, s52, L_pc-{KN}\ns_subb_u32 s53, s53, 0")
            a(f"s_lshr_b32 {sA}, s2, 3\ns_min_u32 {sA}, {sA}, (L_codeend-{KN})/1024\ns_lshl_b32 {sA}, {sA}, 10")
            a(f"v_lshl_add_u32 v3, v1, 4, {sA}\nglobal_load_dwordx4 {vr(124, 4)}, v3, {sP}")
            a("L_nopf:")
        a(f"s_lshr_b32 {sA}, {sJ}, 2\ns_lshl_b32 {sA}, {sA}, 25\ns_lshl_b32 {sB}, {sH}, 20\ns_add_u32 {sA}, {sA}, {sB}")
        a(f"s_and_b32 {sB}, {sJ}, 1\ns_mul_i32 {sB}, {sB}, {sNACT}\ns_add_u32 {sB}, {sB}, {sW}\ns_bitcmp1_b32 {sJ}, 1\ns_cselect_b32 {sC}, {2 * self.nww}, 0")
        a(f"s_add_u32 {sB}, {sB}, {sC}\ns_lshl_b32 {sB}, {sB}, 13\ns_add_u32 {sA}, {sA}, {sB}")
        a(f"s_cmp_gt_u32 {sW}, {sNACT}\ns_cbranch_scc1 L_idle")
        a(f"s_add_u32 {sA}, {sA}, {0xC0000 + 4096 - 8192}\nv_lshl_add_u32 v2, v1, 4, {sA}")
        a("s_waitcnt lgkmcnt(0)")
        self.stamp(1)
        for t in range(8):
            if t == self.nkpre and self.b0:
                a("s_barrier")
            if t == self.nk0:
                a("s_barrier")
            if t == self.nk1:
                a("s_barrier\ns_barrier")
            a(f"global_load_dwordx4 {vr(K + 4 * t, 4)}, v2, {sK} offset:{1024 * t - 4096} {nt}")
        self.stamp(2)
        vload = lambda t: a(f"global_load_dwordx4 {vr(V + 4 * t, 4)}, v2, {sV} offset:{1024 * t - 4096} {nt}")
        if self.nv1:
            a(f"s_bitcmp0_b32 {sJ}, 1\ns_cbranch_scc1 L_vw\ns_barrier\ns_barrier")
            for t in range(self.nv1):
                vload(t)
            a("s_branch L_vr\nL_vw:")
            for t in range(self.nv1):
                vload(t)
            a("s_barrier\ns_barrier\nL_vr:")
        elif self.nk1 == 8:
            a("s_barrier\ns_barrier")
        for t in range(self.nv1, 8):
            vload(t)
        self.lds_inc(L_VCNT, T, T + 1)
        self.stamp(3)
        a(f"s_load_dword {sT}, {sWS}, 0")
        self.sw = sW if not self.diag else "s97"
        sw = self.sw
        a(f"s_sub_u32 {sw}, {sW}, 1")
        self.selectors(SEL, T, 4, bits=3)
        a("v_and_b32 v3, 15, v1\nv_lshlrev_b32 v3, 4, v3")
        a(f"s_mov_b32 {sK1}, 0x3db504f3\ns_mov_b32 {sK2}, 0x3fb8aa3b")
        a(f"v_bfe_u32 {vr(ADR)}, v1, 4, 1\nv_lshlrev_b32 {vr(ADR)}, 6, {vr(ADR)}\nv_lshl_add_u32 {vr(ADR)}, v3, 3, {vr(ADR)}")
        a(f"s_lshl_b32 {sA}, {sH}, 12\ns_lshr_b32 {sB}, {sJ}, 2\ns_lshl_b32 {sB}, {sB}, 11\ns_add_u32 {sA}, {sA}, {sB}")
        a(f"s_and_b32 {sB}, {sJ}, 3\ns_lshl_b32 {sB}, {sB}, 4\ns_add_u32 {sA}, {sA}, {sB}\ns_add_u32 {sA}, {sA}, {WS_OP}\nv_add_u32 {vr(ADR)}, {sA}, {vr(ADR)}")
        a(f"s_lshl_b32 {sA}, {sH}, 7\ns_lshl_b32 {sB}, {sJ}, 4\ns_add_u32 {sA}, {sA}, {sB}\ns_add_u32 {sA}, {sA}, {WS_ML}\nv_mov_b32 {vr(T)}, {sA}")
        a(f"v_cmp_lt_u32 {sM0}, 31, v1\nv_mov_b32 {vr(MK)}, 0xffffff00\nv_cndmask_b32 {vr(ADR)}, {vr(ADR)}, {vr(T)}, {sM0}")
        for t in range(8):
            a(f"v_mov_b32 {vr(P + t)}, 0")
        self.lds_wait(L_QF, 1, T, T + 1)
        self.stamp(4)
        a(f"ds_read_b128 {vr(Q, 4)}, v3 offset:{L_Q}")
        a(f"s_mov_b32 {sLOC}, {sA}")
        self.tag_consts()
        a("s_waitcnt vmcnt(8) lgkmcnt(0)")
        for i in range(4):
            for t in range(8):
                a(f"v_dot2c_f32_bf16 {vr(P + t)}, {vr(K + 4 * t + i)}, {vr(Q + i)}")
        for u in range(4):
            a(f"v_add_f32_dpp {vr(P + u)}, {vr(P + u)}, {vr(P + u)} row_ror:8 row_mask:0xf bank_mask:0x3")
        for u in range(4):
            a(f"v_add_f32_dpp {vr(P + u)}, {vr(P + u + 4)}, {vr(P + u + 4)} row_ror:8 row_mask:0xf bank_mask:0xc")
        for u in range(2):
            a(f"v_add_f32_dpp {vr(P + u)}, {vr(P + u)}, {vr(P + u)} row_shl:4 row_mask:0xf bank_mask:0x5")
        for u in range(2):
            a(f"v_add_f32_dpp {vr(P + u)}, {vr(P + u + 2)}, {vr(P + u + 2)} row_shr:4 row_mask:0xf bank_mask:0xa")
        self.dppred("v_add_f32", [P, P + 1], ("quad_perm:[1,0,3,2]", "quad_perm:[2,3,0,1]"))
        self.bf16r(P, P)
        self.bf16r(P + 1, P + 1)
        a(f"v_mul_f32 {vr(P)}, {sK1}, {vr(P)}\nv_mul_f32 {vr(P + 1)}, {sK1}, {vr(P + 1)}")
        self.bf16r(P, P)
        self.bf16r(P + 1, P + 1)
        a(f"v_max_f32 {vr(MREG)}, {vr(P)}, {vr(P + 1)}")
        self.dppred("v_max_f32", [MREG], ("row_ror:4", "row_ror:8"))
        self.redrows("v_max_f32", [MREG], T + 1)
        a(f"v_mul_f32 {vr(T)}, {sK2}, {vr(MREG)}")
        a(f"v_fma_f32 {vr(P)}, {vr(P)}, {sK2}, -{vr(T)}\nv_fma_f32 {vr(P + 1)}, {vr(P + 1)}, {sK2}, -{vr(T)}")
        a(f"v_exp_f32 {vr(P)}, {vr(P)}\nv_exp_f32 {vr(P + 1)}, {vr(P + 1)}")
        a(f"v_cvt_pk_bf16_f32 {vr(T)}, {vr(P)}, {vr(P + 1)}\nv_add_f32 {vr(P)}, {vr(P)}, {vr(P + 1)}")
        for u in range(4):
            a(f"v_mov_b32_dpp {vr(Q + u)}, {vr(T)} row_newbcast:{4 * u} {FULL}")
        self.dppred("v_add_f32", [P], ("row_ror:4", "row_ror:8"))
        self.redrows("v_add_f32", [P], P + 1)
        a(f"s_lshl_b32 {sA}, {sw}, 2\nv_mov_b32 {vr(T + 7)}, {sA}\nds_write2_b32 {vr(T + 7)}, {vr(MREG)}, {vr(P)} offset0:{L_MAX // 4} offset1:{L_SUM // 4}")
        self.lds_inc(L_MCNT, T, T + 1)
        self.stamp(5)
        for t in range(8):
            for m in range(4):
                a(f"v_perm_b32 {vr(K + 4 * t + m)}, {vr(Q + t // 2)}, {vr(Q + t // 2)}, {vr(SEL + 2 * m + (t & 1))}")
        self.lds_wait(L_MCNT, sNACT, T, T + 1)
        a(f"v_and_b32 {vr(T + 2)}, 15, v1\nv_cmp_gt_u32 vcc, 12, {vr(T + 2)}\nv_min_u32 {vr(T + 2)}, 11, {vr(T + 2)}\nv_lshlrev_b32 {vr(T + 2)}, 2, {vr(T + 2)}")
        a(f"ds_read2_b32 {vr(P + 2, 2)}, {vr(T + 2)} offset0:{L_MAX // 4} offset1:{L_SUM // 4}")
        a(f"s_lshl_b32 {sA}, {sw}, 9\nv_lshl_add_u32 v3, v1, 4, {sA}\nv_mov_b32 {vr(T)}, {L_CNT}\nv_mov_b32 {vr(T + 1)}, 1")
        a(f"v_and_b32 {vr(T + 3)}, 31, v1\nv_lshlrev_b32 {vr(T + 3)}, 4, {vr(T + 3)}\nv_lshrrev_b32 {vr(T + 4)}, 5, v1\nv_mul_u32_u24 {vr(T + 4)}, {512 * self.nh}, {vr(T + 4)}\nv_add_u32 {vr(T + 3)}, {vr(T + 4)}, {vr(T + 3)}")
        a(f"s_sub_u32 {sC}, {sNACT}, 1")
        a("s_waitcnt lgkmcnt(0)")
        a(f"v_cndmask_b32 {vr(P + 3)}, 0, {vr(P + 3)}, vcc\nv_mov_b32 {vr(Q)}, {vr(P + 2)}")
        self.dppred("v_max_f32", [Q], [f"row_ror:{r}" for r in (1, 2, 4, 8)])
        a(f"v_sub_f32 {vr(FAC)}, {vr(MREG)}, {vr(Q)}\nv_sub_f32 {vr(P + 2)}, {vr(P + 2)}, {vr(Q)}")
        a(f"v_mul_f32 {vr(FAC)}, {sK2}, {vr(FAC)}\nv_mul_f32 {vr(P + 2)}, {sK2}, {vr(P + 2)}")
        a(f"v_exp_f32 {vr(FAC)}, {vr(FAC)}\nv_exp_f32 {vr(P + 2)}, {vr(P + 2)}\nv_mov_b32 {vr(MREG)}, {vr(Q)}")
        a(f"v_mul_f32 {vr(MREG + 1)}, {vr(P + 2)}, {vr(P + 3)}\nv_mov_b32 {vr(FAC + 1)}, {vr(FAC)}")
        self.dppred("v_add_f32", [MREG + 1], [f"row_ror:{r}" for r in (1, 2, 4, 8)])
        self.stamp(6)
        for t in range(8):
            a(f"s_waitcnt vmcnt({7 - t})")
            a(f"v_mfma_f32_16x16x32_bf16 {vr(D, 4)}, {vr(K + 4 * t, 4)}, {vr(V + 4 * t, 4)}, {vr(D, 4) if t else 0}")
        self.stamp(7)
        a("s_mov_b32 exec_hi, 0")
        a(f"v_pk_mul_f32 {vr(D, 2)}, {vr(D, 2)}, {vr(FAC, 2)}\nv_pk_mul_f32 {vr(D + 2, 2)}, {vr(D + 2, 2)}, {vr(FAC, 2)}")
        a(f"ds_write_b128 v3, {vr(D, 4)} offset:{L_OP}")
        a("s_mov_b32 exec_lo, 1")
        a(f"ds_add_rtn_u32 {vr(T + 5)}, {vr(T)}, {vr(T + 1)}")
        a("s_waitcnt lgkmcnt(0)")
        a(f"v_readfirstlane_b32 {sA}, {vr(T + 5)}\ns_mov_b64 exec, -1")
        a(f"s_cmp_lg_u32 {sA}, {sC}\ns_cbranch_scc1 L_role")
        for n in range(self.nh):
            a(f"ds_read_b128 {vr(K + 4 * n, 4)}, {vr(T + 3)} offset:{L_OP + 512 * n}")
        a(f"s_cmp_eq_u32 {sLOC}, 3")
        a("s_waitcnt lgkmcnt(0)")
        pk = lambda d, x: a(f"v_pk_add_f32 {vr(d, 2)}, {vr(d, 2)}, {vr(x, 2)}")
        for i in (0, 2):
            pk(K + i, K + 4 + i)
            pk(K + 8 + i, K + 12 + i)
        for i in (0, 2):
            if self.nh == 6:
                pk(K + 16 + i, K + 20 + i)
            pk(K + i, K + 8 + i)
        for i in (0, 2) if self.nh > 4 else ():
            pk(K + i, K + 16 + i)
        for i in range(4):
            a(f"v_permlane32_swap_b32 {vr(K + i)}, {vr(K + 4 + i)}")
        for i in (0, 2):
            pk(K + i, K + 4 + i)
        a(f"v_cndmask_b32 {vr(K)}, {vr(K)}, {vr(MREG)}, {sM0}\nv_cndmask_b32 {vr(K + 1)}, {vr(K + 1)}, {vr(MREG + 1)}, {sM0}")
        self.tag4(K, MK)
        a("s_mov_b32 exec_hi, 1\ns_cbranch_scc1 L_publoc")
        a(f"global_store_dwordx4 {vr(ADR)}, {vr(K, 4)}, {sWS} sc1\ns_branch L_pubdone")
        a(f"L_publoc:\nglobal_store_dwordx4 {vr(ADR)}, {vr(K, 4)}, {sWS}")
        a("L_pubdone:\ns_mov_b32 exec_hi, -1")
        a(f"ds_write_b32 {vr(T)}, {vr(T + 1)} offset:{L_PUB - L_CNT}")
        self.stamp(8)
        a(f"L_role:\ns_cmp_gt_u32 {sw}, 8\ns_cbranch_scc1 L_none")
        self.role("L_wo", "L_none", "L_ffn", "L_none")
        a("L_idle:\ns_waitcnt lgkmcnt(0)")
        a(f"s_load_dword {sT}, {sWS}, 0\ns_mov_b32 {sK2}, 0x3fb8aa3b\nv_mov_b32 {vr(MK)}, 0xffffff00")
        a("s_barrier\n" * (3 if self.b0 else 2) + "s_waitcnt lgkmcnt(0)\ns_barrier")
        self.tag_consts()
        if self.idledma:
            a(f"s_cmp_lg_u32 {sW}, {self.nwn}\ns_cbranch_scc1 L_idle2")
            self.role("L_cwo", "L_none", "L_none", "L_none")
            a("L_idle2:")
        a(f"s_sub_u32 {sw}, {sW}, 1")
        self.lds_wait(L_PUB, 1, T, T + 1)
        a("s_branch L_role")

    def role_wo(self):
        a = self.a
        sw = self.sw
        MK = 100
        B, D, O, ML, X, T, AO, AM, AW, AR, AY = 4, 20, 36, 44, 48, 52, 60, 61, 62, 63, 64
        a(f"L_wo:\ns_cmp_eq_u32 {sw}, 8\ns_cbranch_scc1 L_none")
        a(f"v_lshrrev_b32 v2, 4, v1\nv_bfe_u32 {vr(T)}, v1, 3, 1\nv_and_b32 {vr(T + 1)}, 3, v1\nv_bfe_u32 {vr(T + 2)}, v1, 4, 1\nv_lshrrev_b32 {vr(T + 3)}, 5, v1")
        a(f"s_lshl_b32 {sA}, {sw}, 2\nv_add_u32 v3, {sA}, {vr(T + 2)}\nv_mul_u32_u24 v3, {GUP}, v3\nv_lshl_add_u32 v3, {vr(T + 3)}, 9, v3")
        a(f"v_bfe_u32 {vr(T + 4)}, v1, 2, 2\nv_lshl_add_u32 v3, {vr(T + 4)}, 6, v3\nv_lshl_add_u32 v3, {vr(T + 1)}, 3, v3")
        a(f"s_lshl_b32 {sA}, {sXCD}, 2\ns_lshr_b32 {sB}, {sw}, 1\ns_add_u32 {sA}, {sA}, {sB}")
        a(f"s_lshl_b32 {sB}, {sA}, 7\ns_add_u32 {sB}, {sB}, {WS_ML}\nv_lshl_add_u32 {vr(AM)}, {vr(T)}, 2, {vr(T + 1)}\nv_lshl_add_u32 {vr(AM)}, {vr(AM)}, 4, {sB}")
        a(f"s_lshl_b32 {sA}, {sA}, 12\ns_and_b32 {sB}, {sw}, 1\ns_lshl_b32 {sB}, {sB}, 10\ns_add_u32 {sA}, {sA}, {sB}\ns_add_u32 {sA}, {sA}, {WS_OP}")
        a(f"v_bfe_u32 {vr(AO)}, v1, 2, 1\nv_lshl_add_u32 {vr(AO)}, {vr(AO)}, 1, {vr(T + 2)}\nv_lshl_add_u32 {vr(AO)}, {vr(AO)}, 1, {vr(T + 3)}\nv_lshlrev_b32 {vr(AO)}, 7, {vr(AO)}")
        a(f"v_lshl_add_u32 {vr(AO)}, {vr(T)}, 11, {vr(AO)}\nv_lshl_add_u32 {vr(AO)}, {vr(T + 1)}, 4, {vr(AO)}\nv_add_u32 {vr(AO)}, {sA}, {vr(AO)}")
        a(f"v_and_b32 {vr(AR)}, 15, v1\nv_lshlrev_b32 {vr(AW)}, 2, {vr(AR)}\nv_lshl_add_u32 {vr(AW)}, {vr(T + 3)}, 7, {vr(AW)}\nv_lshl_add_u32 {vr(AW)}, {vr(T + 2)}, 8, {vr(AW)}")
        a(f"s_lshl_b32 {sA}, {sw}, 9\ns_add_u32 {sA}, {sA}, {L_RED}\nv_add_u32 {vr(AW)}, {sA}, {vr(AW)}")
        a(f"v_lshlrev_b32 {vr(AR)}, 4, {vr(AR)}\nv_lshl_add_u32 {vr(AR)}, v2, 10, {vr(AR)}")
        a(f"s_lshl_b32 {sA}, {sXCD}, 11\ns_lshl_b32 {sB}, {sF}, 7\ns_add_u32 {sA}, {sA}, {sB}\ns_add_u32 {sA}, {sA}, {WS_YP}")
        a(f"v_and_b32 {vr(AY)}, 7, v1\nv_lshl_add_u32 {vr(AY)}, {vr(AY)}, 4, {sA}\nv_lshl_add_u32 {vr(AY)}, {vr(T)}, 14, {vr(AY)}")
        a(f"v_cmp_eq_u32 {sM1}, 1, {vr(T + 2)}")

        def mlload():
            a(f"global_load_dwordx4 {vr(ML, 4)}, {vr(AM)}, {sWS} sc1")

        def weights():
            a(f"v_and_b32 {vr(ML)}, {vr(MK)}, {vr(ML)}\nv_and_b32 {vr(ML + 1)}, {vr(MK)}, {vr(ML + 1)}")
            a(f"v_max_f32_dpp {vr(ML + 2)}, {vr(ML)}, {vr(ML)} quad_perm:[1,0,3,2] {FULL}")
            a(f"v_max_f32_dpp {vr(ML + 2)}, {vr(ML + 2)}, {vr(ML + 2)} quad_perm:[2,3,0,1] {FULL}")
            a(f"v_sub_f32 {vr(ML)}, {vr(ML)}, {vr(ML + 2)}\nv_mul_f32 {vr(ML)}, {sK2}, {vr(ML)}\nv_exp_f32 {vr(ML)}, {vr(ML)}")
            a(f"v_mul_f32 {vr(ML + 1)}, {vr(ML + 1)}, {vr(ML)}")
            self.dppred("v_add_f32", [ML + 1], ("quad_perm:[1,0,3,2]", "quad_perm:[2,3,0,1]"))
            a(f"v_rcp_f32 {vr(ML + 1)}, {vr(ML + 1)}\nv_mul_f32 {vr(ML)}, {vr(ML)}, {vr(ML + 1)}")

        def frags():
            self.lds_wait(L_DMA, 1, T + 6, T + 7, tight=True)
            a(f"s_mov_b32 {sSPIN}, 0")
            self.stamp(9)
            for t in range(2):
                for ct in range(2):
                    for hh in range(2):
                        a(f"ds_read_b64_tr_b16 {vr(B + 8 * t + 4 * ct + 2 * hh, 2)}, v3 offset:{L_W + t * 2 * GUP + hh * 256 + ct * 32}")

        def oloads():
            a(f"global_load_dwordx4 {vr(O, 4)}, {vr(AO)}, {sWS} sc1\nglobal_load_dwordx4 {vr(O + 4, 4)}, {vr(AO)}, {sWS} offset:64 sc1")
        if self.tog > 8:
            self.poll(mlload, lambda: self.chk(T, [ML]))
            self.stamp(10)
            self.poll(oloads, lambda: self.chk(T, [O, O + 4]), between=lambda: (weights(), frags()))
        else:
            if self.tog:
                def few():
                    self.chk(T, [ML])
                    a(f"s_and_b32 {sA}, vcc_lo, 0x0f0f\ns_bcnt1_i32_b32 {sA}, {sA}\ns_cmp_gt_u32 {sA}, {8 - self.tog}\ns_cselect_b64 vcc, -1, 0")
                self.poll(mlload, few)
            self.stamp(10)
            self.poll(lambda: (mlload(), oloads()), lambda: self.chk(T, [ML, O, O + 4]))
            frags()
            weights()
        self.stamp(11)
        self.count(1)
        for i in range(8):
            a(f"v_and_b32 {vr(O + i)}, {vr(MK)}, {vr(O + i)}")
        for i in range(0, 8, 2):
            a(f"v_pk_mul_f32 {vr(O + i, 2)}, {vr(O + i, 2)}, {vr(ML, 2)} op_sel_hi:[1,0]")
        self.dppred("v_add_f32", range(O, O + 8), ("quad_perm:[1,0,3,2]", "quad_perm:[2,3,0,1]"))
        for u in range(4):
            a(f"v_cvt_pk_bf16_f32 {vr(X + u)}, {vr(O + 2 * u)}, {vr(O + 2 * u + 1)}")
        a("s_waitcnt lgkmcnt(0)")
        for ct in range(2):
            for t in range(2):
                a(f"v_mfma_f32_16x16x32_bf16 {vr(D + 8 * ct + 4 * t, 4)}, {vr(X, 4)}, {vr(B + 8 * t + 4 * ct, 4)}, 0")
        for ct in range(2):
            a(f"v_cndmask_b32 {vr(O + ct)}, {vr(D + 8 * ct)}, {vr(D + 8 * ct + 4)}, {sM1}")
        a(f"ds_write2_b32 {vr(AW)}, {vr(O)}, {vr(O + 1)} offset0:0 offset1:16\ns_waitcnt lgkmcnt(0)\ns_barrier")
        a(f"s_cmp_lg_u32 {sw}, 0\ns_cbranch_scc1 L_none")
        for n in range(4):
            a(f"ds_read_b128 {vr(B + 4 * n, 4)}, {vr(AR)} offset:{L_RED + 256 * n}")
        a("s_waitcnt lgkmcnt(0)")
        for i in (0, 2):
            a(f"v_pk_add_f32 {vr(B + i, 2)}, {vr(B + i, 2)}, {vr(B + 4 + i, 2)}\nv_pk_add_f32 {vr(B + 8 + i, 2)}, {vr(B + 8 + i, 2)}, {vr(B + 12 + i, 2)}")
        for i in (0, 2):
            a(f"v_pk_add_f32 {vr(B + i, 2)}, {vr(B + i, 2)}, {vr(B + 8 + i, 2)}")
        for swp in ("v_permlane32_swap_b32", "v_permlane16_swap_b32"):
            for i in range(4):
                a(f"{swp} {vr(B + i)}, {vr(B + 4 + i)}")
            for i in (0, 2):
                a(f"v_pk_add_f32 {vr(B + i, 2)}, {vr(B + i, 2)}, {vr(B + 4 + i, 2)}")
        self.tag4(B, MK)
        a("s_mov_b64 exec, 0xffff")
        a(f"global_store_dwordx4 {vr(AY)}, {vr(B, 4)}, {sWS} sc1")
        self.stamp(12)
        self.end()

    def role_ffn(self):
        a = self.a
        sw = self.sw
        BG, BD, F, D, ST, XF = 4, 68, 84, 116, 120, 126
        MK, AY, XR, ADR, AH, AHN, AS, ASW, AA, AAW, AAR, AF, FM, AO, HV = 128, 130, 132, 134, 135, 136, 137, 138, 139, 140, 141, 142, 144, 145, 146
        HNS = 1088
        a(f"L_ffn:\ns_cmp_lg_u32 {sw}, 8\ns_cbranch_scc1 L_ffn1")
        a(f"v_mov_b32 v2, {L_HINT}\ns_mov_b32 {sC}, 0")
        if self.hint:
            a(f"s_lshl_b32 {sA}, {sF}, 7\ns_add_u32 {sA}, {sA}, {WS_HT}\ns_add_u32 s52, s26, {sA}\ns_addc_u32 s53, s27, 0\ns_mov_b32 s98, {sT}\ns_mov_b32 s99, {sT}")

            def hcheck():
                a(f"s_mov_b32 {sA}, 0")
                for i in range(4):
                    a(f"s_cmp_eq_u64 s[{56 + 2 * i}:{57 + 2 * i}], {sTT}\ns_cselect_b32 {sB}, {1 << i}, 0\ns_or_b32 {sA}, {sA}, {sB}")
                if self.incr:
                    a(f"s_cmp_eq_u32 {sA}, {sC}\ns_cbranch_scc1 L_fh0\nv_mov_b32 v3, {sA}\ns_mov_b32 {sC}, {sA}\nds_write_b32 v2, v3\nL_fh0:")
                a(f"s_cmp_lg_u32 {sA}, 15")
            self.spoll(lambda: a((f"s_sleep {self.hsleep}\n" if self.hsleep else "") + f"s_load_dwordx8 s[56:63], {sP}, 0 glc"), hcheck)
        if not (self.hint and self.incr):
            a("v_mov_b32 v3, 15\nds_write_b32 v2, v3")
        self.stamp(2)
        if self.barx:
            a("s_barrier")
        self.end()
        a("L_ffn1:")
        g, b3, q4, r2, hi, b4 = F, F + 1, F + 2, F + 3, F + 4, F + 5
        a(f"v_mov_b32 {vr(MK)}, 0xffffff00")
        a(f"v_lshrrev_b32 {vr(g)}, 4, v1\nv_bfe_u32 {vr(b3)}, v1, 3, 1\nv_and_b32 {vr(q4)}, 3, v1\nv_bfe_u32 {vr(r2)}, v1, 2, 2\nv_lshrrev_b32 {vr(hi)}, 5, v1\nv_bfe_u32 {vr(b4)}, v1, 4, 1")
        a(f"s_lshl_b32 {sA}, {sw}, 4\nv_and_b32 v3, 15, v1\nv_add_u32 v3, {sA}, v3")
        a(f"v_lshlrev_b32 {vr(AHN)}, 3, v3\nv_lshl_add_u32 {vr(AHN)}, {vr(b4)}, 2, {vr(AHN)}\nv_lshl_add_u32 {vr(AH)}, {vr(hi)}, 10, {vr(AHN)}")
        a(f"global_load_dword {vr(XR)}, {vr(AH)}, {sX}")
        a(f"v_mul_u32_u24 v2, {HNS}, {vr(hi)}\nv_add_u32 {vr(AHN)}, v2, {vr(AHN)}")
        a(f"v_lshlrev_b32 {vr(AY)}, 4, v3\nv_lshl_add_u32 {vr(AY)}, {vr(hi)}, 14, {vr(AY)}\nv_lshl_add_u32 {vr(AY)}, {vr(b4)}, 11, {vr(AY)}\nv_bfe_u32 v3, v1, 2, 1")
        a(f"v_add_u32 {vr(AY + 1)}, {WS_YP + 12288}, {vr(AY)}\nv_add_u32 {vr(AY)}, {WS_YP + 4096}, {vr(AY)}")
        a(f"s_lshl_b32 {sA}, {sw}, 3\nv_lshlrev_b32 {vr(AS)}, 6, {vr(hi)}\nv_add_u32 {vr(ASW)}, {sA}, {vr(AS)}")
        a(f"v_and_b32 {vr(AA)}, 1, v1\nv_mul_u32_u24 {vr(AA)}, {HNS}, {vr(AA)}\nv_lshl_add_u32 {vr(AA)}, {vr(b4)}, 5, {vr(AA)}\nv_lshl_add_u32 {vr(AA)}, {vr(hi)}, 4, {vr(AA)}")
        if self.fold:
            a(f"v_and_b32 v2, 2, v1\nv_cmp_ne_u32 vcc, 0, v2\nv_lshlrev_b32 v2, 5, {vr(b4)}\nv_lshl_add_u32 v2, {vr(hi)}, 4, v2")
            a(f"v_add_u32 {vr(AA)}, {L_HN}, {vr(AA)}\nv_add_u32 v2, {L_ONE}, v2\nv_cndmask_b32 {vr(AA)}, {vr(AA)}, v2, vcc\nv_lshlrev_b32 {vr(AS)}, 6, {vr(b4)}")
        a(f"v_lshlrev_b32 {vr(AAR)}, 6, v3\nv_lshl_add_u32 {vr(AAR)}, {vr(g)}, 4, {vr(AAR)}")
        a(f"v_and_b32 {vr(AAW)}, 7, v1\nv_lshlrev_b32 {vr(AAW)}, 1, {vr(AAW)}\nv_lshl_add_u32 {vr(AAW)}, {vr(b4)}, 6, {vr(AAW)}\ns_lshl_b32 {sA}, {sw}, 4\nv_add_u32 {vr(AAW)}, {sA}, {vr(AAW)}")
        a(f"s_lshl_b32 {sB}, {sw}, 1\nv_add_u32 {vr(ADR)}, {sB}, {vr(hi)}\nv_lshl_add_u32 {vr(ADR)}, {vr(ADR)}, 1, v3\nv_mul_u32_u24 {vr(ADR)}, {FP_STRIDE}, {vr(ADR)}")
        a(f"s_lshl_b32 {sB}, {sF}, 7\ns_add_u32 {sB}, {sB}, {WS_FP}\nv_lshl_add_u32 {vr(ADR)}, {vr(q4)}, 4, {vr(ADR)}\nv_lshl_add_u32 {vr(ADR)}, {vr(b4)}, 6, {vr(ADR)}\nv_add_u32 {vr(ADR)}, {sB}, {vr(ADR)}")
        a(f"v_bfe_u32 v2, v1, 1, 1\nv_mul_u32_u24 v2, {L_U - L_G}, v2\nv_mul_u32_u24 v3, {GUP}, {vr(b4)}\nv_add_u32 v2, v2, v3")
        a(f"v_lshl_add_u32 v2, {vr(hi)}, 9, v2\nv_lshl_add_u32 v2, {vr(r2)}, 6, v2\nv_and_b32 v3, 1, v1\nv_lshl_add_u32 v2, v3, 3, v2")
        a(f"s_and_b32 {sA}, {sw}, 3\ns_lshl_b32 {sA}, {sA}, 4\nv_add_u32 v2, {sA}, v2")
        a(f"v_lshl_add_u32 v3, {vr(g)}, 3, {vr(r2)}\nv_mul_u32_u24 v3, {ROWP}, v3\nv_lshl_add_u32 v3, {vr(q4)}, 5, v3\ns_lshl_b32 {sB}, {sw}, 7\ns_add_u32 {sB}, {sB}, {L_D}\nv_add_u32 v3, {sB}, v3")
        a(f"s_mul_i32 {sB}, {sF}, {FP_STRIDE}\ns_lshl_b32 {sC}, {sw}, 6\ns_add_u32 {sB}, {sB}, {sC}\ns_add_u32 {sB}, {sB}, {WS_FP}")
        a(f"v_lshrrev_b32 {vr(AF)}, 2, v1\nv_lshlrev_b32 {vr(AF)}, 7, {vr(AF)}\nv_lshl_add_u32 {vr(AF)}, {vr(q4)}, 4, {vr(AF)}\nv_add_u32 {vr(AF)}, {sB}, {vr(AF)}")
        a(f"v_cmp_gt_u32 vcc, 44, v1\nv_add_u32 {vr(AF + 1)}, 4096, {vr(AF)}\nv_cndmask_b32 {vr(AF + 1)}, {vr(AF)}, {vr(AF + 1)}, vcc\nv_cndmask_b32 {vr(FM)}, 0, {vr(MK)}, vcc")
        a(f"s_and_b32 {sB}, {sF}, 1\ns_lshl_b32 {sB}, {sB}, 9\ns_lshr_b32 {sC}, {sF}, 1\ns_lshl_b32 {sC}, {sC}, 5\ns_add_u32 {sB}, {sB}, {sC}\ns_lshl_b32 {sC}, {sw}, 4\ns_add_u32 {sB}, {sB}, {sC}")
        a(f"v_lshl_add_u32 {vr(AO)}, {vr(b4)}, 1, {vr(hi)}\nv_lshl_add_u32 {vr(AO)}, {vr(q4)}, 2, {vr(AO)}\nv_add_u32 {vr(AO)}, {sB}, {vr(AO)}\nv_lshlrev_b32 {vr(AO)}, 1, {vr(AO)}")
        a(f"s_and_b32 {sB}, {sF}, 1\ns_mul_i32 {sB}, {sB}, {HNS - 1024}\nv_add_u32 {vr(AH)}, {sB}, {vr(AO)}" if self.fold else "")
        a(f"v_cmp_eq_u32 {sM1}, 1, {vr(b4)}")
        a(f"s_mov_b32 {sK1}, 0x3d372713\ns_mov_b32 {sK3}, 0xc0135761")

        def load1(n):
            a(f"global_load_dwordx4 {vr(F + 4 * n, 4)}, {vr(AY + n // 2)}, {sWS} offset:{-4096 if n % 2 == 0 else 0} sc1")

        def loads():
            for n in range(4):
                load1(n)

        def mask1(n):
            for i in range(4):
                a(f"v_and_b32 {vr(F + 4 * n + i)}, {vr(MK)}, {vr(F + 4 * n + i)}")

        def bdreads():
            for n in range(4):
                for hh in range(2):
                    a(f"ds_read_b64_tr_b16 {vr(BD + 4 * n + 2 * hh, 2)}, v3 offset:{hh * 4 * ROWP + n * 8}")

        def bgreads():
            for t in range(16):
                for hh in range(2):
                    a(f"ds_read_b64_tr_b16 {vr(BG + 4 * t + 2 * hh, 2)}, v2 offset:{L_G + t * 2 * GUP + hh * 256}")

        def frags(tag):
            a(f"s_mov_b32 {sRD}, 1")
            bdreads()
            a(f"s_cmp_gt_u32 {sw}, 3\ns_cbranch_scc1 L_ffr{tag}")
            bgreads()
            a(f"L_ffr{tag}:")
        a(f"v_mov_b32 {vr(F + 16)}, {L_DMA}\ns_mov_b32 {sRD}, 0\ns_mov_b32 {sSPIN}, 0\ns_waitcnt vmcnt(0)")
        self.unpack(XF, XR, 1)
        a(f"s_mov_b32 {sC}, 0\nL_fw:\nds_read2_b32 {vr(F + 18, 2)}, {vr(F + 16)} offset0:0 offset1:1")
        a(f"s_add_u32 {sSPIN}, {sSPIN}, 1\ns_cmp_gt_u32 {sSPIN}, {SPIN * 16}\ns_cbranch_scc1 L_bail\ns_waitcnt lgkmcnt(0)")
        a(f"v_readfirstlane_b32 {sB}, {vr(F + 19)}\nv_readfirstlane_b32 {sA}, {vr(F + 18)}\ns_andn2_b32 {sD}, {sB}, {sC}\ns_cbranch_scc0 L_fw1")
        for n in range(4):
            a(f"s_bitcmp0_b32 {sD}, {n}\ns_cbranch_scc1 L_fl{n}")
            load1(n)
            a(f"L_fl{n}:")
        if self.barx:
            a(f"s_mov_b32 {sC}, {sB}\ns_bcnt1_i32_b32 {sD}, {sB}\ns_cmp_ge_u32 {sD}, 3\ns_cbranch_scc1 L_fgo\nL_fw1:")
        else:
            a(f"s_mov_b32 {sC}, {sB}\ns_cmp_eq_u32 {sB}, 15\ns_cbranch_scc1 L_fgo\nL_fw1:")
        a(f"s_andn2_b32 {sA}, {sA}, {sRD}\ns_cbranch_scc0 L_fw0")
        frags("a")
        a("L_fw0:\n" + ("" if self.tight else "s_sleep 1\n") + "s_branch L_fw\nL_fgo:")
        if self.barx:
            a(f"s_andn2_b32 {sA}, {sA}, {sRD}\ns_cbranch_scc0 L_fx")
            frags("c")
            a("L_fx:")
            if self.early:
                a("s_waitcnt vmcnt(0)")
                for n in range(4):
                    a(f"s_bitcmp0_b32 {sC}, {n}\ns_cbranch_scc1 L_fe{n}")
                    self.chk(F + 22, [F + 4 * n])
                    mask1(n)
                    a(f"s_cbranch_vccz L_fe{n}\ns_bitset0_b32 {sC}, {n}\nL_fe{n}:")
            a("s_barrier")
            for n in range(4):
                a(f"s_bitcmp1_b32 {sC}, {n}\ns_cbranch_scc1 L_fm{n}")
                load1(n)
                a(f"L_fm{n}:")
        self.stamp(9)

        def shadow():
            if self.barx:
                a(f"ds_read_b32 {vr(F + 18)}, {vr(F + 16)}")
            self.lds_inc(L_YISS, F + 20, F + 21)
            if self.barx:
                a(f"s_waitcnt lgkmcnt(0)\nv_readfirstlane_b32 {sA}, {vr(F + 18)}")
            a(f"s_mov_b32 {sSPIN}, 0\ns_andn2_b32 {sA}, {sA}, {sRD}\ns_cbranch_scc0 L_fnog")
            frags("b")
            a("L_fnog:")
        if self.early and self.barx:
            shadow()
            a(f"s_mov_b64 {sM0}, 0\ns_waitcnt vmcnt(0)")
            for n in range(4):
                a(f"s_bitcmp1_b32 {sC}, {n}\ns_cbranch_scc1 L_fn{n}")
                self.chk(F + 22, [F + 4 * n])
                mask1(n)
                a(f"s_or_b64 {sM0}, {sM0}, vcc\nL_fn{n}:")
            a(f"s_cmp_eq_u64 {sM0}, 0\ns_cbranch_scc1 L_fok")
            self.poll(loads, lambda: self.chk(F + 16, [F + 4 * n for n in range(4)]))
            for n in range(4):
                mask1(n)
            a("L_fok:")
        else:
            self.poll(loads, lambda: self.chk(F + 16, [F + 4 * n for n in range(4)]), between=shadow, first=False)
            for n in range(4):
                mask1(n)
        self.stamp(10)
        self.count(1)
        for i in (0, 2):
            a(f"v_pk_add_f32 {vr(F + i, 2)}, {vr(F + i, 2)}, {vr(F + 4 + i, 2)}\nv_pk_add_f32 {vr(F + 8 + i, 2)}, {vr(F + 8 + i, 2)}, {vr(F + 12 + i, 2)}")
        for i in (0, 2):
            a(f"v_pk_add_f32 {vr(F + i, 2)}, {vr(F + i, 2)}, {vr(F + 8 + i, 2)}")
        a(f"v_permlane16_swap_b32 {vr(F)}, {vr(F + 2)}\nv_permlane16_swap_b32 {vr(F + 1)}, {vr(F + 3)}")
        a(f"v_pk_add_f32 {vr(F, 2)}, {vr(F, 2)}, {vr(F + 2, 2)}")
        self.bf16r(F, F)
        self.bf16r(F + 1, F + 1)
        a(f"v_pk_add_f32 {vr(F + 2, 2)}, {vr(F, 2)}, {vr(XF, 2)}")
        self.bf16r(F, F + 2)
        self.bf16r(F + 1, F + 3)
        S = F + 6
        a(f"v_add_f32 {vr(S)}, {vr(F)}, {vr(F + 1)}\nv_mul_f32 {vr(S + 1)}, {vr(F)}, {vr(F)}\nv_fmac_f32 {vr(S + 1)}, {vr(F + 1)}, {vr(F + 1)}")
        a(f"v_cvt_pk_bf16_f32 {vr(F + 4)}, {vr(F + 2)}, {vr(F + 3)}")
        self.dppred("v_add_f32", [S, S + 1], [f"row_ror:{r}" for r in (1, 2, 4, 8)])
        a(f"ds_write_b32 {vr(AHN)}, {vr(F + 4)} offset:{L_HN}" if self.fold else f"ds_write_b32 {vr(AH)}, {vr(F + 4)} offset:{L_H}")
        for r in (S, S + 1):
            a(f"v_add_f32_dpp {vr(r)}, {vr(r)}, {vr(r)} row_bcast:15 row_mask:0xa bank_mask:0xf")
        a(f"s_mov_b32 exec_lo, 0x10000\ns_mov_b32 exec_hi, 0x10000\nds_write_b64 {vr(ASW)}, {vr(S, 2)} offset:{L_STAT}")
        a("s_mov_b64 exec, -1\ns_waitcnt lgkmcnt(0)\ns_barrier")
        self.stamp(11)

        def stats(R):
            sub = Gen.__new__(Gen)
            out = []
            sub.a = lambda t: out.extend(t.split("\n"))
            for n in range(4):
                sub.a(f"v_pk_add_f32 {vr(R + 4 * n, 2)}, {vr(R + 4 * n, 2)}, {vr(R + 2 + 4 * n, 2)}")
            sub.a(f"v_pk_add_f32 {vr(R, 2)}, {vr(R, 2)}, {vr(R + 4, 2)}\nv_pk_add_f32 {vr(R + 8, 2)}, {vr(R + 8, 2)}, {vr(R + 12, 2)}")
            sub.a(f"v_pk_add_f32 {vr(R, 2)}, {vr(R, 2)}, {vr(R + 8, 2)}")
            sub.a(f"v_mul_f32 {vr(R)}, 0x3b000000, {vr(R)}\nv_mul_f32 {vr(R + 1)}, 0x3b000000, {vr(R + 1)}")
            sub.a(f"v_fma_f32 {vr(R + 1)}, -{vr(R)}, {vr(R)}, {vr(R + 1)}\nv_max_f32 {vr(R + 1)}, 0, {vr(R + 1)}")
            sub.ln_finish(ST, R, R + 1)
            return out
        if not self.fold:
            for n in range(4):
                a(f"ds_read_b128 {vr(F + 8 + 4 * n, 4)}, {vr(AS)} offset:{L_STAT + 16 * n}")
            a(f"ds_read_u16 {vr(HV)}, {vr(AO)} offset:{L_H}")
            a("s_waitcnt lgkmcnt(0)")
            for x in stats(F + 8):
                a(x)
            self.ln_apply2(F, ST, XF, F + 4)
            a(f"ds_write_b32 {vr(AHN)}, {vr(XF)} offset:{L_HN}\ns_waitcnt lgkmcnt(0)\ns_barrier")

        def announce(tag):
            a(f"s_cmp_lg_u32 {sw}, 4\ns_cbranch_scc1 L_fan{tag}")
            a(f"s_lshl_b32 {sA}, {sF}, 2\ns_add_u32 {sA}, {sA}, {WS_FT}\nv_add_u32 {vr(BG)}, {sF}, v1\nv_and_b32 {vr(BG)}, {self.nrep - 1}, {vr(BG)}\nv_lshl_add_u32 {vr(BG)}, {vr(BG)}, 8, {sA}\nv_mov_b32 {vr(BG + 1)}, {sT}")
            for i in range(self.clag):
                a(f"ds_read_b32 {vr(BG + 2)}, {vr(AS)}\ns_waitcnt lgkmcnt(0)")
            a(f"s_bfm_b64 exec, {self.nrep}, 0\nglobal_store_dword {vr(BG)}, {vr(BG + 1)}, {sWS} sc1\ns_mov_b64 exec, -1\nL_fan{tag}:")
        a(f"s_cmp_lt_u32 {sw}, 4\ns_cbranch_scc1 L_fgu")
        if self.bump == "early":
            a(f"s_lshl_b32 {sA}, {sF}, 3\ns_add_u32 {sA}, {sA}, {sw}\ns_cmp_lg_u32 {sA}, 7\ns_cbranch_scc1 L_fnb")
            a(f"v_mov_b32 {vr(BG)}, 0\nv_mov_b32 {vr(BG + 1)}, {sT}\ns_mov_b64 exec, 1\nglobal_store_dword {vr(BG)}, {vr(BG + 1)}, {sWS} sc1\ns_mov_b64 exec, -1\nL_fnb:")
        if self.cpt == "hn":
            announce("a")
        a(f"s_branch L_fact\nL_fgu:\ns_cmp_lg_u32 {sRD}, 0\ns_cbranch_scc1 L_fgu2")
        bgreads()
        a("s_waitcnt lgkmcnt(0)\nL_fgu2:")
        hoff = 0 if self.fold else L_HN
        fill = []
        pre = 4 if self.fold and self.micro else 0
        for t in range(pre):
            a(f"ds_read_b128 {vr(F + 4 * t, 4)}, {vr(AA)} offset:{hoff + 64 * t}")
        if self.fold:
            SR = 144 + 4
            for n in range(3):
                a(f"ds_read_b128 {vr(SR + 4 * n, 4)}, {vr(AS)} offset:{L_STAT + 16 * n}")
            a(f"ds_read_b128 {vr(ST + 4, 4)}, {vr(AS)} offset:{L_STAT + 48}")
            fill = [x.replace(vr(SR + 12, 2), vr(ST + 4, 2)).replace(vr(SR + 14, 2), vr(ST + 6, 2)) for x in stats(SR)]
        for t in range(pre, 8):
            a(f"ds_read_b128 {vr(F + 4 * t, 4)}, {vr(AA)} offset:{hoff + 64 * t}")
        for t in range(16):
            a(f"s_waitcnt lgkmcnt({11 if t < pre else min(7, 15 - t)})")
            a(f"v_mfma_f32_16x16x32_bf16 {vr(D, 4)}, {vr(F + 4 * (t % 8), 4)}, {vr(BG + 4 * t, 4)}, {vr(D, 4) if t else 0}")
            if t < 8:
                a(f"ds_read_b128 {vr(F + 4 * t, 4)}, {vr(AA)} offset:{hoff + 64 * (t + 8)}")
            nf = (0 if t < pre else 2) if pre else (1 if t < 8 else 2)
            for x in fill[:nf]:
                a(x)
            fill = fill[nf:]
        assert not fill
        G = BG
        a(f"v_cndmask_b32 {vr(G)}, {vr(D)}, {vr(D + 1)}, {sM1}")
        if self.fold:
            a(f"v_fma_f32 {vr(G)}, -{vr(ST)}, {vr(D + 2)}, {vr(G)}\nv_mul_f32 {vr(G)}, {vr(G)}, {vr(ST + 4)}")
        self.bf16r(G, G)
        a(f"v_mul_f32 {vr(G + 2)}, {vr(G)}, {vr(G)}\nv_mul_f32 {vr(G + 3)}, {sK3}, {vr(G)}")
        a(f"v_mov_b32_dpp {vr(G + 1)}, {vr(G)} row_ror:8 {FULL}")
        a(f"v_fma_f32 {vr(G + 2)}, {vr(G + 2)}, {sK1}, 1.0")
        a(f"v_mul_f32 {vr(G + 2)}, {vr(G + 2)}, {vr(G + 3)}\nv_exp_f32 {vr(G + 2)}, {vr(G + 2)}\nv_add_f32 {vr(G + 2)}, 1.0, {vr(G + 2)}")
        a(f"v_rcp_f32 {vr(G + 2)}, {vr(G + 2)}\nv_mul_f32 {vr(G)}, {vr(G)}, {vr(G + 2)}")
        self.bf16r(G, G)
        a(f"v_mul_f32 {vr(G)}, {vr(G)}, {vr(G + 1)}\nv_cvt_pk_bf16_f32 {vr(G)}, {vr(G)}, {vr(G)}")
        a(f"s_mov_b64 exec, 0x00ff00ff\nds_write_b16 {vr(AAW)}, {vr(G)} offset:{L_ACT}\ns_mov_b64 exec, -1")
        a("L_fact:")
        if self.fold:
            a(f"ds_read_u16 {vr(HV)}, {vr(AH)} offset:{L_HN}")
        for i in range(16):
            a(f"v_mov_b32 {vr(F + i)}, 0")
        a("s_waitcnt lgkmcnt(0)\ns_barrier")
        self.stamp(12)
        if self.cpt == "act":
            announce("b")
        a(f"s_cmp_lg_u32 {sRD}, 0\ns_cbranch_scc1 L_fdn")
        bdreads()
        a("L_fdn:")
        for n in range(4):
            a(f"s_mov_b32 exec_lo, {0x11111111 << n:#x}\ns_mov_b32 exec_hi, {0x11111111 << n:#x}")
            a(f"ds_read_b128 {vr(F + 4 * n, 4)}, {vr(AAR)} offset:{L_ACT}")
        a(f"s_mov_b64 exec, -1\nv_lshlrev_b32 {vr(HV)}, 16, {vr(HV)}")
        a("s_waitcnt lgkmcnt(0)")
        for n in range(4):
            a(f"v_mfma_f32_16x16x32_bf16 {vr(D, 4)}, {vr(BD + 4 * n, 4)}, {vr(F + 4 * n, 4)}, {vr(D, 4) if n else 0}")
        a("s_mov_b32 exec_lo, 0x00ff00ff\ns_mov_b32 exec_hi, 0x00ff00ff")
        self.tag4(D, MK)
        a(f"global_store_dwordx4 {vr(ADR)}, {vr(D, 4)}, {sWS} sc1")
        self.stamp(13)
        a(f"s_mov_b64 exec, -1\ns_cmp_ge_u32 {sF}, 32\ns_cbranch_scc1 L_none\ns_cmp_ge_u32 {sw}, 2\ns_cbranch_scc1 L_none")
        if self.cpt in ("hn", "act"):
            a(f"s_and_b32 {sA}, {sF}, {self.nrep - 1}\ns_lshl_b32 {sA}, {sA}, 8\ns_add_u32 {sA}, {sA}, {WS_FT}\ns_add_u32 s52, s26, {sA}\ns_addc_u32 s53, s27, 0\ns_mov_b32 s98, {sT}\ns_mov_b32 s99, {sT}")

            def fcheck():
                pairs = list(range(4, 20, 2)) + list(range(64, 80, 2)) + list(range(56, 64, 2)) + [44]
                a(f"s_xor_b32 s46, s46, {sT}")
                for p in pairs:
                    a(f"s_xor_b64 s[{p}:{p + 1}], s[{p}:{p + 1}], {sTT}")
                a("s_or_b32 s4, s4, s46")
                for p in pairs[1:]:
                    a(f"s_or_b64 s[4:5], s[4:5], s[{p}:{p + 1}]")
            self.spoll(lambda: a(f"s_load_dwordx16 s[4:19], {sP}, 0 glc\ns_load_dwordx16 s[64:79], {sP}, 64 glc\ns_load_dwordx8 s[56:63], {sP}, 128 glc\ns_load_dwordx4 s[44:47], {sP}, 160 glc"), fcheck)
        elif self.csleep:
            a(f"s_sleep {self.csleep}")
        elif self.ackwait:
            a("s_waitcnt vmcnt(0)")

        def floads():
            a(f"global_load_dwordx4 {vr(F, 4)}, {vr(AF)}, {sWS} sc1\nglobal_load_dwordx4 {vr(F + 4, 4)}, {vr(AF)}, {sWS} offset:2048 sc1")
            a(f"global_load_dwordx4 {vr(F + 8, 4)}, {vr(AF + 1)}, {sWS} sc1")
        self.poll(floads, lambda: self.chk(F + 12, [F, F + 4, F + 8]))
        self.count(2)
        for i in range(8):
            a(f"v_and_b32 {vr(F + i)}, {vr(MK)}, {vr(F + i)}")
        for i in range(4):
            a(f"v_and_b32 {vr(F + 8 + i)}, {vr(FM)}, {vr(F + 8 + i)}")
        for k in (4, 8):
            for i in (0, 2):
                a(f"v_pk_add_f32 {vr(F + i, 2)}, {vr(F + i, 2)}, {vr(F + k + i, 2)}")
        self.tr_reduce4(F, (4, 8))
        self.bf16r(F, F)
        a("s_mov_b32 exec_lo, 0x000f000f\ns_mov_b32 exec_hi, 0x000f000f")
        a(f"v_add_f32 {vr(F)}, {vr(F)}, {vr(HV)}\nv_cvt_pk_bf16_f32 {vr(F)}, {vr(F)}, {vr(F)}")
        a(f"global_store_short {vr(AO)}, {vr(F)}, {sOUT} {self.outf}")
        self.stamp(14)
        if self.bump != "early" or self.pad:
            a(f"s_or_b32 {sA}, {sF}, {sw}\ns_cmp_lg_u32 {sA}, 0\ns_cbranch_scc1 L_none")
        if self.bump != "early":
            a(f"v_mov_b32 v2, 0\nv_mov_b32 v3, {sT}\ns_mov_b64 exec, 1\nglobal_store_dword v2, v3, {sWS} sc1")
        if self.pad:
            a(f"s_mov_b32 s88, {self.pad}")
            if self.probe in ("smax", "smin", "smed"):
                op = "v_max_i32" if self.probe == "smax" else ("v_min_i32" if self.probe == "smin" else "v_add_u32")
                a(f"s_mov_b64 exec, -1\nv_lshlrev_b32 v2, 4, v1\nv_add_u32 v2, {WS_ST}, v2\nglobal_load_dwordx4 v[4:7], v2, {sWS} sc1\ns_waitcnt vmcnt(0)")
                for i in range(4):
                    a(f"v_subrev_u32 v{4 + i}, s80, v{4 + i}")
                a(f"{op} v4, v4, v5\n{op} v6, v6, v7\n{op} v4, v4, v6")
                self.dppred(op, [4], [f"row_ror:{r}" for r in (1, 2, 4, 8)])
                self.redrows(op, [4], 5)
                if self.probe == "smed":
                    a("v_ashrrev_i32 v4, 8, v4")
                a("v_readfirstlane_b32 s84, v4\ns_add_u32 s84, s84, 300\ns_add_u32 s84, s84, s80")
            if self.probe is not None:
                a("s_waitcnt lgkmcnt(0)\ns_sub_u32 s84, s84, s80\ns_lshl_b32 s84, s84, 2\ns_min_u32 s84, s84, 20000\ns_add_u32 s88, s88, s84")
            a("L_pad:\ns_memrealtime s[86:87]\ns_waitcnt lgkmcnt(0)\ns_sub_u32 s86, s86, s80\ns_cmp_lt_u32 s86, s88\ns_cbranch_scc1 L_pad")
        self.end()


if __name__ == "__main__":
    out = sys.argv[1]
    kw = {}
    for x in sys.argv[2:]:
        k, v = x.split("=")
        kw[k] = {"True": True, "False": False}.get(v, v)
    g = Gen(**kw)
    open(out, "w").write(g.build())
    print("written", out, "nops", g.nops)
```

```python
import sys
from asmlib import Asm

KN = "sequential_preLN__sliding_block_cached__geglu_ffn__decode_kernel"
HEADER = open("sequential_preLN__sliding_block_cached__geglu_ffn__decode.s.ref").read().split("; Override launch")[0]

WS_FT, WS_HT, WS_XT, WS_QP, WS_OP, WS_ML, WS_YP, WS_FP, WS_ST = 0x4A000, 0x48000, 0x400, 0x1000, 0x50000, 0x70000, 0x80000, 0x110000, 0x200000
FP_STRIDE = 6144
TAGC = 0x9E3779B9
L_Q, L_MAX, L_SUM, L_CNT, L_VCNT, L_MCNT, L_QF, L_PUB, L_DMA, L_HINT, L_YISS = 0, 256, 304, 352, 356, 360, 364, 368, 372, 376, 380
L_OP, L_RED, L_STAT, L_ACT, L_H, L_HN, L_W = 512, 6656, 10752, 11008, 11264, 13312, 15616
ROWP = 1040
GUP = 1056
L_G = L_W
L_U = L_G + 32 * GUP + 16
L_D = L_U + 32 * GUP + 240
LDS_BYTES = L_D + 32 * ROWP
L_ONE = L_H + 128
SPIN = 1 << 16

sX, sK, sV, sWQ, sWO, sWG, sWU, sWD, sOUT, sWS = "s[4:5]", "s[6:7]", "s[8:9]", "s[10:11]", "s[12:13]", "s[16:17]", "s[18:19]", "s[20:21]", "s[22:23]", "s[26:27]"
sXCD, sH, sJ, sW, sT = "s28", "s29", "s30", "s31", "s32"
sT1, sT2, sT3 = "s33", "s34", "s35"
sSELA, sSELB, sHI = "s36", "s37", "s38"
sSPIN = "s39"
sA, sB, sC, sD = "s40", "s41", "s42", "s43"
sM0, sM1 = "s[44:45]", "s[46:47]"
sF = "s48"
sK1, sK2, sK3 = "s49", "s50", "s51"
sP = "s[52:53]"
sLOC, sNACT, sRD = "s54", "s55", "s96"
sTT = "s[98:99]"
ST0 = 80
FULL = "row_mask:0xf bank_mask:0xf"


def vr(a, n=1):
    return f"v{a}" if n == 1 else f"v[{a}:{a + n - 1}]"


class Gen:
    def __init__(self, diag=False, nt="nt", wnt="nt", prefetch=True, pad=0, lds=None, nvg=160, probe=None, stamps=None,
                 nk0=4, helper=True, hrow0=128, local=True, ackwait=True, nk1=8, optouch=True, window=True, exp="", wwin=15, hint=True, lag=5, fwin=32, downearly=True, b0=True, tight=False, nww=8, wotouch=True, nv1=0, hwin=3, idledma=True, hpub=False, fpub=False, nth=0, nlate=12, hgu=0, hall=True, tlb=True, cpt="ack", hmode="s", hsleep=0, fchk=8, fwin0=11, fk0=24, incr=True, bump="early", outf="", nkpre=1, clag=0, nrep=32, wopair=False, frot=True, wk0=16, hr=128, wont="nt", fnt="", barx=True, hdown=False, clean=False, fpre=8, wpre=8, tog=9, csleep=0, fold=True, micro=True, early=False, hdepth=0, xth=3, ytouch=False, prew=""):
        self.a = Asm()
        self.diag, self.nt, self.wnt, self.prefetch = diag, nt, wnt, prefetch
        self.uid = 0
        self.pad, self.probe, self.stamps, self.sec = int(pad), probe, stamps, ""
        self.nk0, self.helper, self.hrow0, self.local, self.ackwait = int(nk0), helper, int(hrow0), local, ackwait
        self.nk1 = int(nk1)
        self.optouch, self.window, self.exp, self.wwin = optouch, window, exp, int(wwin)
        self.hint, self.lag, self.fwin = hint, int(lag), int(fwin)
        self.downearly, self.b0, self.tight = downearly, b0, tight
        self.nww, self.wotouch = int(nww), wotouch
        self.nwn = 16 - self.nww
        self.incr, self.bump, self.outf, self.nkpre, self.clag = incr, bump, outf, int(nkpre), int(clag)
        self.slots = {}
        self.prew = prew
        self.xth, self.ytouch = int(xth), ytouch
        self.hdepth = int(hdepth)
        self.micro, self.early = micro, early
        self.fold = fold
        self.tog, self.csleep = int(tog), int(csleep)
        self.clean, self.fpre, self.wpre = clean, int(fpre), int(wpre)
        self.barx, self.hdown = barx, hdown
        self.wont, self.fnt = wont, fnt
        self.hr = int(hr)
        self.wopair, self.frot, self.wk0 = wopair, frot, int(wk0)
        self.nrep = int(nrep)
        self.hmode, self.hsleep, self.fchk, self.fwin0, self.fk0 = hmode, int(hsleep), int(fchk), int(fwin0), int(fk0)
        self.hall, self.tlb, self.cpt = hall, tlb, cpt
        self.hpub, self.fpub, self.nth, self.nlate, self.hgu = hpub, fpub, int(nth), int(nlate), int(hgu)
        self.nv1, self.hwin, self.idledma = int(nv1), int(hwin), idledma and self.nww < 8
        self.nwaves = max(self.nwn, 9) + 1
        self.nh = (4 if self.nwn == 8 and micro else 5) if self.nwn <= 10 else 6
        self.lds = int(lds) if lds else LDS_BYTES
        self.nvg = int(nvg)

    def stamp(self, i):
        key = self.sec + str(i)
        if self.probe == key:
            self.a("s_memrealtime s[84:85]")
        if self.diag and key in self.stamps:
            r = self.slot(i)
            self.a(f"s_memrealtime s[{r}:{r + 1}]")

    def slot(self, i):
        if i not in self.slots:
            self.slots[i] = ST0 + 4 + 2 * len(self.slots)
            assert self.slots[i] <= 94, "at most six stamp slots"
        return self.slots[i]

    def count(self, i):
        if self.diag and self.stamps is not None and ("n" + self.sec + str(i)) in self.stamps:
            self.a(f"s_add_u32 s{self.slot(i)}, {sSPIN}, 1")

    def end(self):
        self.a("s_branch L_exit" if self.diag else "s_endpgm")

    def bf16r(self, d, x):
        self.a(f"v_cvt_pk_bf16_f32 {vr(d)}, 0, {vr(x)}")

    def unpack(self, d, s, n):
        for i in range(n):
            self.a(f"v_lshlrev_b32 {vr(d + 2 * i)}, 16, {vr(s + i)}\nv_and_b32 {vr(d + 2 * i + 1)}, {sHI}, {vr(s + i)}")

    def dppred(self, op, regs, mods):
        for mod in mods:
            for r in regs:
                self.a(f"{op}_dpp {vr(r)}, {vr(r)}, {vr(r)} {mod} {FULL}")

    def redrows(self, op, regs, tmp):
        a = self.a
        for sw in ("v_permlane16_swap_b32", "v_permlane32_swap_b32"):
            for i, r in enumerate(regs):
                a(f"v_mov_b32 {vr(tmp + i)}, {vr(r)}")
            for i, r in enumerate(regs):
                a(f"{sw} {vr(r)}, {vr(tmp + i)}")
            for i, r in enumerate(regs):
                a(f"{op} {vr(r)}, {vr(r)}, {vr(tmp + i)}")

    def red8x(self, op, regs, tmp):
        self.dppred(op, regs, ("quad_perm:[1,0,3,2]", "quad_perm:[2,3,0,1]", "row_half_mirror"))
        self.redrows(op, regs, tmp)

    def selectors(self, sel, t0, nm, bits=2):
        a = self.a
        a(f"v_and_b32 {vr(t0)}, 1, v1")
        a(f"v_cmp_eq_u32 vcc, 1, {vr(t0)}")
        a(f"v_mov_b32 {vr(t0 + 1)}, 0x0c0c0100\nv_mov_b32 {vr(t0 + 2)}, 0x01000c0c")
        a(f"v_cndmask_b32 {vr(t0 + 1)}, {vr(t0 + 1)}, {vr(t0 + 2)}, vcc")
        a(f"v_mov_b32 {vr(t0 + 2)}, 0x0c0c0302\nv_mov_b32 {vr(t0 + 3)}, 0x03020c0c")
        a(f"v_cndmask_b32 {vr(t0 + 2)}, {vr(t0 + 2)}, {vr(t0 + 3)}, vcc")
        a(f"v_bfe_u32 {vr(t0)}, v1, 1, {bits}")
        a(f"v_mov_b32 {vr(t0 + 3)}, 0x0c0c0c0c")
        for m in range(nm):
            a(f"v_cmp_eq_u32 vcc, {m}, {vr(t0)}")
            a(f"v_cndmask_b32 {vr(sel + 2 * m)}, {vr(t0 + 3)}, {vr(t0 + 1)}, vcc")
            a(f"v_cndmask_b32 {vr(sel + 2 * m + 1)}, {vr(t0 + 3)}, {vr(t0 + 2)}, vcc")

    def tag_consts(self):
        a = self.a
        a(f"s_add_u32 {sT}, {sT}, {TAGC}")
        a(f"s_lshr_b32 {sT1}, {sT}, 8\ns_lshr_b32 {sT2}, {sT}, 16\ns_lshr_b32 {sT3}, {sT}, 24")
        a(f"s_mov_b32 {sSELA}, 0x0c0c0400\ns_mov_b32 {sSELB}, 0x04000c0c")

    def tag4(self, d, mask):
        for i, s in enumerate((sT, sT1, sT2, sT3)):
            self.a(f"v_bfi_b32 {vr(d + i)}, {vr(mask)}, {vr(d + i)}, {s}")

    def chk(self, t, gs):
        a = self.a
        for n, g in enumerate(gs):
            a(f"v_perm_b32 {vr(t + 2 * n)}, {vr(g + 1)}, {vr(g)}, {sSELA}")
            a(f"v_perm_b32 {vr(t + 2 * n + 1)}, {vr(g + 3)}, {vr(g + 2)}, {sSELB}")
        for n, g in enumerate(gs):
            a(f"v_bitop3_b32 {vr(t + 2 * n)}, {vr(t + 2 * n)}, {vr(t + 2 * n + 1)}, {sT} bitop3:0x56")
        rest = [t + 2 * n for n in range(1, len(gs))]
        while rest:
            if len(rest) >= 2:
                a(f"v_or3_b32 {vr(t)}, {vr(t)}, {vr(rest[0])}, {vr(rest[1])}")
                rest = rest[2:]
            else:
                a(f"v_or_b32 {vr(t)}, {vr(t)}, {vr(rest[0])}")
                rest = []
        a(f"v_cmp_ne_u32 vcc, 0, {vr(t)}")

    def poll(self, loads, check, between=None, first=True):
        a = self.a
        self.uid += 1
        L = self.cur_poll = f"L_poll{self.uid}"
        a(f"s_mov_b32 {sSPIN}, 0")
        if between:
            if first:
                loads()
            between()
            a(f"s_branch {L}w")
        a(f"{L}:")
        loads()
        a(f"s_add_u32 {sSPIN}, {sSPIN}, 1\ns_cmp_gt_u32 {sSPIN}, {SPIN}\ns_cbranch_scc1 L_bail")
        a(f"{L}w:\ns_waitcnt vmcnt(0)\n{L}c:")
        check()
        a(f"s_cbranch_vccnz {L}")

    def spoll(self, loads, check, keep=0):
        a = self.a
        self.uid += 1
        L = f"L_sp{self.uid}"
        a(f"s_mov_b32 {sSPIN}, 0\n{L}:")
        loads()
        a(f"s_add_u32 {sSPIN}, {sSPIN}, 1\ns_cmp_gt_u32 {sSPIN}, {SPIN}\ns_cbranch_scc1 L_bail\ns_waitcnt lgkmcnt({keep})")
        check()
        a(f"s_cbranch_scc1 {L}")

    def lds_wait(self, word, val, va, vt, tight=False):
        a = self.a
        self.uid += 1
        L = f"L_lw{self.uid}"
        a(f"v_mov_b32 {vr(va)}, {word}\ns_mov_b32 {sSPIN}, 0\n{L}:")
        a(f"ds_read_b32 {vr(vt)}, {vr(va)}\ns_add_u32 {sSPIN}, {sSPIN}, 1\ns_cmp_gt_u32 {sSPIN}, {SPIN * 16}\ns_cbranch_scc1 L_bail")
        a(f"s_waitcnt lgkmcnt(0)\nv_readfirstlane_b32 {sA}, {vr(vt)}\ns_cmp_ge_u32 {sA}, {val}\n" + (f"s_cbranch_scc0 {L}" if tight and self.tight else f"s_cbranch_scc1 {L}d\ns_sleep 1\ns_branch {L}\n{L}d:"))

    def lds_inc(self, word, va, vt):
        self.a(f"v_mov_b32 {vr(va)}, {word}\nv_mov_b32 {vr(vt)}, 1\ns_mov_b64 exec, 1\nds_add_u32 {vr(va)}, {vr(vt)}\ns_mov_b64 exec, -1")

    def tr_reduce4(self, v, rots):
        a = self.a
        a(f"v_permlane32_swap_b32 {vr(v)}, {vr(v + 1)}")
        a(f"v_permlane32_swap_b32 {vr(v + 2)}, {vr(v + 3)}")
        a(f"v_add_f32 {vr(v)}, {vr(v)}, {vr(v + 1)}")
        a(f"v_add_f32 {vr(v + 2)}, {vr(v + 2)}, {vr(v + 3)}")
        a(f"v_permlane16_swap_b32 {vr(v)}, {vr(v + 2)}")
        a(f"v_add_f32 {vr(v)}, {vr(v)}, {vr(v + 2)}")
        self.dppred("v_add_f32", [v], [f"row_ror:{r}" for r in rots])

    def ln_finish(self, t, mean, var):
        a = self.a
        self.bf16r(var, var)
        self.bf16r(t, mean)
        a(f"v_add_f32 {vr(var)}, 0x3727c5ac, {vr(var)}")
        self.bf16r(var, var)
        a(f"v_sqrt_f32 {vr(var)}, {vr(var)}")
        self.bf16r(t + 2, var)
        a(f"v_rcp_f32 {vr(t + 4)}, {vr(t + 2)}")

    def ln_apply2(self, F, t, P, tmp):
        a = self.a
        a(f"v_pk_add_f32 {vr(F, 2)}, {vr(F, 2)}, {vr(t, 2)} op_sel_hi:[1,0] neg_lo:[0,1] neg_hi:[0,1]")
        self.bf16r(F, F)
        self.bf16r(F + 1, F + 1)
        a(f"v_pk_mul_f32 {vr(tmp, 2)}, {vr(F, 2)}, {vr(t + 4, 2)} op_sel_hi:[1,0]")
        a(f"v_pk_fma_f32 {vr(F, 2)}, {vr(tmp, 2)}, {vr(t + 2, 2)}, {vr(F, 2)} op_sel_hi:[1,0,1] neg_lo:[1,0,0] neg_hi:[1,0,0]")
        a(f"v_pk_fma_f32 {vr(F, 2)}, {vr(F, 2)}, {vr(t + 4, 2)}, {vr(tmp, 2)} op_sel_hi:[1,0,1]")
        a(f"v_cvt_pk_bf16_f32 {vr(P)}, {vr(F)}, {vr(F + 1)}")

    def gemv16(self, D, X, SEL, B, A, steps):
        a = self.a
        for t in range(steps):
            for m in range(2):
                a(f"v_perm_b32 {vr(A + 2 * t + m)}, {vr(X + t // 2)}, {vr(X + t // 2)}, {vr(SEL + 2 * m + (t & 1))}")
            if t >= 1:
                u = t - 1
                a(f"v_mfma_f32_16x16x16_bf16 {vr(D, 4)}, {vr(A + 2 * u, 2)}, {vr(B + 2 * u, 2)}, {vr(D, 4) if u else 0}")
        u = steps - 1
        a(f"v_mfma_f32_16x16x16_bf16 {vr(D, 4)}, {vr(A + 2 * u, 2)}, {vr(B + 2 * u, 2)}, {vr(D, 4)}")

    def role(self, lw, lh, lf, ln):
        a = self.a
        a(f"s_and_b32 {sA}, {sH}, 3\ns_lshl_b32 {sF}, {sA}, 2\ns_lshr_b32 {sA}, {sJ}, 2\ns_lshl_b32 {sA}, {sA}, 1\ns_add_u32 {sF}, {sF}, {sA}")
        a(f"s_and_b32 {sA}, {sJ}, 1\ns_add_u32 {sF}, {sF}, {sA}")
        a(f"s_bitcmp0_b32 {sJ}, 1\ns_cbranch_scc1 {lw}")
        a(f"s_cmp_lt_u32 {sF}, 8\ns_cbranch_scc1 {lh}")
        a(f"s_sub_u32 {sA}, {sF}, 8")
        a(f"s_min_u32 {sB}, {sXCD}, 3\ns_mul_i32 {sF}, {sXCD}, 5\ns_add_u32 {sF}, {sF}, {sB}\ns_add_u32 {sF}, {sF}, {sA}")
        a(f"s_cmp_lt_u32 {sXCD}, 3\ns_cselect_b32 {sB}, 6, 5\ns_cmp_lt_u32 {sA}, {sB}\ns_cbranch_scc1 {lf}")
        a(f"s_branch {ln}")

    def build(self):
        a = self.a
        a(f"{KN}:")
        if self.diag or self.pad:
            a(f"s_memrealtime s[{ST0}:{ST0 + 1}]")
        a("s_load_dwordx16 s[4:19], s[0:1], 0\ns_load_dwordx8 s[20:27], s[0:1], 64")
        a("s_cmp_ge_u32 s2, 256\ns_cbranch_scc1 L_bail")
        if self.diag:
            for i in range(2, 8):
                a(f"s_mov_b32 s{ST0 + 2 * i}, 0")
        a(f"v_readfirstlane_b32 {sW}, v0\nv_and_b32 v1, 63, v0")
        a(f"s_and_b32 {sXCD}, s2, 7\ns_lshr_b32 {sJ}, s2, 3\ns_lshr_b32 {sH}, s2, 6\ns_lshl_b32 {sA}, {sXCD}, 2\ns_add_u32 {sH}, {sH}, {sA}")
        a(f"s_and_b32 {sJ}, {sJ}, 7\ns_lshr_b32 {sW}, {sW}, 6\ns_mov_b32 {sHI}, 0xffff0000")
        a(f"s_bitcmp0_b32 {sJ}, 1\ns_cselect_b32 {sNACT}, {self.nww}, {self.nwn}")
        a(f"s_cmp_lg_u32 {sW}, 0\ns_cbranch_scc1 L_stream")
        for self.sec, part in (("c", self.comm), ("s", self.stream), ("w", self.role_wo), ("f", self.role_ffn)):
            part()
        a("L_none:")
        self.end()
        if self.diag:
            a("L_exit:")
            a("s_mov_b64 exec, -1\ns_waitcnt vmcnt(0) lgkmcnt(0)")
            a(f"s_memrealtime s[{ST0 + 2}:{ST0 + 3}]\ns_waitcnt lgkmcnt(0)")
            a(f"s_mul_i32 {sA}, s2, 12\ns_add_u32 {sA}, {sA}, {sW}\ns_lshl_b32 {sA}, {sA}, 6\ns_add_u32 {sA}, {sA}, {WS_ST}")
            for i in range(16):
                src = {0: f"s{ST0}", 15: f"s{ST0 + 2}"}.get(i, f"s{self.slots[i]}" if i in self.slots else "0")
                a(f"v_mov_b32 v{4 + i}, {src}")
            a(f"v_mov_b32 v2, {sA}\ns_mov_b64 exec, 1")
            for i in range(4):
                a(f"global_store_dwordx4 v2, v[{4 + 4 * i}:{7 + 4 * i}], {sWS} offset:{16 * i}")
        a("L_bail:\ns_endpgm")
        a("L_codeend:")
        self.nops = a.fix_hazards()
        txt = HEADER
        txt += f"; @launch grid=(256,1,1) block=({64 * self.nwaves},1,1) lds={self.lds}\n"
        txt += f'.amdgcn_target "amdgcn-amd-amdhsa--gfx950"\n.text\n.globl {KN}\n.p2align 8\n.type {KN},@function\n'
        txt += a.text() + "\n"
        if self.prefetch:
            txt += ".fill 256, 4, 0xbf810000\n"
        txt += f""".section .rodata,"a"
.p2align 6
.amdhsa_kernel {KN}
  .amdhsa_next_free_vgpr {self.nvg}
  .amdhsa_next_free_sgpr 102
  .amdhsa_accum_offset {self.nvg}
  .amdhsa_group_segment_fixed_size 0
  .amdhsa_kernarg_size 96
  .amdhsa_user_sgpr_count 2
  .amdhsa_user_sgpr_kernarg_segment_ptr 1
  .amdhsa_system_sgpr_workgroup_id_x 1
.end_amdhsa_kernel
"""
        return txt

    def comm(self):
        a = self.a
        wnt = self.wnt
        G, BB = 2, 3
        XS, XO, W, F, SEL, ST, X, A, D, MK = 8, 16, 24, 88, 112, 120, 16, 88, 96, 100
        a("s_setprio 3")
        a(f"v_lshrrev_b32 v{G}, 4, v1\nv_bfe_u32 v{BB}, v1, 3, 1")
        a(f"v_and_b32 v5, 7, v1\nv_lshl_add_u32 v4, v{G}, 3, v5\nv_lshlrev_b32 v4, 5, v4\nv_lshl_add_u32 v4, v{BB}, 10, v4")
        a(f"s_lshl_b32 {sA}, {sJ}, 7\nv_lshl_add_u32 v5, v5, 2, {sA}\nv_lshl_add_u32 v5, v{G}, 5, v5\nv_lshl_add_u32 v5, v{BB}, 10, v5")
        a(f"s_lshl_b32 {sA}, {sJ}, 19\ns_lshl_b32 {sB}, {sH}, 8\ns_add_u32 {sA}, {sA}, {sB}\ns_movk_i32 {sB}, 0x2000")
        a(f"v_and_b32 v6, 15, v1\nv_lshl_add_u32 v6, v6, 4, {sA}\nv_lshl_add_u32 v6, v{G}, 17, v6")
        a("s_waitcnt lgkmcnt(0)")
        self.stamp(1)
        a(f"global_load_dwordx4 {vr(XS, 4)}, v4, {sX}\nglobal_load_dwordx4 {vr(XS + 4, 4)}, v4, {sX} offset:16")
        a(f"global_load_dword {vr(XO)}, v5, {sX}")
        for t in range(16):
            a(f"global_load_dwordx4 {vr(W + 4 * t, 4)}, v6, {sWQ} {wnt}")
            if t < 15:
                a(f"v_add_u32 v6, {sB}, v6")
        if self.b0:
            a("s_barrier")
        a(f"s_load_dword {sT}, {sWS}, 0")
        a(f"v_mov_b32 v6, {L_CNT}\nv_mov_b32 v104, 0\nv_mov_b32 v105, 0\nv_mov_b32 v106, 0\nv_mov_b32 v107, 0")
        a("ds_write_b128 v6, v[104:107]\nds_write_b128 v6, v[104:107] offset:16")
        a("v_lshlrev_b32 v6, 4, v1")
        if self.fold:
            a("v_mov_b32 v108, 0x3f803f80\nv_mov_b32 v109, 0x3f803f80\nv_mov_b32 v110, 0x3f803f80\nv_mov_b32 v111, 0x3f803f80")
            a(f"ds_write_b128 v6, v[108:111] offset:{L_ONE}")
        for o in range(self.nww // 2, self.nh):
            a(f"ds_write_b128 v6, v[104:107] offset:{L_OP + 1024 * o}")
        a(f"v_min_u32 v6, 23, v1\nv_cmp_gt_u32 vcc, 12, v6\nv_lshlrev_b32 v6, 2, v6\nv_mov_b32 v105, 0xff800000\nv_cndmask_b32 v105, v104, v105, vcc\nds_write_b32 v6, v105 offset:{L_MAX}")
        self.selectors(SEL, 108, 4)
        a("s_waitcnt vmcnt(17)")
        self.unpack(F, XS, 8)
        self.stamp(2)
        S = 7
        a(f"v_pk_add_f32 v[104:105], {vr(F, 2)}, {vr(F + 2, 2)}\nv_pk_add_f32 v[106:107], {vr(F + 4, 2)}, {vr(F + 6, 2)}")
        for i in range(2):
            a(f"v_pk_add_f32 v[104:105], v[104:105], {vr(F + 8 + 4 * i, 2)}\nv_pk_add_f32 v[106:107], v[106:107], {vr(F + 10 + 4 * i, 2)}")
        a(f"v_pk_add_f32 v[104:105], v[104:105], v[106:107]\nv_add_f32 {vr(S)}, v104, v105")
        self.red8x("v_add_f32", [S], 104)
        a(f"v_mul_f32 {vr(S)}, 0x3b000000, {vr(S)}")
        for i in range(16):
            a(f"v_sub_f32 {vr(F + i)}, {vr(F + i)}, {vr(S)}")
        a(f"v_pk_mul_f32 v[104:105], {vr(F, 2)}, {vr(F, 2)}\nv_pk_mul_f32 v[106:107], {vr(F + 2, 2)}, {vr(F + 2, 2)}")
        for i in range(1, 4):
            a(f"v_pk_fma_f32 v[104:105], {vr(F + 4 * i, 2)}, {vr(F + 4 * i, 2)}, v[104:105]")
            a(f"v_pk_fma_f32 v[106:107], {vr(F + 4 * i + 2, 2)}, {vr(F + 4 * i + 2, 2)}, v[106:107]")
        a("v_pk_add_f32 v[104:105], v[104:105], v[106:107]\nv_add_f32 v108, v104, v105")
        self.red8x("v_add_f32", [108], 104)
        a("v_mul_f32 v108, 0x3b000000, v108")
        self.ln_finish(ST, S, 108)
        a("s_waitcnt vmcnt(16)")
        self.unpack(F, XO, 1)
        self.ln_apply2(F, ST, 8, 10)
        a("s_waitcnt lgkmcnt(0)")
        self.tag_consts()
        for u in range(8):
            a(f"v_mov_b32_dpp {vr(X + u)}, v8 row_newbcast:{u} row_mask:0xf bank_mask:0x3")
        for u in range(8):
            a(f"v_mov_b32_dpp {vr(X + u)}, v8 row_newbcast:{8 + u} row_mask:0xf bank_mask:0xc")
        a(f"v_mov_b32 v{MK}, 0xffffff00")

        def abuild(t):
            for m in range(4):
                a(f"v_perm_b32 {vr(A + 4 * (t & 1) + m)}, {vr(X + t // 2)}, {vr(X + t // 2)}, {vr(SEL + 2 * m + (t & 1))}")
        abuild(0)
        for t in range(16):
            if t < 15:
                abuild(t + 1)
            a(f"s_waitcnt vmcnt({15 - t})")
            a(f"v_mfma_f32_16x16x32_bf16 {vr(D, 4)}, {vr(A + 4 * (t & 1), 4)}, {vr(W + 4 * t, 4)}, {vr(D, 4) if t else 0}")
        a(f"s_lshl_b32 {sA}, {sH}, 13\ns_lshl_b32 {sB}, {sJ}, 9\ns_add_u32 {sA}, {sA}, {sB}\ns_add_u32 {sA}, {sA}, {WS_QP}")
        a(f"v_and_b32 v4, 15, v1\nv_lshl_add_u32 v4, v4, 5, {sA}\nv_bfe_u32 v5, v1, 4, 1\nv_lshl_add_u32 v4, v5, 4, v4")
        a("v_lshrrev_b32 v5, 5, v1\nv_lshl_add_u32 v4, v5, 12, v4")
        a(f"s_getreg_b32 {sC}, hwreg(HW_REG_XCC_ID, 0, 4)\ns_and_b32 {sD}, {sT}, 0xffffff00\ns_or_b32 {sC}, {sC}, {sD}")
        a(f"s_lshl_b32 {sA}, {sXCD}, 7\ns_add_u32 {sA}, {sA}, {WS_XT}\ns_lshr_b32 {sB}, s2, 3\ns_lshl_b32 {sB}, {sB}, 2\ns_add_u32 {sB}, {sB}, {sA}")
        a(f"v_mov_b32 v6, {sB}\nv_mov_b32 v7, {sC}")
        for i in range(4):
            a(f"v_add_u32 {vr(D + i)}, 0x80, {vr(D + i)}")
        self.tag4(D, MK)
        a(f"global_store_dwordx4 v4, {vr(D, 4)}, {sWS} sc1")
        a(f"s_mov_b64 exec, 1\nglobal_store_dword v6, v7, {sWS} sc1\ns_mov_b64 exec, -1")
        self.stamp(3)
        if self.probe in ("smax", "smin", "smed"):
            a(f"s_lshl_b32 {sB}, s2, 2\ns_add_u32 {sB}, {sB}, {WS_ST}\nv_mov_b32 v6, {sB}\nv_mov_b32 v7, s80\nglobal_store_dword v6, v7, {sWS} sc1")
        a(f"v_and_b32 v5, 31, v1\nv_lshl_add_u32 v5, v5, 2, {sA}")
        a(f"s_lshl_b32 {sA}, {sH}, 13\ns_lshr_b32 {sB}, {sJ}, 2\ns_lshl_b32 {sB}, {sB}, 12\ns_add_u32 {sA}, {sA}, {sB}\ns_add_u32 {sA}, {sA}, {WS_QP}")
        a(f"v_lshl_add_u32 v4, v1, 4, {sA}")
        a("s_barrier\ns_barrier")
        self.stamp(4)
        Gq, TT = 8, 24

        def loads():
            for n in range(4):
                a(f"global_load_dwordx4 {vr(Gq + 4 * n, 4)}, v4, {sWS} offset:{1024 * n} sc1")
            a(f"global_load_dword v32, v5, {sWS} sc1")

        def between():
            if self.tlb:
                a(f"v_and_b32 v35, 1, v1\nv_mul_u32_u24 v36, {512 * 2752 - 4}, v35\ns_lshl_b32 {sA}, {sXCD}, 19\nv_mul_u32_u24 v37, {(1 << 19) - 4}, v35\nv_add_u32 v37, {sA}, v37")
                a(f"v_lshlrev_b32 v35, 2, v35\ns_mov_b64 exec, 3")
                a(f"global_load_dword v38, v36, {sWG}\nglobal_load_dword v39, v36, {sWU}\nglobal_load_dword v40, v36, {sWD}")
                a(f"global_load_dword v41, v37, {sWO}\nglobal_load_dword v42, v35, {sOUT}\ns_mov_b64 exec, -1")
            if self.optouch:
                a(f"s_lshl_b32 {sA}, {sH}, 12\ns_lshl_b32 {sB}, {sJ}, 9\ns_add_u32 {sA}, {sA}, {sB}\ns_add_u32 {sA}, {sA}, {WS_OP}")
                a(f"v_and_b32 v33, 7, v1\nv_lshl_add_u32 v33, v33, 6, {sA}\nglobal_load_dword v34, v33, {sWS} sc1")
            a("s_barrier")
        self.poll(loads, lambda: self.chk(TT, [Gq + 4 * n for n in range(4)]), between=between)
        self.stamp(5)
        self.count(11)
        a(f"v_cmp_ne_u32 vcc, {sC}, v32")
        for i in range(16):
            a(f"v_and_b32 {vr(Gq + i)}, {vr(MK)}, {vr(Gq + i)}")
        a(f"s_cmp_eq_u64 vcc, 0\ns_cselect_b32 {sA}, {3 if self.local else 1}, 1")
        for i in range(4):
            a(f"v_add_f32 {vr(Gq + i)}, {vr(Gq + i)}, {vr(Gq + 4 + i)}\nv_add_f32 {vr(Gq + 8 + i)}, {vr(Gq + 8 + i)}, {vr(Gq + 12 + i)}")
        for i in range(4):
            a(f"v_add_f32 {vr(Gq + i)}, {vr(Gq + i)}, {vr(Gq + 8 + i)}")
        a(f"v_permlane32_swap_b32 {vr(Gq)}, {vr(Gq + 2)}\nv_permlane32_swap_b32 {vr(Gq + 1)}, {vr(Gq + 3)}")
        a(f"v_add_f32 {vr(Gq)}, {vr(Gq)}, {vr(Gq + 2)}\nv_add_f32 {vr(Gq + 1)}, {vr(Gq + 1)}, {vr(Gq + 3)}")
        a(f"v_cvt_pk_bf16_f32 {vr(Gq)}, {vr(Gq)}, {vr(Gq + 1)}")
        a("v_and_b32 v4, 31, v1\nv_lshlrev_b32 v4, 3, v4\nv_lshrrev_b32 v5, 5, v1\nv_lshl_add_u32 v4, v5, 2, v4")
        a(f"v_mov_b32 v6, {L_QF}\nv_mov_b32 v7, {sA}")
        a(f"ds_write_b32 v4, {vr(Gq)} offset:{L_Q}\nds_write_b32 v6, v7")
        a("s_setprio 0")
        self.stamp(6)
        self.role("L_none" if self.idledma else "L_cwo", "L_chelp", "L_cffn", "L_cmon")

        def dma_loop(name, base, n0, n1, mstep, two=None, win=None):
            a(f"s_mov_b32 {sC}, {n0}\n{name}:")
            if win is not None:
                a(f"s_waitcnt vmcnt({win})")
            a(f"s_mov_b32 m0, {sD}\ns_add_u32 {sC}, {sC}, 1")
            a(f"global_load_lds_dwordx4 v4, {base} {wnt}")
            if two:
                a(f"s_add_u32 m0, {sD}, {L_U - L_G}\ns_add_u32 {sD}, {sD}, {mstep}")
                a(f"global_load_lds_dwordx4 v4, {two} {wnt}")
            else:
                a(f"s_add_u32 {sD}, {sD}, {mstep}")
            a(f"v_add_u32 v4, {sB}, v4\ns_cmp_lt_u32 {sC}, {n1}\ns_cbranch_scc1 {name}")

        a("L_cwo:")
        if "y" in self.prew:
            a(f"s_lshl_b32 {sA}, {sXCD}, 11\ns_lshl_b32 {sB}, {sF}, 7\ns_add_u32 {sA}, {sA}, {sB}\ns_add_u32 {sA}, {sA}, {WS_YP}\ns_not_b32 {sB}, {sT}")
            a(f"v_and_b32 v4, 7, v1\nv_lshl_add_u32 v4, v4, 4, {sA}\nv_bfe_u32 v5, v1, 3, 1\nv_lshl_add_u32 v4, v5, 14, v4")
            a(f"v_mov_b32 v44, {sB}\nv_mov_b32 v45, {sB}\nv_mov_b32 v46, {sB}\nv_mov_b32 v47, {sB}")
            a(f"s_mov_b64 exec, 0xffff\nglobal_store_dwordx4 v4, v[44:47], {sWS} sc1\ns_mov_b64 exec, -1")
        a(f"s_lshl_b32 {sA}, {sXCD}, 19\ns_lshl_b32 {sB}, {sF}, 6\ns_add_u32 {sB}, {sA}, {sB}")
        a(f"v_lshrrev_b32 v4, 2, v1\nv_lshlrev_b32 v4, 10, v4\nv_and_b32 v5, 3, v1\nv_lshl_add_u32 v4, v5, 4, v4\nv_add_u32 v8, {sB}, v4")
        if self.wopair:
            a(f"s_and_b32 {sD}, {sF}, 1\ns_lshl_b32 {sB}, {sD}, 18\nv_add_u32 v8, {sB}, v8\ns_lshl_b32 {sB}, {sD}, 19\ns_sub_u32 {sB}, 0x40000, {sB}\nv_add_u32 v24, {sB}, v8")
            a(f"s_mul_i32 {sD}, {sD}, {16 * GUP}\ns_sub_u32 {sC}, {L_W + 16 * GUP}, {sD}\ns_add_u32 {sD}, {sD}, {L_W}")
            for n in range(1, 16):
                a(f"v_add_u32 v{8 + n}, {n * 0x4000}, v8\nv_add_u32 v{24 + n}, {n * 0x4000}, v24")
        else:
            for n in range(1, 32):
                a(f"v_add_u32 v{8 + n}, {n * 0x4000}, v8")
        a(f"s_lshl_b32 {sB}, {sF}, 14\ns_add_u32 {sA}, {sA}, {sB}\ns_add_u32 {sA}, {sA}, 4096\nv_lshl_add_u32 v4, v1, 6, {sA}\nv_add_u32 v5, 0x2000, v4")
        self.lds_wait(L_VCNT, sNACT, 6, 7)
        self.stamp(12)
        if "nowo" in self.exp:
            pass
        elif self.wopair:
            for k in range(32):
                a(f"s_add_u32 m0, {sD if k < 16 else sC}, {(k & 15) * GUP}")
                a(f"s_waitcnt vmcnt({self.wwin})" if k >= self.wk0 else "s_nop 0")
                a(f"global_load_lds_dwordx4 v{8 + k}, {sWO} {self.wont}")
        elif self.clean:
            a(f"s_lshl_b32 {sA}, {sXCD}, 19\ns_lshl_b32 {sB}, {sF}, 14\ns_add_u32 {sA}, {sA}, {sB}\nv_lshl_add_u32 v4, v1, 7, {sA}\nv_add_u32 v5, 0x2000, v4")
            a(f"global_load_dword v40, v4, {sWO}\nglobal_load_dword v41, v5, {sWO}")
            for k, n in enumerate(list(range(16, 32)) + list(range(16))):
                if k == self.wpre:
                    self.lds_wait(L_PUB, 1, 6, 7, tight=True)
                a(f"s_mov_b32 m0, {L_W + n * GUP}\ns_nop 0\nglobal_load_lds_dwordx4 v{8 + n}, {sWO} {self.wont}")
        else:
            for i in range(4 if self.wotouch else 0):
                a(f"global_load_dword v{40 + i}, v{4 + i // 2}, {sWO} offset:{-4096 if i % 2 == 0 else 0}")
            for k, n in enumerate(list(range(16, 32)) + list(range(16))):
                a(f"s_mov_b32 m0, {L_W + n * GUP}")
                a(f"s_waitcnt vmcnt({self.wwin})" if k >= 8 and self.wotouch else "s_nop 0")
                a(f"global_load_lds_dwordx4 v{8 + n}, {sWO} {self.wont}")
        self.stamp(13)
        a(f"v_mov_b32 v6, {L_DMA}\nv_mov_b32 v7, 1\ns_waitcnt vmcnt(0)\nds_write_b32 v6, v7")
        self.stamp(14)
        if self.nth and "noffn" not in self.exp:
            ni = (512 - self.hrow0) // 128
            self.gu_touch_addr(self.hrow0, 8 * ni, ni)
            a(f"s_lshl_b32 {sA}, {sXCD}, 9\ns_add_u32 {sA}, {sA}, {WS_ML}\nv_and_b32 v4, 31, v1\nv_lshl_add_u32 v4, v4, 4, {sA}")

            def enough():
                self.chk(44, [40])
                a(f"s_bcnt0_i32_b32 {sA}, vcc_lo\ns_cmp_lt_u32 {sA}, {self.nth}\ns_cselect_b64 vcc, -1, 0")
            self.poll(lambda: a(f"global_load_dwordx4 v[40:43], v4, {sWS} sc1"), enough)
            a(f"s_cmp_gt_u32 {sA}, {self.nlate}\ns_cbranch_scc1 L_none")
            for i in range(ni):
                a(f"global_load_dword v{56 + 2 * i}, v{8 + i}, {sWG}\nglobal_load_dword v{57 + 2 * i}, v{8 + i}, {sWU}")
        self.end()

        a("L_chelp:")
        if self.helper:
            self.helper_code()
        self.end()

        a("L_cffn:")
        if "f" in self.prew:
            a(f"s_lshl_b32 {sA}, {sF}, 7\ns_add_u32 {sA}, {sA}, {WS_FP}\ns_not_b32 {sB}, {sT}")
            a(f"v_lshrrev_b32 v4, 3, v1\nv_mul_u32_u24 v4, {FP_STRIDE}, v4\nv_and_b32 v5, 7, v1\nv_lshl_add_u32 v4, v5, 4, v4\nv_add_u32 v4, {sA}, v4")
            a(f"v_mov_b32 v44, {sB}\nv_mov_b32 v45, {sB}\nv_mov_b32 v46, {sB}\nv_mov_b32 v47, {sB}")
            for i in range(4):
                a(f"global_store_dwordx4 v4, v[44:47], {sWS} sc1\nv_add_u32 v4, {8 * FP_STRIDE}, v4")
        a("v_lshrrev_b32 v4, 2, v1\nv_mul_u32_u24 v4, 2752, v4\nv_and_b32 v5, 3, v1\nv_lshl_add_u32 v4, v5, 4, v4")
        a(f"s_lshl_b32 {sA}, {sF}, 6\nv_add_u32 v8, {sA}, v4")
        a(f"s_and_b32 {sD}, {sF}, {1 if self.frot else 0}\ns_mul_i32 {sB}, {sD}, {256 * 2752}\nv_add_u32 v8, {sB}, v8\ns_lshl_b32 {sB}, {sB}, 1\ns_sub_u32 {sB}, {256 * 2752}, {sB}\nv_add_u32 v24, {sB}, v8")
        a(f"s_mul_i32 {sD}, {sD}, {16 * GUP}\ns_sub_u32 {sC}, {L_G + 16 * GUP}, {sD}\ns_add_u32 {sD}, {sD}, {L_G}")
        for n in range(1, 16):
            a(f"v_add_u32 v{8 + n}, {n * 16 * 2752}, v8\nv_add_u32 v{24 + n}, {n * 16 * 2752}, v24")
        a(f"s_lshl_b32 {sA}, {sF}, 15\ns_add_u32 {sA}, {sA}, 4096\nv_lshl_add_u32 v40, v1, 4, {sA}")
        for n in range(1, 4):
            a(f"v_add_u32 v{40 + n}, {n * 8192}, v40")
        a(f"v_mov_b32 v4, {L_HINT}\ns_mov_b32 {sRD}, 0")
        self.lds_wait(*((L_PUB, 1) if self.fpub else (L_VCNT, sNACT)), 6, 7)
        self.stamp(7)
        for k in range(0 if "noffn" in self.exp else 96):
            if k % self.fchk == 0 and k:
                a(f"s_waitcnt lgkmcnt(0)\nv_readfirstlane_b32 {sA}, v5\ns_add_u32 {sA}, {sA}, 1\ns_lshr_b32 {sA}, {sA}, 4\ns_andn2_b32 {sA}, {sA}, {sRD}\ns_cbranch_scc0 L_cf{k}\ns_mov_b32 {sRD}, 1")
                if self.barx:
                    a("s_barrier")
                self.lds_wait(L_YISS, 8, 6, 7)
                a(f"L_cf{k}:")
            if k % self.fchk == 0:
                a("ds_read_b32 v5, v4")
            win = self.fwin0 if k < self.fk0 and not self.clean else self.fwin
            if self.clean and k == self.fpre:
                self.lds_wait(L_PUB, 1, 6, 7)
            if k < 64:
                a(f"s_add_u32 m0, {sD if k < 32 else sC}, {(L_U - L_G if k & 1 else 0) + ((k >> 1) & 15) * GUP}")
                a(f"s_waitcnt vmcnt({win})" if k > win else "s_nop 0")
                a(f"global_load_lds_dwordx4 v{8 + (k >> 1)}, {sWU if k & 1 else sWG} {self.fnt}")
            else:
                n = k - 64
                off = (n & 7) * 1024 - 4096
                a(f"s_mov_b32 m0, {L_D + n * ROWP - off}\ns_waitcnt vmcnt({win})")
                a(f"global_load_lds_dwordx4 v{40 + (n >> 3)}, {sWD} offset:{off} {wnt}")
        self.stamp(8)
        a(f"s_cmp_lg_u32 {sRD}, 0\ns_cbranch_scc1 L_cf3")
        a(f"v_mov_b32 v6, {L_DMA}\nv_mov_b32 v7, 1\ns_waitcnt vmcnt(0)\nds_write_b32 v6, v7")
        self.stamp(11)
        if self.barx:
            a("s_waitcnt lgkmcnt(0)\ns_barrier")
        a("L_cf3:")
        a(("" if self.fold else "s_barrier\n") + "s_waitcnt vmcnt(32)\ns_barrier\ns_waitcnt vmcnt(0)")
        self.stamp(9)
        a("s_barrier")
        self.end()

        a("L_cmon:")
        if self.clean:
            a(f"s_cmp_lt_u32 {sA}, 6\ns_cbranch_scc1 L_none\ns_mov_b32 {sF}, {sA}")
            a(f"s_lshl_b32 {sB}, {sXCD}, 19\ns_lshl_b32 {sC}, {sF}, 15\ns_add_u32 {sB}, {sB}, {sC}\ns_add_u32 {sB}, {sB}, {0x70000 - 6 * 32768}")
            a(f"v_lshl_add_u32 v4, v1, 7, {sB}\ns_movk_i32 {sD}, 0x2000")
            self.lds_wait(L_VCNT, sNACT, 6, 7)
            for i in range(4):
                a(f"global_load_dword v{48 + i}, v4, {sWO}\nv_add_u32 v4, {sD}, v4")
            a(f"s_mov_b32 {sA}, {sF}")
        if self.hint:
            a(f"s_cmp_eq_u32 {sA}, 6\ns_cbranch_scc1 L_ctouch\ns_cmp_lg_u32 {sA}, 7\ns_cbranch_scc1 L_none")
            a(f"s_lshl_b32 {sA}, {sXCD}, 9\ns_add_u32 {sA}, {sA}, {WS_ML}\nv_and_b32 v4, 31, v1\nv_lshl_add_u32 v4, v4, 4, {sA}")
            a(f"s_lshl_b32 {sA}, {sXCD}, 2\ns_add_u32 {sA}, {sA}, {WS_HT}\nv_lshl_add_u32 v5, v1, 7, {sA}\nv_mov_b32 v6, {sT}")
            self.lds_wait(L_PUB, 1, 12, 13)
            self.poll(lambda: a(f"global_load_dwordx4 v[8:11], v4, {sWS} sc1"), lambda: self.chk(12, [8]))
            for i in range(self.lag):
                a(f"global_load_dwordx4 v[8:11], v4, {sWS} sc1\ns_waitcnt vmcnt(0)")
            a(f"s_bfm_b64 exec, 56, 0\nglobal_store_dword v5, v6, {sWS} sc1")
            self.stamp(10)
            self.end()
            a("L_ctouch:")
            if self.incr and not self.ytouch:
                self.end()
            a(f"s_lshl_b32 {sA}, {sXCD}, 7\ns_add_u32 {sA}, {sA}, {WS_HT + 48 * 128}\nv_and_b32 v4, 7, v1\nv_lshl_add_u32 v4, v4, 2, {sA}")
            a(f"v_and_b32 v5, 31, v1\nv_lshlrev_b32 v5, 6, v5\nv_lshrrev_b32 v6, 5, v1\nv_lshl_add_u32 v5, v6, 14, v5\nv_add_u32 v5, {WS_YP}, v5")
            self.lds_wait(L_PUB, 1, 12, 13)
            a(f"s_mov_b32 {sC}, 0\ns_mov_b32 {sSPIN}, 0\nL_ct0:")
            a(f"global_load_dword v8, v4, {sWS} sc1\ns_add_u32 {sSPIN}, {sSPIN}, 1\ns_cmp_gt_u32 {sSPIN}, {SPIN}\ns_cbranch_scc1 L_bail")
            a(f"s_waitcnt vmcnt(0)\nv_cmp_eq_u32 vcc, {sT}, v8\ns_and_b32 {sA}, vcc_lo, 0xff\ns_andn2_b32 {sB}, {sA}, {sC}\ns_mov_b32 {sC}, {sA}")
            a(f"L_ct1:\ns_cmp_eq_u32 {sB}, 0\ns_cbranch_scc1 L_ct2")
            a(f"s_ff1_i32_b32 {sD}, {sB}\ns_bitset0_b32 {sB}, {sD}\ns_lshl_b32 {sD}, {sD}, 11\nv_add_u32 v6, {sD}, v5\nglobal_load_dword v9, v6, {sWS} sc1\ns_branch L_ct1")
            a(f"L_ct2:\ns_cmp_lg_u32 {sC}, 0xff\ns_cbranch_scc1 L_ct0")
        self.end()

    def gu_touch_addr(self, r0, rows, ni):
        a = self.a
        a(f"s_min_u32 {sB}, {sXCD}, 3\ns_mul_i32 {sC}, {sXCD}, 5\ns_add_u32 {sC}, {sC}, {sB}")
        a(f"s_mul_i32 {sB}, {sF}, {rows}\ns_add_u32 {sB}, {sB}, {r0}\ns_mul_i32 {sB}, {sB}, 2752\ns_lshl_b32 {sA}, {sC}, 6\ns_add_u32 {sB}, {sB}, {sA}")
        a("v_lshrrev_b32 v8, 3, v1\nv_mul_u32_u24 v8, 2752, v8\nv_and_b32 v5, 7, v1\nv_min_u32 v5, 5, v5\nv_lshl_add_u32 v8, v5, 6, v8")
        a(f"v_add_u32 v8, {sB}, v8")
        for i in range(1, ni):
            a(f"v_add_u32 v{8 + i}, {i * 8 * 2752}, v8\nv_min_u32 v{8 + i}, {512 * 2752 - 4}, v{8 + i}")

    def helper_code(self):
        a = self.a
        ni = self.hr // 64
        a(f"s_min_u32 {sB}, {sXCD}, 3\ns_mul_i32 {sC}, {sXCD}, 5\ns_add_u32 {sC}, {sC}, {sB}")
        a(f"s_and_b32 {sA}, {sF}, 3\ns_mul_i32 {sB}, {sA}, {16 * ni}\ns_lshr_b32 {sA}, {sF}, 2\ns_lshl_b32 {sA}, {sA}, 8\ns_add_u32 {sB}, {sB}, {sA}")
        a(f"s_add_u32 {sB}, {sB}, {256 - self.hr}\ns_mul_i32 {sB}, {sB}, 2752\ns_lshl_b32 {sA}, {sC}, 6\ns_add_u32 {sB}, {sB}, {sA}")
        a("v_lshrrev_b32 v8, 2, v1\nv_mul_u32_u24 v8, 2752, v8\nv_and_b32 v5, 3, v1\nv_lshlrev_b32 v5, 7, v5\nv_min_u32 v5, 380, v5\nv_add_u32 v8, v5, v8")
        a(f"v_add_u32 v8, {sB}, v8")
        for i in range(ni - 1, -1, -1):
            a(f"v_add_u32 v{8 + i}, {i * 16 * 2752}, v8\nv_min_u32 v{8 + i}, {512 * 2752 - 4}, v{8 + i}")
        a(f"s_lshl_b32 {sC}, {sC}, 15\ns_mul_i32 {sA}, {sF}, {6 * 32768 // 8}\ns_add_u32 {sC}, {sC}, {sA}\nv_lshl_add_u32 v20, v1, 7, {sC}")
        for i in range(2, -1, -1):
            a(f"v_add_u32 v{20 + i}, {i * 8192}, v20\nv_min_u32 v{20 + i}, {1376 * 1024 - 4}, v{20 + i}")
        a(f"s_lshl_b32 {sB}, {sXCD}, 19\ns_mul_i32 {sC}, {sF}, {24576 if self.clean else 32768}\ns_add_u32 {sB}, {sB}, {sC}\ns_add_u32 {sB}, {sB}, 0x40000")
        a(f"v_lshl_add_u32 v4, v1, 7, {sB}\ns_movk_i32 {sD}, 0x2000")
        self.lds_wait(*((L_PUB, 1) if self.hpub else (L_VCNT, sNACT)), 6, 7)
        for i in range((3 if self.clean else 4) if self.wotouch else 0):
            a(f"global_load_dword v{48 + i}, v4, {sWO}\nv_add_u32 v4, {sD}, v4")
        if self.clean:
            self.lds_wait(L_PUB, 1, 6, 7)
        if "noffn" in self.exp:
            return
        w = f"s_waitcnt vmcnt({self.hwin})\n"
        for i in range(3 if self.hdown else 0):
            a(f"{w}global_load_dword v{40 + i}, v{20 + i}, {sWD}")
        for i in range(ni):
            a(f"{w}global_load_dword v{56 + 2 * i}, v{8 + i}, {sWG}\n{w}global_load_dword v{57 + 2 * i}, v{8 + i}, {sWU}")
        for i in range(0 if self.hdown else 3):
            a(f"{w}global_load_dword v{40 + i}, v{20 + i}, {sWD}")

    def stream(self):
        a = self.a
        nt = self.nt
        K, V, Q, P, T, SEL, D = 4, 36, 68, 72, 80, 88, 96
        MK, ADR, MREG, FAC = 100, 101, 102, 104
        a("L_stream:")
        if self.prefetch:
            a(f"s_cmp_lg_u32 {sW}, 1\ns_cbranch_scc1 L_nopf")
            a(f"s_getpc_b64 {sP}\nL_pc:\ns_sub_u32 s52, s52, L_pc-{KN}\ns_subb_u32 s53, s53, 0")
            a(f"s_lshr_b32 {sA}, s2, 3\ns_min_u32 {sA}, {sA}, (L_codeend-{KN})/1024\ns_lshl_b32 {sA}, {sA}, 10")
            a(f"v_lshl_add_u32 v3, v1, 4, {sA}\nglobal_load_dwordx4 {vr(124, 4)}, v3, {sP}")
            a("L_nopf:")
        a(f"s_lshr_b32 {sA}, {sJ}, 2\ns_lshl_b32 {sA}, {sA}, 25\ns_lshl_b32 {sB}, {sH}, 20\ns_add_u32 {sA}, {sA}, {sB}")
        a(f"s_and_b32 {sB}, {sJ}, 1\ns_mul_i32 {sB}, {sB}, {sNACT}\ns_add_u32 {sB}, {sB}, {sW}\ns_bitcmp1_b32 {sJ}, 1\ns_cselect_b32 {sC}, {2 * self.nww}, 0")
        a(f"s_add_u32 {sB}, {sB}, {sC}\ns_lshl_b32 {sB}, {sB}, 13\ns_add_u32 {sA}, {sA}, {sB}")
        a(f"s_cmp_gt_u32 {sW}, {sNACT}\ns_cbranch_scc1 L_idle")
        a(f"s_add_u32 {sA}, {sA}, {0xC0000 + 4096 - 8192}\nv_lshl_add_u32 v2, v1, 4, {sA}")
        a("s_waitcnt lgkmcnt(0)")
        self.stamp(1)
        for t in range(8):
            if t == self.nkpre and self.b0:
                a("s_barrier")
            if t == self.nk0:
                a("s_barrier")
            if t == self.nk1:
                a("s_barrier\ns_barrier")
            a(f"global_load_dwordx4 {vr(K + 4 * t, 4)}, v2, {sK} offset:{1024 * t - 4096} {nt}")
        self.stamp(2)
        vload = lambda t: a(f"global_load_dwordx4 {vr(V + 4 * t, 4)}, v2, {sV} offset:{1024 * t - 4096} {nt}")
        if self.nv1:
            a(f"s_bitcmp0_b32 {sJ}, 1\ns_cbranch_scc1 L_vw\ns_barrier\ns_barrier")
            for t in range(self.nv1):
                vload(t)
            a("s_branch L_vr\nL_vw:")
            for t in range(self.nv1):
                vload(t)
            a("s_barrier\ns_barrier\nL_vr:")
        elif self.nk1 == 8:
            a("s_barrier\ns_barrier")
        for t in range(self.nv1, 8):
            vload(t)
        self.lds_inc(L_VCNT, T, T + 1)
        self.stamp(3)
        a(f"s_load_dword {sT}, {sWS}, 0")
        self.sw = sW if not self.diag else "s97"
        sw = self.sw
        a(f"s_sub_u32 {sw}, {sW}, 1")
        self.selectors(SEL, T, 4, bits=3)
        a("v_and_b32 v3, 15, v1\nv_lshlrev_b32 v3, 4, v3")
        a(f"s_mov_b32 {sK1}, 0x3db504f3\ns_mov_b32 {sK2}, 0x3fb8aa3b")
        a(f"v_bfe_u32 {vr(ADR)}, v1, 4, 1\nv_lshlrev_b32 {vr(ADR)}, 6, {vr(ADR)}\nv_lshl_add_u32 {vr(ADR)}, v3, 3, {vr(ADR)}")
        a(f"s_lshl_b32 {sA}, {sH}, 12\ns_lshr_b32 {sB}, {sJ}, 2\ns_lshl_b32 {sB}, {sB}, 11\ns_add_u32 {sA}, {sA}, {sB}")
        a(f"s_and_b32 {sB}, {sJ}, 3\ns_lshl_b32 {sB}, {sB}, 4\ns_add_u32 {sA}, {sA}, {sB}\ns_add_u32 {sA}, {sA}, {WS_OP}\nv_add_u32 {vr(ADR)}, {sA}, {vr(ADR)}")
        a(f"s_lshl_b32 {sA}, {sH}, 7\ns_lshl_b32 {sB}, {sJ}, 4\ns_add_u32 {sA}, {sA}, {sB}\ns_add_u32 {sA}, {sA}, {WS_ML}\nv_mov_b32 {vr(T)}, {sA}")
        a(f"v_cmp_lt_u32 {sM0}, 31, v1\nv_mov_b32 {vr(MK)}, 0xffffff00\nv_cndmask_b32 {vr(ADR)}, {vr(ADR)}, {vr(T)}, {sM0}")
        for t in range(8):
            a(f"v_mov_b32 {vr(P + t)}, 0")
        self.lds_wait(L_QF, 1, T, T + 1)
        self.stamp(4)
        a(f"ds_read_b128 {vr(Q, 4)}, v3 offset:{L_Q}")
        a(f"s_mov_b32 {sLOC}, {sA}")
        self.tag_consts()
        a("s_waitcnt vmcnt(8) lgkmcnt(0)")
        for i in range(4):
            for t in range(8):
                a(f"v_dot2c_f32_bf16 {vr(P + t)}, {vr(K + 4 * t + i)}, {vr(Q + i)}")
        for u in range(4):
            a(f"v_add_f32_dpp {vr(P + u)}, {vr(P + u)}, {vr(P + u)} row_ror:8 row_mask:0xf bank_mask:0x3")
        for u in range(4):
            a(f"v_add_f32_dpp {vr(P + u)}, {vr(P + u + 4)}, {vr(P + u + 4)} row_ror:8 row_mask:0xf bank_mask:0xc")
        for u in range(2):
            a(f"v_add_f32_dpp {vr(P + u)}, {vr(P + u)}, {vr(P + u)} row_shl:4 row_mask:0xf bank_mask:0x5")
        for u in range(2):
            a(f"v_add_f32_dpp {vr(P + u)}, {vr(P + u + 2)}, {vr(P + u + 2)} row_shr:4 row_mask:0xf bank_mask:0xa")
        self.dppred("v_add_f32", [P, P + 1], ("quad_perm:[1,0,3,2]", "quad_perm:[2,3,0,1]"))
        self.bf16r(P, P)
        self.bf16r(P + 1, P + 1)
        a(f"v_mul_f32 {vr(P)}, {sK1}, {vr(P)}\nv_mul_f32 {vr(P + 1)}, {sK1}, {vr(P + 1)}")
        self.bf16r(P, P)
        self.bf16r(P + 1, P + 1)
        a(f"v_max_f32 {vr(MREG)}, {vr(P)}, {vr(P + 1)}")
        self.dppred("v_max_f32", [MREG], ("row_ror:4", "row_ror:8"))
        self.redrows("v_max_f32", [MREG], T + 1)
        a(f"v_mul_f32 {vr(T)}, {sK2}, {vr(MREG)}")
        a(f"v_fma_f32 {vr(P)}, {vr(P)}, {sK2}, -{vr(T)}\nv_fma_f32 {vr(P + 1)}, {vr(P + 1)}, {sK2}, -{vr(T)}")
        a(f"v_exp_f32 {vr(P)}, {vr(P)}\nv_exp_f32 {vr(P + 1)}, {vr(P + 1)}")
        a(f"v_cvt_pk_bf16_f32 {vr(T)}, {vr(P)}, {vr(P + 1)}\nv_add_f32 {vr(P)}, {vr(P)}, {vr(P + 1)}")
        for u in range(4):
            a(f"v_mov_b32_dpp {vr(Q + u)}, {vr(T)} row_newbcast:{4 * u} {FULL}")
        self.dppred("v_add_f32", [P], ("row_ror:4", "row_ror:8"))
        self.redrows("v_add_f32", [P], P + 1)
        a(f"s_lshl_b32 {sA}, {sw}, 2\nv_mov_b32 {vr(T + 7)}, {sA}\nds_write2_b32 {vr(T + 7)}, {vr(MREG)}, {vr(P)} offset0:{L_MAX // 4} offset1:{L_SUM // 4}")
        self.lds_inc(L_MCNT, T, T + 1)
        self.stamp(5)
        for t in range(8):
            for m in range(4):
                a(f"v_perm_b32 {vr(K + 4 * t + m)}, {vr(Q + t // 2)}, {vr(Q + t // 2)}, {vr(SEL + 2 * m + (t & 1))}")
        self.lds_wait(L_MCNT, sNACT, T, T + 1)
        a(f"v_and_b32 {vr(T + 2)}, 15, v1\nv_cmp_gt_u32 vcc, 12, {vr(T + 2)}\nv_min_u32 {vr(T + 2)}, 11, {vr(T + 2)}\nv_lshlrev_b32 {vr(T + 2)}, 2, {vr(T + 2)}")
        a(f"ds_read2_b32 {vr(P + 2, 2)}, {vr(T + 2)} offset0:{L_MAX // 4} offset1:{L_SUM // 4}")
        a(f"s_lshl_b32 {sA}, {sw}, 9\nv_lshl_add_u32 v3, v1, 4, {sA}\nv_mov_b32 {vr(T)}, {L_CNT}\nv_mov_b32 {vr(T + 1)}, 1")
        a(f"v_and_b32 {vr(T + 3)}, 31, v1\nv_lshlrev_b32 {vr(T + 3)}, 4, {vr(T + 3)}\nv_lshrrev_b32 {vr(T + 4)}, 5, v1\nv_mul_u32_u24 {vr(T + 4)}, {512 * self.nh}, {vr(T + 4)}\nv_add_u32 {vr(T + 3)}, {vr(T + 4)}, {vr(T + 3)}")
        a(f"s_sub_u32 {sC}, {sNACT}, 1")
        a("s_waitcnt lgkmcnt(0)")
        a(f"v_cndmask_b32 {vr(P + 3)}, 0, {vr(P + 3)}, vcc\nv_mov_b32 {vr(Q)}, {vr(P + 2)}")
        self.dppred("v_max_f32", [Q], [f"row_ror:{r}" for r in (1, 2, 4, 8)])
        a(f"v_sub_f32 {vr(FAC)}, {vr(MREG)}, {vr(Q)}\nv_sub_f32 {vr(P + 2)}, {vr(P + 2)}, {vr(Q)}")
        a(f"v_mul_f32 {vr(FAC)}, {sK2}, {vr(FAC)}\nv_mul_f32 {vr(P + 2)}, {sK2}, {vr(P + 2)}")
        a(f"v_exp_f32 {vr(FAC)}, {vr(FAC)}\nv_exp_f32 {vr(P + 2)}, {vr(P + 2)}\nv_mov_b32 {vr(MREG)}, {vr(Q)}")
        a(f"v_mul_f32 {vr(MREG + 1)}, {vr(P + 2)}, {vr(P + 3)}\nv_mov_b32 {vr(FAC + 1)}, {vr(FAC)}")
        self.dppred("v_add_f32", [MREG + 1], [f"row_ror:{r}" for r in (1, 2, 4, 8)])
        self.stamp(6)
        for t in range(8):
            a(f"s_waitcnt vmcnt({7 - t})")
            a(f"v_mfma_f32_16x16x32_bf16 {vr(D, 4)}, {vr(K + 4 * t, 4)}, {vr(V + 4 * t, 4)}, {vr(D, 4) if t else 0}")
        self.stamp(7)
        a("s_mov_b32 exec_hi, 0")
        a(f"v_pk_mul_f32 {vr(D, 2)}, {vr(D, 2)}, {vr(FAC, 2)}\nv_pk_mul_f32 {vr(D + 2, 2)}, {vr(D + 2, 2)}, {vr(FAC, 2)}")
        a(f"ds_write_b128 v3, {vr(D, 4)} offset:{L_OP}")
        a("s_mov_b32 exec_lo, 1")
        a(f"ds_add_rtn_u32 {vr(T + 5)}, {vr(T)}, {vr(T + 1)}")
        a("s_waitcnt lgkmcnt(0)")
        a(f"v_readfirstlane_b32 {sA}, {vr(T + 5)}\ns_mov_b64 exec, -1")
        a(f"s_cmp_lg_u32 {sA}, {sC}\ns_cbranch_scc1 L_role")
        for n in range(self.nh):
            a(f"ds_read_b128 {vr(K + 4 * n, 4)}, {vr(T + 3)} offset:{L_OP + 512 * n}")
        a(f"s_cmp_eq_u32 {sLOC}, 3")
        a("s_waitcnt lgkmcnt(0)")
        pk = lambda d, x: a(f"v_pk_add_f32 {vr(d, 2)}, {vr(d, 2)}, {vr(x, 2)}")
        for i in (0, 2):
            pk(K + i, K + 4 + i)
            pk(K + 8 + i, K + 12 + i)
        for i in (0, 2):
            if self.nh == 6:
                pk(K + 16 + i, K + 20 + i)
            pk(K + i, K + 8 + i)
        for i in (0, 2) if self.nh > 4 else ():
            pk(K + i, K + 16 + i)
        for i in range(4):
            a(f"v_permlane32_swap_b32 {vr(K + i)}, {vr(K + 4 + i)}")
        for i in (0, 2):
            pk(K + i, K + 4 + i)
        a(f"v_cndmask_b32 {vr(K)}, {vr(K)}, {vr(MREG)}, {sM0}\nv_cndmask_b32 {vr(K + 1)}, {vr(K + 1)}, {vr(MREG + 1)}, {sM0}")
        self.tag4(K, MK)
        a("s_mov_b32 exec_hi, 1\ns_cbranch_scc1 L_publoc")
        a(f"global_store_dwordx4 {vr(ADR)}, {vr(K, 4)}, {sWS} sc1\ns_branch L_pubdone")
        a(f"L_publoc:\nglobal_store_dwordx4 {vr(ADR)}, {vr(K, 4)}, {sWS}")
        a("L_pubdone:\ns_mov_b32 exec_hi, -1")
        a(f"ds_write_b32 {vr(T)}, {vr(T + 1)} offset:{L_PUB - L_CNT}")
        self.stamp(8)
        a(f"L_role:\ns_cmp_gt_u32 {sw}, 8\ns_cbranch_scc1 L_none")
        self.role("L_wo", "L_none", "L_ffn", "L_none")
        a("L_idle:\ns_waitcnt lgkmcnt(0)")
        a(f"s_load_dword {sT}, {sWS}, 0\ns_mov_b32 {sK2}, 0x3fb8aa3b\nv_mov_b32 {vr(MK)}, 0xffffff00")
        a("s_barrier\n" * (3 if self.b0 else 2) + "s_waitcnt lgkmcnt(0)\ns_barrier")
        self.tag_consts()
        if self.idledma:
            a(f"s_cmp_lg_u32 {sW}, {self.nwn}\ns_cbranch_scc1 L_idle2")
            self.role("L_cwo", "L_none", "L_none", "L_none")
            a("L_idle2:")
        a(f"s_sub_u32 {sw}, {sW}, 1")
        self.lds_wait(L_PUB, 1, T, T + 1)
        a("s_branch L_role")

    def role_wo(self):
        a = self.a
        sw = self.sw
        MK = 100
        B, D, O, ML, X, T, AO, AM, AW, AR, AY = 4, 20, 36, 44, 48, 52, 60, 61, 62, 63, 64
        a(f"L_wo:\ns_cmp_eq_u32 {sw}, 8\ns_cbranch_scc1 L_none")
        a(f"v_lshrrev_b32 v2, 4, v1\nv_bfe_u32 {vr(T)}, v1, 3, 1\nv_and_b32 {vr(T + 1)}, 3, v1\nv_bfe_u32 {vr(T + 2)}, v1, 4, 1\nv_lshrrev_b32 {vr(T + 3)}, 5, v1")
        a(f"s_lshl_b32 {sA}, {sw}, 2\nv_add_u32 v3, {sA}, {vr(T + 2)}\nv_mul_u32_u24 v3, {GUP}, v3\nv_lshl_add_u32 v3, {vr(T + 3)}, 9, v3")
        a(f"v_bfe_u32 {vr(T + 4)}, v1, 2, 2\nv_lshl_add_u32 v3, {vr(T + 4)}, 6, v3\nv_lshl_add_u32 v3, {vr(T + 1)}, 3, v3")
        a(f"s_lshl_b32 {sA}, {sXCD}, 2\ns_lshr_b32 {sB}, {sw}, 1\ns_add_u32 {sA}, {sA}, {sB}")
        a(f"s_lshl_b32 {sB}, {sA}, 7\ns_add_u32 {sB}, {sB}, {WS_ML}\nv_lshl_add_u32 {vr(AM)}, {vr(T)}, 2, {vr(T + 1)}\nv_lshl_add_u32 {vr(AM)}, {vr(AM)}, 4, {sB}")
        a(f"s_lshl_b32 {sA}, {sA}, 12\ns_and_b32 {sB}, {sw}, 1\ns_lshl_b32 {sB}, {sB}, 10\ns_add_u32 {sA}, {sA}, {sB}\ns_add_u32 {sA}, {sA}, {WS_OP}")
        a(f"v_bfe_u32 {vr(AO)}, v1, 2, 1\nv_lshl_add_u32 {vr(AO)}, {vr(AO)}, 1, {vr(T + 2)}\nv_lshl_add_u32 {vr(AO)}, {vr(AO)}, 1, {vr(T + 3)}\nv_lshlrev_b32 {vr(AO)}, 7, {vr(AO)}")
        a(f"v_lshl_add_u32 {vr(AO)}, {vr(T)}, 11, {vr(AO)}\nv_lshl_add_u32 {vr(AO)}, {vr(T + 1)}, 4, {vr(AO)}\nv_add_u32 {vr(AO)}, {sA}, {vr(AO)}")
        a(f"v_and_b32 {vr(AR)}, 15, v1\nv_lshlrev_b32 {vr(AW)}, 2, {vr(AR)}\nv_lshl_add_u32 {vr(AW)}, {vr(T + 3)}, 7, {vr(AW)}\nv_lshl_add_u32 {vr(AW)}, {vr(T + 2)}, 8, {vr(AW)}")
        a(f"s_lshl_b32 {sA}, {sw}, 9\ns_add_u32 {sA}, {sA}, {L_RED}\nv_add_u32 {vr(AW)}, {sA}, {vr(AW)}")
        a(f"v_lshlrev_b32 {vr(AR)}, 4, {vr(AR)}\nv_lshl_add_u32 {vr(AR)}, v2, 10, {vr(AR)}")
        a(f"s_lshl_b32 {sA}, {sXCD}, 11\ns_lshl_b32 {sB}, {sF}, 7\ns_add_u32 {sA}, {sA}, {sB}\ns_add_u32 {sA}, {sA}, {WS_YP}")
        a(f"v_and_b32 {vr(AY)}, 7, v1\nv_lshl_add_u32 {vr(AY)}, {vr(AY)}, 4, {sA}\nv_lshl_add_u32 {vr(AY)}, {vr(T)}, 14, {vr(AY)}")
        a(f"v_cmp_eq_u32 {sM1}, 1, {vr(T + 2)}")

        def mlload():
            a(f"global_load_dwordx4 {vr(ML, 4)}, {vr(AM)}, {sWS} sc1")

        def weights():
            a(f"v_and_b32 {vr(ML)}, {vr(MK)}, {vr(ML)}\nv_and_b32 {vr(ML + 1)}, {vr(MK)}, {vr(ML + 1)}")
            a(f"v_max_f32_dpp {vr(ML + 2)}, {vr(ML)}, {vr(ML)} quad_perm:[1,0,3,2] {FULL}")
            a(f"v_max_f32_dpp {vr(ML + 2)}, {vr(ML + 2)}, {vr(ML + 2)} quad_perm:[2,3,0,1] {FULL}")
            a(f"v_sub_f32 {vr(ML)}, {vr(ML)}, {vr(ML + 2)}\nv_mul_f32 {vr(ML)}, {sK2}, {vr(ML)}\nv_exp_f32 {vr(ML)}, {vr(ML)}")
            a(f"v_mul_f32 {vr(ML + 1)}, {vr(ML + 1)}, {vr(ML)}")
            self.dppred("v_add_f32", [ML + 1], ("quad_perm:[1,0,3,2]", "quad_perm:[2,3,0,1]"))
            a(f"v_rcp_f32 {vr(ML + 1)}, {vr(ML + 1)}\nv_mul_f32 {vr(ML)}, {vr(ML)}, {vr(ML + 1)}")

        def frags():
            self.lds_wait(L_DMA, 1, T + 6, T + 7, tight=True)
            a(f"s_mov_b32 {sSPIN}, 0")
            self.stamp(9)
            for t in range(2):
                for ct in range(2):
                    for hh in range(2):
                        a(f"ds_read_b64_tr_b16 {vr(B + 8 * t + 4 * ct + 2 * hh, 2)}, v3 offset:{L_W + t * 2 * GUP + hh * 256 + ct * 32}")

        def oloads():
            a(f"global_load_dwordx4 {vr(O, 4)}, {vr(AO)}, {sWS} sc1\nglobal_load_dwordx4 {vr(O + 4, 4)}, {vr(AO)}, {sWS} offset:64 sc1")
        if self.tog > 8:
            self.poll(mlload, lambda: self.chk(T, [ML]))
            self.stamp(10)
            self.poll(oloads, lambda: self.chk(T, [O, O + 4]), between=lambda: (weights(), frags()))
        else:
            if self.tog:
                def few():
                    self.chk(T, [ML])
                    a(f"s_and_b32 {sA}, vcc_lo, 0x0f0f\ns_bcnt1_i32_b32 {sA}, {sA}\ns_cmp_gt_u32 {sA}, {8 - self.tog}\ns_cselect_b64 vcc, -1, 0")
                self.poll(mlload, few)
            self.stamp(10)
            self.poll(lambda: (mlload(), oloads()), lambda: self.chk(T, [ML, O, O + 4]))
            frags()
            weights()
        self.stamp(11)
        self.count(1)
        for i in range(8):
            a(f"v_and_b32 {vr(O + i)}, {vr(MK)}, {vr(O + i)}")
        for i in range(0, 8, 2):
            a(f"v_pk_mul_f32 {vr(O + i, 2)}, {vr(O + i, 2)}, {vr(ML, 2)} op_sel_hi:[1,0]")
        self.dppred("v_add_f32", range(O, O + 8), ("quad_perm:[1,0,3,2]", "quad_perm:[2,3,0,1]"))
        for u in range(4):
            a(f"v_cvt_pk_bf16_f32 {vr(X + u)}, {vr(O + 2 * u)}, {vr(O + 2 * u + 1)}")
        a("s_waitcnt lgkmcnt(0)")
        for ct in range(2):
            for t in range(2):
                a(f"v_mfma_f32_16x16x32_bf16 {vr(D + 8 * ct + 4 * t, 4)}, {vr(X, 4)}, {vr(B + 8 * t + 4 * ct, 4)}, 0")
        for ct in range(2):
            a(f"v_cndmask_b32 {vr(O + ct)}, {vr(D + 8 * ct)}, {vr(D + 8 * ct + 4)}, {sM1}")
        a(f"ds_write2_b32 {vr(AW)}, {vr(O)}, {vr(O + 1)} offset0:0 offset1:16\ns_waitcnt lgkmcnt(0)\ns_barrier")
        a(f"s_cmp_lg_u32 {sw}, 0\ns_cbranch_scc1 L_none")
        for n in range(4):
            a(f"ds_read_b128 {vr(B + 4 * n, 4)}, {vr(AR)} offset:{L_RED + 256 * n}")
        a("s_waitcnt lgkmcnt(0)")
        for i in (0, 2):
            a(f"v_pk_add_f32 {vr(B + i, 2)}, {vr(B + i, 2)}, {vr(B + 4 + i, 2)}\nv_pk_add_f32 {vr(B + 8 + i, 2)}, {vr(B + 8 + i, 2)}, {vr(B + 12 + i, 2)}")
        for i in (0, 2):
            a(f"v_pk_add_f32 {vr(B + i, 2)}, {vr(B + i, 2)}, {vr(B + 8 + i, 2)}")
        for swp in ("v_permlane32_swap_b32", "v_permlane16_swap_b32"):
            for i in range(4):
                a(f"{swp} {vr(B + i)}, {vr(B + 4 + i)}")
            for i in (0, 2):
                a(f"v_pk_add_f32 {vr(B + i, 2)}, {vr(B + i, 2)}, {vr(B + 4 + i, 2)}")
        self.tag4(B, MK)
        a("s_mov_b64 exec, 0xffff")
        a(f"global_store_dwordx4 {vr(AY)}, {vr(B, 4)}, {sWS} sc1")
        self.stamp(12)
        self.end()

    def role_ffn(self):
        a = self.a
        sw = self.sw
        BG, BD, F, D, ST, XF = 4, 68, 84, 116, 120, 126
        MK, AY, XR, ADR, AH, AHN, AS, ASW, AA, AAW, AAR, AF, FM, AO, HV = 128, 130, 132, 134, 135, 136, 137, 138, 139, 140, 141, 142, 144, 145, 146
        HNS = 1088
        a(f"L_ffn:\ns_cmp_lg_u32 {sw}, 8\ns_cbranch_scc1 L_ffn1")
        a(f"v_mov_b32 v2, {L_HINT}\ns_mov_b32 {sC}, 0")
        if self.hint:
            a(f"s_lshl_b32 {sA}, {sF}, 7\ns_add_u32 {sA}, {sA}, {WS_HT}\ns_add_u32 s52, s26, {sA}\ns_addc_u32 s53, s27, 0\ns_mov_b32 s98, {sT}\ns_mov_b32 s99, {sT}")
            if self.hdepth:
                a(f"s_not_b32 {sB}, {sT}")
                for i in range(8):
                    a(f"s_mov_b32 s{56 + i}, {sB}")

            def hcheck():
                a(f"s_mov_b32 {sA}, 0")
                for i in range(4):
                    a(f"s_cmp_eq_u64 s[{56 + 2 * i}:{57 + 2 * i}], {sTT}\ns_cselect_b32 {sB}, {1 << i}, 0\ns_or_b32 {sA}, {sA}, {sB}")
                if self.incr:
                    a(f"s_cmp_eq_u32 {sA}, {sC}\ns_cbranch_scc1 L_fh0\nv_mov_b32 v3, {sA}\ns_mov_b32 {sC}, {sA}\nds_write_b32 v2, v3\nL_fh0:")
                a(f"s_cmp_lg_u32 {sA}, 15")
            self.spoll(lambda: a((f"s_sleep {self.hsleep}\n" if self.hsleep else "") + f"s_load_dwordx8 s[56:63], {sP}, 0 glc"), hcheck, keep=self.hdepth)
        if not (self.hint and self.incr):
            a("v_mov_b32 v3, 15\nds_write_b32 v2, v3")
        self.stamp(2)
        if self.barx:
            a("s_barrier")
        self.end()
        a("L_ffn1:")
        g, b3, q4, r2, hi, b4 = F, F + 1, F + 2, F + 3, F + 4, F + 5
        a(f"v_mov_b32 {vr(MK)}, 0xffffff00")
        a(f"v_lshrrev_b32 {vr(g)}, 4, v1\nv_bfe_u32 {vr(b3)}, v1, 3, 1\nv_and_b32 {vr(q4)}, 3, v1\nv_bfe_u32 {vr(r2)}, v1, 2, 2\nv_lshrrev_b32 {vr(hi)}, 5, v1\nv_bfe_u32 {vr(b4)}, v1, 4, 1")
        a(f"s_lshl_b32 {sA}, {sw}, 4\nv_and_b32 v3, 15, v1\nv_add_u32 v3, {sA}, v3")
        a(f"v_lshlrev_b32 {vr(AHN)}, 3, v3\nv_lshl_add_u32 {vr(AHN)}, {vr(b4)}, 2, {vr(AHN)}\nv_lshl_add_u32 {vr(AH)}, {vr(hi)}, 10, {vr(AHN)}")
        a(f"global_load_dword {vr(XR)}, {vr(AH)}, {sX}")
        a(f"v_mul_u32_u24 v2, {HNS}, {vr(hi)}\nv_add_u32 {vr(AHN)}, v2, {vr(AHN)}")
        a(f"v_lshlrev_b32 {vr(AY)}, 4, v3\nv_lshl_add_u32 {vr(AY)}, {vr(hi)}, 14, {vr(AY)}\nv_lshl_add_u32 {vr(AY)}, {vr(b4)}, 11, {vr(AY)}\nv_bfe_u32 v3, v1, 2, 1")
        a(f"v_add_u32 {vr(AY + 1)}, {WS_YP + 12288}, {vr(AY)}\nv_add_u32 {vr(AY)}, {WS_YP + 4096}, {vr(AY)}")
        a(f"s_lshl_b32 {sA}, {sw}, 3\nv_lshlrev_b32 {vr(AS)}, 6, {vr(hi)}\nv_add_u32 {vr(ASW)}, {sA}, {vr(AS)}")
        a(f"v_and_b32 {vr(AA)}, 1, v1\nv_mul_u32_u24 {vr(AA)}, {HNS}, {vr(AA)}\nv_lshl_add_u32 {vr(AA)}, {vr(b4)}, 5, {vr(AA)}\nv_lshl_add_u32 {vr(AA)}, {vr(hi)}, 4, {vr(AA)}")
        if self.fold:
            a(f"v_and_b32 v2, 2, v1\nv_cmp_ne_u32 vcc, 0, v2\nv_lshlrev_b32 v2, 5, {vr(b4)}\nv_lshl_add_u32 v2, {vr(hi)}, 4, v2")
            a(f"v_add_u32 {vr(AA)}, {L_HN}, {vr(AA)}\nv_add_u32 v2, {L_ONE}, v2\nv_cndmask_b32 {vr(AA)}, {vr(AA)}, v2, vcc\nv_lshlrev_b32 {vr(AS)}, 6, {vr(b4)}")
        a(f"v_lshlrev_b32 {vr(AAR)}, 6, v3\nv_lshl_add_u32 {vr(AAR)}, {vr(g)}, 4, {vr(AAR)}")
        a(f"v_and_b32 {vr(AAW)}, 7, v1\nv_lshlrev_b32 {vr(AAW)}, 1, {vr(AAW)}\nv_lshl_add_u32 {vr(AAW)}, {vr(b4)}, 6, {vr(AAW)}\ns_lshl_b32 {sA}, {sw}, 4\nv_add_u32 {vr(AAW)}, {sA}, {vr(AAW)}")
        a(f"s_lshl_b32 {sB}, {sw}, 1\nv_add_u32 {vr(ADR)}, {sB}, {vr(hi)}\nv_lshl_add_u32 {vr(ADR)}, {vr(ADR)}, 1, v3\nv_mul_u32_u24 {vr(ADR)}, {FP_STRIDE}, {vr(ADR)}")
        a(f"s_lshl_b32 {sB}, {sF}, 7\ns_add_u32 {sB}, {sB}, {WS_FP}\nv_lshl_add_u32 {vr(ADR)}, {vr(q4)}, 4, {vr(ADR)}\nv_lshl_add_u32 {vr(ADR)}, {vr(b4)}, 6, {vr(ADR)}\nv_add_u32 {vr(ADR)}, {sB}, {vr(ADR)}")
        a(f"v_bfe_u32 v2, v1, 1, 1\nv_mul_u32_u24 v2, {L_U - L_G}, v2\nv_mul_u32_u24 v3, {GUP}, {vr(b4)}\nv_add_u32 v2, v2, v3")
        a(f"v_lshl_add_u32 v2, {vr(hi)}, 9, v2\nv_lshl_add_u32 v2, {vr(r2)}, 6, v2\nv_and_b32 v3, 1, v1\nv_lshl_add_u32 v2, v3, 3, v2")
        a(f"s_and_b32 {sA}, {sw}, 3\ns_lshl_b32 {sA}, {sA}, 4\nv_add_u32 v2, {sA}, v2")
        a(f"v_lshl_add_u32 v3, {vr(g)}, 3, {vr(r2)}\nv_mul_u32_u24 v3, {ROWP}, v3\nv_lshl_add_u32 v3, {vr(q4)}, 5, v3\ns_lshl_b32 {sB}, {sw}, 7\ns_add_u32 {sB}, {sB}, {L_D}\nv_add_u32 v3, {sB}, v3")
        a(f"s_mul_i32 {sB}, {sF}, {FP_STRIDE}\ns_lshl_b32 {sC}, {sw}, 6\ns_add_u32 {sB}, {sB}, {sC}\ns_add_u32 {sB}, {sB}, {WS_FP}")
        a(f"v_lshrrev_b32 {vr(AF)}, 2, v1\nv_lshlrev_b32 {vr(AF)}, 7, {vr(AF)}\nv_lshl_add_u32 {vr(AF)}, {vr(q4)}, 4, {vr(AF)}\nv_add_u32 {vr(AF)}, {sB}, {vr(AF)}")
        a(f"v_cmp_gt_u32 vcc, 44, v1\nv_add_u32 {vr(AF + 1)}, 4096, {vr(AF)}\nv_cndmask_b32 {vr(AF + 1)}, {vr(AF)}, {vr(AF + 1)}, vcc\nv_cndmask_b32 {vr(FM)}, 0, {vr(MK)}, vcc")
        a(f"s_and_b32 {sB}, {sF}, 1\ns_lshl_b32 {sB}, {sB}, 9\ns_lshr_b32 {sC}, {sF}, 1\ns_lshl_b32 {sC}, {sC}, 5\ns_add_u32 {sB}, {sB}, {sC}\ns_lshl_b32 {sC}, {sw}, 4\ns_add_u32 {sB}, {sB}, {sC}")
        a(f"v_lshl_add_u32 {vr(AO)}, {vr(b4)}, 1, {vr(hi)}\nv_lshl_add_u32 {vr(AO)}, {vr(q4)}, 2, {vr(AO)}\nv_add_u32 {vr(AO)}, {sB}, {vr(AO)}\nv_lshlrev_b32 {vr(AO)}, 1, {vr(AO)}")
        a(f"s_and_b32 {sB}, {sF}, 1\ns_mul_i32 {sB}, {sB}, {HNS - 1024}\nv_add_u32 {vr(AH)}, {sB}, {vr(AO)}" if self.fold else "")
        a(f"v_cmp_eq_u32 {sM1}, 1, {vr(b4)}")
        a(f"s_mov_b32 {sK1}, 0x3d372713\ns_mov_b32 {sK3}, 0xc0135761")

        def load1(n):
            a(f"global_load_dwordx4 {vr(F + 4 * n, 4)}, {vr(AY + n // 2)}, {sWS} offset:{-4096 if n % 2 == 0 else 0} sc1")

        def loads():
            for n in range(4):
                load1(n)

        def mask1(n):
            for i in range(4):
                a(f"v_and_b32 {vr(F + 4 * n + i)}, {vr(MK)}, {vr(F + 4 * n + i)}")

        def bdreads():
            for n in range(4):
                for hh in range(2):
                    a(f"ds_read_b64_tr_b16 {vr(BD + 4 * n + 2 * hh, 2)}, v3 offset:{hh * 4 * ROWP + n * 8}")

        def bgreads():
            for t in range(16):
                for hh in range(2):
                    a(f"ds_read_b64_tr_b16 {vr(BG + 4 * t + 2 * hh, 2)}, v2 offset:{L_G + t * 2 * GUP + hh * 256}")

        def frags(tag):
            a(f"s_mov_b32 {sRD}, 1")
            bdreads()
            a(f"s_cmp_gt_u32 {sw}, 3\ns_cbranch_scc1 L_ffr{tag}")
            bgreads()
            a(f"L_ffr{tag}:")
        a(f"v_mov_b32 {vr(F + 16)}, {L_DMA}\ns_mov_b32 {sRD}, 0\ns_mov_b32 {sSPIN}, 0\ns_waitcnt vmcnt(0)")
        self.unpack(XF, XR, 1)
        a(f"s_mov_b32 {sC}, 0\nL_fw:\nds_read2_b32 {vr(F + 18, 2)}, {vr(F + 16)} offset0:0 offset1:1")
        a(f"s_add_u32 {sSPIN}, {sSPIN}, 1\ns_cmp_gt_u32 {sSPIN}, {SPIN * 16}\ns_cbranch_scc1 L_bail\ns_waitcnt lgkmcnt(0)")
        a(f"v_readfirstlane_b32 {sB}, {vr(F + 19)}\nv_readfirstlane_b32 {sA}, {vr(F + 18)}\ns_andn2_b32 {sD}, {sB}, {sC}\ns_cbranch_scc0 L_fw1")
        for n in range(4):
            a(f"s_bitcmp0_b32 {sD}, {n}\ns_cbranch_scc1 L_fl{n}")
            load1(n)
            a(f"L_fl{n}:")
        if self.barx:
            a(f"s_mov_b32 {sC}, {sB}\ns_bcnt1_i32_b32 {sD}, {sB}\ns_cmp_ge_u32 {sD}, {self.xth}\ns_cbranch_scc1 L_fgo\nL_fw1:")
        else:
            a(f"s_mov_b32 {sC}, {sB}\ns_cmp_eq_u32 {sB}, 15\ns_cbranch_scc1 L_fgo\nL_fw1:")
        a(f"s_andn2_b32 {sA}, {sA}, {sRD}\ns_cbranch_scc0 L_fw0")
        frags("a")
        a("L_fw0:\n" + ("" if self.tight else "s_sleep 1\n") + "s_branch L_fw\nL_fgo:")
        if self.barx:
            a(f"s_andn2_b32 {sA}, {sA}, {sRD}\ns_cbranch_scc0 L_fx")
            frags("c")
            a("L_fx:")
            if self.early:
                a("s_waitcnt vmcnt(0)")
                for n in range(4):
                    a(f"s_bitcmp0_b32 {sC}, {n}\ns_cbranch_scc1 L_fe{n}")
                    self.chk(F + 22, [F + 4 * n])
                    mask1(n)
                    a(f"s_cbranch_vccz L_fe{n}\ns_bitset0_b32 {sC}, {n}\nL_fe{n}:")
            a("s_barrier")
            for n in range(4):
                a(f"s_bitcmp1_b32 {sC}, {n}\ns_cbranch_scc1 L_fm{n}")
                load1(n)
                a(f"L_fm{n}:")
        self.stamp(9)

        def shadow():
            if self.barx:
                a(f"ds_read_b32 {vr(F + 18)}, {vr(F + 16)}")
            self.lds_inc(L_YISS, F + 20, F + 21)
            if self.barx:
                a(f"s_waitcnt lgkmcnt(0)\nv_readfirstlane_b32 {sA}, {vr(F + 18)}")
            a(f"s_mov_b32 {sSPIN}, 0\ns_andn2_b32 {sA}, {sA}, {sRD}\ns_cbranch_scc0 L_fnog")
            frags("b")
            a("L_fnog:")
        if self.early and self.barx:
            shadow()
            a(f"s_mov_b64 {sM0}, 0\ns_waitcnt vmcnt(0)")
            for n in range(4):
                a(f"s_bitcmp1_b32 {sC}, {n}\ns_cbranch_scc1 L_fn{n}")
                self.chk(F + 22, [F + 4 * n])
                mask1(n)
                a(f"s_or_b64 {sM0}, {sM0}, vcc\nL_fn{n}:")
            a(f"s_cmp_eq_u64 {sM0}, 0\ns_cbranch_scc1 L_fok")
            self.poll(loads, lambda: self.chk(F + 16, [F + 4 * n for n in range(4)]))
            for n in range(4):
                mask1(n)
            a("L_fok:")
        else:
            self.poll(loads, lambda: self.chk(F + 16, [F + 4 * n for n in range(4)]), between=shadow, first=False)
            for n in range(4):
                mask1(n)
        self.stamp(10)
        self.count(1)
        for i in (0, 2):
            a(f"v_pk_add_f32 {vr(F + i, 2)}, {vr(F + i, 2)}, {vr(F + 4 + i, 2)}\nv_pk_add_f32 {vr(F + 8 + i, 2)}, {vr(F + 8 + i, 2)}, {vr(F + 12 + i, 2)}")
        for i in (0, 2):
            a(f"v_pk_add_f32 {vr(F + i, 2)}, {vr(F + i, 2)}, {vr(F + 8 + i, 2)}")
        a(f"v_permlane16_swap_b32 {vr(F)}, {vr(F + 2)}\nv_permlane16_swap_b32 {vr(F + 1)}, {vr(F + 3)}")
        a(f"v_pk_add_f32 {vr(F, 2)}, {vr(F, 2)}, {vr(F + 2, 2)}")
        self.bf16r(F, F)
        self.bf16r(F + 1, F + 1)
        a(f"v_pk_add_f32 {vr(F + 2, 2)}, {vr(F, 2)}, {vr(XF, 2)}")
        self.bf16r(F, F + 2)
        self.bf16r(F + 1, F + 3)
        S = F + 6
        a(f"v_add_f32 {vr(S)}, {vr(F)}, {vr(F + 1)}\nv_mul_f32 {vr(S + 1)}, {vr(F)}, {vr(F)}\nv_fmac_f32 {vr(S + 1)}, {vr(F + 1)}, {vr(F + 1)}")
        a(f"v_cvt_pk_bf16_f32 {vr(F + 4)}, {vr(F + 2)}, {vr(F + 3)}")
        self.dppred("v_add_f32", [S, S + 1], [f"row_ror:{r}" for r in (1, 2, 4, 8)])
        a(f"ds_write_b32 {vr(AHN)}, {vr(F + 4)} offset:{L_HN}" if self.fold else f"ds_write_b32 {vr(AH)}, {vr(F + 4)} offset:{L_H}")
        for r in (S, S + 1):
            a(f"v_add_f32_dpp {vr(r)}, {vr(r)}, {vr(r)} row_bcast:15 row_mask:0xa bank_mask:0xf")
        a(f"s_mov_b32 exec_lo, 0x10000\ns_mov_b32 exec_hi, 0x10000\nds_write_b64 {vr(ASW)}, {vr(S, 2)} offset:{L_STAT}")
        a("s_mov_b64 exec, -1\ns_waitcnt lgkmcnt(0)\ns_barrier")
        self.stamp(11)

        def stats(R):
            sub = Gen.__new__(Gen)
            out = []
            sub.a = lambda t: out.extend(t.split("\n"))
            for n in range(4):
                sub.a(f"v_pk_add_f32 {vr(R + 4 * n, 2)}, {vr(R + 4 * n, 2)}, {vr(R + 2 + 4 * n, 2)}")
            sub.a(f"v_pk_add_f32 {vr(R, 2)}, {vr(R, 2)}, {vr(R + 4, 2)}\nv_pk_add_f32 {vr(R + 8, 2)}, {vr(R + 8, 2)}, {vr(R + 12, 2)}")
            sub.a(f"v_pk_add_f32 {vr(R, 2)}, {vr(R, 2)}, {vr(R + 8, 2)}")
            sub.a(f"v_mul_f32 {vr(R)}, 0x3b000000, {vr(R)}\nv_mul_f32 {vr(R + 1)}, 0x3b000000, {vr(R + 1)}")
            sub.a(f"v_fma_f32 {vr(R + 1)}, -{vr(R)}, {vr(R)}, {vr(R + 1)}\nv_max_f32 {vr(R + 1)}, 0, {vr(R + 1)}")
            sub.ln_finish(ST, R, R + 1)
            return out
        if not self.fold:
            for n in range(4):
                a(f"ds_read_b128 {vr(F + 8 + 4 * n, 4)}, {vr(AS)} offset:{L_STAT + 16 * n}")
            a(f"ds_read_u16 {vr(HV)}, {vr(AO)} offset:{L_H}")
            a("s_waitcnt lgkmcnt(0)")
            for x in stats(F + 8):
                a(x)
            self.ln_apply2(F, ST, XF, F + 4)
            a(f"ds_write_b32 {vr(AHN)}, {vr(XF)} offset:{L_HN}\ns_waitcnt lgkmcnt(0)\ns_barrier")

        def announce(tag):
            a(f"s_cmp_lg_u32 {sw}, 4\ns_cbranch_scc1 L_fan{tag}")
            a(f"s_lshl_b32 {sA}, {sF}, 2\ns_add_u32 {sA}, {sA}, {WS_FT}\nv_add_u32 {vr(BG)}, {sF}, v1\nv_and_b32 {vr(BG)}, {self.nrep - 1}, {vr(BG)}\nv_lshl_add_u32 {vr(BG)}, {vr(BG)}, 8, {sA}\nv_mov_b32 {vr(BG + 1)}, {sT}")
            for i in range(self.clag):
                a(f"ds_read_b32 {vr(BG + 2)}, {vr(AS)}\ns_waitcnt lgkmcnt(0)")
            a(f"s_bfm_b64 exec, {self.nrep}, 0\nglobal_store_dword {vr(BG)}, {vr(BG + 1)}, {sWS} sc1\ns_mov_b64 exec, -1\nL_fan{tag}:")
        a(f"s_cmp_lt_u32 {sw}, 4\ns_cbranch_scc1 L_fgu")
        if self.bump == "early":
            a(f"s_lshl_b32 {sA}, {sF}, 3\ns_add_u32 {sA}, {sA}, {sw}\ns_cmp_lg_u32 {sA}, 7\ns_cbranch_scc1 L_fnb")
            a(f"v_mov_b32 {vr(BG)}, 0\nv_mov_b32 {vr(BG + 1)}, {sT}\ns_mov_b64 exec, 1\nglobal_store_dword {vr(BG)}, {vr(BG + 1)}, {sWS} sc1\ns_mov_b64 exec, -1\nL_fnb:")
        if self.cpt == "hn":
            announce("a")
        a(f"s_branch L_fact\nL_fgu:\ns_cmp_lg_u32 {sRD}, 0\ns_cbranch_scc1 L_fgu2")
        bgreads()
        a("s_waitcnt lgkmcnt(0)\nL_fgu2:")
        hoff = 0 if self.fold else L_HN
        fill = []
        pre = 4 if self.fold and self.micro else 0
        for t in range(pre):
            a(f"ds_read_b128 {vr(F + 4 * t, 4)}, {vr(AA)} offset:{hoff + 64 * t}")
        if self.fold:
            SR = 144 + 4
            for n in range(3):
                a(f"ds_read_b128 {vr(SR + 4 * n, 4)}, {vr(AS)} offset:{L_STAT + 16 * n}")
            a(f"ds_read_b128 {vr(ST + 4, 4)}, {vr(AS)} offset:{L_STAT + 48}")
            fill = [x.replace(vr(SR + 12, 2), vr(ST + 4, 2)).replace(vr(SR + 14, 2), vr(ST + 6, 2)) for x in stats(SR)]
        for t in range(pre, 8):
            a(f"ds_read_b128 {vr(F + 4 * t, 4)}, {vr(AA)} offset:{hoff + 64 * t}")
        for t in range(16):
            a(f"s_waitcnt lgkmcnt({11 if t < pre else min(7, 15 - t)})")
            a(f"v_mfma_f32_16x16x32_bf16 {vr(D, 4)}, {vr(F + 4 * (t % 8), 4)}, {vr(BG + 4 * t, 4)}, {vr(D, 4) if t else 0}")
            if t < 8:
                a(f"ds_read_b128 {vr(F + 4 * t, 4)}, {vr(AA)} offset:{hoff + 64 * (t + 8)}")
            nf = (0 if t < pre else 2) if pre else (1 if t < 8 else 2)
            for x in fill[:nf]:
                a(x)
            fill = fill[nf:]
        assert not fill
        G = BG
        a(f"v_cndmask_b32 {vr(G)}, {vr(D)}, {vr(D + 1)}, {sM1}")
        if self.fold:
            a(f"v_fma_f32 {vr(G)}, -{vr(ST)}, {vr(D + 2)}, {vr(G)}\nv_mul_f32 {vr(G)}, {vr(G)}, {vr(ST + 4)}")
        self.bf16r(G, G)
        a(f"v_mul_f32 {vr(G + 2)}, {vr(G)}, {vr(G)}\nv_mul_f32 {vr(G + 3)}, {sK3}, {vr(G)}")
        a(f"v_mov_b32_dpp {vr(G + 1)}, {vr(G)} row_ror:8 {FULL}")
        a(f"v_fma_f32 {vr(G + 2)}, {vr(G + 2)}, {sK1}, 1.0")
        a(f"v_mul_f32 {vr(G + 2)}, {vr(G + 2)}, {vr(G + 3)}\nv_exp_f32 {vr(G + 2)}, {vr(G + 2)}\nv_add_f32 {vr(G + 2)}, 1.0, {vr(G + 2)}")
        a(f"v_rcp_f32 {vr(G + 2)}, {vr(G + 2)}\nv_mul_f32 {vr(G)}, {vr(G)}, {vr(G + 2)}")
        self.bf16r(G, G)
        a(f"v_mul_f32 {vr(G)}, {vr(G)}, {vr(G + 1)}\nv_cvt_pk_bf16_f32 {vr(G)}, {vr(G)}, {vr(G)}")
        a(f"s_mov_b64 exec, 0x00ff00ff\nds_write_b16 {vr(AAW)}, {vr(G)} offset:{L_ACT}\ns_mov_b64 exec, -1")
        a("L_fact:")
        if self.fold:
            a(f"ds_read_u16 {vr(HV)}, {vr(AH)} offset:{L_HN}")
        for i in range(16):
            a(f"v_mov_b32 {vr(F + i)}, 0")
        a("s_waitcnt lgkmcnt(0)\ns_barrier")
        self.stamp(12)
        if self.cpt == "act":
            announce("b")
        a(f"s_cmp_lg_u32 {sRD}, 0\ns_cbranch_scc1 L_fdn")
        bdreads()
        a("L_fdn:")
        for n in range(4):
            a(f"s_mov_b32 exec_lo, {0x11111111 << n:#x}\ns_mov_b32 exec_hi, {0x11111111 << n:#x}")
            a(f"ds_read_b128 {vr(F + 4 * n, 4)}, {vr(AAR)} offset:{L_ACT}")
        a(f"s_mov_b64 exec, -1\nv_lshlrev_b32 {vr(HV)}, 16, {vr(HV)}")
        a("s_waitcnt lgkmcnt(0)")
        for n in range(4):
            a(f"v_mfma_f32_16x16x32_bf16 {vr(D, 4)}, {vr(BD + 4 * n, 4)}, {vr(F + 4 * n, 4)}, {vr(D, 4) if n else 0}")
        a("s_mov_b32 exec_lo, 0x00ff00ff\ns_mov_b32 exec_hi, 0x00ff00ff")
        self.tag4(D, MK)
        a(f"global_store_dwordx4 {vr(ADR)}, {vr(D, 4)}, {sWS} sc1")
        self.stamp(13)
        a(f"s_mov_b64 exec, -1\ns_cmp_ge_u32 {sF}, 32\ns_cbranch_scc1 L_none\ns_cmp_ge_u32 {sw}, 2\ns_cbranch_scc1 L_none")
        if self.cpt in ("hn", "act"):
            a(f"s_and_b32 {sA}, {sF}, {self.nrep - 1}\ns_lshl_b32 {sA}, {sA}, 8\ns_add_u32 {sA}, {sA}, {WS_FT}\ns_add_u32 s52, s26, {sA}\ns_addc_u32 s53, s27, 0\ns_mov_b32 s98, {sT}\ns_mov_b32 s99, {sT}")

            def fcheck():
                pairs = list(range(4, 20, 2)) + list(range(64, 80, 2)) + list(range(56, 64, 2)) + [44]
                a(f"s_xor_b32 s46, s46, {sT}")
                for p in pairs:
                    a(f"s_xor_b64 s[{p}:{p + 1}], s[{p}:{p + 1}], {sTT}")
                a("s_or_b32 s4, s4, s46")
                for p in pairs[1:]:
                    a(f"s_or_b64 s[4:5], s[4:5], s[{p}:{p + 1}]")
            self.spoll(lambda: a(f"s_load_dwordx16 s[4:19], {sP}, 0 glc\ns_load_dwordx16 s[64:79], {sP}, 64 glc\ns_load_dwordx8 s[56:63], {sP}, 128 glc\ns_load_dwordx4 s[44:47], {sP}, 160 glc"), fcheck)
        elif self.csleep:
            a(f"s_sleep {self.csleep}")
        elif self.ackwait:
            a("s_waitcnt vmcnt(0)")

        def floads():
            a(f"global_load_dwordx4 {vr(F, 4)}, {vr(AF)}, {sWS} sc1\nglobal_load_dwordx4 {vr(F + 4, 4)}, {vr(AF)}, {sWS} offset:2048 sc1")
            a(f"global_load_dwordx4 {vr(F + 8, 4)}, {vr(AF + 1)}, {sWS} sc1")
        self.poll(floads, lambda: self.chk(F + 12, [F, F + 4, F + 8]))
        self.count(2)
        for i in range(8):
            a(f"v_and_b32 {vr(F + i)}, {vr(MK)}, {vr(F + i)}")
        for i in range(4):
            a(f"v_and_b32 {vr(F + 8 + i)}, {vr(FM)}, {vr(F + 8 + i)}")
        for k in (4, 8):
            for i in (0, 2):
                a(f"v_pk_add_f32 {vr(F + i, 2)}, {vr(F + i, 2)}, {vr(F + k + i, 2)}")
        self.tr_reduce4(F, (4, 8))
        self.bf16r(F, F)
        a("s_mov_b32 exec_lo, 0x000f000f\ns_mov_b32 exec_hi, 0x000f000f")
        a(f"v_add_f32 {vr(F)}, {vr(F)}, {vr(HV)}\nv_cvt_pk_bf16_f32 {vr(F)}, {vr(F)}, {vr(F)}")
        a(f"global_store_short {vr(AO)}, {vr(F)}, {sOUT} {self.outf}")
        self.stamp(14)
        if self.bump != "early" or self.pad:
            a(f"s_or_b32 {sA}, {sF}, {sw}\ns_cmp_lg_u32 {sA}, 0\ns_cbranch_scc1 L_none")
        if self.bump != "early":
            a(f"v_mov_b32 v2, 0\nv_mov_b32 v3, {sT}\ns_mov_b64 exec, 1\nglobal_store_dword v2, v3, {sWS} sc1")
        if self.pad:
            a(f"s_mov_b32 s88, {self.pad}")
            if self.probe in ("smax", "smin", "smed"):
                op = "v_max_i32" if self.probe == "smax" else ("v_min_i32" if self.probe == "smin" else "v_add_u32")
                a(f"s_mov_b64 exec, -1\nv_lshlrev_b32 v2, 4, v1\nv_add_u32 v2, {WS_ST}, v2\nglobal_load_dwordx4 v[4:7], v2, {sWS} sc1\ns_waitcnt vmcnt(0)")
                for i in range(4):
                    a(f"v_subrev_u32 v{4 + i}, s80, v{4 + i}")
                a(f"{op} v4, v4, v5\n{op} v6, v6, v7\n{op} v4, v4, v6")
                self.dppred(op, [4], [f"row_ror:{r}" for r in (1, 2, 4, 8)])
                self.redrows(op, [4], 5)
                if self.probe == "smed":
                    a("v_ashrrev_i32 v4, 8, v4")
                a("v_readfirstlane_b32 s84, v4\ns_add_u32 s84, s84, 300\ns_add_u32 s84, s84, s80")
            if self.probe is not None:
                a("s_waitcnt lgkmcnt(0)\ns_sub_u32 s84, s84, s80\ns_lshl_b32 s84, s84, 2\ns_min_u32 s84, s84, 20000\ns_add_u32 s88, s88, s84")
            a("L_pad:\ns_memrealtime s[86:87]\ns_waitcnt lgkmcnt(0)\ns_sub_u32 s86, s86, s80\ns_cmp_lt_u32 s86, s88\ns_cbranch_scc1 L_pad")
        self.end()


if __name__ == "__main__":
    out = sys.argv[1]
    kw = {}
    for x in sys.argv[2:]:
        k, v = x.split("=")
        kw[k] = {"True": True, "False": False}.get(v, v)
    g = Gen(**kw)
    open(out, "w").write(g.build())
    print("written", out, "nops", g.nops)
```

```python
import sys
from asmlib import Asm

KN = "sequential_preLN__sliding_block_cached__geglu_ffn__decode_kernel"
HEADER = open("sequential_preLN__sliding_block_cached__geglu_ffn__decode.s.ref").read().split("; Override launch")[0]

WS_FT, WS_HT, WS_XT, WS_QP, WS_OP, WS_ML, WS_YP, WS_FP, WS_ST = 0x4A000, 0x48000, 0x400, 0x1000, 0x50000, 0x70000, 0x80000, 0x110000, 0x200000
WS_DT = 0x800
FP_STRIDE = 6144
TAGC = 0x9E3779B9
L_Q, L_MAX, L_SUM, L_CNT, L_VCNT, L_MCNT, L_QF, L_PUB, L_DMA, L_HINT, L_YISS = 0, 256, 304, 352, 356, 360, 364, 368, 372, 376, 380
L_OP, L_RED, L_STAT, L_ACT, L_H, L_HN, L_W = 512, 6656, 10752, 11008, 11264, 13312, 15616
ROWP = 1040
GUP = 1056
L_G = L_W
L_U = L_G + 32 * GUP + 16
L_D = L_U + 32 * GUP + 240
LDS_BYTES = L_D + 32 * ROWP
L_ONE = L_H + 128
SPIN = 1 << 19

sX, sK, sV, sWQ, sWO, sWG, sWU, sWD, sOUT, sWS = "s[4:5]", "s[6:7]", "s[8:9]", "s[10:11]", "s[12:13]", "s[16:17]", "s[18:19]", "s[20:21]", "s[22:23]", "s[26:27]"
sXCD, sH, sJ, sW, sT = "s28", "s29", "s30", "s31", "s32"
sT1, sT2, sT3 = "s33", "s34", "s35"
sSELA, sSELB, sHI = "s36", "s37", "s38"
sSPIN = "s39"
sA, sB, sC, sD = "s40", "s41", "s42", "s43"
sM0, sM1 = "s[44:45]", "s[46:47]"
sF = "s48"
sK1, sK2, sK3 = "s49", "s50", "s51"
sP = "s[52:53]"
sLOC, sNACT, sRD = "s54", "s55", "s96"
sTT = "s[98:99]"
ST0 = 80
FULL = "row_mask:0xf bank_mask:0xf"


def vr(a, n=1):
    return f"v{a}" if n == 1 else f"v[{a}:{a + n - 1}]"


class Gen:
    def __init__(self, diag=False, nt="nt", wnt="nt", prefetch=True, pad=0, lds=None, nvg=160, probe=None, stamps=None,
                 nk0=4, helper=True, hrow0=128, local=True, ackwait=True, nk1=8, optouch=True, window=True, exp="", wwin=15, hint=True, lag=5, fwin=32, downearly=True, b0=True, tight=False, nww=8, wotouch=True, nv1=0, hwin=3, idledma=True, hpub=False, fpub=False, nth=0, nlate=12, hgu=0, hall=True, tlb=True, cpt="ack", hmode="s", hsleep=0, fchk=8, fwin0=11, fk0=24, incr=True, bump="early", outf="nt", nkpre=1, clag=0, nrep=32, wopair=False, frot=True, wk0=16, hr=128, wont="nt", fnt="", barx=True, hdown=False, clean=False, fpre=8, wpre=8, tog=9, csleep=0, fold=True, micro=True, early=False, hdepth=0, xth=3, ytouch=False, prew="", prio=False, layout="sc", hsh=0, dflag=False, vtlb=False):
        self.a = Asm()
        self.diag, self.nt, self.wnt, self.prefetch = diag, nt, wnt, prefetch
        self.uid = 0
        self.pad, self.probe, self.stamps, self.sec = int(pad), probe, stamps, ""
        self.nk0, self.helper, self.hrow0, self.local, self.ackwait = int(nk0), helper, int(hrow0), local, ackwait
        self.nk1 = int(nk1)
        self.optouch, self.window, self.exp, self.wwin = optouch, window, exp, int(wwin)
        self.hint, self.lag, self.fwin = hint, int(lag), int(fwin)
        self.downearly, self.b0, self.tight = downearly, b0, tight
        self.nww, self.wotouch = int(nww), wotouch
        self.nwn = 16 - self.nww
        self.incr, self.bump, self.outf, self.nkpre, self.clag = incr, bump, outf, int(nkpre), int(clag)
        self.slots = {}
        self.vtlb = vtlb
        self.dflag = dflag
        self.hsh = int(hsh)
        self.layout = layout
        self.prio = prio
        self.prew = prew
        self.xth, self.ytouch = int(xth), ytouch
        self.hdepth = int(hdepth)
        self.micro, self.early = micro, early
        self.fold = fold
        self.tog, self.csleep = int(tog), int(csleep)
        self.clean, self.fpre, self.wpre = clean, int(fpre), int(wpre)
        self.barx, self.hdown = barx, hdown
        self.wont, self.fnt = wont, fnt
        self.hr = int(hr)
        self.wopair, self.frot, self.wk0 = wopair, frot, int(wk0)
        self.nrep = int(nrep)
        self.hmode, self.hsleep, self.fchk, self.fwin0, self.fk0 = hmode, int(hsleep), int(fchk), int(fwin0), int(fk0)
        self.hall, self.tlb, self.cpt = hall, tlb, cpt
        self.hpub, self.fpub, self.nth, self.nlate, self.hgu = hpub, fpub, int(nth), int(nlate), int(hgu)
        self.nv1, self.hwin, self.idledma = int(nv1), int(hwin), idledma and self.nww < 8
        self.nwaves = max(self.nwn, 9) + 1
        self.nh = (4 if self.nwn == 8 and micro else 5) if self.nwn <= 10 else 6
        self.lds = int(lds) if lds else LDS_BYTES
        self.nvg = int(nvg)

    def stamp(self, i):
        key = self.sec + str(i)
        if self.probe == key:
            self.a("s_memrealtime s[84:85]")
        if self.diag and key in self.stamps:
            r = self.slot(i)
            self.a(f"s_memrealtime s[{r}:{r + 1}]")

    def slot(self, i):
        if i not in self.slots:
            self.slots[i] = ST0 + 4 + 2 * len(self.slots)
            assert self.slots[i] <= 94, "at most six stamp slots"
        return self.slots[i]

    def count(self, i):
        if self.diag and self.stamps is not None and ("n" + self.sec + str(i)) in self.stamps:
            self.a(f"s_add_u32 s{self.slot(i)}, {sSPIN}, 1")

    def end(self):
        self.a("s_branch L_exit" if self.diag else "s_endpgm")

    def bf16r(self, d, x):
        self.a(f"v_cvt_pk_bf16_f32 {vr(d)}, 0, {vr(x)}")

    def unpack(self, d, s, n):
        for i in range(n):
            self.a(f"v_lshlrev_b32 {vr(d + 2 * i)}, 16, {vr(s + i)}\nv_and_b32 {vr(d + 2 * i + 1)}, {sHI}, {vr(s + i)}")

    def dppred(self, op, regs, mods):
        for mod in mods:
            for r in regs:
                self.a(f"{op}_dpp {vr(r)}, {vr(r)}, {vr(r)} {mod} {FULL}")

    def redrows(self, op, regs, tmp):
        a = self.a
        for sw in ("v_permlane16_swap_b32", "v_permlane32_swap_b32"):
            for i, r in enumerate(regs):
                a(f"v_mov_b32 {vr(tmp + i)}, {vr(r)}")
            for i, r in enumerate(regs):
                a(f"{sw} {vr(r)}, {vr(tmp + i)}")
            for i, r in enumerate(regs):
                a(f"{op} {vr(r)}, {vr(r)}, {vr(tmp + i)}")

    def red8x(self, op, regs, tmp):
        self.dppred(op, regs, ("quad_perm:[1,0,3,2]", "quad_perm:[2,3,0,1]", "row_half_mirror"))
        self.redrows(op, regs, tmp)

    def selectors(self, sel, t0, nm, bits=2):
        a = self.a
        a(f"v_and_b32 {vr(t0)}, 1, v1")
        a(f"v_cmp_eq_u32 vcc, 1, {vr(t0)}")
        a(f"v_mov_b32 {vr(t0 + 1)}, 0x0c0c0100\nv_mov_b32 {vr(t0 + 2)}, 0x01000c0c")
        a(f"v_cndmask_b32 {vr(t0 + 1)}, {vr(t0 + 1)}, {vr(t0 + 2)}, vcc")
        a(f"v_mov_b32 {vr(t0 + 2)}, 0x0c0c0302\nv_mov_b32 {vr(t0 + 3)}, 0x03020c0c")
        a(f"v_cndmask_b32 {vr(t0 + 2)}, {vr(t0 + 2)}, {vr(t0 + 3)}, vcc")
        a(f"v_bfe_u32 {vr(t0)}, v1, 1, {bits}")
        a(f"v_mov_b32 {vr(t0 + 3)}, 0x0c0c0c0c")
        for m in range(nm):
            a(f"v_cmp_eq_u32 vcc, {m}, {vr(t0)}")
            a(f"v_cndmask_b32 {vr(sel + 2 * m)}, {vr(t0 + 3)}, {vr(t0 + 1)}, vcc")
            a(f"v_cndmask_b32 {vr(sel + 2 * m + 1)}, {vr(t0 + 3)}, {vr(t0 + 2)}, vcc")

    def tag_consts(self):
        a = self.a
        a(f"s_add_u32 {sT}, {sT}, {TAGC}")
        a(f"s_lshr_b32 {sT1}, {sT}, 8\ns_lshr_b32 {sT2}, {sT}, 16\ns_lshr_b32 {sT3}, {sT}, 24")
        a(f"s_mov_b32 {sSELA}, 0x0c0c0400\ns_mov_b32 {sSELB}, 0x04000c0c")

    def tag4(self, d, mask):
        for i, s in enumerate((sT, sT1, sT2, sT3)):
            self.a(f"v_bfi_b32 {vr(d + i)}, {vr(mask)}, {vr(d + i)}, {s}")

    def chk(self, t, gs):
        a = self.a
        for n, g in enumerate(gs):
            a(f"v_perm_b32 {vr(t + 2 * n)}, {vr(g + 1)}, {vr(g)}, {sSELA}")
            a(f"v_perm_b32 {vr(t + 2 * n + 1)}, {vr(g + 3)}, {vr(g + 2)}, {sSELB}")
        for n, g in enumerate(gs):
            a(f"v_bitop3_b32 {vr(t + 2 * n)}, {vr(t + 2 * n)}, {vr(t + 2 * n + 1)}, {sT} bitop3:0x56")
        rest = [t + 2 * n for n in range(1, len(gs))]
        while rest:
            if len(rest) >= 2:
                a(f"v_or3_b32 {vr(t)}, {vr(t)}, {vr(rest[0])}, {vr(rest[1])}")
                rest = rest[2:]
            else:
                a(f"v_or_b32 {vr(t)}, {vr(t)}, {vr(rest[0])}")
                rest = []
        a(f"v_cmp_ne_u32 vcc, 0, {vr(t)}")

    def poll(self, loads, check, between=None, first=True):
        a = self.a
        self.uid += 1
        L = self.cur_poll = f"L_poll{self.uid}"
        a(f"s_mov_b32 {sSPIN}, 0")
        if between:
            if first:
                loads()
            between()
            a(f"s_branch {L}w")
        a(f"{L}:")
        loads()
        a(f"s_add_u32 {sSPIN}, {sSPIN}, 1\ns_cmp_gt_u32 {sSPIN}, {SPIN}\ns_cbranch_scc1 L_bail")
        a(f"{L}w:\ns_waitcnt vmcnt(0)\n{L}c:")
        check()
        a(f"s_cbranch_vccnz {L}")

    def spoll(self, loads, check, keep=0):
        a = self.a
        self.uid += 1
        L = f"L_sp{self.uid}"
        a(f"s_mov_b32 {sSPIN}, 0\n{L}:")
        loads()
        a(f"s_add_u32 {sSPIN}, {sSPIN}, 1\ns_cmp_gt_u32 {sSPIN}, {SPIN}\ns_cbranch_scc1 L_bail\ns_waitcnt lgkmcnt({keep})")
        check()
        a(f"s_cbranch_scc1 {L}")

    def lds_wait(self, word, val, va, vt, tight=False):
        a = self.a
        self.uid += 1
        L = f"L_lw{self.uid}"
        a(f"v_mov_b32 {vr(va)}, {word}\ns_mov_b32 {sSPIN}, 0\n{L}:")
        a(f"ds_read_b32 {vr(vt)}, {vr(va)}\ns_add_u32 {sSPIN}, {sSPIN}, 1\ns_cmp_gt_u32 {sSPIN}, {SPIN * 8}\ns_cbranch_scc1 L_bail")
        a(f"s_waitcnt lgkmcnt(0)\nv_readfirstlane_b32 {sA}, {vr(vt)}\ns_cmp_ge_u32 {sA}, {val}\n" + (f"s_cbranch_scc0 {L}" if tight and self.tight else f"s_cbranch_scc1 {L}d\ns_sleep 1\ns_branch {L}\n{L}d:"))

    def lds_inc(self, word, va, vt):
        self.a(f"v_mov_b32 {vr(va)}, {word}\nv_mov_b32 {vr(vt)}, 1\ns_mov_b64 exec, 1\nds_add_u32 {vr(va)}, {vr(vt)}\ns_mov_b64 exec, -1")

    def tr_reduce4(self, v, rots):
        a = self.a
        a(f"v_permlane32_swap_b32 {vr(v)}, {vr(v + 1)}")
        a(f"v_permlane32_swap_b32 {vr(v + 2)}, {vr(v + 3)}")
        a(f"v_add_f32 {vr(v)}, {vr(v)}, {vr(v + 1)}")
        a(f"v_add_f32 {vr(v + 2)}, {vr(v + 2)}, {vr(v + 3)}")
        a(f"v_permlane16_swap_b32 {vr(v)}, {vr(v + 2)}")
        a(f"v_add_f32 {vr(v)}, {vr(v)}, {vr(v + 2)}")
        self.dppred("v_add_f32", [v], [f"row_ror:{r}" for r in rots])

    def ln_finish(self, t, mean, var):
        a = self.a
        self.bf16r(var, var)
        self.bf16r(t, mean)
        a(f"v_add_f32 {vr(var)}, 0x3727c5ac, {vr(var)}")
        self.bf16r(var, var)
        a(f"v_sqrt_f32 {vr(var)}, {vr(var)}")
        self.bf16r(t + 2, var)
        a(f"v_rcp_f32 {vr(t + 4)}, {vr(t + 2)}")

    def ln_apply2(self, F, t, P, tmp):
        a = self.a
        a(f"v_pk_add_f32 {vr(F, 2)}, {vr(F, 2)}, {vr(t, 2)} op_sel_hi:[1,0] neg_lo:[0,1] neg_hi:[0,1]")
        self.bf16r(F, F)
        self.bf16r(F + 1, F + 1)
        a(f"v_pk_mul_f32 {vr(tmp, 2)}, {vr(F, 2)}, {vr(t + 4, 2)} op_sel_hi:[1,0]")
        a(f"v_pk_fma_f32 {vr(F, 2)}, {vr(tmp, 2)}, {vr(t + 2, 2)}, {vr(F, 2)} op_sel_hi:[1,0,1] neg_lo:[1,0,0] neg_hi:[1,0,0]")
        a(f"v_pk_fma_f32 {vr(F, 2)}, {vr(F, 2)}, {vr(t + 4, 2)}, {vr(tmp, 2)} op_sel_hi:[1,0,1]")
        a(f"v_cvt_pk_bf16_f32 {vr(P)}, {vr(F)}, {vr(F + 1)}")

    def gemv16(self, D, X, SEL, B, A, steps):
        a = self.a
        for t in range(steps):
            for m in range(2):
                a(f"v_perm_b32 {vr(A + 2 * t + m)}, {vr(X + t // 2)}, {vr(X + t // 2)}, {vr(SEL + 2 * m + (t & 1))}")
            if t >= 1:
                u = t - 1
                a(f"v_mfma_f32_16x16x16_bf16 {vr(D, 4)}, {vr(A + 2 * u, 2)}, {vr(B + 2 * u, 2)}, {vr(D, 4) if u else 0}")
        u = steps - 1
        a(f"v_mfma_f32_16x16x16_bf16 {vr(D, 4)}, {vr(A + 2 * u, 2)}, {vr(B + 2 * u, 2)}, {vr(D, 4)}")

    def role(self, lw, lh, lf, ln):
        a = self.a
        a(f"s_and_b32 {sA}, {sH}, 3\ns_lshl_b32 {sF}, {sA}, 2\ns_lshr_b32 {sA}, {sJ}, 2\ns_lshl_b32 {sA}, {sA}, 1\ns_add_u32 {sF}, {sF}, {sA}")
        a(f"s_and_b32 {sA}, {sJ}, 1\ns_add_u32 {sF}, {sF}, {sA}")
        a(f"s_bitcmp0_b32 {sJ}, 1\ns_cbranch_scc1 {lw}")
        a(f"s_cmp_lt_u32 {sF}, 8\ns_cbranch_scc1 {lh}")
        a(f"s_sub_u32 {sA}, {sF}, 8")
        a(f"s_min_u32 {sB}, {sXCD}, 3\ns_mul_i32 {sF}, {sXCD}, 5\ns_add_u32 {sF}, {sF}, {sB}\ns_add_u32 {sF}, {sF}, {sA}")
        a(f"s_cmp_lt_u32 {sXCD}, 3\ns_cselect_b32 {sB}, 6, 5\ns_cmp_lt_u32 {sA}, {sB}\ns_cbranch_scc1 {lf}")
        a(f"s_branch {ln}")

    def build(self):
        a = self.a
        a(f"{KN}:")
        if self.diag or self.pad:
            a(f"s_memrealtime s[{ST0}:{ST0 + 1}]")
        a("s_load_dwordx16 s[4:19], s[0:1], 0\ns_load_dwordx8 s[20:27], s[0:1], 64")
        a("s_cmp_ge_u32 s2, 256\ns_cbranch_scc1 L_bail")
        if self.diag:
            for i in range(2, 8):
                a(f"s_mov_b32 s{ST0 + 2 * i}, 0")
        a(f"v_readfirstlane_b32 {sW}, v0\nv_and_b32 v1, 63, v0")
        a(f"s_and_b32 {sXCD}, s2, 7\ns_lshr_b32 {sJ}, s2, 3\ns_lshr_b32 {sH}, s2, 6\ns_lshl_b32 {sA}, {sXCD}, 2\ns_add_u32 {sH}, {sH}, {sA}")
        a(f"s_and_b32 {sJ}, {sJ}, 7\ns_lshr_b32 {sW}, {sW}, 6\ns_mov_b32 {sHI}, 0xffff0000")
        a(f"s_bitcmp0_b32 {sJ}, 1\ns_cselect_b32 {sNACT}, {self.nww}, {self.nwn}")
        self.sw = sW if not self.diag else "s97"
        if self.layout == "sc":
            a(f"s_cmp_eq_u32 {sW}, 0\ns_cbranch_scc1 L_comm")
            parts = (("s", self.stream_early), ("s", self.idle_early), ("c", self.comm_early), ("c", self.comm), ("s", self.stream))
        elif self.layout == "cs":
            a(f"s_cmp_lg_u32 {sW}, 0\ns_cbranch_scc1 L_stream")
            parts = (("c", self.comm_early), ("s", self.stream_early), ("s", self.idle_early), ("c", self.comm), ("s", self.stream))
        else:
            a(f"s_cmp_lg_u32 {sW}, 0\ns_cbranch_scc1 L_stream")
            parts = (("c", self.comm_early), ("c", self.comm), ("s", self.stream_early), ("s", self.stream), ("s", self.idle_early))
        for self.sec, part in parts + (("w", self.role_wo), ("f", self.role_ffn)):
            part()
        a("L_none:")
        self.end()
        if self.diag:
            a("L_exit:")
            a("s_mov_b64 exec, -1\ns_waitcnt vmcnt(0) lgkmcnt(0)")
            a(f"s_memrealtime s[{ST0 + 2}:{ST0 + 3}]\ns_waitcnt lgkmcnt(0)")
            a(f"s_mul_i32 {sA}, s2, 12\ns_add_u32 {sA}, {sA}, {sW}\ns_lshl_b32 {sA}, {sA}, 6\ns_add_u32 {sA}, {sA}, {WS_ST}")
            for i in range(16):
                src = {0: f"s{ST0}", 15: f"s{ST0 + 2}"}.get(i, f"s{self.slots[i]}" if i in self.slots else "0")
                a(f"v_mov_b32 v{4 + i}, {src}")
            a(f"v_mov_b32 v2, {sA}\ns_mov_b64 exec, 1")
            for i in range(4):
                a(f"global_store_dwordx4 v2, v[{4 + 4 * i}:{7 + 4 * i}], {sWS} offset:{16 * i}")
        a("L_bail:\ns_endpgm")
        a("L_codeend:")
        self.nops = a.fix_hazards()
        txt = HEADER
        txt += f"; @launch grid=(256,1,1) block=({64 * self.nwaves},1,1) lds={self.lds}\n"
        txt += f'.amdgcn_target "amdgcn-amd-amdhsa--gfx950"\n.text\n.globl {KN}\n.p2align 8\n.type {KN},@function\n'
        txt += a.text() + "\n"
        if self.prefetch:
            txt += ".fill 256, 4, 0xbf810000\n"
        txt += f""".section .rodata,"a"
.p2align 6
.amdhsa_kernel {KN}
  .amdhsa_next_free_vgpr {self.nvg}
  .amdhsa_next_free_sgpr 102
  .amdhsa_accum_offset {self.nvg}
  .amdhsa_group_segment_fixed_size 0
  .amdhsa_kernarg_size 96
  .amdhsa_user_sgpr_count 2
  .amdhsa_user_sgpr_kernarg_segment_ptr 1
  .amdhsa_system_sgpr_workgroup_id_x 1
.end_amdhsa_kernel
"""
        return txt

    def comm_early(self):
        a = self.a
        wnt = self.wnt
        G, BB = 2, 3
        XS, XO, W = 8, 16, 24
        a("L_comm:\ns_setprio 3")
        a(f"v_lshrrev_b32 v{G}, 4, v1\nv_bfe_u32 v{BB}, v1, 3, 1")
        a(f"v_and_b32 v5, 7, v1\nv_lshl_add_u32 v4, v{G}, 3, v5\nv_lshlrev_b32 v4, 5, v4\nv_lshl_add_u32 v4, v{BB}, 10, v4")
        a(f"s_lshl_b32 {sA}, {sJ}, 7\nv_lshl_add_u32 v5, v5, 2, {sA}\nv_lshl_add_u32 v5, v{G}, 5, v5\nv_lshl_add_u32 v5, v{BB}, 10, v5")
        a(f"s_lshl_b32 {sA}, {sJ}, 19\ns_lshl_b32 {sB}, {sH}, 8\ns_add_u32 {sA}, {sA}, {sB}\ns_movk_i32 {sB}, 0x2000")
        a(f"v_and_b32 v6, 15, v1\nv_lshl_add_u32 v6, v6, 4, {sA}\nv_lshl_add_u32 v6, v{G}, 17, v6")
        a("s_waitcnt lgkmcnt(0)")
        self.stamp(1)
        a(f"global_load_dwordx4 {vr(XS, 4)}, v4, {sX}\nglobal_load_dwordx4 {vr(XS + 4, 4)}, v4, {sX} offset:16")
        a(f"global_load_dword {vr(XO)}, v5, {sX}")
        for t in range(16):
            a(f"global_load_dwordx4 {vr(W + 4 * t, 4)}, v6, {sWQ} {wnt}")
            if t < 15:
                a(f"v_add_u32 v6, {sB}, v6")
        if self.b0:
            a("s_barrier")
        if self.layout == "cs":
            a("s_branch L_comm2")

    def comm(self):
        a = self.a
        wnt = self.wnt
        XS, XO, W, F, SEL, ST, X, A, D, MK = 8, 16, 24, 88, 112, 120, 16, 88, 96, 100
        a(f"L_comm2:\ns_load_dword {sT}, {sWS}, 0")
        a(f"v_mov_b32 v6, {L_CNT}\nv_mov_b32 v104, 0\nv_mov_b32 v105, 0\nv_mov_b32 v106, 0\nv_mov_b32 v107, 0")
        a("ds_write_b128 v6, v[104:107]\nds_write_b128 v6, v[104:107] offset:16")
        a("v_lshlrev_b32 v6, 4, v1")
        if self.fold:
            a("v_mov_b32 v108, 0x3f803f80\nv_mov_b32 v109, 0x3f803f80\nv_mov_b32 v110, 0x3f803f80\nv_mov_b32 v111, 0x3f803f80")
            a(f"ds_write_b128 v6, v[108:111] offset:{L_ONE}")
        for o in range(self.nww // 2, self.nh):
            a(f"ds_write_b128 v6, v[104:107] offset:{L_OP + 1024 * o}")
        a(f"v_min_u32 v6, 23, v1\nv_cmp_gt_u32 vcc, 12, v6\nv_lshlrev_b32 v6, 2, v6\nv_mov_b32 v105, 0xff800000\nv_cndmask_b32 v105, v104, v105, vcc\nds_write_b32 v6, v105 offset:{L_MAX}")
        self.selectors(SEL, 108, 4)
        a("s_waitcnt vmcnt(17)")
        self.unpack(F, XS, 8)
        self.stamp(2)
        S = 7
        a(f"v_pk_add_f32 v[104:105], {vr(F, 2)}, {vr(F + 2, 2)}\nv_pk_add_f32 v[106:107], {vr(F + 4, 2)}, {vr(F + 6, 2)}")
        for i in range(2):
            a(f"v_pk_add_f32 v[104:105], v[104:105], {vr(F + 8 + 4 * i, 2)}\nv_pk_add_f32 v[106:107], v[106:107], {vr(F + 10 + 4 * i, 2)}")
        a(f"v_pk_add_f32 v[104:105], v[104:105], v[106:107]\nv_add_f32 {vr(S)}, v104, v105")
        self.red8x("v_add_f32", [S], 104)
        a(f"v_mul_f32 {vr(S)}, 0x3b000000, {vr(S)}")
        for i in range(16):
            a(f"v_sub_f32 {vr(F + i)}, {vr(F + i)}, {vr(S)}")
        a(f"v_pk_mul_f32 v[104:105], {vr(F, 2)}, {vr(F, 2)}\nv_pk_mul_f32 v[106:107], {vr(F + 2, 2)}, {vr(F + 2, 2)}")
        for i in range(1, 4):
            a(f"v_pk_fma_f32 v[104:105], {vr(F + 4 * i, 2)}, {vr(F + 4 * i, 2)}, v[104:105]")
            a(f"v_pk_fma_f32 v[106:107], {vr(F + 4 * i + 2, 2)}, {vr(F + 4 * i + 2, 2)}, v[106:107]")
        a("v_pk_add_f32 v[104:105], v[104:105], v[106:107]\nv_add_f32 v108, v104, v105")
        self.red8x("v_add_f32", [108], 104)
        a("v_mul_f32 v108, 0x3b000000, v108")
        self.ln_finish(ST, S, 108)
        a("s_waitcnt vmcnt(16)")
        self.unpack(F, XO, 1)
        self.ln_apply2(F, ST, 8, 10)
        a("s_waitcnt lgkmcnt(0)")
        self.tag_consts()
        for u in range(8):
            a(f"v_mov_b32_dpp {vr(X + u)}, v8 row_newbcast:{u} row_mask:0xf bank_mask:0x3")
        for u in range(8):
            a(f"v_mov_b32_dpp {vr(X + u)}, v8 row_newbcast:{8 + u} row_mask:0xf bank_mask:0xc")
        a(f"v_mov_b32 v{MK}, 0xffffff00")

        def abuild(t):
            for m in range(4):
                a(f"v_perm_b32 {vr(A + 4 * (t & 1) + m)}, {vr(X + t // 2)}, {vr(X + t // 2)}, {vr(SEL + 2 * m + (t & 1))}")
        abuild(0)
        for t in range(16):
            if t < 15:
                abuild(t + 1)
            a(f"s_waitcnt vmcnt({15 - t})")
            a(f"v_mfma_f32_16x16x32_bf16 {vr(D, 4)}, {vr(A + 4 * (t & 1), 4)}, {vr(W + 4 * t, 4)}, {vr(D, 4) if t else 0}")
        a(f"s_lshl_b32 {sA}, {sH}, 13\ns_lshl_b32 {sB}, {sJ}, 9\ns_add_u32 {sA}, {sA}, {sB}\ns_add_u32 {sA}, {sA}, {WS_QP}")
        a(f"v_and_b32 v4, 15, v1\nv_lshl_add_u32 v4, v4, 5, {sA}\nv_bfe_u32 v5, v1, 4, 1\nv_lshl_add_u32 v4, v5, 4, v4")
        a("v_lshrrev_b32 v5, 5, v1\nv_lshl_add_u32 v4, v5, 12, v4")
        a(f"s_getreg_b32 {sC}, hwreg(HW_REG_XCC_ID, 0, 4)\ns_and_b32 {sD}, {sT}, 0xffffff00\ns_or_b32 {sC}, {sC}, {sD}")
        a(f"s_lshl_b32 {sA}, {sXCD}, 7\ns_add_u32 {sA}, {sA}, {WS_XT}\ns_lshr_b32 {sB}, s2, 3\ns_lshl_b32 {sB}, {sB}, 2\ns_add_u32 {sB}, {sB}, {sA}")
        a(f"v_mov_b32 v6, {sB}\nv_mov_b32 v7, {sC}")
        for i in range(4):
            a(f"v_add_u32 {vr(D + i)}, 0x80, {vr(D + i)}")
        self.tag4(D, MK)
        a(f"global_store_dwordx4 v4, {vr(D, 4)}, {sWS} sc1")
        a(f"s_mov_b64 exec, 1\nglobal_store_dword v6, v7, {sWS} sc1\ns_mov_b64 exec, -1")
        self.stamp(3)
        if self.probe in ("smax", "smin", "smed"):
            a(f"s_lshl_b32 {sB}, s2, 2\ns_add_u32 {sB}, {sB}, {WS_ST}\nv_mov_b32 v6, {sB}\nv_mov_b32 v7, s80\nglobal_store_dword v6, v7, {sWS} sc1")
        a(f"v_and_b32 v5, 31, v1\nv_lshl_add_u32 v5, v5, 2, {sA}")
        a(f"s_lshl_b32 {sA}, {sH}, 13\ns_lshr_b32 {sB}, {sJ}, 2\ns_lshl_b32 {sB}, {sB}, 12\ns_add_u32 {sA}, {sA}, {sB}\ns_add_u32 {sA}, {sA}, {WS_QP}")
        a(f"v_lshl_add_u32 v4, v1, 4, {sA}")
        a("s_barrier\ns_barrier")
        self.stamp(4)
        Gq, TT = 8, 24

        def loads():
            for n in range(4):
                a(f"global_load_dwordx4 {vr(Gq + 4 * n, 4)}, v4, {sWS} offset:{1024 * n} sc1")
            a(f"global_load_dword v32, v5, {sWS} sc1")

        def between():
            if self.tlb:
                a(f"v_and_b32 v35, 1, v1\nv_mul_u32_u24 v36, {512 * 2752 - 4}, v35\ns_lshl_b32 {sA}, {sXCD}, 19\nv_mul_u32_u24 v37, {(1 << 19) - 4}, v35\nv_add_u32 v37, {sA}, v37")
                a(f"v_lshlrev_b32 v35, 2, v35\ns_mov_b64 exec, 3")
                a(f"global_load_dword v38, v36, {sWG}\nglobal_load_dword v39, v36, {sWU}\nglobal_load_dword v40, v36, {sWD}")
                a(f"global_load_dword v41, v37, {sWO}\nglobal_load_dword v42, v35, {sOUT}\ns_mov_b64 exec, -1")
            if self.optouch:
                a(f"s_lshl_b32 {sA}, {sH}, 12\ns_lshl_b32 {sB}, {sJ}, 9\ns_add_u32 {sA}, {sA}, {sB}\ns_add_u32 {sA}, {sA}, {WS_OP}")
                a(f"v_and_b32 v33, 7, v1\nv_lshl_add_u32 v33, v33, 6, {sA}\nglobal_load_dword v34, v33, {sWS} sc1")
            a("s_barrier")
        self.poll(loads, lambda: self.chk(TT, [Gq + 4 * n for n in range(4)]), between=between)
        self.stamp(5)
        self.count(11)
        a(f"v_cmp_ne_u32 vcc, {sC}, v32")
        for i in range(16):
            a(f"v_and_b32 {vr(Gq + i)}, {vr(MK)}, {vr(Gq + i)}")
        a(f"s_cmp_eq_u64 vcc, 0\ns_cselect_b32 {sA}, {3 if self.local else 1}, 1")
        if self.diag and "loc" in self.stamps:
            a(f"s_mov_b32 s{self.slot(13)}, {sA}")
        if "mixloc" in self.exp:
            a(f"s_bitcmp1_b32 {sJ}, 0\ns_cselect_b32 {sA}, 1, {sA}")
        for i in range(4):
            a(f"v_add_f32 {vr(Gq + i)}, {vr(Gq + i)}, {vr(Gq + 4 + i)}\nv_add_f32 {vr(Gq + 8 + i)}, {vr(Gq + 8 + i)}, {vr(Gq + 12 + i)}")
        for i in range(4):
            a(f"v_add_f32 {vr(Gq + i)}, {vr(Gq + i)}, {vr(Gq + 8 + i)}")
        a(f"v_permlane32_swap_b32 {vr(Gq)}, {vr(Gq + 2)}\nv_permlane32_swap_b32 {vr(Gq + 1)}, {vr(Gq + 3)}")
        a(f"v_add_f32 {vr(Gq)}, {vr(Gq)}, {vr(Gq + 2)}\nv_add_f32 {vr(Gq + 1)}, {vr(Gq + 1)}, {vr(Gq + 3)}")
        a(f"v_cvt_pk_bf16_f32 {vr(Gq)}, {vr(Gq)}, {vr(Gq + 1)}")
        a("v_and_b32 v4, 31, v1\nv_lshlrev_b32 v4, 3, v4\nv_lshrrev_b32 v5, 5, v1\nv_lshl_add_u32 v4, v5, 2, v4")
        a(f"v_mov_b32 v6, {L_QF}\nv_mov_b32 v7, {sA}\ns_mov_b32 {sLOC}, {sA}")
        a(f"ds_write_b32 v4, {vr(Gq)} offset:{L_Q}\nds_write_b32 v6, v7")
        a("s_setprio 0")
        self.stamp(6)
        self.role("L_none" if self.idledma else "L_cwo", "L_chelp", "L_cffn", "L_cmon")

        def dma_loop(name, base, n0, n1, mstep, two=None, win=None):
            a(f"s_mov_b32 {sC}, {n0}\n{name}:")
            if win is not None:
                a(f"s_waitcnt vmcnt({win})")
            a(f"s_mov_b32 m0, {sD}\ns_add_u32 {sC}, {sC}, 1")
            a(f"global_load_lds_dwordx4 v4, {base} {wnt}")
            if two:
                a(f"s_add_u32 m0, {sD}, {L_U - L_G}\ns_add_u32 {sD}, {sD}, {mstep}")
                a(f"global_load_lds_dwordx4 v4, {two} {wnt}")
            else:
                a(f"s_add_u32 {sD}, {sD}, {mstep}")
            a(f"v_add_u32 v4, {sB}, v4\ns_cmp_lt_u32 {sC}, {n1}\ns_cbranch_scc1 {name}")

        a("L_cwo:")
        if "y" in self.prew:
            a(f"s_lshl_b32 {sA}, {sXCD}, 11\ns_lshl_b32 {sB}, {sF}, 7\ns_add_u32 {sA}, {sA}, {sB}\ns_add_u32 {sA}, {sA}, {WS_YP}\ns_not_b32 {sB}, {sT}")
            a(f"v_and_b32 v4, 7, v1\nv_lshl_add_u32 v4, v4, 4, {sA}\nv_bfe_u32 v5, v1, 3, 1\nv_lshl_add_u32 v4, v5, 14, v4")
            a(f"v_mov_b32 v44, {sB}\nv_mov_b32 v45, {sB}\nv_mov_b32 v46, {sB}\nv_mov_b32 v47, {sB}")
            a(f"s_mov_b64 exec, 0xffff\nglobal_store_dwordx4 v4, v[44:47], {sWS} sc1\ns_mov_b64 exec, -1")
        a(f"s_lshl_b32 {sA}, {sXCD}, 19\ns_lshl_b32 {sB}, {sF}, 6\ns_add_u32 {sB}, {sA}, {sB}")
        a(f"v_lshrrev_b32 v4, 2, v1\nv_lshlrev_b32 v4, 10, v4\nv_and_b32 v5, 3, v1\nv_lshl_add_u32 v4, v5, 4, v4\nv_add_u32 v8, {sB}, v4")
        if self.wopair:
            a(f"s_and_b32 {sD}, {sF}, 1\ns_lshl_b32 {sB}, {sD}, 18\nv_add_u32 v8, {sB}, v8\ns_lshl_b32 {sB}, {sD}, 19\ns_sub_u32 {sB}, 0x40000, {sB}\nv_add_u32 v24, {sB}, v8")
            a(f"s_mul_i32 {sD}, {sD}, {16 * GUP}\ns_sub_u32 {sC}, {L_W + 16 * GUP}, {sD}\ns_add_u32 {sD}, {sD}, {L_W}")
            for n in range(1, 16):
                a(f"v_add_u32 v{8 + n}, {n * 0x4000}, v8\nv_add_u32 v{24 + n}, {n * 0x4000}, v24")
        else:
            for n in range(1, 32):
                a(f"v_add_u32 v{8 + n}, {n * 0x4000}, v8")
        a(f"s_lshl_b32 {sB}, {sF}, 14\ns_add_u32 {sA}, {sA}, {sB}\ns_add_u32 {sA}, {sA}, 4096\nv_lshl_add_u32 v4, v1, 6, {sA}\nv_add_u32 v5, 0x2000, v4")
        self.lds_wait(L_VCNT, sNACT, 6, 7)
        self.stamp(12)
        if "nowo" in self.exp:
            pass
        elif self.wopair:
            for k in range(32):
                a(f"s_add_u32 m0, {sD if k < 16 else sC}, {(k & 15) * GUP}")
                a(f"s_waitcnt vmcnt({self.wwin})" if k >= self.wk0 else "s_nop 0")
                a(f"global_load_lds_dwordx4 v{8 + k}, {sWO} {self.wont}")
        elif self.clean:
            a(f"s_lshl_b32 {sA}, {sXCD}, 19\ns_lshl_b32 {sB}, {sF}, 14\ns_add_u32 {sA}, {sA}, {sB}\nv_lshl_add_u32 v4, v1, 7, {sA}\nv_add_u32 v5, 0x2000, v4")
            a(f"global_load_dword v40, v4, {sWO}\nglobal_load_dword v41, v5, {sWO}")
            for k, n in enumerate(list(range(16, 32)) + list(range(16))):
                if k == self.wpre:
                    self.lds_wait(L_PUB, 1, 6, 7, tight=True)
                a(f"s_mov_b32 m0, {L_W + n * GUP}\ns_nop 0\nglobal_load_lds_dwordx4 v{8 + n}, {sWO} {self.wont}")
        else:
            for i in range(4 if self.wotouch else 0):
                a(f"global_load_dword v{40 + i}, v{4 + i // 2}, {sWO} offset:{-4096 if i % 2 == 0 else 0}")
            for k, n in enumerate(list(range(16, 32)) + list(range(16))):
                a(f"s_mov_b32 m0, {L_W + n * GUP}")
                a(f"s_waitcnt vmcnt({self.wwin})" if k >= 8 and self.wotouch else "s_nop 0")
                a(f"global_load_lds_dwordx4 v{8 + n}, {sWO} {self.wont}")
        self.stamp(13)
        a(f"v_mov_b32 v6, {L_DMA}\nv_mov_b32 v7, 1\ns_waitcnt vmcnt(0)\nds_write_b32 v6, v7")
        self.stamp(14)
        if self.dflag:
            a(f"s_lshl_b32 {sA}, {sXCD}, 7\ns_lshl_b32 {sB}, {sF}, 2\ns_add_u32 {sA}, {sA}, {sB}\ns_add_u32 {sA}, {sA}, {WS_DT}")
            a(f"v_mov_b32 v6, {sA}\nv_mov_b32 v7, {sT}\ns_mov_b64 exec, 1\ns_cmp_eq_u32 {sLOC}, 3\ns_cbranch_scc1 L_cwl")
            a(f"global_store_dword v6, v7, {sWS} sc1")
            self.end()
            a(f"L_cwl:\nglobal_store_dword v6, v7, {sWS}")
        if self.nth and "noffn" not in self.exp:
            ni = (512 - self.hrow0) // 128
            self.gu_touch_addr(self.hrow0, 8 * ni, ni)
            a(f"s_lshl_b32 {sA}, {sXCD}, 9\ns_add_u32 {sA}, {sA}, {WS_ML}\nv_and_b32 v4, 31, v1\nv_lshl_add_u32 v4, v4, 4, {sA}")

            def enough():
                self.chk(44, [40])
                a(f"s_bcnt0_i32_b32 {sA}, vcc_lo\ns_cmp_lt_u32 {sA}, {self.nth}\ns_cselect_b64 vcc, -1, 0")
            self.poll(lambda: a(f"global_load_dwordx4 v[40:43], v4, {sWS} sc1"), enough)
            a(f"s_cmp_gt_u32 {sA}, {self.nlate}\ns_cbranch_scc1 L_none")
            for i in range(ni):
                a(f"global_load_dword v{56 + 2 * i}, v{8 + i}, {sWG}\nglobal_load_dword v{57 + 2 * i}, v{8 + i}, {sWU}")
        self.end()

        a("L_chelp:")
        if self.helper:
            self.helper_code()
        self.end()

        a("L_cffn:")
        if "f" in self.prew:
            a(f"s_lshl_b32 {sA}, {sF}, 7\ns_add_u32 {sA}, {sA}, {WS_FP}\ns_not_b32 {sB}, {sT}")
            a(f"v_lshrrev_b32 v4, 3, v1\nv_mul_u32_u24 v4, {FP_STRIDE}, v4\nv_and_b32 v5, 7, v1\nv_lshl_add_u32 v4, v5, 4, v4\nv_add_u32 v4, {sA}, v4")
            a(f"v_mov_b32 v44, {sB}\nv_mov_b32 v45, {sB}\nv_mov_b32 v46, {sB}\nv_mov_b32 v47, {sB}")
            for i in range(4):
                a(f"global_store_dwordx4 v4, v[44:47], {sWS} sc1\nv_add_u32 v4, {8 * FP_STRIDE}, v4")
        a("v_lshrrev_b32 v4, 2, v1\nv_mul_u32_u24 v4, 2752, v4\nv_and_b32 v5, 3, v1\nv_lshl_add_u32 v4, v5, 4, v4")
        a(f"s_lshl_b32 {sA}, {sF}, 6\nv_add_u32 v8, {sA}, v4")
        a(f"s_and_b32 {sD}, {sF}, {1 if self.frot else 0}\ns_mul_i32 {sB}, {sD}, {256 * 2752}\nv_add_u32 v8, {sB}, v8\ns_lshl_b32 {sB}, {sB}, 1\ns_sub_u32 {sB}, {256 * 2752}, {sB}\nv_add_u32 v24, {sB}, v8")
        a(f"s_mul_i32 {sD}, {sD}, {16 * GUP}\ns_sub_u32 {sC}, {L_G + 16 * GUP}, {sD}\ns_add_u32 {sD}, {sD}, {L_G}")
        for n in range(1, 16):
            a(f"v_add_u32 v{8 + n}, {n * 16 * 2752}, v8\nv_add_u32 v{24 + n}, {n * 16 * 2752}, v24")
        a(f"s_lshl_b32 {sA}, {sF}, 15\ns_add_u32 {sA}, {sA}, 4096\nv_lshl_add_u32 v40, v1, 4, {sA}")
        for n in range(1, 4):
            a(f"v_add_u32 v{40 + n}, {n * 8192}, v40")
        a(f"v_mov_b32 v4, {L_HINT}\ns_mov_b32 {sRD}, 0")
        self.lds_wait(*((L_PUB, 1) if self.fpub else (L_VCNT, sNACT)), 6, 7)
        self.stamp(7)
        for k in range(0 if "noffn" in self.exp else 96):
            if k % self.fchk == 0 and k:
                a(f"s_waitcnt lgkmcnt(0)\nv_readfirstlane_b32 {sA}, v5\ns_add_u32 {sA}, {sA}, 1\ns_lshr_b32 {sA}, {sA}, 4\ns_andn2_b32 {sA}, {sA}, {sRD}\ns_cbranch_scc0 L_cf{k}\ns_mov_b32 {sRD}, 1")
                if self.barx:
                    a("s_barrier")
                self.lds_wait(L_YISS, 8, 6, 7)
                a(f"L_cf{k}:")
            if k % self.fchk == 0:
                a("ds_read_b32 v5, v4")
            win = self.fwin0 if k < self.fk0 and not self.clean else self.fwin
            if self.clean and k == self.fpre:
                self.lds_wait(L_PUB, 1, 6, 7)
            if k < 64:
                a(f"s_add_u32 m0, {sD if k < 32 else sC}, {(L_U - L_G if k & 1 else 0) + ((k >> 1) & 15) * GUP}")
                a(f"s_waitcnt vmcnt({win})" if k > win else "s_nop 0")
                a(f"global_load_lds_dwordx4 v{8 + (k >> 1)}, {sWU if k & 1 else sWG} {self.fnt}")
            else:
                n = k - 64
                off = (n & 7) * 1024 - 4096
                a(f"s_mov_b32 m0, {L_D + n * ROWP - off}\ns_waitcnt vmcnt({win})")
                a(f"global_load_lds_dwordx4 v{40 + (n >> 3)}, {sWD} offset:{off} {wnt}")
        self.stamp(8)
        a(f"s_cmp_lg_u32 {sRD}, 0\ns_cbranch_scc1 L_cf3")
        a(f"v_mov_b32 v6, {L_DMA}\nv_mov_b32 v7, 1\ns_waitcnt vmcnt(0)\nds_write_b32 v6, v7")
        self.stamp(11)
        if self.barx:
            a("s_waitcnt lgkmcnt(0)\ns_barrier")
        a("L_cf3:")
        a(("" if self.fold else "s_barrier\n") + "s_waitcnt vmcnt(32)\ns_barrier\ns_waitcnt vmcnt(0)")
        self.stamp(9)
        a("s_barrier")
        self.end()

        a("L_cmon:")
        if self.clean:
            a(f"s_cmp_lt_u32 {sA}, 6\ns_cbranch_scc1 L_none\ns_mov_b32 {sF}, {sA}")
            a(f"s_lshl_b32 {sB}, {sXCD}, 19\ns_lshl_b32 {sC}, {sF}, 15\ns_add_u32 {sB}, {sB}, {sC}\ns_add_u32 {sB}, {sB}, {0x70000 - 6 * 32768}")
            a(f"v_lshl_add_u32 v4, v1, 7, {sB}\ns_movk_i32 {sD}, 0x2000")
            self.lds_wait(L_VCNT, sNACT, 6, 7)
            for i in range(4):
                a(f"global_load_dword v{48 + i}, v4, {sWO}\nv_add_u32 v4, {sD}, v4")
            a(f"s_mov_b32 {sA}, {sF}")
        if self.hint:
            a(f"s_cmp_eq_u32 {sA}, 6\ns_cbranch_scc1 L_ctouch\ns_cmp_lg_u32 {sA}, 7\ns_cbranch_scc1 L_none")
            a(f"s_lshl_b32 {sA}, {sXCD}, 9\ns_add_u32 {sA}, {sA}, {WS_ML}\nv_and_b32 v4, 31, v1\nv_lshl_add_u32 v4, v4, 4, {sA}")
            a(f"s_lshl_b32 {sA}, {sXCD}, 2\ns_add_u32 {sA}, {sA}, {WS_HT}\nv_lshl_add_u32 v5, v1, 7, {sA}\nv_mov_b32 v6, {sT}")
            self.lds_wait(L_PUB, 1, 12, 13)
            if self.dflag:
                a(f"s_lshl_b32 {sA}, {sXCD}, 7\ns_add_u32 {sA}, {sA}, {WS_DT}\nv_and_b32 v7, 15, v1\nv_lshl_add_u32 v7, v7, 2, {sA}")

                def both():
                    self.chk(12, [8])
                    a(f"v_cmp_ne_u32 {sM0}, {sT}, v14\ns_or_b64 vcc, vcc, {sM0}")
                self.poll(lambda: a(f"global_load_dwordx4 v[8:11], v4, {sWS} sc1\nglobal_load_dword v14, v7, {sWS} sc1"), both)
            else:
                self.poll(lambda: a(f"global_load_dwordx4 v[8:11], v4, {sWS} sc1"), lambda: self.chk(12, [8]))
            for i in range(self.lag):
                a(f"global_load_dwordx4 v[8:11], v4, {sWS} sc1\ns_waitcnt vmcnt(0)")
            a(f"s_bfm_b64 exec, {56 if self.ytouch or not self.incr else (42 >> self.hsh) + 1}, 0\nglobal_store_dword v5, v6, {sWS} sc1")
            self.stamp(10)
            self.end()
            a("L_ctouch:")
            if self.incr and not self.ytouch:
                self.end()
            a(f"s_lshl_b32 {sA}, {sXCD}, 7\ns_add_u32 {sA}, {sA}, {WS_HT + 48 * 128}\nv_and_b32 v4, 7, v1\nv_lshl_add_u32 v4, v4, 2, {sA}")
            a(f"v_and_b32 v5, 31, v1\nv_lshlrev_b32 v5, 6, v5\nv_lshrrev_b32 v6, 5, v1\nv_lshl_add_u32 v5, v6, 14, v5\nv_add_u32 v5, {WS_YP}, v5")
            self.lds_wait(L_PUB, 1, 12, 13)
            a(f"s_mov_b32 {sC}, 0\ns_mov_b32 {sSPIN}, 0\nL_ct0:")
            a(f"global_load_dword v8, v4, {sWS} sc1\ns_add_u32 {sSPIN}, {sSPIN}, 1\ns_cmp_gt_u32 {sSPIN}, {SPIN}\ns_cbranch_scc1 L_bail")
            a(f"s_waitcnt vmcnt(0)\nv_cmp_eq_u32 vcc, {sT}, v8\ns_and_b32 {sA}, vcc_lo, 0xff\ns_andn2_b32 {sB}, {sA}, {sC}\ns_mov_b32 {sC}, {sA}")
            a(f"L_ct1:\ns_cmp_eq_u32 {sB}, 0\ns_cbranch_scc1 L_ct2")
            a(f"s_ff1_i32_b32 {sD}, {sB}\ns_bitset0_b32 {sB}, {sD}\ns_lshl_b32 {sD}, {sD}, 11\nv_add_u32 v6, {sD}, v5\nglobal_load_dword v9, v6, {sWS} sc1\ns_branch L_ct1")
            a(f"L_ct2:\ns_cmp_lg_u32 {sC}, 0xff\ns_cbranch_scc1 L_ct0")
        self.end()

    def gu_touch_addr(self, r0, rows, ni):
        a = self.a
        a(f"s_min_u32 {sB}, {sXCD}, 3\ns_mul_i32 {sC}, {sXCD}, 5\ns_add_u32 {sC}, {sC}, {sB}")
        a(f"s_mul_i32 {sB}, {sF}, {rows}\ns_add_u32 {sB}, {sB}, {r0}\ns_mul_i32 {sB}, {sB}, 2752\ns_lshl_b32 {sA}, {sC}, 6\ns_add_u32 {sB}, {sB}, {sA}")
        a("v_lshrrev_b32 v8, 3, v1\nv_mul_u32_u24 v8, 2752, v8\nv_and_b32 v5, 7, v1\nv_min_u32 v5, 5, v5\nv_lshl_add_u32 v8, v5, 6, v8")
        a(f"v_add_u32 v8, {sB}, v8")
        for i in range(1, ni):
            a(f"v_add_u32 v{8 + i}, {i * 8 * 2752}, v8\nv_min_u32 v{8 + i}, {512 * 2752 - 4}, v{8 + i}")

    def helper_code(self):
        a = self.a
        ni = self.hr // 64
        a(f"s_min_u32 {sB}, {sXCD}, 3\ns_mul_i32 {sC}, {sXCD}, 5\ns_add_u32 {sC}, {sC}, {sB}")
        a(f"s_and_b32 {sA}, {sF}, 3\ns_mul_i32 {sB}, {sA}, {16 * ni}\ns_lshr_b32 {sA}, {sF}, 2\ns_lshl_b32 {sA}, {sA}, 8\ns_add_u32 {sB}, {sB}, {sA}")
        a(f"s_add_u32 {sB}, {sB}, {256 - self.hr}\ns_mul_i32 {sB}, {sB}, 2752\ns_lshl_b32 {sA}, {sC}, 6\ns_add_u32 {sB}, {sB}, {sA}")
        a("v_lshrrev_b32 v8, 2, v1\nv_mul_u32_u24 v8, 2752, v8\nv_and_b32 v5, 3, v1\nv_lshlrev_b32 v5, 7, v5\nv_min_u32 v5, 380, v5\nv_add_u32 v8, v5, v8")
        a(f"v_add_u32 v8, {sB}, v8")
        for i in range(ni - 1, -1, -1):
            a(f"v_add_u32 v{8 + i}, {i * 16 * 2752}, v8\nv_min_u32 v{8 + i}, {512 * 2752 - 4}, v{8 + i}")
        a(f"s_lshl_b32 {sC}, {sC}, 15\ns_mul_i32 {sA}, {sF}, {6 * 32768 // 8}\ns_add_u32 {sC}, {sC}, {sA}\nv_lshl_add_u32 v20, v1, 7, {sC}")
        for i in range(2, -1, -1):
            a(f"v_add_u32 v{20 + i}, {i * 8192}, v20\nv_min_u32 v{20 + i}, {1376 * 1024 - 4}, v{20 + i}")
        a(f"s_lshl_b32 {sB}, {sXCD}, 19\ns_mul_i32 {sC}, {sF}, {24576 if self.clean else 32768}\ns_add_u32 {sB}, {sB}, {sC}\ns_add_u32 {sB}, {sB}, 0x40000")
        a(f"v_lshl_add_u32 v4, v1, 7, {sB}\ns_movk_i32 {sD}, 0x2000")
        self.lds_wait(*((L_PUB, 1) if self.hpub else (L_VCNT, sNACT)), 6, 7)
        for i in range((3 if self.clean else 4) if self.wotouch else 0):
            a(f"global_load_dword v{48 + i}, v4, {sWO}\nv_add_u32 v4, {sD}, v4")
        if self.clean:
            self.lds_wait(L_PUB, 1, 6, 7)
        if "noffn" in self.exp:
            return
        w = f"s_waitcnt vmcnt({self.hwin})\n"
        for i in range(3 if self.hdown else 0):
            a(f"{w}global_load_dword v{40 + i}, v{20 + i}, {sWD}")
        for i in range(ni):
            a(f"{w}global_load_dword v{56 + 2 * i}, v{8 + i}, {sWG}\n{w}global_load_dword v{57 + 2 * i}, v{8 + i}, {sWU}")
        for i in range(0 if self.hdown else 3):
            a(f"{w}global_load_dword v{40 + i}, v{20 + i}, {sWD}")

    def stream_early(self):
        a = self.a
        nt = self.nt
        K, V = 4, 36
        a(f"L_stream:\ns_cmp_gt_u32 {sW}, {sNACT}\ns_cbranch_scc1 L_idle")
        a(f"s_lshr_b32 {sA}, {sJ}, 2\ns_lshl_b32 {sA}, {sA}, 25\ns_lshl_b32 {sB}, {sH}, 20\ns_add_u32 {sA}, {sA}, {sB}")
        a(f"s_and_b32 {sB}, {sJ}, 1\ns_mul_i32 {sB}, {sB}, {sNACT}\ns_add_u32 {sB}, {sB}, {sW}\ns_bitcmp1_b32 {sJ}, 1\ns_cselect_b32 {sC}, {2 * self.nww}, 0")
        a(f"s_add_u32 {sB}, {sB}, {sC}\ns_lshl_b32 {sB}, {sB}, 13\ns_add_u32 {sA}, {sA}, {sB}")
        a(f"s_add_u32 {sA}, {sA}, {0xC0000 + 4096 - 8192}\nv_lshl_add_u32 v2, v1, 4, {sA}")
        a("s_waitcnt lgkmcnt(0)")
        self.stamp(1)
        for t in range(8):
            if t == self.nkpre and self.b0:
                a("s_barrier")
            if t == self.nk0:
                a("s_barrier")
            if t == self.nk1:
                a("s_barrier\ns_barrier")
            a(f"global_load_dwordx4 {vr(K + 4 * t, 4)}, v2, {sK} offset:{1024 * t - 4096} {nt}")
        self.stamp(2)
        vload = lambda t: a(f"global_load_dwordx4 {vr(V + 4 * t, 4)}, v2, {sV} offset:{1024 * t - 4096} {nt}")
        if self.nv1:
            a(f"s_bitcmp0_b32 {sJ}, 1\ns_cbranch_scc1 L_vw\ns_barrier\ns_barrier")
            for t in range(self.nv1):
                vload(t)
            a("s_branch L_vr\nL_vw:")
            for t in range(self.nv1):
                vload(t)
            a("s_barrier\ns_barrier\nL_vr:")
        elif self.nk1 == 8:
            a("s_barrier\ns_barrier")
        for t in range(self.nv1, 8):
            vload(t)
        if self.layout in ("sc", "cs"):
            a("s_branch L_stream2")

    def idle_early(self):
        a = self.a
        a("L_idle:")
        if self.prefetch:
            a(f"s_cmp_lg_u32 {sW}, {self.nwaves - 1}\ns_cbranch_scc1 L_nopf")
            a(f"s_getpc_b64 {sP}\nL_pc:\ns_sub_u32 s52, s52, L_pc-{KN}\ns_subb_u32 s53, s53, 0")
            a(f"s_lshr_b32 {sA}, s2, 3\ns_min_u32 {sA}, {sA}, (L_codeend-{KN})/1024\ns_lshl_b32 {sA}, {sA}, 10")
            a(f"v_lshl_add_u32 v3, v1, 4, {sA}\nglobal_load_dwordx4 {vr(124, 4)}, v3, {sP}")
            a("L_nopf:")
        if self.b0:
            a("s_barrier")
        a(f"s_waitcnt lgkmcnt(0)\ns_load_dword {sT}, {sWS}, 0")
        if self.vtlb:
            a(f"s_lshr_b32 {sA}, {sJ}, 2\ns_lshl_b32 {sA}, {sA}, 25\ns_lshl_b32 {sB}, {sH}, 20\ns_add_u32 {sA}, {sA}, {sB}\ns_add_u32 {sA}, {sA}, 0xBFF00")
            a(f"v_mov_b32 v3, {sA}\ns_mov_b64 exec, 1\nglobal_load_dword v4, v3, {sV} nt\ns_mov_b64 exec, -1")
        a("s_barrier\ns_barrier\ns_waitcnt lgkmcnt(0)\ns_barrier\ns_branch L_idle1")

    def stream(self):
        a = self.a
        K, V, Q, P, T, SEL, D = 4, 36, 68, 72, 80, 88, 96
        MK, ADR, MREG, FAC = 100, 101, 102, 104
        a("L_stream2:")
        self.lds_inc(L_VCNT, T, T + 1)
        self.stamp(3)
        a(f"s_load_dword {sT}, {sWS}, 0")
        sw = self.sw
        a(f"s_sub_u32 {sw}, {sW}, 1")
        self.selectors(SEL, T, 4, bits=3)
        a("v_and_b32 v3, 15, v1\nv_lshlrev_b32 v3, 4, v3")
        a(f"s_mov_b32 {sK1}, 0x3db504f3\ns_mov_b32 {sK2}, 0x3fb8aa3b")
        a(f"v_bfe_u32 {vr(ADR)}, v1, 4, 1\nv_lshlrev_b32 {vr(ADR)}, 6, {vr(ADR)}\nv_lshl_add_u32 {vr(ADR)}, v3, 3, {vr(ADR)}")
        a(f"s_lshl_b32 {sA}, {sH}, 12\ns_lshr_b32 {sB}, {sJ}, 2\ns_lshl_b32 {sB}, {sB}, 11\ns_add_u32 {sA}, {sA}, {sB}")
        a(f"s_and_b32 {sB}, {sJ}, 3\ns_lshl_b32 {sB}, {sB}, 4\ns_add_u32 {sA}, {sA}, {sB}\ns_add_u32 {sA}, {sA}, {WS_OP}\nv_add_u32 {vr(ADR)}, {sA}, {vr(ADR)}")
        a(f"s_lshl_b32 {sA}, {sH}, 7\ns_lshl_b32 {sB}, {sJ}, 4\ns_add_u32 {sA}, {sA}, {sB}\ns_add_u32 {sA}, {sA}, {WS_ML}\nv_mov_b32 {vr(T)}, {sA}")
        a(f"v_cmp_lt_u32 {sM0}, 31, v1\nv_mov_b32 {vr(MK)}, 0xffffff00\nv_cndmask_b32 {vr(ADR)}, {vr(ADR)}, {vr(T)}, {sM0}")
        for t in range(8):
            a(f"v_mov_b32 {vr(P + t)}, 0")
        self.lds_wait(L_QF, 1, T, T + 1)
        self.stamp(4)
        a(f"ds_read_b128 {vr(Q, 4)}, v3 offset:{L_Q}")
        a(f"s_mov_b32 {sLOC}, {sA}")
        self.tag_consts()
        a("s_waitcnt vmcnt(8) lgkmcnt(0)")
        for i in range(4):
            for t in range(8):
                a(f"v_dot2c_f32_bf16 {vr(P + t)}, {vr(K + 4 * t + i)}, {vr(Q + i)}")
        for u in range(4):
            a(f"v_add_f32_dpp {vr(P + u)}, {vr(P + u)}, {vr(P + u)} row_ror:8 row_mask:0xf bank_mask:0x3")
        for u in range(4):
            a(f"v_add_f32_dpp {vr(P + u)}, {vr(P + u + 4)}, {vr(P + u + 4)} row_ror:8 row_mask:0xf bank_mask:0xc")
        for u in range(2):
            a(f"v_add_f32_dpp {vr(P + u)}, {vr(P + u)}, {vr(P + u)} row_shl:4 row_mask:0xf bank_mask:0x5")
        for u in range(2):
            a(f"v_add_f32_dpp {vr(P + u)}, {vr(P + u + 2)}, {vr(P + u + 2)} row_shr:4 row_mask:0xf bank_mask:0xa")
        self.dppred("v_add_f32", [P, P + 1], ("quad_perm:[1,0,3,2]", "quad_perm:[2,3,0,1]"))
        self.bf16r(P, P)
        self.bf16r(P + 1, P + 1)
        a(f"v_mul_f32 {vr(P)}, {sK1}, {vr(P)}\nv_mul_f32 {vr(P + 1)}, {sK1}, {vr(P + 1)}")
        self.bf16r(P, P)
        self.bf16r(P + 1, P + 1)
        a(f"v_max_f32 {vr(MREG)}, {vr(P)}, {vr(P + 1)}")
        self.dppred("v_max_f32", [MREG], ("row_ror:4", "row_ror:8"))
        self.redrows("v_max_f32", [MREG], T + 1)
        a(f"v_mul_f32 {vr(T)}, {sK2}, {vr(MREG)}")
        a(f"v_fma_f32 {vr(P)}, {vr(P)}, {sK2}, -{vr(T)}\nv_fma_f32 {vr(P + 1)}, {vr(P + 1)}, {sK2}, -{vr(T)}")
        a(f"v_exp_f32 {vr(P)}, {vr(P)}\nv_exp_f32 {vr(P + 1)}, {vr(P + 1)}")
        a(f"v_cvt_pk_bf16_f32 {vr(T)}, {vr(P)}, {vr(P + 1)}\nv_add_f32 {vr(P)}, {vr(P)}, {vr(P + 1)}")
        for u in range(4):
            a(f"v_mov_b32_dpp {vr(Q + u)}, {vr(T)} row_newbcast:{4 * u} {FULL}")
        self.dppred("v_add_f32", [P], ("row_ror:4", "row_ror:8"))
        self.redrows("v_add_f32", [P], P + 1)
        a(f"s_lshl_b32 {sA}, {sw}, 2\nv_mov_b32 {vr(T + 7)}, {sA}\nds_write2_b32 {vr(T + 7)}, {vr(MREG)}, {vr(P)} offset0:{L_MAX // 4} offset1:{L_SUM // 4}")
        self.lds_inc(L_MCNT, T, T + 1)
        self.stamp(5)
        for t in range(8):
            for m in range(4):
                a(f"v_perm_b32 {vr(K + 4 * t + m)}, {vr(Q + t // 2)}, {vr(Q + t // 2)}, {vr(SEL + 2 * m + (t & 1))}")
        self.lds_wait(L_MCNT, sNACT, T, T + 1)
        a(f"v_and_b32 {vr(T + 2)}, 15, v1\nv_cmp_gt_u32 vcc, 12, {vr(T + 2)}\nv_min_u32 {vr(T + 2)}, 11, {vr(T + 2)}\nv_lshlrev_b32 {vr(T + 2)}, 2, {vr(T + 2)}")
        a(f"ds_read2_b32 {vr(P + 2, 2)}, {vr(T + 2)} offset0:{L_MAX // 4} offset1:{L_SUM // 4}")
        a(f"s_lshl_b32 {sA}, {sw}, 9\nv_lshl_add_u32 v3, v1, 4, {sA}\nv_mov_b32 {vr(T)}, {L_CNT}\nv_mov_b32 {vr(T + 1)}, 1")
        a(f"v_and_b32 {vr(T + 3)}, 31, v1\nv_lshlrev_b32 {vr(T + 3)}, 4, {vr(T + 3)}\nv_lshrrev_b32 {vr(T + 4)}, 5, v1\nv_mul_u32_u24 {vr(T + 4)}, {512 * self.nh}, {vr(T + 4)}\nv_add_u32 {vr(T + 3)}, {vr(T + 4)}, {vr(T + 3)}")
        a(f"s_sub_u32 {sC}, {sNACT}, 1")
        a("s_waitcnt lgkmcnt(0)")
        a(f"v_cndmask_b32 {vr(P + 3)}, 0, {vr(P + 3)}, vcc\nv_mov_b32 {vr(Q)}, {vr(P + 2)}")
        self.dppred("v_max_f32", [Q], [f"row_ror:{r}" for r in (1, 2, 4, 8)])
        a(f"v_sub_f32 {vr(FAC)}, {vr(MREG)}, {vr(Q)}\nv_sub_f32 {vr(P + 2)}, {vr(P + 2)}, {vr(Q)}")
        a(f"v_mul_f32 {vr(FAC)}, {sK2}, {vr(FAC)}\nv_mul_f32 {vr(P + 2)}, {sK2}, {vr(P + 2)}")
        a(f"v_exp_f32 {vr(FAC)}, {vr(FAC)}\nv_exp_f32 {vr(P + 2)}, {vr(P + 2)}\nv_mov_b32 {vr(MREG)}, {vr(Q)}")
        a(f"v_mul_f32 {vr(MREG + 1)}, {vr(P + 2)}, {vr(P + 3)}\nv_mov_b32 {vr(FAC + 1)}, {vr(FAC)}")
        self.dppred("v_add_f32", [MREG + 1], [f"row_ror:{r}" for r in (1, 2, 4, 8)])
        self.stamp(6)
        if self.prio:
            a("s_setprio 2")
        for t in range(8):
            a(f"s_waitcnt vmcnt({7 - t})")
            a(f"v_mfma_f32_16x16x32_bf16 {vr(D, 4)}, {vr(K + 4 * t, 4)}, {vr(V + 4 * t, 4)}, {vr(D, 4) if t else 0}")
        self.stamp(7)
        a("s_mov_b32 exec_hi, 0")
        a(f"v_pk_mul_f32 {vr(D, 2)}, {vr(D, 2)}, {vr(FAC, 2)}\nv_pk_mul_f32 {vr(D + 2, 2)}, {vr(D + 2, 2)}, {vr(FAC, 2)}")
        a(f"ds_write_b128 v3, {vr(D, 4)} offset:{L_OP}")
        a("s_mov_b32 exec_lo, 1")
        a(f"ds_add_rtn_u32 {vr(T + 5)}, {vr(T)}, {vr(T + 1)}")
        a("s_waitcnt lgkmcnt(0)")
        a(f"v_readfirstlane_b32 {sA}, {vr(T + 5)}\ns_mov_b64 exec, -1")
        a(f"s_cmp_lg_u32 {sA}, {sC}\ns_cbranch_scc1 L_role")
        for n in range(self.nh):
            a(f"ds_read_b128 {vr(K + 4 * n, 4)}, {vr(T + 3)} offset:{L_OP + 512 * n}")
        a(f"s_cmp_eq_u32 {sLOC}, 3")
        a("s_waitcnt lgkmcnt(0)")
        pk = lambda d, x: a(f"v_pk_add_f32 {vr(d, 2)}, {vr(d, 2)}, {vr(x, 2)}")
        for i in (0, 2):
            pk(K + i, K + 4 + i)
            pk(K + 8 + i, K + 12 + i)
        for i in (0, 2):
            if self.nh == 6:
                pk(K + 16 + i, K + 20 + i)
            pk(K + i, K + 8 + i)
        for i in (0, 2) if self.nh > 4 else ():
            pk(K + i, K + 16 + i)
        for i in range(4):
            a(f"v_permlane32_swap_b32 {vr(K + i)}, {vr(K + 4 + i)}")
        for i in (0, 2):
            pk(K + i, K + 4 + i)
        a(f"v_cndmask_b32 {vr(K)}, {vr(K)}, {vr(MREG)}, {sM0}\nv_cndmask_b32 {vr(K + 1)}, {vr(K + 1)}, {vr(MREG + 1)}, {sM0}")
        self.tag4(K, MK)
        a("s_mov_b32 exec_hi, 1\ns_cbranch_scc1 L_publoc")
        a(f"global_store_dwordx4 {vr(ADR)}, {vr(K, 4)}, {sWS} sc1\ns_branch L_pubdone")
        a(f"L_publoc:\nglobal_store_dwordx4 {vr(ADR)}, {vr(K, 4)}, {sWS}")
        a("L_pubdone:\ns_mov_b32 exec_hi, -1")
        a(f"ds_write_b32 {vr(T)}, {vr(T + 1)} offset:{L_PUB - L_CNT}")
        self.stamp(8)
        a(f"L_role:\n" + ("s_setprio 0\n" if self.prio else "") + f"s_cmp_gt_u32 {sw}, 8\ns_cbranch_scc1 L_none")
        self.role("L_wo", "L_none", "L_ffn", "L_none")
        a(f"L_idle1:\ns_mov_b32 {sK2}, 0x3fb8aa3b\nv_mov_b32 {vr(MK)}, 0xffffff00")
        self.tag_consts()
        if self.idledma:
            a(f"s_cmp_lg_u32 {sW}, {self.nwn}\ns_cbranch_scc1 L_idle2")
            self.role("L_cwo", "L_none", "L_none", "L_none")
            a("L_idle2:")
        a(f"s_sub_u32 {sw}, {sW}, 1")
        self.lds_wait(L_PUB, 1, T, T + 1)
        a("s_branch L_role")

    def role_wo(self):
        a = self.a
        sw = self.sw
        MK = 100
        B, D, O, ML, X, T, AO, AM, AW, AR, AY = 4, 20, 36, 44, 48, 52, 60, 61, 62, 63, 64
        a(f"L_wo:\ns_cmp_eq_u32 {sw}, 8\ns_cbranch_scc1 L_none")
        a(f"v_lshrrev_b32 v2, 4, v1\nv_bfe_u32 {vr(T)}, v1, 3, 1\nv_and_b32 {vr(T + 1)}, 3, v1\nv_bfe_u32 {vr(T + 2)}, v1, 4, 1\nv_lshrrev_b32 {vr(T + 3)}, 5, v1")
        a(f"s_lshl_b32 {sA}, {sw}, 2\nv_add_u32 v3, {sA}, {vr(T + 2)}\nv_mul_u32_u24 v3, {GUP}, v3\nv_lshl_add_u32 v3, {vr(T + 3)}, 9, v3")
        a(f"v_bfe_u32 {vr(T + 4)}, v1, 2, 2\nv_lshl_add_u32 v3, {vr(T + 4)}, 6, v3\nv_lshl_add_u32 v3, {vr(T + 1)}, 3, v3")
        a(f"s_lshl_b32 {sA}, {sXCD}, 2\ns_lshr_b32 {sB}, {sw}, 1\ns_add_u32 {sA}, {sA}, {sB}")
        a(f"s_lshl_b32 {sB}, {sA}, 7\ns_add_u32 {sB}, {sB}, {WS_ML}\nv_lshl_add_u32 {vr(AM)}, {vr(T)}, 2, {vr(T + 1)}\nv_lshl_add_u32 {vr(AM)}, {vr(AM)}, 4, {sB}")
        a(f"s_lshl_b32 {sA}, {sA}, 12\ns_and_b32 {sB}, {sw}, 1\ns_lshl_b32 {sB}, {sB}, 10\ns_add_u32 {sA}, {sA}, {sB}\ns_add_u32 {sA}, {sA}, {WS_OP}")
        a(f"v_bfe_u32 {vr(AO)}, v1, 2, 1\nv_lshl_add_u32 {vr(AO)}, {vr(AO)}, 1, {vr(T + 2)}\nv_lshl_add_u32 {vr(AO)}, {vr(AO)}, 1, {vr(T + 3)}\nv_lshlrev_b32 {vr(AO)}, 7, {vr(AO)}")
        a(f"v_lshl_add_u32 {vr(AO)}, {vr(T)}, 11, {vr(AO)}\nv_lshl_add_u32 {vr(AO)}, {vr(T + 1)}, 4, {vr(AO)}\nv_add_u32 {vr(AO)}, {sA}, {vr(AO)}")
        a(f"v_and_b32 {vr(AR)}, 15, v1\nv_lshlrev_b32 {vr(AW)}, 2, {vr(AR)}\nv_lshl_add_u32 {vr(AW)}, {vr(T + 3)}, 7, {vr(AW)}\nv_lshl_add_u32 {vr(AW)}, {vr(T + 2)}, 8, {vr(AW)}")
        a(f"s_lshl_b32 {sA}, {sw}, 9\ns_add_u32 {sA}, {sA}, {L_RED}\nv_add_u32 {vr(AW)}, {sA}, {vr(AW)}")
        a(f"v_lshlrev_b32 {vr(AR)}, 4, {vr(AR)}\nv_lshl_add_u32 {vr(AR)}, v2, 10, {vr(AR)}")
        a(f"s_lshl_b32 {sA}, {sXCD}, 11\ns_lshl_b32 {sB}, {sF}, 7\ns_add_u32 {sA}, {sA}, {sB}\ns_add_u32 {sA}, {sA}, {WS_YP}")
        a(f"v_and_b32 {vr(AY)}, 7, v1\nv_lshl_add_u32 {vr(AY)}, {vr(AY)}, 4, {sA}\nv_lshl_add_u32 {vr(AY)}, {vr(T)}, 14, {vr(AY)}")
        a(f"v_cmp_eq_u32 {sM1}, 1, {vr(T + 2)}")

        def mlload():
            a(f"global_load_dwordx4 {vr(ML, 4)}, {vr(AM)}, {sWS} sc1")

        def weights():
            a(f"v_and_b32 {vr(ML)}, {vr(MK)}, {vr(ML)}\nv_and_b32 {vr(ML + 1)}, {vr(MK)}, {vr(ML + 1)}")
            a(f"v_max_f32_dpp {vr(ML + 2)}, {vr(ML)}, {vr(ML)} quad_perm:[1,0,3,2] {FULL}")
            a(f"v_max_f32_dpp {vr(ML + 2)}, {vr(ML + 2)}, {vr(ML + 2)} quad_perm:[2,3,0,1] {FULL}")
            a(f"v_sub_f32 {vr(ML)}, {vr(ML)}, {vr(ML + 2)}\nv_mul_f32 {vr(ML)}, {sK2}, {vr(ML)}\nv_exp_f32 {vr(ML)}, {vr(ML)}")
            a(f"v_mul_f32 {vr(ML + 1)}, {vr(ML + 1)}, {vr(ML)}")
            self.dppred("v_add_f32", [ML + 1], ("quad_perm:[1,0,3,2]", "quad_perm:[2,3,0,1]"))
            a(f"v_rcp_f32 {vr(ML + 1)}, {vr(ML + 1)}\nv_mul_f32 {vr(ML)}, {vr(ML)}, {vr(ML + 1)}")

        def frags():
            self.lds_wait(L_DMA, 1, T + 6, T + 7, tight=True)
            a(f"s_mov_b32 {sSPIN}, 0")
            self.stamp(9)
            for t in range(2):
                for ct in range(2):
                    for hh in range(2):
                        a(f"ds_read_b64_tr_b16 {vr(B + 8 * t + 4 * ct + 2 * hh, 2)}, v3 offset:{L_W + t * 2 * GUP + hh * 256 + ct * 32}")

        def oloads():
            a(f"global_load_dwordx4 {vr(O, 4)}, {vr(AO)}, {sWS} sc1\nglobal_load_dwordx4 {vr(O + 4, 4)}, {vr(AO)}, {sWS} offset:64 sc1")
        if self.tog > 8:
            self.poll(mlload, lambda: self.chk(T, [ML]))
            if self.prio:
                a("s_setprio 2")
            self.stamp(10)
            self.poll(oloads, lambda: self.chk(T, [O, O + 4]), between=lambda: (weights(), frags()))
        else:
            if self.tog:
                def few():
                    self.chk(T, [ML])
                    a(f"s_and_b32 {sA}, vcc_lo, 0x0f0f\ns_bcnt1_i32_b32 {sA}, {sA}\ns_cmp_gt_u32 {sA}, {8 - self.tog}\ns_cselect_b64 vcc, -1, 0")
                self.poll(mlload, few)
            self.stamp(10)
            self.poll(lambda: (mlload(), oloads()), lambda: self.chk(T, [ML, O, O + 4]))
            frags()
            weights()
        self.stamp(11)
        self.count(1)
        for i in range(8):
            a(f"v_and_b32 {vr(O + i)}, {vr(MK)}, {vr(O + i)}")
        for i in range(0, 8, 2):
            a(f"v_pk_mul_f32 {vr(O + i, 2)}, {vr(O + i, 2)}, {vr(ML, 2)} op_sel_hi:[1,0]")
        self.dppred("v_add_f32", range(O, O + 8), ("quad_perm:[1,0,3,2]", "quad_perm:[2,3,0,1]"))
        for u in range(4):
            a(f"v_cvt_pk_bf16_f32 {vr(X + u)}, {vr(O + 2 * u)}, {vr(O + 2 * u + 1)}")
        a("s_waitcnt lgkmcnt(0)")
        for ct in range(2):
            for t in range(2):
                a(f"v_mfma_f32_16x16x32_bf16 {vr(D + 8 * ct + 4 * t, 4)}, {vr(X, 4)}, {vr(B + 8 * t + 4 * ct, 4)}, 0")
        for ct in range(2):
            a(f"v_cndmask_b32 {vr(O + ct)}, {vr(D + 8 * ct)}, {vr(D + 8 * ct + 4)}, {sM1}")
        a(f"ds_write2_b32 {vr(AW)}, {vr(O)}, {vr(O + 1)} offset0:0 offset1:16\ns_waitcnt lgkmcnt(0)\ns_barrier")
        a(f"s_cmp_lg_u32 {sw}, 0\ns_cbranch_scc1 L_none")
        for n in range(4):
            a(f"ds_read_b128 {vr(B + 4 * n, 4)}, {vr(AR)} offset:{L_RED + 256 * n}")
        a("s_waitcnt lgkmcnt(0)")
        for i in (0, 2):
            a(f"v_pk_add_f32 {vr(B + i, 2)}, {vr(B + i, 2)}, {vr(B + 4 + i, 2)}\nv_pk_add_f32 {vr(B + 8 + i, 2)}, {vr(B + 8 + i, 2)}, {vr(B + 12 + i, 2)}")
        for i in (0, 2):
            a(f"v_pk_add_f32 {vr(B + i, 2)}, {vr(B + i, 2)}, {vr(B + 8 + i, 2)}")
        for swp in ("v_permlane32_swap_b32", "v_permlane16_swap_b32"):
            for i in range(4):
                a(f"{swp} {vr(B + i)}, {vr(B + 4 + i)}")
            for i in (0, 2):
                a(f"v_pk_add_f32 {vr(B + i, 2)}, {vr(B + i, 2)}, {vr(B + 4 + i, 2)}")
        self.tag4(B, MK)
        a("s_mov_b64 exec, 0xffff")
        a(f"global_store_dwordx4 {vr(AY)}, {vr(B, 4)}, {sWS} sc1")
        self.stamp(12)
        self.end()

    def role_ffn(self):
        a = self.a
        sw = self.sw
        BG, BD, F, D, ST, XF = 4, 68, 84, 116, 120, 126
        MK, AY, XR, ADR, AH, AHN, AS, ASW, AA, AAW, AAR, AF, FM, AO, HV = 128, 130, 132, 134, 135, 136, 137, 138, 139, 140, 141, 142, 144, 145, 146
        HNS = 1088
        a(f"L_ffn:\ns_cmp_lg_u32 {sw}, 8\ns_cbranch_scc1 L_ffn1")
        a(f"v_mov_b32 v2, {L_HINT}\ns_mov_b32 {sC}, 0")
        if self.hint:
            a(f"s_lshr_b32 {sA}, {sF}, {self.hsh}\ns_lshl_b32 {sA}, {sA}, 7\ns_add_u32 {sA}, {sA}, {WS_HT}\ns_add_u32 s52, s26, {sA}\ns_addc_u32 s53, s27, 0\ns_mov_b32 s98, {sT}\ns_mov_b32 s99, {sT}")
            if self.hdepth:
                a(f"s_not_b32 {sB}, {sT}")
                for i in range(8):
                    a(f"s_mov_b32 s{56 + i}, {sB}")

            def hcheck():
                a(f"s_mov_b32 {sA}, 0")
                for i in range(4):
                    a(f"s_cmp_eq_u64 s[{56 + 2 * i}:{57 + 2 * i}], {sTT}\ns_cselect_b32 {sB}, {1 << i}, 0\ns_or_b32 {sA}, {sA}, {sB}")
                if self.incr:
                    a(f"s_cmp_eq_u32 {sA}, {sC}\ns_cbranch_scc1 L_fh0\nv_mov_b32 v3, {sA}\ns_mov_b32 {sC}, {sA}\nds_write_b32 v2, v3\nL_fh0:")
                a(f"s_cmp_lg_u32 {sA}, 15")
            self.spoll(lambda: a((f"s_sleep {self.hsleep}\n" if self.hsleep else "") + f"s_load_dwordx8 s[56:63], {sP}, 0 glc"), hcheck, keep=self.hdepth)
        if not (self.hint and self.incr):
            a("v_mov_b32 v3, 15\nds_write_b32 v2, v3")
        self.stamp(2)
        if self.barx:
            a("s_barrier")
        self.end()
        a("L_ffn1:")
        g, b3, q4, r2, hi, b4 = F, F + 1, F + 2, F + 3, F + 4, F + 5
        a(f"v_mov_b32 {vr(MK)}, 0xffffff00")
        a(f"v_lshrrev_b32 {vr(g)}, 4, v1\nv_bfe_u32 {vr(b3)}, v1, 3, 1\nv_and_b32 {vr(q4)}, 3, v1\nv_bfe_u32 {vr(r2)}, v1, 2, 2\nv_lshrrev_b32 {vr(hi)}, 5, v1\nv_bfe_u32 {vr(b4)}, v1, 4, 1")
        a(f"s_lshl_b32 {sA}, {sw}, 4\nv_and_b32 v3, 15, v1\nv_add_u32 v3, {sA}, v3")
        a(f"v_lshlrev_b32 {vr(AHN)}, 3, v3\nv_lshl_add_u32 {vr(AHN)}, {vr(b4)}, 2, {vr(AHN)}\nv_lshl_add_u32 {vr(AH)}, {vr(hi)}, 10, {vr(AHN)}")
        a(f"global_load_dword {vr(XR)}, {vr(AH)}, {sX}")
        a(f"v_mul_u32_u24 v2, {HNS}, {vr(hi)}\nv_add_u32 {vr(AHN)}, v2, {vr(AHN)}")
        a(f"v_lshlrev_b32 {vr(AY)}, 4, v3\nv_lshl_add_u32 {vr(AY)}, {vr(hi)}, 14, {vr(AY)}\nv_lshl_add_u32 {vr(AY)}, {vr(b4)}, 11, {vr(AY)}\nv_bfe_u32 v3, v1, 2, 1")
        a(f"v_add_u32 {vr(AY + 1)}, {WS_YP + 12288}, {vr(AY)}\nv_add_u32 {vr(AY)}, {WS_YP + 4096}, {vr(AY)}")
        a(f"s_lshl_b32 {sA}, {sw}, 3\nv_lshlrev_b32 {vr(AS)}, 6, {vr(hi)}\nv_add_u32 {vr(ASW)}, {sA}, {vr(AS)}")
        a(f"v_and_b32 {vr(AA)}, 1, v1\nv_mul_u32_u24 {vr(AA)}, {HNS}, {vr(AA)}\nv_lshl_add_u32 {vr(AA)}, {vr(b4)}, 5, {vr(AA)}\nv_lshl_add_u32 {vr(AA)}, {vr(hi)}, 4, {vr(AA)}")
        if self.fold:
            a(f"v_and_b32 v2, 2, v1\nv_cmp_ne_u32 vcc, 0, v2\nv_lshlrev_b32 v2, 5, {vr(b4)}\nv_lshl_add_u32 v2, {vr(hi)}, 4, v2")
            a(f"v_add_u32 {vr(AA)}, {L_HN}, {vr(AA)}\nv_add_u32 v2, {L_ONE}, v2\nv_cndmask_b32 {vr(AA)}, {vr(AA)}, v2, vcc\nv_lshlrev_b32 {vr(AS)}, 6, {vr(b4)}")
        a(f"v_lshlrev_b32 {vr(AAR)}, 6, v3\nv_lshl_add_u32 {vr(AAR)}, {vr(g)}, 4, {vr(AAR)}")
        a(f"v_and_b32 {vr(AAW)}, 7, v1\nv_lshlrev_b32 {vr(AAW)}, 1, {vr(AAW)}\nv_lshl_add_u32 {vr(AAW)}, {vr(b4)}, 6, {vr(AAW)}\ns_lshl_b32 {sA}, {sw}, 4\nv_add_u32 {vr(AAW)}, {sA}, {vr(AAW)}")
        a(f"s_lshl_b32 {sB}, {sw}, 1\nv_add_u32 {vr(ADR)}, {sB}, {vr(hi)}\nv_lshl_add_u32 {vr(ADR)}, {vr(ADR)}, 1, v3\nv_mul_u32_u24 {vr(ADR)}, {FP_STRIDE}, {vr(ADR)}")
        a(f"s_lshl_b32 {sB}, {sF}, 7\ns_add_u32 {sB}, {sB}, {WS_FP}\nv_lshl_add_u32 {vr(ADR)}, {vr(q4)}, 4, {vr(ADR)}\nv_lshl_add_u32 {vr(ADR)}, {vr(b4)}, 6, {vr(ADR)}\nv_add_u32 {vr(ADR)}, {sB}, {vr(ADR)}")
        a(f"v_bfe_u32 v2, v1, 1, 1\nv_mul_u32_u24 v2, {L_U - L_G}, v2\nv_mul_u32_u24 v3, {GUP}, {vr(b4)}\nv_add_u32 v2, v2, v3")
        a(f"v_lshl_add_u32 v2, {vr(hi)}, 9, v2\nv_lshl_add_u32 v2, {vr(r2)}, 6, v2\nv_and_b32 v3, 1, v1\nv_lshl_add_u32 v2, v3, 3, v2")
        a(f"s_and_b32 {sA}, {sw}, 3\ns_lshl_b32 {sA}, {sA}, 4\nv_add_u32 v2, {sA}, v2")
        a(f"v_lshl_add_u32 v3, {vr(g)}, 3, {vr(r2)}\nv_mul_u32_u24 v3, {ROWP}, v3\nv_lshl_add_u32 v3, {vr(q4)}, 5, v3\ns_lshl_b32 {sB}, {sw}, 7\ns_add_u32 {sB}, {sB}, {L_D}\nv_add_u32 v3, {sB}, v3")
        a(f"s_mul_i32 {sB}, {sF}, {FP_STRIDE}\ns_lshl_b32 {sC}, {sw}, 6\ns_add_u32 {sB}, {sB}, {sC}\ns_add_u32 {sB}, {sB}, {WS_FP}")
        a(f"v_lshrrev_b32 {vr(AF)}, 2, v1\nv_lshlrev_b32 {vr(AF)}, 7, {vr(AF)}\nv_lshl_add_u32 {vr(AF)}, {vr(q4)}, 4, {vr(AF)}\nv_add_u32 {vr(AF)}, {sB}, {vr(AF)}")
        a(f"v_cmp_gt_u32 vcc, 44, v1\nv_add_u32 {vr(AF + 1)}, 4096, {vr(AF)}\nv_cndmask_b32 {vr(AF + 1)}, {vr(AF)}, {vr(AF + 1)}, vcc\nv_cndmask_b32 {vr(FM)}, 0, {vr(MK)}, vcc")
        a(f"s_and_b32 {sB}, {sF}, 1\ns_lshl_b32 {sB}, {sB}, 9\ns_lshr_b32 {sC}, {sF}, 1\ns_lshl_b32 {sC}, {sC}, 5\ns_add_u32 {sB}, {sB}, {sC}\ns_lshl_b32 {sC}, {sw}, 4\ns_add_u32 {sB}, {sB}, {sC}")
        a(f"v_lshl_add_u32 {vr(AO)}, {vr(b4)}, 1, {vr(hi)}\nv_lshl_add_u32 {vr(AO)}, {vr(q4)}, 2, {vr(AO)}\nv_add_u32 {vr(AO)}, {sB}, {vr(AO)}\nv_lshlrev_b32 {vr(AO)}, 1, {vr(AO)}")
        a(f"s_and_b32 {sB}, {sF}, 1\ns_mul_i32 {sB}, {sB}, {HNS - 1024}\nv_add_u32 {vr(AH)}, {sB}, {vr(AO)}" if self.fold else "")
        a(f"v_cmp_eq_u32 {sM1}, 1, {vr(b4)}")
        a(f"s_mov_b32 {sK1}, 0x3d372713\ns_mov_b32 {sK3}, 0xc0135761")

        def load1(n):
            a(f"global_load_dwordx4 {vr(F + 4 * n, 4)}, {vr(AY + n // 2)}, {sWS} offset:{-4096 if n % 2 == 0 else 0} sc1")

        def loads():
            for n in range(4):
                load1(n)

        def mask1(n):
            for i in range(4):
                a(f"v_and_b32 {vr(F + 4 * n + i)}, {vr(MK)}, {vr(F + 4 * n + i)}")

        def bdreads():
            for n in range(4):
                for hh in range(2):
                    a(f"ds_read_b64_tr_b16 {vr(BD + 4 * n + 2 * hh, 2)}, v3 offset:{hh * 4 * ROWP + n * 8}")

        def bgreads():
            for t in range(16):
                for hh in range(2):
                    a(f"ds_read_b64_tr_b16 {vr(BG + 4 * t + 2 * hh, 2)}, v2 offset:{L_G + t * 2 * GUP + hh * 256}")

        def frags(tag):
            a(f"s_mov_b32 {sRD}, 1")
            bdreads()
            a(f"s_cmp_gt_u32 {sw}, 3\ns_cbranch_scc1 L_ffr{tag}")
            bgreads()
            a(f"L_ffr{tag}:")
        a(f"v_mov_b32 {vr(F + 16)}, {L_DMA}\ns_mov_b32 {sRD}, 0\ns_mov_b32 {sSPIN}, 0\ns_waitcnt vmcnt(0)")
        self.unpack(XF, XR, 1)
        a(f"s_mov_b32 {sC}, 0\nL_fw:\nds_read2_b32 {vr(F + 18, 2)}, {vr(F + 16)} offset0:0 offset1:1")
        a(f"s_add_u32 {sSPIN}, {sSPIN}, 1\ns_cmp_gt_u32 {sSPIN}, {SPIN * 8}\ns_cbranch_scc1 L_bail\ns_waitcnt lgkmcnt(0)")
        a(f"v_readfirstlane_b32 {sB}, {vr(F + 19)}\nv_readfirstlane_b32 {sA}, {vr(F + 18)}\ns_andn2_b32 {sD}, {sB}, {sC}\ns_cbranch_scc0 L_fw1")
        for n in range(4):
            a(f"s_bitcmp0_b32 {sD}, {n}\ns_cbranch_scc1 L_fl{n}")
            load1(n)
            a(f"L_fl{n}:")
        if self.barx:
            a(f"s_mov_b32 {sC}, {sB}\ns_bcnt1_i32_b32 {sD}, {sB}\ns_cmp_ge_u32 {sD}, {self.xth}\ns_cbranch_scc1 L_fgo\nL_fw1:")
        else:
            a(f"s_mov_b32 {sC}, {sB}\ns_cmp_eq_u32 {sB}, 15\ns_cbranch_scc1 L_fgo\nL_fw1:")
        a(f"s_andn2_b32 {sA}, {sA}, {sRD}\ns_cbranch_scc0 L_fw0")
        frags("a")
        a("L_fw0:\n" + ("" if self.tight else "s_sleep 1\n") + "s_branch L_fw\nL_fgo:")
        if self.barx:
            a(f"s_andn2_b32 {sA}, {sA}, {sRD}\ns_cbranch_scc0 L_fx")
            frags("c")
            a("L_fx:")
            if self.early:
                a("s_waitcnt vmcnt(0)")
                for n in range(4):
                    a(f"s_bitcmp0_b32 {sC}, {n}\ns_cbranch_scc1 L_fe{n}")
                    self.chk(F + 22, [F + 4 * n])
                    mask1(n)
                    a(f"s_cbranch_vccz L_fe{n}\ns_bitset0_b32 {sC}, {n}\nL_fe{n}:")
            a("s_barrier")
            for n in range(4):
                a(f"s_bitcmp1_b32 {sC}, {n}\ns_cbranch_scc1 L_fm{n}")
                load1(n)
                a(f"L_fm{n}:")
        self.stamp(9)

        def shadow():
            if self.barx:
                a(f"ds_read_b32 {vr(F + 18)}, {vr(F + 16)}")
            self.lds_inc(L_YISS, F + 20, F + 21)
            if self.barx:
                a(f"s_waitcnt lgkmcnt(0)\nv_readfirstlane_b32 {sA}, {vr(F + 18)}")
            a(f"s_mov_b32 {sSPIN}, 0\ns_andn2_b32 {sA}, {sA}, {sRD}\ns_cbranch_scc0 L_fnog")
            frags("b")
            a("L_fnog:")
        if self.early and self.barx:
            shadow()
            a(f"s_mov_b64 {sM0}, 0\ns_waitcnt vmcnt(0)")
            for n in range(4):
                a(f"s_bitcmp1_b32 {sC}, {n}\ns_cbranch_scc1 L_fn{n}")
                self.chk(F + 22, [F + 4 * n])
                mask1(n)
                a(f"s_or_b64 {sM0}, {sM0}, vcc\nL_fn{n}:")
            a(f"s_cmp_eq_u64 {sM0}, 0\ns_cbranch_scc1 L_fok")
            self.poll(loads, lambda: self.chk(F + 16, [F + 4 * n for n in range(4)]))
            for n in range(4):
                mask1(n)
            a("L_fok:")
        else:
            self.poll(loads, lambda: self.chk(F + 16, [F + 4 * n for n in range(4)]), between=shadow, first=False)
            for n in range(4):
                mask1(n)
        self.stamp(10)
        self.count(1)
        for i in (0, 2):
            a(f"v_pk_add_f32 {vr(F + i, 2)}, {vr(F + i, 2)}, {vr(F + 4 + i, 2)}\nv_pk_add_f32 {vr(F + 8 + i, 2)}, {vr(F + 8 + i, 2)}, {vr(F + 12 + i, 2)}")
        for i in (0, 2):
            a(f"v_pk_add_f32 {vr(F + i, 2)}, {vr(F + i, 2)}, {vr(F + 8 + i, 2)}")
        a(f"v_permlane16_swap_b32 {vr(F)}, {vr(F + 2)}\nv_permlane16_swap_b32 {vr(F + 1)}, {vr(F + 3)}")
        a(f"v_pk_add_f32 {vr(F, 2)}, {vr(F, 2)}, {vr(F + 2, 2)}")
        self.bf16r(F, F)
        self.bf16r(F + 1, F + 1)
        a(f"v_pk_add_f32 {vr(F + 2, 2)}, {vr(F, 2)}, {vr(XF, 2)}")
        self.bf16r(F, F + 2)
        self.bf16r(F + 1, F + 3)
        S = F + 6
        a(f"v_add_f32 {vr(S)}, {vr(F)}, {vr(F + 1)}\nv_mul_f32 {vr(S + 1)}, {vr(F)}, {vr(F)}\nv_fmac_f32 {vr(S + 1)}, {vr(F + 1)}, {vr(F + 1)}")
        a(f"v_cvt_pk_bf16_f32 {vr(F + 4)}, {vr(F + 2)}, {vr(F + 3)}")
        self.dppred("v_add_f32", [S, S + 1], [f"row_ror:{r}" for r in (1, 2, 4, 8)])
        a(f"ds_write_b32 {vr(AHN)}, {vr(F + 4)} offset:{L_HN}" if self.fold else f"ds_write_b32 {vr(AH)}, {vr(F + 4)} offset:{L_H}")
        for r in (S, S + 1):
            a(f"v_add_f32_dpp {vr(r)}, {vr(r)}, {vr(r)} row_bcast:15 row_mask:0xa bank_mask:0xf")
        a(f"s_mov_b32 exec_lo, 0x10000\ns_mov_b32 exec_hi, 0x10000\nds_write_b64 {vr(ASW)}, {vr(S, 2)} offset:{L_STAT}")
        a("s_mov_b64 exec, -1\ns_waitcnt lgkmcnt(0)\ns_barrier")
        self.stamp(11)

        def stats(R):
            sub = Gen.__new__(Gen)
            out = []
            sub.a = lambda t: out.extend(t.split("\n"))
            for n in range(4):
                sub.a(f"v_pk_add_f32 {vr(R + 4 * n, 2)}, {vr(R + 4 * n, 2)}, {vr(R + 2 + 4 * n, 2)}")
            sub.a(f"v_pk_add_f32 {vr(R, 2)}, {vr(R, 2)}, {vr(R + 4, 2)}\nv_pk_add_f32 {vr(R + 8, 2)}, {vr(R + 8, 2)}, {vr(R + 12, 2)}")
            sub.a(f"v_pk_add_f32 {vr(R, 2)}, {vr(R, 2)}, {vr(R + 8, 2)}")
            sub.a(f"v_mul_f32 {vr(R)}, 0x3b000000, {vr(R)}\nv_mul_f32 {vr(R + 1)}, 0x3b000000, {vr(R + 1)}")
            sub.a(f"v_fma_f32 {vr(R + 1)}, -{vr(R)}, {vr(R)}, {vr(R + 1)}\nv_max_f32 {vr(R + 1)}, 0, {vr(R + 1)}")
            sub.ln_finish(ST, R, R + 1)
            return out
        if not self.fold:
            for n in range(4):
                a(f"ds_read_b128 {vr(F + 8 + 4 * n, 4)}, {vr(AS)} offset:{L_STAT + 16 * n}")
            a(f"ds_read_u16 {vr(HV)}, {vr(AO)} offset:{L_H}")
            a("s_waitcnt lgkmcnt(0)")
            for x in stats(F + 8):
                a(x)
            self.ln_apply2(F, ST, XF, F + 4)
            a(f"ds_write_b32 {vr(AHN)}, {vr(XF)} offset:{L_HN}\ns_waitcnt lgkmcnt(0)\ns_barrier")

        def announce(tag):
            a(f"s_cmp_lg_u32 {sw}, 4\ns_cbranch_scc1 L_fan{tag}")
            a(f"s_lshl_b32 {sA}, {sF}, 2\ns_add_u32 {sA}, {sA}, {WS_FT}\nv_add_u32 {vr(BG)}, {sF}, v1\nv_and_b32 {vr(BG)}, {self.nrep - 1}, {vr(BG)}\nv_lshl_add_u32 {vr(BG)}, {vr(BG)}, 8, {sA}\nv_mov_b32 {vr(BG + 1)}, {sT}")
            for i in range(self.clag):
                a(f"ds_read_b32 {vr(BG + 2)}, {vr(AS)}\ns_waitcnt lgkmcnt(0)")
            a(f"s_bfm_b64 exec, {self.nrep}, 0\nglobal_store_dword {vr(BG)}, {vr(BG + 1)}, {sWS} sc1\ns_mov_b64 exec, -1\nL_fan{tag}:")
        a(f"s_cmp_lt_u32 {sw}, 4\ns_cbranch_scc1 L_fgu")
        if self.bump == "early":
            a(f"s_lshl_b32 {sA}, {sF}, 3\ns_add_u32 {sA}, {sA}, {sw}\ns_cmp_lg_u32 {sA}, 7\ns_cbranch_scc1 L_fnb")
            a(f"v_mov_b32 {vr(BG)}, 0\nv_mov_b32 {vr(BG + 1)}, {sT}\ns_mov_b64 exec, 1\nglobal_store_dword {vr(BG)}, {vr(BG + 1)}, {sWS} sc1\ns_mov_b64 exec, -1\nL_fnb:")
        if self.cpt == "hn":
            announce("a")
        a(f"s_branch L_fact\nL_fgu:\ns_cmp_lg_u32 {sRD}, 0\ns_cbranch_scc1 L_fgu2")
        bgreads()
        a("s_waitcnt lgkmcnt(0)\nL_fgu2:")
        hoff = 0 if self.fold else L_HN
        fill = []
        pre = 4 if self.fold and self.micro else 0
        for t in range(pre):
            a(f"ds_read_b128 {vr(F + 4 * t, 4)}, {vr(AA)} offset:{hoff + 64 * t}")
        if self.fold:
            SR = 144 + 4
            for n in range(3):
                a(f"ds_read_b128 {vr(SR + 4 * n, 4)}, {vr(AS)} offset:{L_STAT + 16 * n}")
            a(f"ds_read_b128 {vr(ST + 4, 4)}, {vr(AS)} offset:{L_STAT + 48}")
            fill = [x.replace(vr(SR + 12, 2), vr(ST + 4, 2)).replace(vr(SR + 14, 2), vr(ST + 6, 2)) for x in stats(SR)]
        for t in range(pre, 8):
            a(f"ds_read_b128 {vr(F + 4 * t, 4)}, {vr(AA)} offset:{hoff + 64 * t}")
        for t in range(16):
            a(f"s_waitcnt lgkmcnt({11 if t < pre else min(7, 15 - t)})")
            a(f"v_mfma_f32_16x16x32_bf16 {vr(D, 4)}, {vr(F + 4 * (t % 8), 4)}, {vr(BG + 4 * t, 4)}, {vr(D, 4) if t else 0}")
            if t < 8:
                a(f"ds_read_b128 {vr(F + 4 * t, 4)}, {vr(AA)} offset:{hoff + 64 * (t + 8)}")
            nf = (0 if t < pre else 2) if pre else (1 if t < 8 else 2)
            for x in fill[:nf]:
                a(x)
            fill = fill[nf:]
        assert not fill
        G = BG
        a(f"v_cndmask_b32 {vr(G)}, {vr(D)}, {vr(D + 1)}, {sM1}")
        if self.fold:
            a(f"v_fma_f32 {vr(G)}, -{vr(ST)}, {vr(D + 2)}, {vr(G)}\nv_mul_f32 {vr(G)}, {vr(G)}, {vr(ST + 4)}")
        self.bf16r(G, G)
        a(f"v_mul_f32 {vr(G + 2)}, {vr(G)}, {vr(G)}\nv_mul_f32 {vr(G + 3)}, {sK3}, {vr(G)}")
        a(f"v_mov_b32_dpp {vr(G + 1)}, {vr(G)} row_ror:8 {FULL}")
        a(f"v_fma_f32 {vr(G + 2)}, {vr(G + 2)}, {sK1}, 1.0")
        a(f"v_mul_f32 {vr(G + 2)}, {vr(G + 2)}, {vr(G + 3)}\nv_exp_f32 {vr(G + 2)}, {vr(G + 2)}\nv_add_f32 {vr(G + 2)}, 1.0, {vr(G + 2)}")
        a(f"v_rcp_f32 {vr(G + 2)}, {vr(G + 2)}\nv_mul_f32 {vr(G)}, {vr(G)}, {vr(G + 2)}")
        self.bf16r(G, G)
        a(f"v_mul_f32 {vr(G)}, {vr(G)}, {vr(G + 1)}\nv_cvt_pk_bf16_f32 {vr(G)}, {vr(G)}, {vr(G)}")
        a(f"s_mov_b64 exec, 0x00ff00ff\nds_write_b16 {vr(AAW)}, {vr(G)} offset:{L_ACT}\ns_mov_b64 exec, -1")
        a("L_fact:")
        if self.fold:
            a(f"ds_read_u16 {vr(HV)}, {vr(AH)} offset:{L_HN}")
        for i in range(16):
            a(f"v_mov_b32 {vr(F + i)}, 0")
        a("s_waitcnt lgkmcnt(0)\ns_barrier")
        self.stamp(12)
        if self.cpt == "act":
            announce("b")
        a(f"s_cmp_lg_u32 {sRD}, 0\ns_cbranch_scc1 L_fdn")
        bdreads()
        a("L_fdn:")
        for n in range(4):
            a(f"s_mov_b32 exec_lo, {0x11111111 << n:#x}\ns_mov_b32 exec_hi, {0x11111111 << n:#x}")
            a(f"ds_read_b128 {vr(F + 4 * n, 4)}, {vr(AAR)} offset:{L_ACT}")
        a(f"s_mov_b64 exec, -1\nv_lshlrev_b32 {vr(HV)}, 16, {vr(HV)}")
        a("s_waitcnt lgkmcnt(0)")
        for n in range(4):
            a(f"v_mfma_f32_16x16x32_bf16 {vr(D, 4)}, {vr(BD + 4 * n, 4)}, {vr(F + 4 * n, 4)}, {vr(D, 4) if n else 0}")
        a("s_mov_b32 exec_lo, 0x00ff00ff\ns_mov_b32 exec_hi, 0x00ff00ff")
        self.tag4(D, MK)
        a(f"global_store_dwordx4 {vr(ADR)}, {vr(D, 4)}, {sWS} sc1")
        self.stamp(13)
        a(f"s_mov_b64 exec, -1\ns_cmp_ge_u32 {sF}, 32\ns_cbranch_scc1 L_none\ns_cmp_ge_u32 {sw}, 2\ns_cbranch_scc1 L_none")
        if self.cpt in ("hn", "act"):
            a(f"s_and_b32 {sA}, {sF}, {self.nrep - 1}\ns_lshl_b32 {sA}, {sA}, 8\ns_add_u32 {sA}, {sA}, {WS_FT}\ns_add_u32 s52, s26, {sA}\ns_addc_u32 s53, s27, 0\ns_mov_b32 s98, {sT}\ns_mov_b32 s99, {sT}")

            def fcheck():
                pairs = list(range(4, 20, 2)) + list(range(64, 80, 2)) + list(range(56, 64, 2)) + [44]
                a(f"s_xor_b32 s46, s46, {sT}")
                for p in pairs:
                    a(f"s_xor_b64 s[{p}:{p + 1}], s[{p}:{p + 1}], {sTT}")
                a("s_or_b32 s4, s4, s46")
                for p in pairs[1:]:
                    a(f"s_or_b64 s[4:5], s[4:5], s[{p}:{p + 1}]")
            self.spoll(lambda: a(f"s_load_dwordx16 s[4:19], {sP}, 0 glc\ns_load_dwordx16 s[64:79], {sP}, 64 glc\ns_load_dwordx8 s[56:63], {sP}, 128 glc\ns_load_dwordx4 s[44:47], {sP}, 160 glc"), fcheck)
        elif self.csleep:
            a(f"s_sleep {self.csleep}")
        elif self.ackwait:
            a("s_waitcnt vmcnt(0)")

        def floads():
            a(f"global_load_dwordx4 {vr(F, 4)}, {vr(AF)}, {sWS} sc1\nglobal_load_dwordx4 {vr(F + 4, 4)}, {vr(AF)}, {sWS} offset:2048 sc1")
            a(f"global_load_dwordx4 {vr(F + 8, 4)}, {vr(AF + 1)}, {sWS} sc1")
        self.poll(floads, lambda: self.chk(F + 12, [F, F + 4, F + 8]))
        self.count(2)
        for i in range(8):
            a(f"v_and_b32 {vr(F + i)}, {vr(MK)}, {vr(F + i)}")
        for i in range(4):
            a(f"v_and_b32 {vr(F + 8 + i)}, {vr(FM)}, {vr(F + 8 + i)}")
        for k in (4, 8):
            for i in (0, 2):
                a(f"v_pk_add_f32 {vr(F + i, 2)}, {vr(F + i, 2)}, {vr(F + k + i, 2)}")
        self.tr_reduce4(F, (4, 8))
        self.bf16r(F, F)
        a("s_mov_b32 exec_lo, 0x000f000f\ns_mov_b32 exec_hi, 0x000f000f")
        a(f"v_add_f32 {vr(F)}, {vr(F)}, {vr(HV)}\nv_cvt_pk_bf16_f32 {vr(F)}, {vr(F)}, {vr(F)}")
        a(f"global_store_short {vr(AO)}, {vr(F)}, {sOUT} {self.outf}")
        self.stamp(14)
        if self.bump != "early" or self.pad:
            a(f"s_or_b32 {sA}, {sF}, {sw}\ns_cmp_lg_u32 {sA}, 0\ns_cbranch_scc1 L_none")
        if self.bump != "early":
            a(f"v_mov_b32 v2, 0\nv_mov_b32 v3, {sT}\ns_mov_b64 exec, 1\nglobal_store_dword v2, v3, {sWS} sc1")
        if self.pad:
            a(f"s_mov_b32 s88, {self.pad}")
            if self.probe in ("smax", "smin", "smed"):
                op = "v_max_i32" if self.probe == "smax" else ("v_min_i32" if self.probe == "smin" else "v_add_u32")
                a(f"s_mov_b64 exec, -1\nv_lshlrev_b32 v2, 4, v1\nv_add_u32 v2, {WS_ST}, v2\nglobal_load_dwordx4 v[4:7], v2, {sWS} sc1\ns_waitcnt vmcnt(0)")
                for i in range(4):
                    a(f"v_subrev_u32 v{4 + i}, s80, v{4 + i}")
                a(f"{op} v4, v4, v5\n{op} v6, v6, v7\n{op} v4, v4, v6")
                self.dppred(op, [4], [f"row_ror:{r}" for r in (1, 2, 4, 8)])
                self.redrows(op, [4], 5)
                if self.probe == "smed":
                    a("v_ashrrev_i32 v4, 8, v4")
                a("v_readfirstlane_b32 s84, v4\ns_add_u32 s84, s84, 300\ns_add_u32 s84, s84, s80")
            if self.probe is not None:
                a("s_waitcnt lgkmcnt(0)\ns_sub_u32 s84, s84, s80\ns_lshl_b32 s84, s84, 2\ns_min_u32 s84, s84, 20000\ns_add_u32 s88, s88, s84")
            a("L_pad:\ns_memrealtime s[86:87]\ns_waitcnt lgkmcnt(0)\ns_sub_u32 s86, s86, s80\ns_cmp_lt_u32 s86, s88\ns_cbranch_scc1 L_pad")
        self.end()


if __name__ == "__main__":
    out = sys.argv[1]
    kw = {}
    for x in sys.argv[2:]:
        k, v = x.split("=")
        kw[k] = {"True": True, "False": False}.get(v, v)
    g = Gen(**kw)
    open(out, "w").write(g.build())
    print("written", out, "nops", g.nops)
```

```python
import sys
from asmlib import Asm

KN = "sequential_preLN__sliding_block_cached__geglu_ffn__decode_kernel"
HEADER = open("sequential_preLN__sliding_block_cached__geglu_ffn__decode.s.ref").read().split("; Override launch")[0]

WS_FT, WS_HT, WS_XT, WS_QP, WS_OP, WS_ML, WS_YP, WS_FP, WS_ST = 0x4A000, 0x48000, 0x400, 0x1000, 0x50000, 0x70000, 0x80000, 0x110000, 0x200000
WS_DT = 0x800
FP_STRIDE = 6144
TAGC = 0x9E3779B9
L_Q, L_MAX, L_SUM, L_CNT, L_VCNT, L_MCNT, L_QF, L_PUB, L_DMA, L_HINT, L_YISS = 0, 256, 304, 352, 356, 360, 364, 368, 372, 376, 380
L_OP, L_RED, L_STAT, L_ACT, L_H, L_HN, L_W = 512, 6656, 10752, 11008, 11264, 13312, 15616
ROWP = 1040
GUP = 1056
L_G = L_W
L_U = L_G + 32 * GUP + 16
L_D = L_U + 32 * GUP + 240
LDS_BYTES = L_D + 32 * ROWP
L_LOC = 384
L_ONE = L_H + 128
SPIN = 1 << 19

sX, sK, sV, sWQ, sWO, sWG, sWU, sWD, sOUT, sWS = "s[4:5]", "s[6:7]", "s[8:9]", "s[10:11]", "s[12:13]", "s[16:17]", "s[18:19]", "s[20:21]", "s[22:23]", "s[26:27]"
sXCD, sH, sJ, sW, sT = "s28", "s29", "s30", "s31", "s32"
sT1, sT2, sT3 = "s33", "s34", "s35"
sSELA, sSELB, sHI = "s36", "s37", "s38"
sSPIN = "s39"
sA, sB, sC, sD = "s40", "s41", "s42", "s43"
sM0, sM1 = "s[44:45]", "s[46:47]"
sF = "s48"
sK1, sK2, sK3 = "s49", "s50", "s51"
sP = "s[52:53]"
sLOC, sNACT, sRD = "s54", "s55", "s96"
sTT = "s[98:99]"
ST0 = 80
FULL = "row_mask:0xf bank_mask:0xf"


def vr(a, n=1):
    return f"v{a}" if n == 1 else f"v[{a}:{a + n - 1}]"


class Gen:
    def __init__(self, diag=False, nt="nt", wnt="nt", prefetch=True, pad=0, lds=None, nvg=160, probe=None, stamps=None,
                 nk0=4, helper=True, hrow0=128, local=True, ackwait=True, nk1=8, optouch=True, window=True, exp="", wwin=15, hint=True, lag=5, fwin=32, downearly=True, b0=True, tight=False, nww=8, wotouch=True, nv1=0, hwin=3, idledma=True, hpub=False, fpub=False, nth=0, nlate=12, hgu=0, hall=True, tlb=False, cpt="ack", hmode="s", hsleep=0, fchk=8, fwin0=11, fk0=24, incr=True, bump="early", outf="nt", nkpre=1, clag=0, nrep=32, wopair=False, frot=True, wk0=16, hr=128, wont="nt", fnt="", barx=True, hdown=False, clean=False, fpre=8, wpre=8, tog=9, csleep=0, fold=True, micro=True, early=False, hdepth=0, xth=3, ytouch=False, prew="", prio=True, layout="sc", hsh=0, dflag=False, vtlb=False, xts=True, hslow=0, nva=1, hml=0, fml=0, fmk=16, presetup=True):
        self.a = Asm()
        self.diag, self.nt, self.wnt, self.prefetch = diag, nt, wnt, prefetch
        self.uid = 0
        self.pad, self.probe, self.stamps, self.sec = int(pad), probe, stamps, ""
        self.nk0, self.helper, self.hrow0, self.local, self.ackwait = int(nk0), helper, int(hrow0), local, ackwait
        self.nk1 = int(nk1)
        self.optouch, self.window, self.exp, self.wwin = optouch, window, exp, int(wwin)
        self.hint, self.lag, self.fwin = hint, int(lag), int(fwin)
        self.downearly, self.b0, self.tight = downearly, b0, tight
        self.nww, self.wotouch = int(nww), wotouch
        self.nwn = 16 - self.nww
        self.incr, self.bump, self.outf, self.nkpre, self.clag = incr, bump, outf, int(nkpre), int(clag)
        self.slots = {}
        self.presetup = presetup
        self.hml, self.fml, self.fmk = int(hml), int(fml), int(fmk)
        self.nva = int(nva)
        self.hslow = int(hslow)
        self.xts = xts
        self.vtlb = vtlb
        self.dflag = dflag
        self.hsh = int(hsh)
        self.layout = layout
        self.prio = prio
        self.prew = prew
        self.xth, self.ytouch = int(xth), ytouch
        self.hdepth = int(hdepth)
        self.micro, self.early = micro, early
        self.fold = fold
        self.tog, self.csleep = int(tog), int(csleep)
        self.clean, self.fpre, self.wpre = clean, int(fpre), int(wpre)
        self.barx, self.hdown = barx, hdown
        self.wont, self.fnt = wont, fnt
        self.hr = int(hr)
        self.wopair, self.frot, self.wk0 = wopair, frot, int(wk0)
        self.nrep = int(nrep)
        self.hmode, self.hsleep, self.fchk, self.fwin0, self.fk0 = hmode, int(hsleep), int(fchk), int(fwin0), int(fk0)
        self.hall, self.tlb, self.cpt = hall, tlb, cpt
        self.hpub, self.fpub, self.nth, self.nlate, self.hgu = hpub, fpub, int(nth), int(nlate), int(hgu)
        self.nv1, self.hwin, self.idledma = int(nv1), int(hwin), idledma and self.nww < 8
        self.nwaves = max(self.nwn, 9) + 1
        self.nh = (4 if self.nwn == 8 and micro else 5) if self.nwn <= 10 else 6
        self.lds = int(lds) if lds else LDS_BYTES
        self.nvg = int(nvg)

    def stamp(self, i):
        key = self.sec + str(i)
        if self.probe == key:
            self.a("s_memrealtime s[84:85]")
        if self.diag and key in self.stamps:
            r = self.slot(i)
            self.a(f"s_memrealtime s[{r}:{r + 1}]")

    def slot(self, i):
        if i not in self.slots:
            self.slots[i] = ST0 + 4 + 2 * len(self.slots)
            assert self.slots[i] <= 94, "at most six stamp slots"
        return self.slots[i]

    def count(self, i):
        if self.diag and self.stamps is not None and ("n" + self.sec + str(i)) in self.stamps:
            self.a(f"s_add_u32 s{self.slot(i)}, {sSPIN}, 1")

    def end(self):
        self.a("s_branch L_exit" if self.diag else "s_endpgm")

    def bf16r(self, d, x):
        self.a(f"v_cvt_pk_bf16_f32 {vr(d)}, 0, {vr(x)}")

    def unpack(self, d, s, n):
        for i in range(n):
            self.a(f"v_lshlrev_b32 {vr(d + 2 * i)}, 16, {vr(s + i)}\nv_and_b32 {vr(d + 2 * i + 1)}, {sHI}, {vr(s + i)}")

    def dppred(self, op, regs, mods):
        for mod in mods:
            for r in regs:
                self.a(f"{op}_dpp {vr(r)}, {vr(r)}, {vr(r)} {mod} {FULL}")

    def redrows(self, op, regs, tmp):
        a = self.a
        for sw in ("v_permlane16_swap_b32", "v_permlane32_swap_b32"):
            for i, r in enumerate(regs):
                a(f"v_mov_b32 {vr(tmp + i)}, {vr(r)}")
            for i, r in enumerate(regs):
                a(f"{sw} {vr(r)}, {vr(tmp + i)}")
            for i, r in enumerate(regs):
                a(f"{op} {vr(r)}, {vr(r)}, {vr(tmp + i)}")

    def red8x(self, op, regs, tmp):
        self.dppred(op, regs, ("quad_perm:[1,0,3,2]", "quad_perm:[2,3,0,1]", "row_half_mirror"))
        self.redrows(op, regs, tmp)

    def selectors(self, sel, t0, nm, bits=2):
        a = self.a
        a(f"v_and_b32 {vr(t0)}, 1, v1")
        a(f"v_cmp_eq_u32 vcc, 1, {vr(t0)}")
        a(f"v_mov_b32 {vr(t0 + 1)}, 0x0c0c0100\nv_mov_b32 {vr(t0 + 2)}, 0x01000c0c")
        a(f"v_cndmask_b32 {vr(t0 + 1)}, {vr(t0 + 1)}, {vr(t0 + 2)}, vcc")
        a(f"v_mov_b32 {vr(t0 + 2)}, 0x0c0c0302\nv_mov_b32 {vr(t0 + 3)}, 0x03020c0c")
        a(f"v_cndmask_b32 {vr(t0 + 2)}, {vr(t0 + 2)}, {vr(t0 + 3)}, vcc")
        a(f"v_bfe_u32 {vr(t0)}, v1, 1, {bits}")
        a(f"v_mov_b32 {vr(t0 + 3)}, 0x0c0c0c0c")
        for m in range(nm):
            a(f"v_cmp_eq_u32 vcc, {m}, {vr(t0)}")
            a(f"v_cndmask_b32 {vr(sel + 2 * m)}, {vr(t0 + 3)}, {vr(t0 + 1)}, vcc")
            a(f"v_cndmask_b32 {vr(sel + 2 * m + 1)}, {vr(t0 + 3)}, {vr(t0 + 2)}, vcc")

    def tag_consts(self):
        a = self.a
        a(f"s_add_u32 {sT}, {sT}, {TAGC}")
        a(f"s_lshr_b32 {sT1}, {sT}, 8\ns_lshr_b32 {sT2}, {sT}, 16\ns_lshr_b32 {sT3}, {sT}, 24")
        a(f"s_mov_b32 {sSELA}, 0x0c0c0400\ns_mov_b32 {sSELB}, 0x04000c0c")

    def tag4(self, d, mask):
        for i, s in enumerate((sT, sT1, sT2, sT3)):
            self.a(f"v_bfi_b32 {vr(d + i)}, {vr(mask)}, {vr(d + i)}, {s}")

    def chk(self, t, gs):
        a = self.a
        for n, g in enumerate(gs):
            a(f"v_perm_b32 {vr(t + 2 * n)}, {vr(g + 1)}, {vr(g)}, {sSELA}")
            a(f"v_perm_b32 {vr(t + 2 * n + 1)}, {vr(g + 3)}, {vr(g + 2)}, {sSELB}")
        for n, g in enumerate(gs):
            a(f"v_bitop3_b32 {vr(t + 2 * n)}, {vr(t + 2 * n)}, {vr(t + 2 * n + 1)}, {sT} bitop3:0x56")
        rest = [t + 2 * n for n in range(1, len(gs))]
        while rest:
            if len(rest) >= 2:
                a(f"v_or3_b32 {vr(t)}, {vr(t)}, {vr(rest[0])}, {vr(rest[1])}")
                rest = rest[2:]
            else:
                a(f"v_or_b32 {vr(t)}, {vr(t)}, {vr(rest[0])}")
                rest = []
        a(f"v_cmp_ne_u32 vcc, 0, {vr(t)}")

    def poll(self, loads, check, between=None, first=True):
        a = self.a
        self.uid += 1
        L = self.cur_poll = f"L_poll{self.uid}"
        a(f"s_mov_b32 {sSPIN}, 0")
        if between:
            if first:
                loads()
            between()
            a(f"s_branch {L}w")
        a(f"{L}:")
        loads()
        a(f"s_add_u32 {sSPIN}, {sSPIN}, 1\ns_cmp_gt_u32 {sSPIN}, {SPIN}\ns_cbranch_scc1 L_bail")
        a(f"{L}w:\ns_waitcnt vmcnt(0)\n{L}c:")
        check()
        a(f"s_cbranch_vccnz {L}")

    def spoll(self, loads, check, keep=0):
        a = self.a
        self.uid += 1
        L = f"L_sp{self.uid}"
        a(f"s_mov_b32 {sSPIN}, 0\n{L}:")
        loads()
        a(f"s_add_u32 {sSPIN}, {sSPIN}, 1\ns_cmp_gt_u32 {sSPIN}, {SPIN}\ns_cbranch_scc1 L_bail\ns_waitcnt lgkmcnt({keep})")
        check()
        a(f"s_cbranch_scc1 {L}")

    def lds_wait(self, word, val, va, vt, tight=False):
        a = self.a
        self.uid += 1
        L = f"L_lw{self.uid}"
        a(f"v_mov_b32 {vr(va)}, {word}\ns_mov_b32 {sSPIN}, 0\n{L}:")
        a(f"ds_read_b32 {vr(vt)}, {vr(va)}\ns_add_u32 {sSPIN}, {sSPIN}, 1\ns_cmp_gt_u32 {sSPIN}, {SPIN * 8}\ns_cbranch_scc1 L_bail")
        a(f"s_waitcnt lgkmcnt(0)\nv_readfirstlane_b32 {sA}, {vr(vt)}\ns_cmp_ge_u32 {sA}, {val}\n" + (f"s_cbranch_scc0 {L}" if tight and self.tight else f"s_cbranch_scc1 {L}d\ns_sleep 1\ns_branch {L}\n{L}d:"))

    def lds_inc(self, word, va, vt):
        self.a(f"v_mov_b32 {vr(va)}, {word}\nv_mov_b32 {vr(vt)}, 1\ns_mov_b64 exec, 1\nds_add_u32 {vr(va)}, {vr(vt)}\ns_mov_b64 exec, -1")

    def tr_reduce4(self, v, rots):
        a = self.a
        a(f"v_permlane32_swap_b32 {vr(v)}, {vr(v + 1)}")
        a(f"v_permlane32_swap_b32 {vr(v + 2)}, {vr(v + 3)}")
        a(f"v_add_f32 {vr(v)}, {vr(v)}, {vr(v + 1)}")
        a(f"v_add_f32 {vr(v + 2)}, {vr(v + 2)}, {vr(v + 3)}")
        a(f"v_permlane16_swap_b32 {vr(v)}, {vr(v + 2)}")
        a(f"v_add_f32 {vr(v)}, {vr(v)}, {vr(v + 2)}")
        self.dppred("v_add_f32", [v], [f"row_ror:{r}" for r in rots])

    def ln_finish(self, t, mean, var):
        a = self.a
        self.bf16r(var, var)
        self.bf16r(t, mean)
        a(f"v_add_f32 {vr(var)}, 0x3727c5ac, {vr(var)}")
        self.bf16r(var, var)
        a(f"v_sqrt_f32 {vr(var)}, {vr(var)}")
        self.bf16r(t + 2, var)
        a(f"v_rcp_f32 {vr(t + 4)}, {vr(t + 2)}")

    def ln_apply2(self, F, t, P, tmp):
        a = self.a
        a(f"v_pk_add_f32 {vr(F, 2)}, {vr(F, 2)}, {vr(t, 2)} op_sel_hi:[1,0] neg_lo:[0,1] neg_hi:[0,1]")
        self.bf16r(F, F)
        self.bf16r(F + 1, F + 1)
        a(f"v_pk_mul_f32 {vr(tmp, 2)}, {vr(F, 2)}, {vr(t + 4, 2)} op_sel_hi:[1,0]")
        a(f"v_pk_fma_f32 {vr(F, 2)}, {vr(tmp, 2)}, {vr(t + 2, 2)}, {vr(F, 2)} op_sel_hi:[1,0,1] neg_lo:[1,0,0] neg_hi:[1,0,0]")
        a(f"v_pk_fma_f32 {vr(F, 2)}, {vr(F, 2)}, {vr(t + 4, 2)}, {vr(tmp, 2)} op_sel_hi:[1,0,1]")
        a(f"v_cvt_pk_bf16_f32 {vr(P)}, {vr(F)}, {vr(F + 1)}")

    def gemv16(self, D, X, SEL, B, A, steps):
        a = self.a
        for t in range(steps):
            for m in range(2):
                a(f"v_perm_b32 {vr(A + 2 * t + m)}, {vr(X + t // 2)}, {vr(X + t // 2)}, {vr(SEL + 2 * m + (t & 1))}")
            if t >= 1:
                u = t - 1
                a(f"v_mfma_f32_16x16x16_bf16 {vr(D, 4)}, {vr(A + 2 * u, 2)}, {vr(B + 2 * u, 2)}, {vr(D, 4) if u else 0}")
        u = steps - 1
        a(f"v_mfma_f32_16x16x16_bf16 {vr(D, 4)}, {vr(A + 2 * u, 2)}, {vr(B + 2 * u, 2)}, {vr(D, 4)}")

    def role(self, lw, lh, lf, ln):
        a = self.a
        a(f"s_and_b32 {sA}, {sH}, 3\ns_lshl_b32 {sF}, {sA}, 2\ns_lshr_b32 {sA}, {sJ}, 2\ns_lshl_b32 {sA}, {sA}, 1\ns_add_u32 {sF}, {sF}, {sA}")
        a(f"s_and_b32 {sA}, {sJ}, 1\ns_add_u32 {sF}, {sF}, {sA}")
        a(f"s_bitcmp0_b32 {sJ}, 1\ns_cbranch_scc1 {lw}")
        a(f"s_cmp_lt_u32 {sF}, 8\ns_cbranch_scc1 {lh}")
        a(f"s_sub_u32 {sA}, {sF}, 8")
        a(f"s_min_u32 {sB}, {sXCD}, 3\ns_mul_i32 {sF}, {sXCD}, 5\ns_add_u32 {sF}, {sF}, {sB}\ns_add_u32 {sF}, {sF}, {sA}")
        a(f"s_cmp_lt_u32 {sXCD}, 3\ns_cselect_b32 {sB}, 6, 5\ns_cmp_lt_u32 {sA}, {sB}\ns_cbranch_scc1 {lf}")
        a(f"s_branch {ln}")

    def build(self):
        a = self.a
        a(f"{KN}:")
        if self.diag or self.pad:
            a(f"s_memrealtime s[{ST0}:{ST0 + 1}]")
        a("s_load_dwordx16 s[4:19], s[0:1], 0\ns_load_dwordx8 s[20:27], s[0:1], 64")
        a("s_cmp_ge_u32 s2, 256\ns_cbranch_scc1 L_bail")
        if self.diag:
            for i in range(2, 8):
                a(f"s_mov_b32 s{ST0 + 2 * i}, 0")
        a(f"v_readfirstlane_b32 {sW}, v0\nv_and_b32 v1, 63, v0")
        a(f"s_and_b32 {sXCD}, s2, 7\ns_lshr_b32 {sJ}, s2, 3\ns_lshr_b32 {sH}, s2, 6\ns_lshl_b32 {sA}, {sXCD}, 2\ns_add_u32 {sH}, {sH}, {sA}")
        a(f"s_and_b32 {sJ}, {sJ}, 7\ns_lshr_b32 {sW}, {sW}, 6\ns_mov_b32 {sHI}, 0xffff0000")
        a(f"s_bitcmp0_b32 {sJ}, 1\ns_cselect_b32 {sNACT}, {self.nww}, {self.nwn}")
        self.sw = sW if not self.diag else "s97"
        if self.layout == "sc":
            a(f"s_cmp_eq_u32 {sW}, 0\ns_cbranch_scc1 L_comm")
            parts = (("s", self.stream_early), ("s", self.idle_early), ("c", self.comm_early), ("c", self.comm), ("s", self.stream))
        elif self.layout == "cs":
            a(f"s_cmp_lg_u32 {sW}, 0\ns_cbranch_scc1 L_stream")
            parts = (("c", self.comm_early), ("s", self.stream_early), ("s", self.idle_early), ("c", self.comm), ("s", self.stream))
        else:
            a(f"s_cmp_lg_u32 {sW}, 0\ns_cbranch_scc1 L_stream")
            parts = (("c", self.comm_early), ("c", self.comm), ("s", self.stream_early), ("s", self.stream), ("s", self.idle_early))
        for self.sec, part in parts + (("w", self.role_wo), ("f", self.role_ffn)):
            part()
        a("L_none:")
        self.end()
        if self.diag:
            a("L_exit:")
            a("s_mov_b64 exec, -1\ns_waitcnt vmcnt(0) lgkmcnt(0)")
            a(f"s_memrealtime s[{ST0 + 2}:{ST0 + 3}]\ns_waitcnt lgkmcnt(0)")
            a(f"s_mul_i32 {sA}, s2, 12\ns_add_u32 {sA}, {sA}, {sW}\ns_lshl_b32 {sA}, {sA}, 6\ns_add_u32 {sA}, {sA}, {WS_ST}")
            for i in range(16):
                src = {0: f"s{ST0}", 15: f"s{ST0 + 2}"}.get(i, f"s{self.slots[i]}" if i in self.slots else "0")
                a(f"v_mov_b32 v{4 + i}, {src}")
            a(f"v_mov_b32 v2, {sA}\ns_mov_b64 exec, 1")
            for i in range(4):
                a(f"global_store_dwordx4 v2, v[{4 + 4 * i}:{7 + 4 * i}], {sWS} offset:{16 * i}")
        a("L_bail:\ns_endpgm")
        a("L_codeend:")
        self.nops = a.fix_hazards()
        txt = HEADER
        txt += f"; @launch grid=(256,1,1) block=({64 * self.nwaves},1,1) lds={self.lds}\n"
        txt += f'.amdgcn_target "amdgcn-amd-amdhsa--gfx950"\n.text\n.globl {KN}\n.p2align 8\n.type {KN},@function\n'
        txt += a.text() + "\n"
        if self.prefetch:
            txt += ".fill 256, 4, 0xbf810000\n"
        txt += f""".section .rodata,"a"
.p2align 6
.amdhsa_kernel {KN}
  .amdhsa_next_free_vgpr {self.nvg}
  .amdhsa_next_free_sgpr 102
  .amdhsa_accum_offset {self.nvg}
  .amdhsa_group_segment_fixed_size 0
  .amdhsa_kernarg_size 96
  .amdhsa_user_sgpr_count 2
  .amdhsa_user_sgpr_kernarg_segment_ptr 1
  .amdhsa_system_sgpr_workgroup_id_x 1
.end_amdhsa_kernel
"""
        return txt

    def comm_early(self):
        a = self.a
        wnt = self.wnt
        G, BB = 2, 3
        XS, XO, W = 8, 16, 24
        a("L_comm:\ns_setprio 3")
        a(f"v_lshrrev_b32 v{G}, 4, v1\nv_bfe_u32 v{BB}, v1, 3, 1")
        a(f"v_and_b32 v5, 7, v1\nv_lshl_add_u32 v4, v{G}, 3, v5\nv_lshlrev_b32 v4, 5, v4\nv_lshl_add_u32 v4, v{BB}, 10, v4")
        a(f"s_lshl_b32 {sA}, {sJ}, 7\nv_lshl_add_u32 v5, v5, 2, {sA}\nv_lshl_add_u32 v5, v{G}, 5, v5\nv_lshl_add_u32 v5, v{BB}, 10, v5")
        a(f"s_lshl_b32 {sA}, {sJ}, 19\ns_lshl_b32 {sB}, {sH}, 8\ns_add_u32 {sA}, {sA}, {sB}\ns_movk_i32 {sB}, 0x2000")
        a(f"v_and_b32 v6, 15, v1\nv_lshl_add_u32 v6, v6, 4, {sA}\nv_lshl_add_u32 v6, v{G}, 17, v6")
        a("s_waitcnt lgkmcnt(0)")
        self.stamp(1)
        a(f"global_load_dwordx4 {vr(XS, 4)}, v4, {sX}\nglobal_load_dwordx4 {vr(XS + 4, 4)}, v4, {sX} offset:16")
        a(f"global_load_dword {vr(XO)}, v5, {sX}")
        for t in range(16):
            a(f"global_load_dwordx4 {vr(W + 4 * t, 4)}, v6, {sWQ} {wnt}")
            if t < 15:
                a(f"v_add_u32 v6, {sB}, v6")
        if self.b0:
            a("s_barrier")
        if self.layout == "cs":
            a("s_branch L_comm2")

    def comm(self):
        a = self.a
        wnt = self.wnt
        XS, XO, W, F, SEL, ST, X, A, D, MK = 8, 16, 24, 88, 112, 120, 16, 88, 96, 100
        a(f"L_comm2:\ns_load_dword {sT}, {sWS}, 0")
        a(f"v_mov_b32 v6, {L_CNT}\nv_mov_b32 v104, 0\nv_mov_b32 v105, 0\nv_mov_b32 v106, 0\nv_mov_b32 v107, 0")
        a("ds_write_b128 v6, v[104:107]\nds_write_b128 v6, v[104:107] offset:16\nds_write_b32 v6, v104 offset:32")
        a("v_lshlrev_b32 v6, 4, v1")
        if self.fold:
            a("v_mov_b32 v108, 0x3f803f80\nv_mov_b32 v109, 0x3f803f80\nv_mov_b32 v110, 0x3f803f80\nv_mov_b32 v111, 0x3f803f80")
            a(f"ds_write_b128 v6, v[108:111] offset:{L_ONE}")
        for o in range(self.nww // 2, self.nh):
            a(f"ds_write_b128 v6, v[104:107] offset:{L_OP + 1024 * o}")
        a(f"v_min_u32 v6, 23, v1\nv_cmp_gt_u32 vcc, 12, v6\nv_lshlrev_b32 v6, 2, v6\nv_mov_b32 v105, 0xff800000\nv_cndmask_b32 v105, v104, v105, vcc\nds_write_b32 v6, v105 offset:{L_MAX}")
        self.selectors(SEL, 108, 4)
        a("s_waitcnt vmcnt(17)")
        self.unpack(F, XS, 8)
        self.stamp(2)
        S = 7
        a(f"v_pk_add_f32 v[104:105], {vr(F, 2)}, {vr(F + 2, 2)}\nv_pk_add_f32 v[106:107], {vr(F + 4, 2)}, {vr(F + 6, 2)}")
        for i in range(2):
            a(f"v_pk_add_f32 v[104:105], v[104:105], {vr(F + 8 + 4 * i, 2)}\nv_pk_add_f32 v[106:107], v[106:107], {vr(F + 10 + 4 * i, 2)}")
        a(f"v_pk_add_f32 v[104:105], v[104:105], v[106:107]\nv_add_f32 {vr(S)}, v104, v105")
        self.red8x("v_add_f32", [S], 104)
        a(f"v_mul_f32 {vr(S)}, 0x3b000000, {vr(S)}")
        for i in range(16):
            a(f"v_sub_f32 {vr(F + i)}, {vr(F + i)}, {vr(S)}")
        a(f"v_pk_mul_f32 v[104:105], {vr(F, 2)}, {vr(F, 2)}\nv_pk_mul_f32 v[106:107], {vr(F + 2, 2)}, {vr(F + 2, 2)}")
        for i in range(1, 4):
            a(f"v_pk_fma_f32 v[104:105], {vr(F + 4 * i, 2)}, {vr(F + 4 * i, 2)}, v[104:105]")
            a(f"v_pk_fma_f32 v[106:107], {vr(F + 4 * i + 2, 2)}, {vr(F + 4 * i + 2, 2)}, v[106:107]")
        a("v_pk_add_f32 v[104:105], v[104:105], v[106:107]\nv_add_f32 v108, v104, v105")
        self.red8x("v_add_f32", [108], 104)
        a("v_mul_f32 v108, 0x3b000000, v108")
        self.ln_finish(ST, S, 108)
        a("s_waitcnt vmcnt(16)")
        self.unpack(F, XO, 1)
        self.ln_apply2(F, ST, 8, 10)
        a("s_waitcnt lgkmcnt(0)")
        self.tag_consts()
        for u in range(8):
            a(f"v_mov_b32_dpp {vr(X + u)}, v8 row_newbcast:{u} row_mask:0xf bank_mask:0x3")
        for u in range(8):
            a(f"v_mov_b32_dpp {vr(X + u)}, v8 row_newbcast:{8 + u} row_mask:0xf bank_mask:0xc")
        a(f"v_mov_b32 v{MK}, 0xffffff00")

        def abuild(t):
            for m in range(4):
                a(f"v_perm_b32 {vr(A + 4 * (t & 1) + m)}, {vr(X + t // 2)}, {vr(X + t // 2)}, {vr(SEL + 2 * m + (t & 1))}")
        abuild(0)
        for t in range(16):
            if t < 15:
                abuild(t + 1)
            a(f"s_waitcnt vmcnt({15 - t})")
            a(f"v_mfma_f32_16x16x32_bf16 {vr(D, 4)}, {vr(A + 4 * (t & 1), 4)}, {vr(W + 4 * t, 4)}, {vr(D, 4) if t else 0}")
        a(f"s_lshl_b32 {sA}, {sH}, 13\ns_lshl_b32 {sB}, {sJ}, 9\ns_add_u32 {sA}, {sA}, {sB}\ns_add_u32 {sA}, {sA}, {WS_QP}")
        a(f"v_and_b32 v4, 15, v1\nv_lshl_add_u32 v4, v4, 5, {sA}\nv_bfe_u32 v5, v1, 4, 1\nv_lshl_add_u32 v4, v5, 4, v4")
        a("v_lshrrev_b32 v5, 5, v1\nv_lshl_add_u32 v4, v5, 12, v4")
        a(f"s_getreg_b32 {sC}, hwreg(HW_REG_XCC_ID, 0, 4)\ns_and_b32 {sD}, {sT}, 0xffffff00\ns_or_b32 {sC}, {sC}, {sD}")
        a(f"s_lshl_b32 {sA}, {sXCD}, 7\ns_add_u32 {sA}, {sA}, {WS_XT}\ns_lshr_b32 {sB}, s2, 3\ns_lshl_b32 {sB}, {sB}, 2\ns_add_u32 {sB}, {sB}, {sA}")
        a(f"v_mov_b32 v6, {sB}\nv_mov_b32 v7, {sC}")
        for i in range(4):
            a(f"v_add_u32 {vr(D + i)}, 0x80, {vr(D + i)}")
        self.tag4(D, MK)
        a(f"global_store_dwordx4 v4, {vr(D, 4)}, {sWS} sc1")
        a(f"s_mov_b64 exec, 1\nglobal_store_dword v6, v7, {sWS} sc1\ns_mov_b64 exec, -1")
        self.stamp(3)
        if self.probe in ("smax", "smin", "smed"):
            a(f"s_lshl_b32 {sB}, s2, 2\ns_add_u32 {sB}, {sB}, {WS_ST}\nv_mov_b32 v6, {sB}\nv_mov_b32 v7, s80\nglobal_store_dword v6, v7, {sWS} sc1")
        a(f"v_and_b32 v5, 31, v1\nv_lshl_add_u32 v5, v5, 2, {sA}")
        a(f"s_lshl_b32 {sA}, {sH}, 13\ns_lshr_b32 {sB}, {sJ}, 2\ns_lshl_b32 {sB}, {sB}, 12\ns_add_u32 {sA}, {sA}, {sB}\ns_add_u32 {sA}, {sA}, {WS_QP}")
        a(f"v_lshl_add_u32 v4, v1, 4, {sA}")
        a("s_barrier\ns_barrier")
        self.stamp(4)
        Gq, TT = 8, 24

        def loads():
            for n in range(4):
                a(f"global_load_dwordx4 {vr(Gq + 4 * n, 4)}, v4, {sWS} offset:{1024 * n} sc1")
            a(f"global_load_dword v32, v5, {sWS} sc1")

        def between():
            if self.tlb:
                a(f"v_and_b32 v35, 1, v1\nv_mul_u32_u24 v36, {512 * 2752 - 4}, v35\ns_lshl_b32 {sA}, {sXCD}, 19\nv_mul_u32_u24 v37, {(1 << 19) - 4}, v35\nv_add_u32 v37, {sA}, v37")
                a(f"v_lshlrev_b32 v35, 2, v35\ns_mov_b64 exec, 3")
                a(f"global_load_dword v38, v36, {sWG}\nglobal_load_dword v39, v36, {sWU}\nglobal_load_dword v40, v36, {sWD}")
                a(f"global_load_dword v41, v37, {sWO}\nglobal_load_dword v42, v35, {sOUT}\ns_mov_b64 exec, -1")
            if self.optouch:
                a(f"s_lshl_b32 {sA}, {sH}, 12\ns_lshl_b32 {sB}, {sJ}, 9\ns_add_u32 {sA}, {sA}, {sB}\ns_add_u32 {sA}, {sA}, {WS_OP}")
                a(f"v_and_b32 v33, 7, v1\nv_lshl_add_u32 v33, v33, 6, {sA}\nglobal_load_dword v34, v33, {sWS} sc1")
            a("s_barrier")
        self.poll(loads, lambda: self.chk(TT, [Gq + 4 * n for n in range(4)]), between=between)
        self.stamp(5)
        self.count(11)
        a(f"v_cmp_ne_u32 vcc, {sC}, v32")
        for i in range(16):
            a(f"v_and_b32 {vr(Gq + i)}, {vr(MK)}, {vr(Gq + i)}")
        a(f"s_cmp_eq_u64 vcc, 0\ns_cselect_b32 {sA}, {3 if self.local else 1}, 1")
        if self.diag and "loc" in self.stamps and not self.xts:
            a(f"s_or_b32 s{self.slot(13)}, {sA}, 4")
        if "mixloc" in self.exp:
            a(f"s_bitcmp1_b32 {sJ}, 0\ns_cselect_b32 {sA}, 1, {sA}")
        for i in range(4):
            a(f"v_add_f32 {vr(Gq + i)}, {vr(Gq + i)}, {vr(Gq + 4 + i)}\nv_add_f32 {vr(Gq + 8 + i)}, {vr(Gq + 8 + i)}, {vr(Gq + 12 + i)}")
        for i in range(4):
            a(f"v_add_f32 {vr(Gq + i)}, {vr(Gq + i)}, {vr(Gq + 8 + i)}")
        a(f"v_permlane32_swap_b32 {vr(Gq)}, {vr(Gq + 2)}\nv_permlane32_swap_b32 {vr(Gq + 1)}, {vr(Gq + 3)}")
        a(f"v_add_f32 {vr(Gq)}, {vr(Gq)}, {vr(Gq + 2)}\nv_add_f32 {vr(Gq + 1)}, {vr(Gq + 1)}, {vr(Gq + 3)}")
        a(f"v_cvt_pk_bf16_f32 {vr(Gq)}, {vr(Gq)}, {vr(Gq + 1)}")
        a("v_and_b32 v4, 31, v1\nv_lshlrev_b32 v4, 3, v4\nv_lshrrev_b32 v5, 5, v1\nv_lshl_add_u32 v4, v5, 2, v4")
        a(f"v_mov_b32 v6, {L_QF}\nv_mov_b32 v7, {sA}\ns_mov_b32 {sLOC}, {sA}")
        a(f"ds_write_b32 v4, {vr(Gq)} offset:{L_Q}\nds_write_b32 v6, v7 offset:{L_LOC - L_QF}\nds_write_b32 v6, v7")
        a("s_setprio 0")
        self.stamp(6)
        self.role("L_none" if self.idledma else "L_cwo", "L_chelp", "L_cffn", "L_cmon")

        def dma_loop(name, base, n0, n1, mstep, two=None, win=None):
            a(f"s_mov_b32 {sC}, {n0}\n{name}:")
            if win is not None:
                a(f"s_waitcnt vmcnt({win})")
            a(f"s_mov_b32 m0, {sD}\ns_add_u32 {sC}, {sC}, 1")
            a(f"global_load_lds_dwordx4 v4, {base} {wnt}")
            if two:
                a(f"s_add_u32 m0, {sD}, {L_U - L_G}\ns_add_u32 {sD}, {sD}, {mstep}")
                a(f"global_load_lds_dwordx4 v4, {two} {wnt}")
            else:
                a(f"s_add_u32 {sD}, {sD}, {mstep}")
            a(f"v_add_u32 v4, {sB}, v4\ns_cmp_lt_u32 {sC}, {n1}\ns_cbranch_scc1 {name}")

        a("L_cwo:")
        if "y" in self.prew:
            a(f"s_lshl_b32 {sA}, {sXCD}, 11\ns_lshl_b32 {sB}, {sF}, 7\ns_add_u32 {sA}, {sA}, {sB}\ns_add_u32 {sA}, {sA}, {WS_YP}\ns_not_b32 {sB}, {sT}")
            a(f"v_and_b32 v4, 7, v1\nv_lshl_add_u32 v4, v4, 4, {sA}\nv_bfe_u32 v5, v1, 3, 1\nv_lshl_add_u32 v4, v5, 14, v4")
            a(f"v_mov_b32 v44, {sB}\nv_mov_b32 v45, {sB}\nv_mov_b32 v46, {sB}\nv_mov_b32 v47, {sB}")
            a(f"s_mov_b64 exec, 0xffff\nglobal_store_dwordx4 v4, v[44:47], {sWS} sc1\ns_mov_b64 exec, -1")
        a(f"s_lshl_b32 {sA}, {sXCD}, 19\ns_lshl_b32 {sB}, {sF}, 6\ns_add_u32 {sB}, {sA}, {sB}")
        a(f"v_lshrrev_b32 v4, 2, v1\nv_lshlrev_b32 v4, 10, v4\nv_and_b32 v5, 3, v1\nv_lshl_add_u32 v4, v5, 4, v4\nv_add_u32 v8, {sB}, v4")
        if self.wopair:
            a(f"s_and_b32 {sD}, {sF}, 1\ns_lshl_b32 {sB}, {sD}, 18\nv_add_u32 v8, {sB}, v8\ns_lshl_b32 {sB}, {sD}, 19\ns_sub_u32 {sB}, 0x40000, {sB}\nv_add_u32 v24, {sB}, v8")
            a(f"s_mul_i32 {sD}, {sD}, {16 * GUP}\ns_sub_u32 {sC}, {L_W + 16 * GUP}, {sD}\ns_add_u32 {sD}, {sD}, {L_W}")
            for n in range(1, 16):
                a(f"v_add_u32 v{8 + n}, {n * 0x4000}, v8\nv_add_u32 v{24 + n}, {n * 0x4000}, v24")
        else:
            for n in range(1, 32):
                a(f"v_add_u32 v{8 + n}, {n * 0x4000}, v8")
        a(f"s_lshl_b32 {sB}, {sF}, 14\ns_add_u32 {sA}, {sA}, {sB}\ns_add_u32 {sA}, {sA}, 4096\nv_lshl_add_u32 v4, v1, 6, {sA}\nv_add_u32 v5, 0x2000, v4")
        self.lds_wait(L_VCNT, sNACT, 6, 7)
        self.stamp(12)
        if "nowo" in self.exp:
            pass
        elif self.wopair:
            for k in range(32):
                a(f"s_add_u32 m0, {sD if k < 16 else sC}, {(k & 15) * GUP}")
                a(f"s_waitcnt vmcnt({self.wwin})" if k >= self.wk0 else "s_nop 0")
                a(f"global_load_lds_dwordx4 v{8 + k}, {sWO} {self.wont}")
        elif self.clean:
            a(f"s_lshl_b32 {sA}, {sXCD}, 19\ns_lshl_b32 {sB}, {sF}, 14\ns_add_u32 {sA}, {sA}, {sB}\nv_lshl_add_u32 v4, v1, 7, {sA}\nv_add_u32 v5, 0x2000, v4")
            a(f"global_load_dword v40, v4, {sWO}\nglobal_load_dword v41, v5, {sWO}")
            for k, n in enumerate(list(range(16, 32)) + list(range(16))):
                if k == self.wpre:
                    self.lds_wait(L_PUB, 1, 6, 7, tight=True)
                a(f"s_mov_b32 m0, {L_W + n * GUP}\ns_nop 0\nglobal_load_lds_dwordx4 v{8 + n}, {sWO} {self.wont}")
        else:
            for i in range(4 if self.wotouch else 0):
                a(f"global_load_dword v{40 + i}, v{4 + i // 2}, {sWO} offset:{-4096 if i % 2 == 0 else 0}")
            for k, n in enumerate(list(range(16, 32)) + list(range(16))):
                a(f"s_mov_b32 m0, {L_W + n * GUP}")
                a(f"s_waitcnt vmcnt({self.wwin})" if k >= 8 and self.wotouch else "s_nop 0")
                a(f"global_load_lds_dwordx4 v{8 + n}, {sWO} {self.wont}")
        self.stamp(13)
        a(f"v_mov_b32 v6, {L_DMA}\nv_mov_b32 v7, 1\ns_waitcnt vmcnt(0)\nds_write_b32 v6, v7")
        self.stamp(14)
        if self.dflag:
            a(f"s_lshl_b32 {sA}, {sXCD}, 7\ns_lshl_b32 {sB}, {sF}, 2\ns_add_u32 {sA}, {sA}, {sB}\ns_add_u32 {sA}, {sA}, {WS_DT}")
            a(f"v_mov_b32 v6, {sA}\nv_mov_b32 v7, {sT}\ns_mov_b64 exec, 1\ns_cmp_eq_u32 {sLOC}, 3\ns_cbranch_scc1 L_cwl")
            a(f"global_store_dword v6, v7, {sWS} sc1")
            self.end()
            a(f"L_cwl:\nglobal_store_dword v6, v7, {sWS}")
        if self.nth and "noffn" not in self.exp:
            ni = (512 - self.hrow0) // 128
            self.gu_touch_addr(self.hrow0, 8 * ni, ni)
            a(f"s_lshl_b32 {sA}, {sXCD}, 9\ns_add_u32 {sA}, {sA}, {WS_ML}\nv_and_b32 v4, 31, v1\nv_lshl_add_u32 v4, v4, 4, {sA}")

            def enough():
                self.chk(44, [40])
                a(f"s_bcnt0_i32_b32 {sA}, vcc_lo\ns_cmp_lt_u32 {sA}, {self.nth}\ns_cselect_b64 vcc, -1, 0")
            self.poll(lambda: a(f"global_load_dwordx4 v[40:43], v4, {sWS} sc1"), enough)
            a(f"s_cmp_gt_u32 {sA}, {self.nlate}\ns_cbranch_scc1 L_none")
            for i in range(ni):
                a(f"global_load_dword v{56 + 2 * i}, v{8 + i}, {sWG}\nglobal_load_dword v{57 + 2 * i}, v{8 + i}, {sWU}")
        self.end()

        a("L_chelp:")
        if self.helper:
            self.helper_code()
        self.end()

        a("L_cffn:")
        if "f" in self.prew:
            a(f"s_lshl_b32 {sA}, {sF}, 7\ns_add_u32 {sA}, {sA}, {WS_FP}\ns_not_b32 {sB}, {sT}")
            a(f"v_lshrrev_b32 v4, 3, v1\nv_mul_u32_u24 v4, {FP_STRIDE}, v4\nv_and_b32 v5, 7, v1\nv_lshl_add_u32 v4, v5, 4, v4\nv_add_u32 v4, {sA}, v4")
            a(f"v_mov_b32 v44, {sB}\nv_mov_b32 v45, {sB}\nv_mov_b32 v46, {sB}\nv_mov_b32 v47, {sB}")
            for i in range(4):
                a(f"global_store_dwordx4 v4, v[44:47], {sWS} sc1\nv_add_u32 v4, {8 * FP_STRIDE}, v4")
        a("v_lshrrev_b32 v4, 2, v1\nv_mul_u32_u24 v4, 2752, v4\nv_and_b32 v5, 3, v1\nv_lshl_add_u32 v4, v5, 4, v4")
        a(f"s_lshl_b32 {sA}, {sF}, 6\nv_add_u32 v8, {sA}, v4")
        a(f"s_and_b32 {sD}, {sF}, {1 if self.frot else 0}\ns_mul_i32 {sB}, {sD}, {256 * 2752}\nv_add_u32 v8, {sB}, v8\ns_lshl_b32 {sB}, {sB}, 1\ns_sub_u32 {sB}, {256 * 2752}, {sB}\nv_add_u32 v24, {sB}, v8")
        a(f"s_mul_i32 {sD}, {sD}, {16 * GUP}\ns_sub_u32 {sC}, {L_G + 16 * GUP}, {sD}\ns_add_u32 {sD}, {sD}, {L_G}")
        for n in range(1, 16):
            a(f"v_add_u32 v{8 + n}, {n * 16 * 2752}, v8\nv_add_u32 v{24 + n}, {n * 16 * 2752}, v24")
        a(f"s_lshl_b32 {sA}, {sF}, 15\ns_add_u32 {sA}, {sA}, 4096\nv_lshl_add_u32 v40, v1, 4, {sA}")
        for n in range(1, 4):
            a(f"v_add_u32 v{40 + n}, {n * 8192}, v40")
        a(f"v_mov_b32 v4, {L_HINT}\ns_mov_b32 {sRD}, 0")
        self.lds_wait(*((L_PUB, 1) if self.fpub else (L_VCNT, sNACT)), 6, 7)
        self.stamp(7)
        for k in range(0 if "noffn" in self.exp else 96):
            if k % self.fchk == 0 and k:
                a(f"s_waitcnt lgkmcnt(0)\nv_readfirstlane_b32 {sA}, v5\ns_add_u32 {sA}, {sA}, 1\ns_lshr_b32 {sA}, {sA}, 4\ns_andn2_b32 {sA}, {sA}, {sRD}\ns_cbranch_scc0 L_cf{k}\ns_mov_b32 {sRD}, 1")
                if self.barx:
                    a("s_barrier")
                self.lds_wait(L_YISS, 8, 6, 7)
                a(f"L_cf{k}:")
            if k % self.fchk == 0:
                a("ds_read_b32 v5, v4")
            win = self.fwin0 if k < self.fk0 and not self.clean else self.fwin
            if self.fml and k == self.fmk:
                self.ml_wait(self.fml, 64)
            if self.clean and k == self.fpre:
                self.lds_wait(L_PUB, 1, 6, 7)
            if k < 64:
                a(f"s_add_u32 m0, {sD if k < 32 else sC}, {(L_U - L_G if k & 1 else 0) + ((k >> 1) & 15) * GUP}")
                a(f"s_waitcnt vmcnt({win})" if k > win else "s_nop 0")
                a(f"global_load_lds_dwordx4 v{8 + (k >> 1)}, {sWU if k & 1 else sWG} {self.fnt}")
            else:
                n = k - 64
                off = (n & 7) * 1024 - 4096
                a(f"s_mov_b32 m0, {L_D + n * ROWP - off}\ns_waitcnt vmcnt({win})")
                a(f"global_load_lds_dwordx4 v{40 + (n >> 3)}, {sWD} offset:{off} {wnt}")
        self.stamp(8)
        a(f"s_cmp_lg_u32 {sRD}, 0\ns_cbranch_scc1 L_cf3")
        a(f"v_mov_b32 v6, {L_DMA}\nv_mov_b32 v7, 1\ns_waitcnt vmcnt(0)\nds_write_b32 v6, v7")
        self.stamp(11)
        if self.barx:
            a("s_waitcnt lgkmcnt(0)\ns_barrier")
        a("L_cf3:")
        a(("" if self.fold else "s_barrier\n") + "s_waitcnt vmcnt(32)\ns_barrier\ns_waitcnt vmcnt(0)")
        self.stamp(9)
        a("s_barrier")
        self.end()

        a("L_cmon:")
        if self.clean:
            a(f"s_cmp_lt_u32 {sA}, 6\ns_cbranch_scc1 L_none\ns_mov_b32 {sF}, {sA}")
            a(f"s_lshl_b32 {sB}, {sXCD}, 19\ns_lshl_b32 {sC}, {sF}, 15\ns_add_u32 {sB}, {sB}, {sC}\ns_add_u32 {sB}, {sB}, {0x70000 - 6 * 32768}")
            a(f"v_lshl_add_u32 v4, v1, 7, {sB}\ns_movk_i32 {sD}, 0x2000")
            self.lds_wait(L_VCNT, sNACT, 6, 7)
            for i in range(4):
                a(f"global_load_dword v{48 + i}, v4, {sWO}\nv_add_u32 v4, {sD}, v4")
            a(f"s_mov_b32 {sA}, {sF}")
        if self.hint:
            a(f"s_cmp_eq_u32 {sA}, 6\ns_cbranch_scc1 L_ctouch\ns_cmp_lg_u32 {sA}, 7\ns_cbranch_scc1 L_none")
            a(f"s_lshl_b32 {sA}, {sXCD}, 9\ns_add_u32 {sA}, {sA}, {WS_ML}\nv_and_b32 v4, 31, v1\nv_lshl_add_u32 v4, v4, 4, {sA}")
            a(f"s_lshl_b32 {sA}, {sXCD}, 2\ns_add_u32 {sA}, {sA}, {WS_HT}\nv_lshl_add_u32 v5, v1, 7, {sA}\nv_mov_b32 v6, {sT}")
            self.lds_wait(L_PUB, 1, 12, 13)
            if self.dflag:
                a(f"s_lshl_b32 {sA}, {sXCD}, 7\ns_add_u32 {sA}, {sA}, {WS_DT}\nv_and_b32 v7, 15, v1\nv_lshl_add_u32 v7, v7, 2, {sA}")

                def both():
                    self.chk(12, [8])
                    a(f"v_cmp_ne_u32 {sM0}, {sT}, v14\ns_or_b64 vcc, vcc, {sM0}")
                self.poll(lambda: a(f"global_load_dwordx4 v[8:11], v4, {sWS} sc1\nglobal_load_dword v14, v7, {sWS} sc1"), both)
            else:
                self.poll(lambda: a(f"global_load_dwordx4 v[8:11], v4, {sWS} sc1"), lambda: self.chk(12, [8]))
            for i in range(self.lag):
                a(f"global_load_dwordx4 v[8:11], v4, {sWS} sc1\ns_waitcnt vmcnt(0)")
            a(f"s_bfm_b64 exec, {56 if self.ytouch or not self.incr else (42 >> self.hsh) + 1}, 0\nglobal_store_dword v5, v6, {sWS} sc1")
            self.stamp(10)
            self.end()
            a("L_ctouch:")
            if self.incr and not self.ytouch:
                self.end()
            a(f"s_lshl_b32 {sA}, {sXCD}, 7\ns_add_u32 {sA}, {sA}, {WS_HT + 48 * 128}\nv_and_b32 v4, 7, v1\nv_lshl_add_u32 v4, v4, 2, {sA}")
            a(f"v_and_b32 v5, 31, v1\nv_lshlrev_b32 v5, 6, v5\nv_lshrrev_b32 v6, 5, v1\nv_lshl_add_u32 v5, v6, 14, v5\nv_add_u32 v5, {WS_YP}, v5")
            self.lds_wait(L_PUB, 1, 12, 13)
            a(f"s_mov_b32 {sC}, 0\ns_mov_b32 {sSPIN}, 0\nL_ct0:")
            a(f"global_load_dword v8, v4, {sWS} sc1\ns_add_u32 {sSPIN}, {sSPIN}, 1\ns_cmp_gt_u32 {sSPIN}, {SPIN}\ns_cbranch_scc1 L_bail")
            a(f"s_waitcnt vmcnt(0)\nv_cmp_eq_u32 vcc, {sT}, v8\ns_and_b32 {sA}, vcc_lo, 0xff\ns_andn2_b32 {sB}, {sA}, {sC}\ns_mov_b32 {sC}, {sA}")
            a(f"L_ct1:\ns_cmp_eq_u32 {sB}, 0\ns_cbranch_scc1 L_ct2")
            a(f"s_ff1_i32_b32 {sD}, {sB}\ns_bitset0_b32 {sB}, {sD}\ns_lshl_b32 {sD}, {sD}, 11\nv_add_u32 v6, {sD}, v5\nglobal_load_dword v9, v6, {sWS} sc1\ns_branch L_ct1")
            a(f"L_ct2:\ns_cmp_lg_u32 {sC}, 0xff\ns_cbranch_scc1 L_ct0")
        self.end()

    def ml_wait(self, nth, va):
        a = self.a
        a(f"s_lshl_b32 {sA}, {sXCD}, 9\ns_add_u32 {sA}, {sA}, {WS_ML}\nv_and_b32 v{va}, 31, v1\nv_lshl_add_u32 v{va}, v{va}, 4, {sA}")

        def enough():
            self.chk(va + 6, [va + 2])
            a(f"s_bcnt0_i32_b32 {sA}, vcc_lo\ns_cmp_lt_u32 {sA}, {nth}\ns_cselect_b64 vcc, -1, 0")
        self.poll(lambda: a(f"global_load_dwordx4 v[{va + 2}:{va + 5}], v{va}, {sWS} sc1"), enough)

    def gu_touch_addr(self, r0, rows, ni):
        a = self.a
        a(f"s_min_u32 {sB}, {sXCD}, 3\ns_mul_i32 {sC}, {sXCD}, 5\ns_add_u32 {sC}, {sC}, {sB}")
        a(f"s_mul_i32 {sB}, {sF}, {rows}\ns_add_u32 {sB}, {sB}, {r0}\ns_mul_i32 {sB}, {sB}, 2752\ns_lshl_b32 {sA}, {sC}, 6\ns_add_u32 {sB}, {sB}, {sA}")
        a("v_lshrrev_b32 v8, 3, v1\nv_mul_u32_u24 v8, 2752, v8\nv_and_b32 v5, 7, v1\nv_min_u32 v5, 5, v5\nv_lshl_add_u32 v8, v5, 6, v8")
        a(f"v_add_u32 v8, {sB}, v8")
        for i in range(1, ni):
            a(f"v_add_u32 v{8 + i}, {i * 8 * 2752}, v8\nv_min_u32 v{8 + i}, {512 * 2752 - 4}, v{8 + i}")

    def helper_code(self):
        a = self.a
        ni = self.hr // 64
        a(f"s_min_u32 {sB}, {sXCD}, 3\ns_mul_i32 {sC}, {sXCD}, 5\ns_add_u32 {sC}, {sC}, {sB}")
        a(f"s_and_b32 {sA}, {sF}, 3\ns_mul_i32 {sB}, {sA}, {16 * ni}\ns_lshr_b32 {sA}, {sF}, 2\ns_lshl_b32 {sA}, {sA}, 8\ns_add_u32 {sB}, {sB}, {sA}")
        a(f"s_add_u32 {sB}, {sB}, {256 - self.hr}\ns_mul_i32 {sB}, {sB}, 2752\ns_lshl_b32 {sA}, {sC}, 6\ns_add_u32 {sB}, {sB}, {sA}")
        a("v_lshrrev_b32 v8, 2, v1\nv_mul_u32_u24 v8, 2752, v8\nv_and_b32 v5, 3, v1\nv_lshlrev_b32 v5, 7, v5\nv_min_u32 v5, 380, v5\nv_add_u32 v8, v5, v8")
        a(f"v_add_u32 v8, {sB}, v8")
        for i in range(ni - 1, -1, -1):
            a(f"v_add_u32 v{8 + i}, {i * 16 * 2752}, v8\nv_min_u32 v{8 + i}, {512 * 2752 - 4}, v{8 + i}")
        a(f"s_lshl_b32 {sC}, {sC}, 15\ns_mul_i32 {sA}, {sF}, {6 * 32768 // 8}\ns_add_u32 {sC}, {sC}, {sA}\nv_lshl_add_u32 v20, v1, 7, {sC}")
        for i in range(2, -1, -1):
            a(f"v_add_u32 v{20 + i}, {i * 8192}, v20\nv_min_u32 v{20 + i}, {1376 * 1024 - 4}, v{20 + i}")
        a(f"s_lshl_b32 {sB}, {sXCD}, 19\ns_mul_i32 {sC}, {sF}, {24576 if self.clean else 32768}\ns_add_u32 {sB}, {sB}, {sC}\ns_add_u32 {sB}, {sB}, 0x40000")
        a(f"v_lshl_add_u32 v4, v1, 7, {sB}\ns_movk_i32 {sD}, 0x2000")
        self.lds_wait(*((L_PUB, 1) if self.hpub else (L_VCNT, sNACT)), 6, 7)
        for i in range((3 if self.clean else 4) if self.wotouch else 0):
            a(f"global_load_dword v{48 + i}, v4, {sWO}\nv_add_u32 v4, {sD}, v4")
        if self.clean:
            self.lds_wait(L_PUB, 1, 6, 7)
        if "noffn" in self.exp:
            return
        w = f"s_waitcnt vmcnt({self.hwin})\n"
        if self.hml:
            self.ml_wait(self.hml, 64)
            w = ""
        for i in range(3 if self.hdown else 0):
            a(f"{w}global_load_dword v{40 + i}, v{20 + i}, {sWD}")
        for i in range(ni):
            a(f"{w}global_load_dword v{56 + 2 * i}, v{8 + i}, {sWG}\n{w}global_load_dword v{57 + 2 * i}, v{8 + i}, {sWU}")
        for i in range(0 if self.hdown else 3):
            a(f"{w}global_load_dword v{40 + i}, v{20 + i}, {sWD}")

    def stream_early(self):
        a = self.a
        nt = self.nt
        K, V = 4, 36
        a(f"L_stream:\ns_cmp_gt_u32 {sW}, {sNACT}\ns_cbranch_scc1 L_idle")
        a(f"s_lshr_b32 {sA}, {sJ}, 2\ns_lshl_b32 {sA}, {sA}, 25\ns_lshl_b32 {sB}, {sH}, 20\ns_add_u32 {sA}, {sA}, {sB}")
        a(f"s_and_b32 {sB}, {sJ}, 1\ns_mul_i32 {sB}, {sB}, {sNACT}\ns_add_u32 {sB}, {sB}, {sW}\ns_bitcmp1_b32 {sJ}, 1\ns_cselect_b32 {sC}, {2 * self.nww}, 0")
        a(f"s_add_u32 {sB}, {sB}, {sC}\ns_lshl_b32 {sB}, {sB}, 13\ns_add_u32 {sA}, {sA}, {sB}")
        a(f"s_add_u32 {sA}, {sA}, {0xC0000 + 4096 - 8192}\nv_lshl_add_u32 v2, v1, 4, {sA}")
        a("s_waitcnt lgkmcnt(0)")
        self.stamp(1)
        for t in range(8):
            if t == self.nkpre and self.b0:
                a("s_barrier")
            if t == self.nk0:
                if self.presetup:
                    a("s_branch L_setup\nL_setupr:")
                a("s_barrier")
            if t == self.nk1:
                a("s_barrier\ns_barrier")
            a(f"global_load_dwordx4 {vr(K + 4 * t, 4)}, v2, {sK} offset:{1024 * t - 4096} {nt}")
        self.stamp(2)
        vload = lambda t: a(f"global_load_dwordx4 {vr(V + 4 * t, 4)}, v2, {sV} offset:{1024 * t - 4096} {nt}")
        if self.nv1:
            a(f"s_bitcmp0_b32 {sJ}, 1\ns_cbranch_scc1 L_vw\ns_barrier\ns_barrier")
            for t in range(self.nv1):
                vload(t)
            a("s_branch L_vr\nL_vw:")
            for t in range(self.nv1):
                vload(t)
            a("s_barrier\ns_barrier\nL_vr:")
        elif self.nk1 == 8 and not self.nva:
            a("s_barrier\ns_barrier")
        for t in range(self.nv1, 8):
            vload(t)
            if t + 1 == self.nva:
                a("s_barrier\ns_barrier")
        if self.layout in ("sc", "cs"):
            a("s_branch L_stream2")

    def idle_early(self):
        a = self.a
        a("L_idle:")
        if self.prefetch:
            a(f"s_cmp_lg_u32 {sW}, {self.nwaves - 1}\ns_cbranch_scc1 L_nopf")
            a(f"s_getpc_b64 {sP}\nL_pc:\ns_sub_u32 s52, s52, L_pc-{KN}\ns_subb_u32 s53, s53, 0")
            a(f"s_lshr_b32 {sA}, s2, 3\ns_min_u32 {sA}, {sA}, (L_codeend-{KN})/1024\ns_lshl_b32 {sA}, {sA}, 10")
            a(f"v_lshl_add_u32 v3, v1, 4, {sA}\nglobal_load_dwordx4 {vr(124, 4)}, v3, {sP}")
            a("L_nopf:")
        if self.b0:
            a("s_barrier")
        a(f"s_waitcnt lgkmcnt(0)\ns_load_dword {sT}, {sWS}, 0")
        if self.vtlb:
            a(f"s_lshr_b32 {sA}, {sJ}, 2\ns_lshl_b32 {sA}, {sA}, 25\ns_lshl_b32 {sB}, {sH}, 20\ns_add_u32 {sA}, {sA}, {sB}\ns_add_u32 {sA}, {sA}, 0xBFF00")
            a(f"v_mov_b32 v3, {sA}\ns_mov_b64 exec, 1\nglobal_load_dword v4, v3, {sV} nt\ns_mov_b64 exec, -1")
        a("s_barrier\ns_barrier\ns_waitcnt lgkmcnt(0)\ns_barrier\ns_branch L_idle1")

    def stream_setup(self):
        a = self.a
        P, T, SEL, MK, ADR = 72, 80, 88, 100, 101
        a(f"s_load_dword {sT}, {sWS}, 0")
        sw = self.sw
        a(f"s_sub_u32 {sw}, {sW}, 1")
        self.selectors(SEL, T, 4, bits=3)
        a("v_and_b32 v3, 15, v1\nv_lshlrev_b32 v3, 4, v3")
        a(f"s_mov_b32 {sK1}, 0x3db504f3\ns_mov_b32 {sK2}, 0x3fb8aa3b")
        a(f"v_bfe_u32 {vr(ADR)}, v1, 4, 1\nv_lshlrev_b32 {vr(ADR)}, 6, {vr(ADR)}\nv_lshl_add_u32 {vr(ADR)}, v3, 3, {vr(ADR)}")
        a(f"s_lshl_b32 {sA}, {sH}, 12\ns_lshr_b32 {sB}, {sJ}, 2\ns_lshl_b32 {sB}, {sB}, 11\ns_add_u32 {sA}, {sA}, {sB}")
        a(f"s_and_b32 {sB}, {sJ}, 3\ns_lshl_b32 {sB}, {sB}, 4\ns_add_u32 {sA}, {sA}, {sB}\ns_add_u32 {sA}, {sA}, {WS_OP}\nv_add_u32 {vr(ADR)}, {sA}, {vr(ADR)}")
        a(f"s_lshl_b32 {sA}, {sH}, 7\ns_lshl_b32 {sB}, {sJ}, 4\ns_add_u32 {sA}, {sA}, {sB}\ns_add_u32 {sA}, {sA}, {WS_ML}\nv_mov_b32 {vr(T)}, {sA}")
        a(f"v_cmp_lt_u32 {sM0}, 31, v1\nv_mov_b32 {vr(MK)}, 0xffffff00\nv_cndmask_b32 {vr(ADR)}, {vr(ADR)}, {vr(T)}, {sM0}")
        for t in range(8):
            a(f"v_mov_b32 {vr(P + t)}, 0")

    def stream(self):
        a = self.a
        K, V, Q, P, T, SEL, D = 4, 36, 68, 72, 80, 88, 96
        MK, ADR, MREG, FAC = 100, 101, 102, 104
        if self.presetup:
            a("L_setup:")
            self.stream_setup()
            a("s_branch L_setupr")
        a("L_stream2:")
        self.lds_inc(L_VCNT, T, T + 1)
        self.stamp(3)
        sw = self.sw
        if not self.presetup:
            self.stream_setup()
        self.lds_wait(L_QF, 1, T, T + 1)
        self.stamp(4)
        a(f"ds_read_b128 {vr(Q, 4)}, v3 offset:{L_Q}")
        a(f"s_mov_b32 {sLOC}, {sA}")
        self.tag_consts()
        a("s_waitcnt vmcnt(8) lgkmcnt(0)")
        for i in range(4):
            for t in range(8):
                a(f"v_dot2c_f32_bf16 {vr(P + t)}, {vr(K + 4 * t + i)}, {vr(Q + i)}")
        for u in range(4):
            a(f"v_add_f32_dpp {vr(P + u)}, {vr(P + u)}, {vr(P + u)} row_ror:8 row_mask:0xf bank_mask:0x3")
        for u in range(4):
            a(f"v_add_f32_dpp {vr(P + u)}, {vr(P + u + 4)}, {vr(P + u + 4)} row_ror:8 row_mask:0xf bank_mask:0xc")
        for u in range(2):
            a(f"v_add_f32_dpp {vr(P + u)}, {vr(P + u)}, {vr(P + u)} row_shl:4 row_mask:0xf bank_mask:0x5")
        for u in range(2):
            a(f"v_add_f32_dpp {vr(P + u)}, {vr(P + u + 2)}, {vr(P + u + 2)} row_shr:4 row_mask:0xf bank_mask:0xa")
        self.dppred("v_add_f32", [P, P + 1], ("quad_perm:[1,0,3,2]", "quad_perm:[2,3,0,1]"))
        self.bf16r(P, P)
        self.bf16r(P + 1, P + 1)
        a(f"v_mul_f32 {vr(P)}, {sK1}, {vr(P)}\nv_mul_f32 {vr(P + 1)}, {sK1}, {vr(P + 1)}")
        self.bf16r(P, P)
        self.bf16r(P + 1, P + 1)
        a(f"v_max_f32 {vr(MREG)}, {vr(P)}, {vr(P + 1)}")
        self.dppred("v_max_f32", [MREG], ("row_ror:4", "row_ror:8"))
        self.redrows("v_max_f32", [MREG], T + 1)
        a(f"v_mul_f32 {vr(T)}, {sK2}, {vr(MREG)}")
        a(f"v_fma_f32 {vr(P)}, {vr(P)}, {sK2}, -{vr(T)}\nv_fma_f32 {vr(P + 1)}, {vr(P + 1)}, {sK2}, -{vr(T)}")
        a(f"v_exp_f32 {vr(P)}, {vr(P)}\nv_exp_f32 {vr(P + 1)}, {vr(P + 1)}")
        a(f"v_cvt_pk_bf16_f32 {vr(T)}, {vr(P)}, {vr(P + 1)}\nv_add_f32 {vr(P)}, {vr(P)}, {vr(P + 1)}")
        for u in range(4):
            a(f"v_mov_b32_dpp {vr(Q + u)}, {vr(T)} row_newbcast:{4 * u} {FULL}")
        self.dppred("v_add_f32", [P], ("row_ror:4", "row_ror:8"))
        self.redrows("v_add_f32", [P], P + 1)
        a(f"s_lshl_b32 {sA}, {sw}, 2\nv_mov_b32 {vr(T + 7)}, {sA}\nds_write2_b32 {vr(T + 7)}, {vr(MREG)}, {vr(P)} offset0:{L_MAX // 4} offset1:{L_SUM // 4}")
        self.lds_inc(L_MCNT, T, T + 1)
        self.stamp(5)
        for t in range(8):
            for m in range(4):
                a(f"v_perm_b32 {vr(K + 4 * t + m)}, {vr(Q + t // 2)}, {vr(Q + t // 2)}, {vr(SEL + 2 * m + (t & 1))}")
        self.lds_wait(L_MCNT, sNACT, T, T + 1)
        a(f"v_and_b32 {vr(T + 2)}, 15, v1\nv_cmp_gt_u32 vcc, 12, {vr(T + 2)}\nv_min_u32 {vr(T + 2)}, 11, {vr(T + 2)}\nv_lshlrev_b32 {vr(T + 2)}, 2, {vr(T + 2)}")
        a(f"ds_read2_b32 {vr(P + 2, 2)}, {vr(T + 2)} offset0:{L_MAX // 4} offset1:{L_SUM // 4}")
        a(f"s_lshl_b32 {sA}, {sw}, 9\nv_lshl_add_u32 v3, v1, 4, {sA}\nv_mov_b32 {vr(T)}, {L_CNT}\nv_mov_b32 {vr(T + 1)}, 1")
        a(f"v_and_b32 {vr(T + 3)}, 31, v1\nv_lshlrev_b32 {vr(T + 3)}, 4, {vr(T + 3)}\nv_lshrrev_b32 {vr(T + 4)}, 5, v1\nv_mul_u32_u24 {vr(T + 4)}, {512 * self.nh}, {vr(T + 4)}\nv_add_u32 {vr(T + 3)}, {vr(T + 4)}, {vr(T + 3)}")
        a(f"s_sub_u32 {sC}, {sNACT}, 1")
        a("s_waitcnt lgkmcnt(0)")
        a(f"v_cndmask_b32 {vr(P + 3)}, 0, {vr(P + 3)}, vcc\nv_mov_b32 {vr(Q)}, {vr(P + 2)}")
        self.dppred("v_max_f32", [Q], [f"row_ror:{r}" for r in (1, 2, 4, 8)])
        a(f"v_sub_f32 {vr(FAC)}, {vr(MREG)}, {vr(Q)}\nv_sub_f32 {vr(P + 2)}, {vr(P + 2)}, {vr(Q)}")
        a(f"v_mul_f32 {vr(FAC)}, {sK2}, {vr(FAC)}\nv_mul_f32 {vr(P + 2)}, {sK2}, {vr(P + 2)}")
        a(f"v_exp_f32 {vr(FAC)}, {vr(FAC)}\nv_exp_f32 {vr(P + 2)}, {vr(P + 2)}\nv_mov_b32 {vr(MREG)}, {vr(Q)}")
        a(f"v_mul_f32 {vr(MREG + 1)}, {vr(P + 2)}, {vr(P + 3)}\nv_mov_b32 {vr(FAC + 1)}, {vr(FAC)}")
        self.dppred("v_add_f32", [MREG + 1], [f"row_ror:{r}" for r in (1, 2, 4, 8)])
        self.stamp(6)
        if self.prio:
            a("s_setprio 2")
        for t in range(8):
            a(f"s_waitcnt vmcnt({7 - t})")
            a(f"v_mfma_f32_16x16x32_bf16 {vr(D, 4)}, {vr(K + 4 * t, 4)}, {vr(V + 4 * t, 4)}, {vr(D, 4) if t else 0}")
        self.stamp(7)
        a("s_mov_b32 exec_hi, 0")
        a(f"v_pk_mul_f32 {vr(D, 2)}, {vr(D, 2)}, {vr(FAC, 2)}\nv_pk_mul_f32 {vr(D + 2, 2)}, {vr(D + 2, 2)}, {vr(FAC, 2)}")
        a(f"ds_write_b128 v3, {vr(D, 4)} offset:{L_OP}")
        a("s_mov_b32 exec_lo, 1")
        a(f"ds_add_rtn_u32 {vr(T + 5)}, {vr(T)}, {vr(T + 1)}")
        a("s_waitcnt lgkmcnt(0)")
        a(f"v_readfirstlane_b32 {sA}, {vr(T + 5)}\ns_mov_b64 exec, -1")
        a(f"s_cmp_lg_u32 {sA}, {sC}\ns_cbranch_scc1 L_role")
        for n in range(self.nh):
            a(f"ds_read_b128 {vr(K + 4 * n, 4)}, {vr(T + 3)} offset:{L_OP + 512 * n}")
        if self.xts:
            a(f"ds_read_b32 {vr(T + 5)}, {vr(T)} offset:{L_LOC - L_CNT}\ns_waitcnt lgkmcnt(0)\nv_readfirstlane_b32 {sLOC}, {vr(T + 5)}")
        else:
            a(f"s_cmp_eq_u32 {sLOC}, 3\ns_waitcnt lgkmcnt(0)")
        pk = lambda d, x: a(f"v_pk_add_f32 {vr(d, 2)}, {vr(d, 2)}, {vr(x, 2)}")
        for i in (0, 2):
            pk(K + i, K + 4 + i)
            pk(K + 8 + i, K + 12 + i)
        for i in (0, 2):
            if self.nh == 6:
                pk(K + 16 + i, K + 20 + i)
            pk(K + i, K + 8 + i)
        for i in (0, 2) if self.nh > 4 else ():
            pk(K + i, K + 16 + i)
        for i in range(4):
            a(f"v_permlane32_swap_b32 {vr(K + i)}, {vr(K + 4 + i)}")
        for i in (0, 2):
            pk(K + i, K + 4 + i)
        a(f"v_cndmask_b32 {vr(K)}, {vr(K)}, {vr(MREG)}, {sM0}\nv_cndmask_b32 {vr(K + 1)}, {vr(K + 1)}, {vr(MREG + 1)}, {sM0}")
        if self.xts:
            a(f"s_cmp_eq_u32 {sLOC}, 3")
            if self.diag and "loc" in self.stamps:
                a(f"s_or_b32 s{self.slot(13)}, {sLOC}, 4\ns_cmp_eq_u32 {sLOC}, 3")
        self.tag4(K, MK)
        a("s_mov_b32 exec_hi, 1\ns_cbranch_scc1 L_publoc")
        a(f"global_store_dwordx4 {vr(ADR)}, {vr(K, 4)}, {sWS} sc1\ns_branch L_pubdone")
        a(f"L_publoc:\nglobal_store_dwordx4 {vr(ADR)}, {vr(K, 4)}, {sWS}")
        a("L_pubdone:\ns_mov_b32 exec_hi, -1")
        a(f"ds_write_b32 {vr(T)}, {vr(T + 1)} offset:{L_PUB - L_CNT}")
        self.stamp(8)
        a(f"L_role:\n" + ("s_setprio 0\n" if self.prio else "") + f"s_cmp_gt_u32 {sw}, 8\ns_cbranch_scc1 L_none")
        self.role("L_wo", "L_none", "L_ffn", "L_none")
        a(f"L_idle1:\ns_mov_b32 {sK2}, 0x3fb8aa3b\nv_mov_b32 {vr(MK)}, 0xffffff00")
        self.tag_consts()
        if self.idledma:
            a(f"s_cmp_lg_u32 {sW}, {self.nwn}\ns_cbranch_scc1 L_idle2")
            self.role("L_cwo", "L_none", "L_none", "L_none")
            a("L_idle2:")
        a(f"s_sub_u32 {sw}, {sW}, 1")
        if self.xts and self.local:
            a(f"s_cmp_lg_u32 {sw}, {self.nwaves - 2}\ns_cbranch_scc1 L_xt2")
            if "mixloc" in self.exp:
                a(f"s_bitcmp1_b32 {sJ}, 0\ns_cbranch_scc1 L_xt2")
            self.lds_wait(L_QF, 1, T, T + 1)
            a(f"s_cmp_eq_u32 {sA}, 3\ns_cbranch_scc1 L_xt2")
            a(f"s_getreg_b32 {sC}, hwreg(HW_REG_XCC_ID, 0, 4)\ns_and_b32 {sA}, {sT}, 0xffffff00\ns_or_b32 {sC}, {sC}, {sA}")
            a(f"s_lshl_b32 {sA}, {sXCD}, 7\ns_add_u32 {sA}, {sA}, {WS_XT}\nv_and_b32 v2, 31, v1\nv_lshl_add_u32 v2, v2, 2, {sA}")
            a(f"v_mov_b32 {vr(T)}, {L_PUB}\ns_mov_b32 {sSPIN}, 0\nL_xt0:\nglobal_load_dword v3, v2, {sWS} sc1")
            a(f"s_add_u32 {sSPIN}, {sSPIN}, 1\ns_cmp_gt_u32 {sSPIN}, {SPIN}\ns_cbranch_scc1 L_bail\ns_waitcnt vmcnt(0)")
            a(f"v_cmp_ne_u32 vcc, {sC}, v3\ns_cbranch_vccz L_xt1\nds_read_b32 {vr(T + 1)}, {vr(T)}\ns_waitcnt lgkmcnt(0)")
            a(f"v_readfirstlane_b32 {sA}, {vr(T + 1)}\ns_cmp_lg_u32 {sA}, 0\ns_cbranch_scc1 L_xt2\ns_branch L_xt0")
            a(f"L_xt1:\nv_mov_b32 {vr(T + 1)}, 3\nds_write_b32 {vr(T)}, {vr(T + 1)} offset:{L_LOC - L_PUB}\nL_xt2:")
        self.lds_wait(L_PUB, 1, T, T + 1)
        a("s_branch L_role")

    def role_wo(self):
        a = self.a
        sw = self.sw
        MK = 100
        B, D, O, ML, X, T, AO, AM, AW, AR, AY = 4, 20, 36, 44, 48, 52, 60, 61, 62, 63, 64
        a(f"L_wo:\ns_cmp_eq_u32 {sw}, 8\ns_cbranch_scc1 L_none")
        a(f"v_lshrrev_b32 v2, 4, v1\nv_bfe_u32 {vr(T)}, v1, 3, 1\nv_and_b32 {vr(T + 1)}, 3, v1\nv_bfe_u32 {vr(T + 2)}, v1, 4, 1\nv_lshrrev_b32 {vr(T + 3)}, 5, v1")
        a(f"s_lshl_b32 {sA}, {sw}, 2\nv_add_u32 v3, {sA}, {vr(T + 2)}\nv_mul_u32_u24 v3, {GUP}, v3\nv_lshl_add_u32 v3, {vr(T + 3)}, 9, v3")
        a(f"v_bfe_u32 {vr(T + 4)}, v1, 2, 2\nv_lshl_add_u32 v3, {vr(T + 4)}, 6, v3\nv_lshl_add_u32 v3, {vr(T + 1)}, 3, v3")
        a(f"s_lshl_b32 {sA}, {sXCD}, 2\ns_lshr_b32 {sB}, {sw}, 1\ns_add_u32 {sA}, {sA}, {sB}")
        a(f"s_lshl_b32 {sB}, {sA}, 7\ns_add_u32 {sB}, {sB}, {WS_ML}\nv_lshl_add_u32 {vr(AM)}, {vr(T)}, 2, {vr(T + 1)}\nv_lshl_add_u32 {vr(AM)}, {vr(AM)}, 4, {sB}")
        a(f"s_lshl_b32 {sA}, {sA}, 12\ns_and_b32 {sB}, {sw}, 1\ns_lshl_b32 {sB}, {sB}, 10\ns_add_u32 {sA}, {sA}, {sB}\ns_add_u32 {sA}, {sA}, {WS_OP}")
        a(f"v_bfe_u32 {vr(AO)}, v1, 2, 1\nv_lshl_add_u32 {vr(AO)}, {vr(AO)}, 1, {vr(T + 2)}\nv_lshl_add_u32 {vr(AO)}, {vr(AO)}, 1, {vr(T + 3)}\nv_lshlrev_b32 {vr(AO)}, 7, {vr(AO)}")
        a(f"v_lshl_add_u32 {vr(AO)}, {vr(T)}, 11, {vr(AO)}\nv_lshl_add_u32 {vr(AO)}, {vr(T + 1)}, 4, {vr(AO)}\nv_add_u32 {vr(AO)}, {sA}, {vr(AO)}")
        a(f"v_and_b32 {vr(AR)}, 15, v1\nv_lshlrev_b32 {vr(AW)}, 2, {vr(AR)}\nv_lshl_add_u32 {vr(AW)}, {vr(T + 3)}, 7, {vr(AW)}\nv_lshl_add_u32 {vr(AW)}, {vr(T + 2)}, 8, {vr(AW)}")
        a(f"s_lshl_b32 {sA}, {sw}, 9\ns_add_u32 {sA}, {sA}, {L_RED}\nv_add_u32 {vr(AW)}, {sA}, {vr(AW)}")
        a(f"v_lshlrev_b32 {vr(AR)}, 4, {vr(AR)}\nv_lshl_add_u32 {vr(AR)}, v2, 10, {vr(AR)}")
        a(f"s_lshl_b32 {sA}, {sXCD}, 11\ns_lshl_b32 {sB}, {sF}, 7\ns_add_u32 {sA}, {sA}, {sB}\ns_add_u32 {sA}, {sA}, {WS_YP}")
        a(f"v_and_b32 {vr(AY)}, 7, v1\nv_lshl_add_u32 {vr(AY)}, {vr(AY)}, 4, {sA}\nv_lshl_add_u32 {vr(AY)}, {vr(T)}, 14, {vr(AY)}")
        a(f"v_cmp_eq_u32 {sM1}, 1, {vr(T + 2)}")

        def mlload():
            a(f"global_load_dwordx4 {vr(ML, 4)}, {vr(AM)}, {sWS} sc1")

        def weights():
            a(f"v_and_b32 {vr(ML)}, {vr(MK)}, {vr(ML)}\nv_and_b32 {vr(ML + 1)}, {vr(MK)}, {vr(ML + 1)}")
            a(f"v_max_f32_dpp {vr(ML + 2)}, {vr(ML)}, {vr(ML)} quad_perm:[1,0,3,2] {FULL}")
            a(f"v_max_f32_dpp {vr(ML + 2)}, {vr(ML + 2)}, {vr(ML + 2)} quad_perm:[2,3,0,1] {FULL}")
            a(f"v_sub_f32 {vr(ML)}, {vr(ML)}, {vr(ML + 2)}\nv_mul_f32 {vr(ML)}, {sK2}, {vr(ML)}\nv_exp_f32 {vr(ML)}, {vr(ML)}")
            a(f"v_mul_f32 {vr(ML + 1)}, {vr(ML + 1)}, {vr(ML)}")
            self.dppred("v_add_f32", [ML + 1], ("quad_perm:[1,0,3,2]", "quad_perm:[2,3,0,1]"))
            a(f"v_rcp_f32 {vr(ML + 1)}, {vr(ML + 1)}\nv_mul_f32 {vr(ML)}, {vr(ML)}, {vr(ML + 1)}")

        def frags():
            self.lds_wait(L_DMA, 1, T + 6, T + 7, tight=True)
            a(f"s_mov_b32 {sSPIN}, 0")
            self.stamp(9)
            for t in range(2):
                for ct in range(2):
                    for hh in range(2):
                        a(f"ds_read_b64_tr_b16 {vr(B + 8 * t + 4 * ct + 2 * hh, 2)}, v3 offset:{L_W + t * 2 * GUP + hh * 256 + ct * 32}")

        def oloads():
            a(f"global_load_dwordx4 {vr(O, 4)}, {vr(AO)}, {sWS} sc1\nglobal_load_dwordx4 {vr(O + 4, 4)}, {vr(AO)}, {sWS} offset:64 sc1")
        if self.tog > 8:
            self.poll(mlload, lambda: self.chk(T, [ML]))
            if self.prio:
                a("s_setprio 2")
            self.stamp(10)
            self.poll(oloads, lambda: self.chk(T, [O, O + 4]), between=lambda: (weights(), frags()))
        else:
            if self.tog:
                def few():
                    self.chk(T, [ML])
                    a(f"s_and_b32 {sA}, vcc_lo, 0x0f0f\ns_bcnt1_i32_b32 {sA}, {sA}\ns_cmp_gt_u32 {sA}, {8 - self.tog}\ns_cselect_b64 vcc, -1, 0")
                self.poll(mlload, few)
            self.stamp(10)
            self.poll(lambda: (mlload(), oloads()), lambda: self.chk(T, [ML, O, O + 4]))
            frags()
            weights()
        self.stamp(11)
        self.count(1)
        for i in range(8):
            a(f"v_and_b32 {vr(O + i)}, {vr(MK)}, {vr(O + i)}")
        for i in range(0, 8, 2):
            a(f"v_pk_mul_f32 {vr(O + i, 2)}, {vr(O + i, 2)}, {vr(ML, 2)} op_sel_hi:[1,0]")
        self.dppred("v_add_f32", range(O, O + 8), ("quad_perm:[1,0,3,2]", "quad_perm:[2,3,0,1]"))
        for u in range(4):
            a(f"v_cvt_pk_bf16_f32 {vr(X + u)}, {vr(O + 2 * u)}, {vr(O + 2 * u + 1)}")
        a("s_waitcnt lgkmcnt(0)")
        for ct in range(2):
            for t in range(2):
                a(f"v_mfma_f32_16x16x32_bf16 {vr(D + 8 * ct + 4 * t, 4)}, {vr(X, 4)}, {vr(B + 8 * t + 4 * ct, 4)}, 0")
        for ct in range(2):
            a(f"v_cndmask_b32 {vr(O + ct)}, {vr(D + 8 * ct)}, {vr(D + 8 * ct + 4)}, {sM1}")
        a(f"ds_write2_b32 {vr(AW)}, {vr(O)}, {vr(O + 1)} offset0:0 offset1:16\ns_waitcnt lgkmcnt(0)\ns_barrier")
        a(f"s_cmp_lg_u32 {sw}, 0\ns_cbranch_scc1 L_none")
        for n in range(4):
            a(f"ds_read_b128 {vr(B + 4 * n, 4)}, {vr(AR)} offset:{L_RED + 256 * n}")
        a("s_waitcnt lgkmcnt(0)")
        for i in (0, 2):
            a(f"v_pk_add_f32 {vr(B + i, 2)}, {vr(B + i, 2)}, {vr(B + 4 + i, 2)}\nv_pk_add_f32 {vr(B + 8 + i, 2)}, {vr(B + 8 + i, 2)}, {vr(B + 12 + i, 2)}")
        for i in (0, 2):
            a(f"v_pk_add_f32 {vr(B + i, 2)}, {vr(B + i, 2)}, {vr(B + 8 + i, 2)}")
        for swp in ("v_permlane32_swap_b32", "v_permlane16_swap_b32"):
            for i in range(4):
                a(f"{swp} {vr(B + i)}, {vr(B + 4 + i)}")
            for i in (0, 2):
                a(f"v_pk_add_f32 {vr(B + i, 2)}, {vr(B + i, 2)}, {vr(B + 4 + i, 2)}")
        self.tag4(B, MK)
        a("s_mov_b64 exec, 0xffff")
        a(f"global_store_dwordx4 {vr(AY)}, {vr(B, 4)}, {sWS} sc1")
        self.stamp(12)
        self.end()

    def role_ffn(self):
        a = self.a
        sw = self.sw
        BG, BD, F, D, ST, XF = 4, 68, 84, 116, 120, 126
        MK, AY, XR, ADR, AH, AHN, AS, ASW, AA, AAW, AAR, AF, FM, AO, HV = 128, 130, 132, 134, 135, 136, 137, 138, 139, 140, 141, 142, 144, 145, 146
        HNS = 1088
        a(f"L_ffn:\ns_cmp_lg_u32 {sw}, 8\ns_cbranch_scc1 L_ffn1")
        a(f"v_mov_b32 v2, {L_HINT}\ns_mov_b32 {sC}, 0")
        if self.hint:
            a(f"s_lshr_b32 {sA}, {sF}, {self.hsh}\ns_lshl_b32 {sA}, {sA}, 7\ns_add_u32 {sA}, {sA}, {WS_HT}\ns_add_u32 s52, s26, {sA}\ns_addc_u32 s53, s27, 0\ns_mov_b32 s98, {sT}\ns_mov_b32 s99, {sT}")
            if self.hdepth:
                a(f"s_not_b32 {sB}, {sT}")
                for i in range(8):
                    a(f"s_mov_b32 s{56 + i}, {sB}")

            def hcheck():
                a(f"s_mov_b32 {sA}, 0")
                for i in range(4):
                    a(f"s_cmp_eq_u64 s[{56 + 2 * i}:{57 + 2 * i}], {sTT}\ns_cselect_b32 {sB}, {1 << i}, 0\ns_or_b32 {sA}, {sA}, {sB}")
                if self.incr:
                    a(f"s_cmp_eq_u32 {sA}, {sC}\ns_cbranch_scc1 L_fh0\nv_mov_b32 v3, {sA}\ns_mov_b32 {sC}, {sA}\nds_write_b32 v2, v3\nL_fh0:")
                if self.hslow:
                    a(f"s_bcnt1_i32_b32 {sB}, {sA}\ns_cmp_ge_u32 {sB}, 2\ns_cbranch_scc1 L_fh1\ns_sleep {self.hslow}\nL_fh1:")
                a(f"s_cmp_lg_u32 {sA}, 15")
            self.spoll(lambda: a((f"s_sleep {self.hsleep}\n" if self.hsleep else "") + f"s_load_dwordx8 s[56:63], {sP}, 0 glc"), hcheck, keep=self.hdepth)
        if not (self.hint and self.incr):
            a("v_mov_b32 v3, 15\nds_write_b32 v2, v3")
        self.stamp(2)
        if self.barx:
            a("s_barrier")
        self.end()
        a("L_ffn1:")
        g, b3, q4, r2, hi, b4 = F, F + 1, F + 2, F + 3, F + 4, F + 5
        a(f"v_mov_b32 {vr(MK)}, 0xffffff00")
        a(f"v_lshrrev_b32 {vr(g)}, 4, v1\nv_bfe_u32 {vr(b3)}, v1, 3, 1\nv_and_b32 {vr(q4)}, 3, v1\nv_bfe_u32 {vr(r2)}, v1, 2, 2\nv_lshrrev_b32 {vr(hi)}, 5, v1\nv_bfe_u32 {vr(b4)}, v1, 4, 1")
        a(f"s_lshl_b32 {sA}, {sw}, 4\nv_and_b32 v3, 15, v1\nv_add_u32 v3, {sA}, v3")
        a(f"v_lshlrev_b32 {vr(AHN)}, 3, v3\nv_lshl_add_u32 {vr(AHN)}, {vr(b4)}, 2, {vr(AHN)}\nv_lshl_add_u32 {vr(AH)}, {vr(hi)}, 10, {vr(AHN)}")
        a(f"global_load_dword {vr(XR)}, {vr(AH)}, {sX}")
        a(f"v_mul_u32_u24 v2, {HNS}, {vr(hi)}\nv_add_u32 {vr(AHN)}, v2, {vr(AHN)}")
        a(f"v_lshlrev_b32 {vr(AY)}, 4, v3\nv_lshl_add_u32 {vr(AY)}, {vr(hi)}, 14, {vr(AY)}\nv_lshl_add_u32 {vr(AY)}, {vr(b4)}, 11, {vr(AY)}\nv_bfe_u32 v3, v1, 2, 1")
        a(f"v_add_u32 {vr(AY + 1)}, {WS_YP + 12288}, {vr(AY)}\nv_add_u32 {vr(AY)}, {WS_YP + 4096}, {vr(AY)}")
        a(f"s_lshl_b32 {sA}, {sw}, 3\nv_lshlrev_b32 {vr(AS)}, 6, {vr(hi)}\nv_add_u32 {vr(ASW)}, {sA}, {vr(AS)}")
        a(f"v_and_b32 {vr(AA)}, 1, v1\nv_mul_u32_u24 {vr(AA)}, {HNS}, {vr(AA)}\nv_lshl_add_u32 {vr(AA)}, {vr(b4)}, 5, {vr(AA)}\nv_lshl_add_u32 {vr(AA)}, {vr(hi)}, 4, {vr(AA)}")
        if self.fold:
            a(f"v_and_b32 v2, 2, v1\nv_cmp_ne_u32 vcc, 0, v2\nv_lshlrev_b32 v2, 5, {vr(b4)}\nv_lshl_add_u32 v2, {vr(hi)}, 4, v2")
            a(f"v_add_u32 {vr(AA)}, {L_HN}, {vr(AA)}\nv_add_u32 v2, {L_ONE}, v2\nv_cndmask_b32 {vr(AA)}, {vr(AA)}, v2, vcc\nv_lshlrev_b32 {vr(AS)}, 6, {vr(b4)}")
        a(f"v_lshlrev_b32 {vr(AAR)}, 6, v3\nv_lshl_add_u32 {vr(AAR)}, {vr(g)}, 4, {vr(AAR)}")
        a(f"v_and_b32 {vr(AAW)}, 7, v1\nv_lshlrev_b32 {vr(AAW)}, 1, {vr(AAW)}\nv_lshl_add_u32 {vr(AAW)}, {vr(b4)}, 6, {vr(AAW)}\ns_lshl_b32 {sA}, {sw}, 4\nv_add_u32 {vr(AAW)}, {sA}, {vr(AAW)}")
        a(f"s_lshl_b32 {sB}, {sw}, 1\nv_add_u32 {vr(ADR)}, {sB}, {vr(hi)}\nv_lshl_add_u32 {vr(ADR)}, {vr(ADR)}, 1, v3\nv_mul_u32_u24 {vr(ADR)}, {FP_STRIDE}, {vr(ADR)}")
        a(f"s_lshl_b32 {sB}, {sF}, 7\ns_add_u32 {sB}, {sB}, {WS_FP}\nv_lshl_add_u32 {vr(ADR)}, {vr(q4)}, 4, {vr(ADR)}\nv_lshl_add_u32 {vr(ADR)}, {vr(b4)}, 6, {vr(ADR)}\nv_add_u32 {vr(ADR)}, {sB}, {vr(ADR)}")
        a(f"v_bfe_u32 v2, v1, 1, 1\nv_mul_u32_u24 v2, {L_U - L_G}, v2\nv_mul_u32_u24 v3, {GUP}, {vr(b4)}\nv_add_u32 v2, v2, v3")
        a(f"v_lshl_add_u32 v2, {vr(hi)}, 9, v2\nv_lshl_add_u32 v2, {vr(r2)}, 6, v2\nv_and_b32 v3, 1, v1\nv_lshl_add_u32 v2, v3, 3, v2")
        a(f"s_and_b32 {sA}, {sw}, 3\ns_lshl_b32 {sA}, {sA}, 4\nv_add_u32 v2, {sA}, v2")
        a(f"v_lshl_add_u32 v3, {vr(g)}, 3, {vr(r2)}\nv_mul_u32_u24 v3, {ROWP}, v3\nv_lshl_add_u32 v3, {vr(q4)}, 5, v3\ns_lshl_b32 {sB}, {sw}, 7\ns_add_u32 {sB}, {sB}, {L_D}\nv_add_u32 v3, {sB}, v3")
        a(f"s_mul_i32 {sB}, {sF}, {FP_STRIDE}\ns_lshl_b32 {sC}, {sw}, 6\ns_add_u32 {sB}, {sB}, {sC}\ns_add_u32 {sB}, {sB}, {WS_FP}")
        a(f"v_lshrrev_b32 {vr(AF)}, 2, v1\nv_lshlrev_b32 {vr(AF)}, 7, {vr(AF)}\nv_lshl_add_u32 {vr(AF)}, {vr(q4)}, 4, {vr(AF)}\nv_add_u32 {vr(AF)}, {sB}, {vr(AF)}")
        a(f"v_cmp_gt_u32 vcc, 44, v1\nv_add_u32 {vr(AF + 1)}, 4096, {vr(AF)}\nv_cndmask_b32 {vr(AF + 1)}, {vr(AF)}, {vr(AF + 1)}, vcc\nv_cndmask_b32 {vr(FM)}, 0, {vr(MK)}, vcc")
        a(f"s_and_b32 {sB}, {sF}, 1\ns_lshl_b32 {sB}, {sB}, 9\ns_lshr_b32 {sC}, {sF}, 1\ns_lshl_b32 {sC}, {sC}, 5\ns_add_u32 {sB}, {sB}, {sC}\ns_lshl_b32 {sC}, {sw}, 4\ns_add_u32 {sB}, {sB}, {sC}")
        a(f"v_lshl_add_u32 {vr(AO)}, {vr(b4)}, 1, {vr(hi)}\nv_lshl_add_u32 {vr(AO)}, {vr(q4)}, 2, {vr(AO)}\nv_add_u32 {vr(AO)}, {sB}, {vr(AO)}\nv_lshlrev_b32 {vr(AO)}, 1, {vr(AO)}")
        a(f"s_and_b32 {sB}, {sF}, 1\ns_mul_i32 {sB}, {sB}, {HNS - 1024}\nv_add_u32 {vr(AH)}, {sB}, {vr(AO)}" if self.fold else "")
        a(f"v_cmp_eq_u32 {sM1}, 1, {vr(b4)}")
        a(f"s_mov_b32 {sK1}, 0x3d372713\ns_mov_b32 {sK3}, 0xc0135761")

        def load1(n):
            a(f"global_load_dwordx4 {vr(F + 4 * n, 4)}, {vr(AY + n // 2)}, {sWS} offset:{-4096 if n % 2 == 0 else 0} sc1")

        def loads():
            for n in range(4):
                load1(n)

        def mask1(n):
            for i in range(4):
                a(f"v_and_b32 {vr(F + 4 * n + i)}, {vr(MK)}, {vr(F + 4 * n + i)}")

        def bdreads():
            for n in range(4):
                for hh in range(2):
                    a(f"ds_read_b64_tr_b16 {vr(BD + 4 * n + 2 * hh, 2)}, v3 offset:{hh * 4 * ROWP + n * 8}")

        def bgreads():
            for t in range(16):
                for hh in range(2):
                    a(f"ds_read_b64_tr_b16 {vr(BG + 4 * t + 2 * hh, 2)}, v2 offset:{L_G + t * 2 * GUP + hh * 256}")

        def frags(tag):
            a(f"s_mov_b32 {sRD}, 1")
            bdreads()
            a(f"s_cmp_gt_u32 {sw}, 3\ns_cbranch_scc1 L_ffr{tag}")
            bgreads()
            a(f"L_ffr{tag}:")
        a(f"v_mov_b32 {vr(F + 16)}, {L_DMA}\ns_mov_b32 {sRD}, 0\ns_mov_b32 {sSPIN}, 0\ns_waitcnt vmcnt(0)")
        self.unpack(XF, XR, 1)
        a(f"s_mov_b32 {sC}, 0\nL_fw:\nds_read2_b32 {vr(F + 18, 2)}, {vr(F + 16)} offset0:0 offset1:1")
        a(f"s_add_u32 {sSPIN}, {sSPIN}, 1\ns_cmp_gt_u32 {sSPIN}, {SPIN * 8}\ns_cbranch_scc1 L_bail\ns_waitcnt lgkmcnt(0)")
        a(f"v_readfirstlane_b32 {sB}, {vr(F + 19)}\nv_readfirstlane_b32 {sA}, {vr(F + 18)}\ns_andn2_b32 {sD}, {sB}, {sC}\ns_cbranch_scc0 L_fw1")
        for n in range(4):
            a(f"s_bitcmp0_b32 {sD}, {n}\ns_cbranch_scc1 L_fl{n}")
            load1(n)
            a(f"L_fl{n}:")
        if self.barx:
            a(f"s_mov_b32 {sC}, {sB}\ns_bcnt1_i32_b32 {sD}, {sB}\ns_cmp_ge_u32 {sD}, {self.xth}\ns_cbranch_scc1 L_fgo\nL_fw1:")
        else:
            a(f"s_mov_b32 {sC}, {sB}\ns_cmp_eq_u32 {sB}, 15\ns_cbranch_scc1 L_fgo\nL_fw1:")
        a(f"s_andn2_b32 {sA}, {sA}, {sRD}\ns_cbranch_scc0 L_fw0")
        frags("a")
        a("L_fw0:\n" + ("" if self.tight else "s_sleep 1\n") + "s_branch L_fw\nL_fgo:")
        if self.barx:
            a(f"s_andn2_b32 {sA}, {sA}, {sRD}\ns_cbranch_scc0 L_fx")
            frags("c")
            a("L_fx:")
            if self.early:
                a("s_waitcnt vmcnt(0)")
                for n in range(4):
                    a(f"s_bitcmp0_b32 {sC}, {n}\ns_cbranch_scc1 L_fe{n}")
                    self.chk(F + 22, [F + 4 * n])
                    mask1(n)
                    a(f"s_cbranch_vccz L_fe{n}\ns_bitset0_b32 {sC}, {n}\nL_fe{n}:")
            a("s_barrier")
            for n in range(4):
                a(f"s_bitcmp1_b32 {sC}, {n}\ns_cbranch_scc1 L_fm{n}")
                load1(n)
                a(f"L_fm{n}:")
        self.stamp(9)

        def shadow():
            if self.barx:
                a(f"ds_read_b32 {vr(F + 18)}, {vr(F + 16)}")
            self.lds_inc(L_YISS, F + 20, F + 21)
            if self.barx:
                a(f"s_waitcnt lgkmcnt(0)\nv_readfirstlane_b32 {sA}, {vr(F + 18)}")
            a(f"s_mov_b32 {sSPIN}, 0\ns_andn2_b32 {sA}, {sA}, {sRD}\ns_cbranch_scc0 L_fnog")
            frags("b")
            a("L_fnog:")
        if self.early and self.barx:
            shadow()
            a(f"s_mov_b64 {sM0}, 0\ns_waitcnt vmcnt(0)")
            for n in range(4):
                a(f"s_bitcmp1_b32 {sC}, {n}\ns_cbranch_scc1 L_fn{n}")
                self.chk(F + 22, [F + 4 * n])
                mask1(n)
                a(f"s_or_b64 {sM0}, {sM0}, vcc\nL_fn{n}:")
            a(f"s_cmp_eq_u64 {sM0}, 0\ns_cbranch_scc1 L_fok")
            self.poll(loads, lambda: self.chk(F + 16, [F + 4 * n for n in range(4)]))
            for n in range(4):
                mask1(n)
            a("L_fok:")
        else:
            self.poll(loads, lambda: self.chk(F + 16, [F + 4 * n for n in range(4)]), between=shadow, first=False)
            for n in range(4):
                mask1(n)
        self.stamp(10)
        self.count(1)
        for i in (0, 2):
            a(f"v_pk_add_f32 {vr(F + i, 2)}, {vr(F + i, 2)}, {vr(F + 4 + i, 2)}\nv_pk_add_f32 {vr(F + 8 + i, 2)}, {vr(F + 8 + i, 2)}, {vr(F + 12 + i, 2)}")
        for i in (0, 2):
            a(f"v_pk_add_f32 {vr(F + i, 2)}, {vr(F + i, 2)}, {vr(F + 8 + i, 2)}")
        a(f"v_permlane16_swap_b32 {vr(F)}, {vr(F + 2)}\nv_permlane16_swap_b32 {vr(F + 1)}, {vr(F + 3)}")
        a(f"v_pk_add_f32 {vr(F, 2)}, {vr(F, 2)}, {vr(F + 2, 2)}")
        self.bf16r(F, F)
        self.bf16r(F + 1, F + 1)
        a(f"v_pk_add_f32 {vr(F + 2, 2)}, {vr(F, 2)}, {vr(XF, 2)}")
        self.bf16r(F, F + 2)
        self.bf16r(F + 1, F + 3)
        S = F + 6
        a(f"v_add_f32 {vr(S)}, {vr(F)}, {vr(F + 1)}\nv_mul_f32 {vr(S + 1)}, {vr(F)}, {vr(F)}\nv_fmac_f32 {vr(S + 1)}, {vr(F + 1)}, {vr(F + 1)}")
        a(f"v_cvt_pk_bf16_f32 {vr(F + 4)}, {vr(F + 2)}, {vr(F + 3)}")
        self.dppred("v_add_f32", [S, S + 1], [f"row_ror:{r}" for r in (1, 2, 4, 8)])
        a(f"ds_write_b32 {vr(AHN)}, {vr(F + 4)} offset:{L_HN}" if self.fold else f"ds_write_b32 {vr(AH)}, {vr(F + 4)} offset:{L_H}")
        for r in (S, S + 1):
            a(f"v_add_f32_dpp {vr(r)}, {vr(r)}, {vr(r)} row_bcast:15 row_mask:0xa bank_mask:0xf")
        a(f"s_mov_b32 exec_lo, 0x10000\ns_mov_b32 exec_hi, 0x10000\nds_write_b64 {vr(ASW)}, {vr(S, 2)} offset:{L_STAT}")
        a("s_mov_b64 exec, -1\ns_waitcnt lgkmcnt(0)\ns_barrier")
        self.stamp(11)

        def stats(R):
            sub = Gen.__new__(Gen)
            out = []
            sub.a = lambda t: out.extend(t.split("\n"))
            for n in range(4):
                sub.a(f"v_pk_add_f32 {vr(R + 4 * n, 2)}, {vr(R + 4 * n, 2)}, {vr(R + 2 + 4 * n, 2)}")
            sub.a(f"v_pk_add_f32 {vr(R, 2)}, {vr(R, 2)}, {vr(R + 4, 2)}\nv_pk_add_f32 {vr(R + 8, 2)}, {vr(R + 8, 2)}, {vr(R + 12, 2)}")
            sub.a(f"v_pk_add_f32 {vr(R, 2)}, {vr(R, 2)}, {vr(R + 8, 2)}")
            sub.a(f"v_mul_f32 {vr(R)}, 0x3b000000, {vr(R)}\nv_mul_f32 {vr(R + 1)}, 0x3b000000, {vr(R + 1)}")
            sub.a(f"v_fma_f32 {vr(R + 1)}, -{vr(R)}, {vr(R)}, {vr(R + 1)}\nv_max_f32 {vr(R + 1)}, 0, {vr(R + 1)}")
            sub.ln_finish(ST, R, R + 1)
            return out
        if not self.fold:
            for n in range(4):
                a(f"ds_read_b128 {vr(F + 8 + 4 * n, 4)}, {vr(AS)} offset:{L_STAT + 16 * n}")
            a(f"ds_read_u16 {vr(HV)}, {vr(AO)} offset:{L_H}")
            a("s_waitcnt lgkmcnt(0)")
            for x in stats(F + 8):
                a(x)
            self.ln_apply2(F, ST, XF, F + 4)
            a(f"ds_write_b32 {vr(AHN)}, {vr(XF)} offset:{L_HN}\ns_waitcnt lgkmcnt(0)\ns_barrier")

        def announce(tag):
            a(f"s_cmp_lg_u32 {sw}, 4\ns_cbranch_scc1 L_fan{tag}")
            a(f"s_lshl_b32 {sA}, {sF}, 2\ns_add_u32 {sA}, {sA}, {WS_FT}\nv_add_u32 {vr(BG)}, {sF}, v1\nv_and_b32 {vr(BG)}, {self.nrep - 1}, {vr(BG)}\nv_lshl_add_u32 {vr(BG)}, {vr(BG)}, 8, {sA}\nv_mov_b32 {vr(BG + 1)}, {sT}")
            for i in range(self.clag):
                a(f"ds_read_b32 {vr(BG + 2)}, {vr(AS)}\ns_waitcnt lgkmcnt(0)")
            a(f"s_bfm_b64 exec, {self.nrep}, 0\nglobal_store_dword {vr(BG)}, {vr(BG + 1)}, {sWS} sc1\ns_mov_b64 exec, -1\nL_fan{tag}:")
        a(f"s_cmp_lt_u32 {sw}, 4\ns_cbranch_scc1 L_fgu")
        if self.bump == "early":
            a(f"s_lshl_b32 {sA}, {sF}, 3\ns_add_u32 {sA}, {sA}, {sw}\ns_cmp_lg_u32 {sA}, 7\ns_cbranch_scc1 L_fnb")
            a(f"v_mov_b32 {vr(BG)}, 0\nv_mov_b32 {vr(BG + 1)}, {sT}\ns_mov_b64 exec, 1\nglobal_store_dword {vr(BG)}, {vr(BG + 1)}, {sWS} sc1\ns_mov_b64 exec, -1\nL_fnb:")
        if self.cpt == "hn":
            announce("a")
        a(f"s_branch L_fact\nL_fgu:\ns_cmp_lg_u32 {sRD}, 0\ns_cbranch_scc1 L_fgu2")
        bgreads()
        a("s_waitcnt lgkmcnt(0)\nL_fgu2:")
        hoff = 0 if self.fold else L_HN
        fill = []
        pre = 4 if self.fold and self.micro else 0
        for t in range(pre):
            a(f"ds_read_b128 {vr(F + 4 * t, 4)}, {vr(AA)} offset:{hoff + 64 * t}")
        if self.fold:
            SR = 144 + 4
            for n in range(3):
                a(f"ds_read_b128 {vr(SR + 4 * n, 4)}, {vr(AS)} offset:{L_STAT + 16 * n}")
            a(f"ds_read_b128 {vr(ST + 4, 4)}, {vr(AS)} offset:{L_STAT + 48}")
            fill = [x.replace(vr(SR + 12, 2), vr(ST + 4, 2)).replace(vr(SR + 14, 2), vr(ST + 6, 2)) for x in stats(SR)]
        for t in range(pre, 8):
            a(f"ds_read_b128 {vr(F + 4 * t, 4)}, {vr(AA)} offset:{hoff + 64 * t}")
        for t in range(16):
            a(f"s_waitcnt lgkmcnt({11 if t < pre else min(7, 15 - t)})")
            a(f"v_mfma_f32_16x16x32_bf16 {vr(D, 4)}, {vr(F + 4 * (t % 8), 4)}, {vr(BG + 4 * t, 4)}, {vr(D, 4) if t else 0}")
            if t < 8:
                a(f"ds_read_b128 {vr(F + 4 * t, 4)}, {vr(AA)} offset:{hoff + 64 * (t + 8)}")
            nf = (0 if t < pre else 2) if pre else (1 if t < 8 else 2)
            for x in fill[:nf]:
                a(x)
            fill = fill[nf:]
        assert not fill
        G = BG
        a(f"v_cndmask_b32 {vr(G)}, {vr(D)}, {vr(D + 1)}, {sM1}")
        if self.fold:
            a(f"v_fma_f32 {vr(G)}, -{vr(ST)}, {vr(D + 2)}, {vr(G)}\nv_mul_f32 {vr(G)}, {vr(G)}, {vr(ST + 4)}")
        self.bf16r(G, G)
        a(f"v_mul_f32 {vr(G + 2)}, {vr(G)}, {vr(G)}\nv_mul_f32 {vr(G + 3)}, {sK3}, {vr(G)}")
        a(f"v_mov_b32_dpp {vr(G + 1)}, {vr(G)} row_ror:8 {FULL}")
        a(f"v_fma_f32 {vr(G + 2)}, {vr(G + 2)}, {sK1}, 1.0")
        a(f"v_mul_f32 {vr(G + 2)}, {vr(G + 2)}, {vr(G + 3)}\nv_exp_f32 {vr(G + 2)}, {vr(G + 2)}\nv_add_f32 {vr(G + 2)}, 1.0, {vr(G + 2)}")
        a(f"v_rcp_f32 {vr(G + 2)}, {vr(G + 2)}\nv_mul_f32 {vr(G)}, {vr(G)}, {vr(G + 2)}")
        self.bf16r(G, G)
        a(f"v_mul_f32 {vr(G)}, {vr(G)}, {vr(G + 1)}\nv_cvt_pk_bf16_f32 {vr(G)}, {vr(G)}, {vr(G)}")
        a(f"s_mov_b64 exec, 0x00ff00ff\nds_write_b16 {vr(AAW)}, {vr(G)} offset:{L_ACT}\ns_mov_b64 exec, -1")
        a("L_fact:")
        if self.fold:
            a(f"ds_read_u16 {vr(HV)}, {vr(AH)} offset:{L_HN}")
        for i in range(16):
            a(f"v_mov_b32 {vr(F + i)}, 0")
        a("s_waitcnt lgkmcnt(0)\ns_barrier")
        self.stamp(12)
        if self.cpt == "act":
            announce("b")
        a(f"s_cmp_lg_u32 {sRD}, 0\ns_cbranch_scc1 L_fdn")
        bdreads()
        a("L_fdn:")
        for n in range(4):
            a(f"s_mov_b32 exec_lo, {0x11111111 << n:#x}\ns_mov_b32 exec_hi, {0x11111111 << n:#x}")
            a(f"ds_read_b128 {vr(F + 4 * n, 4)}, {vr(AAR)} offset:{L_ACT}")
        a(f"s_mov_b64 exec, -1\nv_lshlrev_b32 {vr(HV)}, 16, {vr(HV)}")
        a("s_waitcnt lgkmcnt(0)")
        for n in range(4):
            a(f"v_mfma_f32_16x16x32_bf16 {vr(D, 4)}, {vr(BD + 4 * n, 4)}, {vr(F + 4 * n, 4)}, {vr(D, 4) if n else 0}")
        a("s_mov_b32 exec_lo, 0x00ff00ff\ns_mov_b32 exec_hi, 0x00ff00ff")
        self.tag4(D, MK)
        a(f"global_store_dwordx4 {vr(ADR)}, {vr(D, 4)}, {sWS} sc1")
        self.stamp(13)
        a(f"s_mov_b64 exec, -1\ns_cmp_ge_u32 {sF}, 32\ns_cbranch_scc1 L_none\ns_cmp_ge_u32 {sw}, 2\ns_cbranch_scc1 L_none")
        if self.cpt in ("hn", "act"):
            a(f"s_and_b32 {sA}, {sF}, {self.nrep - 1}\ns_lshl_b32 {sA}, {sA}, 8\ns_add_u32 {sA}, {sA}, {WS_FT}\ns_add_u32 s52, s26, {sA}\ns_addc_u32 s53, s27, 0\ns_mov_b32 s98, {sT}\ns_mov_b32 s99, {sT}")

            def fcheck():
                pairs = list(range(4, 20, 2)) + list(range(64, 80, 2)) + list(range(56, 64, 2)) + [44]
                a(f"s_xor_b32 s46, s46, {sT}")
                for p in pairs:
                    a(f"s_xor_b64 s[{p}:{p + 1}], s[{p}:{p + 1}], {sTT}")
                a("s_or_b32 s4, s4, s46")
                for p in pairs[1:]:
                    a(f"s_or_b64 s[4:5], s[4:5], s[{p}:{p + 1}]")
            self.spoll(lambda: a(f"s_load_dwordx16 s[4:19], {sP}, 0 glc\ns_load_dwordx16 s[64:79], {sP}, 64 glc\ns_load_dwordx8 s[56:63], {sP}, 128 glc\ns_load_dwordx4 s[44:47], {sP}, 160 glc"), fcheck)
        elif self.csleep:
            a(f"s_sleep {self.csleep}")
        elif self.ackwait:
            a("s_waitcnt vmcnt(0)")

        def floads():
            a(f"global_load_dwordx4 {vr(F, 4)}, {vr(AF)}, {sWS} sc1\nglobal_load_dwordx4 {vr(F + 4, 4)}, {vr(AF)}, {sWS} offset:2048 sc1")
            a(f"global_load_dwordx4 {vr(F + 8, 4)}, {vr(AF + 1)}, {sWS} sc1")
        self.poll(floads, lambda: self.chk(F + 12, [F, F + 4, F + 8]))
        self.count(2)
        for i in range(8):
            a(f"v_and_b32 {vr(F + i)}, {vr(MK)}, {vr(F + i)}")
        for i in range(4):
            a(f"v_and_b32 {vr(F + 8 + i)}, {vr(FM)}, {vr(F + 8 + i)}")
        for k in (4, 8):
            for i in (0, 2):
                a(f"v_pk_add_f32 {vr(F + i, 2)}, {vr(F + i, 2)}, {vr(F + k + i, 2)}")
        self.tr_reduce4(F, (4, 8))
        self.bf16r(F, F)
        a("s_mov_b32 exec_lo, 0x000f000f\ns_mov_b32 exec_hi, 0x000f000f")
        a(f"v_add_f32 {vr(F)}, {vr(F)}, {vr(HV)}\nv_cvt_pk_bf16_f32 {vr(F)}, {vr(F)}, {vr(F)}")
        a(f"global_store_short {vr(AO)}, {vr(F)}, {sOUT} {self.outf}")
        self.stamp(14)
        if self.bump != "early" or self.pad:
            a(f"s_or_b32 {sA}, {sF}, {sw}\ns_cmp_lg_u32 {sA}, 0\ns_cbranch_scc1 L_none")
        if self.bump != "early":
            a(f"v_mov_b32 v2, 0\nv_mov_b32 v3, {sT}\ns_mov_b64 exec, 1\nglobal_store_dword v2, v3, {sWS} sc1")
        if self.pad:
            a(f"s_mov_b32 s88, {self.pad}")
            if self.probe in ("smax", "smin", "smed"):
                op = "v_max_i32" if self.probe == "smax" else ("v_min_i32" if self.probe == "smin" else "v_add_u32")
                a(f"s_mov_b64 exec, -1\nv_lshlrev_b32 v2, 4, v1\nv_add_u32 v2, {WS_ST}, v2\nglobal_load_dwordx4 v[4:7], v2, {sWS} sc1\ns_waitcnt vmcnt(0)")
                for i in range(4):
                    a(f"v_subrev_u32 v{4 + i}, s80, v{4 + i}")
                a(f"{op} v4, v4, v5\n{op} v6, v6, v7\n{op} v4, v4, v6")
                self.dppred(op, [4], [f"row_ror:{r}" for r in (1, 2, 4, 8)])
                self.redrows(op, [4], 5)
                if self.probe == "smed":
                    a("v_ashrrev_i32 v4, 8, v4")
                a("v_readfirstlane_b32 s84, v4\ns_add_u32 s84, s84, 300\ns_add_u32 s84, s84, s80")
            if self.probe is not None:
                a("s_waitcnt lgkmcnt(0)\ns_sub_u32 s84, s84, s80\ns_lshl_b32 s84, s84, 2\ns_min_u32 s84, s84, 20000\ns_add_u32 s88, s88, s84")
            a("L_pad:\ns_memrealtime s[86:87]\ns_waitcnt lgkmcnt(0)\ns_sub_u32 s86, s86, s80\ns_cmp_lt_u32 s86, s88\ns_cbranch_scc1 L_pad")
        self.end()


if __name__ == "__main__":
    out = sys.argv[1]
    kw = {}
    for x in sys.argv[2:]:
        k, v = x.split("=")
        kw[k] = {"True": True, "False": False}.get(v, v)
    g = Gen(**kw)
    open(out, "w").write(g.build())
    print("written", out, "nops", g.nops)
```

```python
import sys
from asmlib import Asm

KN = "sequential_preLN__sliding_block_cached__geglu_ffn__decode_kernel"
HEADER = open("sequential_preLN__sliding_block_cached__geglu_ffn__decode.s.ref").read().split("; Override launch")[0]

WS_FT, WS_HT, WS_XT, WS_QP, WS_OP, WS_ML, WS_YP, WS_FP, WS_ST = 0x4A000, 0x48000, 0x400, 0x1000, 0x50000, 0x70000, 0x80000, 0x110000, 0x200000
WS_DT = 0x800
FP_STRIDE = 6144
TAGC = 0x9E3779B9
L_Q, L_MAX, L_SUM, L_CNT, L_VCNT, L_MCNT, L_QF, L_PUB, L_DMA, L_HINT, L_YISS = 0, 256, 304, 352, 356, 360, 364, 368, 372, 376, 380
L_OP, L_RED, L_STAT, L_ACT, L_H, L_HN, L_W = 512, 6656, 10752, 11008, 11264, 13312, 15616
ROWP = 1040
GUP = 1056
L_G = L_W
L_U = L_G + 32 * GUP + 16
L_D = L_U + 32 * GUP + 240
LDS_BYTES = L_D + 32 * ROWP
L_LOC = 384
L_ONE = L_H + 128
SPIN = 1 << 19

DOC = """; One persistent launch: 256 workgroups (one per CU) x 10 waves. Workgroup id -> group x = id & 7, head 4x + (id >> 6),
; stores are sc1 except the attention partials, which use plain stores only when all 32 workgroups of the group have reported
"""

sX, sK, sV, sWQ, sWO, sWG, sWU, sWD, sOUT, sWS = "s[4:5]", "s[6:7]", "s[8:9]", "s[10:11]", "s[12:13]", "s[16:17]", "s[18:19]", "s[20:21]", "s[22:23]", "s[26:27]"
sXCD, sH, sJ, sW, sT = "s28", "s29", "s30", "s31", "s32"
sT1, sT2, sT3 = "s33", "s34", "s35"
sSELA, sSELB, sHI = "s36", "s37", "s38"
sSPIN = "s39"
sA, sB, sC, sD = "s40", "s41", "s42", "s43"
sM0, sM1 = "s[44:45]", "s[46:47]"
sF = "s48"
sK1, sK2, sK3 = "s49", "s50", "s51"
sP = "s[52:53]"
sLOC, sNACT, sRD = "s54", "s55", "s96"
sTT = "s[98:99]"
ST0 = 80
FULL = "row_mask:0xf bank_mask:0xf"


def vr(a, n=1):
    return f"v{a}" if n == 1 else f"v[{a}:{a + n - 1}]"


class Gen:
    def __init__(self, diag=False, nt="nt", wnt="nt", prefetch=True, pad=0, lds=None, nvg=160, probe=None, stamps=None,
                 nk0=4, helper=True, hrow0=128, local=True, ackwait=True, nk1=8, optouch=True, window=True, exp="", wwin=15, hint=True, lag=5, fwin=32, downearly=True, b0=True, tight=False, nww=8, wotouch=True, nv1=0, hwin=3, idledma=True, hpub=False, fpub=False, nth=0, nlate=12, hgu=0, hall=True, tlb=False, cpt="ack", hmode="s", hsleep=0, fchk=8, fwin0=11, fk0=24, incr=True, bump="early", outf="nt", nkpre=1, clag=0, nrep=32, wopair=False, frot=True, wk0=16, hr=128, wont="nt", fnt="", barx=True, hdown=False, clean=False, fpre=8, wpre=8, tog=9, csleep=0, fold=True, micro=True, early=False, hdepth=0, xth=3, ytouch=False, prew="", prio=True, layout="sc", hsh=0, dflag=False, vtlb=False, xts=True, hslow=0, nva=1, hml=0, fml=0, fmk=16, presetup=True, skew=0, skx=6, kwin=0, nb=0, qdel=0):
        self.a = Asm()
        self.diag, self.nt, self.wnt, self.prefetch = diag, nt, wnt, prefetch
        self.uid = 0
        self.pad, self.probe, self.stamps, self.sec = int(pad), probe, stamps, ""
        self.nk0, self.helper, self.hrow0, self.local, self.ackwait = int(nk0), helper, int(hrow0), local, ackwait
        self.nk1 = int(nk1)
        self.optouch, self.window, self.exp, self.wwin = optouch, window, exp, int(wwin)
        self.hint, self.lag, self.fwin = hint, int(lag), int(fwin)
        self.downearly, self.b0, self.tight = downearly, b0, tight
        self.nww, self.wotouch = int(nww), wotouch
        self.nwn = 16 - self.nww
        self.incr, self.bump, self.outf, self.nkpre, self.clag = incr, bump, outf, int(nkpre), int(clag)
        self.slots = {}
        self.qdel = int(qdel)
        self.nb = int(nb)
        self.skew, self.skx, self.kwin = int(skew), int(skx), int(kwin)
        self.presetup = presetup
        self.hml, self.fml, self.fmk = int(hml), int(fml), int(fmk)
        self.nva = int(nva)
        self.hslow = int(hslow)
        self.xts = xts
        self.vtlb = vtlb
        self.dflag = dflag
        self.hsh = int(hsh)
        self.layout = layout
        self.prio = prio
        self.prew = prew
        self.xth, self.ytouch = int(xth), ytouch
        self.hdepth = int(hdepth)
        self.micro, self.early = micro, early
        self.fold = fold
        self.tog, self.csleep = int(tog), int(csleep)
        self.clean, self.fpre, self.wpre = clean, int(fpre), int(wpre)
        self.barx, self.hdown = barx, hdown
        self.wont, self.fnt = wont, fnt
        self.hr = int(hr)
        self.wopair, self.frot, self.wk0 = wopair, frot, int(wk0)
        self.nrep = int(nrep)
        self.hmode, self.hsleep, self.fchk, self.fwin0, self.fk0 = hmode, int(hsleep), int(fchk), int(fwin0), int(fk0)
        self.hall, self.tlb, self.cpt = hall, tlb, cpt
        self.hpub, self.fpub, self.nth, self.nlate, self.hgu = hpub, fpub, int(nth), int(nlate), int(hgu)
        self.nv1, self.hwin, self.idledma = int(nv1), int(hwin), idledma and self.nww < 8
        self.nwaves = max(self.nwn, 9) + 1
        self.nh = (4 if self.nwn == 8 and micro else 5) if self.nwn <= 10 else 6
        self.lds = int(lds) if lds else LDS_BYTES
        self.nvg = int(nvg)

    def stamp(self, i):
        key = self.sec + str(i)
        if self.probe == key:
            self.a("s_memrealtime s[84:85]")
        if self.diag and key in self.stamps:
            r = self.slot(i)
            self.a(f"s_memrealtime s[{r}:{r + 1}]")

    def slot(self, i):
        if i not in self.slots:
            self.slots[i] = ST0 + 4 + 2 * len(self.slots)
            assert self.slots[i] <= 94, "at most six stamp slots"
        return self.slots[i]

    def count(self, i):
        if self.diag and self.stamps is not None and ("n" + self.sec + str(i)) in self.stamps:
            self.a(f"s_add_u32 s{self.slot(i)}, {sSPIN}, 1")

    def end(self):
        self.a("s_branch L_exit" if self.diag else "s_endpgm")

    def bf16r(self, d, x):
        self.a(f"v_cvt_pk_bf16_f32 {vr(d)}, 0, {vr(x)}")

    def unpack(self, d, s, n):
        for i in range(n):
            self.a(f"v_lshlrev_b32 {vr(d + 2 * i)}, 16, {vr(s + i)}\nv_and_b32 {vr(d + 2 * i + 1)}, {sHI}, {vr(s + i)}")

    def dppred(self, op, regs, mods):
        for mod in mods:
            for r in regs:
                self.a(f"{op}_dpp {vr(r)}, {vr(r)}, {vr(r)} {mod} {FULL}")

    def redrows(self, op, regs, tmp):
        a = self.a
        for sw in ("v_permlane16_swap_b32", "v_permlane32_swap_b32"):
            for i, r in enumerate(regs):
                a(f"v_mov_b32 {vr(tmp + i)}, {vr(r)}")
            for i, r in enumerate(regs):
                a(f"{sw} {vr(r)}, {vr(tmp + i)}")
            for i, r in enumerate(regs):
                a(f"{op} {vr(r)}, {vr(r)}, {vr(tmp + i)}")

    def red8x(self, op, regs, tmp):
        self.dppred(op, regs, ("quad_perm:[1,0,3,2]", "quad_perm:[2,3,0,1]", "row_half_mirror"))
        self.redrows(op, regs, tmp)

    def selectors(self, sel, t0, nm, bits=2):
        a = self.a
        a(f"v_and_b32 {vr(t0)}, 1, v1")
        a(f"v_cmp_eq_u32 vcc, 1, {vr(t0)}")
        a(f"v_mov_b32 {vr(t0 + 1)}, 0x0c0c0100\nv_mov_b32 {vr(t0 + 2)}, 0x01000c0c")
        a(f"v_cndmask_b32 {vr(t0 + 1)}, {vr(t0 + 1)}, {vr(t0 + 2)}, vcc")
        a(f"v_mov_b32 {vr(t0 + 2)}, 0x0c0c0302\nv_mov_b32 {vr(t0 + 3)}, 0x03020c0c")
        a(f"v_cndmask_b32 {vr(t0 + 2)}, {vr(t0 + 2)}, {vr(t0 + 3)}, vcc")
        a(f"v_bfe_u32 {vr(t0)}, v1, 1, {bits}")
        a(f"v_mov_b32 {vr(t0 + 3)}, 0x0c0c0c0c")
        for m in range(nm):
            a(f"v_cmp_eq_u32 vcc, {m}, {vr(t0)}")
            a(f"v_cndmask_b32 {vr(sel + 2 * m)}, {vr(t0 + 3)}, {vr(t0 + 1)}, vcc")
            a(f"v_cndmask_b32 {vr(sel + 2 * m + 1)}, {vr(t0 + 3)}, {vr(t0 + 2)}, vcc")

    def tag_consts(self):
        a = self.a
        a(f"s_add_u32 {sT}, {sT}, {TAGC}")
        a(f"s_lshr_b32 {sT1}, {sT}, 8\ns_lshr_b32 {sT2}, {sT}, 16\ns_lshr_b32 {sT3}, {sT}, 24")
        a(f"s_mov_b32 {sSELA}, 0x0c0c0400\ns_mov_b32 {sSELB}, 0x04000c0c")

    def tag4(self, d, mask):
        for i, s in enumerate((sT, sT1, sT2, sT3)):
            self.a(f"v_bfi_b32 {vr(d + i)}, {vr(mask)}, {vr(d + i)}, {s}")

    def chk(self, t, gs):
        a = self.a
        for n, g in enumerate(gs):
            a(f"v_perm_b32 {vr(t + 2 * n)}, {vr(g + 1)}, {vr(g)}, {sSELA}")
            a(f"v_perm_b32 {vr(t + 2 * n + 1)}, {vr(g + 3)}, {vr(g + 2)}, {sSELB}")
        for n, g in enumerate(gs):
            a(f"v_bitop3_b32 {vr(t + 2 * n)}, {vr(t + 2 * n)}, {vr(t + 2 * n + 1)}, {sT} bitop3:0x56")
        rest = [t + 2 * n for n in range(1, len(gs))]
        while rest:
            if len(rest) >= 2:
                a(f"v_or3_b32 {vr(t)}, {vr(t)}, {vr(rest[0])}, {vr(rest[1])}")
                rest = rest[2:]
            else:
                a(f"v_or_b32 {vr(t)}, {vr(t)}, {vr(rest[0])}")
                rest = []
        a(f"v_cmp_ne_u32 vcc, 0, {vr(t)}")

    def poll(self, loads, check, between=None, first=True):
        a = self.a
        self.uid += 1
        L = self.cur_poll = f"L_poll{self.uid}"
        a(f"s_mov_b32 {sSPIN}, 0")
        if between:
            if first:
                loads()
            between()
            a(f"s_branch {L}w")
        a(f"{L}:")
        loads()
        a(f"s_add_u32 {sSPIN}, {sSPIN}, 1\ns_cmp_gt_u32 {sSPIN}, {SPIN}\ns_cbranch_scc1 L_bail")
        a(f"{L}w:\ns_waitcnt vmcnt(0)\n{L}c:")
        check()
        a(f"s_cbranch_vccnz {L}")

    def spoll(self, loads, check, keep=0):
        a = self.a
        self.uid += 1
        L = f"L_sp{self.uid}"
        a(f"s_mov_b32 {sSPIN}, 0\n{L}:")
        loads()
        a(f"s_add_u32 {sSPIN}, {sSPIN}, 1\ns_cmp_gt_u32 {sSPIN}, {SPIN}\ns_cbranch_scc1 L_bail\ns_waitcnt lgkmcnt({keep})")
        check()
        a(f"s_cbranch_scc1 {L}")

    def lds_wait(self, word, val, va, vt, tight=False):
        a = self.a
        self.uid += 1
        L = f"L_lw{self.uid}"
        a(f"v_mov_b32 {vr(va)}, {word}\ns_mov_b32 {sSPIN}, 0\n{L}:")
        a(f"ds_read_b32 {vr(vt)}, {vr(va)}\ns_add_u32 {sSPIN}, {sSPIN}, 1\ns_cmp_gt_u32 {sSPIN}, {SPIN * 8}\ns_cbranch_scc1 L_bail")
        a(f"s_waitcnt lgkmcnt(0)\nv_readfirstlane_b32 {sA}, {vr(vt)}\ns_cmp_ge_u32 {sA}, {val}\n" + (f"s_cbranch_scc0 {L}" if tight and self.tight else f"s_cbranch_scc1 {L}d\ns_sleep 1\ns_branch {L}\n{L}d:"))

    def lds_inc(self, word, va, vt):
        self.a(f"v_mov_b32 {vr(va)}, {word}\nv_mov_b32 {vr(vt)}, 1\ns_mov_b64 exec, 1\nds_add_u32 {vr(va)}, {vr(vt)}\ns_mov_b64 exec, -1")

    def tr_reduce4(self, v, rots):
        a = self.a
        a(f"v_permlane32_swap_b32 {vr(v)}, {vr(v + 1)}")
        a(f"v_permlane32_swap_b32 {vr(v + 2)}, {vr(v + 3)}")
        a(f"v_add_f32 {vr(v)}, {vr(v)}, {vr(v + 1)}")
        a(f"v_add_f32 {vr(v + 2)}, {vr(v + 2)}, {vr(v + 3)}")
        a(f"v_permlane16_swap_b32 {vr(v)}, {vr(v + 2)}")
        a(f"v_add_f32 {vr(v)}, {vr(v)}, {vr(v + 2)}")
        self.dppred("v_add_f32", [v], [f"row_ror:{r}" for r in rots])

    def ln_finish(self, t, mean, var):
        a = self.a
        self.bf16r(var, var)
        self.bf16r(t, mean)
        a(f"v_add_f32 {vr(var)}, 0x3727c5ac, {vr(var)}")
        self.bf16r(var, var)
        a(f"v_sqrt_f32 {vr(var)}, {vr(var)}")
        self.bf16r(t + 2, var)
        a(f"v_rcp_f32 {vr(t + 4)}, {vr(t + 2)}")

    def ln_apply2(self, F, t, P, tmp):
        a = self.a
        a(f"v_pk_add_f32 {vr(F, 2)}, {vr(F, 2)}, {vr(t, 2)} op_sel_hi:[1,0] neg_lo:[0,1] neg_hi:[0,1]")
        self.bf16r(F, F)
        self.bf16r(F + 1, F + 1)
        a(f"v_pk_mul_f32 {vr(tmp, 2)}, {vr(F, 2)}, {vr(t + 4, 2)} op_sel_hi:[1,0]")
        a(f"v_pk_fma_f32 {vr(F, 2)}, {vr(tmp, 2)}, {vr(t + 2, 2)}, {vr(F, 2)} op_sel_hi:[1,0,1] neg_lo:[1,0,0] neg_hi:[1,0,0]")
        a(f"v_pk_fma_f32 {vr(F, 2)}, {vr(F, 2)}, {vr(t + 4, 2)}, {vr(tmp, 2)} op_sel_hi:[1,0,1]")
        a(f"v_cvt_pk_bf16_f32 {vr(P)}, {vr(F)}, {vr(F + 1)}")

    def gemv16(self, D, X, SEL, B, A, steps):
        a = self.a
        for t in range(steps):
            for m in range(2):
                a(f"v_perm_b32 {vr(A + 2 * t + m)}, {vr(X + t // 2)}, {vr(X + t // 2)}, {vr(SEL + 2 * m + (t & 1))}")
            if t >= 1:
                u = t - 1
                a(f"v_mfma_f32_16x16x16_bf16 {vr(D, 4)}, {vr(A + 2 * u, 2)}, {vr(B + 2 * u, 2)}, {vr(D, 4) if u else 0}")
        u = steps - 1
        a(f"v_mfma_f32_16x16x16_bf16 {vr(D, 4)}, {vr(A + 2 * u, 2)}, {vr(B + 2 * u, 2)}, {vr(D, 4)}")

    def role(self, lw, lh, lf, ln):
        a = self.a
        a(f"s_and_b32 {sA}, {sH}, 3\ns_lshl_b32 {sF}, {sA}, 2\ns_lshr_b32 {sA}, {sJ}, 2\ns_lshl_b32 {sA}, {sA}, 1\ns_add_u32 {sF}, {sF}, {sA}")
        a(f"s_and_b32 {sA}, {sJ}, 1\ns_add_u32 {sF}, {sF}, {sA}")
        a(f"s_bitcmp0_b32 {sJ}, 1\ns_cbranch_scc1 {lw}")
        a(f"s_cmp_lt_u32 {sF}, 8\ns_cbranch_scc1 {lh}")
        a(f"s_sub_u32 {sA}, {sF}, 8")
        a(f"s_min_u32 {sB}, {sXCD}, 3\ns_mul_i32 {sF}, {sXCD}, 5\ns_add_u32 {sF}, {sF}, {sB}\ns_add_u32 {sF}, {sF}, {sA}")
        a(f"s_cmp_lt_u32 {sXCD}, 3\ns_cselect_b32 {sB}, 6, 5\ns_cmp_lt_u32 {sA}, {sB}\ns_cbranch_scc1 {lf}")
        a(f"s_branch {ln}")

    def build(self):
        a = self.a
        a(f"{KN}:")
        if self.diag or self.pad:
            a(f"s_memrealtime s[{ST0}:{ST0 + 1}]")
        if self.skew:
            assert self.diag
            a(f"s_and_b32 s28, s2, 7\ns_cmp_lt_u32 s28, {self.skx}\ns_cbranch_scc1 L_nosk\ns_waitcnt lgkmcnt(0)")
            a(f"L_sk:\ns_memrealtime s[40:41]\ns_waitcnt lgkmcnt(0)\ns_sub_u32 s40, s40, s{ST0}\ns_cmp_lt_u32 s40, {self.skew}\ns_cbranch_scc1 L_sk\nL_nosk:")
        a("s_load_dwordx16 s[4:19], s[0:1], 0\ns_load_dwordx8 s[20:27], s[0:1], 64")
        a("s_cmp_ge_u32 s2, 256\ns_cbranch_scc1 L_bail")
        if self.diag:
            for i in range(2, 8):
                a(f"s_mov_b32 s{ST0 + 2 * i}, 0")
        a(f"v_readfirstlane_b32 {sW}, v0\nv_and_b32 v1, 63, v0")
        a(f"s_and_b32 {sXCD}, s2, 7\ns_lshr_b32 {sJ}, s2, 3\ns_lshr_b32 {sH}, s2, 6\ns_lshl_b32 {sA}, {sXCD}, 2\ns_add_u32 {sH}, {sH}, {sA}")
        a(f"s_and_b32 {sJ}, {sJ}, 7\ns_lshr_b32 {sW}, {sW}, 6\ns_mov_b32 {sHI}, 0xffff0000")
        a(f"s_bitcmp0_b32 {sJ}, 1\ns_cselect_b32 {sNACT}, {self.nww}, {self.nwn}")
        self.sw = sW if not self.diag else "s97"
        if self.layout == "sc":
            a(f"s_cmp_eq_u32 {sW}, 0\ns_cbranch_scc1 L_comm")
            parts = (("s", self.stream_early), ("s", self.idle_early), ("c", self.comm_early), ("c", self.comm), ("s", self.stream))
        elif self.layout == "cs":
            a(f"s_cmp_lg_u32 {sW}, 0\ns_cbranch_scc1 L_stream")
            parts = (("c", self.comm_early), ("s", self.stream_early), ("s", self.idle_early), ("c", self.comm), ("s", self.stream))
        else:
            a(f"s_cmp_lg_u32 {sW}, 0\ns_cbranch_scc1 L_stream")
            parts = (("c", self.comm_early), ("c", self.comm), ("s", self.stream_early), ("s", self.stream), ("s", self.idle_early))
        for self.sec, part in parts + (("w", self.role_wo), ("f", self.role_ffn)):
            part()
        a("L_none:")
        self.end()
        if self.diag:
            a("L_exit:")
            a("s_mov_b64 exec, -1\ns_waitcnt vmcnt(0) lgkmcnt(0)")
            a(f"s_memrealtime s[{ST0 + 2}:{ST0 + 3}]\ns_waitcnt lgkmcnt(0)")
            a(f"s_mul_i32 {sA}, s2, 12\ns_add_u32 {sA}, {sA}, {sW}\ns_lshl_b32 {sA}, {sA}, 6\ns_add_u32 {sA}, {sA}, {WS_ST}")
            for i in range(16):
                src = {0: f"s{ST0}", 15: f"s{ST0 + 2}"}.get(i, f"s{self.slots[i]}" if i in self.slots else "0")
                a(f"v_mov_b32 v{4 + i}, {src}")
            a(f"v_mov_b32 v2, {sA}\ns_mov_b64 exec, 1")
            for i in range(4):
                a(f"global_store_dwordx4 v2, v[{4 + 4 * i}:{7 + 4 * i}], {sWS} offset:{16 * i}")
        a("L_bail:\ns_endpgm")
        a("L_codeend:")
        self.nops = a.fix_hazards()
        txt = HEADER
        txt += DOC
        txt += f"; @launch grid=(256,1,1) block=({64 * self.nwaves},1,1) lds={self.lds}\n"
        txt += f'.amdgcn_target "amdgcn-amd-amdhsa--gfx950"\n.text\n.globl {KN}\n.p2align 8\n.type {KN},@function\n'
        txt += a.text() + "\n"
        if self.prefetch:
            txt += ".fill 256, 4, 0xbf810000\n"
        txt += f""".section .rodata,"a"
.p2align 6
.amdhsa_kernel {KN}
  .amdhsa_next_free_vgpr {self.nvg}
  .amdhsa_next_free_sgpr 102
  .amdhsa_accum_offset {self.nvg}
  .amdhsa_group_segment_fixed_size 0
  .amdhsa_kernarg_size 96
  .amdhsa_user_sgpr_count 2
  .amdhsa_user_sgpr_kernarg_segment_ptr 1
  .amdhsa_system_sgpr_workgroup_id_x 1
.end_amdhsa_kernel
"""
        return txt

    def comm_early(self):
        a = self.a
        wnt = self.wnt
        G, BB = 2, 3
        XS, XO, W = 8, 16, 24
        a("L_comm:\ns_setprio 3")
        a(f"v_lshrrev_b32 v{G}, 4, v1\nv_bfe_u32 v{BB}, v1, 3, 1")
        a(f"v_and_b32 v5, 7, v1\nv_lshl_add_u32 v4, v{G}, 3, v5\nv_lshlrev_b32 v4, 5, v4\nv_lshl_add_u32 v4, v{BB}, 10, v4")
        a(f"s_lshl_b32 {sA}, {sJ}, 7\nv_lshl_add_u32 v5, v5, 2, {sA}\nv_lshl_add_u32 v5, v{G}, 5, v5\nv_lshl_add_u32 v5, v{BB}, 10, v5")
        a(f"s_lshl_b32 {sA}, {sJ}, 19\ns_lshl_b32 {sB}, {sH}, 8\ns_add_u32 {sA}, {sA}, {sB}\ns_movk_i32 {sB}, 0x2000")
        a(f"v_and_b32 v6, 15, v1\nv_lshl_add_u32 v6, v6, 4, {sA}\nv_lshl_add_u32 v6, v{G}, 17, v6")
        a("s_waitcnt lgkmcnt(0)")
        self.stamp(1)
        a(f"global_load_dwordx4 {vr(XS, 4)}, v4, {sX}\nglobal_load_dwordx4 {vr(XS + 4, 4)}, v4, {sX} offset:16")
        a(f"global_load_dword {vr(XO)}, v5, {sX}")
        for t in range(16):
            a(f"global_load_dwordx4 {vr(W + 4 * t, 4)}, v6, {sWQ} {wnt}")
            if t < 15:
                a(f"v_add_u32 v6, {sB}, v6")
        if self.b0:
            a("s_barrier")
        if self.layout == "cs":
            a("s_branch L_comm2")

    def comm(self):
        a = self.a
        wnt = self.wnt
        XS, XO, W, F, SEL, ST, X, A, D, MK = 8, 16, 24, 88, 112, 120, 16, 88, 96, 100
        a(f"L_comm2:\ns_load_dword {sT}, {sWS}, 0")
        a(f"v_mov_b32 v6, {L_CNT}\nv_mov_b32 v104, 0\nv_mov_b32 v105, 0\nv_mov_b32 v106, 0\nv_mov_b32 v107, 0")
        a("ds_write_b128 v6, v[104:107]\nds_write_b128 v6, v[104:107] offset:16\nds_write_b32 v6, v104 offset:32")
        a("v_lshlrev_b32 v6, 4, v1")
        if self.fold:
            a("v_mov_b32 v108, 0x3f803f80\nv_mov_b32 v109, 0x3f803f80\nv_mov_b32 v110, 0x3f803f80\nv_mov_b32 v111, 0x3f803f80")
            a(f"ds_write_b128 v6, v[108:111] offset:{L_ONE}")
        for o in range(self.nww // 2, self.nh):
            a(f"ds_write_b128 v6, v[104:107] offset:{L_OP + 1024 * o}")
        a(f"v_min_u32 v6, 23, v1\nv_cmp_gt_u32 vcc, 12, v6\nv_lshlrev_b32 v6, 2, v6\nv_mov_b32 v105, 0xff800000\nv_cndmask_b32 v105, v104, v105, vcc\nds_write_b32 v6, v105 offset:{L_MAX}")
        self.selectors(SEL, 108, 4)
        a("s_waitcnt vmcnt(17)")
        self.unpack(F, XS, 8)
        self.stamp(2)
        S = 7
        a(f"v_pk_add_f32 v[104:105], {vr(F, 2)}, {vr(F + 2, 2)}\nv_pk_add_f32 v[106:107], {vr(F + 4, 2)}, {vr(F + 6, 2)}")
        for i in range(2):
            a(f"v_pk_add_f32 v[104:105], v[104:105], {vr(F + 8 + 4 * i, 2)}\nv_pk_add_f32 v[106:107], v[106:107], {vr(F + 10 + 4 * i, 2)}")
        a(f"v_pk_add_f32 v[104:105], v[104:105], v[106:107]\nv_add_f32 {vr(S)}, v104, v105")
        self.red8x("v_add_f32", [S], 104)
        a(f"v_mul_f32 {vr(S)}, 0x3b000000, {vr(S)}")
        for i in range(16):
            a(f"v_sub_f32 {vr(F + i)}, {vr(F + i)}, {vr(S)}")
        a(f"v_pk_mul_f32 v[104:105], {vr(F, 2)}, {vr(F, 2)}\nv_pk_mul_f32 v[106:107], {vr(F + 2, 2)}, {vr(F + 2, 2)}")
        for i in range(1, 4):
            a(f"v_pk_fma_f32 v[104:105], {vr(F + 4 * i, 2)}, {vr(F + 4 * i, 2)}, v[104:105]")
            a(f"v_pk_fma_f32 v[106:107], {vr(F + 4 * i + 2, 2)}, {vr(F + 4 * i + 2, 2)}, v[106:107]")
        a("v_pk_add_f32 v[104:105], v[104:105], v[106:107]\nv_add_f32 v108, v104, v105")
        self.red8x("v_add_f32", [108], 104)
        a("v_mul_f32 v108, 0x3b000000, v108")
        self.ln_finish(ST, S, 108)
        a("s_waitcnt vmcnt(16)")
        self.unpack(F, XO, 1)
        self.ln_apply2(F, ST, 8, 10)
        a("s_waitcnt lgkmcnt(0)")
        self.tag_consts()
        for u in range(8):
            a(f"v_mov_b32_dpp {vr(X + u)}, v8 row_newbcast:{u} row_mask:0xf bank_mask:0x3")
        for u in range(8):
            a(f"v_mov_b32_dpp {vr(X + u)}, v8 row_newbcast:{8 + u} row_mask:0xf bank_mask:0xc")
        a(f"v_mov_b32 v{MK}, 0xffffff00")

        def abuild(t):
            for m in range(4):
                a(f"v_perm_b32 {vr(A + 4 * (t & 1) + m)}, {vr(X + t // 2)}, {vr(X + t // 2)}, {vr(SEL + 2 * m + (t & 1))}")
        abuild(0)
        for t in range(16):
            if t < 15:
                abuild(t + 1)
            a(f"s_waitcnt vmcnt({15 - t})")
            a(f"v_mfma_f32_16x16x32_bf16 {vr(D, 4)}, {vr(A + 4 * (t & 1), 4)}, {vr(W + 4 * t, 4)}, {vr(D, 4) if t else 0}")
        a(f"s_lshl_b32 {sA}, {sH}, 13\ns_lshl_b32 {sB}, {sJ}, 9\ns_add_u32 {sA}, {sA}, {sB}\ns_add_u32 {sA}, {sA}, {WS_QP}")
        a(f"v_and_b32 v4, 15, v1\nv_lshl_add_u32 v4, v4, 5, {sA}\nv_bfe_u32 v5, v1, 4, 1\nv_lshl_add_u32 v4, v5, 4, v4")
        a("v_lshrrev_b32 v5, 5, v1\nv_lshl_add_u32 v4, v5, 12, v4")
        a(f"s_getreg_b32 {sC}, hwreg(HW_REG_XCC_ID, 0, 4)\ns_and_b32 {sD}, {sT}, 0xffffff00\ns_or_b32 {sC}, {sC}, {sD}")
        a(f"s_lshl_b32 {sA}, {sXCD}, 7\ns_add_u32 {sA}, {sA}, {WS_XT}")
        if self.qdel:
            assert self.diag
            a(f"s_cmp_lg_u32 {sJ}, 3\ns_cbranch_scc1 L_noqd\ns_memrealtime s[56:57]\ns_waitcnt lgkmcnt(0)")
            a(f"L_qd:\ns_memrealtime s[58:59]\ns_waitcnt lgkmcnt(0)\ns_sub_u32 s58, s58, s56\ns_cmp_lt_u32 s58, {self.qdel}\ns_cbranch_scc1 L_qd\nL_noqd:")
        for i in range(4):
            a(f"v_add_u32 {vr(D + i)}, 0x80, {vr(D + i)}")
        self.tag4(D, MK)
        a(f"global_store_dwordx4 v4, {vr(D, 4)}, {sWS} sc1")
        self.stamp(3)
        if self.probe in ("smax", "smin", "smed"):
            a(f"s_lshl_b32 {sB}, s2, 2\ns_add_u32 {sB}, {sB}, {WS_ST}\nv_mov_b32 v6, {sB}\nv_mov_b32 v7, s80\nglobal_store_dword v6, v7, {sWS} sc1")
        a(f"v_and_b32 v5, 31, v1\nv_lshl_add_u32 v5, v5, 2, {sA}")
        a(f"s_lshl_b32 {sA}, {sH}, 13\ns_lshr_b32 {sB}, {sJ}, 2\ns_lshl_b32 {sB}, {sB}, 12\ns_add_u32 {sA}, {sA}, {sB}\ns_add_u32 {sA}, {sA}, {WS_QP}")
        a(f"v_lshl_add_u32 v4, v1, 4, {sA}")
        a("s_barrier" if self.kwin else "s_barrier\ns_barrier")
        self.stamp(4)
        Gq, TT = 8, 24

        def loads():
            for n in range(4):
                a(f"global_load_dwordx4 {vr(Gq + 4 * n, 4)}, v4, {sWS} offset:{1024 * n} sc1")
            a(f"global_load_dword v32, v5, {sWS} sc1")

        def between():
            if self.tlb:
                a(f"v_and_b32 v35, 1, v1\nv_mul_u32_u24 v36, {512 * 2752 - 4}, v35\ns_lshl_b32 {sA}, {sXCD}, 19\nv_mul_u32_u24 v37, {(1 << 19) - 4}, v35\nv_add_u32 v37, {sA}, v37")
                a(f"v_lshlrev_b32 v35, 2, v35\ns_mov_b64 exec, 3")
                a(f"global_load_dword v38, v36, {sWG}\nglobal_load_dword v39, v36, {sWU}\nglobal_load_dword v40, v36, {sWD}")
                a(f"global_load_dword v41, v37, {sWO}\nglobal_load_dword v42, v35, {sOUT}\ns_mov_b64 exec, -1")
            if self.optouch:
                a(f"s_lshl_b32 {sA}, {sH}, 12\ns_lshl_b32 {sB}, {sJ}, 9\ns_add_u32 {sA}, {sA}, {sB}\ns_add_u32 {sA}, {sA}, {WS_OP}")
                a(f"v_and_b32 v33, 7, v1\nv_lshl_add_u32 v33, v33, 6, {sA}\nglobal_load_dword v34, v33, {sWS} sc1")
            a("s_barrier")

        def qcheck():
            self.chk(TT, [Gq + 4 * n for n in range(4)])
            if self.nb:
                a(f"s_cbranch_vccz L_qok\ns_cmp_eq_u32 {sW}, 0\ns_cbranch_scc1 L_cafter")
        self.poll(loads, qcheck, between=between)
        self.qpoll = self.cur_poll
        a("L_qok:")
        self.stamp(5)
        self.count(11)
        a(f"v_cmp_ne_u32 vcc, {sC}, v32")
        for i in range(16):
            a(f"v_and_b32 {vr(Gq + i)}, {vr(MK)}, {vr(Gq + i)}")
        a(f"s_cmp_eq_u64 vcc, 0\ns_cselect_b32 {sA}, {3 if self.local else 1}, 1")
        if self.diag and "loc" in self.stamps and not self.xts:
            a(f"s_or_b32 s{self.slot(13)}, {sA}, 4")
        if "mixloc" in self.exp:
            a(f"s_bitcmp1_b32 {sJ}, 0\ns_cselect_b32 {sA}, 1, {sA}")
        for i in range(4):
            a(f"v_add_f32 {vr(Gq + i)}, {vr(Gq + i)}, {vr(Gq + 4 + i)}\nv_add_f32 {vr(Gq + 8 + i)}, {vr(Gq + 8 + i)}, {vr(Gq + 12 + i)}")
        for i in range(4):
            a(f"v_add_f32 {vr(Gq + i)}, {vr(Gq + i)}, {vr(Gq + 8 + i)}")
        a(f"v_permlane32_swap_b32 {vr(Gq)}, {vr(Gq + 2)}\nv_permlane32_swap_b32 {vr(Gq + 1)}, {vr(Gq + 3)}")
        a(f"v_add_f32 {vr(Gq)}, {vr(Gq)}, {vr(Gq + 2)}\nv_add_f32 {vr(Gq + 1)}, {vr(Gq + 1)}, {vr(Gq + 3)}")
        a(f"v_cvt_pk_bf16_f32 {vr(Gq)}, {vr(Gq)}, {vr(Gq + 1)}")
        a("v_and_b32 v4, 31, v1\nv_lshlrev_b32 v4, 3, v4\nv_lshrrev_b32 v5, 5, v1\nv_lshl_add_u32 v4, v5, 2, v4")
        a(f"v_mov_b32 v6, {L_QF}\nv_mov_b32 v7, {sA}\ns_mov_b32 {sLOC}, {sA}")
        a(f"ds_write_b32 v4, {vr(Gq)} offset:{L_Q}\ns_mov_b64 exec, 1\nds_max_u32 v6, v7 offset:{L_LOC - L_QF}\nds_max_u32 v6, v7\ns_mov_b64 exec, -1")
        if self.nb:
            a(f"s_cmp_lg_u32 {sW}, 0\ns_cbranch_scc1 L_idle3")
        a("L_cafter:\ns_setprio 0")
        self.stamp(6)
        self.role("L_none" if self.idledma else "L_cwo", "L_chelp", "L_cffn", "L_cmon")

        def dma_loop(name, base, n0, n1, mstep, two=None, win=None):
            a(f"s_mov_b32 {sC}, {n0}\n{name}:")
            if win is not None:
                a(f"s_waitcnt vmcnt({win})")
            a(f"s_mov_b32 m0, {sD}\ns_add_u32 {sC}, {sC}, 1")
            a(f"global_load_lds_dwordx4 v4, {base} {wnt}")
            if two:
                a(f"s_add_u32 m0, {sD}, {L_U - L_G}\ns_add_u32 {sD}, {sD}, {mstep}")
                a(f"global_load_lds_dwordx4 v4, {two} {wnt}")
            else:
                a(f"s_add_u32 {sD}, {sD}, {mstep}")
            a(f"v_add_u32 v4, {sB}, v4\ns_cmp_lt_u32 {sC}, {n1}\ns_cbranch_scc1 {name}")

        a("L_cwo:")
        if "y" in self.prew:
            a(f"s_lshl_b32 {sA}, {sXCD}, 11\ns_lshl_b32 {sB}, {sF}, 7\ns_add_u32 {sA}, {sA}, {sB}\ns_add_u32 {sA}, {sA}, {WS_YP}\ns_not_b32 {sB}, {sT}")
            a(f"v_and_b32 v4, 7, v1\nv_lshl_add_u32 v4, v4, 4, {sA}\nv_bfe_u32 v5, v1, 3, 1\nv_lshl_add_u32 v4, v5, 14, v4")
            a(f"v_mov_b32 v44, {sB}\nv_mov_b32 v45, {sB}\nv_mov_b32 v46, {sB}\nv_mov_b32 v47, {sB}")
            a(f"s_mov_b64 exec, 0xffff\nglobal_store_dwordx4 v4, v[44:47], {sWS} sc1\ns_mov_b64 exec, -1")
        a(f"s_lshl_b32 {sA}, {sXCD}, 19\ns_lshl_b32 {sB}, {sF}, 6\ns_add_u32 {sB}, {sA}, {sB}")
        a(f"v_lshrrev_b32 v4, 2, v1\nv_lshlrev_b32 v4, 10, v4\nv_and_b32 v5, 3, v1\nv_lshl_add_u32 v4, v5, 4, v4\nv_add_u32 v8, {sB}, v4")
        if self.wopair:
            a(f"s_and_b32 {sD}, {sF}, 1\ns_lshl_b32 {sB}, {sD}, 18\nv_add_u32 v8, {sB}, v8\ns_lshl_b32 {sB}, {sD}, 19\ns_sub_u32 {sB}, 0x40000, {sB}\nv_add_u32 v24, {sB}, v8")
            a(f"s_mul_i32 {sD}, {sD}, {16 * GUP}\ns_sub_u32 {sC}, {L_W + 16 * GUP}, {sD}\ns_add_u32 {sD}, {sD}, {L_W}")
            for n in range(1, 16):
                a(f"v_add_u32 v{8 + n}, {n * 0x4000}, v8\nv_add_u32 v{24 + n}, {n * 0x4000}, v24")
        else:
            for n in range(1, 32):
                a(f"v_add_u32 v{8 + n}, {n * 0x4000}, v8")
        a(f"s_lshl_b32 {sB}, {sF}, 14\ns_add_u32 {sA}, {sA}, {sB}\ns_add_u32 {sA}, {sA}, 4096\nv_lshl_add_u32 v4, v1, 6, {sA}\nv_add_u32 v5, 0x2000, v4")
        self.lds_wait(L_VCNT, sNACT, 6, 7)
        self.stamp(12)
        if "nowo" in self.exp:
            pass
        elif self.wopair:
            for k in range(32):
                a(f"s_add_u32 m0, {sD if k < 16 else sC}, {(k & 15) * GUP}")
                a(f"s_waitcnt vmcnt({self.wwin})" if k >= self.wk0 else "s_nop 0")
                a(f"global_load_lds_dwordx4 v{8 + k}, {sWO} {self.wont}")
        elif self.clean:
            a(f"s_lshl_b32 {sA}, {sXCD}, 19\ns_lshl_b32 {sB}, {sF}, 14\ns_add_u32 {sA}, {sA}, {sB}\nv_lshl_add_u32 v4, v1, 7, {sA}\nv_add_u32 v5, 0x2000, v4")
            a(f"global_load_dword v40, v4, {sWO}\nglobal_load_dword v41, v5, {sWO}")
            for k, n in enumerate(list(range(16, 32)) + list(range(16))):
                if k == self.wpre:
                    self.lds_wait(L_PUB, 1, 6, 7, tight=True)
                a(f"s_mov_b32 m0, {L_W + n * GUP}\ns_nop 0\nglobal_load_lds_dwordx4 v{8 + n}, {sWO} {self.wont}")
        else:
            for i in range(4 if self.wotouch else 0):
                a(f"global_load_dword v{40 + i}, v{4 + i // 2}, {sWO} offset:{-4096 if i % 2 == 0 else 0}")
            for k, n in enumerate(list(range(16, 32)) + list(range(16))):
                a(f"s_mov_b32 m0, {L_W + n * GUP}")
                a(f"s_waitcnt vmcnt({self.wwin})" if k >= 8 and self.wotouch else "s_nop 0")
                a(f"global_load_lds_dwordx4 v{8 + n}, {sWO} {self.wont}")
        self.stamp(13)
        a(f"v_mov_b32 v6, {L_DMA}\nv_mov_b32 v7, 1\ns_waitcnt vmcnt(0)\nds_write_b32 v6, v7")
        self.stamp(14)
        if self.dflag:
            a(f"s_lshl_b32 {sA}, {sXCD}, 7\ns_lshl_b32 {sB}, {sF}, 2\ns_add_u32 {sA}, {sA}, {sB}\ns_add_u32 {sA}, {sA}, {WS_DT}")
            a(f"v_mov_b32 v6, {sA}\nv_mov_b32 v7, {sT}\ns_mov_b64 exec, 1\ns_cmp_eq_u32 {sLOC}, 3\ns_cbranch_scc1 L_cwl")
            a(f"global_store_dword v6, v7, {sWS} sc1")
            self.end()
            a(f"L_cwl:\nglobal_store_dword v6, v7, {sWS}")
        if self.nth and "noffn" not in self.exp:
            ni = (512 - self.hrow0) // 128
            self.gu_touch_addr(self.hrow0, 8 * ni, ni)
            a(f"s_lshl_b32 {sA}, {sXCD}, 9\ns_add_u32 {sA}, {sA}, {WS_ML}\nv_and_b32 v4, 31, v1\nv_lshl_add_u32 v4, v4, 4, {sA}")

            def enough():
                self.chk(44, [40])
                a(f"s_bcnt0_i32_b32 {sA}, vcc_lo\ns_cmp_lt_u32 {sA}, {self.nth}\ns_cselect_b64 vcc, -1, 0")
            self.poll(lambda: a(f"global_load_dwordx4 v[40:43], v4, {sWS} sc1"), enough)
            a(f"s_cmp_gt_u32 {sA}, {self.nlate}\ns_cbranch_scc1 L_none")
            for i in range(ni):
                a(f"global_load_dword v{56 + 2 * i}, v{8 + i}, {sWG}\nglobal_load_dword v{57 + 2 * i}, v{8 + i}, {sWU}")
        self.end()

        a("L_chelp:")
        if self.helper:
            self.helper_code()
        self.end()

        a("L_cffn:")
        if "f" in self.prew:
            a(f"s_lshl_b32 {sA}, {sF}, 7\ns_add_u32 {sA}, {sA}, {WS_FP}\ns_not_b32 {sB}, {sT}")
            a(f"v_lshrrev_b32 v4, 3, v1\nv_mul_u32_u24 v4, {FP_STRIDE}, v4\nv_and_b32 v5, 7, v1\nv_lshl_add_u32 v4, v5, 4, v4\nv_add_u32 v4, {sA}, v4")
            a(f"v_mov_b32 v44, {sB}\nv_mov_b32 v45, {sB}\nv_mov_b32 v46, {sB}\nv_mov_b32 v47, {sB}")
            for i in range(4):
                a(f"global_store_dwordx4 v4, v[44:47], {sWS} sc1\nv_add_u32 v4, {8 * FP_STRIDE}, v4")
        a("v_lshrrev_b32 v4, 2, v1\nv_mul_u32_u24 v4, 2752, v4\nv_and_b32 v5, 3, v1\nv_lshl_add_u32 v4, v5, 4, v4")
        a(f"s_lshl_b32 {sA}, {sF}, 6\nv_add_u32 v8, {sA}, v4")
        a(f"s_and_b32 {sD}, {sF}, {1 if self.frot else 0}\ns_mul_i32 {sB}, {sD}, {256 * 2752}\nv_add_u32 v8, {sB}, v8\ns_lshl_b32 {sB}, {sB}, 1\ns_sub_u32 {sB}, {256 * 2752}, {sB}\nv_add_u32 v24, {sB}, v8")
        a(f"s_mul_i32 {sD}, {sD}, {16 * GUP}\ns_sub_u32 {sC}, {L_G + 16 * GUP}, {sD}\ns_add_u32 {sD}, {sD}, {L_G}")
        for n in range(1, 16):
            a(f"v_add_u32 v{8 + n}, {n * 16 * 2752}, v8\nv_add_u32 v{24 + n}, {n * 16 * 2752}, v24")
        a(f"s_lshl_b32 {sA}, {sF}, 15\ns_add_u32 {sA}, {sA}, 4096\nv_lshl_add_u32 v40, v1, 4, {sA}")
        for n in range(1, 4):
            a(f"v_add_u32 v{40 + n}, {n * 8192}, v40")
        a(f"v_mov_b32 v4, {L_HINT}\ns_mov_b32 {sRD}, 0")
        self.lds_wait(*((L_PUB, 1) if self.fpub else (L_VCNT, sNACT)), 6, 7)
        self.stamp(7)
        for k in range(0 if "noffn" in self.exp else 96):
            if k % self.fchk == 0 and k:
                a(f"s_waitcnt lgkmcnt(0)\nv_readfirstlane_b32 {sA}, v5\ns_add_u32 {sA}, {sA}, 1\ns_lshr_b32 {sA}, {sA}, 4\ns_andn2_b32 {sA}, {sA}, {sRD}\ns_cbranch_scc0 L_cf{k}\ns_mov_b32 {sRD}, 1")
                if self.barx:
                    a("s_barrier")
                self.lds_wait(L_YISS, 8, 6, 7)
                a(f"L_cf{k}:")
            if k % self.fchk == 0:
                a("ds_read_b32 v5, v4")
            win = self.fwin0 if k < self.fk0 and not self.clean else self.fwin
            if self.fml and k == self.fmk:
                self.ml_wait(self.fml, 64)
            if self.clean and k == self.fpre:
                self.lds_wait(L_PUB, 1, 6, 7)
            if k < 64:
                a(f"s_add_u32 m0, {sD if k < 32 else sC}, {(L_U - L_G if k & 1 else 0) + ((k >> 1) & 15) * GUP}")
                a(f"s_waitcnt vmcnt({win})" if k > win else "s_nop 0")
                a(f"global_load_lds_dwordx4 v{8 + (k >> 1)}, {sWU if k & 1 else sWG} {self.fnt}")
            else:
                n = k - 64
                off = (n & 7) * 1024 - 4096
                a(f"s_mov_b32 m0, {L_D + n * ROWP - off}\ns_waitcnt vmcnt({win})")
                a(f"global_load_lds_dwordx4 v{40 + (n >> 3)}, {sWD} offset:{off} {wnt}")
        self.stamp(8)
        a(f"s_cmp_lg_u32 {sRD}, 0\ns_cbranch_scc1 L_cf3")
        a(f"v_mov_b32 v6, {L_DMA}\nv_mov_b32 v7, 1\ns_waitcnt vmcnt(0)\nds_write_b32 v6, v7")
        self.stamp(11)
        if self.barx:
            a("s_waitcnt lgkmcnt(0)\ns_barrier")
        a("L_cf3:")
        a(("" if self.fold else "s_barrier\n") + "s_waitcnt vmcnt(32)\ns_barrier\ns_waitcnt vmcnt(0)")
        self.stamp(9)
        a("s_barrier")
        self.end()

        a("; ---- wave 0 of the monitor workgroup: once the group's 32 attention partials are out, tell every FFN workgroup when this\n; late so that the read does not arrive before the write and leave copies in remote L2s that the writer must invalidate.")
        a("L_cmon:")
        if self.clean:
            a(f"s_cmp_lt_u32 {sA}, 6\ns_cbranch_scc1 L_none\ns_mov_b32 {sF}, {sA}")
            a(f"s_lshl_b32 {sB}, {sXCD}, 19\ns_lshl_b32 {sC}, {sF}, 15\ns_add_u32 {sB}, {sB}, {sC}\ns_add_u32 {sB}, {sB}, {0x70000 - 6 * 32768}")
            a(f"v_lshl_add_u32 v4, v1, 7, {sB}\ns_movk_i32 {sD}, 0x2000")
            self.lds_wait(L_VCNT, sNACT, 6, 7)
            for i in range(4):
                a(f"global_load_dword v{48 + i}, v4, {sWO}\nv_add_u32 v4, {sD}, v4")
            a(f"s_mov_b32 {sA}, {sF}")
        if self.hint:
            if self.ytouch or not self.incr:
                a(f"s_cmp_eq_u32 {sA}, 6\ns_cbranch_scc1 L_ctouch")
            a(f"s_cmp_lg_u32 {sA}, 7\ns_cbranch_scc1 L_none")
            a(f"s_lshl_b32 {sA}, {sXCD}, 9\ns_add_u32 {sA}, {sA}, {WS_ML}\nv_and_b32 v4, 31, v1\nv_lshl_add_u32 v4, v4, 4, {sA}")
            a(f"s_lshl_b32 {sA}, {sXCD}, 2\ns_add_u32 {sA}, {sA}, {WS_HT}\nv_lshl_add_u32 v5, v1, 7, {sA}\nv_mov_b32 v6, {sT}")
            self.lds_wait(L_PUB, 1, 12, 13)
            if self.dflag:
                a(f"s_lshl_b32 {sA}, {sXCD}, 7\ns_add_u32 {sA}, {sA}, {WS_DT}\nv_and_b32 v7, 15, v1\nv_lshl_add_u32 v7, v7, 2, {sA}")

                def both():
                    self.chk(12, [8])
                    a(f"v_cmp_ne_u32 {sM0}, {sT}, v14\ns_or_b64 vcc, vcc, {sM0}")
                self.poll(lambda: a(f"global_load_dwordx4 v[8:11], v4, {sWS} sc1\nglobal_load_dword v14, v7, {sWS} sc1"), both)
            else:
                self.poll(lambda: a(f"global_load_dwordx4 v[8:11], v4, {sWS} sc1"), lambda: self.chk(12, [8]))
            for i in range(self.lag):
                a(f"global_load_dwordx4 v[8:11], v4, {sWS} sc1\ns_waitcnt vmcnt(0)")
            a(f"s_bfm_b64 exec, {56 if self.ytouch or not self.incr else (42 >> self.hsh) + 1}, 0\nglobal_store_dword v5, v6, {sWS} sc1")
            self.stamp(10)
            self.end()
        if self.hint and (self.ytouch or not self.incr):
            a("L_ctouch:")
            a(f"s_lshl_b32 {sA}, {sXCD}, 7\ns_add_u32 {sA}, {sA}, {WS_HT + 48 * 128}\nv_and_b32 v4, 7, v1\nv_lshl_add_u32 v4, v4, 2, {sA}")
            a(f"v_and_b32 v5, 31, v1\nv_lshlrev_b32 v5, 6, v5\nv_lshrrev_b32 v6, 5, v1\nv_lshl_add_u32 v5, v6, 14, v5\nv_add_u32 v5, {WS_YP}, v5")
            self.lds_wait(L_PUB, 1, 12, 13)
            a(f"s_mov_b32 {sC}, 0\ns_mov_b32 {sSPIN}, 0\nL_ct0:")
            a(f"global_load_dword v8, v4, {sWS} sc1\ns_add_u32 {sSPIN}, {sSPIN}, 1\ns_cmp_gt_u32 {sSPIN}, {SPIN}\ns_cbranch_scc1 L_bail")
            a(f"s_waitcnt vmcnt(0)\nv_cmp_eq_u32 vcc, {sT}, v8\ns_and_b32 {sA}, vcc_lo, 0xff\ns_andn2_b32 {sB}, {sA}, {sC}\ns_mov_b32 {sC}, {sA}")
            a(f"L_ct1:\ns_cmp_eq_u32 {sB}, 0\ns_cbranch_scc1 L_ct2")
            a(f"s_ff1_i32_b32 {sD}, {sB}\ns_bitset0_b32 {sB}, {sD}\ns_lshl_b32 {sD}, {sD}, 11\nv_add_u32 v6, {sD}, v5\nglobal_load_dword v9, v6, {sWS} sc1\ns_branch L_ct1")
            a(f"L_ct2:\ns_cmp_lg_u32 {sC}, 0xff\ns_cbranch_scc1 L_ct0")
        self.end()

    def ml_wait(self, nth, va):
        a = self.a
        a(f"s_lshl_b32 {sA}, {sXCD}, 9\ns_add_u32 {sA}, {sA}, {WS_ML}\nv_and_b32 v{va}, 31, v1\nv_lshl_add_u32 v{va}, v{va}, 4, {sA}")

        def enough():
            self.chk(va + 6, [va + 2])
            a(f"s_bcnt0_i32_b32 {sA}, vcc_lo\ns_cmp_lt_u32 {sA}, {nth}\ns_cselect_b64 vcc, -1, 0")
        self.poll(lambda: a(f"global_load_dwordx4 v[{va + 2}:{va + 5}], v{va}, {sWS} sc1"), enough)

    def gu_touch_addr(self, r0, rows, ni):
        a = self.a
        a(f"s_min_u32 {sB}, {sXCD}, 3\ns_mul_i32 {sC}, {sXCD}, 5\ns_add_u32 {sC}, {sC}, {sB}")
        a(f"s_mul_i32 {sB}, {sF}, {rows}\ns_add_u32 {sB}, {sB}, {r0}\ns_mul_i32 {sB}, {sB}, 2752\ns_lshl_b32 {sA}, {sC}, 6\ns_add_u32 {sB}, {sB}, {sA}")
        a("v_lshrrev_b32 v8, 3, v1\nv_mul_u32_u24 v8, 2752, v8\nv_and_b32 v5, 7, v1\nv_min_u32 v5, 5, v5\nv_lshl_add_u32 v8, v5, 6, v8")
        a(f"v_add_u32 v8, {sB}, v8")
        for i in range(1, ni):
            a(f"v_add_u32 v{8 + i}, {i * 8 * 2752}, v8\nv_min_u32 v{8 + i}, {512 * 2752 - 4}, v{8 + i}")

    def helper_code(self):
        a = self.a
        ni = self.hr // 64
        a(f"s_min_u32 {sB}, {sXCD}, 3\ns_mul_i32 {sC}, {sXCD}, 5\ns_add_u32 {sC}, {sC}, {sB}")
        a(f"s_and_b32 {sA}, {sF}, 3\ns_mul_i32 {sB}, {sA}, {16 * ni}\ns_lshr_b32 {sA}, {sF}, 2\ns_lshl_b32 {sA}, {sA}, 8\ns_add_u32 {sB}, {sB}, {sA}")
        a(f"s_add_u32 {sB}, {sB}, {256 - self.hr}\ns_mul_i32 {sB}, {sB}, 2752\ns_lshl_b32 {sA}, {sC}, 6\ns_add_u32 {sB}, {sB}, {sA}")
        a("v_lshrrev_b32 v8, 2, v1\nv_mul_u32_u24 v8, 2752, v8\nv_and_b32 v5, 3, v1\nv_lshlrev_b32 v5, 7, v5\nv_min_u32 v5, 380, v5\nv_add_u32 v8, v5, v8")
        a(f"v_add_u32 v8, {sB}, v8")
        for i in range(ni - 1, -1, -1):
            a(f"v_add_u32 v{8 + i}, {i * 16 * 2752}, v8\nv_min_u32 v{8 + i}, {512 * 2752 - 4}, v{8 + i}")
        a(f"s_lshl_b32 {sC}, {sC}, 15\ns_mul_i32 {sA}, {sF}, {6 * 32768 // 8}\ns_add_u32 {sC}, {sC}, {sA}\nv_lshl_add_u32 v20, v1, 7, {sC}")
        for i in range(2, -1, -1):
            a(f"v_add_u32 v{20 + i}, {i * 8192}, v20\nv_min_u32 v{20 + i}, {1376 * 1024 - 4}, v{20 + i}")
        a(f"s_lshl_b32 {sB}, {sXCD}, 19\ns_mul_i32 {sC}, {sF}, {24576 if self.clean else 32768}\ns_add_u32 {sB}, {sB}, {sC}\ns_add_u32 {sB}, {sB}, 0x40000")
        a(f"v_lshl_add_u32 v4, v1, 7, {sB}\ns_movk_i32 {sD}, 0x2000")
        self.lds_wait(*((L_PUB, 1) if self.hpub else (L_VCNT, sNACT)), 6, 7)
        for i in range((3 if self.clean else 4) if self.wotouch else 0):
            a(f"global_load_dword v{48 + i}, v4, {sWO}\nv_add_u32 v4, {sD}, v4")
        if self.clean:
            self.lds_wait(L_PUB, 1, 6, 7)
        if "noffn" in self.exp:
            return
        w = f"s_waitcnt vmcnt({self.hwin})\n"
        if self.hml:
            self.ml_wait(self.hml, 64)
            w = ""
        for i in range(3 if self.hdown else 0):
            a(f"{w}global_load_dword v{40 + i}, v{20 + i}, {sWD}")
        for i in range(ni):
            a(f"{w}global_load_dword v{56 + 2 * i}, v{8 + i}, {sWG}\n{w}global_load_dword v{57 + 2 * i}, v{8 + i}, {sWU}")
        for i in range(0 if self.hdown else 3):
            a(f"{w}global_load_dword v{40 + i}, v{20 + i}, {sWD}")

    def stream_early(self):
        a = self.a
        nt = self.nt
        K, V = 4, 36
        a('; ---- waves 1..8: issue the K and V loads of 32 keys each (contiguous 1 KiB per instruction). The barriers order the queue:\n; wq first, a few K loads until the q partial is out, the rest of K, the q gather, then V.')
        a(f"L_stream:\ns_cmp_gt_u32 {sW}, {sNACT}\ns_cbranch_scc1 L_idle")
        a(f"s_lshr_b32 {sA}, {sJ}, 2\ns_lshl_b32 {sA}, {sA}, 25\ns_lshl_b32 {sB}, {sH}, 20\ns_add_u32 {sA}, {sA}, {sB}")
        a(f"s_and_b32 {sB}, {sJ}, 1\ns_mul_i32 {sB}, {sB}, {sNACT}\ns_add_u32 {sB}, {sB}, {sW}\ns_bitcmp1_b32 {sJ}, 1\ns_cselect_b32 {sC}, {2 * self.nww}, 0")
        a(f"s_add_u32 {sB}, {sB}, {sC}\ns_lshl_b32 {sB}, {sB}, 13\ns_add_u32 {sA}, {sA}, {sB}")
        a(f"s_add_u32 {sA}, {sA}, {0xC0000 + 4096 - 8192}\nv_lshl_add_u32 v2, v1, 4, {sA}")
        a("s_waitcnt lgkmcnt(0)")
        self.stamp(1)
        for t in range(8):
            if t == self.nkpre and self.b0:
                a("s_barrier")
            if t == self.nk0:
                if self.presetup:
                    a("s_branch L_setup\nL_setupr:")
                if not self.kwin:
                    a("s_barrier")
            if self.kwin and t >= self.kwin:
                a(f"s_waitcnt vmcnt({self.kwin - 1})")
            if t == self.nk1:
                a("s_barrier\ns_barrier")
            a(f"global_load_dwordx4 {vr(K + 4 * t, 4)}, v2, {sK} offset:{1024 * t - 4096} {nt}")
        self.stamp(2)
        vload = lambda t: a(f"global_load_dwordx4 {vr(V + 4 * t, 4)}, v2, {sV} offset:{1024 * t - 4096} {nt}")
        if self.nv1:
            a(f"s_bitcmp0_b32 {sJ}, 1\ns_cbranch_scc1 L_vw\ns_barrier\ns_barrier")
            for t in range(self.nv1):
                vload(t)
            a("s_branch L_vr\nL_vw:")
            for t in range(self.nv1):
                vload(t)
            a("s_barrier\ns_barrier\nL_vr:")
        elif self.nk1 == 8 and not self.nva:
            a("s_barrier\ns_barrier")
        for t in range(self.nv1, 8):
            vload(t)
            if t + 1 == self.nva:
                a("s_barrier\ns_barrier")
        if self.layout in ("sc", "cs"):
            a("s_branch L_stream2")

    def idle_early(self):
        a = self.a
        a("L_idle:")
        if self.prefetch:
            a(f"s_cmp_lg_u32 {sW}, {self.nwaves - 1}\ns_cbranch_scc1 L_nopf")
            a(f"s_getpc_b64 {sP}\nL_pc:\ns_sub_u32 s52, s52, L_pc-{KN}\ns_subb_u32 s53, s53, 0")
            a(f"s_lshr_b32 {sA}, s2, 3\ns_min_u32 {sA}, {sA}, (L_codeend-{KN})/1024\ns_lshl_b32 {sA}, {sA}, 10")
            a(f"v_lshl_add_u32 v3, v1, 4, {sA}\nglobal_load_dwordx4 {vr(124, 4)}, v3, {sP}")
            a("L_nopf:")
        if self.b0:
            a("s_barrier")
        a(f"s_waitcnt lgkmcnt(0)\ns_load_dword {sT}, {sWS}, 0")
        if self.vtlb:
            a(f"s_lshr_b32 {sA}, {sJ}, 2\ns_lshl_b32 {sA}, {sA}, 25\ns_lshl_b32 {sB}, {sH}, 20\ns_add_u32 {sA}, {sA}, {sB}\ns_add_u32 {sA}, {sA}, 0xBFF00")
            a(f"v_mov_b32 v3, {sA}\ns_mov_b64 exec, 1\nglobal_load_dword v4, v3, {sV} nt\ns_mov_b64 exec, -1")
        a(f"s_getreg_b32 {sC}, hwreg(HW_REG_XCC_ID, 0, 4)\ns_lshl_b32 {sA}, {sXCD}, 7\ns_lshr_b32 {sB}, s2, 3\ns_lshl_b32 {sB}, {sB}, 2\ns_add_u32 {sA}, {sA}, {sB}")
        a(f"s_add_u32 {sA}, {sA}, {WS_XT}\nv_mov_b32 v2, {sA}\ns_waitcnt lgkmcnt(0)\ns_cmp_lg_u32 {sW}, {self.nwaves - 1}\ns_cbranch_scc1 L_noxt")
        a(f"s_add_u32 {sA}, {sT}, {TAGC}\ns_and_b32 {sA}, {sA}, 0xffffff00\ns_or_b32 {sA}, {sA}, {sC}\nv_mov_b32 v3, {sA}")
        a(f"s_mov_b64 exec, 1\nglobal_store_dword v2, v3, {sWS} sc1\ns_mov_b64 exec, -1\nL_noxt:")
        a(("s_barrier\n" if self.kwin else "s_barrier\ns_barrier\n") + "s_barrier\ns_branch L_idle1")

    def stream_setup(self):
        a = self.a
        P, T, SEL, MK, ADR = 72, 80, 88, 100, 101
        a(f"s_load_dword {sT}, {sWS}, 0")
        sw = self.sw
        a(f"s_sub_u32 {sw}, {sW}, 1")
        self.selectors(SEL, T, 4, bits=3)
        a("v_and_b32 v3, 15, v1\nv_lshlrev_b32 v3, 4, v3")
        a(f"s_mov_b32 {sK1}, 0x3db504f3\ns_mov_b32 {sK2}, 0x3fb8aa3b")
        a(f"v_bfe_u32 {vr(ADR)}, v1, 4, 1\nv_lshlrev_b32 {vr(ADR)}, 6, {vr(ADR)}\nv_lshl_add_u32 {vr(ADR)}, v3, 3, {vr(ADR)}")
        a(f"s_lshl_b32 {sA}, {sH}, 12\ns_lshr_b32 {sB}, {sJ}, 2\ns_lshl_b32 {sB}, {sB}, 11\ns_add_u32 {sA}, {sA}, {sB}")
        a(f"s_and_b32 {sB}, {sJ}, 3\ns_lshl_b32 {sB}, {sB}, 4\ns_add_u32 {sA}, {sA}, {sB}\ns_add_u32 {sA}, {sA}, {WS_OP}\nv_add_u32 {vr(ADR)}, {sA}, {vr(ADR)}")
        a(f"s_lshl_b32 {sA}, {sH}, 7\ns_lshl_b32 {sB}, {sJ}, 4\ns_add_u32 {sA}, {sA}, {sB}\ns_add_u32 {sA}, {sA}, {WS_ML}\nv_mov_b32 {vr(T)}, {sA}")
        a(f"v_cmp_lt_u32 {sM0}, 31, v1\nv_mov_b32 {vr(MK)}, 0xffffff00\nv_cndmask_b32 {vr(ADR)}, {vr(ADR)}, {vr(T)}, {sM0}")
        for t in range(8):
            a(f"v_mov_b32 {vr(P + t)}, 0")

    def stream(self):
        a = self.a
        K, V, Q, P, T, SEL, D = 4, 36, 68, 72, 80, 88, 96
        MK, ADR, MREG, FAC = 100, 101, 102, 104
        if self.presetup:
            a("L_setup:")
            self.stream_setup()
            a("s_branch L_setupr")
        a('; ---- waves 1..8: scores (bf16 roundings as in the reference), wave-local softmax, workgroup max and sum, PV, combine, publish.')
        a("L_stream2:")
        self.lds_inc(L_VCNT, T, T + 1)
        self.stamp(3)
        sw = self.sw
        if not self.presetup:
            self.stream_setup()
        self.lds_wait(L_QF, 1, T, T + 1)
        self.stamp(4)
        a(f"ds_read_b128 {vr(Q, 4)}, v3 offset:{L_Q}")
        a(f"s_mov_b32 {sLOC}, {sA}")
        self.tag_consts()
        a("s_waitcnt vmcnt(8) lgkmcnt(0)")
        for i in range(4):
            for t in range(8):
                a(f"v_dot2c_f32_bf16 {vr(P + t)}, {vr(K + 4 * t + i)}, {vr(Q + i)}")
        for u in range(4):
            a(f"v_add_f32_dpp {vr(P + u)}, {vr(P + u)}, {vr(P + u)} row_ror:8 row_mask:0xf bank_mask:0x3")
        for u in range(4):
            a(f"v_add_f32_dpp {vr(P + u)}, {vr(P + u + 4)}, {vr(P + u + 4)} row_ror:8 row_mask:0xf bank_mask:0xc")
        for u in range(2):
            a(f"v_add_f32_dpp {vr(P + u)}, {vr(P + u)}, {vr(P + u)} row_shl:4 row_mask:0xf bank_mask:0x5")
        for u in range(2):
            a(f"v_add_f32_dpp {vr(P + u)}, {vr(P + u + 2)}, {vr(P + u + 2)} row_shr:4 row_mask:0xf bank_mask:0xa")
        self.dppred("v_add_f32", [P, P + 1], ("quad_perm:[1,0,3,2]", "quad_perm:[2,3,0,1]"))
        self.bf16r(P, P)
        self.bf16r(P + 1, P + 1)
        a(f"v_mul_f32 {vr(P)}, {sK1}, {vr(P)}\nv_mul_f32 {vr(P + 1)}, {sK1}, {vr(P + 1)}")
        self.bf16r(P, P)
        self.bf16r(P + 1, P + 1)
        a(f"v_max_f32 {vr(MREG)}, {vr(P)}, {vr(P + 1)}")
        self.dppred("v_max_f32", [MREG], ("row_ror:4", "row_ror:8"))
        self.redrows("v_max_f32", [MREG], T + 1)
        a(f"v_mul_f32 {vr(T)}, {sK2}, {vr(MREG)}")
        a(f"v_fma_f32 {vr(P)}, {vr(P)}, {sK2}, -{vr(T)}\nv_fma_f32 {vr(P + 1)}, {vr(P + 1)}, {sK2}, -{vr(T)}")
        a(f"v_exp_f32 {vr(P)}, {vr(P)}\nv_exp_f32 {vr(P + 1)}, {vr(P + 1)}")
        a(f"v_cvt_pk_bf16_f32 {vr(T)}, {vr(P)}, {vr(P + 1)}\nv_add_f32 {vr(P)}, {vr(P)}, {vr(P + 1)}")
        for u in range(4):
            a(f"v_mov_b32_dpp {vr(Q + u)}, {vr(T)} row_newbcast:{4 * u} {FULL}")
        self.dppred("v_add_f32", [P], ("row_ror:4", "row_ror:8"))
        self.redrows("v_add_f32", [P], P + 1)
        a(f"s_lshl_b32 {sA}, {sw}, 2\nv_mov_b32 {vr(T + 7)}, {sA}\nds_write2_b32 {vr(T + 7)}, {vr(MREG)}, {vr(P)} offset0:{L_MAX // 4} offset1:{L_SUM // 4}")
        self.lds_inc(L_MCNT, T, T + 1)
        self.stamp(5)
        for t in range(8):
            for m in range(4):
                a(f"v_perm_b32 {vr(K + 4 * t + m)}, {vr(Q + t // 2)}, {vr(Q + t // 2)}, {vr(SEL + 2 * m + (t & 1))}")
        self.lds_wait(L_MCNT, sNACT, T, T + 1)
        a(f"v_and_b32 {vr(T + 2)}, 15, v1\nv_cmp_gt_u32 vcc, 12, {vr(T + 2)}\nv_min_u32 {vr(T + 2)}, 11, {vr(T + 2)}\nv_lshlrev_b32 {vr(T + 2)}, 2, {vr(T + 2)}")
        a(f"ds_read2_b32 {vr(P + 2, 2)}, {vr(T + 2)} offset0:{L_MAX // 4} offset1:{L_SUM // 4}")
        a(f"s_lshl_b32 {sA}, {sw}, 9\nv_lshl_add_u32 v3, v1, 4, {sA}\nv_mov_b32 {vr(T)}, {L_CNT}\nv_mov_b32 {vr(T + 1)}, 1")
        a(f"v_and_b32 {vr(T + 3)}, 31, v1\nv_lshlrev_b32 {vr(T + 3)}, 4, {vr(T + 3)}\nv_lshrrev_b32 {vr(T + 4)}, 5, v1\nv_mul_u32_u24 {vr(T + 4)}, {512 * self.nh}, {vr(T + 4)}\nv_add_u32 {vr(T + 3)}, {vr(T + 4)}, {vr(T + 3)}")
        a(f"s_sub_u32 {sC}, {sNACT}, 1")
        a("s_waitcnt lgkmcnt(0)")
        a(f"v_cndmask_b32 {vr(P + 3)}, 0, {vr(P + 3)}, vcc\nv_mov_b32 {vr(Q)}, {vr(P + 2)}")
        self.dppred("v_max_f32", [Q], [f"row_ror:{r}" for r in (1, 2, 4, 8)])
        a(f"v_sub_f32 {vr(FAC)}, {vr(MREG)}, {vr(Q)}\nv_sub_f32 {vr(P + 2)}, {vr(P + 2)}, {vr(Q)}")
        a(f"v_mul_f32 {vr(FAC)}, {sK2}, {vr(FAC)}\nv_mul_f32 {vr(P + 2)}, {sK2}, {vr(P + 2)}")
        a(f"v_exp_f32 {vr(FAC)}, {vr(FAC)}\nv_exp_f32 {vr(P + 2)}, {vr(P + 2)}\nv_mov_b32 {vr(MREG)}, {vr(Q)}")
        a(f"v_mul_f32 {vr(MREG + 1)}, {vr(P + 2)}, {vr(P + 3)}\nv_mov_b32 {vr(FAC + 1)}, {vr(FAC)}")
        self.dppred("v_add_f32", [MREG + 1], [f"row_ror:{r}" for r in (1, 2, 4, 8)])
        self.stamp(6)
        if self.prio:
            a("s_setprio 2")
        for t in range(8):
            a(f"s_waitcnt vmcnt({7 - t})")
            a(f"v_mfma_f32_16x16x32_bf16 {vr(D, 4)}, {vr(K + 4 * t, 4)}, {vr(V + 4 * t, 4)}, {vr(D, 4) if t else 0}")
        self.stamp(7)
        a("s_mov_b32 exec_hi, 0")
        a(f"v_pk_mul_f32 {vr(D, 2)}, {vr(D, 2)}, {vr(FAC, 2)}\nv_pk_mul_f32 {vr(D + 2, 2)}, {vr(D + 2, 2)}, {vr(FAC, 2)}")
        a(f"ds_write_b128 v3, {vr(D, 4)} offset:{L_OP}")
        a("s_mov_b32 exec_lo, 1")
        a(f"ds_add_rtn_u32 {vr(T + 5)}, {vr(T)}, {vr(T + 1)}")
        a("s_waitcnt lgkmcnt(0)")
        a(f"v_readfirstlane_b32 {sA}, {vr(T + 5)}\ns_mov_b64 exec, -1")
        a(f"s_cmp_lg_u32 {sA}, {sC}\ns_cbranch_scc1 L_role")
        for n in range(self.nh):
            a(f"ds_read_b128 {vr(K + 4 * n, 4)}, {vr(T + 3)} offset:{L_OP + 512 * n}")
        if self.xts:
            a(f"ds_read_b32 {vr(T + 5)}, {vr(T)} offset:{L_LOC - L_CNT}\ns_waitcnt lgkmcnt(0)\nv_readfirstlane_b32 {sLOC}, {vr(T + 5)}")
        else:
            a(f"s_cmp_eq_u32 {sLOC}, 3\ns_waitcnt lgkmcnt(0)")
        pk = lambda d, x: a(f"v_pk_add_f32 {vr(d, 2)}, {vr(d, 2)}, {vr(x, 2)}")
        for i in (0, 2):
            pk(K + i, K + 4 + i)
            pk(K + 8 + i, K + 12 + i)
        for i in (0, 2):
            if self.nh == 6:
                pk(K + 16 + i, K + 20 + i)
            pk(K + i, K + 8 + i)
        for i in (0, 2) if self.nh > 4 else ():
            pk(K + i, K + 16 + i)
        for i in range(4):
            a(f"v_permlane32_swap_b32 {vr(K + i)}, {vr(K + 4 + i)}")
        for i in (0, 2):
            pk(K + i, K + 4 + i)
        a(f"v_cndmask_b32 {vr(K)}, {vr(K)}, {vr(MREG)}, {sM0}\nv_cndmask_b32 {vr(K + 1)}, {vr(K + 1)}, {vr(MREG + 1)}, {sM0}")
        if self.xts:
            a(f"s_cmp_eq_u32 {sLOC}, 3")
            if self.diag and "loc" in self.stamps:
                a(f"s_or_b32 s{self.slot(13)}, {sLOC}, 4\ns_cmp_eq_u32 {sLOC}, 3")
        self.tag4(K, MK)
        a("s_mov_b32 exec_hi, 1\ns_cbranch_scc1 L_publoc")
        a(f"global_store_dwordx4 {vr(ADR)}, {vr(K, 4)}, {sWS} sc1\ns_branch L_pubdone")
        a(f"L_publoc:\nglobal_store_dwordx4 {vr(ADR)}, {vr(K, 4)}, {sWS}")
        a("L_pubdone:\ns_mov_b32 exec_hi, -1")
        a(f"ds_write_b32 {vr(T)}, {vr(T + 1)} offset:{L_PUB - L_CNT}")
        self.stamp(8)
        a(f"L_role:\n" + ("s_setprio 0\n" if self.prio else "") + f"s_cmp_gt_u32 {sw}, 8\ns_cbranch_scc1 L_none")
        self.role("L_wo", "L_none", "L_ffn", "L_none")
        a(f"L_idle1:\ns_mov_b32 {sK2}, 0x3fb8aa3b\nv_mov_b32 {vr(MK)}, 0xffffff00")
        self.tag_consts()
        if self.idledma:
            a(f"s_cmp_lg_u32 {sW}, {self.nwn}\ns_cbranch_scc1 L_idle2")
            self.role("L_cwo", "L_none", "L_none", "L_none")
            a("L_idle2:")
        if self.nb:
            a(f"s_cmp_lg_u32 {sW}, {self.nwaves - 1}\ns_cbranch_scc1 L_idle3")
            a(f"s_getreg_b32 {sC}, hwreg(HW_REG_XCC_ID, 0, 4)\ns_and_b32 {sA}, {sT}, 0xffffff00\ns_or_b32 {sC}, {sC}, {sA}")
            a(f"s_lshl_b32 {sA}, {sXCD}, 7\ns_add_u32 {sA}, {sA}, {WS_XT}\nv_and_b32 v5, 31, v1\nv_lshl_add_u32 v5, v5, 2, {sA}")
            a(f"s_lshl_b32 {sA}, {sH}, 13\ns_lshr_b32 {sB}, {sJ}, 2\ns_lshl_b32 {sB}, {sB}, 12\ns_add_u32 {sA}, {sA}, {sB}\ns_add_u32 {sA}, {sA}, {WS_QP}\nv_lshl_add_u32 v4, v1, 4, {sA}")
            self.lds_wait(L_VCNT, self.nb, T, T + 1)
            a(f"ds_read_b32 {vr(T + 1)}, {vr(T)} offset:{L_QF - L_VCNT}\ns_waitcnt lgkmcnt(0)\nv_readfirstlane_b32 {sA}, {vr(T + 1)}\ns_mov_b32 {sSPIN}, 0")
            a(f"s_cmp_eq_u32 {sA}, 0\ns_cbranch_scc1 {self.qpoll}\nL_idle3:")
        a(f"s_sub_u32 {sw}, {sW}, 1")
        if self.xts and self.local:
            a(f"s_cmp_lg_u32 {sw}, {self.nwaves - 2}\ns_cbranch_scc1 L_xt2")
            if "mixloc" in self.exp:
                a(f"s_bitcmp1_b32 {sJ}, 0\ns_cbranch_scc1 L_xt2")
            self.lds_wait(L_QF, 1, T, T + 1)
            a(f"s_cmp_eq_u32 {sA}, 3\ns_cbranch_scc1 L_xt2")
            a(f"s_getreg_b32 {sC}, hwreg(HW_REG_XCC_ID, 0, 4)\ns_and_b32 {sA}, {sT}, 0xffffff00\ns_or_b32 {sC}, {sC}, {sA}")
            a(f"s_lshl_b32 {sA}, {sXCD}, 7\ns_add_u32 {sA}, {sA}, {WS_XT}\nv_and_b32 v2, 31, v1\nv_lshl_add_u32 v2, v2, 2, {sA}")
            a(f"v_mov_b32 {vr(T)}, {L_PUB}\ns_mov_b32 {sSPIN}, 0\nL_xt0:\nglobal_load_dword v3, v2, {sWS} sc1")
            a(f"s_add_u32 {sSPIN}, {sSPIN}, 1\ns_cmp_gt_u32 {sSPIN}, {SPIN}\ns_cbranch_scc1 L_bail\ns_waitcnt vmcnt(0)")
            a(f"v_cmp_ne_u32 vcc, {sC}, v3\ns_cbranch_vccz L_xt1\nds_read_b32 {vr(T + 1)}, {vr(T)}\ns_waitcnt lgkmcnt(0)")
            a(f"v_readfirstlane_b32 {sA}, {vr(T + 1)}\ns_cmp_lg_u32 {sA}, 0\ns_cbranch_scc1 L_xt2\ns_branch L_xt0")
            a(f"L_xt1:\nv_mov_b32 {vr(T + 1)}, 3\nds_write_b32 {vr(T)}, {vr(T + 1)} offset:{L_LOC - L_PUB}\nL_xt2:")
        self.lds_wait(L_PUB, 1, T, T + 1)
        a("s_branch L_role")

    def role_wo(self):
        a = self.a
        sw = self.sw
        MK = 100
        B, D, O, ML, X, T, AO, AM, AW, AR, AY = 4, 20, 36, 44, 48, 52, 60, 61, 62, 63, 64
        a('; ---- output projection: combine the four key splits of one head half per wave, multiply by the staged wo block, publish y.')
        a(f"L_wo:\ns_cmp_eq_u32 {sw}, 8\ns_cbranch_scc1 L_none")
        a(f"v_lshrrev_b32 v2, 4, v1\nv_bfe_u32 {vr(T)}, v1, 3, 1\nv_and_b32 {vr(T + 1)}, 3, v1\nv_bfe_u32 {vr(T + 2)}, v1, 4, 1\nv_lshrrev_b32 {vr(T + 3)}, 5, v1")
        a(f"s_lshl_b32 {sA}, {sw}, 2\nv_add_u32 v3, {sA}, {vr(T + 2)}\nv_mul_u32_u24 v3, {GUP}, v3\nv_lshl_add_u32 v3, {vr(T + 3)}, 9, v3")
        a(f"v_bfe_u32 {vr(T + 4)}, v1, 2, 2\nv_lshl_add_u32 v3, {vr(T + 4)}, 6, v3\nv_lshl_add_u32 v3, {vr(T + 1)}, 3, v3")
        a(f"s_lshl_b32 {sA}, {sXCD}, 2\ns_lshr_b32 {sB}, {sw}, 1\ns_add_u32 {sA}, {sA}, {sB}")
        a(f"s_lshl_b32 {sB}, {sA}, 7\ns_add_u32 {sB}, {sB}, {WS_ML}\nv_lshl_add_u32 {vr(AM)}, {vr(T)}, 2, {vr(T + 1)}\nv_lshl_add_u32 {vr(AM)}, {vr(AM)}, 4, {sB}")
        a(f"s_lshl_b32 {sA}, {sA}, 12\ns_and_b32 {sB}, {sw}, 1\ns_lshl_b32 {sB}, {sB}, 10\ns_add_u32 {sA}, {sA}, {sB}\ns_add_u32 {sA}, {sA}, {WS_OP}")
        a(f"v_bfe_u32 {vr(AO)}, v1, 2, 1\nv_lshl_add_u32 {vr(AO)}, {vr(AO)}, 1, {vr(T + 2)}\nv_lshl_add_u32 {vr(AO)}, {vr(AO)}, 1, {vr(T + 3)}\nv_lshlrev_b32 {vr(AO)}, 7, {vr(AO)}")
        a(f"v_lshl_add_u32 {vr(AO)}, {vr(T)}, 11, {vr(AO)}\nv_lshl_add_u32 {vr(AO)}, {vr(T + 1)}, 4, {vr(AO)}\nv_add_u32 {vr(AO)}, {sA}, {vr(AO)}")
        a(f"v_and_b32 {vr(AR)}, 15, v1\nv_lshlrev_b32 {vr(AW)}, 2, {vr(AR)}\nv_lshl_add_u32 {vr(AW)}, {vr(T + 3)}, 7, {vr(AW)}\nv_lshl_add_u32 {vr(AW)}, {vr(T + 2)}, 8, {vr(AW)}")
        a(f"s_lshl_b32 {sA}, {sw}, 9\ns_add_u32 {sA}, {sA}, {L_RED}\nv_add_u32 {vr(AW)}, {sA}, {vr(AW)}")
        a(f"v_lshlrev_b32 {vr(AR)}, 4, {vr(AR)}\nv_lshl_add_u32 {vr(AR)}, v2, 10, {vr(AR)}")
        a(f"s_lshl_b32 {sA}, {sXCD}, 11\ns_lshl_b32 {sB}, {sF}, 7\ns_add_u32 {sA}, {sA}, {sB}\ns_add_u32 {sA}, {sA}, {WS_YP}")
        a(f"v_and_b32 {vr(AY)}, 7, v1\nv_lshl_add_u32 {vr(AY)}, {vr(AY)}, 4, {sA}\nv_lshl_add_u32 {vr(AY)}, {vr(T)}, 14, {vr(AY)}")
        a(f"v_cmp_eq_u32 {sM1}, 1, {vr(T + 2)}")

        def mlload():
            a(f"global_load_dwordx4 {vr(ML, 4)}, {vr(AM)}, {sWS} sc1")

        def weights():
            a(f"v_and_b32 {vr(ML)}, {vr(MK)}, {vr(ML)}\nv_and_b32 {vr(ML + 1)}, {vr(MK)}, {vr(ML + 1)}")
            a(f"v_max_f32_dpp {vr(ML + 2)}, {vr(ML)}, {vr(ML)} quad_perm:[1,0,3,2] {FULL}")
            a(f"v_max_f32_dpp {vr(ML + 2)}, {vr(ML + 2)}, {vr(ML + 2)} quad_perm:[2,3,0,1] {FULL}")
            a(f"v_sub_f32 {vr(ML)}, {vr(ML)}, {vr(ML + 2)}\nv_mul_f32 {vr(ML)}, {sK2}, {vr(ML)}\nv_exp_f32 {vr(ML)}, {vr(ML)}")
            a(f"v_mul_f32 {vr(ML + 1)}, {vr(ML + 1)}, {vr(ML)}")
            self.dppred("v_add_f32", [ML + 1], ("quad_perm:[1,0,3,2]", "quad_perm:[2,3,0,1]"))
            a(f"v_rcp_f32 {vr(ML + 1)}, {vr(ML + 1)}\nv_mul_f32 {vr(ML)}, {vr(ML)}, {vr(ML + 1)}")

        def frags():
            self.lds_wait(L_DMA, 1, T + 6, T + 7, tight=True)
            a(f"s_mov_b32 {sSPIN}, 0")
            self.stamp(9)
            for t in range(2):
                for ct in range(2):
                    for hh in range(2):
                        a(f"ds_read_b64_tr_b16 {vr(B + 8 * t + 4 * ct + 2 * hh, 2)}, v3 offset:{L_W + t * 2 * GUP + hh * 256 + ct * 32}")

        def oloads():
            a(f"global_load_dwordx4 {vr(O, 4)}, {vr(AO)}, {sWS} sc1\nglobal_load_dwordx4 {vr(O + 4, 4)}, {vr(AO)}, {sWS} offset:64 sc1")
        if self.tog > 8:
            self.poll(mlload, lambda: self.chk(T, [ML]))
            if self.prio:
                a("s_setprio 2")
            self.stamp(10)
            self.poll(oloads, lambda: self.chk(T, [O, O + 4]), between=lambda: (weights(), frags()))
        else:
            if self.tog:
                def few():
                    self.chk(T, [ML])
                    a(f"s_and_b32 {sA}, vcc_lo, 0x0f0f\ns_bcnt1_i32_b32 {sA}, {sA}\ns_cmp_gt_u32 {sA}, {8 - self.tog}\ns_cselect_b64 vcc, -1, 0")
                self.poll(mlload, few)
            self.stamp(10)
            self.poll(lambda: (mlload(), oloads()), lambda: self.chk(T, [ML, O, O + 4]))
            frags()
            weights()
        self.stamp(11)
        self.count(1)
        for i in range(8):
            a(f"v_and_b32 {vr(O + i)}, {vr(MK)}, {vr(O + i)}")
        for i in range(0, 8, 2):
            a(f"v_pk_mul_f32 {vr(O + i, 2)}, {vr(O + i, 2)}, {vr(ML, 2)} op_sel_hi:[1,0]")
        self.dppred("v_add_f32", range(O, O + 8), ("quad_perm:[1,0,3,2]", "quad_perm:[2,3,0,1]"))
        for u in range(4):
            a(f"v_cvt_pk_bf16_f32 {vr(X + u)}, {vr(O + 2 * u)}, {vr(O + 2 * u + 1)}")
        a("s_waitcnt lgkmcnt(0)")
        for ct in range(2):
            for t in range(2):
                a(f"v_mfma_f32_16x16x32_bf16 {vr(D + 8 * ct + 4 * t, 4)}, {vr(X, 4)}, {vr(B + 8 * t + 4 * ct, 4)}, 0")
        for ct in range(2):
            a(f"v_cndmask_b32 {vr(O + ct)}, {vr(D + 8 * ct)}, {vr(D + 8 * ct + 4)}, {sM1}")
        a(f"ds_write2_b32 {vr(AW)}, {vr(O)}, {vr(O + 1)} offset0:0 offset1:16\ns_waitcnt lgkmcnt(0)\ns_barrier")
        a(f"s_cmp_lg_u32 {sw}, 0\ns_cbranch_scc1 L_none")
        for n in range(4):
            a(f"ds_read_b128 {vr(B + 4 * n, 4)}, {vr(AR)} offset:{L_RED + 256 * n}")
        a("s_waitcnt lgkmcnt(0)")
        for i in (0, 2):
            a(f"v_pk_add_f32 {vr(B + i, 2)}, {vr(B + i, 2)}, {vr(B + 4 + i, 2)}\nv_pk_add_f32 {vr(B + 8 + i, 2)}, {vr(B + 8 + i, 2)}, {vr(B + 12 + i, 2)}")
        for i in (0, 2):
            a(f"v_pk_add_f32 {vr(B + i, 2)}, {vr(B + i, 2)}, {vr(B + 8 + i, 2)}")
        for swp in ("v_permlane32_swap_b32", "v_permlane16_swap_b32"):
            for i in range(4):
                a(f"{swp} {vr(B + i)}, {vr(B + 4 + i)}")
            for i in (0, 2):
                a(f"v_pk_add_f32 {vr(B + i, 2)}, {vr(B + i, 2)}, {vr(B + 4 + i, 2)}")
        self.tag4(B, MK)
        a("s_mov_b64 exec, 0xffff")
        a(f"global_store_dwordx4 {vr(AY)}, {vr(B, 4)}, {sWS} sc1")
        self.stamp(12)
        self.end()

    def role_ffn(self):
        a = self.a
        sw = self.sw
        BG, BD, F, D, ST, XF = 4, 68, 84, 116, 120, 126
        MK, AY, XR, ADR, AH, AHN, AS, ASW, AA, AAW, AAR, AF, FM, AO, HV = 128, 130, 132, 134, 135, 136, 137, 138, 139, 140, 141, 142, 144, 145, 146
        HNS = 1088
        a('; ---- FFN workgroup. Wave 9 watches the group announcements through the scalar path and releases the y gather.')
        a(f"L_ffn:\ns_cmp_lg_u32 {sw}, 8\ns_cbranch_scc1 L_ffn1")
        a(f"v_mov_b32 v2, {L_HINT}\ns_mov_b32 {sC}, 0")
        if self.hint:
            a(f"s_lshr_b32 {sA}, {sF}, {self.hsh}\ns_lshl_b32 {sA}, {sA}, 7\ns_add_u32 {sA}, {sA}, {WS_HT}\ns_add_u32 s52, s26, {sA}\ns_addc_u32 s53, s27, 0\ns_mov_b32 s98, {sT}\ns_mov_b32 s99, {sT}")
            if self.hdepth:
                a(f"s_not_b32 {sB}, {sT}")
                for i in range(8):
                    a(f"s_mov_b32 s{56 + i}, {sB}")

            def hcheck():
                a(f"s_mov_b32 {sA}, 0")
                for i in range(4):
                    a(f"s_cmp_eq_u64 s[{56 + 2 * i}:{57 + 2 * i}], {sTT}\ns_cselect_b32 {sB}, {1 << i}, 0\ns_or_b32 {sA}, {sA}, {sB}")
                if self.incr:
                    a(f"s_cmp_eq_u32 {sA}, {sC}\ns_cbranch_scc1 L_fh0\nv_mov_b32 v3, {sA}\ns_mov_b32 {sC}, {sA}\nds_write_b32 v2, v3\nL_fh0:")
                if self.hslow:
                    a(f"s_bcnt1_i32_b32 {sB}, {sA}\ns_cmp_ge_u32 {sB}, 2\ns_cbranch_scc1 L_fh1\ns_sleep {self.hslow}\nL_fh1:")
                a(f"s_cmp_lg_u32 {sA}, 15")
            self.spoll(lambda: a((f"s_sleep {self.hsleep}\n" if self.hsleep else "") + f"s_load_dwordx8 s[56:63], {sP}, 0 glc"), hcheck, keep=self.hdepth)
        if not (self.hint and self.incr):
            a("v_mov_b32 v3, 15\nds_write_b32 v2, v3")
        self.stamp(2)
        if self.barx:
            a("s_barrier")
        self.end()
        a('; waves 1..8: gather y, h = x + attn, LayerNorm statistics, gate/up, GELU, down, publish; groups 0..31 then reduce 32 outputs each.')
        a("L_ffn1:")
        g, b3, q4, r2, hi, b4 = F, F + 1, F + 2, F + 3, F + 4, F + 5
        a(f"v_mov_b32 {vr(MK)}, 0xffffff00")
        a(f"v_lshrrev_b32 {vr(g)}, 4, v1\nv_bfe_u32 {vr(b3)}, v1, 3, 1\nv_and_b32 {vr(q4)}, 3, v1\nv_bfe_u32 {vr(r2)}, v1, 2, 2\nv_lshrrev_b32 {vr(hi)}, 5, v1\nv_bfe_u32 {vr(b4)}, v1, 4, 1")
        a(f"s_lshl_b32 {sA}, {sw}, 4\nv_and_b32 v3, 15, v1\nv_add_u32 v3, {sA}, v3")
        a(f"v_lshlrev_b32 {vr(AHN)}, 3, v3\nv_lshl_add_u32 {vr(AHN)}, {vr(b4)}, 2, {vr(AHN)}\nv_lshl_add_u32 {vr(AH)}, {vr(hi)}, 10, {vr(AHN)}")
        a(f"global_load_dword {vr(XR)}, {vr(AH)}, {sX}")
        a(f"v_mul_u32_u24 v2, {HNS}, {vr(hi)}\nv_add_u32 {vr(AHN)}, v2, {vr(AHN)}")
        a(f"v_lshlrev_b32 {vr(AY)}, 4, v3\nv_lshl_add_u32 {vr(AY)}, {vr(hi)}, 14, {vr(AY)}\nv_lshl_add_u32 {vr(AY)}, {vr(b4)}, 11, {vr(AY)}\nv_bfe_u32 v3, v1, 2, 1")
        a(f"v_add_u32 {vr(AY + 1)}, {WS_YP + 12288}, {vr(AY)}\nv_add_u32 {vr(AY)}, {WS_YP + 4096}, {vr(AY)}")
        a(f"s_lshl_b32 {sA}, {sw}, 3\nv_lshlrev_b32 {vr(AS)}, 6, {vr(hi)}\nv_add_u32 {vr(ASW)}, {sA}, {vr(AS)}")
        a(f"v_and_b32 {vr(AA)}, 1, v1\nv_mul_u32_u24 {vr(AA)}, {HNS}, {vr(AA)}\nv_lshl_add_u32 {vr(AA)}, {vr(b4)}, 5, {vr(AA)}\nv_lshl_add_u32 {vr(AA)}, {vr(hi)}, 4, {vr(AA)}")
        if self.fold:
            a(f"v_and_b32 v2, 2, v1\nv_cmp_ne_u32 vcc, 0, v2\nv_lshlrev_b32 v2, 5, {vr(b4)}\nv_lshl_add_u32 v2, {vr(hi)}, 4, v2")
            a(f"v_add_u32 {vr(AA)}, {L_HN}, {vr(AA)}\nv_add_u32 v2, {L_ONE}, v2\nv_cndmask_b32 {vr(AA)}, {vr(AA)}, v2, vcc\nv_lshlrev_b32 {vr(AS)}, 6, {vr(b4)}")
        a(f"v_lshlrev_b32 {vr(AAR)}, 6, v3\nv_lshl_add_u32 {vr(AAR)}, {vr(g)}, 4, {vr(AAR)}")
        a(f"v_and_b32 {vr(AAW)}, 7, v1\nv_lshlrev_b32 {vr(AAW)}, 1, {vr(AAW)}\nv_lshl_add_u32 {vr(AAW)}, {vr(b4)}, 6, {vr(AAW)}\ns_lshl_b32 {sA}, {sw}, 4\nv_add_u32 {vr(AAW)}, {sA}, {vr(AAW)}")
        a(f"s_lshl_b32 {sB}, {sw}, 1\nv_add_u32 {vr(ADR)}, {sB}, {vr(hi)}\nv_lshl_add_u32 {vr(ADR)}, {vr(ADR)}, 1, v3\nv_mul_u32_u24 {vr(ADR)}, {FP_STRIDE}, {vr(ADR)}")
        a(f"s_lshl_b32 {sB}, {sF}, 7\ns_add_u32 {sB}, {sB}, {WS_FP}\nv_lshl_add_u32 {vr(ADR)}, {vr(q4)}, 4, {vr(ADR)}\nv_lshl_add_u32 {vr(ADR)}, {vr(b4)}, 6, {vr(ADR)}\nv_add_u32 {vr(ADR)}, {sB}, {vr(ADR)}")
        a(f"v_bfe_u32 v2, v1, 1, 1\nv_mul_u32_u24 v2, {L_U - L_G}, v2\nv_mul_u32_u24 v3, {GUP}, {vr(b4)}\nv_add_u32 v2, v2, v3")
        a(f"v_lshl_add_u32 v2, {vr(hi)}, 9, v2\nv_lshl_add_u32 v2, {vr(r2)}, 6, v2\nv_and_b32 v3, 1, v1\nv_lshl_add_u32 v2, v3, 3, v2")
        a(f"s_and_b32 {sA}, {sw}, 3\ns_lshl_b32 {sA}, {sA}, 4\nv_add_u32 v2, {sA}, v2")
        a(f"v_lshl_add_u32 v3, {vr(g)}, 3, {vr(r2)}\nv_mul_u32_u24 v3, {ROWP}, v3\nv_lshl_add_u32 v3, {vr(q4)}, 5, v3\ns_lshl_b32 {sB}, {sw}, 7\ns_add_u32 {sB}, {sB}, {L_D}\nv_add_u32 v3, {sB}, v3")
        a(f"s_mul_i32 {sB}, {sF}, {FP_STRIDE}\ns_lshl_b32 {sC}, {sw}, 6\ns_add_u32 {sB}, {sB}, {sC}\ns_add_u32 {sB}, {sB}, {WS_FP}")
        a(f"v_lshrrev_b32 {vr(AF)}, 2, v1\nv_lshlrev_b32 {vr(AF)}, 7, {vr(AF)}\nv_lshl_add_u32 {vr(AF)}, {vr(q4)}, 4, {vr(AF)}\nv_add_u32 {vr(AF)}, {sB}, {vr(AF)}")
        a(f"v_cmp_gt_u32 vcc, 44, v1\nv_add_u32 {vr(AF + 1)}, 4096, {vr(AF)}\nv_cndmask_b32 {vr(AF + 1)}, {vr(AF)}, {vr(AF + 1)}, vcc\nv_cndmask_b32 {vr(FM)}, 0, {vr(MK)}, vcc")
        a(f"s_and_b32 {sB}, {sF}, 1\ns_lshl_b32 {sB}, {sB}, 9\ns_lshr_b32 {sC}, {sF}, 1\ns_lshl_b32 {sC}, {sC}, 5\ns_add_u32 {sB}, {sB}, {sC}\ns_lshl_b32 {sC}, {sw}, 4\ns_add_u32 {sB}, {sB}, {sC}")
        a(f"v_lshl_add_u32 {vr(AO)}, {vr(b4)}, 1, {vr(hi)}\nv_lshl_add_u32 {vr(AO)}, {vr(q4)}, 2, {vr(AO)}\nv_add_u32 {vr(AO)}, {sB}, {vr(AO)}\nv_lshlrev_b32 {vr(AO)}, 1, {vr(AO)}")
        a(f"s_and_b32 {sB}, {sF}, 1\ns_mul_i32 {sB}, {sB}, {HNS - 1024}\nv_add_u32 {vr(AH)}, {sB}, {vr(AO)}" if self.fold else "")
        a(f"v_cmp_eq_u32 {sM1}, 1, {vr(b4)}")
        a(f"s_mov_b32 {sK1}, 0x3d372713\ns_mov_b32 {sK3}, 0xc0135761")

        def load1(n):
            a(f"global_load_dwordx4 {vr(F + 4 * n, 4)}, {vr(AY + n // 2)}, {sWS} offset:{-4096 if n % 2 == 0 else 0} sc1")

        def loads():
            for n in range(4):
                load1(n)

        def mask1(n):
            for i in range(4):
                a(f"v_and_b32 {vr(F + 4 * n + i)}, {vr(MK)}, {vr(F + 4 * n + i)}")

        def bdreads():
            for n in range(4):
                for hh in range(2):
                    a(f"ds_read_b64_tr_b16 {vr(BD + 4 * n + 2 * hh, 2)}, v3 offset:{hh * 4 * ROWP + n * 8}")

        def bgreads():
            for t in range(16):
                for hh in range(2):
                    a(f"ds_read_b64_tr_b16 {vr(BG + 4 * t + 2 * hh, 2)}, v2 offset:{L_G + t * 2 * GUP + hh * 256}")

        def frags(tag):
            a(f"s_mov_b32 {sRD}, 1")
            bdreads()
            a(f"s_cmp_gt_u32 {sw}, 3\ns_cbranch_scc1 L_ffr{tag}")
            bgreads()
            a(f"L_ffr{tag}:")
        a(f"v_mov_b32 {vr(F + 16)}, {L_DMA}\ns_mov_b32 {sRD}, 0\ns_mov_b32 {sSPIN}, 0\ns_waitcnt vmcnt(0)")
        self.unpack(XF, XR, 1)
        a(f"s_mov_b32 {sC}, 0\nL_fw:\nds_read2_b32 {vr(F + 18, 2)}, {vr(F + 16)} offset0:0 offset1:1")
        a(f"s_add_u32 {sSPIN}, {sSPIN}, 1\ns_cmp_gt_u32 {sSPIN}, {SPIN * 8}\ns_cbranch_scc1 L_bail\ns_waitcnt lgkmcnt(0)")
        a(f"v_readfirstlane_b32 {sB}, {vr(F + 19)}\nv_readfirstlane_b32 {sA}, {vr(F + 18)}\ns_andn2_b32 {sD}, {sB}, {sC}\ns_cbranch_scc0 L_fw1")
        for n in range(4):
            a(f"s_bitcmp0_b32 {sD}, {n}\ns_cbranch_scc1 L_fl{n}")
            load1(n)
            a(f"L_fl{n}:")
        if self.barx:
            a(f"s_mov_b32 {sC}, {sB}\ns_bcnt1_i32_b32 {sD}, {sB}\ns_cmp_ge_u32 {sD}, {self.xth}\ns_cbranch_scc1 L_fgo\nL_fw1:")
        else:
            a(f"s_mov_b32 {sC}, {sB}\ns_cmp_eq_u32 {sB}, 15\ns_cbranch_scc1 L_fgo\nL_fw1:")
        a(f"s_andn2_b32 {sA}, {sA}, {sRD}\ns_cbranch_scc0 L_fw0")
        frags("a")
        a("L_fw0:\n" + ("" if self.tight else "s_sleep 1\n") + "s_branch L_fw\nL_fgo:")
        if self.barx:
            a(f"s_andn2_b32 {sA}, {sA}, {sRD}\ns_cbranch_scc0 L_fx")
            frags("c")
            a("L_fx:")
            if self.early:
                a("s_waitcnt vmcnt(0)")
                for n in range(4):
                    a(f"s_bitcmp0_b32 {sC}, {n}\ns_cbranch_scc1 L_fe{n}")
                    self.chk(F + 22, [F + 4 * n])
                    mask1(n)
                    a(f"s_cbranch_vccz L_fe{n}\ns_bitset0_b32 {sC}, {n}\nL_fe{n}:")
            a("s_barrier")
            for n in range(4):
                a(f"s_bitcmp1_b32 {sC}, {n}\ns_cbranch_scc1 L_fm{n}")
                load1(n)
                a(f"L_fm{n}:")
        self.stamp(9)

        def shadow():
            if self.barx:
                a(f"ds_read_b32 {vr(F + 18)}, {vr(F + 16)}")
            self.lds_inc(L_YISS, F + 20, F + 21)
            if self.barx:
                a(f"s_waitcnt lgkmcnt(0)\nv_readfirstlane_b32 {sA}, {vr(F + 18)}")
            a(f"s_mov_b32 {sSPIN}, 0\ns_andn2_b32 {sA}, {sA}, {sRD}\ns_cbranch_scc0 L_fnog")
            frags("b")
            a("L_fnog:")
        if self.early and self.barx:
            shadow()
            a(f"s_mov_b64 {sM0}, 0\ns_waitcnt vmcnt(0)")
            for n in range(4):
                a(f"s_bitcmp1_b32 {sC}, {n}\ns_cbranch_scc1 L_fn{n}")
                self.chk(F + 22, [F + 4 * n])
                mask1(n)
                a(f"s_or_b64 {sM0}, {sM0}, vcc\nL_fn{n}:")
            a(f"s_cmp_eq_u64 {sM0}, 0\ns_cbranch_scc1 L_fok")
            self.poll(loads, lambda: self.chk(F + 16, [F + 4 * n for n in range(4)]))
            for n in range(4):
                mask1(n)
            a("L_fok:")
        else:
            self.poll(loads, lambda: self.chk(F + 16, [F + 4 * n for n in range(4)]), between=shadow, first=False)
            for n in range(4):
                mask1(n)
        self.stamp(10)
        self.count(1)
        for i in (0, 2):
            a(f"v_pk_add_f32 {vr(F + i, 2)}, {vr(F + i, 2)}, {vr(F + 4 + i, 2)}\nv_pk_add_f32 {vr(F + 8 + i, 2)}, {vr(F + 8 + i, 2)}, {vr(F + 12 + i, 2)}")
        for i in (0, 2):
            a(f"v_pk_add_f32 {vr(F + i, 2)}, {vr(F + i, 2)}, {vr(F + 8 + i, 2)}")
        a(f"v_permlane16_swap_b32 {vr(F)}, {vr(F + 2)}\nv_permlane16_swap_b32 {vr(F + 1)}, {vr(F + 3)}")
        a(f"v_pk_add_f32 {vr(F, 2)}, {vr(F, 2)}, {vr(F + 2, 2)}")
        self.bf16r(F, F)
        self.bf16r(F + 1, F + 1)
        a(f"v_pk_add_f32 {vr(F + 2, 2)}, {vr(F, 2)}, {vr(XF, 2)}")
        self.bf16r(F, F + 2)
        self.bf16r(F + 1, F + 3)
        S = F + 6
        a(f"v_add_f32 {vr(S)}, {vr(F)}, {vr(F + 1)}\nv_mul_f32 {vr(S + 1)}, {vr(F)}, {vr(F)}\nv_fmac_f32 {vr(S + 1)}, {vr(F + 1)}, {vr(F + 1)}")
        a(f"v_cvt_pk_bf16_f32 {vr(F + 4)}, {vr(F + 2)}, {vr(F + 3)}")
        self.dppred("v_add_f32", [S, S + 1], [f"row_ror:{r}" for r in (1, 2, 4, 8)])
        a(f"ds_write_b32 {vr(AHN)}, {vr(F + 4)} offset:{L_HN}" if self.fold else f"ds_write_b32 {vr(AH)}, {vr(F + 4)} offset:{L_H}")
        for r in (S, S + 1):
            a(f"v_add_f32_dpp {vr(r)}, {vr(r)}, {vr(r)} row_bcast:15 row_mask:0xa bank_mask:0xf")
        a(f"s_mov_b32 exec_lo, 0x10000\ns_mov_b32 exec_hi, 0x10000\nds_write_b64 {vr(ASW)}, {vr(S, 2)} offset:{L_STAT}")
        a("s_mov_b64 exec, -1\ns_waitcnt lgkmcnt(0)\ns_barrier")
        self.stamp(11)

        def stats(R):
            sub = Gen.__new__(Gen)
            out = []
            sub.a = lambda t: out.extend(t.split("\n"))
            for n in range(4):
                sub.a(f"v_pk_add_f32 {vr(R + 4 * n, 2)}, {vr(R + 4 * n, 2)}, {vr(R + 2 + 4 * n, 2)}")
            sub.a(f"v_pk_add_f32 {vr(R, 2)}, {vr(R, 2)}, {vr(R + 4, 2)}\nv_pk_add_f32 {vr(R + 8, 2)}, {vr(R + 8, 2)}, {vr(R + 12, 2)}")
            sub.a(f"v_pk_add_f32 {vr(R, 2)}, {vr(R, 2)}, {vr(R + 8, 2)}")
            sub.a(f"v_mul_f32 {vr(R)}, 0x3b000000, {vr(R)}\nv_mul_f32 {vr(R + 1)}, 0x3b000000, {vr(R + 1)}")
            sub.a(f"v_fma_f32 {vr(R + 1)}, -{vr(R)}, {vr(R)}, {vr(R + 1)}\nv_max_f32 {vr(R + 1)}, 0, {vr(R + 1)}")
            sub.ln_finish(ST, R, R + 1)
            return out
        if not self.fold:
            for n in range(4):
                a(f"ds_read_b128 {vr(F + 8 + 4 * n, 4)}, {vr(AS)} offset:{L_STAT + 16 * n}")
            a(f"ds_read_u16 {vr(HV)}, {vr(AO)} offset:{L_H}")
            a("s_waitcnt lgkmcnt(0)")
            for x in stats(F + 8):
                a(x)
            self.ln_apply2(F, ST, XF, F + 4)
            a(f"ds_write_b32 {vr(AHN)}, {vr(XF)} offset:{L_HN}\ns_waitcnt lgkmcnt(0)\ns_barrier")

        def announce(tag):
            a(f"s_cmp_lg_u32 {sw}, 4\ns_cbranch_scc1 L_fan{tag}")
            a(f"s_lshl_b32 {sA}, {sF}, 2\ns_add_u32 {sA}, {sA}, {WS_FT}\nv_add_u32 {vr(BG)}, {sF}, v1\nv_and_b32 {vr(BG)}, {self.nrep - 1}, {vr(BG)}\nv_lshl_add_u32 {vr(BG)}, {vr(BG)}, 8, {sA}\nv_mov_b32 {vr(BG + 1)}, {sT}")
            for i in range(self.clag):
                a(f"ds_read_b32 {vr(BG + 2)}, {vr(AS)}\ns_waitcnt lgkmcnt(0)")
            a(f"s_bfm_b64 exec, {self.nrep}, 0\nglobal_store_dword {vr(BG)}, {vr(BG + 1)}, {sWS} sc1\ns_mov_b64 exec, -1\nL_fan{tag}:")
        a(f"s_cmp_lt_u32 {sw}, 4\ns_cbranch_scc1 L_fgu")
        if self.bump == "early":
            a(f"s_lshl_b32 {sA}, {sF}, 3\ns_add_u32 {sA}, {sA}, {sw}\ns_cmp_lg_u32 {sA}, 7\ns_cbranch_scc1 L_fnb")
            a(f"v_mov_b32 {vr(BG)}, 0\nv_mov_b32 {vr(BG + 1)}, {sT}\ns_mov_b64 exec, 1\nglobal_store_dword {vr(BG)}, {vr(BG + 1)}, {sWS} sc1\ns_mov_b64 exec, -1\nL_fnb:")
        if self.cpt == "hn":
            announce("a")
        a(f"s_branch L_fact\nL_fgu:\ns_cmp_lg_u32 {sRD}, 0\ns_cbranch_scc1 L_fgu2")
        bgreads()
        a("s_waitcnt lgkmcnt(0)\nL_fgu2:")
        hoff = 0 if self.fold else L_HN
        fill = []
        pre = 4 if self.fold and self.micro else 0
        for t in range(pre):
            a(f"ds_read_b128 {vr(F + 4 * t, 4)}, {vr(AA)} offset:{hoff + 64 * t}")
        if self.fold:
            SR = 144 + 4
            for n in range(3):
                a(f"ds_read_b128 {vr(SR + 4 * n, 4)}, {vr(AS)} offset:{L_STAT + 16 * n}")
            a(f"ds_read_b128 {vr(ST + 4, 4)}, {vr(AS)} offset:{L_STAT + 48}")
            fill = [x.replace(vr(SR + 12, 2), vr(ST + 4, 2)).replace(vr(SR + 14, 2), vr(ST + 6, 2)) for x in stats(SR)]
        for t in range(pre, 8):
            a(f"ds_read_b128 {vr(F + 4 * t, 4)}, {vr(AA)} offset:{hoff + 64 * t}")
        for t in range(16):
            a(f"s_waitcnt lgkmcnt({11 if t < pre else min(7, 15 - t)})")
            a(f"v_mfma_f32_16x16x32_bf16 {vr(D, 4)}, {vr(F + 4 * (t % 8), 4)}, {vr(BG + 4 * t, 4)}, {vr(D, 4) if t else 0}")
            if t < 8:
                a(f"ds_read_b128 {vr(F + 4 * t, 4)}, {vr(AA)} offset:{hoff + 64 * (t + 8)}")
            nf = (0 if t < pre else 2) if pre else (1 if t < 8 else 2)
            for x in fill[:nf]:
                a(x)
            fill = fill[nf:]
        assert not fill
        G = BG
        a(f"v_cndmask_b32 {vr(G)}, {vr(D)}, {vr(D + 1)}, {sM1}")
        if self.fold:
            a(f"v_fma_f32 {vr(G)}, -{vr(ST)}, {vr(D + 2)}, {vr(G)}\nv_mul_f32 {vr(G)}, {vr(G)}, {vr(ST + 4)}")
        self.bf16r(G, G)
        a(f"v_mul_f32 {vr(G + 2)}, {vr(G)}, {vr(G)}\nv_mul_f32 {vr(G + 3)}, {sK3}, {vr(G)}")
        a(f"v_mov_b32_dpp {vr(G + 1)}, {vr(G)} row_ror:8 {FULL}")
        a(f"v_fma_f32 {vr(G + 2)}, {vr(G + 2)}, {sK1}, 1.0")
        a(f"v_mul_f32 {vr(G + 2)}, {vr(G + 2)}, {vr(G + 3)}\nv_exp_f32 {vr(G + 2)}, {vr(G + 2)}\nv_add_f32 {vr(G + 2)}, 1.0, {vr(G + 2)}")
        a(f"v_rcp_f32 {vr(G + 2)}, {vr(G + 2)}\nv_mul_f32 {vr(G)}, {vr(G)}, {vr(G + 2)}")
        self.bf16r(G, G)
        a(f"v_mul_f32 {vr(G)}, {vr(G)}, {vr(G + 1)}\nv_cvt_pk_bf16_f32 {vr(G)}, {vr(G)}, {vr(G)}")
        a(f"s_mov_b64 exec, 0x00ff00ff\nds_write_b16 {vr(AAW)}, {vr(G)} offset:{L_ACT}\ns_mov_b64 exec, -1")
        a("L_fact:")
        if self.fold:
            a(f"ds_read_u16 {vr(HV)}, {vr(AH)} offset:{L_HN}")
        for i in range(16):
            a(f"v_mov_b32 {vr(F + i)}, 0")
        a("s_waitcnt lgkmcnt(0)\ns_barrier")
        self.stamp(12)
        if self.cpt == "act":
            announce("b")
        a(f"s_cmp_lg_u32 {sRD}, 0\ns_cbranch_scc1 L_fdn")
        bdreads()
        a("L_fdn:")
        for n in range(4):
            a(f"s_mov_b32 exec_lo, {0x11111111 << n:#x}\ns_mov_b32 exec_hi, {0x11111111 << n:#x}")
            a(f"ds_read_b128 {vr(F + 4 * n, 4)}, {vr(AAR)} offset:{L_ACT}")
        a(f"s_mov_b64 exec, -1\nv_lshlrev_b32 {vr(HV)}, 16, {vr(HV)}")
        a("s_waitcnt lgkmcnt(0)")
        for n in range(4):
            a(f"v_mfma_f32_16x16x32_bf16 {vr(D, 4)}, {vr(BD + 4 * n, 4)}, {vr(F + 4 * n, 4)}, {vr(D, 4) if n else 0}")
        a("s_mov_b32 exec_lo, 0x00ff00ff\ns_mov_b32 exec_hi, 0x00ff00ff")
        self.tag4(D, MK)
        a(f"global_store_dwordx4 {vr(ADR)}, {vr(D, 4)}, {sWS} sc1")
        self.stamp(13)
        a(f"s_mov_b64 exec, -1\ns_cmp_ge_u32 {sF}, 32\ns_cbranch_scc1 L_none\ns_cmp_ge_u32 {sw}, 2\ns_cbranch_scc1 L_none")
        if self.cpt in ("hn", "act"):
            a(f"s_and_b32 {sA}, {sF}, {self.nrep - 1}\ns_lshl_b32 {sA}, {sA}, 8\ns_add_u32 {sA}, {sA}, {WS_FT}\ns_add_u32 s52, s26, {sA}\ns_addc_u32 s53, s27, 0\ns_mov_b32 s98, {sT}\ns_mov_b32 s99, {sT}")

            def fcheck():
                pairs = list(range(4, 20, 2)) + list(range(64, 80, 2)) + list(range(56, 64, 2)) + [44]
                a(f"s_xor_b32 s46, s46, {sT}")
                for p in pairs:
                    a(f"s_xor_b64 s[{p}:{p + 1}], s[{p}:{p + 1}], {sTT}")
                a("s_or_b32 s4, s4, s46")
                for p in pairs[1:]:
                    a(f"s_or_b64 s[4:5], s[4:5], s[{p}:{p + 1}]")
            self.spoll(lambda: a(f"s_load_dwordx16 s[4:19], {sP}, 0 glc\ns_load_dwordx16 s[64:79], {sP}, 64 glc\ns_load_dwordx8 s[56:63], {sP}, 128 glc\ns_load_dwordx4 s[44:47], {sP}, 160 glc"), fcheck)
        elif self.csleep:
            a(f"s_sleep {self.csleep}")
        elif self.ackwait:
            a("s_waitcnt vmcnt(0)")

        def floads():
            a(f"global_load_dwordx4 {vr(F, 4)}, {vr(AF)}, {sWS} sc1\nglobal_load_dwordx4 {vr(F + 4, 4)}, {vr(AF)}, {sWS} offset:2048 sc1")
            a(f"global_load_dwordx4 {vr(F + 8, 4)}, {vr(AF + 1)}, {sWS} sc1")
        self.poll(floads, lambda: self.chk(F + 12, [F, F + 4, F + 8]))
        self.count(2)
        for i in range(8):
            a(f"v_and_b32 {vr(F + i)}, {vr(MK)}, {vr(F + i)}")
        for i in range(4):
            a(f"v_and_b32 {vr(F + 8 + i)}, {vr(FM)}, {vr(F + 8 + i)}")
        for k in (4, 8):
            for i in (0, 2):
                a(f"v_pk_add_f32 {vr(F + i, 2)}, {vr(F + i, 2)}, {vr(F + k + i, 2)}")
        self.tr_reduce4(F, (4, 8))
        self.bf16r(F, F)
        a("s_mov_b32 exec_lo, 0x000f000f\ns_mov_b32 exec_hi, 0x000f000f")
        a(f"v_add_f32 {vr(F)}, {vr(F)}, {vr(HV)}\nv_cvt_pk_bf16_f32 {vr(F)}, {vr(F)}, {vr(F)}")
        a(f"global_store_short {vr(AO)}, {vr(F)}, {sOUT} {self.outf}")
        self.stamp(14)
        if self.bump != "early" or self.pad:
            a(f"s_or_b32 {sA}, {sF}, {sw}\ns_cmp_lg_u32 {sA}, 0\ns_cbranch_scc1 L_none")
        if self.bump != "early":
            a(f"v_mov_b32 v2, 0\nv_mov_b32 v3, {sT}\ns_mov_b64 exec, 1\nglobal_store_dword v2, v3, {sWS} sc1")
        if self.pad:
            a(f"s_mov_b32 s88, {self.pad}")
            if self.probe in ("smax", "smin", "smed"):
                op = "v_max_i32" if self.probe == "smax" else ("v_min_i32" if self.probe == "smin" else "v_add_u32")
                a(f"s_mov_b64 exec, -1\nv_lshlrev_b32 v2, 4, v1\nv_add_u32 v2, {WS_ST}, v2\nglobal_load_dwordx4 v[4:7], v2, {sWS} sc1\ns_waitcnt vmcnt(0)")
                for i in range(4):
                    a(f"v_subrev_u32 v{4 + i}, s80, v{4 + i}")
                a(f"{op} v4, v4, v5\n{op} v6, v6, v7\n{op} v4, v4, v6")
                self.dppred(op, [4], [f"row_ror:{r}" for r in (1, 2, 4, 8)])
                self.redrows(op, [4], 5)
                if self.probe == "smed":
                    a("v_ashrrev_i32 v4, 8, v4")
                a("v_readfirstlane_b32 s84, v4\ns_add_u32 s84, s84, 300\ns_add_u32 s84, s84, s80")
            if self.probe is not None:
                a("s_waitcnt lgkmcnt(0)\ns_sub_u32 s84, s84, s80\ns_lshl_b32 s84, s84, 2\ns_min_u32 s84, s84, 20000\ns_add_u32 s88, s88, s84")
            a("L_pad:\ns_memrealtime s[86:87]\ns_waitcnt lgkmcnt(0)\ns_sub_u32 s86, s86, s80\ns_cmp_lt_u32 s86, s88\ns_cbranch_scc1 L_pad")
        self.end()


if __name__ == "__main__":
    out = sys.argv[1]
    kw = {}
    for x in sys.argv[2:]:
        k, v = x.split("=")
        kw[k] = {"True": True, "False": False}.get(v, v)
    g = Gen(**kw)
    open(out, "w").write(g.build())
    print("written", out, "nops", g.nops)
```

```python
import sys
from asmlib import Asm

KN = "sequential_preLN__sliding_block_cached__geglu_ffn__decode_kernel"
HEADER = open("sequential_preLN__sliding_block_cached__geglu_ffn__decode.s.ref").read().split("; Override launch")[0]

WS_FT, WS_HT, WS_XT, WS_QP, WS_OP, WS_ML, WS_YP, WS_FP, WS_ST = 0x4A000, 0x48000, 0x400, 0x1000, 0x50000, 0x70000, 0x80000, 0x110000, 0x200000
WS_DT = 0x800
FP_STRIDE = 6144
TAGC = 0x9E3779B9
L_Q, L_MAX, L_SUM, L_CNT, L_VCNT, L_MCNT, L_QF, L_PUB, L_DMA, L_HINT, L_YISS = 0, 256, 304, 352, 356, 360, 364, 368, 372, 376, 380
L_OP, L_RED, L_STAT, L_ACT, L_H, L_HN, L_W = 512, 6656, 10752, 11008, 11264, 13312, 15616
ROWP = 1040
GUP = 1056
L_G = L_W
L_U = L_G + 32 * GUP + 16
L_D = L_U + 32 * GUP + 240
LDS_BYTES = L_D + 32 * ROWP
L_LOC = 384
L_ONE = L_H + 128
SPIN = 1 << 19

DOC = """; One persistent launch: 256 workgroups (one per CU) x 10 waves. Workgroup id -> group x = id & 7, head 4x + (id >> 6),
; stores are sc1 except the attention partials, which use plain stores only when all 32 workgroups of the group have reported
"""

sX, sK, sV, sWQ, sWO, sWG, sWU, sWD, sOUT, sWS = "s[4:5]", "s[6:7]", "s[8:9]", "s[10:11]", "s[12:13]", "s[16:17]", "s[18:19]", "s[20:21]", "s[22:23]", "s[26:27]"
sXCD, sH, sJ, sW, sT = "s28", "s29", "s30", "s31", "s32"
sT1, sT2, sT3 = "s33", "s34", "s35"
sSELA, sSELB, sHI = "s36", "s37", "s38"
sSPIN = "s39"
sA, sB, sC, sD = "s40", "s41", "s42", "s43"
sM0, sM1 = "s[44:45]", "s[46:47]"
sF = "s48"
sK1, sK2, sK3 = "s49", "s50", "s51"
sP = "s[52:53]"
sLOC, sNACT, sRD = "s54", "s55", "s96"
sTT = "s[98:99]"
ST0 = 80
FULL = "row_mask:0xf bank_mask:0xf"


def vr(a, n=1):
    return f"v{a}" if n == 1 else f"v[{a}:{a + n - 1}]"


class Gen:
    def __init__(self, diag=False, nt="nt", wnt="nt", prefetch=True, pad=0, lds=None, nvg=160, probe=None, stamps=None,
                 nk0=4, helper=True, hrow0=128, local=True, ackwait=True, nk1=8, optouch=True, window=True, exp="", wwin=15, hint=True, lag=5, fwin=32, downearly=True, b0=True, tight=False, nww=8, wotouch=True, nv1=0, hwin=3, idledma=True, hpub=False, fpub=False, nth=0, nlate=12, hgu=0, hall=True, tlb=False, cpt="ack", hmode="s", hsleep=0, fchk=8, fwin0=11, fk0=24, incr=True, bump="early", outf="nt", nkpre=1, clag=0, nrep=32, wopair=False, frot=True, wk0=16, hr=128, wont="nt", fnt="", barx=True, hdown=False, clean=False, fpre=8, wpre=8, tog=9, csleep=0, fold=True, micro=True, early=False, hdepth=0, xth=3, ytouch=False, prew="", prio=True, layout="sc", hsh=0, dflag=False, vtlb=False, xts=True, hslow=0, nva=1, hml=0, fml=0, fmk=16, presetup=True, skew=0, skx=6, kwin=0, nb=0, qdel=0):
        self.a = Asm()
        self.diag, self.nt, self.wnt, self.prefetch = diag, nt, wnt, prefetch
        self.uid = 0
        self.pad, self.probe, self.stamps, self.sec = int(pad), probe, stamps, ""
        self.nk0, self.helper, self.hrow0, self.local, self.ackwait = int(nk0), helper, int(hrow0), local, ackwait
        self.nk1 = int(nk1)
        self.optouch, self.window, self.exp, self.wwin = optouch, window, exp, int(wwin)
        self.hint, self.lag, self.fwin = hint, int(lag), int(fwin)
        self.downearly, self.b0, self.tight = downearly, b0, tight
        self.nww, self.wotouch = int(nww), wotouch
        self.nwn = 16 - self.nww
        self.incr, self.bump, self.outf, self.nkpre, self.clag = incr, bump, outf, int(nkpre), int(clag)
        self.slots = {}
        self.qdel = int(qdel)
        self.nb = int(nb)
        self.skew, self.skx, self.kwin = int(skew), int(skx), int(kwin)
        self.presetup = presetup
        self.hml, self.fml, self.fmk = int(hml), int(fml), int(fmk)
        self.nva = int(nva)
        self.hslow = int(hslow)
        self.xts = xts
        self.vtlb = vtlb
        self.dflag = dflag
        self.hsh = int(hsh)
        self.layout = layout
        self.prio = prio
        self.prew = prew
        self.xth, self.ytouch = int(xth), ytouch
        self.hdepth = int(hdepth)
        self.micro, self.early = micro, early
        self.fold = fold
        self.tog, self.csleep = int(tog), int(csleep)
        self.clean, self.fpre, self.wpre = clean, int(fpre), int(wpre)
        self.barx, self.hdown = barx, hdown
        self.wont, self.fnt = wont, fnt
        self.hr = int(hr)
        self.wopair, self.frot, self.wk0 = wopair, frot, int(wk0)
        self.nrep = int(nrep)
        self.hmode, self.hsleep, self.fchk, self.fwin0, self.fk0 = hmode, int(hsleep), int(fchk), int(fwin0), int(fk0)
        self.hall, self.tlb, self.cpt = hall, tlb, cpt
        self.hpub, self.fpub, self.nth, self.nlate, self.hgu = hpub, fpub, int(nth), int(nlate), int(hgu)
        self.nv1, self.hwin, self.idledma = int(nv1), int(hwin), idledma and self.nww < 8
        self.nwaves = max(self.nwn, 9) + 1
        self.nh = (4 if self.nwn == 8 and micro else 5) if self.nwn <= 10 else 6
        self.lds = int(lds) if lds else LDS_BYTES
        self.nvg = int(nvg)

    def stamp(self, i):
        key = self.sec + str(i)
        if self.probe == key:
            self.a("s_memrealtime s[84:85]")
        if self.diag and key in self.stamps:
            r = self.slot(i)
            self.a(f"s_memrealtime s[{r}:{r + 1}]")

    def slot(self, i):
        if i not in self.slots:
            self.slots[i] = ST0 + 4 + 2 * len(self.slots)
            assert self.slots[i] <= 94, "at most six stamp slots"
        return self.slots[i]

    def count(self, i):
        if self.diag and self.stamps is not None and ("n" + self.sec + str(i)) in self.stamps:
            self.a(f"s_add_u32 s{self.slot(i)}, {sSPIN}, 1")

    def end(self):
        self.a("s_branch L_exit" if self.diag else "s_endpgm")

    def bf16r(self, d, x):
        self.a(f"v_cvt_pk_bf16_f32 {vr(d)}, 0, {vr(x)}")

    def unpack(self, d, s, n):
        for i in range(n):
            self.a(f"v_lshlrev_b32 {vr(d + 2 * i)}, 16, {vr(s + i)}\nv_and_b32 {vr(d + 2 * i + 1)}, {sHI}, {vr(s + i)}")

    def dppred(self, op, regs, mods):
        for mod in mods:
            for r in regs:
                self.a(f"{op}_dpp {vr(r)}, {vr(r)}, {vr(r)} {mod} {FULL}")

    def redrows(self, op, regs, tmp):
        a = self.a
        for sw in ("v_permlane16_swap_b32", "v_permlane32_swap_b32"):
            for i, r in enumerate(regs):
                a(f"v_mov_b32 {vr(tmp + i)}, {vr(r)}")
            for i, r in enumerate(regs):
                a(f"{sw} {vr(r)}, {vr(tmp + i)}")
            for i, r in enumerate(regs):
                a(f"{op} {vr(r)}, {vr(r)}, {vr(tmp + i)}")

    def red8x(self, op, regs, tmp):
        self.dppred(op, regs, ("quad_perm:[1,0,3,2]", "quad_perm:[2,3,0,1]", "row_half_mirror"))
        self.redrows(op, regs, tmp)

    def selectors(self, sel, t0, nm, bits=2):
        a = self.a
        a(f"v_and_b32 {vr(t0)}, 1, v1")
        a(f"v_cmp_eq_u32 vcc, 1, {vr(t0)}")
        a(f"v_mov_b32 {vr(t0 + 1)}, 0x0c0c0100\nv_mov_b32 {vr(t0 + 2)}, 0x01000c0c")
        a(f"v_cndmask_b32 {vr(t0 + 1)}, {vr(t0 + 1)}, {vr(t0 + 2)}, vcc")
        a(f"v_mov_b32 {vr(t0 + 2)}, 0x0c0c0302\nv_mov_b32 {vr(t0 + 3)}, 0x03020c0c")
        a(f"v_cndmask_b32 {vr(t0 + 2)}, {vr(t0 + 2)}, {vr(t0 + 3)}, vcc")
        a(f"v_bfe_u32 {vr(t0)}, v1, 1, {bits}")
        a(f"v_mov_b32 {vr(t0 + 3)}, 0x0c0c0c0c")
        for m in range(nm):
            a(f"v_cmp_eq_u32 vcc, {m}, {vr(t0)}")
            a(f"v_cndmask_b32 {vr(sel + 2 * m)}, {vr(t0 + 3)}, {vr(t0 + 1)}, vcc")
            a(f"v_cndmask_b32 {vr(sel + 2 * m + 1)}, {vr(t0 + 3)}, {vr(t0 + 2)}, vcc")

    def tag_consts(self):
        a = self.a
        a(f"s_add_u32 {sT}, {sT}, {TAGC}")
        a(f"s_lshr_b32 {sT1}, {sT}, 8\ns_lshr_b32 {sT2}, {sT}, 16\ns_lshr_b32 {sT3}, {sT}, 24")
        a(f"s_mov_b32 {sSELA}, 0x0c0c0400\ns_mov_b32 {sSELB}, 0x04000c0c")

    def tag4(self, d, mask):
        for i, s in enumerate((sT, sT1, sT2, sT3)):
            self.a(f"v_bfi_b32 {vr(d + i)}, {vr(mask)}, {vr(d + i)}, {s}")

    def chk(self, t, gs):
        a = self.a
        for n, g in enumerate(gs):
            a(f"v_perm_b32 {vr(t + 2 * n)}, {vr(g + 1)}, {vr(g)}, {sSELA}")
            a(f"v_perm_b32 {vr(t + 2 * n + 1)}, {vr(g + 3)}, {vr(g + 2)}, {sSELB}")
        for n, g in enumerate(gs):
            a(f"v_bitop3_b32 {vr(t + 2 * n)}, {vr(t + 2 * n)}, {vr(t + 2 * n + 1)}, {sT} bitop3:0x56")
        rest = [t + 2 * n for n in range(1, len(gs))]
        while rest:
            if len(rest) >= 2:
                a(f"v_or3_b32 {vr(t)}, {vr(t)}, {vr(rest[0])}, {vr(rest[1])}")
                rest = rest[2:]
            else:
                a(f"v_or_b32 {vr(t)}, {vr(t)}, {vr(rest[0])}")
                rest = []
        a(f"v_cmp_ne_u32 vcc, 0, {vr(t)}")

    def poll(self, loads, check, between=None, first=True):
        a = self.a
        self.uid += 1
        L = self.cur_poll = f"L_poll{self.uid}"
        a(f"s_mov_b32 {sSPIN}, 0")
        if between:
            if first:
                loads()
            between()
            a(f"s_branch {L}w")
        a(f"{L}:")
        loads()
        a(f"s_add_u32 {sSPIN}, {sSPIN}, 1\ns_cmp_gt_u32 {sSPIN}, {SPIN}\ns_cbranch_scc1 L_bail")
        a(f"{L}w:\ns_waitcnt vmcnt(0)\n{L}c:")
        check()
        a(f"s_cbranch_vccnz {L}")

    def spoll(self, loads, check, keep=0):
        a = self.a
        self.uid += 1
        L = f"L_sp{self.uid}"
        a(f"s_mov_b32 {sSPIN}, 0\n{L}:")
        loads()
        a(f"s_add_u32 {sSPIN}, {sSPIN}, 1\ns_cmp_gt_u32 {sSPIN}, {SPIN}\ns_cbranch_scc1 L_bail\ns_waitcnt lgkmcnt({keep})")
        check()
        a(f"s_cbranch_scc1 {L}")

    def lds_wait(self, word, val, va, vt, tight=False):
        a = self.a
        self.uid += 1
        L = f"L_lw{self.uid}"
        a(f"v_mov_b32 {vr(va)}, {word}\ns_mov_b32 {sSPIN}, 0\n{L}:")
        a(f"ds_read_b32 {vr(vt)}, {vr(va)}\ns_add_u32 {sSPIN}, {sSPIN}, 1\ns_cmp_gt_u32 {sSPIN}, {SPIN * 8}\ns_cbranch_scc1 L_bail")
        a(f"s_waitcnt lgkmcnt(0)\nv_readfirstlane_b32 {sA}, {vr(vt)}\ns_cmp_ge_u32 {sA}, {val}\n" + (f"s_cbranch_scc0 {L}" if tight and self.tight else f"s_cbranch_scc1 {L}d\ns_sleep 1\ns_branch {L}\n{L}d:"))

    def lds_inc(self, word, va, vt):
        self.a(f"v_mov_b32 {vr(va)}, {word}\nv_mov_b32 {vr(vt)}, 1\ns_mov_b64 exec, 1\nds_add_u32 {vr(va)}, {vr(vt)}\ns_mov_b64 exec, -1")

    def tr_reduce4(self, v, rots):
        a = self.a
        a(f"v_permlane32_swap_b32 {vr(v)}, {vr(v + 1)}")
        a(f"v_permlane32_swap_b32 {vr(v + 2)}, {vr(v + 3)}")
        a(f"v_add_f32 {vr(v)}, {vr(v)}, {vr(v + 1)}")
        a(f"v_add_f32 {vr(v + 2)}, {vr(v + 2)}, {vr(v + 3)}")
        a(f"v_permlane16_swap_b32 {vr(v)}, {vr(v + 2)}")
        a(f"v_add_f32 {vr(v)}, {vr(v)}, {vr(v + 2)}")
        self.dppred("v_add_f32", [v], [f"row_ror:{r}" for r in rots])

    def ln_finish(self, t, mean, var):
        a = self.a
        self.bf16r(var, var)
        self.bf16r(t, mean)
        a(f"v_add_f32 {vr(var)}, 0x3727c5ac, {vr(var)}")
        self.bf16r(var, var)
        a(f"v_sqrt_f32 {vr(var)}, {vr(var)}")
        self.bf16r(t + 2, var)
        a(f"v_rcp_f32 {vr(t + 4)}, {vr(t + 2)}")

    def ln_apply2(self, F, t, P, tmp):
        a = self.a
        a(f"v_pk_add_f32 {vr(F, 2)}, {vr(F, 2)}, {vr(t, 2)} op_sel_hi:[1,0] neg_lo:[0,1] neg_hi:[0,1]")
        self.bf16r(F, F)
        self.bf16r(F + 1, F + 1)
        a(f"v_pk_mul_f32 {vr(tmp, 2)}, {vr(F, 2)}, {vr(t + 4, 2)} op_sel_hi:[1,0]")
        a(f"v_pk_fma_f32 {vr(F, 2)}, {vr(tmp, 2)}, {vr(t + 2, 2)}, {vr(F, 2)} op_sel_hi:[1,0,1] neg_lo:[1,0,0] neg_hi:[1,0,0]")
        a(f"v_pk_fma_f32 {vr(F, 2)}, {vr(F, 2)}, {vr(t + 4, 2)}, {vr(tmp, 2)} op_sel_hi:[1,0,1]")
        a(f"v_cvt_pk_bf16_f32 {vr(P)}, {vr(F)}, {vr(F + 1)}")

    def gemv16(self, D, X, SEL, B, A, steps):
        a = self.a
        for t in range(steps):
            for m in range(2):
                a(f"v_perm_b32 {vr(A + 2 * t + m)}, {vr(X + t // 2)}, {vr(X + t // 2)}, {vr(SEL + 2 * m + (t & 1))}")
            if t >= 1:
                u = t - 1
                a(f"v_mfma_f32_16x16x16_bf16 {vr(D, 4)}, {vr(A + 2 * u, 2)}, {vr(B + 2 * u, 2)}, {vr(D, 4) if u else 0}")
        u = steps - 1
        a(f"v_mfma_f32_16x16x16_bf16 {vr(D, 4)}, {vr(A + 2 * u, 2)}, {vr(B + 2 * u, 2)}, {vr(D, 4)}")

    def role(self, lw, lh, lf, ln):
        a = self.a
        a(f"s_and_b32 {sA}, {sH}, 3\ns_lshl_b32 {sF}, {sA}, 2\ns_lshr_b32 {sA}, {sJ}, 2\ns_lshl_b32 {sA}, {sA}, 1\ns_add_u32 {sF}, {sF}, {sA}")
        a(f"s_and_b32 {sA}, {sJ}, 1\ns_add_u32 {sF}, {sF}, {sA}")
        a(f"s_bitcmp0_b32 {sJ}, 1\ns_cbranch_scc1 {lw}")
        a(f"s_cmp_lt_u32 {sF}, 8\ns_cbranch_scc1 {lh}")
        a(f"s_sub_u32 {sA}, {sF}, 8")
        a(f"s_min_u32 {sB}, {sXCD}, 3\ns_mul_i32 {sF}, {sXCD}, 5\ns_add_u32 {sF}, {sF}, {sB}\ns_add_u32 {sF}, {sF}, {sA}")
        a(f"s_cmp_lt_u32 {sXCD}, 3\ns_cselect_b32 {sB}, 6, 5\ns_cmp_lt_u32 {sA}, {sB}\ns_cbranch_scc1 {lf}")
        a(f"s_branch {ln}")

    def build(self):
        a = self.a
        a(f"{KN}:")
        if self.diag or self.pad:
            a(f"s_memrealtime s[{ST0}:{ST0 + 1}]")
        if self.skew:
            assert self.diag
            a(f"s_and_b32 s28, s2, 7\ns_cmp_lt_u32 s28, {self.skx}\ns_cbranch_scc1 L_nosk\ns_waitcnt lgkmcnt(0)")
            a(f"L_sk:\ns_memrealtime s[40:41]\ns_waitcnt lgkmcnt(0)\ns_sub_u32 s40, s40, s{ST0}\ns_cmp_lt_u32 s40, {self.skew}\ns_cbranch_scc1 L_sk\nL_nosk:")
        a("s_load_dwordx16 s[4:19], s[0:1], 0\ns_load_dwordx8 s[20:27], s[0:1], 64")
        a("s_cmp_ge_u32 s2, 256\ns_cbranch_scc1 L_bail")
        if self.diag:
            for i in range(2, 8):
                a(f"s_mov_b32 s{ST0 + 2 * i}, 0")
        a(f"v_readfirstlane_b32 {sW}, v0\nv_and_b32 v1, 63, v0")
        a(f"s_and_b32 {sXCD}, s2, 7\ns_lshr_b32 {sJ}, s2, 3\ns_lshr_b32 {sH}, s2, 6\ns_lshl_b32 {sA}, {sXCD}, 2\ns_add_u32 {sH}, {sH}, {sA}")
        a(f"s_and_b32 {sJ}, {sJ}, 7\ns_lshr_b32 {sW}, {sW}, 6\ns_mov_b32 {sHI}, 0xffff0000")
        a(f"s_bitcmp0_b32 {sJ}, 1\ns_cselect_b32 {sNACT}, {self.nww}, {self.nwn}")
        self.sw = sW if not self.diag else "s97"
        if self.layout == "sc":
            a(f"s_cmp_eq_u32 {sW}, 0\ns_cbranch_scc1 L_comm")
            parts = (("s", self.stream_early), ("s", self.idle_early), ("c", self.comm_early), ("c", self.comm), ("s", self.stream))
        elif self.layout == "cs":
            a(f"s_cmp_lg_u32 {sW}, 0\ns_cbranch_scc1 L_stream")
            parts = (("c", self.comm_early), ("s", self.stream_early), ("s", self.idle_early), ("c", self.comm), ("s", self.stream))
        else:
            a(f"s_cmp_lg_u32 {sW}, 0\ns_cbranch_scc1 L_stream")
            parts = (("c", self.comm_early), ("c", self.comm), ("s", self.stream_early), ("s", self.stream), ("s", self.idle_early))
        for self.sec, part in parts + (("w", self.role_wo), ("f", self.role_ffn)):
            part()
        a("L_none:")
        self.end()
        if self.diag:
            a("L_exit:")
            a("s_mov_b64 exec, -1\ns_waitcnt vmcnt(0) lgkmcnt(0)")
            a(f"s_memrealtime s[{ST0 + 2}:{ST0 + 3}]\ns_waitcnt lgkmcnt(0)")
            a(f"s_mul_i32 {sA}, s2, 12\ns_add_u32 {sA}, {sA}, {sW}\ns_lshl_b32 {sA}, {sA}, 6\ns_add_u32 {sA}, {sA}, {WS_ST}")
            for i in range(16):
                src = {0: f"s{ST0}", 15: f"s{ST0 + 2}"}.get(i, f"s{self.slots[i]}" if i in self.slots else "0")
                a(f"v_mov_b32 v{4 + i}, {src}")
            a(f"v_mov_b32 v2, {sA}\ns_mov_b64 exec, 1")
            for i in range(4):
                a(f"global_store_dwordx4 v2, v[{4 + 4 * i}:{7 + 4 * i}], {sWS} offset:{16 * i}")
        a("L_bail:\ns_endpgm")
        a("L_codeend:")
        self.nops = a.fix_hazards()
        txt = HEADER
        txt += DOC
        txt += f"; @launch grid=(256,1,1) block=({64 * self.nwaves},1,1) lds={self.lds}\n"
        txt += f'.amdgcn_target "amdgcn-amd-amdhsa--gfx950"\n.text\n.globl {KN}\n.p2align 8\n.type {KN},@function\n'
        txt += a.text() + "\n"
        if self.prefetch:
            txt += ".fill 256, 4, 0xbf810000\n"
        txt += f""".section .rodata,"a"
.p2align 6
.amdhsa_kernel {KN}
  .amdhsa_next_free_vgpr {self.nvg}
  .amdhsa_next_free_sgpr 102
  .amdhsa_accum_offset {self.nvg}
  .amdhsa_group_segment_fixed_size 0
  .amdhsa_kernarg_size 96
  .amdhsa_user_sgpr_count 2
  .amdhsa_user_sgpr_kernarg_segment_ptr 1
  .amdhsa_system_sgpr_workgroup_id_x 1
.end_amdhsa_kernel
"""
        return txt

    def comm_early(self):
        a = self.a
        wnt = self.wnt
        G, BB = 2, 3
        XS, XO, W = 8, 16, 24
        a("L_comm:\ns_setprio 3")
        a(f"v_lshrrev_b32 v{G}, 4, v1\nv_bfe_u32 v{BB}, v1, 3, 1")
        a(f"v_and_b32 v5, 7, v1\nv_lshl_add_u32 v4, v{G}, 3, v5\nv_lshlrev_b32 v4, 5, v4\nv_lshl_add_u32 v4, v{BB}, 10, v4")
        a(f"s_lshl_b32 {sA}, {sJ}, 7\nv_lshl_add_u32 v5, v5, 2, {sA}\nv_lshl_add_u32 v5, v{G}, 5, v5\nv_lshl_add_u32 v5, v{BB}, 10, v5")
        a(f"s_lshl_b32 {sA}, {sJ}, 19\ns_lshl_b32 {sB}, {sH}, 8\ns_add_u32 {sA}, {sA}, {sB}\ns_movk_i32 {sB}, 0x2000")
        a(f"v_and_b32 v6, 15, v1\nv_lshl_add_u32 v6, v6, 4, {sA}\nv_lshl_add_u32 v6, v{G}, 17, v6")
        a("s_waitcnt lgkmcnt(0)")
        self.stamp(1)
        a(f"global_load_dwordx4 {vr(XS, 4)}, v4, {sX}\nglobal_load_dwordx4 {vr(XS + 4, 4)}, v4, {sX} offset:16")
        a(f"global_load_dword {vr(XO)}, v5, {sX}")
        for t in range(16):
            a(f"global_load_dwordx4 {vr(W + 4 * t, 4)}, v6, {sWQ} {wnt}")
            if t < 15:
                a(f"v_add_u32 v6, {sB}, v6")
        if self.b0:
            a("s_barrier")
        if self.layout == "cs":
            a("s_branch L_comm2")

    def comm(self):
        a = self.a
        wnt = self.wnt
        XS, XO, W, F, SEL, ST, X, A, D, MK = 8, 16, 24, 88, 112, 120, 16, 88, 96, 100
        a(f"L_comm2:\ns_load_dword {sT}, {sWS}, 0")
        a(f"v_mov_b32 v6, {L_CNT}\nv_mov_b32 v104, 0\nv_mov_b32 v105, 0\nv_mov_b32 v106, 0\nv_mov_b32 v107, 0")
        a("ds_write_b128 v6, v[104:107]\nds_write_b128 v6, v[104:107] offset:16\nds_write_b32 v6, v104 offset:32")
        a("v_lshlrev_b32 v6, 4, v1")
        if self.fold:
            a("v_mov_b32 v108, 0x3f803f80\nv_mov_b32 v109, 0x3f803f80\nv_mov_b32 v110, 0x3f803f80\nv_mov_b32 v111, 0x3f803f80")
            a(f"ds_write_b128 v6, v[108:111] offset:{L_ONE}")
        for o in range(self.nww // 2, self.nh):
            a(f"ds_write_b128 v6, v[104:107] offset:{L_OP + 1024 * o}")
        a(f"v_min_u32 v6, 23, v1\nv_cmp_gt_u32 vcc, 12, v6\nv_lshlrev_b32 v6, 2, v6\nv_mov_b32 v105, 0xff800000\nv_cndmask_b32 v105, v104, v105, vcc\nds_write_b32 v6, v105 offset:{L_MAX}")
        self.selectors(SEL, 108, 4)
        a("s_waitcnt vmcnt(17)")
        self.unpack(F, XS, 8)
        self.stamp(2)
        S = 7
        a(f"v_pk_add_f32 v[104:105], {vr(F, 2)}, {vr(F + 2, 2)}\nv_pk_add_f32 v[106:107], {vr(F + 4, 2)}, {vr(F + 6, 2)}")
        for i in range(2):
            a(f"v_pk_add_f32 v[104:105], v[104:105], {vr(F + 8 + 4 * i, 2)}\nv_pk_add_f32 v[106:107], v[106:107], {vr(F + 10 + 4 * i, 2)}")
        a(f"v_pk_add_f32 v[104:105], v[104:105], v[106:107]\nv_add_f32 {vr(S)}, v104, v105")
        self.red8x("v_add_f32", [S], 104)
        a(f"v_mul_f32 {vr(S)}, 0x3b000000, {vr(S)}")
        for i in range(16):
            a(f"v_sub_f32 {vr(F + i)}, {vr(F + i)}, {vr(S)}")
        a(f"v_pk_mul_f32 v[104:105], {vr(F, 2)}, {vr(F, 2)}\nv_pk_mul_f32 v[106:107], {vr(F + 2, 2)}, {vr(F + 2, 2)}")
        for i in range(1, 4):
            a(f"v_pk_fma_f32 v[104:105], {vr(F + 4 * i, 2)}, {vr(F + 4 * i, 2)}, v[104:105]")
            a(f"v_pk_fma_f32 v[106:107], {vr(F + 4 * i + 2, 2)}, {vr(F + 4 * i + 2, 2)}, v[106:107]")
        a("v_pk_add_f32 v[104:105], v[104:105], v[106:107]\nv_add_f32 v108, v104, v105")
        self.red8x("v_add_f32", [108], 104)
        a("v_mul_f32 v108, 0x3b000000, v108")
        self.ln_finish(ST, S, 108)
        a("s_waitcnt vmcnt(16)")
        self.unpack(F, XO, 1)
        self.ln_apply2(F, ST, 8, 10)
        a("s_waitcnt lgkmcnt(0)")
        self.tag_consts()
        for u in range(8):
            a(f"v_mov_b32_dpp {vr(X + u)}, v8 row_newbcast:{u} row_mask:0xf bank_mask:0x3")
        for u in range(8):
            a(f"v_mov_b32_dpp {vr(X + u)}, v8 row_newbcast:{8 + u} row_mask:0xf bank_mask:0xc")
        a(f"v_mov_b32 v{MK}, 0xffffff00")

        def abuild(t):
            for m in range(4):
                a(f"v_perm_b32 {vr(A + 4 * (t & 1) + m)}, {vr(X + t // 2)}, {vr(X + t // 2)}, {vr(SEL + 2 * m + (t & 1))}")
        abuild(0)
        for t in range(16):
            if t < 15:
                abuild(t + 1)
            a(f"s_waitcnt vmcnt({15 - t})")
            a(f"v_mfma_f32_16x16x32_bf16 {vr(D, 4)}, {vr(A + 4 * (t & 1), 4)}, {vr(W + 4 * t, 4)}, {vr(D, 4) if t else 0}")
        a(f"s_lshl_b32 {sA}, {sH}, 13\ns_lshl_b32 {sB}, {sJ}, 9\ns_add_u32 {sA}, {sA}, {sB}\ns_add_u32 {sA}, {sA}, {WS_QP}")
        a(f"v_and_b32 v4, 15, v1\nv_lshl_add_u32 v4, v4, 5, {sA}\nv_bfe_u32 v5, v1, 4, 1\nv_lshl_add_u32 v4, v5, 4, v4")
        a("v_lshrrev_b32 v5, 5, v1\nv_lshl_add_u32 v4, v5, 12, v4")
        a(f"s_getreg_b32 {sC}, hwreg(HW_REG_XCC_ID, 0, 4)\ns_and_b32 {sD}, {sT}, 0xffffff00\ns_or_b32 {sC}, {sC}, {sD}")
        a(f"s_lshl_b32 {sA}, {sXCD}, 7\ns_add_u32 {sA}, {sA}, {WS_XT}")
        if self.qdel:
            assert self.diag
            a(f"s_cmp_lg_u32 {sJ}, 3\ns_cbranch_scc1 L_noqd\ns_memrealtime s[56:57]\ns_waitcnt lgkmcnt(0)")
            a(f"L_qd:\ns_memrealtime s[58:59]\ns_waitcnt lgkmcnt(0)\ns_sub_u32 s58, s58, s56\ns_cmp_lt_u32 s58, {self.qdel}\ns_cbranch_scc1 L_qd\nL_noqd:")
        for i in range(4):
            a(f"v_add_u32 {vr(D + i)}, 0x80, {vr(D + i)}")
        self.tag4(D, MK)
        a(f"global_store_dwordx4 v4, {vr(D, 4)}, {sWS} sc1")
        self.stamp(3)
        if self.probe in ("smax", "smin", "smed"):
            a(f"s_lshl_b32 {sB}, s2, 2\ns_add_u32 {sB}, {sB}, {WS_ST}\nv_mov_b32 v6, {sB}\nv_mov_b32 v7, s80\nglobal_store_dword v6, v7, {sWS} sc1")
        a(f"v_and_b32 v5, 31, v1\nv_lshl_add_u32 v5, v5, 2, {sA}")
        a(f"s_lshl_b32 {sA}, {sH}, 13\ns_lshr_b32 {sB}, {sJ}, 2\ns_lshl_b32 {sB}, {sB}, 12\ns_add_u32 {sA}, {sA}, {sB}\ns_add_u32 {sA}, {sA}, {WS_QP}")
        a(f"v_lshl_add_u32 v4, v1, 4, {sA}")
        a("s_barrier" if self.kwin else "s_barrier\ns_barrier")
        self.stamp(4)
        Gq, TT = 8, 24

        def loads():
            for n in range(4):
                a(f"global_load_dwordx4 {vr(Gq + 4 * n, 4)}, v4, {sWS} offset:{1024 * n} sc1")
            a(f"global_load_dword v32, v5, {sWS} sc1")

        def between():
            if self.tlb:
                a(f"v_and_b32 v35, 1, v1\nv_mul_u32_u24 v36, {512 * 2752 - 4}, v35\ns_lshl_b32 {sA}, {sXCD}, 19\nv_mul_u32_u24 v37, {(1 << 19) - 4}, v35\nv_add_u32 v37, {sA}, v37")
                a(f"v_lshlrev_b32 v35, 2, v35\ns_mov_b64 exec, 3")
                a(f"global_load_dword v38, v36, {sWG}\nglobal_load_dword v39, v36, {sWU}\nglobal_load_dword v40, v36, {sWD}")
                a(f"global_load_dword v41, v37, {sWO}\nglobal_load_dword v42, v35, {sOUT}\ns_mov_b64 exec, -1")
            if self.optouch:
                a(f"s_lshl_b32 {sA}, {sH}, 12\ns_lshl_b32 {sB}, {sJ}, 9\ns_add_u32 {sA}, {sA}, {sB}\ns_add_u32 {sA}, {sA}, {WS_OP}")
                a(f"v_and_b32 v33, 7, v1\nv_lshl_add_u32 v33, v33, 6, {sA}\nglobal_load_dword v34, v33, {sWS} sc1")
            a("s_barrier")

        def qcheck():
            self.chk(TT, [Gq + 4 * n for n in range(4)])
            if self.nb:
                a(f"s_cbranch_vccz L_qok\ns_cmp_eq_u32 {sW}, 0\ns_cbranch_scc1 L_cafter")
        self.poll(loads, qcheck, between=between)
        self.qpoll = self.cur_poll
        a("L_qok:")
        self.stamp(5)
        self.count(11)
        a(f"v_cmp_ne_u32 vcc, {sC}, v32")
        for i in range(16):
            a(f"v_and_b32 {vr(Gq + i)}, {vr(MK)}, {vr(Gq + i)}")
        a(f"s_cmp_eq_u64 vcc, 0\ns_cselect_b32 {sA}, {3 if self.local else 1}, 1")
        if self.diag and "loc" in self.stamps and not self.xts:
            a(f"s_or_b32 s{self.slot(13)}, {sA}, 4")
        if "mixloc" in self.exp:
            a(f"s_bitcmp1_b32 {sJ}, 0\ns_cselect_b32 {sA}, 1, {sA}")
        for i in range(4):
            a(f"v_add_f32 {vr(Gq + i)}, {vr(Gq + i)}, {vr(Gq + 4 + i)}\nv_add_f32 {vr(Gq + 8 + i)}, {vr(Gq + 8 + i)}, {vr(Gq + 12 + i)}")
        for i in range(4):
            a(f"v_add_f32 {vr(Gq + i)}, {vr(Gq + i)}, {vr(Gq + 8 + i)}")
        a(f"v_permlane32_swap_b32 {vr(Gq)}, {vr(Gq + 2)}\nv_permlane32_swap_b32 {vr(Gq + 1)}, {vr(Gq + 3)}")
        a(f"v_add_f32 {vr(Gq)}, {vr(Gq)}, {vr(Gq + 2)}\nv_add_f32 {vr(Gq + 1)}, {vr(Gq + 1)}, {vr(Gq + 3)}")
        a(f"v_cvt_pk_bf16_f32 {vr(Gq)}, {vr(Gq)}, {vr(Gq + 1)}")
        a("v_and_b32 v4, 31, v1\nv_lshlrev_b32 v4, 3, v4\nv_lshrrev_b32 v5, 5, v1\nv_lshl_add_u32 v4, v5, 2, v4")
        a(f"v_mov_b32 v6, {L_QF}\nv_mov_b32 v7, {sA}\ns_mov_b32 {sLOC}, {sA}")
        a(f"ds_write_b32 v4, {vr(Gq)} offset:{L_Q}\ns_mov_b64 exec, 1\nds_max_u32 v6, v7 offset:{L_LOC - L_QF}\nds_max_u32 v6, v7\ns_mov_b64 exec, -1")
        if self.nb:
            a(f"s_cmp_lg_u32 {sW}, 0\ns_cbranch_scc1 L_idle3")
        a("L_cafter:\ns_setprio 0")
        self.stamp(6)
        self.role("L_none" if self.idledma else "L_cwo", "L_chelp", "L_cffn", "L_cmon")

        def dma_loop(name, base, n0, n1, mstep, two=None, win=None):
            a(f"s_mov_b32 {sC}, {n0}\n{name}:")
            if win is not None:
                a(f"s_waitcnt vmcnt({win})")
            a(f"s_mov_b32 m0, {sD}\ns_add_u32 {sC}, {sC}, 1")
            a(f"global_load_lds_dwordx4 v4, {base} {wnt}")
            if two:
                a(f"s_add_u32 m0, {sD}, {L_U - L_G}\ns_add_u32 {sD}, {sD}, {mstep}")
                a(f"global_load_lds_dwordx4 v4, {two} {wnt}")
            else:
                a(f"s_add_u32 {sD}, {sD}, {mstep}")
            a(f"v_add_u32 v4, {sB}, v4\ns_cmp_lt_u32 {sC}, {n1}\ns_cbranch_scc1 {name}")

        a("L_cwo:")
        if "y" in self.prew:
            a(f"s_lshl_b32 {sA}, {sXCD}, 11\ns_lshl_b32 {sB}, {sF}, 7\ns_add_u32 {sA}, {sA}, {sB}\ns_add_u32 {sA}, {sA}, {WS_YP}\ns_not_b32 {sB}, {sT}")
            a(f"v_and_b32 v4, 7, v1\nv_lshl_add_u32 v4, v4, 4, {sA}\nv_bfe_u32 v5, v1, 3, 1\nv_lshl_add_u32 v4, v5, 14, v4")
            a(f"v_mov_b32 v44, {sB}\nv_mov_b32 v45, {sB}\nv_mov_b32 v46, {sB}\nv_mov_b32 v47, {sB}")
            a(f"s_mov_b64 exec, 0xffff\nglobal_store_dwordx4 v4, v[44:47], {sWS} sc1\ns_mov_b64 exec, -1")
        a(f"s_lshl_b32 {sA}, {sXCD}, 19\ns_lshl_b32 {sB}, {sF}, 6\ns_add_u32 {sB}, {sA}, {sB}")
        a(f"v_lshrrev_b32 v4, 2, v1\nv_lshlrev_b32 v4, 10, v4\nv_and_b32 v5, 3, v1\nv_lshl_add_u32 v4, v5, 4, v4\nv_add_u32 v8, {sB}, v4")
        if self.wopair:
            a(f"s_and_b32 {sD}, {sF}, 1\ns_lshl_b32 {sB}, {sD}, 18\nv_add_u32 v8, {sB}, v8\ns_lshl_b32 {sB}, {sD}, 19\ns_sub_u32 {sB}, 0x40000, {sB}\nv_add_u32 v24, {sB}, v8")
            a(f"s_mul_i32 {sD}, {sD}, {16 * GUP}\ns_sub_u32 {sC}, {L_W + 16 * GUP}, {sD}\ns_add_u32 {sD}, {sD}, {L_W}")
            for n in range(1, 16):
                a(f"v_add_u32 v{8 + n}, {n * 0x4000}, v8\nv_add_u32 v{24 + n}, {n * 0x4000}, v24")
        else:
            for n in range(1, 32):
                a(f"v_add_u32 v{8 + n}, {n * 0x4000}, v8")
        a(f"s_lshl_b32 {sB}, {sF}, 14\ns_add_u32 {sA}, {sA}, {sB}\ns_add_u32 {sA}, {sA}, 4096\nv_lshl_add_u32 v4, v1, 6, {sA}\nv_add_u32 v5, 0x2000, v4")
        self.lds_wait(L_VCNT, sNACT, 6, 7)
        self.stamp(12)
        if "nowo" in self.exp:
            pass
        elif self.wopair:
            for k in range(32):
                a(f"s_add_u32 m0, {sD if k < 16 else sC}, {(k & 15) * GUP}")
                a(f"s_waitcnt vmcnt({self.wwin})" if k >= self.wk0 else "s_nop 0")
                a(f"global_load_lds_dwordx4 v{8 + k}, {sWO} {self.wont}")
        elif self.clean:
            a(f"s_lshl_b32 {sA}, {sXCD}, 19\ns_lshl_b32 {sB}, {sF}, 14\ns_add_u32 {sA}, {sA}, {sB}\nv_lshl_add_u32 v4, v1, 7, {sA}\nv_add_u32 v5, 0x2000, v4")
            a(f"global_load_dword v40, v4, {sWO}\nglobal_load_dword v41, v5, {sWO}")
            for k, n in enumerate(list(range(16, 32)) + list(range(16))):
                if k == self.wpre:
                    self.lds_wait(L_PUB, 1, 6, 7, tight=True)
                a(f"s_mov_b32 m0, {L_W + n * GUP}\ns_nop 0\nglobal_load_lds_dwordx4 v{8 + n}, {sWO} {self.wont}")
        else:
            for i in range(4 if self.wotouch else 0):
                a(f"global_load_dword v{40 + i}, v{4 + i // 2}, {sWO} offset:{-4096 if i % 2 == 0 else 0}")
            for k, n in enumerate(list(range(16, 32)) + list(range(16))):
                a(f"s_mov_b32 m0, {L_W + n * GUP}")
                a(f"s_waitcnt vmcnt({self.wwin})" if k >= 8 and self.wotouch else "s_nop 0")
                a(f"global_load_lds_dwordx4 v{8 + n}, {sWO} {self.wont}")
        self.stamp(13)
        a(f"v_mov_b32 v6, {L_DMA}\nv_mov_b32 v7, 1\ns_waitcnt vmcnt(0)\nds_write_b32 v6, v7")
        self.stamp(14)
        if self.dflag:
            a(f"s_lshl_b32 {sA}, {sXCD}, 7\ns_lshl_b32 {sB}, {sF}, 2\ns_add_u32 {sA}, {sA}, {sB}\ns_add_u32 {sA}, {sA}, {WS_DT}")
            a(f"v_mov_b32 v6, {sA}\nv_mov_b32 v7, {sT}\ns_mov_b64 exec, 1\ns_cmp_eq_u32 {sLOC}, 3\ns_cbranch_scc1 L_cwl")
            a(f"global_store_dword v6, v7, {sWS} sc1")
            self.end()
            a(f"L_cwl:\nglobal_store_dword v6, v7, {sWS}")
        if self.nth and "noffn" not in self.exp:
            ni = (512 - self.hrow0) // 128
            self.gu_touch_addr(self.hrow0, 8 * ni, ni)
            a(f"s_lshl_b32 {sA}, {sXCD}, 9\ns_add_u32 {sA}, {sA}, {WS_ML}\nv_and_b32 v4, 31, v1\nv_lshl_add_u32 v4, v4, 4, {sA}")

            def enough():
                self.chk(44, [40])
                a(f"s_bcnt0_i32_b32 {sA}, vcc_lo\ns_cmp_lt_u32 {sA}, {self.nth}\ns_cselect_b64 vcc, -1, 0")
            self.poll(lambda: a(f"global_load_dwordx4 v[40:43], v4, {sWS} sc1"), enough)
            a(f"s_cmp_gt_u32 {sA}, {self.nlate}\ns_cbranch_scc1 L_none")
            for i in range(ni):
                a(f"global_load_dword v{56 + 2 * i}, v{8 + i}, {sWG}\nglobal_load_dword v{57 + 2 * i}, v{8 + i}, {sWU}")
        self.end()

        a("L_chelp:")
        if self.helper:
            self.helper_code()
        self.end()

        a("L_cffn:")
        if "f" in self.prew:
            a(f"s_lshl_b32 {sA}, {sF}, 7\ns_add_u32 {sA}, {sA}, {WS_FP}\ns_not_b32 {sB}, {sT}")
            a(f"v_lshrrev_b32 v4, 3, v1\nv_mul_u32_u24 v4, {FP_STRIDE}, v4\nv_and_b32 v5, 7, v1\nv_lshl_add_u32 v4, v5, 4, v4\nv_add_u32 v4, {sA}, v4")
            a(f"v_mov_b32 v44, {sB}\nv_mov_b32 v45, {sB}\nv_mov_b32 v46, {sB}\nv_mov_b32 v47, {sB}")
            for i in range(4):
                a(f"global_store_dwordx4 v4, v[44:47], {sWS} sc1\nv_add_u32 v4, {8 * FP_STRIDE}, v4")
        a("v_lshrrev_b32 v4, 2, v1\nv_mul_u32_u24 v4, 2752, v4\nv_and_b32 v5, 3, v1\nv_lshl_add_u32 v4, v5, 4, v4")
        a(f"s_lshl_b32 {sA}, {sF}, 6\nv_add_u32 v8, {sA}, v4")
        a(f"s_and_b32 {sD}, {sF}, {1 if self.frot else 0}\ns_mul_i32 {sB}, {sD}, {256 * 2752}\nv_add_u32 v8, {sB}, v8\ns_lshl_b32 {sB}, {sB}, 1\ns_sub_u32 {sB}, {256 * 2752}, {sB}\nv_add_u32 v24, {sB}, v8")
        a(f"s_mul_i32 {sD}, {sD}, {16 * GUP}\ns_sub_u32 {sC}, {L_G + 16 * GUP}, {sD}\ns_add_u32 {sD}, {sD}, {L_G}")
        for n in range(1, 16):
            a(f"v_add_u32 v{8 + n}, {n * 16 * 2752}, v8\nv_add_u32 v{24 + n}, {n * 16 * 2752}, v24")
        a(f"s_lshl_b32 {sA}, {sF}, 15\ns_add_u32 {sA}, {sA}, 4096\nv_lshl_add_u32 v40, v1, 4, {sA}")
        for n in range(1, 4):
            a(f"v_add_u32 v{40 + n}, {n * 8192}, v40")
        a(f"v_mov_b32 v4, {L_HINT}\ns_mov_b32 {sRD}, 0")
        self.lds_wait(*((L_PUB, 1) if self.fpub else (L_VCNT, sNACT)), 6, 7)
        self.stamp(7)
        for k in range(0 if "noffn" in self.exp else 96):
            if k % self.fchk == 0 and k:
                a(f"s_waitcnt lgkmcnt(0)\nv_readfirstlane_b32 {sA}, v5\ns_add_u32 {sA}, {sA}, 1\ns_lshr_b32 {sA}, {sA}, 4\ns_andn2_b32 {sA}, {sA}, {sRD}\ns_cbranch_scc0 L_cf{k}\ns_mov_b32 {sRD}, 1")
                if self.barx:
                    a("s_barrier")
                self.lds_wait(L_YISS, 8, 6, 7)
                a(f"L_cf{k}:")
            if k % self.fchk == 0:
                a("ds_read_b32 v5, v4")
            win = self.fwin0 if k < self.fk0 and not self.clean else self.fwin
            if self.fml and k == self.fmk:
                self.ml_wait(self.fml, 64)
            if self.clean and k == self.fpre:
                self.lds_wait(L_PUB, 1, 6, 7)
            if k < 64:
                a(f"s_add_u32 m0, {sD if k < 32 else sC}, {(L_U - L_G if k & 1 else 0) + ((k >> 1) & 15) * GUP}")
                a(f"s_waitcnt vmcnt({win})" if k > win else "s_nop 0")
                a(f"global_load_lds_dwordx4 v{8 + (k >> 1)}, {sWU if k & 1 else sWG} {self.fnt}")
            else:
                n = k - 64
                off = (n & 7) * 1024 - 4096
                a(f"s_mov_b32 m0, {L_D + n * ROWP - off}\ns_waitcnt vmcnt({win})")
                a(f"global_load_lds_dwordx4 v{40 + (n >> 3)}, {sWD} offset:{off} {wnt}")
        self.stamp(8)
        a(f"s_cmp_lg_u32 {sRD}, 0\ns_cbranch_scc1 L_cf3")
        a(f"v_mov_b32 v6, {L_DMA}\nv_mov_b32 v7, 1\ns_waitcnt vmcnt(0)\nds_write_b32 v6, v7")
        self.stamp(11)
        if self.barx:
            a("s_waitcnt lgkmcnt(0)\ns_barrier")
        a("L_cf3:")
        a(("" if self.fold else "s_barrier\n") + "s_waitcnt vmcnt(32)\ns_barrier\ns_waitcnt vmcnt(0)")
        self.stamp(9)
        a("s_barrier")
        self.end()

        a("; ---- wave 0 of the monitor workgroup: once the group's 32 attention partials are out, tell every FFN workgroup when this\n; late so that the read does not arrive before the write and leave copies in remote L2s that the writer must invalidate.")
        a("L_cmon:")
        if self.clean:
            a(f"s_cmp_lt_u32 {sA}, 6\ns_cbranch_scc1 L_none\ns_mov_b32 {sF}, {sA}")
            a(f"s_lshl_b32 {sB}, {sXCD}, 19\ns_lshl_b32 {sC}, {sF}, 15\ns_add_u32 {sB}, {sB}, {sC}\ns_add_u32 {sB}, {sB}, {0x70000 - 6 * 32768}")
            a(f"v_lshl_add_u32 v4, v1, 7, {sB}\ns_movk_i32 {sD}, 0x2000")
            self.lds_wait(L_VCNT, sNACT, 6, 7)
            for i in range(4):
                a(f"global_load_dword v{48 + i}, v4, {sWO}\nv_add_u32 v4, {sD}, v4")
            a(f"s_mov_b32 {sA}, {sF}")
        if self.hint:
            if self.ytouch or not self.incr:
                a(f"s_cmp_eq_u32 {sA}, 6\ns_cbranch_scc1 L_ctouch")
            a(f"s_cmp_lg_u32 {sA}, 7\ns_cbranch_scc1 L_none")
            a(f"s_lshl_b32 {sA}, {sXCD}, 9\ns_add_u32 {sA}, {sA}, {WS_ML}\nv_and_b32 v4, 31, v1\nv_lshl_add_u32 v4, v4, 4, {sA}")
            a(f"s_lshl_b32 {sA}, {sXCD}, 2\ns_add_u32 {sA}, {sA}, {WS_HT}\nv_lshl_add_u32 v5, v1, 7, {sA}\nv_mov_b32 v6, {sT}")
            self.lds_wait(L_PUB, 1, 12, 13)
            if self.dflag:
                a(f"s_lshl_b32 {sA}, {sXCD}, 7\ns_add_u32 {sA}, {sA}, {WS_DT}\nv_and_b32 v7, 15, v1\nv_lshl_add_u32 v7, v7, 2, {sA}")

                def both():
                    self.chk(12, [8])
                    a(f"v_cmp_ne_u32 {sM0}, {sT}, v14\ns_or_b64 vcc, vcc, {sM0}")
                self.poll(lambda: a(f"global_load_dwordx4 v[8:11], v4, {sWS} sc1\nglobal_load_dword v14, v7, {sWS} sc1"), both)
            else:
                self.poll(lambda: a(f"global_load_dwordx4 v[8:11], v4, {sWS} sc1"), lambda: self.chk(12, [8]))
            for i in range(self.lag):
                a(f"global_load_dwordx4 v[8:11], v4, {sWS} sc1\ns_waitcnt vmcnt(0)")
            a(f"s_bfm_b64 exec, {56 if self.ytouch or not self.incr else (42 >> self.hsh) + 1}, 0\nglobal_store_dword v5, v6, {sWS} sc1")
            self.stamp(10)
            self.end()
        if self.hint and (self.ytouch or not self.incr):
            a("L_ctouch:")
            a(f"s_lshl_b32 {sA}, {sXCD}, 7\ns_add_u32 {sA}, {sA}, {WS_HT + 48 * 128}\nv_and_b32 v4, 7, v1\nv_lshl_add_u32 v4, v4, 2, {sA}")
            a(f"v_and_b32 v5, 31, v1\nv_lshlrev_b32 v5, 6, v5\nv_lshrrev_b32 v6, 5, v1\nv_lshl_add_u32 v5, v6, 14, v5\nv_add_u32 v5, {WS_YP}, v5")
            self.lds_wait(L_PUB, 1, 12, 13)
            a(f"s_mov_b32 {sC}, 0\ns_mov_b32 {sSPIN}, 0\nL_ct0:")
            a(f"global_load_dword v8, v4, {sWS} sc1\ns_add_u32 {sSPIN}, {sSPIN}, 1\ns_cmp_gt_u32 {sSPIN}, {SPIN}\ns_cbranch_scc1 L_bail")
            a(f"s_waitcnt vmcnt(0)\nv_cmp_eq_u32 vcc, {sT}, v8\ns_and_b32 {sA}, vcc_lo, 0xff\ns_andn2_b32 {sB}, {sA}, {sC}\ns_mov_b32 {sC}, {sA}")
            a(f"L_ct1:\ns_cmp_eq_u32 {sB}, 0\ns_cbranch_scc1 L_ct2")
            a(f"s_ff1_i32_b32 {sD}, {sB}\ns_bitset0_b32 {sB}, {sD}\ns_lshl_b32 {sD}, {sD}, 11\nv_add_u32 v6, {sD}, v5\nglobal_load_dword v9, v6, {sWS} sc1\ns_branch L_ct1")
            a(f"L_ct2:\ns_cmp_lg_u32 {sC}, 0xff\ns_cbranch_scc1 L_ct0")
        self.end()

    def ml_wait(self, nth, va):
        a = self.a
        a(f"s_lshl_b32 {sA}, {sXCD}, 9\ns_add_u32 {sA}, {sA}, {WS_ML}\nv_and_b32 v{va}, 31, v1\nv_lshl_add_u32 v{va}, v{va}, 4, {sA}")

        def enough():
            self.chk(va + 6, [va + 2])
            a(f"s_bcnt0_i32_b32 {sA}, vcc_lo\ns_cmp_lt_u32 {sA}, {nth}\ns_cselect_b64 vcc, -1, 0")
        self.poll(lambda: a(f"global_load_dwordx4 v[{va + 2}:{va + 5}], v{va}, {sWS} sc1"), enough)

    def gu_touch_addr(self, r0, rows, ni):
        a = self.a
        a(f"s_min_u32 {sB}, {sXCD}, 3\ns_mul_i32 {sC}, {sXCD}, 5\ns_add_u32 {sC}, {sC}, {sB}")
        a(f"s_mul_i32 {sB}, {sF}, {rows}\ns_add_u32 {sB}, {sB}, {r0}\ns_mul_i32 {sB}, {sB}, 2752\ns_lshl_b32 {sA}, {sC}, 6\ns_add_u32 {sB}, {sB}, {sA}")
        a("v_lshrrev_b32 v8, 3, v1\nv_mul_u32_u24 v8, 2752, v8\nv_and_b32 v5, 7, v1\nv_min_u32 v5, 5, v5\nv_lshl_add_u32 v8, v5, 6, v8")
        a(f"v_add_u32 v8, {sB}, v8")
        for i in range(1, ni):
            a(f"v_add_u32 v{8 + i}, {i * 8 * 2752}, v8\nv_min_u32 v{8 + i}, {512 * 2752 - 4}, v{8 + i}")

    def helper_code(self):
        a = self.a
        ni = self.hr // 64
        a(f"s_min_u32 {sB}, {sXCD}, 3\ns_mul_i32 {sC}, {sXCD}, 5\ns_add_u32 {sC}, {sC}, {sB}")
        a(f"s_and_b32 {sA}, {sF}, 3\ns_mul_i32 {sB}, {sA}, {16 * ni}\ns_lshr_b32 {sA}, {sF}, 2\ns_lshl_b32 {sA}, {sA}, 8\ns_add_u32 {sB}, {sB}, {sA}")
        a(f"s_add_u32 {sB}, {sB}, {256 - self.hr}\ns_mul_i32 {sB}, {sB}, 2752\ns_lshl_b32 {sA}, {sC}, 6\ns_add_u32 {sB}, {sB}, {sA}")
        a("v_lshrrev_b32 v8, 2, v1\nv_mul_u32_u24 v8, 2752, v8\nv_and_b32 v5, 3, v1\nv_lshlrev_b32 v5, 7, v5\nv_min_u32 v5, 380, v5\nv_add_u32 v8, v5, v8")
        a(f"v_add_u32 v8, {sB}, v8")
        for i in range(ni - 1, -1, -1):
            a(f"v_add_u32 v{8 + i}, {i * 16 * 2752}, v8\nv_min_u32 v{8 + i}, {512 * 2752 - 4}, v{8 + i}")
        a(f"s_lshl_b32 {sC}, {sC}, 15\ns_mul_i32 {sA}, {sF}, {6 * 32768 // 8}\ns_add_u32 {sC}, {sC}, {sA}\nv_lshl_add_u32 v20, v1, 7, {sC}")
        for i in range(2, -1, -1):
            a(f"v_add_u32 v{20 + i}, {i * 8192}, v20\nv_min_u32 v{20 + i}, {1376 * 1024 - 4}, v{20 + i}")
        a(f"s_lshl_b32 {sB}, {sXCD}, 19\ns_mul_i32 {sC}, {sF}, {24576 if self.clean else 32768}\ns_add_u32 {sB}, {sB}, {sC}\ns_add_u32 {sB}, {sB}, 0x40000")
        a(f"v_lshl_add_u32 v4, v1, 7, {sB}\ns_movk_i32 {sD}, 0x2000")
        self.lds_wait(*((L_PUB, 1) if self.hpub else (L_VCNT, sNACT)), 6, 7)
        for i in range((3 if self.clean else 4) if self.wotouch else 0):
            a(f"global_load_dword v{48 + i}, v4, {sWO}\nv_add_u32 v4, {sD}, v4")
        if self.clean:
            self.lds_wait(L_PUB, 1, 6, 7)
        if "noffn" in self.exp:
            return
        w = f"s_waitcnt vmcnt({self.hwin})\n"
        if self.hml:
            self.ml_wait(self.hml, 64)
            w = ""
        for i in range(3 if self.hdown else 0):
            a(f"{w}global_load_dword v{40 + i}, v{20 + i}, {sWD}")
        for i in range(ni):
            a(f"{w}global_load_dword v{56 + 2 * i}, v{8 + i}, {sWG}\n{w}global_load_dword v{57 + 2 * i}, v{8 + i}, {sWU}")
        for i in range(0 if self.hdown else 3):
            a(f"{w}global_load_dword v{40 + i}, v{20 + i}, {sWD}")

    def stream_early(self):
        a = self.a
        nt = self.nt
        K, V = 4, 36
        a('; ---- waves 1..8: issue the K and V loads of 32 keys each (contiguous 1 KiB per instruction). The barriers order the queue:\n; wq first, a few K loads until the q partial is out, the rest of K, the q gather, then V.')
        a(f"L_stream:\ns_cmp_gt_u32 {sW}, {sNACT}\ns_cbranch_scc1 L_idle")
        a(f"s_lshr_b32 {sA}, {sJ}, 2\ns_lshl_b32 {sA}, {sA}, 25\ns_lshl_b32 {sB}, {sH}, 20\ns_add_u32 {sA}, {sA}, {sB}")
        a(f"s_and_b32 {sB}, {sJ}, 1\ns_mul_i32 {sB}, {sB}, {sNACT}\ns_add_u32 {sB}, {sB}, {sW}\ns_bitcmp1_b32 {sJ}, 1\ns_cselect_b32 {sC}, {2 * self.nww}, 0")
        a(f"s_add_u32 {sB}, {sB}, {sC}\ns_lshl_b32 {sB}, {sB}, 13\ns_add_u32 {sA}, {sA}, {sB}")
        a(f"s_add_u32 {sA}, {sA}, {0xC0000 + 4096 - 8192}\nv_lshl_add_u32 v2, v1, 4, {sA}")
        a("s_waitcnt lgkmcnt(0)")
        self.stamp(1)
        for t in range(8):
            if t == self.nkpre and self.b0:
                a("s_barrier")
            if t == self.nk0:
                if self.presetup:
                    a("s_branch L_setup\nL_setupr:")
                if not self.kwin:
                    a("s_barrier")
            if self.kwin and t >= self.kwin:
                a(f"s_waitcnt vmcnt({self.kwin - 1})")
            if t == self.nk1:
                a("s_barrier\ns_barrier")
            a(f"global_load_dwordx4 {vr(K + 4 * t, 4)}, v2, {sK} offset:{1024 * t - 4096} {nt}")
        self.stamp(2)
        vload = lambda t: a(f"global_load_dwordx4 {vr(V + 4 * t, 4)}, v2, {sV} offset:{1024 * t - 4096} {nt}")
        if self.nv1:
            a(f"s_bitcmp0_b32 {sJ}, 1\ns_cbranch_scc1 L_vw\ns_barrier\ns_barrier")
            for t in range(self.nv1):
                vload(t)
            a("s_branch L_vr\nL_vw:")
            for t in range(self.nv1):
                vload(t)
            a("s_barrier\ns_barrier\nL_vr:")
        elif self.nk1 == 8 and not self.nva:
            a("s_barrier\ns_barrier")
        for t in range(self.nv1, 8):
            vload(t)
            if t + 1 == self.nva:
                a("s_barrier\ns_barrier")
        if self.layout in ("sc", "cs"):
            a("s_branch L_stream2")

    def idle_early(self):
        a = self.a
        a("L_idle:")
        if self.prefetch:
            a(f"s_cmp_lg_u32 {sW}, {self.nwaves - 1}\ns_cbranch_scc1 L_nopf")
            a(f"s_getpc_b64 {sP}\nL_pc:\ns_sub_u32 s52, s52, L_pc-{KN}\ns_subb_u32 s53, s53, 0")
            a(f"s_lshr_b32 {sA}, s2, 3\ns_min_u32 {sA}, {sA}, (L_codeend-{KN})/1024\ns_lshl_b32 {sA}, {sA}, 10")
            a(f"v_lshl_add_u32 v3, v1, 4, {sA}\nglobal_load_dwordx4 {vr(124, 4)}, v3, {sP}")
            a("L_nopf:")
        if self.b0:
            a("s_barrier")
        a(f"s_waitcnt lgkmcnt(0)\ns_load_dword {sT}, {sWS}, 0")
        if self.vtlb:
            a(f"s_lshr_b32 {sA}, {sJ}, 2\ns_lshl_b32 {sA}, {sA}, 25\ns_lshl_b32 {sB}, {sH}, 20\ns_add_u32 {sA}, {sA}, {sB}\ns_add_u32 {sA}, {sA}, 0xBFF00")
            a(f"v_mov_b32 v3, {sA}\ns_mov_b64 exec, 1\nglobal_load_dword v4, v3, {sV} nt\ns_mov_b64 exec, -1")
        a(f"s_getreg_b32 {sC}, hwreg(HW_REG_XCC_ID, 0, 4)\ns_lshl_b32 {sA}, {sXCD}, 7\ns_lshr_b32 {sB}, s2, 3\ns_lshl_b32 {sB}, {sB}, 2\ns_add_u32 {sA}, {sA}, {sB}")
        a(f"s_add_u32 {sA}, {sA}, {WS_XT}\nv_mov_b32 v2, {sA}\ns_waitcnt lgkmcnt(0)\ns_cmp_lg_u32 {sW}, {self.nwaves - 1}\ns_cbranch_scc1 L_noxt")
        a(f"s_add_u32 {sA}, {sT}, {TAGC}\ns_and_b32 {sA}, {sA}, 0xffffff00\ns_or_b32 {sA}, {sA}, {sC}\nv_mov_b32 v3, {sA}")
        a(f"s_mov_b64 exec, 1\nglobal_store_dword v2, v3, {sWS} sc1\ns_mov_b64 exec, -1\nL_noxt:")
        a(("s_barrier\n" if self.kwin else "s_barrier\ns_barrier\n") + "s_barrier\ns_branch L_idle1")

    def stream_setup(self):
        a = self.a
        P, T, SEL, MK, ADR = 72, 80, 88, 100, 101
        a(f"s_load_dword {sT}, {sWS}, 0")
        sw = self.sw
        a(f"s_sub_u32 {sw}, {sW}, 1")
        self.selectors(SEL, T, 4, bits=3)
        a("v_and_b32 v3, 15, v1\nv_lshlrev_b32 v3, 4, v3")
        a(f"s_mov_b32 {sK1}, 0x3db504f3\ns_mov_b32 {sK2}, 0x3fb8aa3b")
        a(f"v_bfe_u32 {vr(ADR)}, v1, 4, 1\nv_lshlrev_b32 {vr(ADR)}, 6, {vr(ADR)}\nv_lshl_add_u32 {vr(ADR)}, v3, 3, {vr(ADR)}")
        a(f"s_lshl_b32 {sA}, {sH}, 12\ns_lshr_b32 {sB}, {sJ}, 2\ns_lshl_b32 {sB}, {sB}, 11\ns_add_u32 {sA}, {sA}, {sB}")
        a(f"s_and_b32 {sB}, {sJ}, 3\ns_lshl_b32 {sB}, {sB}, 4\ns_add_u32 {sA}, {sA}, {sB}\ns_add_u32 {sA}, {sA}, {WS_OP}\nv_add_u32 {vr(ADR)}, {sA}, {vr(ADR)}")
        a(f"s_lshl_b32 {sA}, {sH}, 7\ns_lshl_b32 {sB}, {sJ}, 4\ns_add_u32 {sA}, {sA}, {sB}\ns_add_u32 {sA}, {sA}, {WS_ML}\nv_mov_b32 {vr(T)}, {sA}")
        a(f"v_cmp_lt_u32 {sM0}, 31, v1\nv_mov_b32 {vr(MK)}, 0xffffff00\nv_cndmask_b32 {vr(ADR)}, {vr(ADR)}, {vr(T)}, {sM0}")
        for t in range(8):
            a(f"v_mov_b32 {vr(P + t)}, 0")

    def stream(self):
        a = self.a
        K, V, Q, P, T, SEL, D = 4, 36, 68, 72, 80, 88, 96
        MK, ADR, MREG, FAC = 100, 101, 102, 104
        if self.presetup:
            a("L_setup:")
            self.stream_setup()
            a("s_branch L_setupr")
        a('; ---- waves 1..8: scores (bf16 roundings as in the reference), wave-local softmax, workgroup max and sum, PV, combine, publish.')
        a("L_stream2:")
        self.lds_inc(L_VCNT, T, T + 1)
        self.stamp(3)
        sw = self.sw
        if not self.presetup:
            self.stream_setup()
        self.lds_wait(L_QF, 1, T, T + 1)
        self.stamp(4)
        a(f"ds_read_b128 {vr(Q, 4)}, v3 offset:{L_Q}")
        a(f"s_mov_b32 {sLOC}, {sA}")
        self.tag_consts()
        a("s_waitcnt vmcnt(8) lgkmcnt(0)")
        for i in range(4):
            for t in range(8):
                a(f"v_dot2c_f32_bf16 {vr(P + t)}, {vr(K + 4 * t + i)}, {vr(Q + i)}")
        for u in range(4):
            a(f"v_add_f32_dpp {vr(P + u)}, {vr(P + u)}, {vr(P + u)} row_ror:8 row_mask:0xf bank_mask:0x3")
        for u in range(4):
            a(f"v_add_f32_dpp {vr(P + u)}, {vr(P + u + 4)}, {vr(P + u + 4)} row_ror:8 row_mask:0xf bank_mask:0xc")
        for u in range(2):
            a(f"v_add_f32_dpp {vr(P + u)}, {vr(P + u)}, {vr(P + u)} row_shl:4 row_mask:0xf bank_mask:0x5")
        for u in range(2):
            a(f"v_add_f32_dpp {vr(P + u)}, {vr(P + u + 2)}, {vr(P + u + 2)} row_shr:4 row_mask:0xf bank_mask:0xa")
        self.dppred("v_add_f32", [P, P + 1], ("quad_perm:[1,0,3,2]", "quad_perm:[2,3,0,1]"))
        self.bf16r(P, P)
        self.bf16r(P + 1, P + 1)
        a(f"v_mul_f32 {vr(P)}, {sK1}, {vr(P)}\nv_mul_f32 {vr(P + 1)}, {sK1}, {vr(P + 1)}")
        self.bf16r(P, P)
        self.bf16r(P + 1, P + 1)
        a(f"v_max_f32 {vr(MREG)}, {vr(P)}, {vr(P + 1)}")
        self.dppred("v_max_f32", [MREG], ("row_ror:4", "row_ror:8"))
        self.redrows("v_max_f32", [MREG], T + 1)
        a(f"v_mul_f32 {vr(T)}, {sK2}, {vr(MREG)}")
        a(f"v_fma_f32 {vr(P)}, {vr(P)}, {sK2}, -{vr(T)}\nv_fma_f32 {vr(P + 1)}, {vr(P + 1)}, {sK2}, -{vr(T)}")
        a(f"v_exp_f32 {vr(P)}, {vr(P)}\nv_exp_f32 {vr(P + 1)}, {vr(P + 1)}")
        a(f"v_cvt_pk_bf16_f32 {vr(T)}, {vr(P)}, {vr(P + 1)}\nv_add_f32 {vr(P)}, {vr(P)}, {vr(P + 1)}")
        for u in range(4):
            a(f"v_mov_b32_dpp {vr(Q + u)}, {vr(T)} row_newbcast:{4 * u} {FULL}")
        self.dppred("v_add_f32", [P], ("row_ror:4", "row_ror:8"))
        self.redrows("v_add_f32", [P], P + 1)
        a(f"s_lshl_b32 {sA}, {sw}, 2\nv_mov_b32 {vr(T + 7)}, {sA}\nds_write2_b32 {vr(T + 7)}, {vr(MREG)}, {vr(P)} offset0:{L_MAX // 4} offset1:{L_SUM // 4}")
        self.lds_inc(L_MCNT, T, T + 1)
        self.stamp(5)
        for t in range(8):
            for m in range(4):
                a(f"v_perm_b32 {vr(K + 4 * t + m)}, {vr(Q + t // 2)}, {vr(Q + t // 2)}, {vr(SEL + 2 * m + (t & 1))}")
        self.lds_wait(L_MCNT, sNACT, T, T + 1)
        a(f"v_and_b32 {vr(T + 2)}, 15, v1\nv_cmp_gt_u32 vcc, 12, {vr(T + 2)}\nv_min_u32 {vr(T + 2)}, 11, {vr(T + 2)}\nv_lshlrev_b32 {vr(T + 2)}, 2, {vr(T + 2)}")
        a(f"ds_read2_b32 {vr(P + 2, 2)}, {vr(T + 2)} offset0:{L_MAX // 4} offset1:{L_SUM // 4}")
        a(f"s_lshl_b32 {sA}, {sw}, 9\nv_lshl_add_u32 v3, v1, 4, {sA}\nv_mov_b32 {vr(T)}, {L_CNT}\nv_mov_b32 {vr(T + 1)}, 1")
        a(f"v_and_b32 {vr(T + 3)}, 31, v1\nv_lshlrev_b32 {vr(T + 3)}, 4, {vr(T + 3)}\nv_lshrrev_b32 {vr(T + 4)}, 5, v1\nv_mul_u32_u24 {vr(T + 4)}, {512 * self.nh}, {vr(T + 4)}\nv_add_u32 {vr(T + 3)}, {vr(T + 4)}, {vr(T + 3)}")
        a(f"s_sub_u32 {sC}, {sNACT}, 1")
        a("s_waitcnt lgkmcnt(0)")
        a(f"v_cndmask_b32 {vr(P + 3)}, 0, {vr(P + 3)}, vcc\nv_mov_b32 {vr(Q)}, {vr(P + 2)}")
        self.dppred("v_max_f32", [Q], [f"row_ror:{r}" for r in (1, 2, 4, 8)])
        a(f"v_sub_f32 {vr(FAC)}, {vr(MREG)}, {vr(Q)}\nv_sub_f32 {vr(P + 2)}, {vr(P + 2)}, {vr(Q)}")
        a(f"v_mul_f32 {vr(FAC)}, {sK2}, {vr(FAC)}\nv_mul_f32 {vr(P + 2)}, {sK2}, {vr(P + 2)}")
        a(f"v_exp_f32 {vr(FAC)}, {vr(FAC)}\nv_exp_f32 {vr(P + 2)}, {vr(P + 2)}\nv_mov_b32 {vr(MREG)}, {vr(Q)}")
        a(f"v_mul_f32 {vr(MREG + 1)}, {vr(P + 2)}, {vr(P + 3)}\nv_mov_b32 {vr(FAC + 1)}, {vr(FAC)}")
        self.dppred("v_add_f32", [MREG + 1], [f"row_ror:{r}" for r in (1, 2, 4, 8)])
        self.stamp(6)
        if self.prio:
            a("s_setprio 2")
        for t in range(8):
            a(f"s_waitcnt vmcnt({7 - t})")
            a(f"v_mfma_f32_16x16x32_bf16 {vr(D, 4)}, {vr(K + 4 * t, 4)}, {vr(V + 4 * t, 4)}, {vr(D, 4) if t else 0}")
        self.stamp(7)
        a("s_mov_b32 exec_hi, 0")
        a(f"v_pk_mul_f32 {vr(D, 2)}, {vr(D, 2)}, {vr(FAC, 2)}\nv_pk_mul_f32 {vr(D + 2, 2)}, {vr(D + 2, 2)}, {vr(FAC, 2)}")
        a(f"ds_write_b128 v3, {vr(D, 4)} offset:{L_OP}")
        a("s_mov_b32 exec_lo, 1")
        a(f"ds_add_rtn_u32 {vr(T + 5)}, {vr(T)}, {vr(T + 1)}")
        a("s_waitcnt lgkmcnt(0)")
        a(f"v_readfirstlane_b32 {sA}, {vr(T + 5)}\ns_mov_b64 exec, -1")
        a(f"s_cmp_lg_u32 {sA}, {sC}\ns_cbranch_scc1 L_role")
        for n in range(self.nh):
            a(f"ds_read_b128 {vr(K + 4 * n, 4)}, {vr(T + 3)} offset:{L_OP + 512 * n}")
        if self.xts:
            a(f"ds_read_b32 {vr(T + 5)}, {vr(T)} offset:{L_LOC - L_CNT}\ns_waitcnt lgkmcnt(0)\nv_readfirstlane_b32 {sLOC}, {vr(T + 5)}")
        else:
            a(f"s_cmp_eq_u32 {sLOC}, 3\ns_waitcnt lgkmcnt(0)")
        pk = lambda d, x: a(f"v_pk_add_f32 {vr(d, 2)}, {vr(d, 2)}, {vr(x, 2)}")
        for i in (0, 2):
            pk(K + i, K + 4 + i)
            pk(K + 8 + i, K + 12 + i)
        for i in (0, 2):
            if self.nh == 6:
                pk(K + 16 + i, K + 20 + i)
            pk(K + i, K + 8 + i)
        for i in (0, 2) if self.nh > 4 else ():
            pk(K + i, K + 16 + i)
        for i in range(4):
            a(f"v_permlane32_swap_b32 {vr(K + i)}, {vr(K + 4 + i)}")
        for i in (0, 2):
            pk(K + i, K + 4 + i)
        a(f"v_cndmask_b32 {vr(K)}, {vr(K)}, {vr(MREG)}, {sM0}\nv_cndmask_b32 {vr(K + 1)}, {vr(K + 1)}, {vr(MREG + 1)}, {sM0}")
        if self.xts:
            a(f"s_cmp_eq_u32 {sLOC}, 3")
            if self.diag and "loc" in self.stamps:
                a(f"s_or_b32 s{self.slot(13)}, {sLOC}, 4\ns_cmp_eq_u32 {sLOC}, 3")
        self.tag4(K, MK)
        a("s_mov_b32 exec_hi, 1\ns_cbranch_scc1 L_publoc")
        a(f"global_store_dwordx4 {vr(ADR)}, {vr(K, 4)}, {sWS} sc1\ns_branch L_pubdone")
        a(f"L_publoc:\nglobal_store_dwordx4 {vr(ADR)}, {vr(K, 4)}, {sWS}")
        a("L_pubdone:\ns_mov_b32 exec_hi, -1")
        a(f"ds_write_b32 {vr(T)}, {vr(T + 1)} offset:{L_PUB - L_CNT}")
        self.stamp(8)
        a(f"L_role:\n" + ("s_setprio 0\n" if self.prio else "") + f"s_cmp_gt_u32 {sw}, 8\ns_cbranch_scc1 L_none")
        self.role("L_wo", "L_none", "L_ffn", "L_none")
        a(f"L_idle1:\ns_mov_b32 {sK2}, 0x3fb8aa3b\nv_mov_b32 {vr(MK)}, 0xffffff00")
        self.tag_consts()
        if self.idledma:
            a(f"s_cmp_lg_u32 {sW}, {self.nwn}\ns_cbranch_scc1 L_idle2")
            self.role("L_cwo", "L_none", "L_none", "L_none")
            a("L_idle2:")
        if self.nb:
            a(f"s_cmp_lg_u32 {sW}, {self.nwaves - 1}\ns_cbranch_scc1 L_idle3")
            a(f"s_getreg_b32 {sC}, hwreg(HW_REG_XCC_ID, 0, 4)\ns_and_b32 {sA}, {sT}, 0xffffff00\ns_or_b32 {sC}, {sC}, {sA}")
            a(f"s_lshl_b32 {sA}, {sXCD}, 7\ns_add_u32 {sA}, {sA}, {WS_XT}\nv_and_b32 v5, 31, v1\nv_lshl_add_u32 v5, v5, 2, {sA}")
            a(f"s_lshl_b32 {sA}, {sH}, 13\ns_lshr_b32 {sB}, {sJ}, 2\ns_lshl_b32 {sB}, {sB}, 12\ns_add_u32 {sA}, {sA}, {sB}\ns_add_u32 {sA}, {sA}, {WS_QP}\nv_lshl_add_u32 v4, v1, 4, {sA}")
            self.lds_wait(L_VCNT, self.nb, T, T + 1)
            a(f"ds_read_b32 {vr(T + 1)}, {vr(T)} offset:{L_QF - L_VCNT}\ns_waitcnt lgkmcnt(0)\nv_readfirstlane_b32 {sA}, {vr(T + 1)}\ns_mov_b32 {sSPIN}, 0")
            a(f"s_cmp_eq_u32 {sA}, 0\ns_cbranch_scc1 {self.qpoll}\nL_idle3:")
        a(f"s_sub_u32 {sw}, {sW}, 1")
        if self.xts and self.local:
            a(f"s_cmp_lg_u32 {sw}, {self.nwaves - 2}\ns_cbranch_scc1 L_xt2")
            if "mixloc" in self.exp:
                a(f"s_bitcmp1_b32 {sJ}, 0\ns_cbranch_scc1 L_xt2")
            self.lds_wait(L_QF, 1, T, T + 1)
            a(f"s_cmp_eq_u32 {sA}, 3\ns_cbranch_scc1 L_xt2")
            a(f"s_getreg_b32 {sC}, hwreg(HW_REG_XCC_ID, 0, 4)\ns_and_b32 {sA}, {sT}, 0xffffff00\ns_or_b32 {sC}, {sC}, {sA}")
            a(f"s_lshl_b32 {sA}, {sXCD}, 7\ns_add_u32 {sA}, {sA}, {WS_XT}\nv_and_b32 v2, 31, v1\nv_lshl_add_u32 v2, v2, 2, {sA}")
            a(f"v_mov_b32 {vr(T)}, {L_PUB}\ns_mov_b32 {sSPIN}, 0\nL_xt0:\nglobal_load_dword v3, v2, {sWS} sc1")
            a(f"s_add_u32 {sSPIN}, {sSPIN}, 1\ns_cmp_gt_u32 {sSPIN}, {SPIN}\ns_cbranch_scc1 L_bail\ns_waitcnt vmcnt(0)")
            a(f"v_cmp_ne_u32 vcc, {sC}, v3\ns_cbranch_vccz L_xt1\nds_read_b32 {vr(T + 1)}, {vr(T)}\ns_waitcnt lgkmcnt(0)")
            a(f"v_readfirstlane_b32 {sA}, {vr(T + 1)}\ns_cmp_lg_u32 {sA}, 0\ns_cbranch_scc1 L_xt2\ns_branch L_xt0")
            a(f"L_xt1:\nv_mov_b32 {vr(T + 1)}, 3\nds_write_b32 {vr(T)}, {vr(T + 1)} offset:{L_LOC - L_PUB}\nL_xt2:")
        self.lds_wait(L_PUB, 1, T, T + 1)
        a("s_branch L_role")

    def role_wo(self):
        a = self.a
        sw = self.sw
        MK = 100
        B, D, O, ML, X, T, AO, AM, AW, AR, AY = 4, 20, 36, 44, 48, 52, 60, 61, 62, 63, 64
        a('; ---- output projection: combine the four key splits of one head half per wave, multiply by the staged wo block, publish y.')
        a(f"L_wo:\ns_cmp_eq_u32 {sw}, 8\ns_cbranch_scc1 L_none")
        a(f"v_lshrrev_b32 v2, 4, v1\nv_bfe_u32 {vr(T)}, v1, 3, 1\nv_and_b32 {vr(T + 1)}, 3, v1\nv_bfe_u32 {vr(T + 2)}, v1, 4, 1\nv_lshrrev_b32 {vr(T + 3)}, 5, v1")
        a(f"s_lshl_b32 {sA}, {sw}, 2\nv_add_u32 v3, {sA}, {vr(T + 2)}\nv_mul_u32_u24 v3, {GUP}, v3\nv_lshl_add_u32 v3, {vr(T + 3)}, 9, v3")
        a(f"v_bfe_u32 {vr(T + 4)}, v1, 2, 2\nv_lshl_add_u32 v3, {vr(T + 4)}, 6, v3\nv_lshl_add_u32 v3, {vr(T + 1)}, 3, v3")
        a(f"s_lshl_b32 {sA}, {sXCD}, 2\ns_lshr_b32 {sB}, {sw}, 1\ns_add_u32 {sA}, {sA}, {sB}")
        a(f"s_lshl_b32 {sB}, {sA}, 7\ns_add_u32 {sB}, {sB}, {WS_ML}\nv_lshl_add_u32 {vr(AM)}, {vr(T)}, 2, {vr(T + 1)}\nv_lshl_add_u32 {vr(AM)}, {vr(AM)}, 4, {sB}")
        a(f"s_lshl_b32 {sA}, {sA}, 12\ns_and_b32 {sB}, {sw}, 1\ns_lshl_b32 {sB}, {sB}, 10\ns_add_u32 {sA}, {sA}, {sB}\ns_add_u32 {sA}, {sA}, {WS_OP}")
        a(f"v_bfe_u32 {vr(AO)}, v1, 2, 1\nv_lshl_add_u32 {vr(AO)}, {vr(AO)}, 1, {vr(T + 2)}\nv_lshl_add_u32 {vr(AO)}, {vr(AO)}, 1, {vr(T + 3)}\nv_lshlrev_b32 {vr(AO)}, 7, {vr(AO)}")
        a(f"v_lshl_add_u32 {vr(AO)}, {vr(T)}, 11, {vr(AO)}\nv_lshl_add_u32 {vr(AO)}, {vr(T + 1)}, 4, {vr(AO)}\nv_add_u32 {vr(AO)}, {sA}, {vr(AO)}")
        a(f"v_and_b32 {vr(AR)}, 15, v1\nv_lshlrev_b32 {vr(AW)}, 2, {vr(AR)}\nv_lshl_add_u32 {vr(AW)}, {vr(T + 3)}, 7, {vr(AW)}\nv_lshl_add_u32 {vr(AW)}, {vr(T + 2)}, 8, {vr(AW)}")
        a(f"s_lshl_b32 {sA}, {sw}, 9\ns_add_u32 {sA}, {sA}, {L_RED}\nv_add_u32 {vr(AW)}, {sA}, {vr(AW)}")
        a(f"v_lshlrev_b32 {vr(AR)}, 4, {vr(AR)}\nv_lshl_add_u32 {vr(AR)}, v2, 10, {vr(AR)}")
        a(f"s_lshl_b32 {sA}, {sXCD}, 11\ns_lshl_b32 {sB}, {sF}, 7\ns_add_u32 {sA}, {sA}, {sB}\ns_add_u32 {sA}, {sA}, {WS_YP}")
        a(f"v_and_b32 {vr(AY)}, 7, v1\nv_lshl_add_u32 {vr(AY)}, {vr(AY)}, 4, {sA}\nv_lshl_add_u32 {vr(AY)}, {vr(T)}, 14, {vr(AY)}")
        a(f"v_cmp_eq_u32 {sM1}, 1, {vr(T + 2)}")

        def mlload():
            a(f"global_load_dwordx4 {vr(ML, 4)}, {vr(AM)}, {sWS} sc1")

        def weights():
            a(f"v_and_b32 {vr(ML)}, {vr(MK)}, {vr(ML)}\nv_and_b32 {vr(ML + 1)}, {vr(MK)}, {vr(ML + 1)}")
            a(f"v_max_f32_dpp {vr(ML + 2)}, {vr(ML)}, {vr(ML)} quad_perm:[1,0,3,2] {FULL}")
            a(f"v_max_f32_dpp {vr(ML + 2)}, {vr(ML + 2)}, {vr(ML + 2)} quad_perm:[2,3,0,1] {FULL}")
            a(f"v_sub_f32 {vr(ML)}, {vr(ML)}, {vr(ML + 2)}\nv_mul_f32 {vr(ML)}, {sK2}, {vr(ML)}\nv_exp_f32 {vr(ML)}, {vr(ML)}")
            a(f"v_mul_f32 {vr(ML + 1)}, {vr(ML + 1)}, {vr(ML)}")
            self.dppred("v_add_f32", [ML + 1], ("quad_perm:[1,0,3,2]", "quad_perm:[2,3,0,1]"))
            a(f"v_rcp_f32 {vr(ML + 1)}, {vr(ML + 1)}\nv_mul_f32 {vr(ML)}, {vr(ML)}, {vr(ML + 1)}")

        def frags():
            self.lds_wait(L_DMA, 1, T + 6, T + 7, tight=True)
            a(f"s_mov_b32 {sSPIN}, 0")
            self.stamp(9)
            for t in range(2):
                for ct in range(2):
                    for hh in range(2):
                        a(f"ds_read_b64_tr_b16 {vr(B + 8 * t + 4 * ct + 2 * hh, 2)}, v3 offset:{L_W + t * 2 * GUP + hh * 256 + ct * 32}")

        def oloads():
            a(f"global_load_dwordx4 {vr(O, 4)}, {vr(AO)}, {sWS} sc1\nglobal_load_dwordx4 {vr(O + 4, 4)}, {vr(AO)}, {sWS} offset:64 sc1")
        if self.tog > 8:
            self.poll(mlload, lambda: self.chk(T, [ML]))
            if self.prio:
                a("s_setprio 2")
            self.stamp(10)
            self.poll(oloads, lambda: self.chk(T, [O, O + 4]), between=lambda: (weights(), frags()))
        else:
            def trreads():
                for t in range(2):
                    for ct in range(2):
                        for hh in range(2):
                            a(f"ds_read_b64_tr_b16 {vr(B + 8 * t + 4 * ct + 2 * hh, 2)}, v3 offset:{L_W + t * 2 * GUP + hh * 256 + ct * 32}")

            def look(tag):
                a(f"ds_read_b32 {vr(T + 7)}, {vr(T + 6)}\ns_waitcnt lgkmcnt(0)\nv_readfirstlane_b32 {sA}, {vr(T + 7)}\ns_andn2_b32 {sA}, {sA}, {sRD}\ns_cbranch_scc0 L_wl{tag}\ns_mov_b32 {sRD}, 1")
                trreads()
                a(f"L_wl{tag}:")
            a(f"v_mov_b32 {vr(T + 6)}, {L_DMA}\ns_mov_b32 {sRD}, 0")

            def few():
                self.chk(T, [ML])
                a(f"s_and_b32 {sA}, vcc_lo, 0x0f0f\ns_bcnt1_i32_b32 {sA}, {sA}\ns_cmp_gt_u32 {sA}, {8 - self.tog}\ns_cselect_b64 vcc, -1, 0")
            self.poll(lambda: (mlload(), look("a")), few)
            if self.prio:
                a("s_setprio 2")
            self.stamp(10)
            self.poll(lambda: (mlload(), oloads(), look("b")), lambda: self.chk(T, [ML, O, O + 4]))
            a(f"s_cmp_lg_u32 {sRD}, 0\ns_cbranch_scc1 L_wrd")
            frags()
            a("L_wrd:")
            weights()
        self.stamp(11)
        self.count(1)
        for i in range(8):
            a(f"v_and_b32 {vr(O + i)}, {vr(MK)}, {vr(O + i)}")
        for i in range(0, 8, 2):
            a(f"v_pk_mul_f32 {vr(O + i, 2)}, {vr(O + i, 2)}, {vr(ML, 2)} op_sel_hi:[1,0]")
        self.dppred("v_add_f32", range(O, O + 8), ("quad_perm:[1,0,3,2]", "quad_perm:[2,3,0,1]"))
        for u in range(4):
            a(f"v_cvt_pk_bf16_f32 {vr(X + u)}, {vr(O + 2 * u)}, {vr(O + 2 * u + 1)}")
        a("s_waitcnt lgkmcnt(0)")
        for ct in range(2):
            for t in range(2):
                a(f"v_mfma_f32_16x16x32_bf16 {vr(D + 8 * ct + 4 * t, 4)}, {vr(X, 4)}, {vr(B + 8 * t + 4 * ct, 4)}, 0")
        for ct in range(2):
            a(f"v_cndmask_b32 {vr(O + ct)}, {vr(D + 8 * ct)}, {vr(D + 8 * ct + 4)}, {sM1}")
        a(f"ds_write2_b32 {vr(AW)}, {vr(O)}, {vr(O + 1)} offset0:0 offset1:16\ns_waitcnt lgkmcnt(0)\ns_barrier")
        a(f"s_cmp_lg_u32 {sw}, 0\ns_cbranch_scc1 L_none")
        for n in range(4):
            a(f"ds_read_b128 {vr(B + 4 * n, 4)}, {vr(AR)} offset:{L_RED + 256 * n}")
        a("s_waitcnt lgkmcnt(0)")
        for i in (0, 2):
            a(f"v_pk_add_f32 {vr(B + i, 2)}, {vr(B + i, 2)}, {vr(B + 4 + i, 2)}\nv_pk_add_f32 {vr(B + 8 + i, 2)}, {vr(B + 8 + i, 2)}, {vr(B + 12 + i, 2)}")
        for i in (0, 2):
            a(f"v_pk_add_f32 {vr(B + i, 2)}, {vr(B + i, 2)}, {vr(B + 8 + i, 2)}")
        for swp in ("v_permlane32_swap_b32", "v_permlane16_swap_b32"):
            for i in range(4):
                a(f"{swp} {vr(B + i)}, {vr(B + 4 + i)}")
            for i in (0, 2):
                a(f"v_pk_add_f32 {vr(B + i, 2)}, {vr(B + i, 2)}, {vr(B + 4 + i, 2)}")
        self.tag4(B, MK)
        a("s_mov_b64 exec, 0xffff")
        a(f"global_store_dwordx4 {vr(AY)}, {vr(B, 4)}, {sWS} sc1")
        self.stamp(12)
        self.end()

    def role_ffn(self):
        a = self.a
        sw = self.sw
        BG, BD, F, D, ST, XF = 4, 68, 84, 116, 120, 126
        MK, AY, XR, ADR, AH, AHN, AS, ASW, AA, AAW, AAR, AF, FM, AO, HV = 128, 130, 132, 134, 135, 136, 137, 138, 139, 140, 141, 142, 144, 145, 146
        HNS = 1088
        a('; ---- FFN workgroup. Wave 9 watches the group announcements through the scalar path and releases the y gather.')
        a(f"L_ffn:\ns_cmp_lg_u32 {sw}, 8\ns_cbranch_scc1 L_ffn1")
        a(f"v_mov_b32 v2, {L_HINT}\ns_mov_b32 {sC}, 0")
        if self.hint:
            a(f"s_lshr_b32 {sA}, {sF}, {self.hsh}\ns_lshl_b32 {sA}, {sA}, 7\ns_add_u32 {sA}, {sA}, {WS_HT}\ns_add_u32 s52, s26, {sA}\ns_addc_u32 s53, s27, 0\ns_mov_b32 s98, {sT}\ns_mov_b32 s99, {sT}")
            if self.hdepth:
                a(f"s_not_b32 {sB}, {sT}")
                for i in range(8):
                    a(f"s_mov_b32 s{56 + i}, {sB}")

            def hcheck():
                a(f"s_mov_b32 {sA}, 0")
                for i in range(4):
                    a(f"s_cmp_eq_u64 s[{56 + 2 * i}:{57 + 2 * i}], {sTT}\ns_cselect_b32 {sB}, {1 << i}, 0\ns_or_b32 {sA}, {sA}, {sB}")
                if self.incr:
                    a(f"s_cmp_eq_u32 {sA}, {sC}\ns_cbranch_scc1 L_fh0\nv_mov_b32 v3, {sA}\ns_mov_b32 {sC}, {sA}\nds_write_b32 v2, v3\nL_fh0:")
                if self.hslow:
                    a(f"s_bcnt1_i32_b32 {sB}, {sA}\ns_cmp_ge_u32 {sB}, 2\ns_cbranch_scc1 L_fh1\ns_sleep {self.hslow}\nL_fh1:")
                a(f"s_cmp_lg_u32 {sA}, 15")
            self.spoll(lambda: a((f"s_sleep {self.hsleep}\n" if self.hsleep else "") + f"s_load_dwordx8 s[56:63], {sP}, 0 glc"), hcheck, keep=self.hdepth)
        if not (self.hint and self.incr):
            a("v_mov_b32 v3, 15\nds_write_b32 v2, v3")
        self.stamp(2)
        if self.barx:
            a("s_barrier")
        self.end()
        a('; waves 1..8: gather y, h = x + attn, LayerNorm statistics, gate/up, GELU, down, publish; groups 0..31 then reduce 32 outputs each.')
        a("L_ffn1:")
        g, b3, q4, r2, hi, b4 = F, F + 1, F + 2, F + 3, F + 4, F + 5
        a(f"v_mov_b32 {vr(MK)}, 0xffffff00")
        a(f"v_lshrrev_b32 {vr(g)}, 4, v1\nv_bfe_u32 {vr(b3)}, v1, 3, 1\nv_and_b32 {vr(q4)}, 3, v1\nv_bfe_u32 {vr(r2)}, v1, 2, 2\nv_lshrrev_b32 {vr(hi)}, 5, v1\nv_bfe_u32 {vr(b4)}, v1, 4, 1")
        a(f"s_lshl_b32 {sA}, {sw}, 4\nv_and_b32 v3, 15, v1\nv_add_u32 v3, {sA}, v3")
        a(f"v_lshlrev_b32 {vr(AHN)}, 3, v3\nv_lshl_add_u32 {vr(AHN)}, {vr(b4)}, 2, {vr(AHN)}\nv_lshl_add_u32 {vr(AH)}, {vr(hi)}, 10, {vr(AHN)}")
        a(f"global_load_dword {vr(XR)}, {vr(AH)}, {sX}")
        a(f"v_mul_u32_u24 v2, {HNS}, {vr(hi)}\nv_add_u32 {vr(AHN)}, v2, {vr(AHN)}")
        a(f"v_lshlrev_b32 {vr(AY)}, 4, v3\nv_lshl_add_u32 {vr(AY)}, {vr(hi)}, 14, {vr(AY)}\nv_lshl_add_u32 {vr(AY)}, {vr(b4)}, 11, {vr(AY)}\nv_bfe_u32 v3, v1, 2, 1")
        a(f"v_add_u32 {vr(AY + 1)}, {WS_YP + 12288}, {vr(AY)}\nv_add_u32 {vr(AY)}, {WS_YP + 4096}, {vr(AY)}")
        a(f"s_lshl_b32 {sA}, {sw}, 3\nv_lshlrev_b32 {vr(AS)}, 6, {vr(hi)}\nv_add_u32 {vr(ASW)}, {sA}, {vr(AS)}")
        a(f"v_and_b32 {vr(AA)}, 1, v1\nv_mul_u32_u24 {vr(AA)}, {HNS}, {vr(AA)}\nv_lshl_add_u32 {vr(AA)}, {vr(b4)}, 5, {vr(AA)}\nv_lshl_add_u32 {vr(AA)}, {vr(hi)}, 4, {vr(AA)}")
        if self.fold:
            a(f"v_and_b32 v2, 2, v1\nv_cmp_ne_u32 vcc, 0, v2\nv_lshlrev_b32 v2, 5, {vr(b4)}\nv_lshl_add_u32 v2, {vr(hi)}, 4, v2")
            a(f"v_add_u32 {vr(AA)}, {L_HN}, {vr(AA)}\nv_add_u32 v2, {L_ONE}, v2\nv_cndmask_b32 {vr(AA)}, {vr(AA)}, v2, vcc\nv_lshlrev_b32 {vr(AS)}, 6, {vr(b4)}")
        a(f"v_lshlrev_b32 {vr(AAR)}, 6, v3\nv_lshl_add_u32 {vr(AAR)}, {vr(g)}, 4, {vr(AAR)}")
        a(f"v_and_b32 {vr(AAW)}, 7, v1\nv_lshlrev_b32 {vr(AAW)}, 1, {vr(AAW)}\nv_lshl_add_u32 {vr(AAW)}, {vr(b4)}, 6, {vr(AAW)}\ns_lshl_b32 {sA}, {sw}, 4\nv_add_u32 {vr(AAW)}, {sA}, {vr(AAW)}")
        a(f"s_lshl_b32 {sB}, {sw}, 1\nv_add_u32 {vr(ADR)}, {sB}, {vr(hi)}\nv_lshl_add_u32 {vr(ADR)}, {vr(ADR)}, 1, v3\nv_mul_u32_u24 {vr(ADR)}, {FP_STRIDE}, {vr(ADR)}")
        a(f"s_lshl_b32 {sB}, {sF}, 7\ns_add_u32 {sB}, {sB}, {WS_FP}\nv_lshl_add_u32 {vr(ADR)}, {vr(q4)}, 4, {vr(ADR)}\nv_lshl_add_u32 {vr(ADR)}, {vr(b4)}, 6, {vr(ADR)}\nv_add_u32 {vr(ADR)}, {sB}, {vr(ADR)}")
        a(f"v_bfe_u32 v2, v1, 1, 1\nv_mul_u32_u24 v2, {L_U - L_G}, v2\nv_mul_u32_u24 v3, {GUP}, {vr(b4)}\nv_add_u32 v2, v2, v3")
        a(f"v_lshl_add_u32 v2, {vr(hi)}, 9, v2\nv_lshl_add_u32 v2, {vr(r2)}, 6, v2\nv_and_b32 v3, 1, v1\nv_lshl_add_u32 v2, v3, 3, v2")
        a(f"s_and_b32 {sA}, {sw}, 3\ns_lshl_b32 {sA}, {sA}, 4\nv_add_u32 v2, {sA}, v2")
        a(f"v_lshl_add_u32 v3, {vr(g)}, 3, {vr(r2)}\nv_mul_u32_u24 v3, {ROWP}, v3\nv_lshl_add_u32 v3, {vr(q4)}, 5, v3\ns_lshl_b32 {sB}, {sw}, 7\ns_add_u32 {sB}, {sB}, {L_D}\nv_add_u32 v3, {sB}, v3")
        a(f"s_mul_i32 {sB}, {sF}, {FP_STRIDE}\ns_lshl_b32 {sC}, {sw}, 6\ns_add_u32 {sB}, {sB}, {sC}\ns_add_u32 {sB}, {sB}, {WS_FP}")
        a(f"v_lshrrev_b32 {vr(AF)}, 2, v1\nv_lshlrev_b32 {vr(AF)}, 7, {vr(AF)}\nv_lshl_add_u32 {vr(AF)}, {vr(q4)}, 4, {vr(AF)}\nv_add_u32 {vr(AF)}, {sB}, {vr(AF)}")
        a(f"v_cmp_gt_u32 vcc, 44, v1\nv_add_u32 {vr(AF + 1)}, 4096, {vr(AF)}\nv_cndmask_b32 {vr(AF + 1)}, {vr(AF)}, {vr(AF + 1)}, vcc\nv_cndmask_b32 {vr(FM)}, 0, {vr(MK)}, vcc")
        a(f"s_and_b32 {sB}, {sF}, 1\ns_lshl_b32 {sB}, {sB}, 9\ns_lshr_b32 {sC}, {sF}, 1\ns_lshl_b32 {sC}, {sC}, 5\ns_add_u32 {sB}, {sB}, {sC}\ns_lshl_b32 {sC}, {sw}, 4\ns_add_u32 {sB}, {sB}, {sC}")
        a(f"v_lshl_add_u32 {vr(AO)}, {vr(b4)}, 1, {vr(hi)}\nv_lshl_add_u32 {vr(AO)}, {vr(q4)}, 2, {vr(AO)}\nv_add_u32 {vr(AO)}, {sB}, {vr(AO)}\nv_lshlrev_b32 {vr(AO)}, 1, {vr(AO)}")
        a(f"s_and_b32 {sB}, {sF}, 1\ns_mul_i32 {sB}, {sB}, {HNS - 1024}\nv_add_u32 {vr(AH)}, {sB}, {vr(AO)}" if self.fold else "")
        a(f"v_cmp_eq_u32 {sM1}, 1, {vr(b4)}")
        a(f"s_mov_b32 {sK1}, 0x3d372713\ns_mov_b32 {sK3}, 0xc0135761")

        def load1(n):
            a(f"global_load_dwordx4 {vr(F + 4 * n, 4)}, {vr(AY + n // 2)}, {sWS} offset:{-4096 if n % 2 == 0 else 0} sc1")

        def loads():
            for n in range(4):
                load1(n)

        def mask1(n):
            for i in range(4):
                a(f"v_and_b32 {vr(F + 4 * n + i)}, {vr(MK)}, {vr(F + 4 * n + i)}")

        def bdreads():
            for n in range(4):
                for hh in range(2):
                    a(f"ds_read_b64_tr_b16 {vr(BD + 4 * n + 2 * hh, 2)}, v3 offset:{hh * 4 * ROWP + n * 8}")

        def bgreads():
            for t in range(16):
                for hh in range(2):
                    a(f"ds_read_b64_tr_b16 {vr(BG + 4 * t + 2 * hh, 2)}, v2 offset:{L_G + t * 2 * GUP + hh * 256}")

        def frags(tag):
            a(f"s_mov_b32 {sRD}, 1")
            bdreads()
            a(f"s_cmp_gt_u32 {sw}, 3\ns_cbranch_scc1 L_ffr{tag}")
            bgreads()
            a(f"L_ffr{tag}:")
        a(f"v_mov_b32 {vr(F + 16)}, {L_DMA}\ns_mov_b32 {sRD}, 0\ns_mov_b32 {sSPIN}, 0\ns_waitcnt vmcnt(0)")
        self.unpack(XF, XR, 1)
        a(f"s_mov_b32 {sC}, 0\nL_fw:\nds_read2_b32 {vr(F + 18, 2)}, {vr(F + 16)} offset0:0 offset1:1")
        a(f"s_add_u32 {sSPIN}, {sSPIN}, 1\ns_cmp_gt_u32 {sSPIN}, {SPIN * 8}\ns_cbranch_scc1 L_bail\ns_waitcnt lgkmcnt(0)")
        a(f"v_readfirstlane_b32 {sB}, {vr(F + 19)}\nv_readfirstlane_b32 {sA}, {vr(F + 18)}\ns_andn2_b32 {sD}, {sB}, {sC}\ns_cbranch_scc0 L_fw1")
        for n in range(4):
            a(f"s_bitcmp0_b32 {sD}, {n}\ns_cbranch_scc1 L_fl{n}")
            load1(n)
            a(f"L_fl{n}:")
        if self.barx:
            a(f"s_mov_b32 {sC}, {sB}\ns_bcnt1_i32_b32 {sD}, {sB}\ns_cmp_ge_u32 {sD}, {self.xth}\ns_cbranch_scc1 L_fgo\nL_fw1:")
        else:
            a(f"s_mov_b32 {sC}, {sB}\ns_cmp_eq_u32 {sB}, 15\ns_cbranch_scc1 L_fgo\nL_fw1:")
        a(f"s_andn2_b32 {sA}, {sA}, {sRD}\ns_cbranch_scc0 L_fw0")
        frags("a")
        a("L_fw0:\n" + ("" if self.tight else "s_sleep 1\n") + "s_branch L_fw\nL_fgo:")
        if self.barx:
            a(f"s_andn2_b32 {sA}, {sA}, {sRD}\ns_cbranch_scc0 L_fx")
            frags("c")
            a("L_fx:")
            if self.early:
                a("s_waitcnt vmcnt(0)")
                for n in range(4):
                    a(f"s_bitcmp0_b32 {sC}, {n}\ns_cbranch_scc1 L_fe{n}")
                    self.chk(F + 22, [F + 4 * n])
                    mask1(n)
                    a(f"s_cbranch_vccz L_fe{n}\ns_bitset0_b32 {sC}, {n}\nL_fe{n}:")
            a("s_barrier")
            for n in range(4):
                a(f"s_bitcmp1_b32 {sC}, {n}\ns_cbranch_scc1 L_fm{n}")
                load1(n)
                a(f"L_fm{n}:")
        self.stamp(9)

        def shadow():
            if self.barx:
                a(f"ds_read_b32 {vr(F + 18)}, {vr(F + 16)}")
            self.lds_inc(L_YISS, F + 20, F + 21)
            if self.barx:
                a(f"s_waitcnt lgkmcnt(0)\nv_readfirstlane_b32 {sA}, {vr(F + 18)}")
            a(f"s_mov_b32 {sSPIN}, 0\ns_andn2_b32 {sA}, {sA}, {sRD}\ns_cbranch_scc0 L_fnog")
            frags("b")
            a("L_fnog:")
        if self.early and self.barx:
            shadow()
            a(f"s_mov_b64 {sM0}, 0\ns_waitcnt vmcnt(0)")
            for n in range(4):
                a(f"s_bitcmp1_b32 {sC}, {n}\ns_cbranch_scc1 L_fn{n}")
                self.chk(F + 22, [F + 4 * n])
                mask1(n)
                a(f"s_or_b64 {sM0}, {sM0}, vcc\nL_fn{n}:")
            a(f"s_cmp_eq_u64 {sM0}, 0\ns_cbranch_scc1 L_fok")
            self.poll(loads, lambda: self.chk(F + 16, [F + 4 * n for n in range(4)]))
            for n in range(4):
                mask1(n)
            a("L_fok:")
        else:
            self.poll(loads, lambda: self.chk(F + 16, [F + 4 * n for n in range(4)]), between=shadow, first=False)
            for n in range(4):
                mask1(n)
        self.stamp(10)
        self.count(1)
        for i in (0, 2):
            a(f"v_pk_add_f32 {vr(F + i, 2)}, {vr(F + i, 2)}, {vr(F + 4 + i, 2)}\nv_pk_add_f32 {vr(F + 8 + i, 2)}, {vr(F + 8 + i, 2)}, {vr(F + 12 + i, 2)}")
        for i in (0, 2):
            a(f"v_pk_add_f32 {vr(F + i, 2)}, {vr(F + i, 2)}, {vr(F + 8 + i, 2)}")
        a(f"v_permlane16_swap_b32 {vr(F)}, {vr(F + 2)}\nv_permlane16_swap_b32 {vr(F + 1)}, {vr(F + 3)}")
        a(f"v_pk_add_f32 {vr(F, 2)}, {vr(F, 2)}, {vr(F + 2, 2)}")
        self.bf16r(F, F)
        self.bf16r(F + 1, F + 1)
        a(f"v_pk_add_f32 {vr(F + 2, 2)}, {vr(F, 2)}, {vr(XF, 2)}")
        self.bf16r(F, F + 2)
        self.bf16r(F + 1, F + 3)
        S = F + 6
        a(f"v_add_f32 {vr(S)}, {vr(F)}, {vr(F + 1)}\nv_mul_f32 {vr(S + 1)}, {vr(F)}, {vr(F)}\nv_fmac_f32 {vr(S + 1)}, {vr(F + 1)}, {vr(F + 1)}")
        a(f"v_cvt_pk_bf16_f32 {vr(F + 4)}, {vr(F + 2)}, {vr(F + 3)}")
        self.dppred("v_add_f32", [S, S + 1], [f"row_ror:{r}" for r in (1, 2, 4, 8)])
        a(f"ds_write_b32 {vr(AHN)}, {vr(F + 4)} offset:{L_HN}" if self.fold else f"ds_write_b32 {vr(AH)}, {vr(F + 4)} offset:{L_H}")
        for r in (S, S + 1):
            a(f"v_add_f32_dpp {vr(r)}, {vr(r)}, {vr(r)} row_bcast:15 row_mask:0xa bank_mask:0xf")
        a(f"s_mov_b32 exec_lo, 0x10000\ns_mov_b32 exec_hi, 0x10000\nds_write_b64 {vr(ASW)}, {vr(S, 2)} offset:{L_STAT}")
        a("s_mov_b64 exec, -1\ns_waitcnt lgkmcnt(0)\ns_barrier")
        self.stamp(11)

        def stats(R):
            sub = Gen.__new__(Gen)
            out = []
            sub.a = lambda t: out.extend(t.split("\n"))
            for n in range(4):
                sub.a(f"v_pk_add_f32 {vr(R + 4 * n, 2)}, {vr(R + 4 * n, 2)}, {vr(R + 2 + 4 * n, 2)}")
            sub.a(f"v_pk_add_f32 {vr(R, 2)}, {vr(R, 2)}, {vr(R + 4, 2)}\nv_pk_add_f32 {vr(R + 8, 2)}, {vr(R + 8, 2)}, {vr(R + 12, 2)}")
            sub.a(f"v_pk_add_f32 {vr(R, 2)}, {vr(R, 2)}, {vr(R + 8, 2)}")
            sub.a(f"v_mul_f32 {vr(R)}, 0x3b000000, {vr(R)}\nv_mul_f32 {vr(R + 1)}, 0x3b000000, {vr(R + 1)}")
            sub.a(f"v_fma_f32 {vr(R + 1)}, -{vr(R)}, {vr(R)}, {vr(R + 1)}\nv_max_f32 {vr(R + 1)}, 0, {vr(R + 1)}")
            sub.ln_finish(ST, R, R + 1)
            return out
        if not self.fold:
            for n in range(4):
                a(f"ds_read_b128 {vr(F + 8 + 4 * n, 4)}, {vr(AS)} offset:{L_STAT + 16 * n}")
            a(f"ds_read_u16 {vr(HV)}, {vr(AO)} offset:{L_H}")
            a("s_waitcnt lgkmcnt(0)")
            for x in stats(F + 8):
                a(x)
            self.ln_apply2(F, ST, XF, F + 4)
            a(f"ds_write_b32 {vr(AHN)}, {vr(XF)} offset:{L_HN}\ns_waitcnt lgkmcnt(0)\ns_barrier")

        def announce(tag):
            a(f"s_cmp_lg_u32 {sw}, 4\ns_cbranch_scc1 L_fan{tag}")
            a(f"s_lshl_b32 {sA}, {sF}, 2\ns_add_u32 {sA}, {sA}, {WS_FT}\nv_add_u32 {vr(BG)}, {sF}, v1\nv_and_b32 {vr(BG)}, {self.nrep - 1}, {vr(BG)}\nv_lshl_add_u32 {vr(BG)}, {vr(BG)}, 8, {sA}\nv_mov_b32 {vr(BG + 1)}, {sT}")
            for i in range(self.clag):
                a(f"ds_read_b32 {vr(BG + 2)}, {vr(AS)}\ns_waitcnt lgkmcnt(0)")
            a(f"s_bfm_b64 exec, {self.nrep}, 0\nglobal_store_dword {vr(BG)}, {vr(BG + 1)}, {sWS} sc1\ns_mov_b64 exec, -1\nL_fan{tag}:")
        a(f"s_cmp_lt_u32 {sw}, 4\ns_cbranch_scc1 L_fgu")
        if self.bump == "early":
            a(f"s_lshl_b32 {sA}, {sF}, 3\ns_add_u32 {sA}, {sA}, {sw}\ns_cmp_lg_u32 {sA}, 7\ns_cbranch_scc1 L_fnb")
            a(f"v_mov_b32 {vr(BG)}, 0\nv_mov_b32 {vr(BG + 1)}, {sT}\ns_mov_b64 exec, 1\nglobal_store_dword {vr(BG)}, {vr(BG + 1)}, {sWS} sc1\ns_mov_b64 exec, -1\nL_fnb:")
        if self.cpt == "hn":
            announce("a")
        a(f"s_branch L_fact\nL_fgu:\ns_cmp_lg_u32 {sRD}, 0\ns_cbranch_scc1 L_fgu2")
        bgreads()
        a("s_waitcnt lgkmcnt(0)\nL_fgu2:")
        hoff = 0 if self.fold else L_HN
        fill = []
        pre = 4 if self.fold and self.micro else 0
        for t in range(pre):
            a(f"ds_read_b128 {vr(F + 4 * t, 4)}, {vr(AA)} offset:{hoff + 64 * t}")
        if self.fold:
            SR = 144 + 4
            for n in range(3):
                a(f"ds_read_b128 {vr(SR + 4 * n, 4)}, {vr(AS)} offset:{L_STAT + 16 * n}")
            a(f"ds_read_b128 {vr(ST + 4, 4)}, {vr(AS)} offset:{L_STAT + 48}")
            fill = [x.replace(vr(SR + 12, 2), vr(ST + 4, 2)).replace(vr(SR + 14, 2), vr(ST + 6, 2)) for x in stats(SR)]
        for t in range(pre, 8):
            a(f"ds_read_b128 {vr(F + 4 * t, 4)}, {vr(AA)} offset:{hoff + 64 * t}")
        for t in range(16):
            a(f"s_waitcnt lgkmcnt({11 if t < pre else min(7, 15 - t)})")
            a(f"v_mfma_f32_16x16x32_bf16 {vr(D, 4)}, {vr(F + 4 * (t % 8), 4)}, {vr(BG + 4 * t, 4)}, {vr(D, 4) if t else 0}")
            if t < 8:
                a(f"ds_read_b128 {vr(F + 4 * t, 4)}, {vr(AA)} offset:{hoff + 64 * (t + 8)}")
            nf = (0 if t < pre else 2) if pre else (1 if t < 8 else 2)
            for x in fill[:nf]:
                a(x)
            fill = fill[nf:]
        assert not fill
        G = BG
        a(f"v_cndmask_b32 {vr(G)}, {vr(D)}, {vr(D + 1)}, {sM1}")
        if self.fold:
            a(f"v_fma_f32 {vr(G)}, -{vr(ST)}, {vr(D + 2)}, {vr(G)}\nv_mul_f32 {vr(G)}, {vr(G)}, {vr(ST + 4)}")
        self.bf16r(G, G)
        a(f"v_mul_f32 {vr(G + 2)}, {vr(G)}, {vr(G)}\nv_mul_f32 {vr(G + 3)}, {sK3}, {vr(G)}")
        a(f"v_mov_b32_dpp {vr(G + 1)}, {vr(G)} row_ror:8 {FULL}")
        a(f"v_fma_f32 {vr(G + 2)}, {vr(G + 2)}, {sK1}, 1.0")
        a(f"v_mul_f32 {vr(G + 2)}, {vr(G + 2)}, {vr(G + 3)}\nv_exp_f32 {vr(G + 2)}, {vr(G + 2)}\nv_add_f32 {vr(G + 2)}, 1.0, {vr(G + 2)}")
        a(f"v_rcp_f32 {vr(G + 2)}, {vr(G + 2)}\nv_mul_f32 {vr(G)}, {vr(G)}, {vr(G + 2)}")
        self.bf16r(G, G)
        a(f"v_mul_f32 {vr(G)}, {vr(G)}, {vr(G + 1)}\nv_cvt_pk_bf16_f32 {vr(G)}, {vr(G)}, {vr(G)}")
        a(f"s_mov_b64 exec, 0x00ff00ff\nds_write_b16 {vr(AAW)}, {vr(G)} offset:{L_ACT}\ns_mov_b64 exec, -1")
        a("L_fact:")
        if self.fold:
            a(f"ds_read_u16 {vr(HV)}, {vr(AH)} offset:{L_HN}")
        for i in range(16):
            a(f"v_mov_b32 {vr(F + i)}, 0")
        a("s_waitcnt lgkmcnt(0)\ns_barrier")
        self.stamp(12)
        if self.cpt == "act":
            announce("b")
        a(f"s_cmp_lg_u32 {sRD}, 0\ns_cbranch_scc1 L_fdn")
        bdreads()
        a("L_fdn:")
        for n in range(4):
            a(f"s_mov_b32 exec_lo, {0x11111111 << n:#x}\ns_mov_b32 exec_hi, {0x11111111 << n:#x}")
            a(f"ds_read_b128 {vr(F + 4 * n, 4)}, {vr(AAR)} offset:{L_ACT}")
        a(f"s_mov_b64 exec, -1\nv_lshlrev_b32 {vr(HV)}, 16, {vr(HV)}")
        a("s_waitcnt lgkmcnt(0)")
        for n in range(4):
            a(f"v_mfma_f32_16x16x32_bf16 {vr(D, 4)}, {vr(BD + 4 * n, 4)}, {vr(F + 4 * n, 4)}, {vr(D, 4) if n else 0}")
        a("s_mov_b32 exec_lo, 0x00ff00ff\ns_mov_b32 exec_hi, 0x00ff00ff")
        self.tag4(D, MK)
        a(f"global_store_dwordx4 {vr(ADR)}, {vr(D, 4)}, {sWS} sc1")
        self.stamp(13)
        a(f"s_mov_b64 exec, -1\ns_cmp_ge_u32 {sF}, 32\ns_cbranch_scc1 L_none\ns_cmp_ge_u32 {sw}, 2\ns_cbranch_scc1 L_none")
        if self.cpt in ("hn", "act"):
            a(f"s_and_b32 {sA}, {sF}, {self.nrep - 1}\ns_lshl_b32 {sA}, {sA}, 8\ns_add_u32 {sA}, {sA}, {WS_FT}\ns_add_u32 s52, s26, {sA}\ns_addc_u32 s53, s27, 0\ns_mov_b32 s98, {sT}\ns_mov_b32 s99, {sT}")

            def fcheck():
                pairs = list(range(4, 20, 2)) + list(range(64, 80, 2)) + list(range(56, 64, 2)) + [44]
                a(f"s_xor_b32 s46, s46, {sT}")
                for p in pairs:
                    a(f"s_xor_b64 s[{p}:{p + 1}], s[{p}:{p + 1}], {sTT}")
                a("s_or_b32 s4, s4, s46")
                for p in pairs[1:]:
                    a(f"s_or_b64 s[4:5], s[4:5], s[{p}:{p + 1}]")
            self.spoll(lambda: a(f"s_load_dwordx16 s[4:19], {sP}, 0 glc\ns_load_dwordx16 s[64:79], {sP}, 64 glc\ns_load_dwordx8 s[56:63], {sP}, 128 glc\ns_load_dwordx4 s[44:47], {sP}, 160 glc"), fcheck)
        elif self.csleep:
            a(f"s_sleep {self.csleep}")
        elif self.ackwait:
            a("s_waitcnt vmcnt(0)")

        def floads():
            a(f"global_load_dwordx4 {vr(F, 4)}, {vr(AF)}, {sWS} sc1\nglobal_load_dwordx4 {vr(F + 4, 4)}, {vr(AF)}, {sWS} offset:2048 sc1")
            a(f"global_load_dwordx4 {vr(F + 8, 4)}, {vr(AF + 1)}, {sWS} sc1")
        self.poll(floads, lambda: self.chk(F + 12, [F, F + 4, F + 8]))
        self.count(2)
        for i in range(8):
            a(f"v_and_b32 {vr(F + i)}, {vr(MK)}, {vr(F + i)}")
        for i in range(4):
            a(f"v_and_b32 {vr(F + 8 + i)}, {vr(FM)}, {vr(F + 8 + i)}")
        for k in (4, 8):
            for i in (0, 2):
                a(f"v_pk_add_f32 {vr(F + i, 2)}, {vr(F + i, 2)}, {vr(F + k + i, 2)}")
        self.tr_reduce4(F, (4, 8))
        self.bf16r(F, F)
        a("s_mov_b32 exec_lo, 0x000f000f\ns_mov_b32 exec_hi, 0x000f000f")
        a(f"v_add_f32 {vr(F)}, {vr(F)}, {vr(HV)}\nv_cvt_pk_bf16_f32 {vr(F)}, {vr(F)}, {vr(F)}")
        a(f"global_store_short {vr(AO)}, {vr(F)}, {sOUT} {self.outf}")
        self.stamp(14)
        if self.bump != "early" or self.pad:
            a(f"s_or_b32 {sA}, {sF}, {sw}\ns_cmp_lg_u32 {sA}, 0\ns_cbranch_scc1 L_none")
        if self.bump != "early":
            a(f"v_mov_b32 v2, 0\nv_mov_b32 v3, {sT}\ns_mov_b64 exec, 1\nglobal_store_dword v2, v3, {sWS} sc1")
        if self.pad:
            a(f"s_mov_b32 s88, {self.pad}")
            if self.probe in ("smax", "smin", "smed"):
                op = "v_max_i32" if self.probe == "smax" else ("v_min_i32" if self.probe == "smin" else "v_add_u32")
                a(f"s_mov_b64 exec, -1\nv_lshlrev_b32 v2, 4, v1\nv_add_u32 v2, {WS_ST}, v2\nglobal_load_dwordx4 v[4:7], v2, {sWS} sc1\ns_waitcnt vmcnt(0)")
                for i in range(4):
                    a(f"v_subrev_u32 v{4 + i}, s80, v{4 + i}")
                a(f"{op} v4, v4, v5\n{op} v6, v6, v7\n{op} v4, v4, v6")
                self.dppred(op, [4], [f"row_ror:{r}" for r in (1, 2, 4, 8)])
                self.redrows(op, [4], 5)
                if self.probe == "smed":
                    a("v_ashrrev_i32 v4, 8, v4")
                a("v_readfirstlane_b32 s84, v4\ns_add_u32 s84, s84, 300\ns_add_u32 s84, s84, s80")
            if self.probe is not None:
                a("s_waitcnt lgkmcnt(0)\ns_sub_u32 s84, s84, s80\ns_lshl_b32 s84, s84, 2\ns_min_u32 s84, s84, 20000\ns_add_u32 s88, s88, s84")
            a("L_pad:\ns_memrealtime s[86:87]\ns_waitcnt lgkmcnt(0)\ns_sub_u32 s86, s86, s80\ns_cmp_lt_u32 s86, s88\ns_cbranch_scc1 L_pad")
        self.end()


if __name__ == "__main__":
    out = sys.argv[1]
    kw = {}
    for x in sys.argv[2:]:
        k, v = x.split("=")
        kw[k] = {"True": True, "False": False}.get(v, v)
    g = Gen(**kw)
    open(out, "w").write(g.build())
    print("written", out, "nops", g.nops)
```

```python
import sys
from asmlib import Asm

KN = "sequential_preLN__sliding_block_cached__geglu_ffn__decode_kernel"
HEADER = open("sequential_preLN__sliding_block_cached__geglu_ffn__decode.s.ref").read().split("; Override launch")[0]

WS_FT, WS_HT, WS_XT, WS_QP, WS_OP, WS_ML, WS_YP, WS_FP, WS_ST = 0x4A000, 0x48000, 0x400, 0x1000, 0x50000, 0x70000, 0x80000, 0x110000, 0x200000
WS_DT = 0x800
FP_STRIDE = 6144
TAGC = 0x9E3779B9
L_Q, L_MAX, L_SUM, L_CNT, L_VCNT, L_MCNT, L_QF, L_PUB, L_DMA, L_HINT, L_YISS = 0, 256, 304, 352, 356, 360, 364, 368, 372, 376, 380
L_OP, L_RED, L_STAT, L_ACT, L_H, L_HN, L_W = 512, 6656, 10752, 11008, 11264, 13312, 15616
ROWP = 1040
GUP = 1056
L_G = L_W
L_U = L_G + 32 * GUP + 16
L_D = L_U + 32 * GUP + 240
LDS_BYTES = L_D + 32 * ROWP
L_LOC, L_WCNT = 384, 388
L_ONE = L_H + 128
SPIN = 1 << 19

DOC = """; One persistent launch: 256 workgroups (one per CU) x 10 waves. Workgroup id -> group x = id & 7, head 4x + (id >> 6),
; stores are sc1 except the attention partials, which use plain stores only when all 32 workgroups of the group have reported
"""

sX, sK, sV, sWQ, sWO, sWG, sWU, sWD, sOUT, sWS = "s[4:5]", "s[6:7]", "s[8:9]", "s[10:11]", "s[12:13]", "s[16:17]", "s[18:19]", "s[20:21]", "s[22:23]", "s[26:27]"
sXCD, sH, sJ, sW, sT = "s28", "s29", "s30", "s31", "s32"
sT1, sT2, sT3 = "s33", "s34", "s35"
sSELA, sSELB, sHI = "s36", "s37", "s38"
sSPIN = "s39"
sA, sB, sC, sD = "s40", "s41", "s42", "s43"
sM0, sM1 = "s[44:45]", "s[46:47]"
sF = "s48"
sK1, sK2, sK3 = "s49", "s50", "s51"
sP = "s[52:53]"
sLOC, sNACT, sRD = "s54", "s55", "s96"
sTT = "s[98:99]"
ST0 = 80
FULL = "row_mask:0xf bank_mask:0xf"


def vr(a, n=1):
    return f"v{a}" if n == 1 else f"v[{a}:{a + n - 1}]"


class Gen:
    def __init__(self, diag=False, nt="nt", wnt="nt", prefetch=True, pad=0, lds=None, nvg=160, probe=None, stamps=None,
                 nk0=4, helper=True, hrow0=128, local=True, ackwait=True, nk1=8, optouch=True, window=True, exp="", wwin=15, hint=True, lag=5, fwin=32, downearly=True, b0=True, tight=False, nww=8, wotouch=True, nv1=0, hwin=3, idledma=True, hpub=False, fpub=False, nth=0, nlate=12, hgu=0, hall=True, tlb=False, cpt="ack", hmode="s", hsleep=0, fchk=8, fwin0=11, fk0=24, incr=True, bump="early", outf="nt", nkpre=0, clag=0, nrep=32, wopair=False, frot=True, wk0=16, hr=128, wont="nt", fnt="", barx=True, hdown=False, clean=False, fpre=8, wpre=8, tog=9, csleep=0, fold=True, micro=True, early=False, hdepth=0, xth=3, ytouch=False, prew="", prio=True, layout="cs", hsh=0, dflag=False, vtlb=False, xts=True, hslow=0, nva=1, hml=0, fml=0, fmk=16, presetup=True, skew=0, skx=6, kwin=0, nb=0, qdel=0, ksplit=False, comb=True, hclean=False, al12=True, spec=True):
        self.a = Asm()
        self.diag, self.nt, self.wnt, self.prefetch = diag, nt, wnt, prefetch
        self.uid = 0
        self.pad, self.probe, self.stamps, self.sec = int(pad), probe, stamps, ""
        self.nk0, self.helper, self.hrow0, self.local, self.ackwait = int(nk0), helper, int(hrow0), local, ackwait
        self.nk1 = int(nk1)
        self.optouch, self.window, self.exp, self.wwin = optouch, window, exp, int(wwin)
        self.hint, self.lag, self.fwin = hint, int(lag), int(fwin)
        self.downearly, self.b0, self.tight = downearly, b0, tight
        self.nww, self.wotouch = int(nww), wotouch
        self.nwn = 16 - self.nww
        self.incr, self.bump, self.outf, self.nkpre, self.clag = incr, bump, outf, int(nkpre), int(clag)
        self.slots = {}
        self.spec = spec
        self.al12 = al12
        self.hclean = hclean or clean
        self.comb = comb
        self.ksplit = ksplit
        self.qdel = int(qdel)
        self.nb = int(nb)
        self.skew, self.skx, self.kwin = int(skew), int(skx), int(kwin)
        self.presetup = presetup
        self.hml, self.fml, self.fmk = int(hml), int(fml), int(fmk)
        self.nva = int(nva)
        self.hslow = int(hslow)
        self.xts = xts
        self.vtlb = vtlb
        self.dflag = dflag
        self.hsh = int(hsh)
        self.layout = layout
        self.prio = prio
        self.prew = prew
        self.xth, self.ytouch = int(xth), ytouch
        self.hdepth = int(hdepth)
        self.micro, self.early = micro, early
        self.fold = fold
        self.tog, self.csleep = int(tog), int(csleep)
        self.clean, self.fpre, self.wpre = clean, int(fpre), int(wpre)
        self.barx, self.hdown = barx, hdown
        self.wont, self.fnt = wont, fnt
        self.hr = int(hr)
        self.wopair, self.frot, self.wk0 = wopair, frot, int(wk0)
        self.nrep = int(nrep)
        self.hmode, self.hsleep, self.fchk, self.fwin0, self.fk0 = hmode, int(hsleep), int(fchk), int(fwin0), int(fk0)
        self.hall, self.tlb, self.cpt = hall, tlb, cpt
        self.hpub, self.fpub, self.nth, self.nlate, self.hgu = hpub, fpub, int(nth), int(nlate), int(hgu)
        self.nv1, self.hwin, self.idledma = int(nv1), int(hwin), idledma and self.nww < 8
        self.nwaves = max(self.nwn, 9) + 1
        self.nh = (4 if self.nwn == 8 and micro else 5) if self.nwn <= 10 else 6
        self.lds = int(lds) if lds else LDS_BYTES
        self.nvg = int(nvg)

    def stamp(self, i):
        key = self.sec + str(i)
        if self.probe == key:
            self.a("s_memrealtime s[84:85]")
        if self.diag and key in self.stamps:
            r = self.slot(i)
            self.a(f"s_memrealtime s[{r}:{r + 1}]")

    def slot(self, i):
        if i not in self.slots:
            self.slots[i] = ST0 + 4 + 2 * len(self.slots)
            assert self.slots[i] <= 94, "at most six stamp slots"
        return self.slots[i]

    def count(self, i):
        if self.diag and self.stamps is not None and ("n" + self.sec + str(i)) in self.stamps:
            self.a(f"s_add_u32 s{self.slot(i)}, {sSPIN}, 1")

    def end(self):
        self.a("s_branch L_exit" if self.diag else "s_endpgm")

    def bf16r(self, d, x):
        self.a(f"v_cvt_pk_bf16_f32 {vr(d)}, 0, {vr(x)}")

    def unpack(self, d, s, n):
        for i in range(n):
            self.a(f"v_lshlrev_b32 {vr(d + 2 * i)}, 16, {vr(s + i)}\nv_and_b32 {vr(d + 2 * i + 1)}, {sHI}, {vr(s + i)}")

    def dppred(self, op, regs, mods):
        for mod in mods:
            for r in regs:
                self.a(f"{op}_dpp {vr(r)}, {vr(r)}, {vr(r)} {mod} {FULL}")

    def redrows(self, op, regs, tmp):
        a = self.a
        for sw in ("v_permlane16_swap_b32", "v_permlane32_swap_b32"):
            for i, r in enumerate(regs):
                a(f"v_mov_b32 {vr(tmp + i)}, {vr(r)}")
            for i, r in enumerate(regs):
                a(f"{sw} {vr(r)}, {vr(tmp + i)}")
            for i, r in enumerate(regs):
                a(f"{op} {vr(r)}, {vr(r)}, {vr(tmp + i)}")

    def red8x(self, op, regs, tmp):
        self.dppred(op, regs, ("quad_perm:[1,0,3,2]", "quad_perm:[2,3,0,1]", "row_half_mirror"))
        self.redrows(op, regs, tmp)

    def selectors(self, sel, t0, nm, bits=2):
        a = self.a
        a(f"v_and_b32 {vr(t0)}, 1, v1")
        a(f"v_cmp_eq_u32 vcc, 1, {vr(t0)}")
        a(f"v_mov_b32 {vr(t0 + 1)}, 0x0c0c0100\nv_mov_b32 {vr(t0 + 2)}, 0x01000c0c")
        a(f"v_cndmask_b32 {vr(t0 + 1)}, {vr(t0 + 1)}, {vr(t0 + 2)}, vcc")
        a(f"v_mov_b32 {vr(t0 + 2)}, 0x0c0c0302\nv_mov_b32 {vr(t0 + 3)}, 0x03020c0c")
        a(f"v_cndmask_b32 {vr(t0 + 2)}, {vr(t0 + 2)}, {vr(t0 + 3)}, vcc")
        a(f"v_bfe_u32 {vr(t0)}, v1, 1, {bits}")
        a(f"v_mov_b32 {vr(t0 + 3)}, 0x0c0c0c0c")
        for m in range(nm):
            a(f"v_cmp_eq_u32 vcc, {m}, {vr(t0)}")
            a(f"v_cndmask_b32 {vr(sel + 2 * m)}, {vr(t0 + 3)}, {vr(t0 + 1)}, vcc")
            a(f"v_cndmask_b32 {vr(sel + 2 * m + 1)}, {vr(t0 + 3)}, {vr(t0 + 2)}, vcc")

    def tag_consts(self):
        a = self.a
        a(f"s_add_u32 {sT}, {sT}, {TAGC}")
        a(f"s_lshr_b32 {sT1}, {sT}, 8\ns_lshr_b32 {sT2}, {sT}, 16\ns_lshr_b32 {sT3}, {sT}, 24")
        a(f"s_mov_b32 {sSELA}, 0x0c0c0400\ns_mov_b32 {sSELB}, 0x04000c0c")

    def tag4(self, d, mask):
        for i, s in enumerate((sT, sT1, sT2, sT3)):
            self.a(f"v_bfi_b32 {vr(d + i)}, {vr(mask)}, {vr(d + i)}, {s}")

    def chk(self, t, gs):
        a = self.a
        for n, g in enumerate(gs):
            a(f"v_perm_b32 {vr(t + 2 * n)}, {vr(g + 1)}, {vr(g)}, {sSELA}")
            a(f"v_perm_b32 {vr(t + 2 * n + 1)}, {vr(g + 3)}, {vr(g + 2)}, {sSELB}")
        for n, g in enumerate(gs):
            a(f"v_bitop3_b32 {vr(t + 2 * n)}, {vr(t + 2 * n)}, {vr(t + 2 * n + 1)}, {sT} bitop3:0x56")
        rest = [t + 2 * n for n in range(1, len(gs))]
        while rest:
            if len(rest) >= 2:
                a(f"v_or3_b32 {vr(t)}, {vr(t)}, {vr(rest[0])}, {vr(rest[1])}")
                rest = rest[2:]
            else:
                a(f"v_or_b32 {vr(t)}, {vr(t)}, {vr(rest[0])}")
                rest = []
        a(f"v_cmp_ne_u32 vcc, 0, {vr(t)}")

    def poll(self, loads, check, between=None, first=True):
        a = self.a
        self.uid += 1
        L = self.cur_poll = f"L_poll{self.uid}"
        a(f"s_mov_b32 {sSPIN}, 0")
        if between:
            if first:
                loads()
            between()
            a(f"s_branch {L}w")
        a(f"{L}:")
        loads()
        a(f"s_add_u32 {sSPIN}, {sSPIN}, 1\ns_cmp_gt_u32 {sSPIN}, {SPIN}\ns_cbranch_scc1 L_bail")
        a(f"{L}w:\ns_waitcnt vmcnt(0)\n{L}c:")
        check()
        a(f"s_cbranch_vccnz {L}")

    def spoll(self, loads, check, keep=0):
        a = self.a
        self.uid += 1
        L = f"L_sp{self.uid}"
        a(f"s_mov_b32 {sSPIN}, 0\n{L}:")
        loads()
        a(f"s_add_u32 {sSPIN}, {sSPIN}, 1\ns_cmp_gt_u32 {sSPIN}, {SPIN}\ns_cbranch_scc1 L_bail\ns_waitcnt lgkmcnt({keep})")
        check()
        a(f"s_cbranch_scc1 {L}")

    def lds_wait(self, word, val, va, vt, tight=False, extra=None):
        a = self.a
        self.uid += 1
        L = f"L_lw{self.uid}"
        a(f"v_mov_b32 {vr(va)}, {word}\ns_mov_b32 {sSPIN}, 0\n{L}:")
        a(f"ds_read_b32 {vr(vt)}, {vr(va)}")
        if extra:
            extra()
        a(f"s_add_u32 {sSPIN}, {sSPIN}, 1\ns_cmp_gt_u32 {sSPIN}, {SPIN * 8}\ns_cbranch_scc1 L_bail")
        a(f"s_waitcnt lgkmcnt(0)\nv_readfirstlane_b32 {sA}, {vr(vt)}\ns_cmp_ge_u32 {sA}, {val}\n" + (f"s_cbranch_scc0 {L}" if tight and self.tight else f"s_cbranch_scc1 {L}d\ns_sleep 1\ns_branch {L}\n{L}d:"))

    def lds_inc(self, word, va, vt):
        self.a(f"v_mov_b32 {vr(va)}, {word}\nv_mov_b32 {vr(vt)}, 1\ns_mov_b64 exec, 1\nds_add_u32 {vr(va)}, {vr(vt)}\ns_mov_b64 exec, -1")

    def tr_reduce4(self, v, rots):
        a = self.a
        a(f"v_permlane32_swap_b32 {vr(v)}, {vr(v + 1)}")
        a(f"v_permlane32_swap_b32 {vr(v + 2)}, {vr(v + 3)}")
        a(f"v_add_f32 {vr(v)}, {vr(v)}, {vr(v + 1)}")
        a(f"v_add_f32 {vr(v + 2)}, {vr(v + 2)}, {vr(v + 3)}")
        a(f"v_permlane16_swap_b32 {vr(v)}, {vr(v + 2)}")
        a(f"v_add_f32 {vr(v)}, {vr(v)}, {vr(v + 2)}")
        self.dppred("v_add_f32", [v], [f"row_ror:{r}" for r in rots])

    def ln_finish(self, t, mean, var):
        a = self.a
        self.bf16r(var, var)
        self.bf16r(t, mean)
        a(f"v_add_f32 {vr(var)}, 0x3727c5ac, {vr(var)}")
        self.bf16r(var, var)
        a(f"v_sqrt_f32 {vr(var)}, {vr(var)}")
        self.bf16r(t + 2, var)
        a(f"v_rcp_f32 {vr(t + 4)}, {vr(t + 2)}")

    def ln_apply2(self, F, t, P, tmp):
        a = self.a
        a(f"v_pk_add_f32 {vr(F, 2)}, {vr(F, 2)}, {vr(t, 2)} op_sel_hi:[1,0] neg_lo:[0,1] neg_hi:[0,1]")
        self.bf16r(F, F)
        self.bf16r(F + 1, F + 1)
        a(f"v_pk_mul_f32 {vr(tmp, 2)}, {vr(F, 2)}, {vr(t + 4, 2)} op_sel_hi:[1,0]")
        a(f"v_pk_fma_f32 {vr(F, 2)}, {vr(tmp, 2)}, {vr(t + 2, 2)}, {vr(F, 2)} op_sel_hi:[1,0,1] neg_lo:[1,0,0] neg_hi:[1,0,0]")
        a(f"v_pk_fma_f32 {vr(F, 2)}, {vr(F, 2)}, {vr(t + 4, 2)}, {vr(tmp, 2)} op_sel_hi:[1,0,1]")
        a(f"v_cvt_pk_bf16_f32 {vr(P)}, {vr(F)}, {vr(F + 1)}")

    def gemv16(self, D, X, SEL, B, A, steps):
        a = self.a
        for t in range(steps):
            for m in range(2):
                a(f"v_perm_b32 {vr(A + 2 * t + m)}, {vr(X + t // 2)}, {vr(X + t // 2)}, {vr(SEL + 2 * m + (t & 1))}")
            if t >= 1:
                u = t - 1
                a(f"v_mfma_f32_16x16x16_bf16 {vr(D, 4)}, {vr(A + 2 * u, 2)}, {vr(B + 2 * u, 2)}, {vr(D, 4) if u else 0}")
        u = steps - 1
        a(f"v_mfma_f32_16x16x16_bf16 {vr(D, 4)}, {vr(A + 2 * u, 2)}, {vr(B + 2 * u, 2)}, {vr(D, 4)}")

    def role(self, lw, lh, lf, ln):
        a = self.a
        a(f"s_and_b32 {sA}, {sH}, 3\ns_lshl_b32 {sF}, {sA}, 2\ns_lshr_b32 {sA}, {sJ}, 2\ns_lshl_b32 {sA}, {sA}, 1\ns_add_u32 {sF}, {sF}, {sA}")
        a(f"s_and_b32 {sA}, {sJ}, 1\ns_add_u32 {sF}, {sF}, {sA}")
        a(f"s_bitcmp0_b32 {sJ}, 1\ns_cbranch_scc1 {lw}")
        a(f"s_cmp_lt_u32 {sF}, 8\ns_cbranch_scc1 {lh}")
        a(f"s_sub_u32 {sA}, {sF}, 8")
        a(f"s_min_u32 {sB}, {sXCD}, 3\ns_mul_i32 {sF}, {sXCD}, 5\ns_add_u32 {sF}, {sF}, {sB}\ns_add_u32 {sF}, {sF}, {sA}")
        a(f"s_cmp_lt_u32 {sXCD}, 3\ns_cselect_b32 {sB}, 6, 5\ns_cmp_lt_u32 {sA}, {sB}\ns_cbranch_scc1 {lf}")
        a(f"s_branch {ln}")

    def build(self):
        a = self.a
        a(f"{KN}:")
        if self.diag or self.pad:
            a(f"s_memrealtime s[{ST0}:{ST0 + 1}]")
        if self.skew:
            assert self.diag
            a(f"s_and_b32 s28, s2, 7\ns_cmp_lt_u32 s28, {self.skx}\ns_cbranch_scc1 L_nosk\ns_waitcnt lgkmcnt(0)")
            a(f"L_sk:\ns_memrealtime s[40:41]\ns_waitcnt lgkmcnt(0)\ns_sub_u32 s40, s40, s{ST0}\ns_cmp_lt_u32 s40, {self.skew}\ns_cbranch_scc1 L_sk\nL_nosk:")
        a("s_load_dwordx16 s[4:19], s[0:1], 0" + ("" if self.ksplit else "\ns_load_dwordx8 s[20:27], s[0:1], 64"))
        a("s_cmp_ge_u32 s2, 256\ns_cbranch_scc1 L_bail")
        if self.diag:
            for i in range(2, 8):
                a(f"s_mov_b32 s{ST0 + 2 * i}, 0")
        a(f"v_readfirstlane_b32 {sW}, v0\nv_and_b32 v1, 63, v0")
        a(f"s_and_b32 {sXCD}, s2, 7\ns_lshr_b32 {sJ}, s2, 3\ns_lshr_b32 {sH}, s2, 6\ns_lshl_b32 {sA}, {sXCD}, 2\ns_add_u32 {sH}, {sH}, {sA}")
        a(f"s_and_b32 {sJ}, {sJ}, 7\ns_lshr_b32 {sW}, {sW}, 6\ns_mov_b32 {sHI}, 0xffff0000")
        a(f"s_bitcmp0_b32 {sJ}, 1\ns_cselect_b32 {sNACT}, {self.nww}, {self.nwn}")
        self.sw = sW if not self.diag else "s97"
        if self.layout == "sc":
            a(f"s_cmp_eq_u32 {sW}, 0\ns_cbranch_scc1 L_comm")
            parts = (("s", self.stream_early), ("s", self.idle_early), ("c", self.comm_early), ("c", self.comm), ("s", self.stream))
        elif self.layout == "cs":
            a(f"s_cmp_lg_u32 {sW}, 0\ns_cbranch_scc1 L_stream")
            parts = (("c", self.comm_early), ("s", self.stream_early), ("s", self.idle_early), ("c", self.comm), ("s", self.stream))
        else:
            a(f"s_cmp_lg_u32 {sW}, 0\ns_cbranch_scc1 L_stream")
            parts = (("c", self.comm_early), ("c", self.comm), ("s", self.stream_early), ("s", self.stream), ("s", self.idle_early))
        for self.sec, part in parts + (("w", self.role_wo), ("f", self.role_ffn)):
            part()
        a("L_none:")
        self.end()
        if self.diag:
            a("L_exit:")
            a("s_mov_b64 exec, -1\ns_waitcnt vmcnt(0) lgkmcnt(0)")
            a(f"s_memrealtime s[{ST0 + 2}:{ST0 + 3}]\ns_waitcnt lgkmcnt(0)")
            a(f"s_mul_i32 {sA}, s2, 12\ns_add_u32 {sA}, {sA}, {sW}\ns_lshl_b32 {sA}, {sA}, 6\ns_add_u32 {sA}, {sA}, {WS_ST}")
            for i in range(16):
                src = {0: f"s{ST0}", 15: f"s{ST0 + 2}"}.get(i, f"s{self.slots[i]}" if i in self.slots else "0")
                a(f"v_mov_b32 v{4 + i}, {src}")
            a(f"v_mov_b32 v2, {sA}\ns_mov_b64 exec, 1")
            for i in range(4):
                a(f"global_store_dwordx4 v2, v[{4 + 4 * i}:{7 + 4 * i}], {sWS} offset:{16 * i}")
        a("L_bail:\ns_endpgm")
        a("L_codeend:")
        self.nops = a.fix_hazards()
        txt = HEADER
        txt += DOC
        txt += f"; @launch grid=(256,1,1) block=({64 * self.nwaves},1,1) lds={self.lds}\n"
        txt += f'.amdgcn_target "amdgcn-amd-amdhsa--gfx950"\n.text\n{".p2align 12" + chr(10) if self.al12 else ""}.globl {KN}\n.p2align 8\n.type {KN},@function\n'
        txt += a.text() + "\n"
        if self.prefetch:
            txt += ".fill 256, 4, 0xbf810000\n"
        txt += f""".section .rodata,"a"
.p2align 6
.amdhsa_kernel {KN}
  .amdhsa_next_free_vgpr {self.nvg}
  .amdhsa_next_free_sgpr 102
  .amdhsa_accum_offset {self.nvg}
  .amdhsa_group_segment_fixed_size 0
  .amdhsa_kernarg_size 96
  .amdhsa_user_sgpr_count 2
  .amdhsa_user_sgpr_kernarg_segment_ptr 1
  .amdhsa_system_sgpr_workgroup_id_x 1
.end_amdhsa_kernel
"""
        return txt

    def comm_early(self):
        a = self.a
        wnt = self.wnt
        G, BB = 2, 3
        XS, XO, W = 8, 16, 24
        a("L_comm:\ns_setprio 3")
        a(f"v_lshrrev_b32 v{G}, 4, v1\nv_bfe_u32 v{BB}, v1, 3, 1")
        a(f"v_and_b32 v5, 7, v1\nv_lshl_add_u32 v4, v{G}, 3, v5\nv_lshlrev_b32 v4, 5, v4\nv_lshl_add_u32 v4, v{BB}, 10, v4")
        a(f"s_lshl_b32 {sA}, {sJ}, 7\nv_lshl_add_u32 v5, v5, 2, {sA}\nv_lshl_add_u32 v5, v{G}, 5, v5\nv_lshl_add_u32 v5, v{BB}, 10, v5")
        a(f"s_lshl_b32 {sA}, {sJ}, 19\ns_lshl_b32 {sB}, {sH}, 8\ns_add_u32 {sA}, {sA}, {sB}\ns_movk_i32 {sB}, 0x2000")
        a(f"v_and_b32 v6, 15, v1\nv_lshl_add_u32 v6, v6, 4, {sA}\nv_lshl_add_u32 v6, v{G}, 17, v6")
        a("s_waitcnt lgkmcnt(0)")
        if self.ksplit:
            a("s_load_dwordx8 s[20:27], s[0:1], 64")
        self.stamp(1)
        a(f"global_load_dwordx4 {vr(XS, 4)}, v4, {sX}\nglobal_load_dwordx4 {vr(XS + 4, 4)}, v4, {sX} offset:16")
        a(f"global_load_dword {vr(XO)}, v5, {sX}")
        for t in range(16):
            a(f"global_load_dwordx4 {vr(W + 4 * t, 4)}, v6, {sWQ} {wnt}")
            if t < 15:
                a(f"v_add_u32 v6, {sB}, v6")
        if self.b0:
            a("s_barrier")
        if self.layout == "cs":
            a("s_branch L_comm2")

    def comm(self):
        a = self.a
        wnt = self.wnt
        XS, XO, W, F, SEL, ST, X, A, D, MK = 8, 16, 24, 88, 112, 120, 16, 88, 96, 100
        a(f"L_comm2:\n" + ("s_waitcnt lgkmcnt(0)\n" if self.ksplit else "") + f"s_load_dword {sT}, {sWS}, 0")
        a(f"v_mov_b32 v6, {L_CNT}\nv_mov_b32 v104, 0\nv_mov_b32 v105, 0\nv_mov_b32 v106, 0\nv_mov_b32 v107, 0")
        a("ds_write_b128 v6, v[104:107]\nds_write_b128 v6, v[104:107] offset:16\nds_write_b64 v6, v[104:105] offset:32")
        a("v_lshlrev_b32 v6, 4, v1")
        if self.fold:
            a("v_mov_b32 v108, 0x3f803f80\nv_mov_b32 v109, 0x3f803f80\nv_mov_b32 v110, 0x3f803f80\nv_mov_b32 v111, 0x3f803f80")
            a(f"ds_write_b128 v6, v[108:111] offset:{L_ONE}")
        for o in range(self.nww // 2, self.nh):
            a(f"ds_write_b128 v6, v[104:107] offset:{L_OP + 1024 * o}")
        a(f"v_min_u32 v6, 23, v1\nv_cmp_gt_u32 vcc, 12, v6\nv_lshlrev_b32 v6, 2, v6\nv_mov_b32 v105, 0xff800000\nv_cndmask_b32 v105, v104, v105, vcc\nds_write_b32 v6, v105 offset:{L_MAX}")
        self.selectors(SEL, 108, 4)
        a("s_waitcnt vmcnt(17)")
        self.unpack(F, XS, 8)
        self.stamp(2)
        S = 7
        a(f"v_pk_add_f32 v[104:105], {vr(F, 2)}, {vr(F + 2, 2)}\nv_pk_add_f32 v[106:107], {vr(F + 4, 2)}, {vr(F + 6, 2)}")
        for i in range(2):
            a(f"v_pk_add_f32 v[104:105], v[104:105], {vr(F + 8 + 4 * i, 2)}\nv_pk_add_f32 v[106:107], v[106:107], {vr(F + 10 + 4 * i, 2)}")
        a(f"v_pk_add_f32 v[104:105], v[104:105], v[106:107]\nv_add_f32 {vr(S)}, v104, v105")
        self.red8x("v_add_f32", [S], 104)
        a(f"v_mul_f32 {vr(S)}, 0x3b000000, {vr(S)}")
        for i in range(16):
            a(f"v_sub_f32 {vr(F + i)}, {vr(F + i)}, {vr(S)}")
        a(f"v_pk_mul_f32 v[104:105], {vr(F, 2)}, {vr(F, 2)}\nv_pk_mul_f32 v[106:107], {vr(F + 2, 2)}, {vr(F + 2, 2)}")
        for i in range(1, 4):
            a(f"v_pk_fma_f32 v[104:105], {vr(F + 4 * i, 2)}, {vr(F + 4 * i, 2)}, v[104:105]")
            a(f"v_pk_fma_f32 v[106:107], {vr(F + 4 * i + 2, 2)}, {vr(F + 4 * i + 2, 2)}, v[106:107]")
        a("v_pk_add_f32 v[104:105], v[104:105], v[106:107]\nv_add_f32 v108, v104, v105")
        self.red8x("v_add_f32", [108], 104)
        a("v_mul_f32 v108, 0x3b000000, v108")
        self.ln_finish(ST, S, 108)
        a("s_waitcnt vmcnt(16)")
        self.unpack(F, XO, 1)
        self.ln_apply2(F, ST, 8, 10)
        a("s_waitcnt lgkmcnt(0)")
        self.tag_consts()
        for u in range(8):
            a(f"v_mov_b32_dpp {vr(X + u)}, v8 row_newbcast:{u} row_mask:0xf bank_mask:0x3")
        for u in range(8):
            a(f"v_mov_b32_dpp {vr(X + u)}, v8 row_newbcast:{8 + u} row_mask:0xf bank_mask:0xc")
        a(f"v_mov_b32 v{MK}, 0xffffff00")

        def abuild(t):
            for m in range(4):
                a(f"v_perm_b32 {vr(A + 4 * (t & 1) + m)}, {vr(X + t // 2)}, {vr(X + t // 2)}, {vr(SEL + 2 * m + (t & 1))}")
        abuild(0)
        for t in range(16):
            if t < 15:
                abuild(t + 1)
            a(f"s_waitcnt vmcnt({15 - t})")
            a(f"v_mfma_f32_16x16x32_bf16 {vr(D, 4)}, {vr(A + 4 * (t & 1), 4)}, {vr(W + 4 * t, 4)}, {vr(D, 4) if t else 0}")
        a(f"s_lshl_b32 {sA}, {sH}, 13\ns_lshl_b32 {sB}, {sJ}, 9\ns_add_u32 {sA}, {sA}, {sB}\ns_add_u32 {sA}, {sA}, {WS_QP}")
        a(f"v_and_b32 v4, 15, v1\nv_lshl_add_u32 v4, v4, 5, {sA}\nv_bfe_u32 v5, v1, 4, 1\nv_lshl_add_u32 v4, v5, 4, v4")
        a("v_lshrrev_b32 v5, 5, v1\nv_lshl_add_u32 v4, v5, 12, v4")
        a(f"s_getreg_b32 {sC}, hwreg(HW_REG_XCC_ID, 0, 4)\ns_and_b32 {sD}, {sT}, 0xffffff00\ns_or_b32 {sC}, {sC}, {sD}")
        a(f"s_lshl_b32 {sA}, {sXCD}, 7\ns_add_u32 {sA}, {sA}, {WS_XT}")
        if self.qdel:
            assert self.diag
            a(f"s_cmp_lg_u32 {sJ}, 3\ns_cbranch_scc1 L_noqd\ns_memrealtime s[56:57]\ns_waitcnt lgkmcnt(0)")
            a(f"L_qd:\ns_memrealtime s[58:59]\ns_waitcnt lgkmcnt(0)\ns_sub_u32 s58, s58, s56\ns_cmp_lt_u32 s58, {self.qdel}\ns_cbranch_scc1 L_qd\nL_noqd:")
        for i in range(4):
            a(f"v_add_u32 {vr(D + i)}, 0x80, {vr(D + i)}")
        self.tag4(D, MK)
        a(f"global_store_dwordx4 v4, {vr(D, 4)}, {sWS} sc1")
        self.stamp(3)
        if self.probe in ("smax", "smin", "smed"):
            a(f"s_lshl_b32 {sB}, s2, 2\ns_add_u32 {sB}, {sB}, {WS_ST}\nv_mov_b32 v6, {sB}\nv_mov_b32 v7, s80\nglobal_store_dword v6, v7, {sWS} sc1")
        a(f"v_and_b32 v5, 31, v1\nv_lshl_add_u32 v5, v5, 2, {sA}")
        a(f"s_lshl_b32 {sA}, {sH}, 13\ns_lshr_b32 {sB}, {sJ}, 2\ns_lshl_b32 {sB}, {sB}, 12\ns_add_u32 {sA}, {sA}, {sB}\ns_add_u32 {sA}, {sA}, {WS_QP}")
        a(f"v_lshl_add_u32 v4, v1, 4, {sA}")
        a("s_barrier" if self.kwin else "s_barrier\ns_barrier")
        self.stamp(4)
        Gq, TT = 8, 24

        def loads():
            for n in range(4):
                a(f"global_load_dwordx4 {vr(Gq + 4 * n, 4)}, v4, {sWS} offset:{1024 * n} sc1")
            a(f"global_load_dword v32, v5, {sWS} sc1")

        def between():
            if self.tlb:
                a(f"v_and_b32 v35, 1, v1\nv_mul_u32_u24 v36, {512 * 2752 - 4}, v35\ns_lshl_b32 {sA}, {sXCD}, 19\nv_mul_u32_u24 v37, {(1 << 19) - 4}, v35\nv_add_u32 v37, {sA}, v37")
                a(f"v_lshlrev_b32 v35, 2, v35\ns_mov_b64 exec, 3")
                a(f"global_load_dword v38, v36, {sWG}\nglobal_load_dword v39, v36, {sWU}\nglobal_load_dword v40, v36, {sWD}")
                a(f"global_load_dword v41, v37, {sWO}\nglobal_load_dword v42, v35, {sOUT}\ns_mov_b64 exec, -1")
            if self.optouch:
                a(f"s_lshl_b32 {sA}, {sH}, 12\ns_lshl_b32 {sB}, {sJ}, 9\ns_add_u32 {sA}, {sA}, {sB}\ns_add_u32 {sA}, {sA}, {WS_OP}")
                a(f"v_and_b32 v33, 7, v1\nv_lshl_add_u32 v33, v33, 6, {sA}\nglobal_load_dword v34, v33, {sWS} sc1")
            a("s_barrier")

        def qcheck():
            self.chk(TT, [Gq + 4 * n for n in range(4)])
            if self.nb:
                a(f"s_cbranch_vccz L_qok\ns_cmp_eq_u32 {sW}, 0\ns_cbranch_scc1 L_cafter")
        self.poll(loads, qcheck, between=between)
        self.qpoll = self.cur_poll
        a("L_qok:")
        self.stamp(5)
        self.count(11)
        a(f"v_cmp_ne_u32 vcc, {sC}, v32")
        for i in range(16):
            a(f"v_and_b32 {vr(Gq + i)}, {vr(MK)}, {vr(Gq + i)}")
        a(f"s_cmp_eq_u64 vcc, 0\ns_cselect_b32 {sA}, {3 if self.local else 1}, 1")
        if self.diag and "loc" in self.stamps and not self.xts:
            a(f"s_or_b32 s{self.slot(13)}, {sA}, 4")
        if "mixloc" in self.exp:
            a(f"s_bitcmp1_b32 {sJ}, 0\ns_cselect_b32 {sA}, 1, {sA}")
        for i in range(4):
            a(f"v_add_f32 {vr(Gq + i)}, {vr(Gq + i)}, {vr(Gq + 4 + i)}\nv_add_f32 {vr(Gq + 8 + i)}, {vr(Gq + 8 + i)}, {vr(Gq + 12 + i)}")
        for i in range(4):
            a(f"v_add_f32 {vr(Gq + i)}, {vr(Gq + i)}, {vr(Gq + 8 + i)}")
        a(f"v_permlane32_swap_b32 {vr(Gq)}, {vr(Gq + 2)}\nv_permlane32_swap_b32 {vr(Gq + 1)}, {vr(Gq + 3)}")
        a(f"v_add_f32 {vr(Gq)}, {vr(Gq)}, {vr(Gq + 2)}\nv_add_f32 {vr(Gq + 1)}, {vr(Gq + 1)}, {vr(Gq + 3)}")
        a(f"v_cvt_pk_bf16_f32 {vr(Gq)}, {vr(Gq)}, {vr(Gq + 1)}")
        a("v_and_b32 v4, 31, v1\nv_lshlrev_b32 v4, 3, v4\nv_lshrrev_b32 v5, 5, v1\nv_lshl_add_u32 v4, v5, 2, v4")
        a(f"v_mov_b32 v6, {L_QF}\nv_mov_b32 v7, {sA}\ns_mov_b32 {sLOC}, {sA}")
        a(f"ds_write_b32 v4, {vr(Gq)} offset:{L_Q}\ns_mov_b64 exec, 1\nds_max_u32 v6, v7 offset:{L_LOC - L_QF}\nds_max_u32 v6, v7\ns_mov_b64 exec, -1")
        if self.nb:
            a(f"s_cmp_lg_u32 {sW}, 0\ns_cbranch_scc1 L_idle3")
        a("L_cafter:\ns_setprio 0")
        self.stamp(6)
        self.role("L_none" if self.idledma else "L_cwo", "L_chelp", "L_cffn", "L_cmon")

        def dma_loop(name, base, n0, n1, mstep, two=None, win=None):
            a(f"s_mov_b32 {sC}, {n0}\n{name}:")
            if win is not None:
                a(f"s_waitcnt vmcnt({win})")
            a(f"s_mov_b32 m0, {sD}\ns_add_u32 {sC}, {sC}, 1")
            a(f"global_load_lds_dwordx4 v4, {base} {wnt}")
            if two:
                a(f"s_add_u32 m0, {sD}, {L_U - L_G}\ns_add_u32 {sD}, {sD}, {mstep}")
                a(f"global_load_lds_dwordx4 v4, {two} {wnt}")
            else:
                a(f"s_add_u32 {sD}, {sD}, {mstep}")
            a(f"v_add_u32 v4, {sB}, v4\ns_cmp_lt_u32 {sC}, {n1}\ns_cbranch_scc1 {name}")

        a("L_cwo:")
        if "y" in self.prew:
            a(f"s_lshl_b32 {sA}, {sXCD}, 11\ns_lshl_b32 {sB}, {sF}, 7\ns_add_u32 {sA}, {sA}, {sB}\ns_add_u32 {sA}, {sA}, {WS_YP}\ns_not_b32 {sB}, {sT}")
            a(f"v_and_b32 v4, 7, v1\nv_lshl_add_u32 v4, v4, 4, {sA}\nv_bfe_u32 v5, v1, 3, 1\nv_lshl_add_u32 v4, v5, 14, v4")
            a(f"v_mov_b32 v44, {sB}\nv_mov_b32 v45, {sB}\nv_mov_b32 v46, {sB}\nv_mov_b32 v47, {sB}")
            a(f"s_mov_b64 exec, 0xffff\nglobal_store_dwordx4 v4, v[44:47], {sWS} sc1\ns_mov_b64 exec, -1")
        a(f"s_lshl_b32 {sA}, {sXCD}, 19\ns_lshl_b32 {sB}, {sF}, 6\ns_add_u32 {sB}, {sA}, {sB}")
        a(f"v_lshrrev_b32 v4, 2, v1\nv_lshlrev_b32 v4, 10, v4\nv_and_b32 v5, 3, v1\nv_lshl_add_u32 v4, v5, 4, v4\nv_add_u32 v8, {sB}, v4")
        if self.wopair:
            a(f"s_and_b32 {sD}, {sF}, 1\ns_lshl_b32 {sB}, {sD}, 18\nv_add_u32 v8, {sB}, v8\ns_lshl_b32 {sB}, {sD}, 19\ns_sub_u32 {sB}, 0x40000, {sB}\nv_add_u32 v24, {sB}, v8")
            a(f"s_mul_i32 {sD}, {sD}, {16 * GUP}\ns_sub_u32 {sC}, {L_W + 16 * GUP}, {sD}\ns_add_u32 {sD}, {sD}, {L_W}")
            for n in range(1, 16):
                a(f"v_add_u32 v{8 + n}, {n * 0x4000}, v8\nv_add_u32 v{24 + n}, {n * 0x4000}, v24")
        else:
            for n in range(1, 32):
                a(f"v_add_u32 v{8 + n}, {n * 0x4000}, v8")
        a(f"s_lshl_b32 {sB}, {sF}, 14\ns_add_u32 {sA}, {sA}, {sB}\ns_add_u32 {sA}, {sA}, 4096\nv_lshl_add_u32 v4, v1, 6, {sA}\nv_add_u32 v5, 0x2000, v4")
        self.lds_wait(L_VCNT, sNACT, 6, 7)
        self.stamp(12)
        if "nowo" in self.exp:
            pass
        elif self.wopair:
            for k in range(32):
                a(f"s_add_u32 m0, {sD if k < 16 else sC}, {(k & 15) * GUP}")
                a(f"s_waitcnt vmcnt({self.wwin})" if k >= self.wk0 else "s_nop 0")
                a(f"global_load_lds_dwordx4 v{8 + k}, {sWO} {self.wont}")
        elif self.clean:
            a(f"s_lshl_b32 {sA}, {sXCD}, 19\ns_lshl_b32 {sB}, {sF}, 14\ns_add_u32 {sA}, {sA}, {sB}\nv_lshl_add_u32 v4, v1, 7, {sA}\nv_add_u32 v5, 0x2000, v4")
            a(f"global_load_dword v40, v4, {sWO}\nglobal_load_dword v41, v5, {sWO}")
            for k, n in enumerate(list(range(16, 32)) + list(range(16))):
                if k == self.wpre:
                    self.lds_wait(L_PUB, 1, 6, 7, tight=True)
                a(f"s_mov_b32 m0, {L_W + n * GUP}\ns_nop 0\nglobal_load_lds_dwordx4 v{8 + n}, {sWO} {self.wont}")
        else:
            for i in range(4 if self.wotouch else 0):
                a(f"global_load_dword v{40 + i}, v{4 + i // 2}, {sWO} offset:{-4096 if i % 2 == 0 else 0}")
            for k, n in enumerate(list(range(16, 32)) + list(range(16))):
                a(f"s_mov_b32 m0, {L_W + n * GUP}")
                a(f"s_waitcnt vmcnt({self.wwin})" if k >= 8 and self.wotouch else "s_nop 0")
                a(f"global_load_lds_dwordx4 v{8 + n}, {sWO} {self.wont}")
        self.stamp(13)
        a(f"v_mov_b32 v6, {L_DMA}\nv_mov_b32 v7, 1\ns_waitcnt vmcnt(0)\nds_write_b32 v6, v7")
        self.stamp(14)
        if self.dflag:
            a(f"s_lshl_b32 {sA}, {sXCD}, 7\ns_lshl_b32 {sB}, {sF}, 2\ns_add_u32 {sA}, {sA}, {sB}\ns_add_u32 {sA}, {sA}, {WS_DT}")
            a(f"v_mov_b32 v6, {sA}\nv_mov_b32 v7, {sT}\ns_mov_b64 exec, 1\ns_cmp_eq_u32 {sLOC}, 3\ns_cbranch_scc1 L_cwl")
            a(f"global_store_dword v6, v7, {sWS} sc1")
            self.end()
            a(f"L_cwl:\nglobal_store_dword v6, v7, {sWS}")
        if self.nth and "noffn" not in self.exp:
            ni = (512 - self.hrow0) // 128
            self.gu_touch_addr(self.hrow0, 8 * ni, ni)
            a(f"s_lshl_b32 {sA}, {sXCD}, 9\ns_add_u32 {sA}, {sA}, {WS_ML}\nv_and_b32 v4, 31, v1\nv_lshl_add_u32 v4, v4, 4, {sA}")

            def enough():
                self.chk(44, [40])
                a(f"s_bcnt0_i32_b32 {sA}, vcc_lo\ns_cmp_lt_u32 {sA}, {self.nth}\ns_cselect_b64 vcc, -1, 0")
            self.poll(lambda: a(f"global_load_dwordx4 v[40:43], v4, {sWS} sc1"), enough)
            a(f"s_cmp_gt_u32 {sA}, {self.nlate}\ns_cbranch_scc1 L_none")
            for i in range(ni):
                a(f"global_load_dword v{56 + 2 * i}, v{8 + i}, {sWG}\nglobal_load_dword v{57 + 2 * i}, v{8 + i}, {sWU}")
        self.end()

        a("L_chelp:")
        if self.helper:
            self.helper_code()
        self.end()

        a("L_cffn:")
        if "f" in self.prew:
            a(f"s_lshl_b32 {sA}, {sF}, 7\ns_add_u32 {sA}, {sA}, {WS_FP}\ns_not_b32 {sB}, {sT}")
            a(f"v_lshrrev_b32 v4, 3, v1\nv_mul_u32_u24 v4, {FP_STRIDE}, v4\nv_and_b32 v5, 7, v1\nv_lshl_add_u32 v4, v5, 4, v4\nv_add_u32 v4, {sA}, v4")
            a(f"v_mov_b32 v44, {sB}\nv_mov_b32 v45, {sB}\nv_mov_b32 v46, {sB}\nv_mov_b32 v47, {sB}")
            for i in range(4):
                a(f"global_store_dwordx4 v4, v[44:47], {sWS} sc1\nv_add_u32 v4, {8 * FP_STRIDE}, v4")
        a("v_lshrrev_b32 v4, 2, v1\nv_mul_u32_u24 v4, 2752, v4\nv_and_b32 v5, 3, v1\nv_lshl_add_u32 v4, v5, 4, v4")
        a(f"s_lshl_b32 {sA}, {sF}, 6\nv_add_u32 v8, {sA}, v4")
        a(f"s_and_b32 {sD}, {sF}, {1 if self.frot else 0}\ns_mul_i32 {sB}, {sD}, {256 * 2752}\nv_add_u32 v8, {sB}, v8\ns_lshl_b32 {sB}, {sB}, 1\ns_sub_u32 {sB}, {256 * 2752}, {sB}\nv_add_u32 v24, {sB}, v8")
        a(f"s_mul_i32 {sD}, {sD}, {16 * GUP}\ns_sub_u32 {sC}, {L_G + 16 * GUP}, {sD}\ns_add_u32 {sD}, {sD}, {L_G}")
        for n in range(1, 16):
            a(f"v_add_u32 v{8 + n}, {n * 16 * 2752}, v8\nv_add_u32 v{24 + n}, {n * 16 * 2752}, v24")
        a(f"s_lshl_b32 {sA}, {sF}, 15\ns_add_u32 {sA}, {sA}, 4096\nv_lshl_add_u32 v40, v1, 4, {sA}")
        for n in range(1, 4):
            a(f"v_add_u32 v{40 + n}, {n * 8192}, v40")
        a(f"v_mov_b32 v4, {L_HINT}\ns_mov_b32 {sRD}, 0")
        self.lds_wait(*((L_PUB, 1) if self.fpub else (L_VCNT, sNACT)), 6, 7)
        self.stamp(7)
        for k in range(0 if "noffn" in self.exp else 96):
            if k % self.fchk == 0 and k:
                a(f"s_waitcnt lgkmcnt(0)\nv_readfirstlane_b32 {sA}, v5\ns_add_u32 {sA}, {sA}, 1\ns_lshr_b32 {sA}, {sA}, 4\ns_andn2_b32 {sA}, {sA}, {sRD}\ns_cbranch_scc0 L_cf{k}\ns_mov_b32 {sRD}, 1")
                if self.barx:
                    a("s_barrier")
                self.lds_wait(L_YISS, 8, 6, 7)
                a(f"L_cf{k}:")
            if k % self.fchk == 0:
                a("ds_read_b32 v5, v4")
            win = self.fwin0 if k < self.fk0 and not self.clean else self.fwin
            if self.fml and k == self.fmk:
                self.ml_wait(self.fml, 64)
            if self.clean and k == self.fpre:
                self.lds_wait(L_PUB, 1, 6, 7)
            if k < 64:
                a(f"s_add_u32 m0, {sD if k < 32 else sC}, {(L_U - L_G if k & 1 else 0) + ((k >> 1) & 15) * GUP}")
                a(f"s_waitcnt vmcnt({win})" if k > win else "s_nop 0")
                a(f"global_load_lds_dwordx4 v{8 + (k >> 1)}, {sWU if k & 1 else sWG} {self.fnt}")
            else:
                n = k - 64
                off = (n & 7) * 1024 - 4096
                a(f"s_mov_b32 m0, {L_D + n * ROWP - off}\ns_waitcnt vmcnt({win})")
                a(f"global_load_lds_dwordx4 v{40 + (n >> 3)}, {sWD} offset:{off} {wnt}")
        self.stamp(8)
        a(f"s_cmp_lg_u32 {sRD}, 0\ns_cbranch_scc1 L_cf3")
        a(f"v_mov_b32 v6, {L_DMA}\nv_mov_b32 v7, 1\ns_waitcnt vmcnt(0)\nds_write_b32 v6, v7")
        self.stamp(11)
        if self.barx:
            a("s_waitcnt lgkmcnt(0)\ns_barrier")
        a("L_cf3:")
        a(("" if self.fold else "s_barrier\n") + "s_waitcnt vmcnt(32)\ns_barrier\ns_waitcnt vmcnt(0)")
        self.stamp(9)
        a("s_barrier")
        self.end()

        a("; ---- wave 0 of the monitor workgroup: once the group's 32 attention partials are out, tell every FFN workgroup when this\n; late so that the read does not arrive before the write and leave copies in remote L2s that the writer must invalidate.")
        a("L_cmon:")
        if self.hclean:
            a(f"s_cmp_lt_u32 {sA}, 6\ns_cbranch_scc1 L_none\ns_mov_b32 {sF}, {sA}")
            a(f"s_lshl_b32 {sB}, {sXCD}, 19\ns_lshl_b32 {sC}, {sF}, 15\ns_add_u32 {sB}, {sB}, {sC}\ns_add_u32 {sB}, {sB}, {0x70000 - 6 * 32768}")
            a(f"v_lshl_add_u32 v4, v1, 7, {sB}\ns_movk_i32 {sD}, 0x2000")
            self.lds_wait(L_VCNT, sNACT, 6, 7)
            for i in range(4):
                a(f"global_load_dword v{48 + i}, v4, {sWO}\nv_add_u32 v4, {sD}, v4")
            a(f"s_mov_b32 {sA}, {sF}")
        if self.hint:
            if self.ytouch or not self.incr:
                a(f"s_cmp_eq_u32 {sA}, 6\ns_cbranch_scc1 L_ctouch")
            a(f"s_cmp_lg_u32 {sA}, 7\ns_cbranch_scc1 L_none")
            a(f"s_lshl_b32 {sA}, {sXCD}, 9\ns_add_u32 {sA}, {sA}, {WS_ML}\nv_and_b32 v4, 31, v1\nv_lshl_add_u32 v4, v4, 4, {sA}")
            a(f"s_lshl_b32 {sA}, {sXCD}, 2\ns_add_u32 {sA}, {sA}, {WS_HT}\nv_lshl_add_u32 v5, v1, 7, {sA}\nv_mov_b32 v6, {sT}")
            self.lds_wait(L_PUB, 1, 12, 13)
            if self.dflag:
                a(f"s_lshl_b32 {sA}, {sXCD}, 7\ns_add_u32 {sA}, {sA}, {WS_DT}\nv_and_b32 v7, 15, v1\nv_lshl_add_u32 v7, v7, 2, {sA}")

                def both():
                    self.chk(12, [8])
                    a(f"v_cmp_ne_u32 {sM0}, {sT}, v14\ns_or_b64 vcc, vcc, {sM0}")
                self.poll(lambda: a(f"global_load_dwordx4 v[8:11], v4, {sWS} sc1\nglobal_load_dword v14, v7, {sWS} sc1"), both)
            else:
                self.poll(lambda: a(f"global_load_dwordx4 v[8:11], v4, {sWS} sc1"), lambda: self.chk(12, [8]))
            for i in range(self.lag):
                a(f"global_load_dwordx4 v[8:11], v4, {sWS} sc1\ns_waitcnt vmcnt(0)")
            a(f"s_bfm_b64 exec, {56 if self.ytouch or not self.incr else (42 >> self.hsh) + 1}, 0\nglobal_store_dword v5, v6, {sWS} sc1")
            self.stamp(10)
            self.end()
        if self.hint and (self.ytouch or not self.incr):
            a("L_ctouch:")
            a(f"s_lshl_b32 {sA}, {sXCD}, 7\ns_add_u32 {sA}, {sA}, {WS_HT + 48 * 128}\nv_and_b32 v4, 7, v1\nv_lshl_add_u32 v4, v4, 2, {sA}")
            a(f"v_and_b32 v5, 31, v1\nv_lshlrev_b32 v5, 6, v5\nv_lshrrev_b32 v6, 5, v1\nv_lshl_add_u32 v5, v6, 14, v5\nv_add_u32 v5, {WS_YP}, v5")
            self.lds_wait(L_PUB, 1, 12, 13)
            a(f"s_mov_b32 {sC}, 0\ns_mov_b32 {sSPIN}, 0\nL_ct0:")
            a(f"global_load_dword v8, v4, {sWS} sc1\ns_add_u32 {sSPIN}, {sSPIN}, 1\ns_cmp_gt_u32 {sSPIN}, {SPIN}\ns_cbranch_scc1 L_bail")
            a(f"s_waitcnt vmcnt(0)\nv_cmp_eq_u32 vcc, {sT}, v8\ns_and_b32 {sA}, vcc_lo, 0xff\ns_andn2_b32 {sB}, {sA}, {sC}\ns_mov_b32 {sC}, {sA}")
            a(f"L_ct1:\ns_cmp_eq_u32 {sB}, 0\ns_cbranch_scc1 L_ct2")
            a(f"s_ff1_i32_b32 {sD}, {sB}\ns_bitset0_b32 {sB}, {sD}\ns_lshl_b32 {sD}, {sD}, 11\nv_add_u32 v6, {sD}, v5\nglobal_load_dword v9, v6, {sWS} sc1\ns_branch L_ct1")
            a(f"L_ct2:\ns_cmp_lg_u32 {sC}, 0xff\ns_cbranch_scc1 L_ct0")
        self.end()

    def ml_wait(self, nth, va):
        a = self.a
        a(f"s_lshl_b32 {sA}, {sXCD}, 9\ns_add_u32 {sA}, {sA}, {WS_ML}\nv_and_b32 v{va}, 31, v1\nv_lshl_add_u32 v{va}, v{va}, 4, {sA}")

        def enough():
            self.chk(va + 6, [va + 2])
            a(f"s_bcnt0_i32_b32 {sA}, vcc_lo\ns_cmp_lt_u32 {sA}, {nth}\ns_cselect_b64 vcc, -1, 0")
        self.poll(lambda: a(f"global_load_dwordx4 v[{va + 2}:{va + 5}], v{va}, {sWS} sc1"), enough)

    def gu_touch_addr(self, r0, rows, ni):
        a = self.a
        a(f"s_min_u32 {sB}, {sXCD}, 3\ns_mul_i32 {sC}, {sXCD}, 5\ns_add_u32 {sC}, {sC}, {sB}")
        a(f"s_mul_i32 {sB}, {sF}, {rows}\ns_add_u32 {sB}, {sB}, {r0}\ns_mul_i32 {sB}, {sB}, 2752\ns_lshl_b32 {sA}, {sC}, 6\ns_add_u32 {sB}, {sB}, {sA}")
        a("v_lshrrev_b32 v8, 3, v1\nv_mul_u32_u24 v8, 2752, v8\nv_and_b32 v5, 7, v1\nv_min_u32 v5, 5, v5\nv_lshl_add_u32 v8, v5, 6, v8")
        a(f"v_add_u32 v8, {sB}, v8")
        for i in range(1, ni):
            a(f"v_add_u32 v{8 + i}, {i * 8 * 2752}, v8\nv_min_u32 v{8 + i}, {512 * 2752 - 4}, v{8 + i}")

    def helper_code(self):
        a = self.a
        ni = self.hr // 64
        a(f"s_min_u32 {sB}, {sXCD}, 3\ns_mul_i32 {sC}, {sXCD}, 5\ns_add_u32 {sC}, {sC}, {sB}")
        a(f"s_and_b32 {sA}, {sF}, 3\ns_mul_i32 {sB}, {sA}, {16 * ni}\ns_lshr_b32 {sA}, {sF}, 2\ns_lshl_b32 {sA}, {sA}, 8\ns_add_u32 {sB}, {sB}, {sA}")
        a(f"s_add_u32 {sB}, {sB}, {256 - self.hr}\ns_mul_i32 {sB}, {sB}, 2752\ns_lshl_b32 {sA}, {sC}, 6\ns_add_u32 {sB}, {sB}, {sA}")
        a("v_lshrrev_b32 v8, 2, v1\nv_mul_u32_u24 v8, 2752, v8\nv_and_b32 v5, 3, v1\nv_lshlrev_b32 v5, 7, v5\nv_min_u32 v5, 380, v5\nv_add_u32 v8, v5, v8")
        a(f"v_add_u32 v8, {sB}, v8")
        for i in range(ni - 1, -1, -1):
            a(f"v_add_u32 v{8 + i}, {i * 16 * 2752}, v8\nv_min_u32 v{8 + i}, {512 * 2752 - 4}, v{8 + i}")
        a(f"s_lshl_b32 {sC}, {sC}, 15\ns_mul_i32 {sA}, {sF}, {6 * 32768 // 8}\ns_add_u32 {sC}, {sC}, {sA}\nv_lshl_add_u32 v20, v1, 7, {sC}")
        for i in range(2, -1, -1):
            a(f"v_add_u32 v{20 + i}, {i * 8192}, v20\nv_min_u32 v{20 + i}, {1376 * 1024 - 4}, v{20 + i}")
        a(f"s_lshl_b32 {sB}, {sXCD}, 19\ns_mul_i32 {sC}, {sF}, {24576 if self.hclean else 32768}\ns_add_u32 {sB}, {sB}, {sC}\ns_add_u32 {sB}, {sB}, 0x40000")
        a(f"v_lshl_add_u32 v4, v1, 7, {sB}\ns_movk_i32 {sD}, 0x2000")
        self.lds_wait(*((L_PUB, 1) if self.hpub else (L_VCNT, sNACT)), 6, 7)
        for i in range((3 if self.hclean else 4) if self.wotouch else 0):
            a(f"global_load_dword v{48 + i}, v4, {sWO}\nv_add_u32 v4, {sD}, v4")
        if self.hclean and self.hclean != "win":
            self.lds_wait(L_PUB, 1, 6, 7)
        if "noffn" in self.exp:
            return
        w = f"s_waitcnt vmcnt({self.hwin})\n"
        if self.hml:
            self.ml_wait(self.hml, 64)
            w = ""
        for i in range(3 if self.hdown else 0):
            a(f"{w}global_load_dword v{40 + i}, v{20 + i}, {sWD}")
        for i in range(ni):
            a(f"{w}global_load_dword v{56 + 2 * i}, v{8 + i}, {sWG}\n{w}global_load_dword v{57 + 2 * i}, v{8 + i}, {sWU}")
        for i in range(0 if self.hdown else 3):
            a(f"{w}global_load_dword v{40 + i}, v{20 + i}, {sWD}")

    def stream_early(self):
        a = self.a
        nt = self.nt
        K, V = 4, 36
        a('; ---- waves 1..8: issue the K and V loads of 32 keys each (contiguous 1 KiB per instruction). The barriers order the queue:\n; wq first, a few K loads until the q partial is out, the rest of K, the q gather, then V.')
        a(f"L_stream:\ns_cmp_gt_u32 {sW}, {sNACT}\ns_cbranch_scc1 L_idle")
        a(f"s_lshr_b32 {sA}, {sJ}, 2\ns_lshl_b32 {sA}, {sA}, 25\ns_lshl_b32 {sB}, {sH}, 20\ns_add_u32 {sA}, {sA}, {sB}")
        a(f"s_and_b32 {sB}, {sJ}, 1\ns_mul_i32 {sB}, {sB}, {sNACT}\ns_add_u32 {sB}, {sB}, {sW}\ns_bitcmp1_b32 {sJ}, 1\ns_cselect_b32 {sC}, {2 * self.nww}, 0")
        a(f"s_add_u32 {sB}, {sB}, {sC}\ns_lshl_b32 {sB}, {sB}, 13\ns_add_u32 {sA}, {sA}, {sB}")
        a(f"s_add_u32 {sA}, {sA}, {0xC0000 + 4096 - 8192}\nv_lshl_add_u32 v2, v1, 4, {sA}")
        a("s_waitcnt lgkmcnt(0)")
        if self.ksplit:
            a("s_load_dwordx8 s[20:27], s[0:1], 64")
        self.stamp(1)
        for t in range(8):
            if t == self.nkpre and self.b0:
                a("s_barrier")
            if t == self.nk0:
                if self.presetup:
                    a("s_branch L_setup\nL_setupr:")
                if not self.kwin:
                    a("s_barrier")
            if self.kwin and t >= self.kwin:
                a(f"s_waitcnt vmcnt({self.kwin - 1})")
            if t == self.nk1:
                a("s_barrier\ns_barrier")
            a(f"global_load_dwordx4 {vr(K + 4 * t, 4)}, v2, {sK} offset:{1024 * t - 4096} {nt}")
        self.stamp(2)
        vload = lambda t: a(f"global_load_dwordx4 {vr(V + 4 * t, 4)}, v2, {sV} offset:{1024 * t - 4096} {nt}")
        if self.nv1:
            a(f"s_bitcmp0_b32 {sJ}, 1\ns_cbranch_scc1 L_vw\ns_barrier\ns_barrier")
            for t in range(self.nv1):
                vload(t)
            a("s_branch L_vr\nL_vw:")
            for t in range(self.nv1):
                vload(t)
            a("s_barrier\ns_barrier\nL_vr:")
        elif self.nk1 == 8 and not self.nva:
            a("s_barrier\ns_barrier")
        for t in range(self.nv1, 8):
            vload(t)
            if t + 1 == self.nva:
                a("s_barrier\ns_barrier")
        if self.layout in ("sc", "cs"):
            a("s_branch L_stream2")

    def idle_early(self):
        a = self.a
        a("L_idle:")
        if self.ksplit:
            a("s_load_dwordx8 s[20:27], s[0:1], 64")
        if self.prefetch:
            a(f"s_cmp_lg_u32 {sW}, {self.nwaves - 1}\ns_cbranch_scc1 L_nopf")
            a(f"s_getpc_b64 {sP}\nL_pc:\ns_sub_u32 s52, s52, L_pc-{KN}\ns_subb_u32 s53, s53, 0")
            a(f"s_lshr_b32 {sA}, s2, 3\ns_min_u32 {sA}, {sA}, (L_codeend-{KN})/1024\ns_lshl_b32 {sA}, {sA}, 10")
            a(f"v_lshl_add_u32 v3, v1, 4, {sA}\nglobal_load_dwordx4 {vr(124, 4)}, v3, {sP}")
            a("L_nopf:")
        if self.b0:
            a("s_barrier")
        a(f"s_waitcnt lgkmcnt(0)\ns_load_dword {sT}, {sWS}, 0")
        if self.vtlb:
            a(f"s_lshr_b32 {sA}, {sJ}, 2\ns_lshl_b32 {sA}, {sA}, 25\ns_lshl_b32 {sB}, {sH}, 20\ns_add_u32 {sA}, {sA}, {sB}\ns_add_u32 {sA}, {sA}, 0xBFF00")
            a(f"v_mov_b32 v3, {sA}\ns_mov_b64 exec, 1\nglobal_load_dword v4, v3, {sV} nt\ns_mov_b64 exec, -1")
        a(f"s_getreg_b32 {sC}, hwreg(HW_REG_XCC_ID, 0, 4)\ns_lshl_b32 {sA}, {sXCD}, 7\ns_lshr_b32 {sB}, s2, 3\ns_lshl_b32 {sB}, {sB}, 2\ns_add_u32 {sA}, {sA}, {sB}")
        a(f"s_add_u32 {sA}, {sA}, {WS_XT}\nv_mov_b32 v2, {sA}\ns_waitcnt lgkmcnt(0)\ns_cmp_lg_u32 {sW}, {self.nwaves - 1}\ns_cbranch_scc1 L_noxt")
        a(f"s_add_u32 {sA}, {sT}, {TAGC}\ns_and_b32 {sA}, {sA}, 0xffffff00\ns_or_b32 {sA}, {sA}, {sC}\nv_mov_b32 v3, {sA}")
        a(f"s_mov_b64 exec, 1\nglobal_store_dword v2, v3, {sWS} sc1\ns_mov_b64 exec, -1\nL_noxt:")
        a(("s_barrier\n" if self.kwin else "s_barrier\ns_barrier\n") + "s_barrier\ns_branch L_idle1")

    def stream_setup(self):
        a = self.a
        P, T, SEL, MK, ADR = 72, 80, 88, 100, 101
        if self.ksplit:
            a("s_waitcnt lgkmcnt(0)")
        a(f"s_load_dword {sT}, {sWS}, 0")
        sw = self.sw
        a(f"s_sub_u32 {sw}, {sW}, 1")
        self.selectors(SEL, T, 4, bits=3)
        a("v_and_b32 v3, 15, v1\nv_lshlrev_b32 v3, 4, v3")
        a(f"s_mov_b32 {sK1}, 0x3db504f3\ns_mov_b32 {sK2}, 0x3fb8aa3b")
        a(f"v_bfe_u32 {vr(ADR)}, v1, 4, 1\nv_lshlrev_b32 {vr(ADR)}, 6, {vr(ADR)}\nv_lshl_add_u32 {vr(ADR)}, v3, 3, {vr(ADR)}")
        a(f"s_lshl_b32 {sA}, {sH}, 12\ns_lshr_b32 {sB}, {sJ}, 2\ns_lshl_b32 {sB}, {sB}, 11\ns_add_u32 {sA}, {sA}, {sB}")
        a(f"s_and_b32 {sB}, {sJ}, 3\ns_lshl_b32 {sB}, {sB}, 4\ns_add_u32 {sA}, {sA}, {sB}\ns_add_u32 {sA}, {sA}, {WS_OP}\nv_add_u32 {vr(ADR)}, {sA}, {vr(ADR)}")
        a(f"s_lshl_b32 {sA}, {sH}, 7\ns_lshl_b32 {sB}, {sJ}, 4\ns_add_u32 {sA}, {sA}, {sB}\ns_add_u32 {sA}, {sA}, {WS_ML}\nv_mov_b32 {vr(T)}, {sA}")
        a(f"v_cmp_lt_u32 {sM0}, 31, v1\nv_mov_b32 {vr(MK)}, 0xffffff00\nv_cndmask_b32 {vr(ADR)}, {vr(ADR)}, {vr(T)}, {sM0}")
        for t in range(8):
            a(f"v_mov_b32 {vr(P + t)}, 0")

    def stream(self):
        a = self.a
        K, V, Q, P, T, SEL, D = 4, 36, 68, 72, 80, 88, 96
        MK, ADR, MREG, FAC = 100, 101, 102, 104
        if self.presetup:
            a("L_setup:")
            self.stream_setup()
            a("s_branch L_setupr")
        a('; ---- waves 1..8: scores (bf16 roundings as in the reference), wave-local softmax, workgroup max and sum, PV, combine, publish.')
        a("L_stream2:")
        self.lds_inc(L_VCNT, T, T + 1)
        self.stamp(3)
        sw = self.sw
        if not self.presetup:
            self.stream_setup()
        qread = lambda: a(f"ds_read_b128 {vr(Q, 4)}, v3 offset:{L_Q}")
        self.lds_wait(L_QF, 1, T, T + 1, extra=qread if self.comb else None)
        self.stamp(4)
        if not self.comb:
            qread()
        a(f"s_mov_b32 {sLOC}, {sA}")
        self.tag_consts()
        a("s_waitcnt vmcnt(8) lgkmcnt(0)")
        for i in range(4):
            for t in range(8):
                a(f"v_dot2c_f32_bf16 {vr(P + t)}, {vr(K + 4 * t + i)}, {vr(Q + i)}")
        for u in range(4):
            a(f"v_add_f32_dpp {vr(P + u)}, {vr(P + u)}, {vr(P + u)} row_ror:8 row_mask:0xf bank_mask:0x3")
        for u in range(4):
            a(f"v_add_f32_dpp {vr(P + u)}, {vr(P + u + 4)}, {vr(P + u + 4)} row_ror:8 row_mask:0xf bank_mask:0xc")
        for u in range(2):
            a(f"v_add_f32_dpp {vr(P + u)}, {vr(P + u)}, {vr(P + u)} row_shl:4 row_mask:0xf bank_mask:0x5")
        for u in range(2):
            a(f"v_add_f32_dpp {vr(P + u)}, {vr(P + u + 2)}, {vr(P + u + 2)} row_shr:4 row_mask:0xf bank_mask:0xa")
        self.dppred("v_add_f32", [P, P + 1], ("quad_perm:[1,0,3,2]", "quad_perm:[2,3,0,1]"))
        self.bf16r(P, P)
        self.bf16r(P + 1, P + 1)
        a(f"v_mul_f32 {vr(P)}, {sK1}, {vr(P)}\nv_mul_f32 {vr(P + 1)}, {sK1}, {vr(P + 1)}")
        self.bf16r(P, P)
        self.bf16r(P + 1, P + 1)
        a(f"v_max_f32 {vr(MREG)}, {vr(P)}, {vr(P + 1)}")
        self.dppred("v_max_f32", [MREG], ("row_ror:4", "row_ror:8"))
        self.redrows("v_max_f32", [MREG], T + 1)
        a(f"v_mul_f32 {vr(T)}, {sK2}, {vr(MREG)}")
        a(f"v_fma_f32 {vr(P)}, {vr(P)}, {sK2}, -{vr(T)}\nv_fma_f32 {vr(P + 1)}, {vr(P + 1)}, {sK2}, -{vr(T)}")
        a(f"v_exp_f32 {vr(P)}, {vr(P)}\nv_exp_f32 {vr(P + 1)}, {vr(P + 1)}")
        a(f"v_cvt_pk_bf16_f32 {vr(T)}, {vr(P)}, {vr(P + 1)}\nv_add_f32 {vr(P)}, {vr(P)}, {vr(P + 1)}")
        for u in range(4):
            a(f"v_mov_b32_dpp {vr(Q + u)}, {vr(T)} row_newbcast:{4 * u} {FULL}")
        self.dppred("v_add_f32", [P], ("row_ror:4", "row_ror:8"))
        self.redrows("v_add_f32", [P], P + 1)
        a(f"s_lshl_b32 {sA}, {sw}, 2\nv_mov_b32 {vr(T + 7)}, {sA}\nds_write2_b32 {vr(T + 7)}, {vr(MREG)}, {vr(P)} offset0:{L_MAX // 4} offset1:{L_SUM // 4}")
        self.lds_inc(L_MCNT, T, T + 1)
        self.stamp(5)
        for t in range(8):
            for m in range(4):
                a(f"v_perm_b32 {vr(K + 4 * t + m)}, {vr(Q + t // 2)}, {vr(Q + t // 2)}, {vr(SEL + 2 * m + (t & 1))}")
        a(f"v_and_b32 {vr(T + 2)}, 15, v1\nv_cmp_gt_u32 vcc, 12, {vr(T + 2)}\nv_min_u32 {vr(T + 2)}, 11, {vr(T + 2)}\nv_lshlrev_b32 {vr(T + 2)}, 2, {vr(T + 2)}")
        a(f"s_lshl_b32 {sB}, {sw}, 9\nv_lshl_add_u32 v3, v1, 4, {sB}")
        a(f"v_and_b32 {vr(T + 3)}, 31, v1\nv_lshlrev_b32 {vr(T + 3)}, 4, {vr(T + 3)}\nv_lshrrev_b32 {vr(T + 4)}, 5, v1\nv_mul_u32_u24 {vr(T + 4)}, {512 * self.nh}, {vr(T + 4)}\nv_add_u32 {vr(T + 3)}, {vr(T + 4)}, {vr(T + 3)}")
        a(f"s_sub_u32 {sC}, {sNACT}, 1")
        mread = lambda: a(f"ds_read2_b32 {vr(P + 2, 2)}, {vr(T + 2)} offset0:{L_MAX // 4} offset1:{L_SUM // 4}")
        self.lds_wait(L_MCNT, sNACT, T, T + 1, extra=mread if self.comb else None)
        if not self.comb:
            mread()
        a(f"v_mov_b32 {vr(T)}, {L_CNT}\nv_mov_b32 {vr(T + 1)}, 1\ns_waitcnt lgkmcnt(0)")
        a(f"v_cndmask_b32 {vr(P + 3)}, 0, {vr(P + 3)}, vcc\nv_mov_b32 {vr(Q)}, {vr(P + 2)}")
        self.dppred("v_max_f32", [Q], [f"row_ror:{r}" for r in (1, 2, 4, 8)])
        a(f"v_sub_f32 {vr(FAC)}, {vr(MREG)}, {vr(Q)}\nv_sub_f32 {vr(P + 2)}, {vr(P + 2)}, {vr(Q)}")
        a(f"v_mul_f32 {vr(FAC)}, {sK2}, {vr(FAC)}\nv_mul_f32 {vr(P + 2)}, {sK2}, {vr(P + 2)}")
        a(f"v_exp_f32 {vr(FAC)}, {vr(FAC)}\nv_exp_f32 {vr(P + 2)}, {vr(P + 2)}\nv_mov_b32 {vr(MREG)}, {vr(Q)}")
        a(f"v_mul_f32 {vr(MREG + 1)}, {vr(P + 2)}, {vr(P + 3)}\nv_mov_b32 {vr(FAC + 1)}, {vr(FAC)}")
        self.dppred("v_add_f32", [MREG + 1], [f"row_ror:{r}" for r in (1, 2, 4, 8)])
        self.stamp(6)
        if self.prio:
            a("s_setprio 2")
        for t in range(8):
            a(f"s_waitcnt vmcnt({7 - t})")
            a(f"v_mfma_f32_16x16x32_bf16 {vr(D, 4)}, {vr(K + 4 * t, 4)}, {vr(V + 4 * t, 4)}, {vr(D, 4) if t else 0}")
        self.stamp(7)
        a("s_mov_b32 exec_hi, 0")
        a(f"v_pk_mul_f32 {vr(D, 2)}, {vr(D, 2)}, {vr(FAC, 2)}\nv_pk_mul_f32 {vr(D + 2, 2)}, {vr(D + 2, 2)}, {vr(FAC, 2)}")
        a(f"ds_write_b128 v3, {vr(D, 4)} offset:{L_OP}")
        a("s_mov_b32 exec_lo, 1")
        a(f"ds_add_rtn_u32 {vr(T + 5)}, {vr(T)}, {vr(T + 1)}")

        def preads():
            for n in range(self.nh):
                a(f"ds_read_b128 {vr(K + 4 * n, 4)}, {vr(T + 3)} offset:{L_OP + 512 * n}")
            a(f"ds_read_b32 {vr(T + 6)}, {vr(T)} offset:{L_LOC - L_CNT}")
        if self.spec:
            a("; the reads follow this wave's arrival count in LDS order, so the last arriver finds every partial in them")
            a("s_mov_b64 exec, -1")
            preads()
            a(f"s_waitcnt lgkmcnt(0)\nv_readlane_b32 {sA}, {vr(T + 5)}, 0\nv_readfirstlane_b32 {sLOC}, {vr(T + 6)}")
            a(f"s_cmp_lg_u32 {sA}, {sC}\ns_cbranch_scc1 L_role")
        else:
            a("s_waitcnt lgkmcnt(0)")
            a(f"v_readfirstlane_b32 {sA}, {vr(T + 5)}\ns_mov_b64 exec, -1")
            a(f"s_cmp_lg_u32 {sA}, {sC}\ns_cbranch_scc1 L_role")
            preads()
            a(f"s_waitcnt lgkmcnt(0)\nv_readfirstlane_b32 {sLOC}, {vr(T + 6)}")
        pk = lambda d, x: a(f"v_pk_add_f32 {vr(d, 2)}, {vr(d, 2)}, {vr(x, 2)}")
        for i in (0, 2):
            pk(K + i, K + 4 + i)
            pk(K + 8 + i, K + 12 + i)
        for i in (0, 2):
            if self.nh == 6:
                pk(K + 16 + i, K + 20 + i)
            pk(K + i, K + 8 + i)
        for i in (0, 2) if self.nh > 4 else ():
            pk(K + i, K + 16 + i)
        for i in range(4):
            a(f"v_permlane32_swap_b32 {vr(K + i)}, {vr(K + 4 + i)}")
        for i in (0, 2):
            pk(K + i, K + 4 + i)
        a(f"v_cndmask_b32 {vr(K)}, {vr(K)}, {vr(MREG)}, {sM0}\nv_cndmask_b32 {vr(K + 1)}, {vr(K + 1)}, {vr(MREG + 1)}, {sM0}")
        if self.xts:
            a(f"s_cmp_eq_u32 {sLOC}, 3")
            if self.diag and "loc" in self.stamps:
                a(f"s_or_b32 s{self.slot(13)}, {sLOC}, 4\ns_cmp_eq_u32 {sLOC}, 3")
        self.tag4(K, MK)
        a("s_mov_b32 exec_hi, 1\ns_cbranch_scc1 L_publoc")
        a(f"global_store_dwordx4 {vr(ADR)}, {vr(K, 4)}, {sWS} sc1\ns_branch L_pubdone")
        a(f"L_publoc:\nglobal_store_dwordx4 {vr(ADR)}, {vr(K, 4)}, {sWS}")
        a("L_pubdone:\ns_mov_b32 exec_hi, -1")
        a(f"ds_write_b32 {vr(T)}, {vr(T + 1)} offset:{L_PUB - L_CNT}")
        self.stamp(8)
        a(f"L_role:\n" + ("s_setprio 0\n" if self.prio else "") + f"s_cmp_gt_u32 {sw}, 8\ns_cbranch_scc1 L_none")
        self.role("L_wo", "L_none", "L_ffn", "L_none")
        a(f"L_idle1:\ns_mov_b32 {sK2}, 0x3fb8aa3b\nv_mov_b32 {vr(MK)}, 0xffffff00")
        self.tag_consts()
        if self.idledma:
            a(f"s_cmp_lg_u32 {sW}, {self.nwn}\ns_cbranch_scc1 L_idle2")
            self.role("L_cwo", "L_none", "L_none", "L_none")
            a("L_idle2:")
        if self.nb:
            a(f"s_cmp_lg_u32 {sW}, {self.nwaves - 1}\ns_cbranch_scc1 L_idle3")
            a(f"s_getreg_b32 {sC}, hwreg(HW_REG_XCC_ID, 0, 4)\ns_and_b32 {sA}, {sT}, 0xffffff00\ns_or_b32 {sC}, {sC}, {sA}")
            a(f"s_lshl_b32 {sA}, {sXCD}, 7\ns_add_u32 {sA}, {sA}, {WS_XT}\nv_and_b32 v5, 31, v1\nv_lshl_add_u32 v5, v5, 2, {sA}")
            a(f"s_lshl_b32 {sA}, {sH}, 13\ns_lshr_b32 {sB}, {sJ}, 2\ns_lshl_b32 {sB}, {sB}, 12\ns_add_u32 {sA}, {sA}, {sB}\ns_add_u32 {sA}, {sA}, {WS_QP}\nv_lshl_add_u32 v4, v1, 4, {sA}")
            self.lds_wait(L_VCNT, self.nb, T, T + 1)
            a(f"ds_read_b32 {vr(T + 1)}, {vr(T)} offset:{L_QF - L_VCNT}\ns_waitcnt lgkmcnt(0)\nv_readfirstlane_b32 {sA}, {vr(T + 1)}\ns_mov_b32 {sSPIN}, 0")
            a(f"s_cmp_eq_u32 {sA}, 0\ns_cbranch_scc1 {self.qpoll}\nL_idle3:")
        a(f"s_sub_u32 {sw}, {sW}, 1")
        if self.xts and self.local:
            a(f"s_cmp_lg_u32 {sw}, {self.nwaves - 2}\ns_cbranch_scc1 L_xt2")
            if "mixloc" in self.exp:
                a(f"s_bitcmp1_b32 {sJ}, 0\ns_cbranch_scc1 L_xt2")
            self.lds_wait(L_QF, 1, T, T + 1)
            a(f"s_cmp_eq_u32 {sA}, 3\ns_cbranch_scc1 L_xt2")
            a(f"s_getreg_b32 {sC}, hwreg(HW_REG_XCC_ID, 0, 4)\ns_and_b32 {sA}, {sT}, 0xffffff00\ns_or_b32 {sC}, {sC}, {sA}")
            a(f"s_lshl_b32 {sA}, {sXCD}, 7\ns_add_u32 {sA}, {sA}, {WS_XT}\nv_and_b32 v2, 31, v1\nv_lshl_add_u32 v2, v2, 2, {sA}")
            a(f"v_mov_b32 {vr(T)}, {L_PUB}\ns_mov_b32 {sSPIN}, 0\nL_xt0:\nglobal_load_dword v3, v2, {sWS} sc1")
            a(f"s_add_u32 {sSPIN}, {sSPIN}, 1\ns_cmp_gt_u32 {sSPIN}, {SPIN}\ns_cbranch_scc1 L_bail\ns_waitcnt vmcnt(0)")
            a(f"v_cmp_ne_u32 vcc, {sC}, v3\ns_cbranch_vccz L_xt1\nds_read_b32 {vr(T + 1)}, {vr(T)}\ns_waitcnt lgkmcnt(0)")
            a(f"v_readfirstlane_b32 {sA}, {vr(T + 1)}\ns_cmp_lg_u32 {sA}, 0\ns_cbranch_scc1 L_xt2\ns_branch L_xt0")
            a(f"L_xt1:\nv_mov_b32 {vr(T + 1)}, 3\nds_write_b32 {vr(T)}, {vr(T + 1)} offset:{L_LOC - L_PUB}\nL_xt2:")
        self.lds_wait(L_PUB, 1, T, T + 1)
        a("s_branch L_role")

    def role_wo(self):
        a = self.a
        sw = self.sw
        MK = 100
        B, D, O, ML, X, T, AO, AM, AW, AR, AY = 4, 20, 36, 44, 48, 52, 60, 61, 62, 63, 64
        a('; ---- output projection: combine the four key splits of one head half per wave, multiply by the staged wo block, publish y.')
        a(f"L_wo:\ns_cmp_eq_u32 {sw}, 8\ns_cbranch_scc1 L_none")
        a(f"v_lshrrev_b32 v2, 4, v1\nv_bfe_u32 {vr(T)}, v1, 3, 1\nv_and_b32 {vr(T + 1)}, 3, v1\nv_bfe_u32 {vr(T + 2)}, v1, 4, 1\nv_lshrrev_b32 {vr(T + 3)}, 5, v1")
        a(f"s_lshl_b32 {sA}, {sw}, 2\nv_add_u32 v3, {sA}, {vr(T + 2)}\nv_mul_u32_u24 v3, {GUP}, v3\nv_lshl_add_u32 v3, {vr(T + 3)}, 9, v3")
        a(f"v_bfe_u32 {vr(T + 4)}, v1, 2, 2\nv_lshl_add_u32 v3, {vr(T + 4)}, 6, v3\nv_lshl_add_u32 v3, {vr(T + 1)}, 3, v3")
        a(f"s_lshl_b32 {sA}, {sXCD}, 2\ns_lshr_b32 {sB}, {sw}, 1\ns_add_u32 {sA}, {sA}, {sB}")
        a(f"s_lshl_b32 {sB}, {sA}, 7\ns_add_u32 {sB}, {sB}, {WS_ML}\nv_lshl_add_u32 {vr(AM)}, {vr(T)}, 2, {vr(T + 1)}\nv_lshl_add_u32 {vr(AM)}, {vr(AM)}, 4, {sB}")
        a(f"s_lshl_b32 {sA}, {sA}, 12\ns_and_b32 {sB}, {sw}, 1\ns_lshl_b32 {sB}, {sB}, 10\ns_add_u32 {sA}, {sA}, {sB}\ns_add_u32 {sA}, {sA}, {WS_OP}")
        a(f"v_bfe_u32 {vr(AO)}, v1, 2, 1\nv_lshl_add_u32 {vr(AO)}, {vr(AO)}, 1, {vr(T + 2)}\nv_lshl_add_u32 {vr(AO)}, {vr(AO)}, 1, {vr(T + 3)}\nv_lshlrev_b32 {vr(AO)}, 7, {vr(AO)}")
        a(f"v_lshl_add_u32 {vr(AO)}, {vr(T)}, 11, {vr(AO)}\nv_lshl_add_u32 {vr(AO)}, {vr(T + 1)}, 4, {vr(AO)}\nv_add_u32 {vr(AO)}, {sA}, {vr(AO)}")
        a(f"v_and_b32 {vr(AR)}, 15, v1\nv_lshlrev_b32 {vr(AW)}, 2, {vr(AR)}\nv_lshl_add_u32 {vr(AW)}, {vr(T + 3)}, 7, {vr(AW)}\nv_lshl_add_u32 {vr(AW)}, {vr(T + 2)}, 8, {vr(AW)}")
        a(f"s_lshl_b32 {sA}, {sw}, 9\ns_add_u32 {sA}, {sA}, {L_RED}\nv_add_u32 {vr(AW)}, {sA}, {vr(AW)}")
        a(f"v_lshlrev_b32 {vr(AR)}, 4, {vr(AR)}\nv_lshl_add_u32 {vr(AR)}, v2, 10, {vr(AR)}")
        a(f"s_lshl_b32 {sA}, {sXCD}, 11\ns_lshl_b32 {sB}, {sF}, 7\ns_add_u32 {sA}, {sA}, {sB}\ns_add_u32 {sA}, {sA}, {WS_YP}")
        a(f"v_and_b32 {vr(AY)}, 7, v1\nv_lshl_add_u32 {vr(AY)}, {vr(AY)}, 4, {sA}\nv_lshl_add_u32 {vr(AY)}, {vr(T)}, 14, {vr(AY)}")
        a(f"v_cmp_eq_u32 {sM1}, 1, {vr(T + 2)}\nv_mov_b32 {vr(AY + 1)}, {L_WCNT}\nv_mov_b32 {vr(AY + 2)}, 1")

        def mlload():
            a(f"global_load_dwordx4 {vr(ML, 4)}, {vr(AM)}, {sWS} sc1")

        def weights():
            a(f"v_and_b32 {vr(ML)}, {vr(MK)}, {vr(ML)}\nv_and_b32 {vr(ML + 1)}, {vr(MK)}, {vr(ML + 1)}")
            a(f"v_max_f32_dpp {vr(ML + 2)}, {vr(ML)}, {vr(ML)} quad_perm:[1,0,3,2] {FULL}")
            a(f"v_max_f32_dpp {vr(ML + 2)}, {vr(ML + 2)}, {vr(ML + 2)} quad_perm:[2,3,0,1] {FULL}")
            a(f"v_sub_f32 {vr(ML)}, {vr(ML)}, {vr(ML + 2)}\nv_mul_f32 {vr(ML)}, {sK2}, {vr(ML)}\nv_exp_f32 {vr(ML)}, {vr(ML)}")
            a(f"v_mul_f32 {vr(ML + 1)}, {vr(ML + 1)}, {vr(ML)}")
            self.dppred("v_add_f32", [ML + 1], ("quad_perm:[1,0,3,2]", "quad_perm:[2,3,0,1]"))
            a(f"v_rcp_f32 {vr(ML + 1)}, {vr(ML + 1)}\nv_mul_f32 {vr(ML)}, {vr(ML)}, {vr(ML + 1)}")

        def wreads():
            for t in range(2):
                for ct in range(2):
                    for hh in range(2):
                        a(f"ds_read_b64_tr_b16 {vr(B + 8 * t + 4 * ct + 2 * hh, 2)}, v3 offset:{L_W + t * 2 * GUP + hh * 256 + ct * 32}")

        def frags():
            self.lds_wait(L_DMA, 1, T + 6, T + 7, tight=True, extra=wreads if self.comb else None)
            a(f"s_mov_b32 {sSPIN}, 0")
            self.stamp(9)
            if not self.comb:
                wreads()

        def oloads():
            a(f"global_load_dwordx4 {vr(O, 4)}, {vr(AO)}, {sWS} sc1\nglobal_load_dwordx4 {vr(O + 4, 4)}, {vr(AO)}, {sWS} offset:64 sc1")
        if self.tog > 8:
            self.poll(mlload, lambda: self.chk(T, [ML]))
            if self.prio:
                a("s_setprio 2")
            self.stamp(10)
            self.poll(oloads, lambda: self.chk(T, [O, O + 4]), between=lambda: (weights(), frags()))
        else:
            def trreads():
                for t in range(2):
                    for ct in range(2):
                        for hh in range(2):
                            a(f"ds_read_b64_tr_b16 {vr(B + 8 * t + 4 * ct + 2 * hh, 2)}, v3 offset:{L_W + t * 2 * GUP + hh * 256 + ct * 32}")

            def look(tag):
                a(f"ds_read_b32 {vr(T + 7)}, {vr(T + 6)}\ns_waitcnt lgkmcnt(0)\nv_readfirstlane_b32 {sA}, {vr(T + 7)}\ns_andn2_b32 {sA}, {sA}, {sRD}\ns_cbranch_scc0 L_wl{tag}\ns_mov_b32 {sRD}, 1")
                trreads()
                a(f"L_wl{tag}:")
            a(f"v_mov_b32 {vr(T + 6)}, {L_DMA}\ns_mov_b32 {sRD}, 0")

            def few():
                self.chk(T, [ML])
                a(f"s_and_b32 {sA}, vcc_lo, 0x0f0f\ns_bcnt1_i32_b32 {sA}, {sA}\ns_cmp_gt_u32 {sA}, {8 - self.tog}\ns_cselect_b64 vcc, -1, 0")
            self.poll(lambda: (mlload(), look("a")), few)
            if self.prio:
                a("s_setprio 2")
            self.stamp(10)
            self.poll(lambda: (mlload(), oloads(), look("b")), lambda: self.chk(T, [ML, O, O + 4]))
            a(f"s_cmp_lg_u32 {sRD}, 0\ns_cbranch_scc1 L_wrd")
            frags()
            a("L_wrd:")
            weights()
        self.stamp(11)
        self.count(1)
        for i in range(8):
            a(f"v_and_b32 {vr(O + i)}, {vr(MK)}, {vr(O + i)}")
        for i in range(0, 8, 2):
            a(f"v_pk_mul_f32 {vr(O + i, 2)}, {vr(O + i, 2)}, {vr(ML, 2)} op_sel_hi:[1,0]")
        self.dppred("v_add_f32", range(O, O + 8), ("quad_perm:[1,0,3,2]", "quad_perm:[2,3,0,1]"))
        for u in range(4):
            a(f"v_cvt_pk_bf16_f32 {vr(X + u)}, {vr(O + 2 * u)}, {vr(O + 2 * u + 1)}")
        a("s_waitcnt lgkmcnt(0)")
        for ct in range(2):
            for t in range(2):
                a(f"v_mfma_f32_16x16x32_bf16 {vr(D + 8 * ct + 4 * t, 4)}, {vr(X, 4)}, {vr(B + 8 * t + 4 * ct, 4)}, 0")
        for ct in range(2):
            a(f"v_cndmask_b32 {vr(O + ct)}, {vr(D + 8 * ct)}, {vr(D + 8 * ct + 4)}, {sM1}")
        a(f"ds_write2_b32 {vr(AW)}, {vr(O)}, {vr(O + 1)} offset0:0 offset1:16")
        if self.spec:
            a(f"s_mov_b64 exec, 1\nds_add_rtn_u32 {vr(O + 2)}, {vr(AY + 1)}, {vr(AY + 2)}\ns_mov_b64 exec, -1")
        else:
            a(f"s_waitcnt lgkmcnt(0)\ns_barrier\ns_cmp_lg_u32 {sw}, 0\ns_cbranch_scc1 L_none")
        for n in range(4):
            a(f"ds_read_b128 {vr(B + 4 * n, 4)}, {vr(AR)} offset:{L_RED + 256 * n}")
        a("s_waitcnt lgkmcnt(0)")
        if self.spec:
            a(f"v_readlane_b32 {sA}, {vr(O + 2)}, 0\ns_cmp_lg_u32 {sA}, 7\ns_cbranch_scc1 L_none")
        for i in (0, 2):
            a(f"v_pk_add_f32 {vr(B + i, 2)}, {vr(B + i, 2)}, {vr(B + 4 + i, 2)}\nv_pk_add_f32 {vr(B + 8 + i, 2)}, {vr(B + 8 + i, 2)}, {vr(B + 12 + i, 2)}")
        for i in (0, 2):
            a(f"v_pk_add_f32 {vr(B + i, 2)}, {vr(B + i, 2)}, {vr(B + 8 + i, 2)}")
        for swp in ("v_permlane32_swap_b32", "v_permlane16_swap_b32"):
            for i in range(4):
                a(f"{swp} {vr(B + i)}, {vr(B + 4 + i)}")
            for i in (0, 2):
                a(f"v_pk_add_f32 {vr(B + i, 2)}, {vr(B + i, 2)}, {vr(B + 4 + i, 2)}")
        self.tag4(B, MK)
        a("s_mov_b64 exec, 0xffff")
        a(f"global_store_dwordx4 {vr(AY)}, {vr(B, 4)}, {sWS} sc1")
        self.stamp(12)
        self.end()

    def role_ffn(self):
        a = self.a
        sw = self.sw
        BG, BD, F, D, ST, XF = 4, 68, 84, 116, 120, 126
        MK, AY, XR, ADR, AH, AHN, AS, ASW, AA, AAW, AAR, AF, FM, AO, HV = 128, 130, 132, 134, 135, 136, 137, 138, 139, 140, 141, 142, 144, 145, 146
        HNS = 1088
        a('; ---- FFN workgroup. Wave 9 watches the group announcements through the scalar path and releases the y gather.')
        a(f"L_ffn:\ns_cmp_lg_u32 {sw}, 8\ns_cbranch_scc1 L_ffn1")
        a(f"v_mov_b32 v2, {L_HINT}\ns_mov_b32 {sC}, 0")
        if self.hint:
            a(f"s_lshr_b32 {sA}, {sF}, {self.hsh}\ns_lshl_b32 {sA}, {sA}, 7\ns_add_u32 {sA}, {sA}, {WS_HT}\ns_add_u32 s52, s26, {sA}\ns_addc_u32 s53, s27, 0\ns_mov_b32 s98, {sT}\ns_mov_b32 s99, {sT}")
            if self.hdepth:
                a(f"s_not_b32 {sB}, {sT}")
                for i in range(8):
                    a(f"s_mov_b32 s{56 + i}, {sB}")

            def hcheck():
                a(f"s_mov_b32 {sA}, 0")
                for i in range(4):
                    a(f"s_cmp_eq_u64 s[{56 + 2 * i}:{57 + 2 * i}], {sTT}\ns_cselect_b32 {sB}, {1 << i}, 0\ns_or_b32 {sA}, {sA}, {sB}")
                if self.incr:
                    a(f"s_cmp_eq_u32 {sA}, {sC}\ns_cbranch_scc1 L_fh0\nv_mov_b32 v3, {sA}\ns_mov_b32 {sC}, {sA}\nds_write_b32 v2, v3\nL_fh0:")
                if self.hslow:
                    a(f"s_bcnt1_i32_b32 {sB}, {sA}\ns_cmp_ge_u32 {sB}, 2\ns_cbranch_scc1 L_fh1\ns_sleep {self.hslow}\nL_fh1:")
                a(f"s_cmp_lg_u32 {sA}, 15")
            self.spoll(lambda: a((f"s_sleep {self.hsleep}\n" if self.hsleep else "") + f"s_load_dwordx8 s[56:63], {sP}, 0 glc"), hcheck, keep=self.hdepth)
        if not (self.hint and self.incr):
            a("v_mov_b32 v3, 15\nds_write_b32 v2, v3")
        self.stamp(2)
        if self.barx:
            a("s_barrier")
        self.end()
        a('; waves 1..8: gather y, h = x + attn, LayerNorm statistics, gate/up, GELU, down, publish; groups 0..31 then reduce 32 outputs each.')
        a("L_ffn1:")
        g, b3, q4, r2, hi, b4 = F, F + 1, F + 2, F + 3, F + 4, F + 5
        a(f"v_mov_b32 {vr(MK)}, 0xffffff00")
        a(f"v_lshrrev_b32 {vr(g)}, 4, v1\nv_bfe_u32 {vr(b3)}, v1, 3, 1\nv_and_b32 {vr(q4)}, 3, v1\nv_bfe_u32 {vr(r2)}, v1, 2, 2\nv_lshrrev_b32 {vr(hi)}, 5, v1\nv_bfe_u32 {vr(b4)}, v1, 4, 1")
        a(f"s_lshl_b32 {sA}, {sw}, 4\nv_and_b32 v3, 15, v1\nv_add_u32 v3, {sA}, v3")
        a(f"v_lshlrev_b32 {vr(AHN)}, 3, v3\nv_lshl_add_u32 {vr(AHN)}, {vr(b4)}, 2, {vr(AHN)}\nv_lshl_add_u32 {vr(AH)}, {vr(hi)}, 10, {vr(AHN)}")
        a(f"global_load_dword {vr(XR)}, {vr(AH)}, {sX}")
        a(f"v_mul_u32_u24 v2, {HNS}, {vr(hi)}\nv_add_u32 {vr(AHN)}, v2, {vr(AHN)}")
        a(f"v_lshlrev_b32 {vr(AY)}, 4, v3\nv_lshl_add_u32 {vr(AY)}, {vr(hi)}, 14, {vr(AY)}\nv_lshl_add_u32 {vr(AY)}, {vr(b4)}, 11, {vr(AY)}\nv_bfe_u32 v3, v1, 2, 1")
        a(f"v_add_u32 {vr(AY + 1)}, {WS_YP + 12288}, {vr(AY)}\nv_add_u32 {vr(AY)}, {WS_YP + 4096}, {vr(AY)}")
        a(f"s_lshl_b32 {sA}, {sw}, 3\nv_lshlrev_b32 {vr(AS)}, 6, {vr(hi)}\nv_add_u32 {vr(ASW)}, {sA}, {vr(AS)}")
        a(f"v_and_b32 {vr(AA)}, 1, v1\nv_mul_u32_u24 {vr(AA)}, {HNS}, {vr(AA)}\nv_lshl_add_u32 {vr(AA)}, {vr(b4)}, 5, {vr(AA)}\nv_lshl_add_u32 {vr(AA)}, {vr(hi)}, 4, {vr(AA)}")
        if self.fold:
            a(f"v_and_b32 v2, 2, v1\nv_cmp_ne_u32 vcc, 0, v2\nv_lshlrev_b32 v2, 5, {vr(b4)}\nv_lshl_add_u32 v2, {vr(hi)}, 4, v2")
            a(f"v_add_u32 {vr(AA)}, {L_HN}, {vr(AA)}\nv_add_u32 v2, {L_ONE}, v2\nv_cndmask_b32 {vr(AA)}, {vr(AA)}, v2, vcc\nv_lshlrev_b32 {vr(AS)}, 6, {vr(b4)}")
        a(f"v_lshlrev_b32 {vr(AAR)}, 6, v3\nv_lshl_add_u32 {vr(AAR)}, {vr(g)}, 4, {vr(AAR)}")
        a(f"v_and_b32 {vr(AAW)}, 7, v1\nv_lshlrev_b32 {vr(AAW)}, 1, {vr(AAW)}\nv_lshl_add_u32 {vr(AAW)}, {vr(b4)}, 6, {vr(AAW)}\ns_lshl_b32 {sA}, {sw}, 4\nv_add_u32 {vr(AAW)}, {sA}, {vr(AAW)}")
        a(f"s_lshl_b32 {sB}, {sw}, 1\nv_add_u32 {vr(ADR)}, {sB}, {vr(hi)}\nv_lshl_add_u32 {vr(ADR)}, {vr(ADR)}, 1, v3\nv_mul_u32_u24 {vr(ADR)}, {FP_STRIDE}, {vr(ADR)}")
        a(f"s_lshl_b32 {sB}, {sF}, 7\ns_add_u32 {sB}, {sB}, {WS_FP}\nv_lshl_add_u32 {vr(ADR)}, {vr(q4)}, 4, {vr(ADR)}\nv_lshl_add_u32 {vr(ADR)}, {vr(b4)}, 6, {vr(ADR)}\nv_add_u32 {vr(ADR)}, {sB}, {vr(ADR)}")
        a(f"v_bfe_u32 v2, v1, 1, 1\nv_mul_u32_u24 v2, {L_U - L_G}, v2\nv_mul_u32_u24 v3, {GUP}, {vr(b4)}\nv_add_u32 v2, v2, v3")
        a(f"v_lshl_add_u32 v2, {vr(hi)}, 9, v2\nv_lshl_add_u32 v2, {vr(r2)}, 6, v2\nv_and_b32 v3, 1, v1\nv_lshl_add_u32 v2, v3, 3, v2")
        a(f"s_and_b32 {sA}, {sw}, 3\ns_lshl_b32 {sA}, {sA}, 4\nv_add_u32 v2, {sA}, v2")
        a(f"v_lshl_add_u32 v3, {vr(g)}, 3, {vr(r2)}\nv_mul_u32_u24 v3, {ROWP}, v3\nv_lshl_add_u32 v3, {vr(q4)}, 5, v3\ns_lshl_b32 {sB}, {sw}, 7\ns_add_u32 {sB}, {sB}, {L_D}\nv_add_u32 v3, {sB}, v3")
        a(f"s_mul_i32 {sB}, {sF}, {FP_STRIDE}\ns_lshl_b32 {sC}, {sw}, 6\ns_add_u32 {sB}, {sB}, {sC}\ns_add_u32 {sB}, {sB}, {WS_FP}")
        a(f"v_lshrrev_b32 {vr(AF)}, 2, v1\nv_lshlrev_b32 {vr(AF)}, 7, {vr(AF)}\nv_lshl_add_u32 {vr(AF)}, {vr(q4)}, 4, {vr(AF)}\nv_add_u32 {vr(AF)}, {sB}, {vr(AF)}")
        a(f"v_cmp_gt_u32 vcc, 44, v1\nv_add_u32 {vr(AF + 1)}, 4096, {vr(AF)}\nv_cndmask_b32 {vr(AF + 1)}, {vr(AF)}, {vr(AF + 1)}, vcc\nv_cndmask_b32 {vr(FM)}, 0, {vr(MK)}, vcc")
        a(f"s_and_b32 {sB}, {sF}, 1\ns_lshl_b32 {sB}, {sB}, 9\ns_lshr_b32 {sC}, {sF}, 1\ns_lshl_b32 {sC}, {sC}, 5\ns_add_u32 {sB}, {sB}, {sC}\ns_lshl_b32 {sC}, {sw}, 4\ns_add_u32 {sB}, {sB}, {sC}")
        a(f"v_lshl_add_u32 {vr(AO)}, {vr(b4)}, 1, {vr(hi)}\nv_lshl_add_u32 {vr(AO)}, {vr(q4)}, 2, {vr(AO)}\nv_add_u32 {vr(AO)}, {sB}, {vr(AO)}\nv_lshlrev_b32 {vr(AO)}, 1, {vr(AO)}")
        a(f"s_and_b32 {sB}, {sF}, 1\ns_mul_i32 {sB}, {sB}, {HNS - 1024}\nv_add_u32 {vr(AH)}, {sB}, {vr(AO)}" if self.fold else "")
        a(f"v_cmp_eq_u32 {sM1}, 1, {vr(b4)}")
        a(f"s_mov_b32 {sK1}, 0x3d372713\ns_mov_b32 {sK3}, 0xc0135761")

        def load1(n):
            a(f"global_load_dwordx4 {vr(F + 4 * n, 4)}, {vr(AY + n // 2)}, {sWS} offset:{-4096 if n % 2 == 0 else 0} sc1")

        def loads():
            for n in range(4):
                load1(n)

        def mask1(n):
            for i in range(4):
                a(f"v_and_b32 {vr(F + 4 * n + i)}, {vr(MK)}, {vr(F + 4 * n + i)}")

        def bdreads():
            for n in range(4):
                for hh in range(2):
                    a(f"ds_read_b64_tr_b16 {vr(BD + 4 * n + 2 * hh, 2)}, v3 offset:{hh * 4 * ROWP + n * 8}")

        def bgreads():
            for t in range(16):
                for hh in range(2):
                    a(f"ds_read_b64_tr_b16 {vr(BG + 4 * t + 2 * hh, 2)}, v2 offset:{L_G + t * 2 * GUP + hh * 256}")

        def frags(tag):
            a(f"s_mov_b32 {sRD}, 1")
            bdreads()
            a(f"s_cmp_gt_u32 {sw}, 3\ns_cbranch_scc1 L_ffr{tag}")
            bgreads()
            a(f"L_ffr{tag}:")
        a(f"v_mov_b32 {vr(F + 16)}, {L_DMA}\ns_mov_b32 {sRD}, 0\ns_mov_b32 {sSPIN}, 0\ns_waitcnt vmcnt(0)")
        self.unpack(XF, XR, 1)
        a(f"s_mov_b32 {sC}, 0\nL_fw:\nds_read2_b32 {vr(F + 18, 2)}, {vr(F + 16)} offset0:0 offset1:1")
        a(f"s_add_u32 {sSPIN}, {sSPIN}, 1\ns_cmp_gt_u32 {sSPIN}, {SPIN * 8}\ns_cbranch_scc1 L_bail\ns_waitcnt lgkmcnt(0)")
        a(f"v_readfirstlane_b32 {sB}, {vr(F + 19)}\nv_readfirstlane_b32 {sA}, {vr(F + 18)}\ns_andn2_b32 {sD}, {sB}, {sC}\ns_cbranch_scc0 L_fw1")
        for n in range(4):
            a(f"s_bitcmp0_b32 {sD}, {n}\ns_cbranch_scc1 L_fl{n}")
            load1(n)
            a(f"L_fl{n}:")
        if self.barx:
            a(f"s_mov_b32 {sC}, {sB}\ns_bcnt1_i32_b32 {sD}, {sB}\ns_cmp_ge_u32 {sD}, {self.xth}\ns_cbranch_scc1 L_fgo\nL_fw1:")
        else:
            a(f"s_mov_b32 {sC}, {sB}\ns_cmp_eq_u32 {sB}, 15\ns_cbranch_scc1 L_fgo\nL_fw1:")
        a(f"s_andn2_b32 {sA}, {sA}, {sRD}\ns_cbranch_scc0 L_fw0")
        frags("a")
        a("L_fw0:\n" + ("" if self.tight else "s_sleep 1\n") + "s_branch L_fw\nL_fgo:")
        if self.barx:
            a(f"s_andn2_b32 {sA}, {sA}, {sRD}\ns_cbranch_scc0 L_fx")
            frags("c")
            a("L_fx:")
            if self.early:
                a("s_waitcnt vmcnt(0)")
                for n in range(4):
                    a(f"s_bitcmp0_b32 {sC}, {n}\ns_cbranch_scc1 L_fe{n}")
                    self.chk(F + 22, [F + 4 * n])
                    mask1(n)
                    a(f"s_cbranch_vccz L_fe{n}\ns_bitset0_b32 {sC}, {n}\nL_fe{n}:")
            a("s_barrier")
            for n in range(4):
                a(f"s_bitcmp1_b32 {sC}, {n}\ns_cbranch_scc1 L_fm{n}")
                load1(n)
                a(f"L_fm{n}:")
        self.stamp(9)

        def shadow():
            if self.barx:
                a(f"ds_read_b32 {vr(F + 18)}, {vr(F + 16)}")
            self.lds_inc(L_YISS, F + 20, F + 21)
            if self.barx:
                a(f"s_waitcnt lgkmcnt(0)\nv_readfirstlane_b32 {sA}, {vr(F + 18)}")
            a(f"s_mov_b32 {sSPIN}, 0\ns_andn2_b32 {sA}, {sA}, {sRD}\ns_cbranch_scc0 L_fnog")
            frags("b")
            a("L_fnog:")
        if self.early and self.barx:
            shadow()
            a(f"s_mov_b64 {sM0}, 0\ns_waitcnt vmcnt(0)")
            for n in range(4):
                a(f"s_bitcmp1_b32 {sC}, {n}\ns_cbranch_scc1 L_fn{n}")
                self.chk(F + 22, [F + 4 * n])
                mask1(n)
                a(f"s_or_b64 {sM0}, {sM0}, vcc\nL_fn{n}:")
            a(f"s_cmp_eq_u64 {sM0}, 0\ns_cbranch_scc1 L_fok")
            self.poll(loads, lambda: self.chk(F + 16, [F + 4 * n for n in range(4)]))
            for n in range(4):
                mask1(n)
            a("L_fok:")
        else:
            self.poll(loads, lambda: self.chk(F + 16, [F + 4 * n for n in range(4)]), between=shadow, first=False)
            for n in range(4):
                mask1(n)
        self.stamp(10)
        self.count(1)
        for i in (0, 2):
            a(f"v_pk_add_f32 {vr(F + i, 2)}, {vr(F + i, 2)}, {vr(F + 4 + i, 2)}\nv_pk_add_f32 {vr(F + 8 + i, 2)}, {vr(F + 8 + i, 2)}, {vr(F + 12 + i, 2)}")
        for i in (0, 2):
            a(f"v_pk_add_f32 {vr(F + i, 2)}, {vr(F + i, 2)}, {vr(F + 8 + i, 2)}")
        a(f"v_permlane16_swap_b32 {vr(F)}, {vr(F + 2)}\nv_permlane16_swap_b32 {vr(F + 1)}, {vr(F + 3)}")
        a(f"v_pk_add_f32 {vr(F, 2)}, {vr(F, 2)}, {vr(F + 2, 2)}")
        self.bf16r(F, F)
        self.bf16r(F + 1, F + 1)
        a(f"v_pk_add_f32 {vr(F + 2, 2)}, {vr(F, 2)}, {vr(XF, 2)}")
        self.bf16r(F, F + 2)
        self.bf16r(F + 1, F + 3)
        S = F + 6
        a(f"v_add_f32 {vr(S)}, {vr(F)}, {vr(F + 1)}\nv_mul_f32 {vr(S + 1)}, {vr(F)}, {vr(F)}\nv_fmac_f32 {vr(S + 1)}, {vr(F + 1)}, {vr(F + 1)}")
        a(f"v_cvt_pk_bf16_f32 {vr(F + 4)}, {vr(F + 2)}, {vr(F + 3)}")
        self.dppred("v_add_f32", [S, S + 1], [f"row_ror:{r}" for r in (1, 2, 4, 8)])
        a(f"ds_write_b32 {vr(AHN)}, {vr(F + 4)} offset:{L_HN}" if self.fold else f"ds_write_b32 {vr(AH)}, {vr(F + 4)} offset:{L_H}")
        for r in (S, S + 1):
            a(f"v_add_f32_dpp {vr(r)}, {vr(r)}, {vr(r)} row_bcast:15 row_mask:0xa bank_mask:0xf")
        a(f"s_mov_b32 exec_lo, 0x10000\ns_mov_b32 exec_hi, 0x10000\nds_write_b64 {vr(ASW)}, {vr(S, 2)} offset:{L_STAT}")
        a("s_mov_b64 exec, -1\ns_waitcnt lgkmcnt(0)\ns_barrier")
        self.stamp(11)

        def stats(R):
            sub = Gen.__new__(Gen)
            out = []
            sub.a = lambda t: out.extend(t.split("\n"))
            for n in range(4):
                sub.a(f"v_pk_add_f32 {vr(R + 4 * n, 2)}, {vr(R + 4 * n, 2)}, {vr(R + 2 + 4 * n, 2)}")
            sub.a(f"v_pk_add_f32 {vr(R, 2)}, {vr(R, 2)}, {vr(R + 4, 2)}\nv_pk_add_f32 {vr(R + 8, 2)}, {vr(R + 8, 2)}, {vr(R + 12, 2)}")
            sub.a(f"v_pk_add_f32 {vr(R, 2)}, {vr(R, 2)}, {vr(R + 8, 2)}")
            sub.a(f"v_mul_f32 {vr(R)}, 0x3b000000, {vr(R)}\nv_mul_f32 {vr(R + 1)}, 0x3b000000, {vr(R + 1)}")
            sub.a(f"v_fma_f32 {vr(R + 1)}, -{vr(R)}, {vr(R)}, {vr(R + 1)}\nv_max_f32 {vr(R + 1)}, 0, {vr(R + 1)}")
            sub.ln_finish(ST, R, R + 1)
            return out
        if not self.fold:
            for n in range(4):
                a(f"ds_read_b128 {vr(F + 8 + 4 * n, 4)}, {vr(AS)} offset:{L_STAT + 16 * n}")
            a(f"ds_read_u16 {vr(HV)}, {vr(AO)} offset:{L_H}")
            a("s_waitcnt lgkmcnt(0)")
            for x in stats(F + 8):
                a(x)
            self.ln_apply2(F, ST, XF, F + 4)
            a(f"ds_write_b32 {vr(AHN)}, {vr(XF)} offset:{L_HN}\ns_waitcnt lgkmcnt(0)\ns_barrier")

        def announce(tag):
            a(f"s_cmp_lg_u32 {sw}, 4\ns_cbranch_scc1 L_fan{tag}")
            a(f"s_lshl_b32 {sA}, {sF}, 2\ns_add_u32 {sA}, {sA}, {WS_FT}\nv_add_u32 {vr(BG)}, {sF}, v1\nv_and_b32 {vr(BG)}, {self.nrep - 1}, {vr(BG)}\nv_lshl_add_u32 {vr(BG)}, {vr(BG)}, 8, {sA}\nv_mov_b32 {vr(BG + 1)}, {sT}")
            for i in range(self.clag):
                a(f"ds_read_b32 {vr(BG + 2)}, {vr(AS)}\ns_waitcnt lgkmcnt(0)")
            a(f"s_bfm_b64 exec, {self.nrep}, 0\nglobal_store_dword {vr(BG)}, {vr(BG + 1)}, {sWS} sc1\ns_mov_b64 exec, -1\nL_fan{tag}:")
        a(f"s_cmp_lt_u32 {sw}, 4\ns_cbranch_scc1 L_fgu")
        if self.bump == "early":
            a(f"s_lshl_b32 {sA}, {sF}, 3\ns_add_u32 {sA}, {sA}, {sw}\ns_cmp_lg_u32 {sA}, 7\ns_cbranch_scc1 L_fnb")
            a(f"v_mov_b32 {vr(BG)}, 0\nv_mov_b32 {vr(BG + 1)}, {sT}\ns_mov_b64 exec, 1\nglobal_store_dword {vr(BG)}, {vr(BG + 1)}, {sWS} sc1\ns_mov_b64 exec, -1\nL_fnb:")
        if self.cpt == "hn":
            announce("a")
        a(f"s_branch L_fact\nL_fgu:\ns_cmp_lg_u32 {sRD}, 0\ns_cbranch_scc1 L_fgu2")
        bgreads()
        a("s_waitcnt lgkmcnt(0)\nL_fgu2:")
        hoff = 0 if self.fold else L_HN
        fill = []
        pre = 4 if self.fold and self.micro else 0
        for t in range(pre):
            a(f"ds_read_b128 {vr(F + 4 * t, 4)}, {vr(AA)} offset:{hoff + 64 * t}")
        if self.fold:
            SR = 144 + 4
            for n in range(3):
                a(f"ds_read_b128 {vr(SR + 4 * n, 4)}, {vr(AS)} offset:{L_STAT + 16 * n}")
            a(f"ds_read_b128 {vr(ST + 4, 4)}, {vr(AS)} offset:{L_STAT + 48}")
            fill = [x.replace(vr(SR + 12, 2), vr(ST + 4, 2)).replace(vr(SR + 14, 2), vr(ST + 6, 2)) for x in stats(SR)]
        for t in range(pre, 8):
            a(f"ds_read_b128 {vr(F + 4 * t, 4)}, {vr(AA)} offset:{hoff + 64 * t}")
        for t in range(16):
            a(f"s_waitcnt lgkmcnt({11 if t < pre else min(7, 15 - t)})")
            a(f"v_mfma_f32_16x16x32_bf16 {vr(D, 4)}, {vr(F + 4 * (t % 8), 4)}, {vr(BG + 4 * t, 4)}, {vr(D, 4) if t else 0}")
            if t < 8:
                a(f"ds_read_b128 {vr(F + 4 * t, 4)}, {vr(AA)} offset:{hoff + 64 * (t + 8)}")
            nf = (0 if t < pre else 2) if pre else (1 if t < 8 else 2)
            for x in fill[:nf]:
                a(x)
            fill = fill[nf:]
        assert not fill
        G = BG
        a(f"v_cndmask_b32 {vr(G)}, {vr(D)}, {vr(D + 1)}, {sM1}")
        if self.fold:
            a(f"v_fma_f32 {vr(G)}, -{vr(ST)}, {vr(D + 2)}, {vr(G)}\nv_mul_f32 {vr(G)}, {vr(G)}, {vr(ST + 4)}")
        self.bf16r(G, G)
        a(f"v_mul_f32 {vr(G + 2)}, {vr(G)}, {vr(G)}\nv_mul_f32 {vr(G + 3)}, {sK3}, {vr(G)}")
        a(f"v_mov_b32_dpp {vr(G + 1)}, {vr(G)} row_ror:8 {FULL}")
        a(f"v_fma_f32 {vr(G + 2)}, {vr(G + 2)}, {sK1}, 1.0")
        a(f"v_mul_f32 {vr(G + 2)}, {vr(G + 2)}, {vr(G + 3)}\nv_exp_f32 {vr(G + 2)}, {vr(G + 2)}\nv_add_f32 {vr(G + 2)}, 1.0, {vr(G + 2)}")
        a(f"v_rcp_f32 {vr(G + 2)}, {vr(G + 2)}\nv_mul_f32 {vr(G)}, {vr(G)}, {vr(G + 2)}")
        self.bf16r(G, G)
        a(f"v_mul_f32 {vr(G)}, {vr(G)}, {vr(G + 1)}\nv_cvt_pk_bf16_f32 {vr(G)}, {vr(G)}, {vr(G)}")
        a(f"s_mov_b64 exec, 0x00ff00ff\nds_write_b16 {vr(AAW)}, {vr(G)} offset:{L_ACT}\ns_mov_b64 exec, -1")
        a("L_fact:")
        if self.fold:
            a(f"ds_read_u16 {vr(HV)}, {vr(AH)} offset:{L_HN}")
        for i in range(16):
            a(f"v_mov_b32 {vr(F + i)}, 0")
        a("s_waitcnt lgkmcnt(0)\ns_barrier")
        self.stamp(12)
        if self.cpt == "act":
            announce("b")
        a(f"s_cmp_lg_u32 {sRD}, 0\ns_cbranch_scc1 L_fdn")
        bdreads()
        a("L_fdn:")
        for n in range(4):
            a(f"s_mov_b32 exec_lo, {0x11111111 << n:#x}\ns_mov_b32 exec_hi, {0x11111111 << n:#x}")
            a(f"ds_read_b128 {vr(F + 4 * n, 4)}, {vr(AAR)} offset:{L_ACT}")
        a(f"s_mov_b64 exec, -1\nv_lshlrev_b32 {vr(HV)}, 16, {vr(HV)}")
        a("s_waitcnt lgkmcnt(0)")
        for n in range(4):
            a(f"v_mfma_f32_16x16x32_bf16 {vr(D, 4)}, {vr(BD + 4 * n, 4)}, {vr(F + 4 * n, 4)}, {vr(D, 4) if n else 0}")
        a("s_mov_b32 exec_lo, 0x00ff00ff\ns_mov_b32 exec_hi, 0x00ff00ff")
        self.tag4(D, MK)
        a(f"global_store_dwordx4 {vr(ADR)}, {vr(D, 4)}, {sWS} sc1")
        self.stamp(13)
        a(f"s_mov_b64 exec, -1\ns_cmp_ge_u32 {sF}, 32\ns_cbranch_scc1 L_none\ns_cmp_ge_u32 {sw}, 2\ns_cbranch_scc1 L_none")
        if self.cpt in ("hn", "act"):
            a(f"s_and_b32 {sA}, {sF}, {self.nrep - 1}\ns_lshl_b32 {sA}, {sA}, 8\ns_add_u32 {sA}, {sA}, {WS_FT}\ns_add_u32 s52, s26, {sA}\ns_addc_u32 s53, s27, 0\ns_mov_b32 s98, {sT}\ns_mov_b32 s99, {sT}")

            def fcheck():
                pairs = list(range(4, 20, 2)) + list(range(64, 80, 2)) + list(range(56, 64, 2)) + [44]
                a(f"s_xor_b32 s46, s46, {sT}")
                for p in pairs:
                    a(f"s_xor_b64 s[{p}:{p + 1}], s[{p}:{p + 1}], {sTT}")
                a("s_or_b32 s4, s4, s46")
                for p in pairs[1:]:
                    a(f"s_or_b64 s[4:5], s[4:5], s[{p}:{p + 1}]")
            self.spoll(lambda: a(f"s_load_dwordx16 s[4:19], {sP}, 0 glc\ns_load_dwordx16 s[64:79], {sP}, 64 glc\ns_load_dwordx8 s[56:63], {sP}, 128 glc\ns_load_dwordx4 s[44:47], {sP}, 160 glc"), fcheck)
        elif self.csleep:
            a(f"s_sleep {self.csleep}")
        elif self.ackwait:
            a("s_waitcnt vmcnt(0)")

        def floads():
            a(f"global_load_dwordx4 {vr(F, 4)}, {vr(AF)}, {sWS} sc1\nglobal_load_dwordx4 {vr(F + 4, 4)}, {vr(AF)}, {sWS} offset:2048 sc1")
            a(f"global_load_dwordx4 {vr(F + 8, 4)}, {vr(AF + 1)}, {sWS} sc1")
        self.poll(floads, lambda: self.chk(F + 12, [F, F + 4, F + 8]))
        self.count(2)
        for i in range(8):
            a(f"v_and_b32 {vr(F + i)}, {vr(MK)}, {vr(F + i)}")
        for i in range(4):
            a(f"v_and_b32 {vr(F + 8 + i)}, {vr(FM)}, {vr(F + 8 + i)}")
        for k in (4, 8):
            for i in (0, 2):
                a(f"v_pk_add_f32 {vr(F + i, 2)}, {vr(F + i, 2)}, {vr(F + k + i, 2)}")
        self.tr_reduce4(F, (4, 8))
        self.bf16r(F, F)
        a("s_mov_b32 exec_lo, 0x000f000f\ns_mov_b32 exec_hi, 0x000f000f")
        a(f"v_add_f32 {vr(F)}, {vr(F)}, {vr(HV)}\nv_cvt_pk_bf16_f32 {vr(F)}, {vr(F)}, {vr(F)}")
        a(f"global_store_short {vr(AO)}, {vr(F)}, {sOUT} {self.outf}")
        self.stamp(14)
        if self.bump != "early" or self.pad:
            a(f"s_or_b32 {sA}, {sF}, {sw}\ns_cmp_lg_u32 {sA}, 0\ns_cbranch_scc1 L_none")
        if self.bump != "early":
            a(f"v_mov_b32 v2, 0\nv_mov_b32 v3, {sT}\ns_mov_b64 exec, 1\nglobal_store_dword v2, v3, {sWS} sc1")
        if self.pad:
            a(f"s_mov_b32 s88, {self.pad}")
            if self.probe in ("smax", "smin", "smed"):
                op = "v_max_i32" if self.probe == "smax" else ("v_min_i32" if self.probe == "smin" else "v_add_u32")
                a(f"s_mov_b64 exec, -1\nv_lshlrev_b32 v2, 4, v1\nv_add_u32 v2, {WS_ST}, v2\nglobal_load_dwordx4 v[4:7], v2, {sWS} sc1\ns_waitcnt vmcnt(0)")
                for i in range(4):
                    a(f"v_subrev_u32 v{4 + i}, s80, v{4 + i}")
                a(f"{op} v4, v4, v5\n{op} v6, v6, v7\n{op} v4, v4, v6")
                self.dppred(op, [4], [f"row_ror:{r}" for r in (1, 2, 4, 8)])
                self.redrows(op, [4], 5)
                if self.probe == "smed":
                    a("v_ashrrev_i32 v4, 8, v4")
                a("v_readfirstlane_b32 s84, v4\ns_add_u32 s84, s84, 300\ns_add_u32 s84, s84, s80")
            if self.probe is not None:
                a("s_waitcnt lgkmcnt(0)\ns_sub_u32 s84, s84, s80\ns_lshl_b32 s84, s84, 2\ns_min_u32 s84, s84, 20000\ns_add_u32 s88, s88, s84")
            a("L_pad:\ns_memrealtime s[86:87]\ns_waitcnt lgkmcnt(0)\ns_sub_u32 s86, s86, s80\ns_cmp_lt_u32 s86, s88\ns_cbranch_scc1 L_pad")
        self.end()


if __name__ == "__main__":
    out = sys.argv[1]
    kw = {}
    for x in sys.argv[2:]:
        k, v = x.split("=")
        kw[k] = {"True": True, "False": False}.get(v, v)
    g = Gen(**kw)
    open(out, "w").write(g.build())
    print("written", out, "nops", g.nops)
```

```python
import sys
from asmlib import Asm

KN = "sequential_preLN__sliding_block_cached__geglu_ffn__decode_kernel"
HEADER = open("sequential_preLN__sliding_block_cached__geglu_ffn__decode.s.ref").read().split("; Override launch")[0]

WS_FT, WS_HT, WS_XT, WS_QP, WS_OP, WS_ML, WS_YP, WS_FP, WS_ST = 0x4A000, 0x48000, 0x400, 0x1000, 0x50000, 0x70000, 0x80000, 0x110000, 0x200000
WS_DT, WS_WT = 0x800, 0x4C000
FP_STRIDE = 6144
TAGC = 0x9E3779B9
L_Q, L_MAX, L_SUM, L_CNT, L_VCNT, L_MCNT, L_QF, L_PUB, L_DMA, L_HINT, L_YISS = 0, 256, 304, 352, 356, 360, 364, 368, 372, 376, 380
L_OP, L_RED, L_STAT, L_ACT, L_H, L_HN, L_W = 512, 6656, 10752, 11008, 11264, 13312, 15616
ROWP = 1040
GUP = 1056
L_G = L_W
L_U = L_G + 32 * GUP + 16
L_D = L_U + 32 * GUP + 240
LDS_BYTES = L_D + 32 * ROWP
L_LOC, L_WCNT = 384, 388
L_ONE = L_H + 128
SPIN = 1 << 19

DOC = """; One persistent launch: 256 workgroups (one per CU) x 10 waves. Workgroup id -> group x = id & 7, head 4x + (id >> 6),
; stores are sc1 except those read only inside the group, which are plain when all 32 workgroups of the group have reported
"""

sX, sK, sV, sWQ, sWO, sWG, sWU, sWD, sOUT, sWS = "s[4:5]", "s[6:7]", "s[8:9]", "s[10:11]", "s[12:13]", "s[16:17]", "s[18:19]", "s[20:21]", "s[22:23]", "s[26:27]"
sXCD, sH, sJ, sW, sT = "s28", "s29", "s30", "s31", "s32"
sT1, sT2, sT3 = "s33", "s34", "s35"
sSELA, sSELB, sHI = "s36", "s37", "s38"
sSPIN = "s39"
sA, sB, sC, sD = "s40", "s41", "s42", "s43"
sM0, sM1 = "s[44:45]", "s[46:47]"
sF = "s48"
sK1, sK2, sK3 = "s49", "s50", "s51"
sP = "s[52:53]"
sLOC, sNACT, sRD = "s54", "s55", "s96"
sTT = "s[98:99]"
ST0 = 80
FULL = "row_mask:0xf bank_mask:0xf"


def vr(a, n=1):
    return f"v{a}" if n == 1 else f"v[{a}:{a + n - 1}]"


class Gen:
    def __init__(self, diag=False, nt="nt", wnt="nt", prefetch=True, pad=0, lds=None, nvg=160, probe=None, stamps=None,
                 nk0=4, helper=True, hrow0=128, local=True, ackwait=True, nk1=8, optouch=True, window=True, exp="", wwin=15, hint=True, lag=0, fwin=32, downearly=True, b0=True, tight=True, nww=8, wotouch=True, nv1=0, hwin=3, idledma=True, hpub=False, fpub=False, nth=0, nlate=12, hgu=0, hall=True, tlb=False, cpt="ack", hmode="s", hsleep=0, fchk=8, fwin0=11, fk0=24, incr=True, bump="early", outf="nt", nkpre=0, clag=0, nrep=32, wopair=False, frot=True, wk0=16, hr=128, wont="nt", fnt="", barx=True, hdown=False, clean=False, fpre=8, wpre=8, tog=9, csleep=0, fold=True, micro=True, early=False, hdepth=0, xth=2, ytouch=False, prew="", prio=True, layout="cs", hsh=0, dflag=False, vtlb=False, xts=True, hslow=0, nva=1, hml=0, fml=0, fmk=16, presetup=True, skew=0, skx=6, kwin=0, nb=0, qdel=0, ksplit=False, comb=True, hclean=False, al12=True, spec=True, wflag="D"):
        self.a = Asm()
        self.diag, self.nt, self.wnt, self.prefetch = diag, nt, wnt, prefetch
        self.uid = 0
        self.pad, self.probe, self.stamps, self.sec = int(pad), probe, stamps, ""
        self.nk0, self.helper, self.hrow0, self.local, self.ackwait = int(nk0), helper, int(hrow0), local, ackwait
        self.nk1 = int(nk1)
        self.optouch, self.window, self.exp, self.wwin = optouch, window, exp, int(wwin)
        self.hint, self.lag, self.fwin = hint, int(lag), int(fwin)
        self.downearly, self.b0, self.tight = downearly, b0, tight
        self.nww, self.wotouch = int(nww), wotouch
        self.nwn = 16 - self.nww
        self.incr, self.bump, self.outf, self.nkpre, self.clag = incr, bump, outf, int(nkpre), int(clag)
        self.slots = {}
        self.wflag = wflag
        self.spec = spec
        self.al12 = al12
        self.hclean = hclean or clean
        self.comb = comb
        self.ksplit = ksplit
        self.qdel = int(qdel)
        self.nb = int(nb)
        self.skew, self.skx, self.kwin = int(skew), int(skx), int(kwin)
        self.presetup = presetup
        self.hml, self.fml, self.fmk = int(hml), int(fml), int(fmk)
        self.nva = int(nva)
        self.hslow = int(hslow)
        self.xts = xts
        self.vtlb = vtlb
        self.dflag = dflag
        self.hsh = int(hsh)
        self.layout = layout
        self.prio = prio
        self.prew = prew
        self.xth, self.ytouch = int(xth), ytouch
        self.hdepth = int(hdepth)
        self.micro, self.early = micro, early
        self.fold = fold
        self.tog, self.csleep = int(tog), int(csleep)
        self.clean, self.fpre, self.wpre = clean, int(fpre), int(wpre)
        self.barx, self.hdown = barx, hdown
        self.wont, self.fnt = wont, fnt
        self.hr = int(hr)
        self.wopair, self.frot, self.wk0 = wopair, frot, int(wk0)
        self.nrep = int(nrep)
        self.hmode, self.hsleep, self.fchk, self.fwin0, self.fk0 = hmode, int(hsleep), int(fchk), int(fwin0), int(fk0)
        self.hall, self.tlb, self.cpt = hall, tlb, cpt
        self.hpub, self.fpub, self.nth, self.nlate, self.hgu = hpub, fpub, int(nth), int(nlate), int(hgu)
        self.nv1, self.hwin, self.idledma = int(nv1), int(hwin), idledma and self.nww < 8
        self.nwaves = max(self.nwn, 9) + 1
        self.nh = (4 if self.nwn == 8 and micro else 5) if self.nwn <= 10 else 6
        self.lds = int(lds) if lds else LDS_BYTES
        self.nvg = int(nvg)

    def stamp(self, i):
        key = self.sec + str(i)
        if self.probe == key:
            self.a("s_memrealtime s[84:85]")
        if self.diag and key in self.stamps:
            r = self.slot(i)
            self.a(f"s_memrealtime s[{r}:{r + 1}]")

    def slot(self, i):
        if i not in self.slots:
            self.slots[i] = ST0 + 4 + 2 * len(self.slots)
            assert self.slots[i] <= 94, "at most six stamp slots"
        return self.slots[i]

    def count(self, i):
        if self.diag and self.stamps is not None and ("n" + self.sec + str(i)) in self.stamps:
            self.a(f"s_add_u32 s{self.slot(i)}, {sSPIN}, 1")

    def end(self):
        self.a("s_branch L_exit" if self.diag else "s_endpgm")

    def bf16r(self, d, x):
        self.a(f"v_cvt_pk_bf16_f32 {vr(d)}, 0, {vr(x)}")

    def unpack(self, d, s, n):
        for i in range(n):
            self.a(f"v_lshlrev_b32 {vr(d + 2 * i)}, 16, {vr(s + i)}\nv_and_b32 {vr(d + 2 * i + 1)}, {sHI}, {vr(s + i)}")

    def dppred(self, op, regs, mods):
        for mod in mods:
            for r in regs:
                self.a(f"{op}_dpp {vr(r)}, {vr(r)}, {vr(r)} {mod} {FULL}")

    def redrows(self, op, regs, tmp):
        a = self.a
        for sw in ("v_permlane16_swap_b32", "v_permlane32_swap_b32"):
            for i, r in enumerate(regs):
                a(f"v_mov_b32 {vr(tmp + i)}, {vr(r)}")
            for i, r in enumerate(regs):
                a(f"{sw} {vr(r)}, {vr(tmp + i)}")
            for i, r in enumerate(regs):
                a(f"{op} {vr(r)}, {vr(r)}, {vr(tmp + i)}")

    def red8x(self, op, regs, tmp):
        self.dppred(op, regs, ("quad_perm:[1,0,3,2]", "quad_perm:[2,3,0,1]", "row_half_mirror"))
        self.redrows(op, regs, tmp)

    def selectors(self, sel, t0, nm, bits=2):
        a = self.a
        a(f"v_and_b32 {vr(t0)}, 1, v1")
        a(f"v_cmp_eq_u32 vcc, 1, {vr(t0)}")
        a(f"v_mov_b32 {vr(t0 + 1)}, 0x0c0c0100\nv_mov_b32 {vr(t0 + 2)}, 0x01000c0c")
        a(f"v_cndmask_b32 {vr(t0 + 1)}, {vr(t0 + 1)}, {vr(t0 + 2)}, vcc")
        a(f"v_mov_b32 {vr(t0 + 2)}, 0x0c0c0302\nv_mov_b32 {vr(t0 + 3)}, 0x03020c0c")
        a(f"v_cndmask_b32 {vr(t0 + 2)}, {vr(t0 + 2)}, {vr(t0 + 3)}, vcc")
        a(f"v_bfe_u32 {vr(t0)}, v1, 1, {bits}")
        a(f"v_mov_b32 {vr(t0 + 3)}, 0x0c0c0c0c")
        for m in range(nm):
            a(f"v_cmp_eq_u32 vcc, {m}, {vr(t0)}")
            a(f"v_cndmask_b32 {vr(sel + 2 * m)}, {vr(t0 + 3)}, {vr(t0 + 1)}, vcc")
            a(f"v_cndmask_b32 {vr(sel + 2 * m + 1)}, {vr(t0 + 3)}, {vr(t0 + 2)}, vcc")

    def tag_consts(self):
        a = self.a
        a(f"s_add_u32 {sT}, {sT}, {TAGC}")
        a(f"s_lshr_b32 {sT1}, {sT}, 8\ns_lshr_b32 {sT2}, {sT}, 16\ns_lshr_b32 {sT3}, {sT}, 24")
        a(f"s_mov_b32 {sSELA}, 0x0c0c0400\ns_mov_b32 {sSELB}, 0x04000c0c")

    def tag4(self, d, mask):
        for i, s in enumerate((sT, sT1, sT2, sT3)):
            self.a(f"v_bfi_b32 {vr(d + i)}, {vr(mask)}, {vr(d + i)}, {s}")

    def chk(self, t, gs):
        a = self.a
        for n, g in enumerate(gs):
            a(f"v_perm_b32 {vr(t + 2 * n)}, {vr(g + 1)}, {vr(g)}, {sSELA}")
            a(f"v_perm_b32 {vr(t + 2 * n + 1)}, {vr(g + 3)}, {vr(g + 2)}, {sSELB}")
        for n, g in enumerate(gs):
            a(f"v_bitop3_b32 {vr(t + 2 * n)}, {vr(t + 2 * n)}, {vr(t + 2 * n + 1)}, {sT} bitop3:0x56")
        rest = [t + 2 * n for n in range(1, len(gs))]
        while rest:
            if len(rest) >= 2:
                a(f"v_or3_b32 {vr(t)}, {vr(t)}, {vr(rest[0])}, {vr(rest[1])}")
                rest = rest[2:]
            else:
                a(f"v_or_b32 {vr(t)}, {vr(t)}, {vr(rest[0])}")
                rest = []
        a(f"v_cmp_ne_u32 vcc, 0, {vr(t)}")

    def poll(self, loads, check, between=None, first=True):
        a = self.a
        self.uid += 1
        L = self.cur_poll = f"L_poll{self.uid}"
        a(f"s_mov_b32 {sSPIN}, 0")
        if between:
            if first:
                loads()
            if between() is not True:
                a(f"s_branch {L}w")
        a(f"{L}:")
        loads()
        a(f"s_add_u32 {sSPIN}, {sSPIN}, 1\ns_cmp_gt_u32 {sSPIN}, {SPIN}\ns_cbranch_scc1 L_bail")
        a(f"{L}w:\ns_waitcnt vmcnt(0)\n{L}c:")
        check()
        a(f"s_cbranch_vccnz {L}")

    def spoll(self, loads, check, keep=0):
        a = self.a
        self.uid += 1
        L = f"L_sp{self.uid}"
        a(f"s_mov_b32 {sSPIN}, 0\n{L}:")
        loads()
        a(f"s_add_u32 {sSPIN}, {sSPIN}, 1\ns_cmp_gt_u32 {sSPIN}, {SPIN}\ns_cbranch_scc1 L_bail\ns_waitcnt lgkmcnt({keep})")
        check()
        a(f"s_cbranch_scc1 {L}")

    def lds_wait(self, word, val, va, vt, tight=False, extra=None):
        a = self.a
        self.uid += 1
        L = f"L_lw{self.uid}"
        a(f"v_mov_b32 {vr(va)}, {word}\ns_mov_b32 {sSPIN}, 0\n{L}:")
        a(f"ds_read_b32 {vr(vt)}, {vr(va)}")
        if extra:
            extra()
        a(f"s_add_u32 {sSPIN}, {sSPIN}, 1\ns_cmp_gt_u32 {sSPIN}, {SPIN * 8}\ns_cbranch_scc1 L_bail")
        a(f"s_waitcnt lgkmcnt(0)\nv_readfirstlane_b32 {sA}, {vr(vt)}\ns_cmp_ge_u32 {sA}, {val}\n" + (f"s_cbranch_scc0 {L}" if tight and self.tight else f"s_cbranch_scc1 {L}d\ns_sleep 1\ns_branch {L}\n{L}d:"))

    def lds_inc(self, word, va, vt):
        self.a(f"v_mov_b32 {vr(va)}, {word}\nv_mov_b32 {vr(vt)}, 1\ns_mov_b64 exec, 1\nds_add_u32 {vr(va)}, {vr(vt)}\ns_mov_b64 exec, -1")

    def tr_reduce4(self, v, rots):
        a = self.a
        a(f"v_permlane32_swap_b32 {vr(v)}, {vr(v + 1)}")
        a(f"v_permlane32_swap_b32 {vr(v + 2)}, {vr(v + 3)}")
        a(f"v_add_f32 {vr(v)}, {vr(v)}, {vr(v + 1)}")
        a(f"v_add_f32 {vr(v + 2)}, {vr(v + 2)}, {vr(v + 3)}")
        a(f"v_permlane16_swap_b32 {vr(v)}, {vr(v + 2)}")
        a(f"v_add_f32 {vr(v)}, {vr(v)}, {vr(v + 2)}")
        self.dppred("v_add_f32", [v], [f"row_ror:{r}" for r in rots])

    def ln_finish(self, t, mean, var):
        a = self.a
        self.bf16r(var, var)
        self.bf16r(t, mean)
        a(f"v_add_f32 {vr(var)}, 0x3727c5ac, {vr(var)}")
        self.bf16r(var, var)
        a(f"v_sqrt_f32 {vr(var)}, {vr(var)}")
        self.bf16r(t + 2, var)
        a(f"v_rcp_f32 {vr(t + 4)}, {vr(t + 2)}")

    def ln_apply2(self, F, t, P, tmp):
        a = self.a
        a(f"v_pk_add_f32 {vr(F, 2)}, {vr(F, 2)}, {vr(t, 2)} op_sel_hi:[1,0] neg_lo:[0,1] neg_hi:[0,1]")
        self.bf16r(F, F)
        self.bf16r(F + 1, F + 1)
        a(f"v_pk_mul_f32 {vr(tmp, 2)}, {vr(F, 2)}, {vr(t + 4, 2)} op_sel_hi:[1,0]")
        a(f"v_pk_fma_f32 {vr(F, 2)}, {vr(tmp, 2)}, {vr(t + 2, 2)}, {vr(F, 2)} op_sel_hi:[1,0,1] neg_lo:[1,0,0] neg_hi:[1,0,0]")
        a(f"v_pk_fma_f32 {vr(F, 2)}, {vr(F, 2)}, {vr(t + 4, 2)}, {vr(tmp, 2)} op_sel_hi:[1,0,1]")
        a(f"v_cvt_pk_bf16_f32 {vr(P)}, {vr(F)}, {vr(F + 1)}")

    def gemv16(self, D, X, SEL, B, A, steps):
        a = self.a
        for t in range(steps):
            for m in range(2):
                a(f"v_perm_b32 {vr(A + 2 * t + m)}, {vr(X + t // 2)}, {vr(X + t // 2)}, {vr(SEL + 2 * m + (t & 1))}")
            if t >= 1:
                u = t - 1
                a(f"v_mfma_f32_16x16x16_bf16 {vr(D, 4)}, {vr(A + 2 * u, 2)}, {vr(B + 2 * u, 2)}, {vr(D, 4) if u else 0}")
        u = steps - 1
        a(f"v_mfma_f32_16x16x16_bf16 {vr(D, 4)}, {vr(A + 2 * u, 2)}, {vr(B + 2 * u, 2)}, {vr(D, 4)}")

    def role(self, lw, lh, lf, ln):
        a = self.a
        a(f"s_and_b32 {sA}, {sH}, 3\ns_lshl_b32 {sF}, {sA}, 2\ns_lshr_b32 {sA}, {sJ}, 2\ns_lshl_b32 {sA}, {sA}, 1\ns_add_u32 {sF}, {sF}, {sA}")
        a(f"s_and_b32 {sA}, {sJ}, 1\ns_add_u32 {sF}, {sF}, {sA}")
        a(f"s_bitcmp0_b32 {sJ}, 1\ns_cbranch_scc1 {lw}")
        a(f"s_cmp_lt_u32 {sF}, 8\ns_cbranch_scc1 {lh}")
        a(f"s_sub_u32 {sA}, {sF}, 8")
        a(f"s_min_u32 {sB}, {sXCD}, 3\ns_mul_i32 {sF}, {sXCD}, 5\ns_add_u32 {sF}, {sF}, {sB}\ns_add_u32 {sF}, {sF}, {sA}")
        a(f"s_cmp_lt_u32 {sXCD}, 3\ns_cselect_b32 {sB}, 6, 5\ns_cmp_lt_u32 {sA}, {sB}\ns_cbranch_scc1 {lf}")
        a(f"s_branch {ln}")

    def build(self):
        a = self.a
        a(f"{KN}:")
        if self.diag or self.pad:
            a(f"s_memrealtime s[{ST0}:{ST0 + 1}]")
        if self.skew:
            assert self.diag
            a(f"s_and_b32 s28, s2, 7\ns_cmp_lt_u32 s28, {self.skx}\ns_cbranch_scc1 L_nosk\ns_waitcnt lgkmcnt(0)")
            a(f"L_sk:\ns_memrealtime s[40:41]\ns_waitcnt lgkmcnt(0)\ns_sub_u32 s40, s40, s{ST0}\ns_cmp_lt_u32 s40, {self.skew}\ns_cbranch_scc1 L_sk\nL_nosk:")
        a("s_load_dwordx16 s[4:19], s[0:1], 0" + ("" if self.ksplit else "\ns_load_dwordx8 s[20:27], s[0:1], 64"))
        a("s_cmp_ge_u32 s2, 256\ns_cbranch_scc1 L_bail")
        if self.diag:
            for i in range(2, 8):
                a(f"s_mov_b32 s{ST0 + 2 * i}, 0")
        a(f"v_readfirstlane_b32 {sW}, v0\nv_and_b32 v1, 63, v0")
        a(f"s_and_b32 {sXCD}, s2, 7\ns_lshr_b32 {sJ}, s2, 3\ns_lshr_b32 {sH}, s2, 6\ns_lshl_b32 {sA}, {sXCD}, 2\ns_add_u32 {sH}, {sH}, {sA}")
        a(f"s_and_b32 {sJ}, {sJ}, 7\ns_lshr_b32 {sW}, {sW}, 6\ns_mov_b32 {sHI}, 0xffff0000")
        a(f"s_bitcmp0_b32 {sJ}, 1\ns_cselect_b32 {sNACT}, {self.nww}, {self.nwn}")
        self.sw = sW if not self.diag else "s97"
        if self.layout == "sc":
            a(f"s_cmp_eq_u32 {sW}, 0\ns_cbranch_scc1 L_comm")
            parts = (("s", self.stream_early), ("s", self.idle_early), ("c", self.comm_early), ("c", self.comm), ("s", self.stream))
        elif self.layout == "cs":
            a(f"s_cmp_lg_u32 {sW}, 0\ns_cbranch_scc1 L_stream")
            parts = (("c", self.comm_early), ("s", self.stream_early), ("s", self.idle_early), ("c", self.comm), ("s", self.stream))
        else:
            a(f"s_cmp_lg_u32 {sW}, 0\ns_cbranch_scc1 L_stream")
            parts = (("c", self.comm_early), ("c", self.comm), ("s", self.stream_early), ("s", self.stream), ("s", self.idle_early))
        for self.sec, part in parts + (("w", self.role_wo), ("f", self.role_ffn)):
            part()
        a("L_none:")
        self.end()
        if self.diag:
            a("L_exit:")
            a("s_mov_b64 exec, -1\ns_waitcnt vmcnt(0) lgkmcnt(0)")
            a(f"s_memrealtime s[{ST0 + 2}:{ST0 + 3}]\ns_waitcnt lgkmcnt(0)")
            a(f"s_mul_i32 {sA}, s2, 12\ns_add_u32 {sA}, {sA}, {sW}\ns_lshl_b32 {sA}, {sA}, 6\ns_add_u32 {sA}, {sA}, {WS_ST}")
            for i in range(16):
                src = {0: f"s{ST0}", 15: f"s{ST0 + 2}"}.get(i, f"s{self.slots[i]}" if i in self.slots else "0")
                a(f"v_mov_b32 v{4 + i}, {src}")
            a(f"v_mov_b32 v2, {sA}\ns_mov_b64 exec, 1")
            for i in range(4):
                a(f"global_store_dwordx4 v2, v[{4 + 4 * i}:{7 + 4 * i}], {sWS} offset:{16 * i}")
        a("L_bail:\ns_endpgm")
        a("L_codeend:")
        self.nops = a.fix_hazards()
        txt = HEADER
        txt += DOC
        txt += f"; @launch grid=(256,1,1) block=({64 * self.nwaves},1,1) lds={self.lds}\n"
        txt += f'.amdgcn_target "amdgcn-amd-amdhsa--gfx950"\n.text\n{".p2align 12" + chr(10) if self.al12 else ""}.globl {KN}\n.p2align 8\n.type {KN},@function\n'
        txt += a.text() + "\n"
        if self.prefetch:
            txt += ".fill 256, 4, 0xbf810000\n"
        txt += f""".section .rodata,"a"
.p2align 6
.amdhsa_kernel {KN}
  .amdhsa_next_free_vgpr {self.nvg}
  .amdhsa_next_free_sgpr 102
  .amdhsa_accum_offset {self.nvg}
  .amdhsa_group_segment_fixed_size 0
  .amdhsa_kernarg_size 96
  .amdhsa_user_sgpr_count 2
  .amdhsa_user_sgpr_kernarg_segment_ptr 1
  .amdhsa_system_sgpr_workgroup_id_x 1
.end_amdhsa_kernel
"""
        return txt

    def comm_early(self):
        a = self.a
        wnt = self.wnt
        G, BB = 2, 3
        XS, XO, W = 8, 16, 24
        a("L_comm:\ns_setprio 3")
        a(f"v_lshrrev_b32 v{G}, 4, v1\nv_bfe_u32 v{BB}, v1, 3, 1")
        a(f"v_and_b32 v5, 7, v1\nv_lshl_add_u32 v4, v{G}, 3, v5\nv_lshlrev_b32 v4, 5, v4\nv_lshl_add_u32 v4, v{BB}, 10, v4")
        a(f"s_lshl_b32 {sA}, {sJ}, 7\nv_lshl_add_u32 v5, v5, 2, {sA}\nv_lshl_add_u32 v5, v{G}, 5, v5\nv_lshl_add_u32 v5, v{BB}, 10, v5")
        a(f"s_lshl_b32 {sA}, {sJ}, 19\ns_lshl_b32 {sB}, {sH}, 8\ns_add_u32 {sA}, {sA}, {sB}\ns_movk_i32 {sB}, 0x2000")
        a(f"v_and_b32 v6, 15, v1\nv_lshl_add_u32 v6, v6, 4, {sA}\nv_lshl_add_u32 v6, v{G}, 17, v6")
        a("s_waitcnt lgkmcnt(0)")
        if self.ksplit:
            a("s_load_dwordx8 s[20:27], s[0:1], 64")
        self.stamp(1)
        a(f"global_load_dwordx4 {vr(XS, 4)}, v4, {sX}\nglobal_load_dwordx4 {vr(XS + 4, 4)}, v4, {sX} offset:16")
        a(f"global_load_dword {vr(XO)}, v5, {sX}")
        for t in range(16):
            a(f"global_load_dwordx4 {vr(W + 4 * t, 4)}, v6, {sWQ} {wnt}")
            if t < 15:
                a(f"v_add_u32 v6, {sB}, v6")
        if self.b0:
            a("s_barrier")
        if self.layout == "cs":
            a("s_branch L_comm2")

    def comm(self):
        a = self.a
        wnt = self.wnt
        XS, XO, W, F, SEL, ST, X, A, D, MK = 8, 16, 24, 88, 112, 120, 16, 88, 96, 100
        a(f"L_comm2:\n" + ("s_waitcnt lgkmcnt(0)\n" if self.ksplit else "") + f"s_load_dword {sT}, {sWS}, 0")
        a(f"v_mov_b32 v6, {L_CNT}\nv_mov_b32 v104, 0\nv_mov_b32 v105, 0\nv_mov_b32 v106, 0\nv_mov_b32 v107, 0")
        a("ds_write_b128 v6, v[104:107]\nds_write_b128 v6, v[104:107] offset:16\nds_write_b64 v6, v[104:105] offset:32")
        a("v_lshlrev_b32 v6, 4, v1")
        if self.fold:
            a("v_mov_b32 v108, 0x3f803f80\nv_mov_b32 v109, 0x3f803f80\nv_mov_b32 v110, 0x3f803f80\nv_mov_b32 v111, 0x3f803f80")
            a(f"ds_write_b128 v6, v[108:111] offset:{L_ONE}")
        for o in range(self.nww // 2, self.nh):
            a(f"ds_write_b128 v6, v[104:107] offset:{L_OP + 1024 * o}")
        a(f"v_min_u32 v6, 23, v1\nv_cmp_gt_u32 vcc, 12, v6\nv_lshlrev_b32 v6, 2, v6\nv_mov_b32 v105, 0xff800000\nv_cndmask_b32 v105, v104, v105, vcc\nds_write_b32 v6, v105 offset:{L_MAX}")
        self.selectors(SEL, 108, 4)
        a("s_waitcnt vmcnt(17)")
        self.unpack(F, XS, 8)
        self.stamp(2)
        S = 7
        a(f"v_pk_add_f32 v[104:105], {vr(F, 2)}, {vr(F + 2, 2)}\nv_pk_add_f32 v[106:107], {vr(F + 4, 2)}, {vr(F + 6, 2)}")
        for i in range(2):
            a(f"v_pk_add_f32 v[104:105], v[104:105], {vr(F + 8 + 4 * i, 2)}\nv_pk_add_f32 v[106:107], v[106:107], {vr(F + 10 + 4 * i, 2)}")
        a(f"v_pk_add_f32 v[104:105], v[104:105], v[106:107]\nv_add_f32 {vr(S)}, v104, v105")
        self.red8x("v_add_f32", [S], 104)
        a(f"v_mul_f32 {vr(S)}, 0x3b000000, {vr(S)}")
        for i in range(16):
            a(f"v_sub_f32 {vr(F + i)}, {vr(F + i)}, {vr(S)}")
        a(f"v_pk_mul_f32 v[104:105], {vr(F, 2)}, {vr(F, 2)}\nv_pk_mul_f32 v[106:107], {vr(F + 2, 2)}, {vr(F + 2, 2)}")
        for i in range(1, 4):
            a(f"v_pk_fma_f32 v[104:105], {vr(F + 4 * i, 2)}, {vr(F + 4 * i, 2)}, v[104:105]")
            a(f"v_pk_fma_f32 v[106:107], {vr(F + 4 * i + 2, 2)}, {vr(F + 4 * i + 2, 2)}, v[106:107]")
        a("v_pk_add_f32 v[104:105], v[104:105], v[106:107]\nv_add_f32 v108, v104, v105")
        self.red8x("v_add_f32", [108], 104)
        a("v_mul_f32 v108, 0x3b000000, v108")
        self.ln_finish(ST, S, 108)
        a("s_waitcnt vmcnt(16)")
        self.unpack(F, XO, 1)
        self.ln_apply2(F, ST, 8, 10)
        a("s_waitcnt lgkmcnt(0)")
        self.tag_consts()
        for u in range(8):
            a(f"v_mov_b32_dpp {vr(X + u)}, v8 row_newbcast:{u} row_mask:0xf bank_mask:0x3")
        for u in range(8):
            a(f"v_mov_b32_dpp {vr(X + u)}, v8 row_newbcast:{8 + u} row_mask:0xf bank_mask:0xc")
        a(f"v_mov_b32 v{MK}, 0xffffff00")

        def abuild(t):
            for m in range(4):
                a(f"v_perm_b32 {vr(A + 4 * (t & 1) + m)}, {vr(X + t // 2)}, {vr(X + t // 2)}, {vr(SEL + 2 * m + (t & 1))}")
        abuild(0)
        for t in range(16):
            if t < 15:
                abuild(t + 1)
            a(f"s_waitcnt vmcnt({15 - t})")
            a(f"v_mfma_f32_16x16x32_bf16 {vr(D, 4)}, {vr(A + 4 * (t & 1), 4)}, {vr(W + 4 * t, 4)}, {vr(D, 4) if t else 0}")
        a(f"s_lshl_b32 {sA}, {sH}, 13\ns_lshl_b32 {sB}, {sJ}, 9\ns_add_u32 {sA}, {sA}, {sB}\ns_add_u32 {sA}, {sA}, {WS_QP}")
        a(f"v_and_b32 v4, 15, v1\nv_lshl_add_u32 v4, v4, 5, {sA}\nv_bfe_u32 v5, v1, 4, 1\nv_lshl_add_u32 v4, v5, 4, v4")
        a("v_lshrrev_b32 v5, 5, v1\nv_lshl_add_u32 v4, v5, 12, v4")
        a(f"s_getreg_b32 {sC}, hwreg(HW_REG_XCC_ID, 0, 4)\ns_and_b32 {sD}, {sT}, 0xffffff00\ns_or_b32 {sC}, {sC}, {sD}")
        a(f"s_lshl_b32 {sA}, {sXCD}, 7\ns_add_u32 {sA}, {sA}, {WS_XT}")
        if self.qdel:
            assert self.diag
            a(f"s_cmp_lg_u32 {sJ}, 3\ns_cbranch_scc1 L_noqd\ns_memrealtime s[56:57]\ns_waitcnt lgkmcnt(0)")
            a(f"L_qd:\ns_memrealtime s[58:59]\ns_waitcnt lgkmcnt(0)\ns_sub_u32 s58, s58, s56\ns_cmp_lt_u32 s58, {self.qdel}\ns_cbranch_scc1 L_qd\nL_noqd:")
        for i in range(4):
            a(f"v_add_u32 {vr(D + i)}, 0x80, {vr(D + i)}")
        self.tag4(D, MK)
        a(f"global_store_dwordx4 v4, {vr(D, 4)}, {sWS} sc1")
        self.stamp(3)
        if self.probe in ("smax", "smin", "smed"):
            a(f"s_lshl_b32 {sB}, s2, 2\ns_add_u32 {sB}, {sB}, {WS_ST}\nv_mov_b32 v6, {sB}\nv_mov_b32 v7, s80\nglobal_store_dword v6, v7, {sWS} sc1")
        a(f"v_and_b32 v5, 31, v1\nv_lshl_add_u32 v5, v5, 2, {sA}")
        a(f"s_lshl_b32 {sA}, {sH}, 13\ns_lshr_b32 {sB}, {sJ}, 2\ns_lshl_b32 {sB}, {sB}, 12\ns_add_u32 {sA}, {sA}, {sB}\ns_add_u32 {sA}, {sA}, {WS_QP}")
        a(f"v_lshl_add_u32 v4, v1, 4, {sA}")
        a("s_barrier" if self.kwin else "s_barrier\ns_barrier")
        self.stamp(4)
        Gq, TT = 8, 24

        def loads():
            for n in range(4):
                a(f"global_load_dwordx4 {vr(Gq + 4 * n, 4)}, v4, {sWS} offset:{1024 * n} sc1")
            a(f"global_load_dword v32, v5, {sWS} sc1")

        def between():
            if self.tlb:
                a(f"v_and_b32 v35, 1, v1\nv_mul_u32_u24 v36, {512 * 2752 - 4}, v35\ns_lshl_b32 {sA}, {sXCD}, 19\nv_mul_u32_u24 v37, {(1 << 19) - 4}, v35\nv_add_u32 v37, {sA}, v37")
                a(f"v_lshlrev_b32 v35, 2, v35\ns_mov_b64 exec, 3")
                a(f"global_load_dword v38, v36, {sWG}\nglobal_load_dword v39, v36, {sWU}\nglobal_load_dword v40, v36, {sWD}")
                a(f"global_load_dword v41, v37, {sWO}\nglobal_load_dword v42, v35, {sOUT}\ns_mov_b64 exec, -1")
            if self.optouch:
                a(f"s_lshl_b32 {sA}, {sH}, 12\ns_lshl_b32 {sB}, {sJ}, 9\ns_add_u32 {sA}, {sA}, {sB}\ns_add_u32 {sA}, {sA}, {WS_OP}")
                a(f"v_and_b32 v33, 7, v1\nv_lshl_add_u32 v33, v33, 6, {sA}\nglobal_load_dword v34, v33, {sWS} sc1")
            a("s_barrier")

        def qcheck():
            self.chk(TT, [Gq + 4 * n for n in range(4)])
            if self.nb:
                a(f"s_cbranch_vccz L_qok\ns_cmp_eq_u32 {sW}, 0\ns_cbranch_scc1 L_cafter")
        self.poll(loads, qcheck, between=between)
        self.qpoll = self.cur_poll
        a("L_qok:")
        self.stamp(5)
        self.count(11)
        a(f"v_cmp_ne_u32 vcc, {sC}, v32")
        for i in range(16):
            a(f"v_and_b32 {vr(Gq + i)}, {vr(MK)}, {vr(Gq + i)}")
        a(f"s_cmp_eq_u64 vcc, 0\ns_cselect_b32 {sA}, {3 if self.local else 1}, 1")
        if self.diag and "loc" in self.stamps and not self.xts:
            a(f"s_or_b32 s{self.slot(13)}, {sA}, 4")
        if "mixloc" in self.exp:
            a(f"s_bitcmp1_b32 {sJ}, 0\ns_cselect_b32 {sA}, 1, {sA}")
        for i in range(4):
            a(f"v_add_f32 {vr(Gq + i)}, {vr(Gq + i)}, {vr(Gq + 4 + i)}\nv_add_f32 {vr(Gq + 8 + i)}, {vr(Gq + 8 + i)}, {vr(Gq + 12 + i)}")
        for i in range(4):
            a(f"v_add_f32 {vr(Gq + i)}, {vr(Gq + i)}, {vr(Gq + 8 + i)}")
        a(f"v_permlane32_swap_b32 {vr(Gq)}, {vr(Gq + 2)}\nv_permlane32_swap_b32 {vr(Gq + 1)}, {vr(Gq + 3)}")
        a(f"v_add_f32 {vr(Gq)}, {vr(Gq)}, {vr(Gq + 2)}\nv_add_f32 {vr(Gq + 1)}, {vr(Gq + 1)}, {vr(Gq + 3)}")
        a(f"v_cvt_pk_bf16_f32 {vr(Gq)}, {vr(Gq)}, {vr(Gq + 1)}")
        a("v_and_b32 v4, 31, v1\nv_lshlrev_b32 v4, 3, v4\nv_lshrrev_b32 v5, 5, v1\nv_lshl_add_u32 v4, v5, 2, v4")
        a(f"v_mov_b32 v6, {L_QF}\nv_mov_b32 v7, {sA}\ns_mov_b32 {sLOC}, {sA}")
        a(f"ds_write_b32 v4, {vr(Gq)} offset:{L_Q}\ns_mov_b64 exec, 1\nds_max_u32 v6, v7 offset:{L_LOC - L_QF}\nds_max_u32 v6, v7\ns_mov_b64 exec, -1")
        if self.nb:
            a(f"s_cmp_lg_u32 {sW}, 0\ns_cbranch_scc1 L_idle3")
        a("L_cafter:\ns_setprio 0")
        self.stamp(6)
        self.role("L_none" if self.idledma else "L_cwo", "L_chelp", "L_cffn", "L_cmon")

        def dma_loop(name, base, n0, n1, mstep, two=None, win=None):
            a(f"s_mov_b32 {sC}, {n0}\n{name}:")
            if win is not None:
                a(f"s_waitcnt vmcnt({win})")
            a(f"s_mov_b32 m0, {sD}\ns_add_u32 {sC}, {sC}, 1")
            a(f"global_load_lds_dwordx4 v4, {base} {wnt}")
            if two:
                a(f"s_add_u32 m0, {sD}, {L_U - L_G}\ns_add_u32 {sD}, {sD}, {mstep}")
                a(f"global_load_lds_dwordx4 v4, {two} {wnt}")
            else:
                a(f"s_add_u32 {sD}, {sD}, {mstep}")
            a(f"v_add_u32 v4, {sB}, v4\ns_cmp_lt_u32 {sC}, {n1}\ns_cbranch_scc1 {name}")

        a("L_cwo:")
        if "y" in self.prew:
            a(f"s_lshl_b32 {sA}, {sXCD}, 11\ns_lshl_b32 {sB}, {sF}, 7\ns_add_u32 {sA}, {sA}, {sB}\ns_add_u32 {sA}, {sA}, {WS_YP}\ns_not_b32 {sB}, {sT}")
            a(f"v_and_b32 v4, 7, v1\nv_lshl_add_u32 v4, v4, 4, {sA}\nv_bfe_u32 v5, v1, 3, 1\nv_lshl_add_u32 v4, v5, 14, v4")
            a(f"v_mov_b32 v44, {sB}\nv_mov_b32 v45, {sB}\nv_mov_b32 v46, {sB}\nv_mov_b32 v47, {sB}")
            a(f"s_mov_b64 exec, 0xffff\nglobal_store_dwordx4 v4, v[44:47], {sWS} sc1\ns_mov_b64 exec, -1")
        a(f"s_lshl_b32 {sA}, {sXCD}, 19\ns_lshl_b32 {sB}, {sF}, 6\ns_add_u32 {sB}, {sA}, {sB}")
        a(f"v_lshrrev_b32 v4, 2, v1\nv_lshlrev_b32 v4, 10, v4\nv_and_b32 v5, 3, v1\nv_lshl_add_u32 v4, v5, 4, v4\nv_add_u32 v8, {sB}, v4")
        if self.wopair:
            a(f"s_and_b32 {sD}, {sF}, 1\ns_lshl_b32 {sB}, {sD}, 18\nv_add_u32 v8, {sB}, v8\ns_lshl_b32 {sB}, {sD}, 19\ns_sub_u32 {sB}, 0x40000, {sB}\nv_add_u32 v24, {sB}, v8")
            a(f"s_mul_i32 {sD}, {sD}, {16 * GUP}\ns_sub_u32 {sC}, {L_W + 16 * GUP}, {sD}\ns_add_u32 {sD}, {sD}, {L_W}")
            for n in range(1, 16):
                a(f"v_add_u32 v{8 + n}, {n * 0x4000}, v8\nv_add_u32 v{24 + n}, {n * 0x4000}, v24")
        else:
            for n in range(1, 32):
                a(f"v_add_u32 v{8 + n}, {n * 0x4000}, v8")
        a(f"s_lshl_b32 {sB}, {sF}, 14\ns_add_u32 {sA}, {sA}, {sB}\ns_add_u32 {sA}, {sA}, 4096\nv_lshl_add_u32 v4, v1, 6, {sA}\nv_add_u32 v5, 0x2000, v4")
        self.lds_wait(L_VCNT, sNACT, 6, 7)
        self.stamp(12)
        if "nowo" in self.exp:
            pass
        elif self.wopair:
            for k in range(32):
                a(f"s_add_u32 m0, {sD if k < 16 else sC}, {(k & 15) * GUP}")
                a(f"s_waitcnt vmcnt({self.wwin})" if k >= self.wk0 else "s_nop 0")
                a(f"global_load_lds_dwordx4 v{8 + k}, {sWO} {self.wont}")
        elif self.clean:
            a(f"s_lshl_b32 {sA}, {sXCD}, 19\ns_lshl_b32 {sB}, {sF}, 14\ns_add_u32 {sA}, {sA}, {sB}\nv_lshl_add_u32 v4, v1, 7, {sA}\nv_add_u32 v5, 0x2000, v4")
            a(f"global_load_dword v40, v4, {sWO}\nglobal_load_dword v41, v5, {sWO}")
            for k, n in enumerate(list(range(16, 32)) + list(range(16))):
                if k == self.wpre:
                    self.lds_wait(L_PUB, 1, 6, 7, tight=True)
                a(f"s_mov_b32 m0, {L_W + n * GUP}\ns_nop 0\nglobal_load_lds_dwordx4 v{8 + n}, {sWO} {self.wont}")
        else:
            for i in range(4 if self.wotouch else 0):
                a(f"global_load_dword v{40 + i}, v{4 + i // 2}, {sWO} offset:{-4096 if i % 2 == 0 else 0}")
            for k, n in enumerate(list(range(16, 32)) + list(range(16))):
                a(f"s_mov_b32 m0, {L_W + n * GUP}")
                a(f"s_waitcnt vmcnt({self.wwin})" if k >= 8 and self.wotouch else "s_nop 0")
                a(f"global_load_lds_dwordx4 v{8 + n}, {sWO} {self.wont}")
        self.stamp(13)
        a(f"v_mov_b32 v6, {L_DMA}\nv_mov_b32 v7, 1\ns_waitcnt vmcnt(0)\nds_write_b32 v6, v7")
        self.stamp(14)
        if self.dflag:
            a(f"s_lshl_b32 {sA}, {sXCD}, 7\ns_lshl_b32 {sB}, {sF}, 2\ns_add_u32 {sA}, {sA}, {sB}\ns_add_u32 {sA}, {sA}, {WS_DT}")
            a(f"v_mov_b32 v6, {sA}\nv_mov_b32 v7, {sT}\ns_mov_b64 exec, 1\ns_cmp_eq_u32 {sLOC}, 3\ns_cbranch_scc1 L_cwl")
            a(f"global_store_dword v6, v7, {sWS} sc1")
            self.end()
            a(f"L_cwl:\nglobal_store_dword v6, v7, {sWS}")
        if self.nth and "noffn" not in self.exp:
            ni = (512 - self.hrow0) // 128
            self.gu_touch_addr(self.hrow0, 8 * ni, ni)
            a(f"s_lshl_b32 {sA}, {sXCD}, 9\ns_add_u32 {sA}, {sA}, {WS_ML}\nv_and_b32 v4, 31, v1\nv_lshl_add_u32 v4, v4, 4, {sA}")

            def enough():
                self.chk(44, [40])
                a(f"s_bcnt0_i32_b32 {sA}, vcc_lo\ns_cmp_lt_u32 {sA}, {self.nth}\ns_cselect_b64 vcc, -1, 0")
            self.poll(lambda: a(f"global_load_dwordx4 v[40:43], v4, {sWS} sc1"), enough)
            a(f"s_cmp_gt_u32 {sA}, {self.nlate}\ns_cbranch_scc1 L_none")
            for i in range(ni):
                a(f"global_load_dword v{56 + 2 * i}, v{8 + i}, {sWG}\nglobal_load_dword v{57 + 2 * i}, v{8 + i}, {sWU}")
        self.end()

        a("L_chelp:")
        if self.helper:
            self.helper_code()
        self.end()

        a("L_cffn:")
        if "f" in self.prew:
            a(f"s_lshl_b32 {sA}, {sF}, 7\ns_add_u32 {sA}, {sA}, {WS_FP}\ns_not_b32 {sB}, {sT}")
            a(f"v_lshrrev_b32 v4, 3, v1\nv_mul_u32_u24 v4, {FP_STRIDE}, v4\nv_and_b32 v5, 7, v1\nv_lshl_add_u32 v4, v5, 4, v4\nv_add_u32 v4, {sA}, v4")
            a(f"v_mov_b32 v44, {sB}\nv_mov_b32 v45, {sB}\nv_mov_b32 v46, {sB}\nv_mov_b32 v47, {sB}")
            for i in range(4):
                a(f"global_store_dwordx4 v4, v[44:47], {sWS} sc1\nv_add_u32 v4, {8 * FP_STRIDE}, v4")
        a("v_lshrrev_b32 v4, 2, v1\nv_mul_u32_u24 v4, 2752, v4\nv_and_b32 v5, 3, v1\nv_lshl_add_u32 v4, v5, 4, v4")
        a(f"s_lshl_b32 {sA}, {sF}, 6\nv_add_u32 v8, {sA}, v4")
        a(f"s_and_b32 {sD}, {sF}, {1 if self.frot else 0}\ns_mul_i32 {sB}, {sD}, {256 * 2752}\nv_add_u32 v8, {sB}, v8\ns_lshl_b32 {sB}, {sB}, 1\ns_sub_u32 {sB}, {256 * 2752}, {sB}\nv_add_u32 v24, {sB}, v8")
        a(f"s_mul_i32 {sD}, {sD}, {16 * GUP}\ns_sub_u32 {sC}, {L_G + 16 * GUP}, {sD}\ns_add_u32 {sD}, {sD}, {L_G}")
        for n in range(1, 16):
            a(f"v_add_u32 v{8 + n}, {n * 16 * 2752}, v8\nv_add_u32 v{24 + n}, {n * 16 * 2752}, v24")
        a(f"s_lshl_b32 {sA}, {sF}, 15\ns_add_u32 {sA}, {sA}, 4096\nv_lshl_add_u32 v40, v1, 4, {sA}")
        for n in range(1, 4):
            a(f"v_add_u32 v{40 + n}, {n * 8192}, v40")
        a(f"v_mov_b32 v4, {L_HINT}\ns_mov_b32 {sRD}, 0")
        self.lds_wait(*((L_PUB, 1) if self.fpub else (L_VCNT, sNACT)), 6, 7)
        self.stamp(7)
        for k in range(0 if "noffn" in self.exp else 96):
            if k % self.fchk == 0 and k:
                a(f"s_waitcnt lgkmcnt(0)\nv_readfirstlane_b32 {sA}, v5\ns_add_u32 {sA}, {sA}, 1\ns_lshr_b32 {sA}, {sA}, 4\ns_andn2_b32 {sA}, {sA}, {sRD}\ns_cbranch_scc0 L_cf{k}\ns_mov_b32 {sRD}, 1")
                if self.barx:
                    a("s_barrier")
                self.lds_wait(L_YISS, 8, 6, 7)
                a(f"L_cf{k}:")
            if k % self.fchk == 0:
                a("ds_read_b32 v5, v4")
            win = self.fwin0 if k < self.fk0 and not self.clean else self.fwin
            if self.fml and k == self.fmk:
                self.ml_wait(self.fml, 64)
            if self.clean and k == self.fpre:
                self.lds_wait(L_PUB, 1, 6, 7)
            if k < 64:
                a(f"s_add_u32 m0, {sD if k < 32 else sC}, {(L_U - L_G if k & 1 else 0) + ((k >> 1) & 15) * GUP}")
                a(f"s_waitcnt vmcnt({win})" if k > win else "s_nop 0")
                a(f"global_load_lds_dwordx4 v{8 + (k >> 1)}, {sWU if k & 1 else sWG} {self.fnt}")
            else:
                n = k - 64
                off = (n & 7) * 1024 - 4096
                a(f"s_mov_b32 m0, {L_D + n * ROWP - off}\ns_waitcnt vmcnt({win})")
                a(f"global_load_lds_dwordx4 v{40 + (n >> 3)}, {sWD} offset:{off} {wnt}")
        self.stamp(8)
        a(f"s_cmp_lg_u32 {sRD}, 0\ns_cbranch_scc1 L_cf3")
        a(f"v_mov_b32 v6, {L_DMA}\nv_mov_b32 v7, 1\ns_waitcnt vmcnt(0)\nds_write_b32 v6, v7")
        self.stamp(11)
        if self.barx:
            a("s_waitcnt lgkmcnt(0)\ns_barrier")
        a("L_cf3:")
        a(("" if self.fold else "s_barrier\n") + "s_waitcnt vmcnt(32)\ns_barrier\ns_waitcnt vmcnt(0)")
        self.stamp(9)
        a("s_barrier")
        self.end()

        a("; ---- wave 0 of the monitor workgroup: once every wo wave of the group has its split weights and staged fragments, tell the\n; FFN workgroups that the y lines of this group are about to be written. The word only releases their first read; tags decide validity.")
        a("L_cmon:")
        if self.hclean:
            a(f"s_cmp_lt_u32 {sA}, 6\ns_cbranch_scc1 L_none\ns_mov_b32 {sF}, {sA}")
            a(f"s_lshl_b32 {sB}, {sXCD}, 19\ns_lshl_b32 {sC}, {sF}, 15\ns_add_u32 {sB}, {sB}, {sC}\ns_add_u32 {sB}, {sB}, {0x70000 - 6 * 32768}")
            a(f"v_lshl_add_u32 v4, v1, 7, {sB}\ns_movk_i32 {sD}, 0x2000")
            self.lds_wait(L_VCNT, sNACT, 6, 7)
            for i in range(4):
                a(f"global_load_dword v{48 + i}, v4, {sWO}\nv_add_u32 v4, {sD}, v4")
            a(f"s_mov_b32 {sA}, {sF}")
        if self.hint:
            if self.ytouch or not self.incr:
                a(f"s_cmp_eq_u32 {sA}, 6\ns_cbranch_scc1 L_ctouch")
            a(f"s_cmp_lg_u32 {sA}, 7\ns_cbranch_scc1 L_none")
            a(f"s_lshl_b32 {sA}, {sXCD}, 9\ns_add_u32 {sA}, {sA}, {WS_ML}\nv_and_b32 v4, 31, v1\nv_lshl_add_u32 v4, v4, 4, {sA}")
            a(f"s_lshl_b32 {sA}, {sXCD}, 2\ns_add_u32 {sA}, {sA}, {WS_HT}\nv_lshl_add_u32 v5, v1, 7, {sA}\nv_mov_b32 v6, {sT}")
            self.lds_wait(L_PUB, 1, 12, 13)
            if self.wflag:
                a(f"s_lshl_b32 {sA}, {sXCD}, 9\ns_add_u32 {sA}, {sA}, {WS_WT}\nv_lshl_add_u32 v4, v1, 3, {sA}")
                self.poll(lambda: a(f"global_load_dwordx2 v[8:9], v4, {sWS} sc1"),
                          lambda: a(f"v_xor_b32 v8, {sT}, v8\nv_xor_b32 v9, {sT}, v9\nv_or_b32 v8, v8, v9\nv_cmp_ne_u32 vcc, 0, v8"))
            elif self.dflag:
                a(f"s_lshl_b32 {sA}, {sXCD}, 7\ns_add_u32 {sA}, {sA}, {WS_DT}\nv_and_b32 v7, 15, v1\nv_lshl_add_u32 v7, v7, 2, {sA}")

                def both():
                    self.chk(12, [8])
                    a(f"v_cmp_ne_u32 {sM0}, {sT}, v14\ns_or_b64 vcc, vcc, {sM0}")
                self.poll(lambda: a(f"global_load_dwordx4 v[8:11], v4, {sWS} sc1\nglobal_load_dword v14, v7, {sWS} sc1"), both)
            else:
                self.poll(lambda: a(f"global_load_dwordx4 v[8:11], v4, {sWS} sc1"), lambda: self.chk(12, [8]))
            for i in range(self.lag):
                a(f"global_load_dwordx2 v[8:9], v4, {sWS} sc1\ns_waitcnt vmcnt(0)")
            a(f"s_bfm_b64 exec, {56 if self.ytouch or not self.incr else (42 >> self.hsh) + 1}, 0\nglobal_store_dword v5, v6, {sWS} sc1")
            self.stamp(10)
            if self.ytouch or not self.incr:
                self.end()
        if self.hint and (self.ytouch or not self.incr):
            a("L_ctouch:")
            a(f"s_lshl_b32 {sA}, {sXCD}, 7\ns_add_u32 {sA}, {sA}, {WS_HT + 48 * 128}\nv_and_b32 v4, 7, v1\nv_lshl_add_u32 v4, v4, 2, {sA}")
            a(f"v_and_b32 v5, 31, v1\nv_lshlrev_b32 v5, 6, v5\nv_lshrrev_b32 v6, 5, v1\nv_lshl_add_u32 v5, v6, 14, v5\nv_add_u32 v5, {WS_YP}, v5")
            self.lds_wait(L_PUB, 1, 12, 13)
            a(f"s_mov_b32 {sC}, 0\ns_mov_b32 {sSPIN}, 0\nL_ct0:")
            a(f"global_load_dword v8, v4, {sWS} sc1\ns_add_u32 {sSPIN}, {sSPIN}, 1\ns_cmp_gt_u32 {sSPIN}, {SPIN}\ns_cbranch_scc1 L_bail")
            a(f"s_waitcnt vmcnt(0)\nv_cmp_eq_u32 vcc, {sT}, v8\ns_and_b32 {sA}, vcc_lo, 0xff\ns_andn2_b32 {sB}, {sA}, {sC}\ns_mov_b32 {sC}, {sA}")
            a(f"L_ct1:\ns_cmp_eq_u32 {sB}, 0\ns_cbranch_scc1 L_ct2")
            a(f"s_ff1_i32_b32 {sD}, {sB}\ns_bitset0_b32 {sB}, {sD}\ns_lshl_b32 {sD}, {sD}, 11\nv_add_u32 v6, {sD}, v5\nglobal_load_dword v9, v6, {sWS} sc1\ns_branch L_ct1")
            a(f"L_ct2:\ns_cmp_lg_u32 {sC}, 0xff\ns_cbranch_scc1 L_ct0")
        self.end()

    def ml_wait(self, nth, va):
        a = self.a
        a(f"s_lshl_b32 {sA}, {sXCD}, 9\ns_add_u32 {sA}, {sA}, {WS_ML}\nv_and_b32 v{va}, 31, v1\nv_lshl_add_u32 v{va}, v{va}, 4, {sA}")

        def enough():
            self.chk(va + 6, [va + 2])
            a(f"s_bcnt0_i32_b32 {sA}, vcc_lo\ns_cmp_lt_u32 {sA}, {nth}\ns_cselect_b64 vcc, -1, 0")
        self.poll(lambda: a(f"global_load_dwordx4 v[{va + 2}:{va + 5}], v{va}, {sWS} sc1"), enough)

    def gu_touch_addr(self, r0, rows, ni):
        a = self.a
        a(f"s_min_u32 {sB}, {sXCD}, 3\ns_mul_i32 {sC}, {sXCD}, 5\ns_add_u32 {sC}, {sC}, {sB}")
        a(f"s_mul_i32 {sB}, {sF}, {rows}\ns_add_u32 {sB}, {sB}, {r0}\ns_mul_i32 {sB}, {sB}, 2752\ns_lshl_b32 {sA}, {sC}, 6\ns_add_u32 {sB}, {sB}, {sA}")
        a("v_lshrrev_b32 v8, 3, v1\nv_mul_u32_u24 v8, 2752, v8\nv_and_b32 v5, 7, v1\nv_min_u32 v5, 5, v5\nv_lshl_add_u32 v8, v5, 6, v8")
        a(f"v_add_u32 v8, {sB}, v8")
        for i in range(1, ni):
            a(f"v_add_u32 v{8 + i}, {i * 8 * 2752}, v8\nv_min_u32 v{8 + i}, {512 * 2752 - 4}, v{8 + i}")

    def helper_code(self):
        a = self.a
        ni = self.hr // 64
        a(f"s_min_u32 {sB}, {sXCD}, 3\ns_mul_i32 {sC}, {sXCD}, 5\ns_add_u32 {sC}, {sC}, {sB}")
        a(f"s_and_b32 {sA}, {sF}, 3\ns_mul_i32 {sB}, {sA}, {16 * ni}\ns_lshr_b32 {sA}, {sF}, 2\ns_lshl_b32 {sA}, {sA}, 8\ns_add_u32 {sB}, {sB}, {sA}")
        a(f"s_add_u32 {sB}, {sB}, {256 - self.hr}\ns_mul_i32 {sB}, {sB}, 2752\ns_lshl_b32 {sA}, {sC}, 6\ns_add_u32 {sB}, {sB}, {sA}")
        a("v_lshrrev_b32 v8, 2, v1\nv_mul_u32_u24 v8, 2752, v8\nv_and_b32 v5, 3, v1\nv_lshlrev_b32 v5, 7, v5\nv_min_u32 v5, 380, v5\nv_add_u32 v8, v5, v8")
        a(f"v_add_u32 v8, {sB}, v8")
        for i in range(ni - 1, -1, -1):
            a(f"v_add_u32 v{8 + i}, {i * 16 * 2752}, v8\nv_min_u32 v{8 + i}, {512 * 2752 - 4}, v{8 + i}")
        a(f"s_lshl_b32 {sC}, {sC}, 15\ns_mul_i32 {sA}, {sF}, {6 * 32768 // 8}\ns_add_u32 {sC}, {sC}, {sA}\nv_lshl_add_u32 v20, v1, 7, {sC}")
        for i in range(2, -1, -1):
            a(f"v_add_u32 v{20 + i}, {i * 8192}, v20\nv_min_u32 v{20 + i}, {1376 * 1024 - 4}, v{20 + i}")
        a(f"s_lshl_b32 {sB}, {sXCD}, 19\ns_mul_i32 {sC}, {sF}, {24576 if self.hclean else 32768}\ns_add_u32 {sB}, {sB}, {sC}\ns_add_u32 {sB}, {sB}, 0x40000")
        a(f"v_lshl_add_u32 v4, v1, 7, {sB}\ns_movk_i32 {sD}, 0x2000")
        self.lds_wait(*((L_PUB, 1) if self.hpub else (L_VCNT, sNACT)), 6, 7)
        for i in range((3 if self.hclean else 4) if self.wotouch else 0):
            a(f"global_load_dword v{48 + i}, v4, {sWO}\nv_add_u32 v4, {sD}, v4")
        if self.hclean and self.hclean != "win":
            self.lds_wait(L_PUB, 1, 6, 7)
        if "noffn" in self.exp:
            return
        w = f"s_waitcnt vmcnt({self.hwin})\n"
        if self.hml:
            self.ml_wait(self.hml, 64)
            w = ""
        for i in range(3 if self.hdown else 0):
            a(f"{w}global_load_dword v{40 + i}, v{20 + i}, {sWD}")
        for i in range(ni):
            a(f"{w}global_load_dword v{56 + 2 * i}, v{8 + i}, {sWG}\n{w}global_load_dword v{57 + 2 * i}, v{8 + i}, {sWU}")
        for i in range(0 if self.hdown else 3):
            a(f"{w}global_load_dword v{40 + i}, v{20 + i}, {sWD}")

    def stream_early(self):
        a = self.a
        nt = self.nt
        K, V = 4, 36
        a('; ---- waves 1..8: issue the K and V loads of 32 keys each (contiguous 1 KiB per instruction). The barriers order the queue:\n; wq first, a few K loads until the q partial is out, the rest of K, the q gather, then V.')
        a(f"L_stream:\ns_cmp_gt_u32 {sW}, {sNACT}\ns_cbranch_scc1 L_idle")
        a(f"s_lshr_b32 {sA}, {sJ}, 2\ns_lshl_b32 {sA}, {sA}, 25\ns_lshl_b32 {sB}, {sH}, 20\ns_add_u32 {sA}, {sA}, {sB}")
        a(f"s_and_b32 {sB}, {sJ}, 1\ns_mul_i32 {sB}, {sB}, {sNACT}\ns_add_u32 {sB}, {sB}, {sW}\ns_bitcmp1_b32 {sJ}, 1\ns_cselect_b32 {sC}, {2 * self.nww}, 0")
        a(f"s_add_u32 {sB}, {sB}, {sC}\ns_lshl_b32 {sB}, {sB}, 13\ns_add_u32 {sA}, {sA}, {sB}")
        a(f"s_add_u32 {sA}, {sA}, {0xC0000 + 4096 - 8192}\nv_lshl_add_u32 v2, v1, 4, {sA}")
        a("s_waitcnt lgkmcnt(0)")
        if self.ksplit:
            a("s_load_dwordx8 s[20:27], s[0:1], 64")
        self.stamp(1)
        for t in range(8):
            if t == self.nkpre and self.b0:
                a("s_barrier")
            if t == self.nk0:
                if self.presetup:
                    a("s_branch L_setup\nL_setupr:")
                if not self.kwin:
                    a("s_barrier")
            if self.kwin and t >= self.kwin:
                a(f"s_waitcnt vmcnt({self.kwin - 1})")
            if t == self.nk1:
                a("s_barrier\ns_barrier")
            a(f"global_load_dwordx4 {vr(K + 4 * t, 4)}, v2, {sK} offset:{1024 * t - 4096} {nt}")
        self.stamp(2)
        vload = lambda t: a(f"global_load_dwordx4 {vr(V + 4 * t, 4)}, v2, {sV} offset:{1024 * t - 4096} {nt}")
        if self.nv1:
            a(f"s_bitcmp0_b32 {sJ}, 1\ns_cbranch_scc1 L_vw\ns_barrier\ns_barrier")
            for t in range(self.nv1):
                vload(t)
            a("s_branch L_vr\nL_vw:")
            for t in range(self.nv1):
                vload(t)
            a("s_barrier\ns_barrier\nL_vr:")
        elif self.nk1 == 8 and not self.nva:
            a("s_barrier\ns_barrier")
        for t in range(self.nv1, 8):
            vload(t)
            if t + 1 == self.nva:
                a("s_barrier\ns_barrier")
        if self.layout in ("sc", "cs"):
            a("s_branch L_stream2")

    def idle_early(self):
        a = self.a
        a("L_idle:")
        if self.ksplit:
            a("s_load_dwordx8 s[20:27], s[0:1], 64")
        if self.prefetch:
            a(f"s_cmp_lg_u32 {sW}, {self.nwaves - 1}\ns_cbranch_scc1 L_nopf")
            a(f"s_getpc_b64 {sP}\nL_pc:\ns_sub_u32 s52, s52, L_pc-{KN}\ns_subb_u32 s53, s53, 0")
            a(f"s_lshr_b32 {sA}, s2, 3\ns_min_u32 {sA}, {sA}, (L_codeend-{KN})/1024\ns_lshl_b32 {sA}, {sA}, 10")
            a(f"v_lshl_add_u32 v3, v1, 4, {sA}\nglobal_load_dwordx4 {vr(124, 4)}, v3, {sP}")
            a("L_nopf:")
        if self.b0:
            a("s_barrier")
        a(f"s_waitcnt lgkmcnt(0)\ns_load_dword {sT}, {sWS}, 0")
        if self.vtlb:
            a(f"s_lshr_b32 {sA}, {sJ}, 2\ns_lshl_b32 {sA}, {sA}, 25\ns_lshl_b32 {sB}, {sH}, 20\ns_add_u32 {sA}, {sA}, {sB}\ns_add_u32 {sA}, {sA}, 0xBFF00")
            a(f"v_mov_b32 v3, {sA}\ns_mov_b64 exec, 1\nglobal_load_dword v4, v3, {sV} nt\ns_mov_b64 exec, -1")
        a(f"s_getreg_b32 {sC}, hwreg(HW_REG_XCC_ID, 0, 4)\ns_lshl_b32 {sA}, {sXCD}, 7\ns_lshr_b32 {sB}, s2, 3\ns_lshl_b32 {sB}, {sB}, 2\ns_add_u32 {sA}, {sA}, {sB}")
        a(f"s_add_u32 {sA}, {sA}, {WS_XT}\nv_mov_b32 v2, {sA}\ns_waitcnt lgkmcnt(0)\ns_cmp_lg_u32 {sW}, {self.nwaves - 1}\ns_cbranch_scc1 L_noxt")
        a(f"s_add_u32 {sA}, {sT}, {TAGC}\ns_and_b32 {sA}, {sA}, 0xffffff00\ns_or_b32 {sA}, {sA}, {sC}\nv_mov_b32 v3, {sA}")
        a(f"s_mov_b64 exec, 1\nglobal_store_dword v2, v3, {sWS} sc1\ns_mov_b64 exec, -1\nL_noxt:")
        a(("s_barrier\n" if self.kwin else "s_barrier\ns_barrier\n") + "s_barrier\ns_branch L_idle1")

    def stream_setup(self):
        a = self.a
        P, T, SEL, MK, ADR = 72, 80, 88, 100, 101
        if self.ksplit:
            a("s_waitcnt lgkmcnt(0)")
        a(f"s_load_dword {sT}, {sWS}, 0")
        sw = self.sw
        a(f"s_sub_u32 {sw}, {sW}, 1")
        self.selectors(SEL, T, 4, bits=3)
        a("v_and_b32 v3, 15, v1\nv_lshlrev_b32 v3, 4, v3")
        a(f"s_mov_b32 {sK1}, 0x3db504f3\ns_mov_b32 {sK2}, 0x3fb8aa3b")
        a(f"v_bfe_u32 {vr(ADR)}, v1, 4, 1\nv_lshlrev_b32 {vr(ADR)}, 6, {vr(ADR)}\nv_lshl_add_u32 {vr(ADR)}, v3, 3, {vr(ADR)}")
        a(f"s_lshl_b32 {sA}, {sH}, 12\ns_lshr_b32 {sB}, {sJ}, 2\ns_lshl_b32 {sB}, {sB}, 11\ns_add_u32 {sA}, {sA}, {sB}")
        a(f"s_and_b32 {sB}, {sJ}, 3\ns_lshl_b32 {sB}, {sB}, 4\ns_add_u32 {sA}, {sA}, {sB}\ns_add_u32 {sA}, {sA}, {WS_OP}\nv_add_u32 {vr(ADR)}, {sA}, {vr(ADR)}")
        a(f"s_lshl_b32 {sA}, {sH}, 7\ns_lshl_b32 {sB}, {sJ}, 4\ns_add_u32 {sA}, {sA}, {sB}\ns_add_u32 {sA}, {sA}, {WS_ML}\nv_mov_b32 {vr(T)}, {sA}")
        a(f"v_cmp_lt_u32 {sM0}, 31, v1\nv_mov_b32 {vr(MK)}, 0xffffff00\nv_cndmask_b32 {vr(ADR)}, {vr(ADR)}, {vr(T)}, {sM0}")
        for t in range(8):
            a(f"v_mov_b32 {vr(P + t)}, 0")

    def stream(self):
        a = self.a
        K, V, Q, P, T, SEL, D = 4, 36, 68, 72, 80, 88, 96
        MK, ADR, MREG, FAC = 100, 101, 102, 104
        if self.presetup:
            a("L_setup:")
            self.stream_setup()
            a("s_branch L_setupr")
        a('; ---- waves 1..8: scores (bf16 roundings as in the reference), wave-local softmax, workgroup max and sum, PV, combine, publish.')
        a("L_stream2:")
        self.lds_inc(L_VCNT, T, T + 1)
        self.stamp(3)
        sw = self.sw
        if not self.presetup:
            self.stream_setup()
        qread = lambda: a(f"ds_read_b128 {vr(Q, 4)}, v3 offset:{L_Q}")
        self.lds_wait(L_QF, 1, T, T + 1, extra=qread if self.comb else None)
        self.stamp(4)
        if not self.comb:
            qread()
        a(f"s_mov_b32 {sLOC}, {sA}")
        self.tag_consts()
        a("s_waitcnt vmcnt(8) lgkmcnt(0)")
        for i in range(4):
            for t in range(8):
                a(f"v_dot2c_f32_bf16 {vr(P + t)}, {vr(K + 4 * t + i)}, {vr(Q + i)}")
        for u in range(4):
            a(f"v_add_f32_dpp {vr(P + u)}, {vr(P + u)}, {vr(P + u)} row_ror:8 row_mask:0xf bank_mask:0x3")
        for u in range(4):
            a(f"v_add_f32_dpp {vr(P + u)}, {vr(P + u + 4)}, {vr(P + u + 4)} row_ror:8 row_mask:0xf bank_mask:0xc")
        for u in range(2):
            a(f"v_add_f32_dpp {vr(P + u)}, {vr(P + u)}, {vr(P + u)} row_shl:4 row_mask:0xf bank_mask:0x5")
        for u in range(2):
            a(f"v_add_f32_dpp {vr(P + u)}, {vr(P + u + 2)}, {vr(P + u + 2)} row_shr:4 row_mask:0xf bank_mask:0xa")
        self.dppred("v_add_f32", [P, P + 1], ("quad_perm:[1,0,3,2]", "quad_perm:[2,3,0,1]"))
        self.bf16r(P, P)
        self.bf16r(P + 1, P + 1)
        a(f"v_mul_f32 {vr(P)}, {sK1}, {vr(P)}\nv_mul_f32 {vr(P + 1)}, {sK1}, {vr(P + 1)}")
        self.bf16r(P, P)
        self.bf16r(P + 1, P + 1)
        a(f"v_max_f32 {vr(MREG)}, {vr(P)}, {vr(P + 1)}")
        self.dppred("v_max_f32", [MREG], ("row_ror:4", "row_ror:8"))
        self.redrows("v_max_f32", [MREG], T + 1)
        a(f"v_mul_f32 {vr(T)}, {sK2}, {vr(MREG)}")
        a(f"v_fma_f32 {vr(P)}, {vr(P)}, {sK2}, -{vr(T)}\nv_fma_f32 {vr(P + 1)}, {vr(P + 1)}, {sK2}, -{vr(T)}")
        a(f"v_exp_f32 {vr(P)}, {vr(P)}\nv_exp_f32 {vr(P + 1)}, {vr(P + 1)}")
        a(f"v_cvt_pk_bf16_f32 {vr(T)}, {vr(P)}, {vr(P + 1)}\nv_add_f32 {vr(P)}, {vr(P)}, {vr(P + 1)}")
        for u in range(4):
            a(f"v_mov_b32_dpp {vr(Q + u)}, {vr(T)} row_newbcast:{4 * u} {FULL}")
        self.dppred("v_add_f32", [P], ("row_ror:4", "row_ror:8"))
        self.redrows("v_add_f32", [P], P + 1)
        a(f"s_lshl_b32 {sA}, {sw}, 2\nv_mov_b32 {vr(T + 7)}, {sA}\nds_write2_b32 {vr(T + 7)}, {vr(MREG)}, {vr(P)} offset0:{L_MAX // 4} offset1:{L_SUM // 4}")
        self.lds_inc(L_MCNT, T, T + 1)
        self.stamp(5)
        for t in range(8):
            for m in range(4):
                a(f"v_perm_b32 {vr(K + 4 * t + m)}, {vr(Q + t // 2)}, {vr(Q + t // 2)}, {vr(SEL + 2 * m + (t & 1))}")
        a(f"v_and_b32 {vr(T + 2)}, 15, v1\nv_cmp_gt_u32 vcc, 12, {vr(T + 2)}\nv_min_u32 {vr(T + 2)}, 11, {vr(T + 2)}\nv_lshlrev_b32 {vr(T + 2)}, 2, {vr(T + 2)}")
        a(f"s_lshl_b32 {sB}, {sw}, 9\nv_lshl_add_u32 v3, v1, 4, {sB}")
        a(f"v_and_b32 {vr(T + 3)}, 31, v1\nv_lshlrev_b32 {vr(T + 3)}, 4, {vr(T + 3)}\nv_lshrrev_b32 {vr(T + 4)}, 5, v1\nv_mul_u32_u24 {vr(T + 4)}, {512 * self.nh}, {vr(T + 4)}\nv_add_u32 {vr(T + 3)}, {vr(T + 4)}, {vr(T + 3)}")
        a(f"s_sub_u32 {sC}, {sNACT}, 1")
        mread = lambda: a(f"ds_read2_b32 {vr(P + 2, 2)}, {vr(T + 2)} offset0:{L_MAX // 4} offset1:{L_SUM // 4}")
        self.lds_wait(L_MCNT, sNACT, T, T + 1, extra=mread if self.comb else None)
        if not self.comb:
            mread()
        a(f"v_mov_b32 {vr(T)}, {L_CNT}\nv_mov_b32 {vr(T + 1)}, 1\ns_waitcnt lgkmcnt(0)")
        a(f"v_cndmask_b32 {vr(P + 3)}, 0, {vr(P + 3)}, vcc\nv_mov_b32 {vr(Q)}, {vr(P + 2)}")
        self.dppred("v_max_f32", [Q], [f"row_ror:{r}" for r in (1, 2, 4, 8)])
        a(f"v_sub_f32 {vr(FAC)}, {vr(MREG)}, {vr(Q)}\nv_sub_f32 {vr(P + 2)}, {vr(P + 2)}, {vr(Q)}")
        a(f"v_mul_f32 {vr(FAC)}, {sK2}, {vr(FAC)}\nv_mul_f32 {vr(P + 2)}, {sK2}, {vr(P + 2)}")
        a(f"v_exp_f32 {vr(FAC)}, {vr(FAC)}\nv_exp_f32 {vr(P + 2)}, {vr(P + 2)}\nv_mov_b32 {vr(MREG)}, {vr(Q)}")
        a(f"v_mul_f32 {vr(MREG + 1)}, {vr(P + 2)}, {vr(P + 3)}\nv_mov_b32 {vr(FAC + 1)}, {vr(FAC)}")
        self.dppred("v_add_f32", [MREG + 1], [f"row_ror:{r}" for r in (1, 2, 4, 8)])
        self.stamp(6)
        if self.prio:
            a("s_setprio 2")
        for t in range(8):
            a(f"s_waitcnt vmcnt({7 - t})")
            a(f"v_mfma_f32_16x16x32_bf16 {vr(D, 4)}, {vr(K + 4 * t, 4)}, {vr(V + 4 * t, 4)}, {vr(D, 4) if t else 0}")
        self.stamp(7)
        a("s_mov_b32 exec_hi, 0")
        a(f"v_pk_mul_f32 {vr(D, 2)}, {vr(D, 2)}, {vr(FAC, 2)}\nv_pk_mul_f32 {vr(D + 2, 2)}, {vr(D + 2, 2)}, {vr(FAC, 2)}")
        a(f"ds_write_b128 v3, {vr(D, 4)} offset:{L_OP}")
        a("s_mov_b32 exec_lo, 1")
        a(f"ds_add_rtn_u32 {vr(T + 5)}, {vr(T)}, {vr(T + 1)}")

        def preads():
            for n in range(self.nh):
                a(f"ds_read_b128 {vr(K + 4 * n, 4)}, {vr(T + 3)} offset:{L_OP + 512 * n}")
            a(f"ds_read_b32 {vr(T + 6)}, {vr(T)} offset:{L_LOC - L_CNT}")
        if self.spec:
            a("; the reads follow this wave's arrival count in LDS order, so the last arriver finds every partial in them")
            a("s_mov_b64 exec, -1")
            preads()
            a(f"s_waitcnt lgkmcnt(0)\nv_readlane_b32 {sA}, {vr(T + 5)}, 0\nv_readfirstlane_b32 {sLOC}, {vr(T + 6)}")
            a(f"s_cmp_lg_u32 {sA}, {sC}\ns_cbranch_scc1 L_role")
        else:
            a("s_waitcnt lgkmcnt(0)")
            a(f"v_readfirstlane_b32 {sA}, {vr(T + 5)}\ns_mov_b64 exec, -1")
            a(f"s_cmp_lg_u32 {sA}, {sC}\ns_cbranch_scc1 L_role")
            preads()
            a(f"s_waitcnt lgkmcnt(0)\nv_readfirstlane_b32 {sLOC}, {vr(T + 6)}")
        pk = lambda d, x: a(f"v_pk_add_f32 {vr(d, 2)}, {vr(d, 2)}, {vr(x, 2)}")
        for i in (0, 2):
            pk(K + i, K + 4 + i)
            pk(K + 8 + i, K + 12 + i)
        for i in (0, 2):
            if self.nh == 6:
                pk(K + 16 + i, K + 20 + i)
            pk(K + i, K + 8 + i)
        for i in (0, 2) if self.nh > 4 else ():
            pk(K + i, K + 16 + i)
        for i in range(4):
            a(f"v_permlane32_swap_b32 {vr(K + i)}, {vr(K + 4 + i)}")
        for i in (0, 2):
            pk(K + i, K + 4 + i)
        a(f"v_cndmask_b32 {vr(K)}, {vr(K)}, {vr(MREG)}, {sM0}\nv_cndmask_b32 {vr(K + 1)}, {vr(K + 1)}, {vr(MREG + 1)}, {sM0}")
        if self.xts:
            a(f"s_cmp_eq_u32 {sLOC}, 3")
            if self.diag and "loc" in self.stamps:
                a(f"s_or_b32 s{self.slot(13)}, {sLOC}, 4\ns_cmp_eq_u32 {sLOC}, 3")
        self.tag4(K, MK)
        a("s_mov_b32 exec_hi, 1\ns_cbranch_scc1 L_publoc")
        a(f"global_store_dwordx4 {vr(ADR)}, {vr(K, 4)}, {sWS} sc1\ns_branch L_pubdone")
        a(f"L_publoc:\nglobal_store_dwordx4 {vr(ADR)}, {vr(K, 4)}, {sWS}")
        a("L_pubdone:\ns_mov_b32 exec_hi, -1")
        a(f"ds_write_b32 {vr(T)}, {vr(T + 1)} offset:{L_PUB - L_CNT}")
        self.stamp(8)
        a(f"L_role:\n" + ("s_setprio 0\n" if self.prio else "") + f"s_cmp_gt_u32 {sw}, 8\ns_cbranch_scc1 L_none")
        self.role("L_wo", "L_none", "L_ffn", "L_none")
        a(f"L_idle1:\ns_mov_b32 {sK2}, 0x3fb8aa3b\nv_mov_b32 {vr(MK)}, 0xffffff00")
        self.tag_consts()
        if self.idledma:
            a(f"s_cmp_lg_u32 {sW}, {self.nwn}\ns_cbranch_scc1 L_idle2")
            self.role("L_cwo", "L_none", "L_none", "L_none")
            a("L_idle2:")
        if self.nb:
            a(f"s_cmp_lg_u32 {sW}, {self.nwaves - 1}\ns_cbranch_scc1 L_idle3")
            a(f"s_getreg_b32 {sC}, hwreg(HW_REG_XCC_ID, 0, 4)\ns_and_b32 {sA}, {sT}, 0xffffff00\ns_or_b32 {sC}, {sC}, {sA}")
            a(f"s_lshl_b32 {sA}, {sXCD}, 7\ns_add_u32 {sA}, {sA}, {WS_XT}\nv_and_b32 v5, 31, v1\nv_lshl_add_u32 v5, v5, 2, {sA}")
            a(f"s_lshl_b32 {sA}, {sH}, 13\ns_lshr_b32 {sB}, {sJ}, 2\ns_lshl_b32 {sB}, {sB}, 12\ns_add_u32 {sA}, {sA}, {sB}\ns_add_u32 {sA}, {sA}, {WS_QP}\nv_lshl_add_u32 v4, v1, 4, {sA}")
            self.lds_wait(L_VCNT, self.nb, T, T + 1)
            a(f"ds_read_b32 {vr(T + 1)}, {vr(T)} offset:{L_QF - L_VCNT}\ns_waitcnt lgkmcnt(0)\nv_readfirstlane_b32 {sA}, {vr(T + 1)}\ns_mov_b32 {sSPIN}, 0")
            a(f"s_cmp_eq_u32 {sA}, 0\ns_cbranch_scc1 {self.qpoll}\nL_idle3:")
        a(f"s_sub_u32 {sw}, {sW}, 1")
        if self.xts and self.local:
            a(f"s_cmp_lg_u32 {sw}, {self.nwaves - 2}\ns_cbranch_scc1 L_xt2")
            if "mixloc" in self.exp:
                a(f"s_bitcmp1_b32 {sJ}, 0\ns_cbranch_scc1 L_xt2")
            self.lds_wait(L_QF, 1, T, T + 1)
            a(f"s_cmp_eq_u32 {sA}, 3\ns_cbranch_scc1 L_xt2")
            a(f"s_getreg_b32 {sC}, hwreg(HW_REG_XCC_ID, 0, 4)\ns_and_b32 {sA}, {sT}, 0xffffff00\ns_or_b32 {sC}, {sC}, {sA}")
            a(f"s_lshl_b32 {sA}, {sXCD}, 7\ns_add_u32 {sA}, {sA}, {WS_XT}\nv_and_b32 v2, 31, v1\nv_lshl_add_u32 v2, v2, 2, {sA}")
            a(f"v_mov_b32 {vr(T)}, {L_PUB}\ns_mov_b32 {sSPIN}, 0\nL_xt0:\nglobal_load_dword v3, v2, {sWS} sc1")
            a(f"s_add_u32 {sSPIN}, {sSPIN}, 1\ns_cmp_gt_u32 {sSPIN}, {SPIN}\ns_cbranch_scc1 L_bail\ns_waitcnt vmcnt(0)")
            a(f"v_cmp_ne_u32 vcc, {sC}, v3\ns_cbranch_vccz L_xt1\nds_read_b32 {vr(T + 1)}, {vr(T)}\ns_waitcnt lgkmcnt(0)")
            a(f"v_readfirstlane_b32 {sA}, {vr(T + 1)}\ns_cmp_lg_u32 {sA}, 0\ns_cbranch_scc1 L_xt2\ns_branch L_xt0")
            a(f"L_xt1:\nv_mov_b32 {vr(T + 1)}, 3\nds_write_b32 {vr(T)}, {vr(T + 1)} offset:{L_LOC - L_PUB}\nL_xt2:")
        self.lds_wait(L_PUB, 1, T, T + 1)
        a("s_branch L_role")

    def role_wo(self):
        a = self.a
        sw = self.sw
        MK = 100
        B, D, O, ML, X, T, AO, AM, AW, AR, AY = 4, 20, 36, 44, 48, 52, 60, 61, 62, 63, 64
        a('; ---- output projection: combine the four key splits of one head half per wave, multiply by the staged wo block, publish y.')
        a(f"L_wo:\ns_cmp_eq_u32 {sw}, 8\ns_cbranch_scc1 L_none")
        a(f"v_lshrrev_b32 v2, 4, v1\nv_bfe_u32 {vr(T)}, v1, 3, 1\nv_and_b32 {vr(T + 1)}, 3, v1\nv_bfe_u32 {vr(T + 2)}, v1, 4, 1\nv_lshrrev_b32 {vr(T + 3)}, 5, v1")
        a(f"s_lshl_b32 {sA}, {sw}, 2\nv_add_u32 v3, {sA}, {vr(T + 2)}\nv_mul_u32_u24 v3, {GUP}, v3\nv_lshl_add_u32 v3, {vr(T + 3)}, 9, v3")
        a(f"v_bfe_u32 {vr(T + 4)}, v1, 2, 2\nv_lshl_add_u32 v3, {vr(T + 4)}, 6, v3\nv_lshl_add_u32 v3, {vr(T + 1)}, 3, v3")
        a(f"s_lshl_b32 {sA}, {sXCD}, 2\ns_lshr_b32 {sB}, {sw}, 1\ns_add_u32 {sA}, {sA}, {sB}")
        a(f"s_lshl_b32 {sB}, {sA}, 7\ns_add_u32 {sB}, {sB}, {WS_ML}\nv_lshl_add_u32 {vr(AM)}, {vr(T)}, 2, {vr(T + 1)}\nv_lshl_add_u32 {vr(AM)}, {vr(AM)}, 4, {sB}")
        a(f"s_lshl_b32 {sA}, {sA}, 12\ns_and_b32 {sB}, {sw}, 1\ns_lshl_b32 {sB}, {sB}, 10\ns_add_u32 {sA}, {sA}, {sB}\ns_add_u32 {sA}, {sA}, {WS_OP}")
        a(f"v_bfe_u32 {vr(AO)}, v1, 2, 1\nv_lshl_add_u32 {vr(AO)}, {vr(AO)}, 1, {vr(T + 2)}\nv_lshl_add_u32 {vr(AO)}, {vr(AO)}, 1, {vr(T + 3)}\nv_lshlrev_b32 {vr(AO)}, 7, {vr(AO)}")
        a(f"v_lshl_add_u32 {vr(AO)}, {vr(T)}, 11, {vr(AO)}\nv_lshl_add_u32 {vr(AO)}, {vr(T + 1)}, 4, {vr(AO)}\nv_add_u32 {vr(AO)}, {sA}, {vr(AO)}")
        a(f"v_and_b32 {vr(AR)}, 15, v1\nv_lshlrev_b32 {vr(AW)}, 2, {vr(AR)}\nv_lshl_add_u32 {vr(AW)}, {vr(T + 3)}, 7, {vr(AW)}\nv_lshl_add_u32 {vr(AW)}, {vr(T + 2)}, 8, {vr(AW)}")
        a(f"s_lshl_b32 {sA}, {sw}, 9\ns_add_u32 {sA}, {sA}, {L_RED}\nv_add_u32 {vr(AW)}, {sA}, {vr(AW)}")
        a(f"v_lshlrev_b32 {vr(AR)}, 4, {vr(AR)}\nv_lshl_add_u32 {vr(AR)}, v2, 10, {vr(AR)}")
        a(f"s_lshl_b32 {sA}, {sXCD}, 11\ns_lshl_b32 {sB}, {sF}, 7\ns_add_u32 {sA}, {sA}, {sB}\ns_add_u32 {sA}, {sA}, {WS_YP}")
        a(f"v_and_b32 {vr(AY)}, 7, v1\nv_lshl_add_u32 {vr(AY)}, {vr(AY)}, 4, {sA}\nv_lshl_add_u32 {vr(AY)}, {vr(T)}, 14, {vr(AY)}")
        a(f"v_cmp_eq_u32 {sM1}, 1, {vr(T + 2)}\nv_mov_b32 {vr(AY + 1)}, {L_WCNT}\nv_mov_b32 {vr(AY + 2)}, 1")

        if self.wflag:
            a(f"s_lshl_b32 {sA}, {sXCD}, 9\ns_lshl_b32 {sB}, {sF}, 5\ns_add_u32 {sA}, {sA}, {sB}\ns_lshl_b32 {sB}, {sw}, 2\ns_add_u32 {sA}, {sA}, {sB}")
            a(f"s_add_u32 {sA}, {sA}, {WS_WT}\nv_mov_b32 {vr(AY + 3)}, {sA}\nv_mov_b32 {vr(AY + 4)}, {sT}")

        def report(tag):
            a("; progress word for the monitor of this group")
            a(f"s_cmp_eq_u32 {sLOC}, 3\ns_cbranch_scc1 L_wr{tag}\nglobal_store_dword {vr(AY + 3)}, {vr(AY + 4)}, {sWS} sc1\ns_branch L_wq{tag}")
            a(f"L_wr{tag}:\nglobal_store_dword {vr(AY + 3)}, {vr(AY + 4)}, {sWS}\nL_wq{tag}:")

        def mlload():
            a(f"global_load_dwordx4 {vr(ML, 4)}, {vr(AM)}, {sWS} sc1")

        def weights():
            a(f"v_and_b32 {vr(ML)}, {vr(MK)}, {vr(ML)}\nv_and_b32 {vr(ML + 1)}, {vr(MK)}, {vr(ML + 1)}")
            a(f"v_max_f32_dpp {vr(ML + 2)}, {vr(ML)}, {vr(ML)} quad_perm:[1,0,3,2] {FULL}")
            a(f"v_max_f32_dpp {vr(ML + 2)}, {vr(ML + 2)}, {vr(ML + 2)} quad_perm:[2,3,0,1] {FULL}")
            a(f"v_sub_f32 {vr(ML)}, {vr(ML)}, {vr(ML + 2)}\nv_mul_f32 {vr(ML)}, {sK2}, {vr(ML)}\nv_exp_f32 {vr(ML)}, {vr(ML)}")
            a(f"v_mul_f32 {vr(ML + 1)}, {vr(ML + 1)}, {vr(ML)}")
            self.dppred("v_add_f32", [ML + 1], ("quad_perm:[1,0,3,2]", "quad_perm:[2,3,0,1]"))
            a(f"v_rcp_f32 {vr(ML + 1)}, {vr(ML + 1)}\nv_mul_f32 {vr(ML)}, {vr(ML)}, {vr(ML + 1)}")

        def wreads():
            for t in range(2):
                for ct in range(2):
                    for hh in range(2):
                        a(f"ds_read_b64_tr_b16 {vr(B + 8 * t + 4 * ct + 2 * hh, 2)}, v3 offset:{L_W + t * 2 * GUP + hh * 256 + ct * 32}")

        def frags():
            self.lds_wait(L_DMA, 1, T + 6, T + 7, tight=True, extra=wreads if self.comb else None)
            a(f"s_mov_b32 {sSPIN}, 0")
            self.stamp(9)
            if not self.comb:
                wreads()

        def oloads():
            a(f"global_load_dwordx4 {vr(O, 4)}, {vr(AO)}, {sWS} sc1\nglobal_load_dwordx4 {vr(O + 4, 4)}, {vr(AO)}, {sWS} offset:64 sc1")
        if self.tog > 8:
            self.poll(mlload, lambda: self.chk(T, [ML]))
            if self.prio:
                a("s_setprio 2")
            self.stamp(10)
            if self.wflag == "A":
                report("a")

            def under():
                L = self.cur_poll
                if self.wflag == "C":
                    report("c")
                weights()
                if self.wflag == "E":
                    report("e")
                frags()
                if self.wflag == "D":
                    report("d")
                if self.wflag in ("C", "D", "E"):
                    a(f"s_waitcnt vmcnt(1)\ns_branch {L}c")
                    return True
            self.poll(oloads, lambda: self.chk(T, [O, O + 4]), between=under)
            if self.wflag == "B":
                report("b")
        else:
            def trreads():
                for t in range(2):
                    for ct in range(2):
                        for hh in range(2):
                            a(f"ds_read_b64_tr_b16 {vr(B + 8 * t + 4 * ct + 2 * hh, 2)}, v3 offset:{L_W + t * 2 * GUP + hh * 256 + ct * 32}")

            def look(tag):
                a(f"ds_read_b32 {vr(T + 7)}, {vr(T + 6)}\ns_waitcnt lgkmcnt(0)\nv_readfirstlane_b32 {sA}, {vr(T + 7)}\ns_andn2_b32 {sA}, {sA}, {sRD}\ns_cbranch_scc0 L_wl{tag}\ns_mov_b32 {sRD}, 1")
                trreads()
                a(f"L_wl{tag}:")
            a(f"v_mov_b32 {vr(T + 6)}, {L_DMA}\ns_mov_b32 {sRD}, 0")

            def few():
                self.chk(T, [ML])
                a(f"s_and_b32 {sA}, vcc_lo, 0x0f0f\ns_bcnt1_i32_b32 {sA}, {sA}\ns_cmp_gt_u32 {sA}, {8 - self.tog}\ns_cselect_b64 vcc, -1, 0")
            self.poll(lambda: (mlload(), look("a")), few)
            if self.prio:
                a("s_setprio 2")
            self.stamp(10)
            self.poll(lambda: (mlload(), oloads(), look("b")), lambda: self.chk(T, [ML, O, O + 4]))
            a(f"s_cmp_lg_u32 {sRD}, 0\ns_cbranch_scc1 L_wrd")
            frags()
            a("L_wrd:")
            weights()
        self.stamp(11)
        self.count(1)
        for i in range(8):
            a(f"v_and_b32 {vr(O + i)}, {vr(MK)}, {vr(O + i)}")
        for i in range(0, 8, 2):
            a(f"v_pk_mul_f32 {vr(O + i, 2)}, {vr(O + i, 2)}, {vr(ML, 2)} op_sel_hi:[1,0]")
        self.dppred("v_add_f32", range(O, O + 8), ("quad_perm:[1,0,3,2]", "quad_perm:[2,3,0,1]"))
        for u in range(4):
            a(f"v_cvt_pk_bf16_f32 {vr(X + u)}, {vr(O + 2 * u)}, {vr(O + 2 * u + 1)}")
        a("s_waitcnt lgkmcnt(0)")
        for ct in range(2):
            for t in range(2):
                a(f"v_mfma_f32_16x16x32_bf16 {vr(D + 8 * ct + 4 * t, 4)}, {vr(X, 4)}, {vr(B + 8 * t + 4 * ct, 4)}, 0")
        for ct in range(2):
            a(f"v_cndmask_b32 {vr(O + ct)}, {vr(D + 8 * ct)}, {vr(D + 8 * ct + 4)}, {sM1}")
        a(f"ds_write2_b32 {vr(AW)}, {vr(O)}, {vr(O + 1)} offset0:0 offset1:16")
        if self.spec:
            a(f"s_mov_b64 exec, 1\nds_add_rtn_u32 {vr(O + 2)}, {vr(AY + 1)}, {vr(AY + 2)}\ns_mov_b64 exec, -1")
        else:
            a(f"s_waitcnt lgkmcnt(0)\ns_barrier\ns_cmp_lg_u32 {sw}, 0\ns_cbranch_scc1 L_none")
        for n in range(4):
            a(f"ds_read_b128 {vr(B + 4 * n, 4)}, {vr(AR)} offset:{L_RED + 256 * n}")
        a("s_waitcnt lgkmcnt(0)")
        if self.spec:
            a(f"v_readlane_b32 {sA}, {vr(O + 2)}, 0\ns_cmp_lg_u32 {sA}, 7\ns_cbranch_scc1 L_none")
        for i in (0, 2):
            a(f"v_pk_add_f32 {vr(B + i, 2)}, {vr(B + i, 2)}, {vr(B + 4 + i, 2)}\nv_pk_add_f32 {vr(B + 8 + i, 2)}, {vr(B + 8 + i, 2)}, {vr(B + 12 + i, 2)}")
        for i in (0, 2):
            a(f"v_pk_add_f32 {vr(B + i, 2)}, {vr(B + i, 2)}, {vr(B + 8 + i, 2)}")
        for swp in ("v_permlane32_swap_b32", "v_permlane16_swap_b32"):
            for i in range(4):
                a(f"{swp} {vr(B + i)}, {vr(B + 4 + i)}")
            for i in (0, 2):
                a(f"v_pk_add_f32 {vr(B + i, 2)}, {vr(B + i, 2)}, {vr(B + 4 + i, 2)}")
        self.tag4(B, MK)
        a("s_mov_b64 exec, 0xffff")
        a(f"global_store_dwordx4 {vr(AY)}, {vr(B, 4)}, {sWS} sc1")
        self.stamp(12)
        self.end()

    def role_ffn(self):
        a = self.a
        sw = self.sw
        BG, BD, F, D, ST, XF = 4, 68, 84, 116, 120, 126
        MK, AY, XR, ADR, AH, AHN, AS, ASW, AA, AAW, AAR, AF, FM, AO, HV = 128, 130, 132, 134, 135, 136, 137, 138, 139, 140, 141, 142, 144, 145, 146
        HNS = 1088
        a('; ---- FFN workgroup. Wave 9 watches the group announcements through the scalar path and releases the y gather.')
        a(f"L_ffn:\ns_cmp_lg_u32 {sw}, 8\ns_cbranch_scc1 L_ffn1")
        a(f"v_mov_b32 v2, {L_HINT}\ns_mov_b32 {sC}, 0")
        if self.hint:
            a(f"s_lshr_b32 {sA}, {sF}, {self.hsh}\ns_lshl_b32 {sA}, {sA}, 7\ns_add_u32 {sA}, {sA}, {WS_HT}\ns_add_u32 s52, s26, {sA}\ns_addc_u32 s53, s27, 0\ns_mov_b32 s98, {sT}\ns_mov_b32 s99, {sT}")
            if self.hdepth:
                a(f"s_not_b32 {sB}, {sT}")
                for i in range(8):
                    a(f"s_mov_b32 s{56 + i}, {sB}")

            def hcheck():
                a(f"s_mov_b32 {sA}, 0")
                for i in range(4):
                    a(f"s_cmp_eq_u64 s[{56 + 2 * i}:{57 + 2 * i}], {sTT}\ns_cselect_b32 {sB}, {1 << i}, 0\ns_or_b32 {sA}, {sA}, {sB}")
                if self.incr:
                    a(f"s_cmp_eq_u32 {sA}, {sC}\ns_cbranch_scc1 L_fh0\nv_mov_b32 v3, {sA}\ns_mov_b32 {sC}, {sA}\nds_write_b32 v2, v3\nL_fh0:")
                if self.hslow:
                    a(f"s_bcnt1_i32_b32 {sB}, {sA}\ns_cmp_ge_u32 {sB}, 2\ns_cbranch_scc1 L_fh1\ns_sleep {self.hslow}\nL_fh1:")
                a(f"s_cmp_lg_u32 {sA}, 15")
            self.spoll(lambda: a((f"s_sleep {self.hsleep}\n" if self.hsleep else "") + f"s_load_dwordx8 s[56:63], {sP}, 0 glc"), hcheck, keep=self.hdepth)
        if not (self.hint and self.incr):
            a("v_mov_b32 v3, 15\nds_write_b32 v2, v3")
        self.stamp(2)
        if self.barx:
            a("s_barrier")
        self.end()
        a('; waves 1..8: gather y, h = x + attn, LayerNorm statistics, gate/up, GELU, down, publish; groups 0..31 then reduce 32 outputs each.')
        a("L_ffn1:")
        g, b3, q4, r2, hi, b4 = F, F + 1, F + 2, F + 3, F + 4, F + 5
        a(f"v_mov_b32 {vr(MK)}, 0xffffff00")
        a(f"v_lshrrev_b32 {vr(g)}, 4, v1\nv_bfe_u32 {vr(b3)}, v1, 3, 1\nv_and_b32 {vr(q4)}, 3, v1\nv_bfe_u32 {vr(r2)}, v1, 2, 2\nv_lshrrev_b32 {vr(hi)}, 5, v1\nv_bfe_u32 {vr(b4)}, v1, 4, 1")
        a(f"s_lshl_b32 {sA}, {sw}, 4\nv_and_b32 v3, 15, v1\nv_add_u32 v3, {sA}, v3")
        a(f"v_lshlrev_b32 {vr(AHN)}, 3, v3\nv_lshl_add_u32 {vr(AHN)}, {vr(b4)}, 2, {vr(AHN)}\nv_lshl_add_u32 {vr(AH)}, {vr(hi)}, 10, {vr(AHN)}")
        a(f"global_load_dword {vr(XR)}, {vr(AH)}, {sX}")
        a(f"v_mul_u32_u24 v2, {HNS}, {vr(hi)}\nv_add_u32 {vr(AHN)}, v2, {vr(AHN)}")
        a(f"v_lshlrev_b32 {vr(AY)}, 4, v3\nv_lshl_add_u32 {vr(AY)}, {vr(hi)}, 14, {vr(AY)}\nv_lshl_add_u32 {vr(AY)}, {vr(b4)}, 11, {vr(AY)}\nv_bfe_u32 v3, v1, 2, 1")
        a(f"v_add_u32 {vr(AY + 1)}, {WS_YP + 12288}, {vr(AY)}\nv_add_u32 {vr(AY)}, {WS_YP + 4096}, {vr(AY)}")
        a(f"s_lshl_b32 {sA}, {sw}, 3\nv_lshlrev_b32 {vr(AS)}, 6, {vr(hi)}\nv_add_u32 {vr(ASW)}, {sA}, {vr(AS)}")
        a(f"v_and_b32 {vr(AA)}, 1, v1\nv_mul_u32_u24 {vr(AA)}, {HNS}, {vr(AA)}\nv_lshl_add_u32 {vr(AA)}, {vr(b4)}, 5, {vr(AA)}\nv_lshl_add_u32 {vr(AA)}, {vr(hi)}, 4, {vr(AA)}")
        if self.fold:
            a(f"v_and_b32 v2, 2, v1\nv_cmp_ne_u32 vcc, 0, v2\nv_lshlrev_b32 v2, 5, {vr(b4)}\nv_lshl_add_u32 v2, {vr(hi)}, 4, v2")
            a(f"v_add_u32 {vr(AA)}, {L_HN}, {vr(AA)}\nv_add_u32 v2, {L_ONE}, v2\nv_cndmask_b32 {vr(AA)}, {vr(AA)}, v2, vcc\nv_lshlrev_b32 {vr(AS)}, 6, {vr(b4)}")
        a(f"v_lshlrev_b32 {vr(AAR)}, 6, v3\nv_lshl_add_u32 {vr(AAR)}, {vr(g)}, 4, {vr(AAR)}")
        a(f"v_and_b32 {vr(AAW)}, 7, v1\nv_lshlrev_b32 {vr(AAW)}, 1, {vr(AAW)}\nv_lshl_add_u32 {vr(AAW)}, {vr(b4)}, 6, {vr(AAW)}\ns_lshl_b32 {sA}, {sw}, 4\nv_add_u32 {vr(AAW)}, {sA}, {vr(AAW)}")
        a(f"s_lshl_b32 {sB}, {sw}, 1\nv_add_u32 {vr(ADR)}, {sB}, {vr(hi)}\nv_lshl_add_u32 {vr(ADR)}, {vr(ADR)}, 1, v3\nv_mul_u32_u24 {vr(ADR)}, {FP_STRIDE}, {vr(ADR)}")
        a(f"s_lshl_b32 {sB}, {sF}, 7\ns_add_u32 {sB}, {sB}, {WS_FP}\nv_lshl_add_u32 {vr(ADR)}, {vr(q4)}, 4, {vr(ADR)}\nv_lshl_add_u32 {vr(ADR)}, {vr(b4)}, 6, {vr(ADR)}\nv_add_u32 {vr(ADR)}, {sB}, {vr(ADR)}")
        a(f"v_bfe_u32 v2, v1, 1, 1\nv_mul_u32_u24 v2, {L_U - L_G}, v2\nv_mul_u32_u24 v3, {GUP}, {vr(b4)}\nv_add_u32 v2, v2, v3")
        a(f"v_lshl_add_u32 v2, {vr(hi)}, 9, v2\nv_lshl_add_u32 v2, {vr(r2)}, 6, v2\nv_and_b32 v3, 1, v1\nv_lshl_add_u32 v2, v3, 3, v2")
        a(f"s_and_b32 {sA}, {sw}, 3\ns_lshl_b32 {sA}, {sA}, 4\nv_add_u32 v2, {sA}, v2")
        a(f"v_lshl_add_u32 v3, {vr(g)}, 3, {vr(r2)}\nv_mul_u32_u24 v3, {ROWP}, v3\nv_lshl_add_u32 v3, {vr(q4)}, 5, v3\ns_lshl_b32 {sB}, {sw}, 7\ns_add_u32 {sB}, {sB}, {L_D}\nv_add_u32 v3, {sB}, v3")
        a(f"s_mul_i32 {sB}, {sF}, {FP_STRIDE}\ns_lshl_b32 {sC}, {sw}, 6\ns_add_u32 {sB}, {sB}, {sC}\ns_add_u32 {sB}, {sB}, {WS_FP}")
        a(f"v_lshrrev_b32 {vr(AF)}, 2, v1\nv_lshlrev_b32 {vr(AF)}, 7, {vr(AF)}\nv_lshl_add_u32 {vr(AF)}, {vr(q4)}, 4, {vr(AF)}\nv_add_u32 {vr(AF)}, {sB}, {vr(AF)}")
        a(f"v_cmp_gt_u32 vcc, 44, v1\nv_add_u32 {vr(AF + 1)}, 4096, {vr(AF)}\nv_cndmask_b32 {vr(AF + 1)}, {vr(AF)}, {vr(AF + 1)}, vcc\nv_cndmask_b32 {vr(FM)}, 0, {vr(MK)}, vcc")
        a(f"s_and_b32 {sB}, {sF}, 1\ns_lshl_b32 {sB}, {sB}, 9\ns_lshr_b32 {sC}, {sF}, 1\ns_lshl_b32 {sC}, {sC}, 5\ns_add_u32 {sB}, {sB}, {sC}\ns_lshl_b32 {sC}, {sw}, 4\ns_add_u32 {sB}, {sB}, {sC}")
        a(f"v_lshl_add_u32 {vr(AO)}, {vr(b4)}, 1, {vr(hi)}\nv_lshl_add_u32 {vr(AO)}, {vr(q4)}, 2, {vr(AO)}\nv_add_u32 {vr(AO)}, {sB}, {vr(AO)}\nv_lshlrev_b32 {vr(AO)}, 1, {vr(AO)}")
        a(f"s_and_b32 {sB}, {sF}, 1\ns_mul_i32 {sB}, {sB}, {HNS - 1024}\nv_add_u32 {vr(AH)}, {sB}, {vr(AO)}" if self.fold else "")
        a(f"v_cmp_eq_u32 {sM1}, 1, {vr(b4)}")
        a(f"s_mov_b32 {sK1}, 0x3d372713\ns_mov_b32 {sK3}, 0xc0135761")

        def load1(n):
            a(f"global_load_dwordx4 {vr(F + 4 * n, 4)}, {vr(AY + n // 2)}, {sWS} offset:{-4096 if n % 2 == 0 else 0} sc1")

        def loads():
            for n in range(4):
                load1(n)

        def mask1(n):
            for i in range(4):
                a(f"v_and_b32 {vr(F + 4 * n + i)}, {vr(MK)}, {vr(F + 4 * n + i)}")

        def bdreads():
            for n in range(4):
                for hh in range(2):
                    a(f"ds_read_b64_tr_b16 {vr(BD + 4 * n + 2 * hh, 2)}, v3 offset:{hh * 4 * ROWP + n * 8}")

        def bgreads():
            for t in range(16):
                for hh in range(2):
                    a(f"ds_read_b64_tr_b16 {vr(BG + 4 * t + 2 * hh, 2)}, v2 offset:{L_G + t * 2 * GUP + hh * 256}")

        def frags(tag):
            a(f"s_mov_b32 {sRD}, 1")
            bdreads()
            a(f"s_cmp_gt_u32 {sw}, 3\ns_cbranch_scc1 L_ffr{tag}")
            bgreads()
            a(f"L_ffr{tag}:")
        a(f"v_mov_b32 {vr(F + 16)}, {L_DMA}\ns_mov_b32 {sRD}, 0\ns_mov_b32 {sSPIN}, 0\ns_waitcnt vmcnt(0)")
        self.unpack(XF, XR, 1)
        a(f"s_mov_b32 {sC}, 0\nL_fw:\nds_read2_b32 {vr(F + 18, 2)}, {vr(F + 16)} offset0:0 offset1:1")
        a(f"s_add_u32 {sSPIN}, {sSPIN}, 1\ns_cmp_gt_u32 {sSPIN}, {SPIN * 8}\ns_cbranch_scc1 L_bail\ns_waitcnt lgkmcnt(0)")
        a(f"v_readfirstlane_b32 {sB}, {vr(F + 19)}\nv_readfirstlane_b32 {sA}, {vr(F + 18)}\ns_andn2_b32 {sD}, {sB}, {sC}\ns_cbranch_scc0 L_fw1")
        for n in range(4):
            a(f"s_bitcmp0_b32 {sD}, {n}\ns_cbranch_scc1 L_fl{n}")
            load1(n)
            a(f"L_fl{n}:")
        if self.barx:
            a(f"s_mov_b32 {sC}, {sB}\ns_bcnt1_i32_b32 {sD}, {sB}\ns_cmp_ge_u32 {sD}, {self.xth}\ns_cbranch_scc1 L_fgo\nL_fw1:")
        else:
            a(f"s_mov_b32 {sC}, {sB}\ns_cmp_eq_u32 {sB}, 15\ns_cbranch_scc1 L_fgo\nL_fw1:")
        a(f"s_andn2_b32 {sA}, {sA}, {sRD}\ns_cbranch_scc0 L_fw0")
        frags("a")
        a("L_fw0:\n" + ("" if self.tight else "s_sleep 1\n") + "s_branch L_fw\nL_fgo:")
        if self.barx:
            a(f"s_andn2_b32 {sA}, {sA}, {sRD}\ns_cbranch_scc0 L_fx")
            frags("c")
            a("L_fx:")
            if self.early:
                a("s_waitcnt vmcnt(0)")
                for n in range(4):
                    a(f"s_bitcmp0_b32 {sC}, {n}\ns_cbranch_scc1 L_fe{n}")
                    self.chk(F + 22, [F + 4 * n])
                    mask1(n)
                    a(f"s_cbranch_vccz L_fe{n}\ns_bitset0_b32 {sC}, {n}\nL_fe{n}:")
            a("s_barrier")
            for n in range(4):
                a(f"s_bitcmp1_b32 {sC}, {n}\ns_cbranch_scc1 L_fm{n}")
                load1(n)
                a(f"L_fm{n}:")
        self.stamp(9)

        def shadow():
            if self.barx:
                a(f"ds_read_b32 {vr(F + 18)}, {vr(F + 16)}")
            self.lds_inc(L_YISS, F + 20, F + 21)
            if self.barx:
                a(f"s_waitcnt lgkmcnt(0)\nv_readfirstlane_b32 {sA}, {vr(F + 18)}")
            a(f"s_mov_b32 {sSPIN}, 0\ns_andn2_b32 {sA}, {sA}, {sRD}\ns_cbranch_scc0 L_fnog")
            frags("b")
            a("L_fnog:")
        if self.early and self.barx:
            shadow()
            a(f"s_mov_b64 {sM0}, 0\ns_waitcnt vmcnt(0)")
            for n in range(4):
                a(f"s_bitcmp1_b32 {sC}, {n}\ns_cbranch_scc1 L_fn{n}")
                self.chk(F + 22, [F + 4 * n])
                mask1(n)
                a(f"s_or_b64 {sM0}, {sM0}, vcc\nL_fn{n}:")
            a(f"s_cmp_eq_u64 {sM0}, 0\ns_cbranch_scc1 L_fok")
            self.poll(loads, lambda: self.chk(F + 16, [F + 4 * n for n in range(4)]))
            for n in range(4):
                mask1(n)
            a("L_fok:")
        else:
            self.poll(loads, lambda: self.chk(F + 16, [F + 4 * n for n in range(4)]), between=shadow, first=False)
            for n in range(4):
                mask1(n)
        self.stamp(10)
        self.count(1)
        for i in (0, 2):
            a(f"v_pk_add_f32 {vr(F + i, 2)}, {vr(F + i, 2)}, {vr(F + 4 + i, 2)}\nv_pk_add_f32 {vr(F + 8 + i, 2)}, {vr(F + 8 + i, 2)}, {vr(F + 12 + i, 2)}")
        for i in (0, 2):
            a(f"v_pk_add_f32 {vr(F + i, 2)}, {vr(F + i, 2)}, {vr(F + 8 + i, 2)}")
        a(f"v_permlane16_swap_b32 {vr(F)}, {vr(F + 2)}\nv_permlane16_swap_b32 {vr(F + 1)}, {vr(F + 3)}")
        a(f"v_pk_add_f32 {vr(F, 2)}, {vr(F, 2)}, {vr(F + 2, 2)}")
        self.bf16r(F, F)
        self.bf16r(F + 1, F + 1)
        a(f"v_pk_add_f32 {vr(F + 2, 2)}, {vr(F, 2)}, {vr(XF, 2)}")
        self.bf16r(F, F + 2)
        self.bf16r(F + 1, F + 3)
        S = F + 6
        a(f"v_add_f32 {vr(S)}, {vr(F)}, {vr(F + 1)}\nv_mul_f32 {vr(S + 1)}, {vr(F)}, {vr(F)}\nv_fmac_f32 {vr(S + 1)}, {vr(F + 1)}, {vr(F + 1)}")
        a(f"v_cvt_pk_bf16_f32 {vr(F + 4)}, {vr(F + 2)}, {vr(F + 3)}")
        self.dppred("v_add_f32", [S, S + 1], [f"row_ror:{r}" for r in (1, 2, 4, 8)])
        a(f"ds_write_b32 {vr(AHN)}, {vr(F + 4)} offset:{L_HN}" if self.fold else f"ds_write_b32 {vr(AH)}, {vr(F + 4)} offset:{L_H}")
        for r in (S, S + 1):
            a(f"v_add_f32_dpp {vr(r)}, {vr(r)}, {vr(r)} row_bcast:15 row_mask:0xa bank_mask:0xf")
        a(f"s_mov_b32 exec_lo, 0x10000\ns_mov_b32 exec_hi, 0x10000\nds_write_b64 {vr(ASW)}, {vr(S, 2)} offset:{L_STAT}")
        a("s_mov_b64 exec, -1\ns_waitcnt lgkmcnt(0)\ns_barrier")
        self.stamp(11)

        def stats(R):
            sub = Gen.__new__(Gen)
            out = []
            sub.a = lambda t: out.extend(t.split("\n"))
            for n in range(4):
                sub.a(f"v_pk_add_f32 {vr(R + 4 * n, 2)}, {vr(R + 4 * n, 2)}, {vr(R + 2 + 4 * n, 2)}")
            sub.a(f"v_pk_add_f32 {vr(R, 2)}, {vr(R, 2)}, {vr(R + 4, 2)}\nv_pk_add_f32 {vr(R + 8, 2)}, {vr(R + 8, 2)}, {vr(R + 12, 2)}")
            sub.a(f"v_pk_add_f32 {vr(R, 2)}, {vr(R, 2)}, {vr(R + 8, 2)}")
            sub.a(f"v_mul_f32 {vr(R)}, 0x3b000000, {vr(R)}\nv_mul_f32 {vr(R + 1)}, 0x3b000000, {vr(R + 1)}")
            sub.a(f"v_fma_f32 {vr(R + 1)}, -{vr(R)}, {vr(R)}, {vr(R + 1)}\nv_max_f32 {vr(R + 1)}, 0, {vr(R + 1)}")
            sub.ln_finish(ST, R, R + 1)
            return out
        if not self.fold:
            for n in range(4):
                a(f"ds_read_b128 {vr(F + 8 + 4 * n, 4)}, {vr(AS)} offset:{L_STAT + 16 * n}")
            a(f"ds_read_u16 {vr(HV)}, {vr(AO)} offset:{L_H}")
            a("s_waitcnt lgkmcnt(0)")
            for x in stats(F + 8):
                a(x)
            self.ln_apply2(F, ST, XF, F + 4)
            a(f"ds_write_b32 {vr(AHN)}, {vr(XF)} offset:{L_HN}\ns_waitcnt lgkmcnt(0)\ns_barrier")

        def announce(tag):
            a(f"s_cmp_lg_u32 {sw}, 4\ns_cbranch_scc1 L_fan{tag}")
            a(f"s_lshl_b32 {sA}, {sF}, 2\ns_add_u32 {sA}, {sA}, {WS_FT}\nv_add_u32 {vr(BG)}, {sF}, v1\nv_and_b32 {vr(BG)}, {self.nrep - 1}, {vr(BG)}\nv_lshl_add_u32 {vr(BG)}, {vr(BG)}, 8, {sA}\nv_mov_b32 {vr(BG + 1)}, {sT}")
            for i in range(self.clag):
                a(f"ds_read_b32 {vr(BG + 2)}, {vr(AS)}\ns_waitcnt lgkmcnt(0)")
            a(f"s_bfm_b64 exec, {self.nrep}, 0\nglobal_store_dword {vr(BG)}, {vr(BG + 1)}, {sWS} sc1\ns_mov_b64 exec, -1\nL_fan{tag}:")
        a(f"s_cmp_lt_u32 {sw}, 4\ns_cbranch_scc1 L_fgu")
        if self.bump == "early":
            a(f"s_lshl_b32 {sA}, {sF}, 3\ns_add_u32 {sA}, {sA}, {sw}\ns_cmp_lg_u32 {sA}, 7\ns_cbranch_scc1 L_fnb")
            a(f"v_mov_b32 {vr(BG)}, 0\nv_mov_b32 {vr(BG + 1)}, {sT}\ns_mov_b64 exec, 1\nglobal_store_dword {vr(BG)}, {vr(BG + 1)}, {sWS} sc1\ns_mov_b64 exec, -1\nL_fnb:")
        if self.cpt == "hn":
            announce("a")
        a(f"s_branch L_fact\nL_fgu:\ns_cmp_lg_u32 {sRD}, 0\ns_cbranch_scc1 L_fgu2")
        bgreads()
        a("s_waitcnt lgkmcnt(0)\nL_fgu2:")
        hoff = 0 if self.fold else L_HN
        fill = []
        pre = 4 if self.fold and self.micro else 0
        for t in range(pre):
            a(f"ds_read_b128 {vr(F + 4 * t, 4)}, {vr(AA)} offset:{hoff + 64 * t}")
        if self.fold:
            SR = 144 + 4
            for n in range(3):
                a(f"ds_read_b128 {vr(SR + 4 * n, 4)}, {vr(AS)} offset:{L_STAT + 16 * n}")
            a(f"ds_read_b128 {vr(ST + 4, 4)}, {vr(AS)} offset:{L_STAT + 48}")
            fill = [x.replace(vr(SR + 12, 2), vr(ST + 4, 2)).replace(vr(SR + 14, 2), vr(ST + 6, 2)) for x in stats(SR)]
        for t in range(pre, 8):
            a(f"ds_read_b128 {vr(F + 4 * t, 4)}, {vr(AA)} offset:{hoff + 64 * t}")
        for t in range(16):
            a(f"s_waitcnt lgkmcnt({11 if t < pre else min(7, 15 - t)})")
            a(f"v_mfma_f32_16x16x32_bf16 {vr(D, 4)}, {vr(F + 4 * (t % 8), 4)}, {vr(BG + 4 * t, 4)}, {vr(D, 4) if t else 0}")
            if t < 8:
                a(f"ds_read_b128 {vr(F + 4 * t, 4)}, {vr(AA)} offset:{hoff + 64 * (t + 8)}")
            nf = (0 if t < pre else 2) if pre else (1 if t < 8 else 2)
            for x in fill[:nf]:
                a(x)
            fill = fill[nf:]
        assert not fill
        G = BG
        a(f"v_cndmask_b32 {vr(G)}, {vr(D)}, {vr(D + 1)}, {sM1}")
        if self.fold:
            a(f"v_fma_f32 {vr(G)}, -{vr(ST)}, {vr(D + 2)}, {vr(G)}\nv_mul_f32 {vr(G)}, {vr(G)}, {vr(ST + 4)}")
        self.bf16r(G, G)
        a(f"v_mul_f32 {vr(G + 2)}, {vr(G)}, {vr(G)}\nv_mul_f32 {vr(G + 3)}, {sK3}, {vr(G)}")
        a(f"v_mov_b32_dpp {vr(G + 1)}, {vr(G)} row_ror:8 {FULL}")
        a(f"v_fma_f32 {vr(G + 2)}, {vr(G + 2)}, {sK1}, 1.0")
        a(f"v_mul_f32 {vr(G + 2)}, {vr(G + 2)}, {vr(G + 3)}\nv_exp_f32 {vr(G + 2)}, {vr(G + 2)}\nv_add_f32 {vr(G + 2)}, 1.0, {vr(G + 2)}")
        a(f"v_rcp_f32 {vr(G + 2)}, {vr(G + 2)}\nv_mul_f32 {vr(G)}, {vr(G)}, {vr(G + 2)}")
        self.bf16r(G, G)
        a(f"v_mul_f32 {vr(G)}, {vr(G)}, {vr(G + 1)}\nv_cvt_pk_bf16_f32 {vr(G)}, {vr(G)}, {vr(G)}")
        a(f"s_mov_b64 exec, 0x00ff00ff\nds_write_b16 {vr(AAW)}, {vr(G)} offset:{L_ACT}\ns_mov_b64 exec, -1")
        a("L_fact:")
        if self.fold:
            a(f"ds_read_u16 {vr(HV)}, {vr(AH)} offset:{L_HN}")
        for i in range(16):
            a(f"v_mov_b32 {vr(F + i)}, 0")
        a("s_waitcnt lgkmcnt(0)\ns_barrier")
        self.stamp(12)
        if self.cpt == "act":
            announce("b")
        a(f"s_cmp_lg_u32 {sRD}, 0\ns_cbranch_scc1 L_fdn")
        bdreads()
        a("L_fdn:")
        for n in range(4):
            a(f"s_mov_b32 exec_lo, {0x11111111 << n:#x}\ns_mov_b32 exec_hi, {0x11111111 << n:#x}")
            a(f"ds_read_b128 {vr(F + 4 * n, 4)}, {vr(AAR)} offset:{L_ACT}")
        a(f"s_mov_b64 exec, -1\nv_lshlrev_b32 {vr(HV)}, 16, {vr(HV)}")
        a("s_waitcnt lgkmcnt(0)")
        for n in range(4):
            a(f"v_mfma_f32_16x16x32_bf16 {vr(D, 4)}, {vr(BD + 4 * n, 4)}, {vr(F + 4 * n, 4)}, {vr(D, 4) if n else 0}")
        a("s_mov_b32 exec_lo, 0x00ff00ff\ns_mov_b32 exec_hi, 0x00ff00ff")
        self.tag4(D, MK)
        a(f"global_store_dwordx4 {vr(ADR)}, {vr(D, 4)}, {sWS} sc1")
        self.stamp(13)
        a(f"s_mov_b64 exec, -1\ns_cmp_ge_u32 {sF}, 32\ns_cbranch_scc1 L_none\ns_cmp_ge_u32 {sw}, 2\ns_cbranch_scc1 L_none")
        if self.cpt in ("hn", "act"):
            a(f"s_and_b32 {sA}, {sF}, {self.nrep - 1}\ns_lshl_b32 {sA}, {sA}, 8\ns_add_u32 {sA}, {sA}, {WS_FT}\ns_add_u32 s52, s26, {sA}\ns_addc_u32 s53, s27, 0\ns_mov_b32 s98, {sT}\ns_mov_b32 s99, {sT}")

            def fcheck():
                pairs = list(range(4, 20, 2)) + list(range(64, 80, 2)) + list(range(56, 64, 2)) + [44]
                a(f"s_xor_b32 s46, s46, {sT}")
                for p in pairs:
                    a(f"s_xor_b64 s[{p}:{p + 1}], s[{p}:{p + 1}], {sTT}")
                a("s_or_b32 s4, s4, s46")
                for p in pairs[1:]:
                    a(f"s_or_b64 s[4:5], s[4:5], s[{p}:{p + 1}]")
            self.spoll(lambda: a(f"s_load_dwordx16 s[4:19], {sP}, 0 glc\ns_load_dwordx16 s[64:79], {sP}, 64 glc\ns_load_dwordx8 s[56:63], {sP}, 128 glc\ns_load_dwordx4 s[44:47], {sP}, 160 glc"), fcheck)
        elif self.csleep:
            a(f"s_sleep {self.csleep}")
        elif self.ackwait:
            a("s_waitcnt vmcnt(0)")

        def floads():
            a(f"global_load_dwordx4 {vr(F, 4)}, {vr(AF)}, {sWS} sc1\nglobal_load_dwordx4 {vr(F + 4, 4)}, {vr(AF)}, {sWS} offset:2048 sc1")
            a(f"global_load_dwordx4 {vr(F + 8, 4)}, {vr(AF + 1)}, {sWS} sc1")
        self.poll(floads, lambda: self.chk(F + 12, [F, F + 4, F + 8]))
        self.count(2)
        for i in range(8):
            a(f"v_and_b32 {vr(F + i)}, {vr(MK)}, {vr(F + i)}")
        for i in range(4):
            a(f"v_and_b32 {vr(F + 8 + i)}, {vr(FM)}, {vr(F + 8 + i)}")
        for k in (4, 8):
            for i in (0, 2):
                a(f"v_pk_add_f32 {vr(F + i, 2)}, {vr(F + i, 2)}, {vr(F + k + i, 2)}")
        self.tr_reduce4(F, (4, 8))
        self.bf16r(F, F)
        a("s_mov_b32 exec_lo, 0x000f000f\ns_mov_b32 exec_hi, 0x000f000f")
        a(f"v_add_f32 {vr(F)}, {vr(F)}, {vr(HV)}\nv_cvt_pk_bf16_f32 {vr(F)}, {vr(F)}, {vr(F)}")
        a(f"global_store_short {vr(AO)}, {vr(F)}, {sOUT} {self.outf}")
        self.stamp(14)
        if self.bump != "early" or self.pad:
            a(f"s_or_b32 {sA}, {sF}, {sw}\ns_cmp_lg_u32 {sA}, 0\ns_cbranch_scc1 L_none")
        if self.bump != "early":
            a(f"v_mov_b32 v2, 0\nv_mov_b32 v3, {sT}\ns_mov_b64 exec, 1\nglobal_store_dword v2, v3, {sWS} sc1")
        if self.pad:
            a(f"s_mov_b32 s88, {self.pad}")
            if self.probe in ("smax", "smin", "smed"):
                op = "v_max_i32" if self.probe == "smax" else ("v_min_i32" if self.probe == "smin" else "v_add_u32")
                a(f"s_mov_b64 exec, -1\nv_lshlrev_b32 v2, 4, v1\nv_add_u32 v2, {WS_ST}, v2\nglobal_load_dwordx4 v[4:7], v2, {sWS} sc1\ns_waitcnt vmcnt(0)")
                for i in range(4):
                    a(f"v_subrev_u32 v{4 + i}, s80, v{4 + i}")
                a(f"{op} v4, v4, v5\n{op} v6, v6, v7\n{op} v4, v4, v6")
                self.dppred(op, [4], [f"row_ror:{r}" for r in (1, 2, 4, 8)])
                self.redrows(op, [4], 5)
                if self.probe == "smed":
                    a("v_ashrrev_i32 v4, 8, v4")
                a("v_readfirstlane_b32 s84, v4\ns_add_u32 s84, s84, 300\ns_add_u32 s84, s84, s80")
            if self.probe is not None:
                a("s_waitcnt lgkmcnt(0)\ns_sub_u32 s84, s84, s80\ns_lshl_b32 s84, s84, 2\ns_min_u32 s84, s84, 20000\ns_add_u32 s88, s88, s84")
            a("L_pad:\ns_memrealtime s[86:87]\ns_waitcnt lgkmcnt(0)\ns_sub_u32 s86, s86, s80\ns_cmp_lt_u32 s86, s88\ns_cbranch_scc1 L_pad")
        self.end()


if __name__ == "__main__":
    out = sys.argv[1]
    kw = {}
    for x in sys.argv[2:]:
        k, v = x.split("=")
        kw[k] = {"True": True, "False": False}.get(v, v)
    g = Gen(**kw)
    open(out, "w").write(g.build())
    print("written", out, "nops", g.nops)
```
